```python
import torch

def _softmax(x, axis=-1):
    return torch.softmax(x, dim=axis)
def _gelu(x):
    return torch.nn.functional.gelu(x, approximate="tanh")
def _silu(x):
    return torch.nn.functional.silu(x)
def _sigmoid(x):
    return torch.sigmoid(x)
def _layernorm(x, axis=-1, eps=1e-5):
    m = x.mean(dim=axis, keepdim=True)
    v = x.var(dim=axis, keepdim=True, unbiased=False)
    return (x - m) / torch.sqrt(v + eps)
def _scatter_add(tgt, idx, src, axis=0):
    return tgt.clone().index_add_(axis, idx, src)
def _segment_sum(src, seg, n):
    out = torch.zeros((n,) + src.shape[1:], dtype=src.dtype)
    return out.index_add_(0, seg, src)
def _pad(x, pw):
    flat = tuple(v for pair in reversed(pw) for v in pair)
    return torch.nn.functional.pad(x, flat)

kernel_name = 'parallel_sum__gqa_block_cached__dense_activation_silu__decode'

def setup_inputs():

    _w = (lambda a: (lambda t: t.to(torch.bfloat16) if t.is_floating_point() else t)(torch.as_tensor(a)))
    def _A_setup():
        B, Sq, D = 1, 1, 576
        Hq, Hkv, Sk, Dh = 32, 16, 65536, 128
        assert Hq % Hkv == 0, (Hq, Hkv)
        return {
            "x": _w((lambda *s: torch.randn(*s, dtype=torch.bfloat16) * 0.05)(B, Sq, D)),
            "k_cache": _w((lambda *s: torch.randn(*s, dtype=torch.bfloat16) * 3.2)(B, Hkv, Sk, Dh)),
            "v_cache": _w((lambda *s: torch.randn(*s, dtype=torch.bfloat16) * 0.8)(B, Hkv, Sk, Dh)),
            "wq": _w((lambda *s: torch.randn(*s, dtype=torch.bfloat16) * 3.2)(D, Hq * Dh) * (D ** -0.5)),
            "wo": _w((lambda *s: torch.randn(*s, dtype=torch.bfloat16) * 0.8)(Hq * Dh, D) * ((Hq * Dh) ** -0.5)),
        }
    _A_in = _A_setup()

    def _B_setup():
        B, S, D, F = 1, 1, 576, 4608
        return {
            "x": _w((lambda *s: torch.randn(*s, dtype=torch.bfloat16) * 0.05)(B, S, D)),
            "w1": _w((lambda *s: torch.randn(*s, dtype=torch.bfloat16) * 3.2)(D, F) * (D ** -0.5)),
            "w2": _w((lambda *s: torch.randn(*s, dtype=torch.bfloat16) * 0.4)(F, D) * (F ** -0.5)),
        }
    _B_in = _B_setup()

    return {
        "A_x": _A_in["x"],
        "A_k_cache": _A_in["k_cache"],
        "A_v_cache": _A_in["v_cache"],
        "A_wq": _A_in["wq"],
        "A_wo": _A_in["wo"],
        "B_x": _B_in["x"],
        "B_w1": _B_in["w1"],
        "B_w2": _B_in["w2"],
    }

def reference(A_x, A_k_cache, A_v_cache, A_wq, A_wo, B_x, B_w1, B_w2):
    def _A_ref(x, k_cache, v_cache, wq, wo):
        B, Sq, D = x.shape
        Hq, Dh = 32, 128
        Hkv = k_cache.shape[1]
        rep = Hq // Hkv
        q = (lambda x, *d: x.permute(*d))((x @ wq).reshape(B, Sq, Hq, Dh), 0, 2, 1, 3)
        k = (lambda x, n, axis: torch.repeat_interleave(x, n, dim=axis))(k_cache, rep, axis=1)
        v = (lambda x, n, axis: torch.repeat_interleave(x, n, dim=axis))(v_cache, rep, axis=1)
        scores = torch.einsum("bhqd,bhkd->bhqk", q, k) * (Dh ** -0.5)
        p = _softmax(scores, axis=-1)
        o = torch.einsum("bhqk,bhkd->bhqd", p, v)
        return (lambda x, *d: x.permute(*d))(o, 0, 2, 1, 3).reshape(B, Sq, Hq * Dh) @ wo

    def _B_ref(x, w1, w2):
        h = torch.einsum("bsd,df->bsf", x, w1)
        h = _silu(h)
        out = torch.einsum("bsf,fd->bsd", h, w2)
        return out

    x = A_x
    xn = _layernorm(x, axis=-1)
    return x + _A_ref(xn, A_k_cache, A_v_cache, A_wq, A_wo) + _B_ref(xn, B_w1, B_w2)
```

```python
import sys

KNAME = 'parallel_sum__gqa_block_cached__dense_activation_silu__decode_kernel'

HEADER = '''; Kernarg layout for this problem (88 bytes, ptrs only, base s[0:1]):
'''

RING = 32768
STG = 0x20000
XN = 0x24800
QL = 0x24D00
FL = 0x25000
OC = 0x25100
OCML = 0x26100
OB = 0x26180
RED = 0x261C0
FFNR = 0x26200
LDS_BYTES = 0x28000

WS_EPOCH = 0x0
WS_Q = 0x1000
WS_P = 0x100000
WS_Y = 0x200000
WS_F = 0x400000
WS_DBG = 0x800000

SCALE = 0x3DB504F3
LOG2E = 0x3FB8AA3B
SPIN = 0x40000


class Gen:
    def __init__(self, W=5, rot=5, headmap='lin', stamps=False, nunits=64):
        self.o = []
        self.W = W
        self.rot = rot
        self.headmap = headmap
        self.stamps = stamps
        self.nunits = nunits
        self.uid = 0

    def A(self, s):
        self.o.append('  ' + s)

    def L(self, s):
        self.o.append(s + ':')

    def lab(self, base):
        self.uid += 1
        return f'{base}_{self.uid}'

    def stamp(self, idx, vtmp=126):
        if not self.stamps:
            return
        A = self.A
        A('s_memrealtime s[90:91]')
        A('s_lshl_b32 s92, s2, 7')
        A(f's_add_u32 s92, s92, {WS_DBG + idx * 4}')
        A('s_add_u32 s94, s24, s92')
        A('s_addc_u32 s95, s25, 0')
        A('s_waitcnt lgkmcnt(0)')
        A(f'v_mov_b32 v{vtmp}, s90')
        A(f'v_mov_b32 v{vtmp+1}, 0')
        A('s_mov_b64 s[92:93], exec')
        A('s_mov_b64 exec, 1')
        A(f'global_store_dword v{vtmp+1}, v{vtmp}, s[94:95]')
        A('s_mov_b64 exec, s[92:93]')

    def xrow(self, op, v, t):
        A = self.A
        A(f'v_mov_b32 v{t}, v{v}')
        A('s_nop 1')
        A(f'v_permlane16_swap_b32 v{v}, v{t}')
        A('s_nop 1')
        A(f'{op} v{v}, v{v}, v{t}')
        A(f'v_mov_b32 v{t}, v{v}')
        A('s_nop 1')
        A(f'v_permlane32_swap_b32 v{v}, v{t}')
        A('s_nop 1')
        A(f'{op} v{v}, v{v}, v{t}')

    def rowred(self, op, v, rors=(8, 4, 2, 1)):
        A = self.A
        for r in rors:
            A('s_nop 1')
            A(f'{op}_dpp v{v}, v{v}, v{v} row_ror:{r} row_mask:0xf bank_mask:0xf')

    def wavesum(self, v, t):
        self.rowred('v_add_f32', v)
        self.xrow('v_add_f32', v, t)

    def bf16r(self, dst, src, t):
        self.A(f'v_cvt_pk_bf16_f32 v{t}, v{src}, v{src}')
        self.A(f'v_lshlrev_b32 v{dst}, 16, v{t}')

    def spin_begin(self, sreg):
        self.A(f's_mov_b32 s{sreg}, {SPIN}')

    def spin_retry(self, sreg, loop, sleep=2):
        A = self.A
        A(f's_sleep {sleep}')
        A(f's_sub_u32 s{sreg}, s{sreg}, 1')
        A(f's_cmp_lg_u32 s{sreg}, 0')
        A(f's_cbranch_scc1 {loop}')

    def wg_of(self, dst, s_h, s_or_imm_j):
        pass

    def entry(self):
        A = self.A
        A('s_cmp_ge_u32 s2, 256')
        A('s_cbranch_scc1 L_end')
        A('s_load_dwordx16 s[4:19], s[0:1], 0')
        A('s_load_dwordx4 s[20:23], s[0:1], 64')
        A('s_load_dwordx2 s[24:25], s[0:1], 80')
        A('v_lshrrev_b32 v1, 6, v0')
        if self.headmap == 'lin':
            A('s_lshr_b32 s27, s2, 4')
            A('s_and_b32 s28, s2, 15')
        else:
            A('s_and_b32 s27, s2, 7')
            A('s_lshl_b32 s27, s27, 1')
            A('s_lshr_b32 s28, s2, 3')
            A('s_and_b32 s28, s28, 1')
            A('s_add_u32 s27, s27, s28')
            A('s_lshr_b32 s28, s2, 4')
        A('v_readfirstlane_b32 s26, v1')
        A('v_and_b32 v1, 63, v0')
        A('s_cmp_lg_u32 s26, 0')
        A('s_cbranch_scc1 L_noinit')
        A(f'v_lshlrev_b32 v2, 2, v1')
        A(f'v_add_u32 v2, {FL}, v2')
        A('v_mov_b32 v3, 0')
        A('ds_write_b32 v2, v3')
        self.L('L_noinit')
        A('s_waitcnt lgkmcnt(0)')
        A('s_barrier')
        A('s_cmp_ge_u32 s26, 8')
        A('s_cbranch_scc1 L_helper')
        A('s_cmp_ge_u32 s26, 4')
        A('s_cbranch_scc1 L_loader')

    def loader(self):
        A, W = self.A, self.W
        self.L('L_loader')
        A('s_sub_u32 s29, s26, 4')
        A('s_lshl_b32 s40, s27, 24')
        A('s_add_u32 s30, s6, s40')
        A('s_addc_u32 s31, s7, 0')
        A('s_add_u32 s32, s8, s40')
        A('s_addc_u32 s33, s9, 0')
        A('s_lshl_b32 s41, s28, 2')
        A('s_add_u32 s41, s41, s29')
        A(f's_mul_i32 s40, s27, {self.rot * 64}')
        A('s_add_u32 s41, s41, s40')
        A('s_and_b32 s41, s41, 4095')
        A(f's_mul_i32 s38, s29, {RING}')
        A('v_lshrrev_b32 v2, 4, v1')
        A('v_and_b32 v3, 15, v1')
        A('v_lshlrev_b32 v4, 1, v2')
        A('v_xor_b32 v3, v3, v4')
        A('v_lshlrev_b32 v3, 4, v3')
        A('v_lshl_add_u32 v6, v2, 8, v3')
        A('v_xor_b32 v7, 128, v6')
        A('s_lshl_b32 s40, s29, 2')
        A(f's_add_u32 s40, s40, {FL}')
        A('v_mov_b32 v8, s40')
        A('s_mov_b32 s35, 0')
        A('s_mov_b32 s39, 0')
        A('v_mov_b32 v10, 0')
        A('s_setprio 2')
        pub_pos = (W - 1) % 8
        pub_off = (pub_pos - W + 1) // 8

        def publish(val_sreg_or_expr):
            A(f'v_mov_b32 v9, {val_sreg_or_expr}')
            A('s_mov_b64 exec, 1')
            A('ds_write_b32 v8, v9')
            A('s_mov_b64 exec, -1')

        self.L('L_ld_loop')
        for u in range(4):
            ok = self.lab('L_ld_ok')
            sp = self.lab('L_ld_spin')
            A('s_waitcnt lgkmcnt(0)')
            if True:
                A('v_readfirstlane_b32 s39, v10')
            A('s_add_u32 s40, s39, 3')
            A('s_cmp_ge_u32 s40, s35')
            A(f's_cbranch_scc1 {ok}')
            A('s_waitcnt vmcnt(0)')
            publish('s35')
            self.spin_begin(42)
            self.L(sp)
            A('ds_read_b32 v10, v8 offset:16')
            A('s_waitcnt lgkmcnt(0)')
            A('v_readfirstlane_b32 s39, v10')
            A('s_add_u32 s40, s39, 3')
            A('s_cmp_ge_u32 s40, s35')
            A(f's_cbranch_scc1 {ok}')
            self.spin_retry(42, sp, sleep=1)
            self.L(ok)
            A('s_lshl_b32 s40, s41, 12')
            for kv in range(2):
                A(f's_add_u32 s36, s{30 + 2 * kv}, s40')
                A(f's_addc_u32 s37, s{31 + 2 * kv}, 0')
                A(f's_add_u32 m0, s38, {(2 * u + kv) * 4096}')
                for jj in range(4):
                    A(f's_waitcnt vmcnt({W - 1})')
                    if kv * 4 + jj == pub_pos:
                        skip = self.lab('L_ld_np')
                        if pub_off < 0:
                            A(f's_cmp_lt_u32 s35, {-pub_off}')
                            A(f's_cbranch_scc1 {skip}')
                            A(f's_sub_u32 s43, s35, {-pub_off}')
                            publish('s43')
                            self.L(skip)
                        else:
                            publish('s35')
                    A(f'global_load_lds_dwordx4 v{6 + (jj & 1)}, s[36:37] offset:{jj * 1024} nt')
            A('ds_read_b32 v10, v8 offset:16')
            A('s_add_u32 s41, s41, 64')
            A('s_and_b32 s41, s41, 4095')
            A('s_add_u32 s35, s35, 1')
        A(f's_cmp_lt_u32 s35, {self.nunits}')
        A('s_cbranch_scc1 L_ld_loop')
        A('s_waitcnt vmcnt(0)')
        publish('s35')
        A('s_waitcnt lgkmcnt(0)')
        A('s_endpgm')

    def consumer(self):
        A = self.A
        KA, VA, FA = 2, 6, 14
        Q, O, KF, VF, S = 16, 32, 64, 80, 96
        MC, LS = 100, 101
        T = 102
        P = 118
        A(f's_mul_i32 s38, s26, {RING}')
        A('v_and_b32 v20, 15, v1')
        A('v_lshrrev_b32 v21, 4, v1')
        A('v_and_b32 v22, 7, v20')
        A('v_lshlrev_b32 v22, 1, v22')
        A('v_lshlrev_b32 v23, 8, v20')
        A('v_add_u32 v23, s38, v23')
        for i in range(4):
            A(f'v_add_u32 v24, {4 * i}, v21')
            A('v_xor_b32 v24, v24, v22')
            A(f'v_lshl_add_u32 v{KA + i}, v24, 4, v23')
        A('v_lshrrev_b32 v22, 2, v20')
        A('v_lshl_add_u32 v22, v21, 2, v22')
        A('v_and_b32 v24, 7, v22')
        A('v_lshlrev_b32 v23, 8, v22')
        A('v_add_u32 v23, s38, v23')
        A('v_and_b32 v25, 3, v20')
        A('v_lshl_add_u32 v23, v25, 3, v23')
        for m in range(8):
            A(f'v_xor_b32 v25, {m}, v24')
            A(f'v_lshl_add_u32 v{VA + m}, v25, 5, v23')
        A('s_lshl_b32 s40, s26, 2')
        A(f's_add_u32 s40, s40, {FL}')
        A(f'v_mov_b32 v{FA}, s40')
        for r in range(32):
            A(f'v_mov_b32 v{O + r}, 0')
        A(f'v_mov_b32 v{MC}, 0xff800000')
        A(f'v_mov_b32 v{LS}, 0')
        A(f's_mov_b32 s44, {LOG2E}')
        A(f'v_mov_b32 v{T}, {FL}')
        self.spin_begin(42)
        self.L('L_c_qwait')
        A(f'ds_read_b64 v[{T+2}:{T+3}], v{T} offset:32')
        A('s_waitcnt lgkmcnt(0)')
        A(f'v_readfirstlane_b32 s40, v{T+2}')
        A(f'v_readfirstlane_b32 s29, v{T+3}')
        A('s_cmp_lg_u32 s40, 0')
        A('s_cbranch_scc1 L_c_qok')
        self.spin_retry(42, 'L_c_qwait', sleep=2)
        self.L('L_c_qok')
        A(f'v_and_b32 v{T}, 1, v20')
        A(f'v_lshlrev_b32 v{T}, 8, v{T}')
        A(f'v_lshl_add_u32 v{T}, v21, 4, v{T}')
        A(f'v_add_u32 v{T}, {QL}, v{T}')
        for i in range(4):
            A(f'ds_read_b128 v[{Q + 4*i}:{Q + 4*i + 3}], v{T} offset:{64 * i}')
        A('s_waitcnt lgkmcnt(0)')
        if self.stamps:
            A('s_cmp_lg_u32 s26, 0')
            A('s_cbranch_scc1 L_c_ns1')
            self.stamp(1)
            self.L('L_c_ns1')
        A('s_mov_b32 s35, 0')
        A('s_mov_b32 s39, 0')
        self.L('L_c_loop')
        for u in range(4):
            go = self.lab('L_c_go')
            pl = self.lab('L_c_poll')
            nr = self.lab('L_c_nr')
            A('s_cmp_gt_u32 s39, s35')
            A(f's_cbranch_scc1 {go}')
            self.spin_begin(42)
            self.L(pl)
            A(f'ds_read_b32 v{T}, v{FA}')
            A('s_waitcnt lgkmcnt(0)')
            A(f'v_readfirstlane_b32 s39, v{T}')
            A('s_cmp_gt_u32 s39, s35')
            A(f's_cbranch_scc1 {go}')
            self.spin_retry(42, pl, sleep=1)
            self.L(go)
            for i in range(4):
                A(f'ds_read_b128 v[{KF + 4*i}:{KF + 4*i + 3}], v{KA + i} offset:{(2*u) * 4096}')
            for m in range(8):
                A(f'ds_read_b64_tr_b16 v[{VF + 2*m}:{VF + 2*m + 1}], v{VA + m} offset:{(2*u + 1) * 4096}')
            A('s_add_u32 s35, s35, 1')
            A('s_waitcnt lgkmcnt(8)')
            for i in range(4):
                c = '0' if i == 0 else f'v[{S}:{S+3}]'
                A(f'v_mfma_f32_16x16x32_bf16 v[{S}:{S+3}], v[{KF + 4*i}:{KF + 4*i + 3}], v[{Q + 4*i}:{Q + 4*i + 3}], {c}')
            A(f'v_mov_b32 v{T}, s35')
            A('s_waitcnt lgkmcnt(0)')
            A('s_mov_b64 exec, 1')
            A(f'ds_write_b32 v{FA}, v{T} offset:16')
            A('s_mov_b64 exec, -1')
            A('s_nop 3')
            A(f'v_cvt_pk_bf16_f32 v{T}, v{S}, v{S+1}')
            A(f'v_cvt_pk_bf16_f32 v{T+1}, v{S+2}, v{S+3}')
            A(f'v_lshlrev_b32 v{T+2}, 16, v{T}')
            A(f'v_and_b32 v{T+3}, 0xffff0000, v{T}')
            A(f'v_lshlrev_b32 v{T+4}, 16, v{T+1}')
            A(f'v_and_b32 v{T+5}, 0xffff0000, v{T+1}')
            for r in range(4):
                A(f'v_mul_f32 v{T+2+r}, {SCALE:#x}, v{T+2+r}')
            A(f'v_cvt_pk_bf16_f32 v{T}, v{T+2}, v{T+3}')
            A(f'v_cvt_pk_bf16_f32 v{T+1}, v{T+4}, v{T+5}')
            A(f'v_lshlrev_b32 v{T+2}, 16, v{T}')
            A(f'v_and_b32 v{T+3}, 0xffff0000, v{T}')
            A(f'v_lshlrev_b32 v{T+4}, 16, v{T+1}')
            A(f'v_and_b32 v{T+5}, 0xffff0000, v{T+1}')
            A(f'v_max3_f32 v{T+6}, v{T+2}, v{T+3}, v{T+4}')
            A(f'v_max_f32 v{T+6}, v{T+6}, v{T+5}')
            A(f'v_mul_f32 v{T+6}, s44, v{T+6}')
            A(f'v_cmp_gt_f32 vcc, v{T+6}, v{MC}')
            A(f's_cbranch_vccz {nr}')
            self.xrow('v_max_f32', T + 6, T + 7)
            A(f'v_max_f32 v{T+6}, v{T+6}, v{MC}')
            A(f'v_sub_f32 v{T+7}, v{MC}, v{T+6}')
            A(f'v_exp_f32 v{T+7}, v{T+7}')
            A(f'v_mov_b32 v{MC}, v{T+6}')
            A(f'v_mul_f32 v{LS}, v{LS}, v{T+7}')
            for r in range(32):
                A(f'v_mul_f32 v{O + r}, v{O + r}, v{T+7}')
            self.L(nr)
            for r in range(4):
                A(f'v_fma_f32 v{T+2+r}, v{T+2+r}, s44, -v{MC}')
            for r in range(4):
                A(f'v_exp_f32 v{T+2+r}, v{T+2+r}')
            A('s_nop 0')
            A(f'v_cvt_pk_bf16_f32 v{P}, v{T+2}, v{T+3}')
            A(f'v_cvt_pk_bf16_f32 v{P+1}, v{T+4}, v{T+5}')
            A(f'v_add_f32 v{T+2}, v{T+2}, v{T+3}')
            A(f'v_add_f32 v{T+4}, v{T+4}, v{T+5}')
            A(f'v_add_f32 v{LS}, v{LS}, v{T+2}')
            A(f'v_add_f32 v{LS}, v{LS}, v{T+4}')
            for m in range(8):
                A(f'v_mfma_f32_16x16x16_bf16 v[{O + 4*m}:{O + 4*m + 3}], v[{VF + 2*m}:{VF + 2*m + 1}], v[{P}:{P+1}], v[{O + 4*m}:{O + 4*m + 3}]')
        A(f's_cmp_lt_u32 s35, {self.nunits}')
        A('s_cbranch_scc1 L_c_loop')

        if self.stamps:
            A('s_cmp_lg_u32 s26, 0')
            A('s_cbranch_scc1 L_c_ns2')
            self.stamp(2)
            self.L('L_c_ns2')
        self.xrow('v_add_f32', LS, T)
        A('s_nop 7')
        A(f'v_and_b32 v{T}, 15, v1')
        A(f'v_lshrrev_b32 v{T+1}, 4, v1')
        A(f'v_lshlrev_b32 v{T+2}, 9, v{T}')
        A(f'v_lshl_add_u32 v{T+2}, v{T+1}, 4, v{T+2}')
        A('s_lshl_b32 s40, s26, 10')
        A(f's_add_u32 s40, s40, {OC}')
        A(f'v_add_u32 v{T+2}, s40, v{T+2}')
        A('s_mov_b32 s46, 0x00030003')
        A('s_mov_b32 s47, 0x00030003')
        A('s_mov_b64 exec, s[46:47]')
        for m in range(8):
            A(f'ds_write_b128 v{T+2}, v[{O + 4*m}:{O + 4*m + 3}] offset:{64 * m}')
        A('s_lshl_b32 s40, s26, 4')
        A(f's_add_u32 s40, s40, {OCML}')
        A(f'v_lshlrev_b32 v{T+3}, 3, v{T}')
        A(f'v_add_u32 v{T+3}, s40, v{T+3}')
        A('s_mov_b64 exec, 3')
        A(f'ds_write_b64 v{T+3}, v[{MC}:{LS}]')
        A('s_mov_b64 exec, -1')
        A('s_waitcnt lgkmcnt(0)')
        A('s_barrier')
        A('s_lshl_b32 s40, s26, 6')
        A(f'v_add_u32 v{T}, s40, v1')
        A(f'v_lshlrev_b32 v{T+1}, 2, v{T}')
        A(f'v_add_u32 v{T+1}, {OC}, v{T+1}')
        A('s_lshr_b32 s40, s26, 1')
        A('s_lshl_b32 s45, s40, 3')
        A(f's_add_u32 s45, s45, {OCML}')
        A(f'v_mov_b32 v{T+2}, s45')
        for k in range(4):
            A(f'ds_read_b32 v{64 + k}, v{T+1} offset:{1024 * k}')
        for k in range(4):
            A(f'ds_read_b64 v[{70 + 2*k}:{71 + 2*k}], v{T+2} offset:{16 * k}')
        A('s_waitcnt lgkmcnt(0)')
        A('v_max3_f32 v80, v70, v72, v74')
        A('v_max_f32 v80, v80, v76')
        for k in range(4):
            A(f'v_sub_f32 v{82 + k}, v{70 + 2*k}, v80')
        for k in range(4):
            A(f'v_exp_f32 v{82 + k}, v{82 + k}')
        A('s_nop 0')
        A('v_mul_f32 v86, v64, v82')
        A('v_mul_f32 v88, v71, v82')
        for k in range(1, 4):
            A(f'v_fmac_f32 v86, v{64 + k}, v{82 + k}')
            A(f'v_fmac_f32 v88, v{71 + 2*k}, v{82 + k}')
        A('v_mov_b32 v87, s29')
        A('s_lshl_b32 s45, s2, 12')
        A(f's_add_u32 s45, s45, {WS_P}')
        A('s_add_u32 s48, s24, s45')
        A('s_addc_u32 s49, s25, 0')
        A(f'v_lshlrev_b32 v{T+3}, 3, v{T}')
        A(f'global_store_dwordx2 v{T+3}, v[86:87], s[48:49] sc1')
        A('s_and_b32 s45, s26, 1')
        A('s_cmp_lg_u32 s45, 0')
        A('s_cbranch_scc1 L_c_noml')
        A('v_mov_b32 v90, v80')
        A('v_mov_b32 v91, s29')
        A('v_mov_b32 v92, v88')
        A('v_mov_b32 v93, s29')
        A('s_lshl_b32 s45, s40, 4')
        A('s_add_u32 s45, s45, 2048')
        A(f'v_mov_b32 v{T+4}, s45')
        A('s_mov_b64 exec, 1')
        A(f'global_store_dwordx4 v{T+4}, v[90:93], s[48:49] sc1')
        A('s_mov_b64 exec, -1')
        self.L('L_c_noml')
        if self.stamps:
            A('s_cmp_lg_u32 s26, 0')
            A('s_cbranch_scc1 L_c_ns3')
            self.stamp(3)
            self.L('L_c_ns3')
        A('s_lshl_b32 s45, s2, 3')
        A(f'v_lshlrev_b32 v{T+5}, 1, v1')
        A(f'v_add_u32 v{T+5}, s45, v{T+5}')
        A('s_mov_b32 s52, s4')
        A('s_mov_b32 s53, s5')
        A('s_mov_b32 s54, 1152')
        A('s_mov_b32 s55, 0x00020000')
        A(f'buffer_load_ushort v120, v{T+5}, s[52:55], 0 offen')
        A('s_barrier')
        if self.stamps:
            A('s_cmp_lg_u32 s26, 0')
            A('s_cbranch_scc1 L_c_ns4')
            self.stamp(4)
            self.L('L_c_ns4')
        A(f'v_and_b32 v{T}, 15, v1')
        A(f'v_lshrrev_b32 v{T+1}, 4, v1')
        A(f'v_lshlrev_b32 v{T+2}, 3, v{T+1}')
        A(f'v_add_u32 v{T+2}, {OB}, v{T+2}')
        A(f'ds_read_b64 v[64:65], v{T+2}')
        A(f'v_lshrrev_b32 v{T+3}, 2, v{T}')
        A(f'v_lshl_add_u32 v{T+3}, v{T+1}, 2, v{T+3}')
        A(f'v_mul_u32_u24 v{T+3}, 1152, v{T+3}')
        A(f'v_and_b32 v{T+4}, 3, v{T}')
        A(f'v_lshl_add_u32 v{T+3}, v{T+4}, 3, v{T+3}')
        A('s_mul_i32 s45, s26, 288')
        A(f's_add_u32 s45, s45, {STG}')
        A(f'v_add_u32 v{T+3}, s45, v{T+3}')
        for t in range(9):
            A(f'ds_read_b64_tr_b16 v[{68 + 2*t}:{69 + 2*t}], v{T+3} offset:{32 * t}')
        for r in range(4):
            A(f'v_mov_b32 v{96 + r}, 0')
        A('s_mov_b32 s46, 0x00010001')
        A('s_mov_b32 s47, 0x00010001')
        A('s_waitcnt lgkmcnt(0)')
        for t in range(9):
            A(f'v_cndmask_b32 v{88 + 2*(t&1)}, 0, v64, s[46:47]')
            A(f'v_cndmask_b32 v{89 + 2*(t&1)}, 0, v65, s[46:47]')
            A('s_lshl_b64 s[46:47], s[46:47], 1')
            A('s_nop 0')
            A(f'v_mfma_f32_16x16x16_bf16 v[96:99], v[{88 + 2*(t&1)}:{89 + 2*(t&1)}], v[{68 + 2*t}:{69 + 2*t}], v[96:99]')
        A('s_mul_i32 s45, s2, 4608')
        A(f's_add_u32 s45, s45, {WS_Y}')
        A('s_add_u32 s48, s24, s45')
        A('s_addc_u32 s49, s25, 0')
        A('s_mul_i32 s45, s26, 1152')
        A(f'v_lshlrev_b32 v{T+2}, 9, v{T+1}')
        A(f'v_lshl_add_u32 v{T+2}, v{T}, 3, v{T+2}')
        A(f'v_add_u32 v{T+2}, s45, v{T+2}')
        A('s_nop 4')
        for r in range(4):
            A(f'v_mov_b32 v{112 + 2*r}, v{96 + r}')
            A(f'v_mov_b32 v{113 + 2*r}, s29')
        for r in range(4):
            A('s_mov_b32 s46, -1')
            A(f's_mov_b32 s47, {0xffff if r == 0 else 0}')
            A('s_mov_b64 exec, s[46:47]')
            A(f'global_store_dwordx2 v{T+2}, v[{112 + 2*r}:{113 + 2*r}], s[48:49] offset:{128 * r} sc1')
        A('s_mov_b64 exec, -1')
        if self.stamps:
            A('s_cmp_lg_u32 s26, 0')
            A('s_cbranch_scc1 L_c_ns5')
            self.stamp(5)
            self.L('L_c_ns5')
        A('s_cmp_ge_u32 s2, 144')
        A('s_cbranch_scc1 L_end')
        A('s_lshl_b32 s45, s26, 6')
        A(f'v_add_u32 v{T}, s45, v1')
        A(f'v_mul_u32_u24 v{T}, 4608, v{T}')
        A('s_lshl_b32 s45, s2, 5')
        A(f's_add_u32 s45, s45, {WS_Y}')
        A('s_add_u32 s48, s24, s45')
        A('s_addc_u32 s49, s25, 0')
        self.spin_begin(42)
        self.L('L_c_dpoll')
        A(f'global_load_dwordx4 v[64:67], v{T}, s[48:49] sc1')
        A(f'global_load_dwordx4 v[68:71], v{T}, s[48:49] offset:16 sc1')
        A('s_waitcnt vmcnt(0)')
        A('v_xor_b32 v72, s29, v65')
        A('v_xor_b32 v73, s29, v67')
        A('v_xor_b32 v74, s29, v69')
        A('v_xor_b32 v75, s29, v71')
        A('v_or_b32 v72, v72, v73')
        A('v_or3_b32 v72, v72, v74, v75')
        A('v_cmp_ne_u32 vcc, 0, v72')
        A('s_cbranch_vccz L_c_dok')
        self.spin_retry(42, 'L_c_dpoll', sleep=4)
        self.L('L_c_dok')
        for r in (64, 66, 68, 70):
            self.wavesum(r, 72)
        A('v_mov_b32 v65, v66')
        A('v_mov_b32 v66, v68')
        A('v_mov_b32 v67, v70')
        A('s_lshl_b32 s45, s26, 4')
        A(f's_add_u32 s45, s45, {RED}')
        A('v_mov_b32 v72, s45')
        A('s_mov_b64 exec, 1')
        A('ds_write_b128 v72, v[64:67]')
        A('s_mov_b64 exec, -1')
        A('s_waitcnt lgkmcnt(0)')
        A('s_barrier')
        A('s_cmp_lg_u32 s26, 0')
        A('s_cbranch_scc1 L_end')
        A('v_lshlrev_b32 v72, 2, v1')
        A(f'v_add_u32 v73, {RED}, v72')
        for k in range(4):
            A(f'ds_read_b32 v{64 + k}, v73 offset:{16 * k}')
        A(f'v_add_u32 v73, {FFNR}, v72')
        A('ds_read_b32 v68, v73')
        A('s_waitcnt lgkmcnt(0) vmcnt(0)')
        A('v_add_f32 v64, v64, v65')
        A('v_add_f32 v66, v66, v67')
        A('v_add_f32 v64, v64, v66')
        self.bf16r(64, 64, 70)
        self.bf16r(68, 68, 70)
        A('v_lshlrev_b32 v69, 16, v120')
        A('v_add_f32 v64, v69, v64')
        self.bf16r(64, 64, 70)
        A('v_add_f32 v64, v64, v68')
        A('v_cvt_pk_bf16_f32 v64, v64, v64')
        A('s_mov_b32 s52, s20')
        A('s_mov_b32 s53, s21')
        A('s_mov_b32 s54, 1152')
        A('s_mov_b32 s55, 0x00020000')
        A('s_mov_b64 exec, 15')
        A(f'buffer_store_short v64, v{T+5}, s[52:55], 0 offen')
        A('s_mov_b64 exec, -1')
        if self.stamps:
            self.stamp(6)
        A('s_cmp_lg_u32 s2, 0')
        A('s_cbranch_scc1 L_end')
        A('v_mov_b32 v64, s29')
        A('v_mov_b32 v65, 0')
        A('s_mov_b64 exec, 1')
        A('global_store_dword v65, v64, s[24:25] sc1')
        A('s_branch L_end')

    def gemv576(self, acc):
        A = self.A
        NB = 5
        def rd(s):
            b = 40 + 8 * (s % NB)
            A(f'ds_read_b128 v[{b}:{b+3}], v20 offset:{64 * s}')
            A(f'ds_read_b64_tr_b16 v[{b+4}:{b+5}], v21 offset:{1024 * s}')
            A(f'ds_read_b64_tr_b16 v[{b+6}:{b+7}], v21 offset:{1024 * s + 128}')
        for s in range(NB):
            rd(s)
        for s in range(18):
            left = min(18, s + NB) - s - 1
            A(f's_waitcnt lgkmcnt({3 * left})')
            b = 40 + 8 * (s % NB)
            c = '0' if s == 0 else f'v[{acc}:{acc+3}]'
            A(f'v_mfma_f32_16x16x32_bf16 v[{acc}:{acc+3}], v[{b}:{b+3}], v[{b+4}:{b+7}], {c}')
            if s + NB < 18:
                rd(s + NB)
        A('s_nop 7')

    def dma_cols(self, sbase, pitch):
        A = self.A
        A(f's_mov_b32 s36, s{sbase}')
        A(f's_mov_b32 s37, s{sbase+1}')
        for s in range(18):
            A(f's_mov_b32 m0, {STG + 1024 * s}')
            A('s_nop 0')
            A('global_load_lds_dwordx4 v22, s[36:37] nt')
            if s < 17:
                A(f's_add_u32 s36, s36, {32 * pitch}')
                A('s_addc_u32 s37, s37, 0')

    def dma_rows(self, sbase):
        A = self.A
        A(f's_mov_b32 s36, s{sbase}')
        A(f's_mov_b32 s37, s{sbase+1}')
        for s in range(18):
            if s % 4 == 0:
                A(f's_mov_b32 m0, {STG + 1024 * s}')
                A('s_nop 0')
            A(f'global_load_lds_dwordx4 v23, s[36:37] offset:{1024 * (s % 4)} nt')
            if s % 4 == 3:
                A('s_add_u32 s36, s36, 4096')
                A('s_addc_u32 s37, s37, 0')

    def ffn_task(self, tsk):
        A = self.A
        A(f's_lshl_b32 s40, s{tsk}, 5')
        A('s_add_u32 s56, s16, s40')
        A('s_addc_u32 s57, s17, 0')
        A('v_mov_b32 v22, v25')
        self.dma_cols(56, 9216)
        A('s_waitcnt vmcnt(0)')
        self.gemv576(96)
        A(f's_mul_i32 s40, s{tsk}, 18432')
        A('s_add_u32 s56, s18, s40')
        A('s_addc_u32 s57, s19, 0')
        self.dma_rows(56)
        self.bf16r(30, 96, 31)
        A(f'v_mul_f32 v31, {0xBFB8AA3B:#x}, v30')
        A('v_exp_f32 v31, v31')
        A('s_nop 0')
        A('v_add_f32 v31, 1.0, v31')
        A('v_rcp_f32 v32, v31')
        A('s_nop 0')
        A('v_mul_f32 v33, v30, v32')
        A('v_cvt_pk_bf16_f32 v33, v33, v33')
        A('v_and_b32 v34, 15, v1')
        A('v_lshlrev_b32 v34, 1, v34')
        A(f'v_add_u32 v34, {OB}, v34')
        A('s_mov_b64 exec, 0xffff')
        A('ds_write_b16 v34, v33')
        A('s_mov_b64 exec, -1')
        A('v_lshrrev_b32 v35, 4, v1')
        A('v_lshlrev_b32 v35, 3, v35')
        A(f'v_add_u32 v35, {OB}, v35')
        A('s_waitcnt lgkmcnt(0)')
        A('ds_read_b64 v[36:37], v35')
        A('s_waitcnt vmcnt(0) lgkmcnt(0)')
        A('s_mov_b32 s46, 0x00010001')
        A('s_mov_b32 s47, 0x00010001')
        for t0 in range(0, 36, 12):
            for t in range(t0, t0 + 12):
                A(f'ds_read_b64_tr_b16 v[{40 + 2*(t - t0)}:{41 + 2*(t - t0)}], v24 offset:{32 * t}')
            A('s_waitcnt lgkmcnt(0)')
            for t in range(t0, t0 + 12):
                if t % 16 == 0 and t > 0:
                    A('s_mov_b32 s46, 0x00010001')
                    A('s_mov_b32 s47, 0x00010001')
                a = 100 + 4 * (t // 16)
                A(f'v_cndmask_b32 v{88 + 2*(t&1)}, 0, v36, s[46:47]')
                A(f'v_cndmask_b32 v{89 + 2*(t&1)}, 0, v37, s[46:47]')
                A('s_lshl_b64 s[46:47], s[46:47], 1')
                A('s_nop 0')
                A(f'v_mfma_f32_16x16x16_bf16 v[{a}:{a+3}], v[{88 + 2*(t&1)}:{89 + 2*(t&1)}], v[{40 + 2*(t - t0)}:{41 + 2*(t - t0)}], v[{a}:{a+3}]')
        A('s_nop 7')

    def helper(self):
        A = self.A
        self.L('L_helper')
        A('s_setprio 3')
        if self.stamps:
            self.stamp(0)
        A('v_mov_b32 v2, 0')
        A('global_load_dword v3, v2, s[24:25] sc1')
        A('s_mov_b32 s52, s4')
        A('s_mov_b32 s53, s5')
        A('s_mov_b32 s54, 1152')
        A('s_mov_b32 s55, 0x00020000')
        A('v_lshlrev_b32 v4, 1, v1')
        for k in range(9):
            A(f'buffer_load_ushort v{8 + k}, v4, s[52:55], 0 offen offset:{128 * k}')
        A('s_and_b32 s50, s2, 7')
        A('s_lshl_b32 s50, s50, 5')
        A('s_lshr_b32 s40, s2, 3')
        A('s_add_u32 s50, s50, s40')
        A('s_lshl_b32 s40, s50, 5')
        A('s_add_u32 s56, s10, s40')
        A('s_addc_u32 s57, s11, 0')
        A('v_lshrrev_b32 v5, 1, v1')
        A('v_and_b32 v6, 1, v1')
        A('v_lshlrev_b32 v6, 4, v6')
        A('v_lshl_add_u32 v22, v5, 13, v6')
        A('v_mul_u32_u24 v25, 9216, v5')
        A('v_add_u32 v25, v25, v6')
        A('v_lshlrev_b32 v23, 4, v1')
        self.dma_cols(56, 8192)
        A('v_lshrrev_b32 v26, 4, v1')
        A('v_and_b32 v27, 15, v1')
        A('v_lshlrev_b32 v20, 4, v26')
        A(f'v_add_u32 v20, {XN}, v20')
        A('v_lshrrev_b32 v28, 2, v27')
        A('v_lshl_add_u32 v29, v26, 3, v28')
        A('v_lshlrev_b32 v29, 5, v29')
        A('v_and_b32 v30, 3, v27')
        A('v_lshl_add_u32 v29, v30, 3, v29')
        A(f'v_add_u32 v21, {STG}, v29')
        A('v_lshl_add_u32 v29, v26, 2, v28')
        A('v_mul_u32_u24 v29, 1152, v29')
        A('v_lshl_add_u32 v29, v30, 3, v29')
        A(f'v_add_u32 v24, {STG}, v29')
        A('s_waitcnt vmcnt(18)')
        A('v_readfirstlane_b32 s29, v3')
        for k in range(9):
            A(f'v_lshlrev_b32 v{8 + k}, 16, v{8 + k}')
        A('s_add_u32 s29, s29, 1')
        A('v_add_f32 v30, v8, v9')
        for k in range(2, 9):
            A(f'v_add_f32 v30, v30, v{8 + k}')
        self.wavesum(30, 31)
        A(f'v_mul_f32 v30, {0x3AE38E39:#x}, v30')
        for k in range(9):
            A(f'v_sub_f32 v{40 + k}, v{8 + k}, v30')
        A('v_mul_f32 v32, v40, v40')
        for k in range(1, 9):
            A(f'v_fmac_f32 v32, v{40 + k}, v{40 + k}')
        self.wavesum(32, 31)
        A(f'v_mul_f32 v32, {0x3AE38E39:#x}, v32')
        self.bf16r(30, 30, 31)
        self.bf16r(32, 32, 31)
        A(f'v_add_f32 v32, {0x3727C5AC:#x}, v32')
        self.bf16r(32, 32, 31)
        A('v_sqrt_f32 v32, v32')
        A('s_nop 0')
        self.bf16r(32, 32, 31)
        A('v_rcp_f32 v33, v32')
        for k in range(9):
            A(f'v_sub_f32 v{40 + k}, v{8 + k}, v30')
        for k in range(0, 9, 2):
            k2 = min(k + 1, 8)
            A(f'v_cvt_pk_bf16_f32 v{50 + k // 2}, v{40 + k}, v{40 + k2}')
        for k in range(9):
            if k % 2 == 0:
                A(f'v_lshlrev_b32 v{40 + k}, 16, v{50 + k // 2}')
            else:
                A(f'v_and_b32 v{40 + k}, 0xffff0000, v{50 + k // 2}')
        for k in range(9):
            A(f'v_mul_f32 v{60 + k}, v{40 + k}, v33')
            A(f'v_fma_f32 v{70 + k}, -v{60 + k}, v32, v{40 + k}')
            A(f'v_fma_f32 v{60 + k}, v{70 + k}, v33, v{60 + k}')
        for k in range(0, 9, 2):
            k2 = min(k + 1, 8)
            A(f'v_cvt_pk_bf16_f32 v{50 + k // 2}, v{60 + k}, v{60 + k2}')
        A(f'v_add_u32 v34, {XN}, v4')
        for k in range(9):
            op = 'ds_write_b16' if k % 2 == 0 else 'ds_write_b16_d16_hi'
            A(f'{op} v34, v{50 + k // 2} offset:{128 * k}')
        A('s_waitcnt vmcnt(0) lgkmcnt(0)')
        self.gemv576(96)
        A('v_cvt_pk_bf16_f32 v30, v96, v96')
        A('v_and_b32 v30, 0xffff, v30')
        A('s_nop 1')
        A('v_mov_b32_dpp v31, v30 quad_perm:[1,0,3,2] row_mask:0xf bank_mask:0xf')
        A('v_lshl_or_b32 v32, v31, 16, v30')
        A('v_mov_b32 v33, s29')
        A('s_lshl_b32 s40, s50, 6')
        A(f's_add_u32 s40, s40, {WS_Q}')
        A('s_add_u32 s48, s24, s40')
        A('s_addc_u32 s49, s25, 0')
        A('v_lshlrev_b32 v34, 2, v1')
        A('s_mov_b64 exec, 0x5555')
        A('global_store_dwordx2 v34, v[32:33], s[48:49] sc1')
        A('s_mov_b64 exec, -1')
        A('s_lshl_b32 s40, s27, 10')
        A(f's_add_u32 s40, s40, {WS_Q}')
        A('s_add_u32 s48, s24, s40')
        A('s_addc_u32 s49, s25, 0')
        self.spin_begin(42)
        self.L('L_h_qpoll')
        A('global_load_dwordx4 v[36:39], v23, s[48:49] sc1')
        A('s_waitcnt vmcnt(0)')
        A('v_xor_b32 v40, s29, v37')
        A('v_xor_b32 v41, s29, v39')
        A('v_or_b32 v40, v40, v41')
        A('v_cmp_ne_u32 vcc, 0, v40')
        A('s_cbranch_vccz L_h_qok')
        self.spin_retry(42, 'L_h_qpoll', sleep=1)
        self.L('L_h_qok')
        A('v_mov_b32 v37, v38')
        A('v_lshlrev_b32 v40, 3, v1')
        A(f'v_add_u32 v40, {QL}, v40')
        A('ds_write_b64 v40, v[36:37]')
        A('v_mov_b32 v42, 1')
        A('v_mov_b32 v43, s29')
        A(f'v_mov_b32 v41, {FL}')
        A('s_waitcnt lgkmcnt(0)')
        A('s_mov_b64 exec, 1')
        A('ds_write_b64 v41, v[42:43] offset:32')
        A('s_mov_b64 exec, -1')
        A('s_setprio 0')
        for r in range(12):
            A(f'v_mov_b32 v{100 + r}, 0')
        A('s_and_b32 s51, s2, 7')
        A('s_mul_i32 s51, s51, 36')
        A('s_lshr_b32 s58, s2, 3')
        A('s_add_u32 s59, s51, s58')
        self.ffn_task(59)
        A('s_cmp_ge_u32 s58, 4')
        A('s_cbranch_scc1 L_h_ffn_done')
        A('s_add_u32 s59, s59, 32')
        self.ffn_task(59)
        self.L('L_h_ffn_done')
        A('s_lshl_b32 s40, s27, 4')
        A('s_add_u32 s40, s40, s28')
        A('s_mul_i32 s40, s40, 18432')
        A('s_add_u32 s56, s12, s40')
        A('s_addc_u32 s57, s13, 0')
        self.dma_rows(56)
        A('s_mul_i32 s40, s2, 4608')
        A(f's_add_u32 s40, s40, {WS_F}')
        A('s_add_u32 s48, s24, s40')
        A('s_addc_u32 s49, s25, 0')
        A('v_lshlrev_b32 v30, 9, v26')
        A('v_lshl_add_u32 v30, v27, 3, v30')
        A('v_mov_b32 v33, s29')
        for a in range(3):
            if a == 2:
                A('s_mov_b64 exec, 0xffff')
            for r in range(4):
                A(f'v_mov_b32 v32, v{100 + 4*a + r}')
                A(f'global_store_dwordx2 v30, v[32:33], s[48:49] offset:{(2048 * a + 128 * r) if a < 2 else 0} sc1' if a < 2 else
                  f'global_store_dwordx2 v31, v[32:33], s[48:49] offset:{128 * r} sc1')
                A('s_nop 1')
            if a == 1:
                A('v_add_u32 v31, 4096, v30')
        A('s_mov_b64 exec, -1')
        A('s_cmp_ge_u32 s2, 144')
        A('s_cbranch_scc1 L_h_tail')
        A('s_lshl_b32 s40, s2, 5')
        A(f's_add_u32 s40, s40, {WS_F}')
        A('s_add_u32 s48, s24, s40')
        A('s_addc_u32 s49, s25, 0')
        A('v_mul_u32_u24 v30, 4608, v1')
        for k in range(1, 4):
            A(f'v_add_u32 v{30 + k}, {4608 * 64 * k}, v30')
        self.spin_begin(42)
        self.L('L_h_fpoll')
        for k in range(4):
            A(f'global_load_dwordx4 v[{40 + 8*k}:{43 + 8*k}], v{30 + k}, s[48:49] sc1')
            A(f'global_load_dwordx4 v[{44 + 8*k}:{47 + 8*k}], v{30 + k}, s[48:49] offset:16 sc1')
        A('s_waitcnt vmcnt(0)')
        A('v_xor_b32 v34, s29, v41')
        for q in range(43, 72, 2):
            A(f'v_xor_b32 v35, s29, v{q}')
            A('v_or_b32 v34, v34, v35')
        A('v_cmp_ne_u32 vcc, 0, v34')
        A('s_cbranch_vccz L_h_fok')
        self.spin_retry(42, 'L_h_fpoll', sleep=32)
        self.L('L_h_fok')
        for c in range(4):
            A(f'v_add_f32 v{40 + 2*c}, v{40 + 2*c}, v{48 + 2*c}')
            A(f'v_add_f32 v{56 + 2*c}, v{56 + 2*c}, v{64 + 2*c}')
            A(f'v_add_f32 v{40 + 2*c}, v{40 + 2*c}, v{56 + 2*c}')
        for c in range(4):
            self.wavesum(40 + 2 * c, 34)
        A('v_mov_b32 v41, v42')
        A('v_mov_b32 v42, v44')
        A('v_mov_b32 v43, v46')
        A(f'v_mov_b32 v34, {FFNR}')
        A('s_mov_b64 exec, 1')
        A('ds_write_b128 v34, v[40:43]')
        A('s_mov_b64 exec, -1')
        self.L('L_h_tail')
        A('s_waitcnt vmcnt(0) lgkmcnt(0)')
        if self.stamps:
            self.stamp(7)
        A('s_barrier')
        A('s_lshr_b32 s50, s28, 3')
        A('s_and_b32 s51, s28, 7')
        A('s_lshl_b32 s51, s51, 4')
        A('s_lshl_b32 s40, s50, 7')
        A('s_add_u32 s40, s40, s51')
        A('s_lshl_b32 s40, s40, 3')
        A('v_lshrrev_b32 v30, 3, v1')
        A('v_and_b32 v31, 7, v1')
        if self.headmap == 'lin':
            A('s_lshl_b32 s58, s27, 16')
            A('v_lshlrev_b32 v32, 12, v30')
            step8 = 8 * 4096
        else:
            A('s_and_b32 s58, s27, 1')
            A('s_lshl_b32 s58, s58, 3')
            A('s_lshr_b32 s59, s27, 1')
            A('s_add_u32 s58, s58, s59')
            A('s_lshl_b32 s58, s58, 12')
            A('v_lshlrev_b32 v32, 16, v30')
            step8 = 8 * 16 * 4096
        A(f's_add_u32 s58, s58, {WS_P}')
        A('s_add_u32 s48, s24, s58')
        A('s_addc_u32 s49, s25, 0')
        A('v_lshl_add_u32 v33, v31, 4, v32')
        A('v_add_u32 v33, s40, v33')
        A(f'v_add_u32 v34, {step8}, v33')
        A('s_lshl_b32 s40, s50, 4')
        A('s_add_u32 s40, s40, 2048')
        A('v_add_u32 v35, s40, v32')
        A(f'v_add_u32 v36, {step8}, v35')
        self.spin_begin(42)
        self.L('L_h_bpoll')
        A('global_load_dwordx4 v[40:43], v33, s[48:49] sc1')
        A('global_load_dwordx4 v[44:47], v34, s[48:49] sc1')
        A('global_load_dwordx4 v[48:51], v35, s[48:49] sc1')
        A('global_load_dwordx4 v[52:55], v36, s[48:49] sc1')
        A('s_waitcnt vmcnt(0)')
        A('v_xor_b32 v56, s29, v41')
        for q in range(43, 56, 2):
            A(f'v_xor_b32 v57, s29, v{q}')
            A('v_or_b32 v56, v56, v57')
        A('v_cmp_ne_u32 vcc, 0, v56')
        A('s_cbranch_vccz L_h_bok')
        self.spin_retry(42, 'L_h_bpoll', sleep=2)
        self.L('L_h_bok')
        A('v_max_f32 v56, v48, v52')
        self.rowred('v_max_f32', 56, rors=(8,))
        self.xrow('v_max_f32', 56, 57)
        A('v_sub_f32 v58, v48, v56')
        A('v_sub_f32 v59, v52, v56')
        A('v_exp_f32 v58, v58')
        A('v_exp_f32 v59, v59')
        A('s_nop 0')
        A('v_mul_f32 v60, v50, v58')
        A('v_fmac_f32 v60, v54, v59')
        A('v_mul_f32 v61, v40, v58')
        A('v_fmac_f32 v61, v44, v59')
        A('v_mul_f32 v62, v42, v58')
        A('v_fmac_f32 v62, v46, v59')
        for r in (60, 61, 62):
            self.rowred('v_add_f32', r, rors=(8,))
            self.xrow('v_add_f32', r, 57)
        A('v_rcp_f32 v63, v60')
        A('s_nop 0')
        for r in (61, 62):
            A(f'v_mul_f32 v64, v{r}, v63')
            A(f'v_fma_f32 v65, -v64, v60, v{r}')
            A(f'v_fma_f32 v{r}, v65, v63, v64')
        A('v_cvt_pk_bf16_f32 v61, v61, v62')
        A('v_lshlrev_b32 v62, 2, v31')
        A(f'v_add_u32 v62, {OB}, v62')
        A('s_mov_b64 exec, 0xff')
        A('ds_write_b32 v62, v61')
        A('s_mov_b64 exec, -1')
        A('s_waitcnt lgkmcnt(0)')
        A('s_barrier')
        A('s_endpgm')

    def build(self):
        head = HEADER + f'; @launch grid=(256,1,1) block=(576,1,1) lds={LDS_BYTES}\n'
        head += '.amdgcn_target "amdgcn-amd-amdhsa--gfx950"\n.text\n'
        head += f'.globl {KNAME}\n.p2align 8\n.type {KNAME},@function\n{KNAME}:\n'
        self.entry()
        self.consumer()
        self.loader()
        self.helper()
        self.L('L_end')
        self.A('s_endpgm')
        tail = f'''.section .rodata,"a"
.p2align 6
.amdhsa_kernel {KNAME}
  .amdhsa_next_free_vgpr 128
  .amdhsa_next_free_sgpr 96
  .amdhsa_accum_offset 128
  .amdhsa_group_segment_fixed_size 0
  .amdhsa_kernarg_size 88
  .amdhsa_user_sgpr_count 2
  .amdhsa_user_sgpr_kernarg_segment_ptr 1
  .amdhsa_system_sgpr_workgroup_id_x 1
  .amdhsa_float_denorm_mode_32 3
  .amdhsa_float_denorm_mode_16_64 3
.end_amdhsa_kernel
'''
        return head + '\n'.join(self.o) + '\n' + tail


if __name__ == '__main__':
    import argparse
    ap = argparse.ArgumentParser()
    ap.add_argument('-o', default='parallel_sum__gqa_block_cached__dense_activation_silu__decode.s')
    ap.add_argument('--W', type=int, default=5)
    ap.add_argument('--rot', type=int, default=5)
    ap.add_argument('--headmap', default='lin')
    ap.add_argument('--stamps', action='store_true')
    a = ap.parse_args()
    open(a.o, 'w').write(Gen(W=a.W, rot=a.rot, headmap=a.headmap, stamps=a.stamps).build())
    print('wrote', a.o)
```

```python
import sys

KNAME = 'parallel_sum__gqa_block_cached__dense_activation_silu__decode_kernel'

HEADER = '''; Kernarg layout for this problem (88 bytes, ptrs only, base s[0:1]):
'''

RING = 32768
STG = 0x20000
XN = 0x24800
QL = 0x24D00
FL = 0x25000
OC = 0x25100
OCML = 0x26100
OB = 0x26180
RED = 0x26200
FFNR = 0x26300
LDS_BYTES = 0x28000

WS_EPOCH = 0x0
WS_Q = 0x10000
WS_P = 0x80000
WS_Y = 0x100000
WS_F = 0x30000
NRED = 48
NFFN = 72
WS_DBG = 0x800000

SCALE = 0x3DB504F3
LOG2E = 0x3FB8AA3B
SPIN = 0x40000
IDS = FL + 64
CAP = 40
WS_CNT = 0x1C0000


class Gen:
    def __init__(self, W=5, rot=5, headmap='lin', stamps=False, nunits=64, exp=(), ffn_win=6, warm_before=4, US=60, LA=2, preread=True, wotail=True, Wend=12, endmargin=32, cstride=12544, earlyflags=True, fastpoll=True):
        self.o = []
        self.W = W
        self.rot = rot
        self.headmap = headmap
        self.stamps = stamps
        self.nunits = nunits
        self.uid = 0
        self.pending = []
        self.exp = set(exp)
        self.ffn_win = ffn_win
        self.warm_before = warm_before
        self.US = US
        self.LA = LA
        self.NI = (64 - US) * 16
        self.preread = preread
        self.wotail = wotail
        self.Wend = Wend
        self.fastpoll = fastpoll
        self.earlyflags = earlyflags
        self.cstride = cstride
        self.endmargin = endmargin
        self.sleepmul = 8 if 'slowpoll' in self.exp else 1

    def A(self, s):
        self.o.append('  ' + s)

    def L(self, s):
        self.o.append(s + ':')

    def lab(self, base):
        self.uid += 1
        return f'{base}_{self.uid}'

    def stamp(self, idx, vtmp=126):
        if not self.stamps:
            return
        k = len(self.pending)
        assert k < 12
        self.pending.append(idx)
        self.A(f's_memrealtime s[{66 + 2*k}:{67 + 2*k}]')

    def flush_stamps(self, vtmp=126, extra=()):
        if not self.stamps:
            return
        A = self.A
        A('s_lshl_b32 s92, s2, 7')
        A(f's_add_u32 s92, s92, {WS_DBG}')
        A('s_add_u32 s94, s24, s92')
        A('s_addc_u32 s95, s25, 0')
        A('s_waitcnt lgkmcnt(0)')
        A(f'v_mov_b32 v{vtmp+1}, 0')
        A('s_mov_b64 exec, 1')
        for k, idx in enumerate(self.pending):
            A(f'v_mov_b32 v{vtmp}, s{66 + 2*k}')
            A(f'global_store_dword v{vtmp+1}, v{vtmp}, s[94:95] offset:{idx * 4}')
        for idx, sreg in extra:
            A(f'v_mov_b32 v{vtmp}, s{sreg}')
            A(f'global_store_dword v{vtmp+1}, v{vtmp}, s[94:95] offset:{idx * 4}')
        A('s_mov_b64 exec, -1')

    def xrow(self, op, v, t):
        A = self.A
        A(f'v_mov_b32 v{t}, v{v}')
        A('s_nop 1')
        A(f'v_permlane16_swap_b32 v{v}, v{t}')
        A('s_nop 1')
        A(f'{op} v{v}, v{v}, v{t}')
        A(f'v_mov_b32 v{t}, v{v}')
        A('s_nop 1')
        A(f'v_permlane32_swap_b32 v{v}, v{t}')
        A('s_nop 1')
        A(f'{op} v{v}, v{v}, v{t}')

    def rowred(self, op, v, rors=(8, 4, 2, 1)):
        A = self.A
        for r in rors:
            A('s_nop 1')
            A(f'{op}_dpp v{v}, v{v}, v{v} row_ror:{r} row_mask:0xf bank_mask:0xf')

    def wavesum(self, v, t):
        self.rowred('v_add_f32', v)
        self.xrow('v_add_f32', v, t)

    def bf16r(self, dst, src, t):
        self.A(f'v_cvt_pk_bf16_f32 v{t}, v{src}, v{src}')
        self.A(f'v_lshlrev_b32 v{dst}, 16, v{t}')

    def spin_begin(self, sreg):
        self.A(f's_mov_b32 s{sreg}, {SPIN}')

    def spin_retry(self, sreg, loop, sleep=2):
        A = self.A
        A(f's_sleep {min(127, sleep * self.sleepmul)}')
        A(f's_sub_u32 s{sreg}, s{sreg}, 1')
        A(f's_cmp_lg_u32 s{sreg}, 0')
        A(f's_cbranch_scc1 {loop}')

    def wg_of(self, dst, s_h, s_or_imm_j):
        pass

    def entry(self):
        A = self.A
        A('s_cmp_ge_u32 s2, 256')
        A('s_cbranch_scc1 L_end')
        A('s_load_dwordx16 s[4:19], s[0:1], 0')
        A('s_load_dwordx4 s[20:23], s[0:1], 64')
        A('s_load_dwordx2 s[24:25], s[0:1], 80')
        A('v_lshrrev_b32 v1, 6, v0')
        if self.headmap == 'lin':
            A('s_lshr_b32 s27, s2, 4')
            A('s_and_b32 s28, s2, 15')
        else:
            A('s_and_b32 s27, s2, 7')
            A('s_lshl_b32 s27, s27, 1')
            A('s_lshr_b32 s28, s2, 3')
            A('s_and_b32 s28, s28, 1')
            A('s_add_u32 s27, s27, s28')
            A('s_lshr_b32 s28, s2, 4')
        A('s_lshl_b32 s96, s27, 2')
        A('s_add_u32 s96, s96, s28')
        A('s_add_u32 s97, s27, 64')
        A('s_cmp_lt_u32 s27, 8')
        A('s_cselect_b32 s97, s97, 255')
        A('s_cmp_eq_u32 s28, 4')
        A('s_cselect_b32 s97, s97, 255')
        A('s_cmp_lt_u32 s28, 4')
        A('s_cselect_b32 s96, s96, s97')
        A('s_mul_i32 s97, s27, 3')
        A('s_add_u32 s97, s97, s28')
        A('s_sub_u32 s97, s97, 13')
        A('s_cmp_ge_u32 s28, 13')
        A('s_cselect_b32 s97, s97, 255')
        A('v_readfirstlane_b32 s26, v1')
        A('v_and_b32 v1, 63, v0')
        A('s_cmp_lg_u32 s26, 0')
        A('s_cbranch_scc1 L_noinit')
        A(f'v_lshlrev_b32 v2, 2, v1')
        A(f'v_add_u32 v2, {FL}, v2')
        A('v_mov_b32 v3, 0')
        A('ds_write_b32 v2, v3')
        self.L('L_noinit')
        A('s_waitcnt lgkmcnt(0)')
        A('s_barrier')
        A('s_cmp_ge_u32 s26, 8')
        A('s_cbranch_scc1 L_helper')
        A('s_cmp_ge_u32 s26, 4')
        A('s_cbranch_scc1 L_loader')

    def loader(self):
        A, W = self.A, self.W
        self.L('L_loader')
        self.pending = []
        if 'noload' in self.exp:
            A('s_endpgm')
        A('s_sub_u32 s29, s26, 4')
        A('s_lshl_b32 s40, s27, 24')
        A('s_add_u32 s30, s6, s40')
        A('s_addc_u32 s31, s7, 0')
        A('s_add_u32 s32, s8, s40')
        A('s_addc_u32 s33, s9, 0')
        A('s_lshl_b32 s41, s28, 2')
        A('s_add_u32 s41, s41, s29')
        A(f's_mul_i32 s40, s27, {self.rot * 64}')
        A('s_add_u32 s41, s41, s40')
        A('s_and_b32 s41, s41, 4095')
        A(f's_mul_i32 s38, s29, {RING}')
        A('v_lshrrev_b32 v2, 4, v1')
        A('v_and_b32 v3, 15, v1')
        A('v_lshlrev_b32 v4, 1, v2')
        A('v_xor_b32 v3, v3, v4')
        A('v_lshlrev_b32 v3, 4, v3')
        A('v_lshl_add_u32 v6, v2, 8, v3')
        A('v_xor_b32 v7, 128, v6')
        A('s_lshl_b32 s40, s29, 2')
        A(f's_add_u32 s40, s40, {FL}')
        A('v_mov_b32 v8, s40')
        A('s_mov_b32 s35, 0')
        A('s_mov_b32 s39, 0')
        A('v_mov_b32 v10, 0')
        A('s_mov_b32 s60, 0')
        A('s_mov_b32 s61, 0')
        if 'noprio' not in self.exp:
            A('s_setprio 2')
        pub_pos = (W - 1) % 8
        pub_off = (pub_pos - W + 1) // 8

        def publish(val_sreg_or_expr):
            A(f'v_mov_b32 v9, {val_sreg_or_expr}')
            A('s_mov_b64 exec, 1')
            A('ds_write_b32 v8, v9')
            A('s_mov_b64 exec, -1')

        US = self.US
        A(f's_mul_i32 s44, s27, {self.rot * 64}')
        A('s_add_u32 s44, s44, s29')
        A(f's_add_u32 s44, s44, {US * 64}')
        A('v_mov_b32 v11, 0')
        A('v_mov_b32 v13, 0')
        self.L('L_ld_loop')
        for u in range(4):
            ok = self.lab('L_ld_ok')
            sp = self.lab('L_ld_spin')
            st = self.lab('L_ld_static')
            idok = self.lab('L_ld_idok')
            idsp = self.lab('L_ld_idspin')
            if self.stamps and u == 0:
                for q, nn in enumerate((4, 8, 16, 32, 48)):
                    l = self.lab('L_ld_st')
                    A(f's_cmp_lg_u32 s35, {nn}')
                    A(f's_cbranch_scc1 {l}')
                    self.stamp(16 + q)
                    self.L(l)
            A('s_waitcnt lgkmcnt(0)')
            A('v_readfirstlane_b32 s39, v10')
            A('v_readfirstlane_b32 s45, v11')
            if self.Wend:
                A('v_readfirstlane_b32 s47, v13')
            A(f's_cmp_lt_u32 s35, {US}')
            A(f's_cbranch_scc1 {st}')
            A('s_cmp_lg_u32 s45, 0')
            A(f's_cbranch_scc1 {idok}')
            if self.stamps:
                A('s_add_u32 s61, s61, 1')
            A('s_waitcnt vmcnt(0)')
            publish('s35')
            self.spin_begin(42)
            self.L(idsp)
            A('ds_read_b32 v11, v12')
            A('s_waitcnt lgkmcnt(0)')
            A('v_readfirstlane_b32 s45, v11')
            A('s_cmp_lg_u32 s45, 0')
            A(f's_cbranch_scc1 {idok}')
            self.spin_retry(42, idsp, sleep=1)
            A('s_branch L_ld_end')
            self.L(idok)
            A('s_cmp_eq_u32 s45, -1')
            A('s_cbranch_scc1 L_ld_end')
            A('s_sub_u32 s45, s45, 1')
            A('s_lshl_b32 s45, s45, 2')
            A('s_add_u32 s41, s45, s44')
            A('s_and_b32 s41, s41, 4095')
            self.L(st)
            A('s_add_u32 s40, s39, 3')
            A('s_cmp_ge_u32 s40, s35')
            A(f's_cbranch_scc1 {ok}')
            A('s_waitcnt vmcnt(0)')
            publish('s35')
            if self.stamps:
                A('s_add_u32 s60, s60, 1')
            self.spin_begin(42)
            self.L(sp)
            A('ds_read_b32 v10, v8 offset:16')
            A('s_waitcnt lgkmcnt(0)')
            A('v_readfirstlane_b32 s39, v10')
            A('s_add_u32 s40, s39, 3')
            A('s_cmp_ge_u32 s40, s35')
            A(f's_cbranch_scc1 {ok}')
            self.spin_retry(42, sp, sleep=1)
            self.L(ok)
            A('s_lshl_b32 s40, s41, 12')
            A('s_add_u32 s46, s35, 1')
            A(f's_sub_i32 s46, s46, {US}')
            A('s_max_i32 s46, s46, 0')
            A('s_lshl_b32 s46, s46, 2')
            A(f's_add_u32 s46, s46, {IDS}')
            A('v_mov_b32 v12, s46')
            def issue(Wx):
                pp = (Wx - 1) % 8
                po = (pp - Wx + 1) // 8
                for kv in range(2):
                    A(f's_add_u32 s36, s{30 + 2 * kv}, s40')
                    A(f's_addc_u32 s37, s{31 + 2 * kv}, 0')
                    A(f's_add_u32 m0, s38, {(2 * u + kv) * 4096}')
                    for jj in range(4):
                        A(f's_waitcnt vmcnt({Wx - 1})')
                        if kv * 4 + jj == pp:
                            skip = self.lab('L_ld_np')
                            if po < 0:
                                A(f's_cmp_lt_u32 s35, {-po}')
                                A(f's_cbranch_scc1 {skip}')
                                A(f's_sub_u32 s43, s35, {-po}')
                                publish('s43')
                                self.L(skip)
                            else:
                                publish('s35')
                        A(f'global_load_lds_dwordx4 v{6 + (jj & 1)}, s[36:37] offset:{jj * 1024} nt')
                        if self.earlyflags and kv == 1 and jj == 1:
                            A('ds_read_b32 v10, v8 offset:16')
                            A('ds_read_b32 v11, v12')
                            if self.Wend:
                                A('ds_read_b32 v13, v8 offset:48')
            if self.Wend:
                fast = self.lab('L_ld_fast')
                join = self.lab('L_ld_join')
                A('s_cmp_lg_u32 s47, 0')
                A(f's_cbranch_scc1 {fast}')
                issue(W)
                A(f's_branch {join}')
                self.L(fast)
                issue(self.Wend)
                self.L(join)
                if not self.earlyflags:
                    A('ds_read_b32 v13, v8 offset:48')
            else:
                issue(W)
            if not self.earlyflags:
                A('ds_read_b32 v10, v8 offset:16')
                A('ds_read_b32 v11, v12')
            A('s_add_u32 s41, s41, 64')
            A('s_and_b32 s41, s41, 4095')
            A('s_add_u32 s35, s35, 1')
        A('s_branch L_ld_loop')
        self.L('L_ld_end')
        A('s_waitcnt vmcnt(0)')
        A('s_or_b32 s43, s35, 0x80000000')
        publish('s43')
        A('s_waitcnt lgkmcnt(0)')
        if self.stamps:
            A('s_cmp_lg_u32 s26, 4')
            A('s_cbranch_scc1 L_ld_ns')
            self.stamp(8)
            self.flush_stamps(extra=[(9, 60), (21, 35), (22, 61)])
            self.L('L_ld_ns')
        A('s_endpgm')


    def poll(self, name, loads, checks, sleep, allmask='-1', sr=60, probe=True):
        A = self.A
        inv, n, sw, cnt = sr, sr + 2, sr + 3, sr + 4
        if allmask == '-1':
            A(f's_mov_b64 s[{inv}:{inv+1}], -1')
        else:
            A(f's_mov_b64 s[{inv}:{inv+1}], {allmask}')
        A(f's_mov_b32 s{sw}, 1')
        A(f's_mov_b32 s{cnt}, {SPIN}')
        self.L(f'{name}_loop')
        A(f's_bcnt1_i32_b64 s{n}, s[{inv}:{inv+1}]')
        A(f's_cmp_le_u32 s{n}, {8 if probe else 64}')
        A(f's_cselect_b32 s{sw}, 1, s{sw}')
        A(f's_mov_b64 exec, s[{inv}:{inv+1}]')
        A(f's_cmp_lg_u32 s{sw}, 0')
        A(f's_cbranch_scc1 {name}_go')
        A(f's_ff1_i32_b64 s{n}, s[{inv}:{inv+1}]')
        A(f's_lshl_b64 exec, 1, s{n}')
        self.L(f'{name}_go')
        for l in loads:
            A(l)
        A('s_waitcnt vmcnt(0)')
        acc = checks()
        A(f'v_cmp_eq_u32 vcc, 0, v{acc}')
        A(f's_andn2_b64 s[{inv}:{inv+1}], s[{inv}:{inv+1}], vcc')
        A(f's_cmp_lg_u64 vcc, 0')
        A(f's_cselect_b32 s{n}, 1, 0')
        A(f's_xor_b32 s{sw}, s{sw}, 1')
        A(f's_and_b32 s{sw}, s{sw}, s{n}')
        A('s_mov_b64 exec, -1')
        A(f's_cmp_eq_u64 s[{inv}:{inv+1}], 0')
        A(f's_cbranch_scc1 {name}_done')
        if self.fastpoll:
            A(f's_bcnt1_i32_b64 s{n}, s[{inv}:{inv+1}]')
            A(f's_cmp_le_u32 s{n}, 8')
            A(f's_cbranch_scc1 {name}_ns')
        A(f's_sleep {sleep}')
        if self.fastpoll:
            self.L(f'{name}_ns')
        A(f's_sub_u32 s{cnt}, s{cnt}, 1')
        A(f's_cmp_lg_u32 s{cnt}, 0')
        A(f's_cbranch_scc1 {name}_loop')
        self.L(f'{name}_done')

    def chk3(self, groups, acc, tmp, tag=29):
        A = self.A
        for n, b in enumerate(groups):
            d = acc if n == 0 else tmp
            A(f'v_bitop3_b32 v{d}, v{b}, v{b+1}, v{b+2} bitop3:0x96')
            A(f'v_bitop3_b32 v{d}, v{d}, v{b+3}, s{tag} bitop3:0x96')
            if n:
                A(f'v_or_b32 v{acc}, v{acc}, v{tmp}')
        return acc

    def mkchk(self, b, tag=29):
        self.A(f'v_bitop3_b32 v{b+3}, v{b}, v{b+1}, v{b+2} bitop3:0x96')
        self.A(f'v_xor_b32 v{b+3}, s{tag}, v{b+3}')

    def cstamp(self, idx):
        self.stamp(idx)

    def cflush(self):
        if self.stamps:
            l = self.lab('L_nf')
            self.A('s_cmp_lg_u32 s26, 0')
            self.A(f's_cbranch_scc1 {l}')
            self.flush_stamps()
            self.L(l)

    def consumer(self):
        A = self.A
        self.pending = []
        KA, VA, FA = 2, 6, 14
        Q, O, KF, VF, S = 16, 32, 64, 80, 96
        MC, LS = 100, 101
        T = 102
        P = 118
        A(f's_mul_i32 s38, s26, {RING}')
        A('v_and_b32 v20, 15, v1')
        A('v_lshrrev_b32 v21, 4, v1')
        A('v_and_b32 v22, 7, v20')
        A('v_lshlrev_b32 v22, 1, v22')
        A('v_lshlrev_b32 v23, 8, v20')
        A('v_add_u32 v23, s38, v23')
        for i in range(4):
            A(f'v_add_u32 v24, {4 * i}, v21')
            A('v_xor_b32 v24, v24, v22')
            A(f'v_lshl_add_u32 v{KA + i}, v24, 4, v23')
        A('v_lshrrev_b32 v22, 2, v20')
        A('v_lshl_add_u32 v22, v21, 2, v22')
        A('v_and_b32 v24, 7, v22')
        A('v_lshlrev_b32 v23, 8, v22')
        A('v_add_u32 v23, s38, v23')
        A('v_and_b32 v25, 3, v20')
        A('v_lshl_add_u32 v23, v25, 3, v23')
        for m in range(8):
            A(f'v_xor_b32 v25, {m}, v24')
            A(f'v_lshl_add_u32 v{VA + m}, v25, 5, v23')
        A('s_lshl_b32 s40, s26, 2')
        A(f's_add_u32 s40, s40, {FL}')
        A(f'v_mov_b32 v{FA}, s40')
        for r in range(32):
            A(f'v_mov_b32 v{O + r}, 0')
        A(f'v_mov_b32 v{MC}, 0xff800000')
        A(f'v_mov_b32 v{LS}, 0')
        A(f's_mov_b32 s44, {LOG2E}')
        KB, VB = 128, 144
        def wait_full(done_label):
            go = self.lab('L_c_go')
            pl = self.lab('L_c_poll')
            A('s_and_b32 s40, s39, 0x7fffffff')
            A('s_cmp_gt_u32 s40, s35')
            A(f's_cbranch_scc1 {go}')
            self.spin_begin(42)
            self.L(pl)
            A(f'ds_read_b32 v{T}, v{FA}')
            A('s_waitcnt lgkmcnt(0)')
            A(f'v_readfirstlane_b32 s39, v{T}')
            A('s_and_b32 s40, s39, 0x7fffffff')
            A('s_cmp_gt_u32 s40, s35')
            A(f's_cbranch_scc1 {go}')
            A('s_cmp_lt_i32 s39, 0')
            A(f's_cbranch_scc1 {done_label}')
            self.spin_retry(42, pl, sleep=1)
            A(f's_branch {done_label}')
            self.L(go)
        def reads(u, kf, vf):
            for i in range(4):
                A(f'ds_read_b128 v[{kf + 4*i}:{kf + 4*i + 3}], v{KA + i} offset:{(2*u) * 4096}')
            for m in range(8):
                A(f'ds_read_b64_tr_b16 v[{vf + 2*m}:{vf + 2*m + 1}], v{VA + m} offset:{(2*u + 1) * 4096}')
            A('s_add_u32 s35, s35, 1')
        def qk(kf):
            for i in range(4):
                c = '0' if i == 0 else f'v[{S}:{S+3}]'
                A(f'v_mfma_f32_16x16x32_bf16 v[{S}:{S+3}], v[{kf + 4*i}:{kf + 4*i + 3}], v[{Q + 4*i}:{Q + 4*i + 3}], {c}')
        def free():
            A(f'v_mov_b32 v{T}, s35')
            A('s_waitcnt lgkmcnt(0)')
            A('s_mov_b64 exec, 1')
            A(f'ds_write_b32 v{FA}, v{T} offset:16')
            A('s_mov_b64 exec, -1')
        def softmax_pv(vf):
            nr = self.lab('L_c_nr')
            A(f'v_cvt_pk_bf16_f32 v{T}, v{S}, v{S+1}')
            A(f'v_cvt_pk_bf16_f32 v{T+1}, v{S+2}, v{S+3}')
            A(f'v_lshlrev_b32 v{T+2}, 16, v{T}')
            A(f'v_and_b32 v{T+3}, 0xffff0000, v{T}')
            A(f'v_lshlrev_b32 v{T+4}, 16, v{T+1}')
            A(f'v_and_b32 v{T+5}, 0xffff0000, v{T+1}')
            for r in range(4):
                A(f'v_mul_f32 v{T+2+r}, {SCALE:#x}, v{T+2+r}')
            A(f'v_cvt_pk_bf16_f32 v{T}, v{T+2}, v{T+3}')
            A(f'v_cvt_pk_bf16_f32 v{T+1}, v{T+4}, v{T+5}')
            A(f'v_lshlrev_b32 v{T+2}, 16, v{T}')
            A(f'v_and_b32 v{T+3}, 0xffff0000, v{T}')
            A(f'v_lshlrev_b32 v{T+4}, 16, v{T+1}')
            A(f'v_and_b32 v{T+5}, 0xffff0000, v{T+1}')
            A(f'v_max3_f32 v{T+6}, v{T+2}, v{T+3}, v{T+4}')
            A(f'v_max_f32 v{T+6}, v{T+6}, v{T+5}')
            A(f'v_mul_f32 v{T+6}, s44, v{T+6}')
            A(f'v_cmp_gt_f32 vcc, v{T+6}, v{MC}')
            A(f's_cbranch_vccz {nr}')
            self.xrow('v_max_f32', T + 6, T + 7)
            A(f'v_max_f32 v{T+6}, v{T+6}, v{MC}')
            A(f'v_sub_f32 v{T+7}, v{MC}, v{T+6}')
            A(f'v_exp_f32 v{T+7}, v{T+7}')
            A(f'v_mov_b32 v{MC}, v{T+6}')
            A(f'v_mul_f32 v{LS}, v{LS}, v{T+7}')
            for r in range(32):
                A(f'v_mul_f32 v{O + r}, v{O + r}, v{T+7}')
            self.L(nr)
            for r in range(4):
                A(f'v_fma_f32 v{T+2+r}, v{T+2+r}, s44, -v{MC}')
            for r in range(4):
                A(f'v_exp_f32 v{T+2+r}, v{T+2+r}')
            A('s_nop 0')
            A(f'v_cvt_pk_bf16_f32 v{P}, v{T+2}, v{T+3}')
            A(f'v_cvt_pk_bf16_f32 v{P+1}, v{T+4}, v{T+5}')
            A(f'v_add_f32 v{T+2}, v{T+2}, v{T+3}')
            A(f'v_add_f32 v{T+4}, v{T+4}, v{T+5}')
            A(f'v_add_f32 v{LS}, v{LS}, v{T+2}')
            A(f'v_add_f32 v{LS}, v{LS}, v{T+4}')
            for m in range(8):
                A(f'v_mfma_f32_16x16x16_bf16 v[{O + 4*m}:{O + 4*m + 3}], v[{vf + 2*m}:{vf + 2*m + 1}], v[{P}:{P+1}], v[{O + 4*m}:{O + 4*m + 3}]')

        A('s_mov_b32 s35, 0')
        A('s_mov_b32 s39, 0')
        A(f'v_and_b32 v15, 1, v20')
        A(f'v_lshlrev_b32 v15, 8, v15')
        A(f'v_lshl_add_u32 v15, v21, 4, v15')
        A(f'v_add_u32 v15, {QL}, v15')
        if self.preread and 'noload' not in self.exp:
            wait_full('L_c_done')
            reads(0, KF, VF)
            free()
            wait_full('L_c_done')
            reads(1, KB, VB)
            free()
        A(f'v_mov_b32 v{T}, {FL}')
        self.spin_begin(42)
        self.L('L_c_qwait')
        A(f'ds_read_b32 v{T+2}, v{T} offset:32')
        A('s_waitcnt lgkmcnt(0)')
        A(f'v_readfirstlane_b32 s40, v{T+2}')
        A('s_cmp_lg_u32 s40, 0')
        A('s_cbranch_scc1 L_c_qok')
        if 'noq' in self.exp:
            A('s_branch L_c_qok')
        self.spin_retry(42, 'L_c_qwait', sleep=2)
        self.L('L_c_qok')
        for i in range(4):
            A(f'ds_read_b128 v[{Q + 4*i}:{Q + 4*i + 3}], v15 offset:{64 * i}')
        A('s_waitcnt lgkmcnt(0)')
        self.cstamp(1)
        if 'noload' in self.exp:
            self.cflush()
            A('s_endpgm')
        if self.preread:
            qk(KF)
            A('s_nop 7')
            softmax_pv(VF)
            qk(KB)
            A('s_nop 7')
            softmax_pv(VB)
            A('s_branch L_c_u2')
        self.L('L_c_loop')
        for u in range(4):
            if u == 2:
                self.L('L_c_u2')
            wait_full('L_c_done')
            reads(u, KF, VF)
            A('s_waitcnt lgkmcnt(8)')
            qk(KF)
            free()
            A('s_nop 3')
            softmax_pv(VF)
        A('s_branch L_c_loop')
        self.L('L_c_done')

        self.cstamp(2)
        if 'notail' in self.exp:
            self.cflush()
            A('s_endpgm')
        self.xrow('v_add_f32', LS, T)
        A('s_nop 7')
        A(f'v_and_b32 v{T}, 15, v1')
        A(f'v_lshrrev_b32 v{T+1}, 4, v1')
        A(f'v_lshlrev_b32 v{T+2}, 9, v{T}')
        A(f'v_lshl_add_u32 v{T+2}, v{T+1}, 4, v{T+2}')
        A('s_lshl_b32 s40, s26, 10')
        A(f's_add_u32 s40, s40, {OC}')
        A(f'v_add_u32 v{T+2}, s40, v{T+2}')
        A('s_mov_b32 s46, 0x00030003')
        A('s_mov_b32 s47, 0x00030003')
        A('s_mov_b64 exec, s[46:47]')
        for m in range(8):
            A(f'ds_write_b128 v{T+2}, v[{O + 4*m}:{O + 4*m + 3}] offset:{64 * m}')
        A('s_lshl_b32 s40, s26, 4')
        A(f's_add_u32 s40, s40, {OCML}')
        A(f'v_lshlrev_b32 v{T+3}, 3, v{T}')
        A(f'v_add_u32 v{T+3}, s40, v{T+3}')
        A('s_mov_b64 exec, 3')
        A(f'ds_write_b64 v{T+3}, v[{MC}:{LS}]')
        A('s_mov_b64 exec, -1')
        A('s_waitcnt lgkmcnt(0)')
        A('s_barrier')
        A(f'v_mov_b32 v{T+3}, {FL}')
        A(f'ds_read_b32 v68, v{T+3} offset:36')
        A('s_cmp_ge_u32 s26, 2')
        A('s_cbranch_scc1 L_c_nopub')
        A('s_lshl_b32 s40, s26, 6')
        A(f'v_add_u32 v{T}, s40, v1')
        A(f'v_lshrrev_b32 v{T+1}, 3, v{T}')
        A(f'v_and_b32 v{T+2}, 7, v{T}')
        A(f'v_lshlrev_b32 v{T+1}, 6, v{T+1}')
        A(f'v_mul_u32_u24 v{T+2}, 12, v{T+2}')
        A(f'v_add3_u32 v{T+1}, v{T+1}, v{T+2}, 0')
        A(f'v_add_u32 v{T+1}, {OC}, v{T+1}')
        A('s_lshl_b32 s45, s26, 3')
        A(f's_add_u32 s45, s45, {OCML}')
        A(f'v_mov_b32 v{T+2}, s45')
        for k in range(4):
            A(f'ds_read_b64 v[{70 + 2*k}:{71 + 2*k}], v{T+2} offset:{16 * k}')
        for k in range(4):
            for i in range(3):
                A(f'ds_read_b32 v{32 + 4*i + k}, v{T+1} offset:{1024 * k + 4 * i}')
        A('s_waitcnt lgkmcnt(12)')
        A('v_readfirstlane_b32 s29, v68')
        A('v_max3_f32 v80, v70, v72, v74')
        A('v_max_f32 v80, v80, v76')
        for k in range(4):
            A(f'v_sub_f32 v{82 + k}, v{70 + 2*k}, v80')
        for k in range(4):
            A(f'v_exp_f32 v{82 + k}, v{82 + k}')
        A('s_nop 0')
        A('v_mul_f32 v81, v71, v82')
        for k in range(1, 4):
            A(f'v_fmac_f32 v81, v{71 + 2*k}, v{82 + k}')
        A('s_waitcnt lgkmcnt(0)')
        for i in range(3):
            A(f'v_mul_f32 v{88 + i}, v{32 + 4*i}, v82')
            for k in range(1, 4):
                A(f'v_fmac_f32 v{88 + i}, v{32 + 4*i + k}, v{82 + k}')
        A('s_mov_b32 s46, 0x20202020')
        A('s_mov_b32 s47, 0x20202020')
        A('v_cndmask_b32 v89, v89, v80, s[46:47]')
        A('v_cndmask_b32 v90, v90, v81, s[46:47]')
        self.mkchk(88)
        A('s_lshl_b32 s45, s2, 11')
        A(f's_add_u32 s45, s45, {WS_P}')
        A('s_add_u32 s48, s24, s45')
        A('s_addc_u32 s49, s25, 0')
        A(f'v_lshlrev_b32 v{T+3}, 4, v{T}')
        A(f'global_store_dwordx4 v{T+3}, v[88:91], s[48:49] sc1')
        if self.wotail:
            A('s_branch L_c_pubdone')
        self.L('L_c_nopub')
        if self.wotail:
            A('s_lshl_b32 s40, s27, 4')
            A('s_add_u32 s40, s40, s28')
            A('s_mul_i32 s40, s40, 18432')
            A('s_sub_u32 s45, s26, 2')
            A('s_mul_i32 s45, s45, 9216')
            A('s_add_u32 s40, s40, s45')
            A('s_add_u32 s48, s12, s40')
            A('s_addc_u32 s49, s13, 0')
            A(f's_add_u32 s45, s45, {STG}')
            A(f'v_lshlrev_b32 v{T}, 4, v1')
            for i in range(9):
                if i % 4 == 0:
                    A(f's_add_u32 m0, s45, {1024 * i}')
                    A('s_nop 0')
                A(f'global_load_lds_dwordx4 v{T}, s[48:49] offset:{1024 * (i % 4)} nt')
                if i % 4 == 3:
                    A('s_add_u32 s48, s48, 4096')
                    A('s_addc_u32 s49, s49, 0')
            A('s_lshl_b32 s45, s26, 2')
            A(f's_add_u32 s45, s45, {FL + 32}')
            A(f'v_mov_b32 v{T+1}, s45')
            A(f'v_mov_b32 v{T+2}, 1')
            A('s_waitcnt vmcnt(0)')
            A('s_mov_b64 exec, 1')
            A(f'ds_write_b32 v{T+1}, v{T+2}')
            A('s_mov_b64 exec, -1')
            self.L('L_c_pubdone')
        A('s_waitcnt lgkmcnt(0)')
        A('v_readfirstlane_b32 s29, v68')
        self.cstamp(3)
        if self.wotail:
            A(f'v_mov_b32 v{T}, {FL}')
            self.spin_begin(42)
            self.L('L_c_wowait')
            A(f'ds_read_b64 v[{T+2}:{T+3}], v{T} offset:40')
            A('s_waitcnt lgkmcnt(0)')
            A(f'v_and_b32 v{T+2}, v{T+2}, v{T+3}')
            A('s_nop 0')
            A(f'v_readfirstlane_b32 s40, v{T+2}')
            A('s_cmp_lg_u32 s40, 0')
            A('s_cbranch_scc1 L_c_wook')
            self.spin_retry(42, 'L_c_wowait', sleep=1)
            self.L('L_c_wook')
        A(f'v_and_b32 v{T}, 15, v1')
        A(f'v_lshrrev_b32 v{T+1}, 4, v1')
        A(f'v_lshrrev_b32 v{T+3}, 2, v{T}')
        A(f'v_lshl_add_u32 v{T+3}, v{T+1}, 2, v{T+3}')
        A(f'v_mul_u32_u24 v{T+3}, 1152, v{T+3}')
        A(f'v_and_b32 v{T+4}, 3, v{T}')
        A(f'v_lshl_add_u32 v{T+3}, v{T+4}, 3, v{T+3}')
        A('s_mul_i32 s45, s26, 288')
        A(f's_add_u32 s45, s45, {STG}')
        A(f'v_add_u32 v{T+3}, s45, v{T+3}')
        for t in range(9):
            A(f'ds_read_b64_tr_b16 v[{68 + 2*t}:{69 + 2*t}], v{T+3} offset:{32 * t}')
        for r in range(4):
            A(f'v_mov_b32 v{96 + r}, 0')
        A(f'v_lshlrev_b32 v{T+2}, 3, v{T+1}')
        A(f'v_add_u32 v{T+2}, {OB}, v{T+2}')
        A('s_mul_i32 s50, s97, 0x5556')
        A('s_lshr_b32 s50, s50, 18')
        A('s_mul_i32 s51, s50, 12')
        A('s_sub_u32 s51, s97, s51')
        A('s_lshr_b32 s58, s51, 2')
        A('s_and_b32 s51, s51, 3')
        A('s_mul_i32 s50, s50, 9')
        A('s_mul_i32 s58, s58, 3')
        A('s_add_u32 s50, s50, s58')
        A('s_lshl_b32 s50, s50, 4')
        A('s_lshl_b32 s51, s51, 2')
        A('s_add_u32 s50, s50, s51')
        A('v_lshrrev_b32 v121, 2, v1')
        A('v_and_b32 v122, 3, v1')
        A('v_lshl_add_u32 v121, v121, 4, v122')
        A('v_add_u32 v121, s50, v121')
        A('v_lshlrev_b32 v121, 1, v121')
        A('s_mov_b32 s52, s4')
        A('s_mov_b32 s53, s5')
        A('s_mov_b32 s54, 1152')
        A('s_mov_b32 s55, 0x00020000')
        A('buffer_load_ushort v120, v121, s[52:55], 0 offen')
        A('s_waitcnt lgkmcnt(0)')
        A('s_barrier')
        self.cstamp(4)
        A(f'ds_read_b64 v[64:65], v{T+2}')
        A('s_waitcnt lgkmcnt(0)')
        for t in range(9):
            row = 4 * (t // 3) + t % 3
            A(f's_mov_b32 s46, {0x00010001 << row:#x}')
            A(f's_mov_b32 s47, {0x00010001 << row:#x}')
            A(f'v_cndmask_b32 v{88 + 2*(t&1)}, 0, v64, s[46:47]')
            A(f'v_cndmask_b32 v{89 + 2*(t&1)}, 0, v65, s[46:47]')
            A('s_nop 1')
            A(f'v_mfma_f32_16x16x16_bf16 v[96:99], v[{88 + 2*(t&1)}:{89 + 2*(t&1)}], v[{68 + 2*t}:{69 + 2*t}], v[96:99]')
        A('s_mul_i32 s45, s2, 3072')
        A(f's_add_u32 s45, s45, {WS_Y}')
        A('s_add_u32 s48, s24, s45')
        A('s_addc_u32 s49, s25, 0')
        A('s_mul_i32 s45, s26, 768')
        A(f'v_lshlrev_b32 v{T+2}, 4, v1')
        A(f'v_add_u32 v{T+2}, s45, v{T+2}')
        A('s_nop 3')
        self.mkchk(96)
        A('s_mov_b32 s46, -1')
        A('s_mov_b32 s47, 0xffff')
        A('s_mov_b64 exec, s[46:47]')
        A(f'global_store_dwordx4 v{T+2}, v[96:99], s[48:49] sc1')
        A('s_mov_b64 exec, -1')
        self.cstamp(5)
        A(f's_cmp_lt_u32 s97, {NRED}')
        A('s_cbranch_scc1 L_c_red')
        self.cflush()
        A('s_endpgm')
        self.L('L_c_red')
        A('s_lshl_b32 s45, s26, 6')
        A(f'v_lshrrev_b32 v{T}, 2, v1')
        A(f'v_add_u32 v{T}, s45, v{T}')
        A(f'v_mul_u32_u24 v{T}, 3072, v{T}')
        A(f'v_and_b32 v{T+1}, 3, v1')
        A(f'v_lshl_add_u32 v{T}, v{T+1}, 4, v{T}')
        for i in range(1, 4):
            A(f'v_add_u32 v{T+i}, {3072 * 16 * i}, v{T}')
        A('s_lshl_b32 s45, s97, 6')
        A(f's_add_u32 s45, s45, {WS_Y}')
        A('s_add_u32 s48, s24, s45')
        A('s_addc_u32 s49, s25, 0')
        self.poll('L_c_d', [f'global_load_dwordx4 v[{64 + 4*i}:{67 + 4*i}], v{T+i}, s[48:49] sc1' for i in range(4)],
                  lambda: self.chk3([64, 68, 72, 76], 80, 81), sleep=3)
        for r in range(3):
            A(f'v_add_f32 v{64 + r}, v{64 + r}, v{68 + r}')
            A(f'v_add_f32 v{72 + r}, v{72 + r}, v{76 + r}')
        for r in range(3):
            A(f'v_add_f32 v{64 + r}, v{64 + r}, v{72 + r}')
        for r in range(3):
            self.rowred('v_add_f32', 64 + r, rors=(4, 8))
        for r in range(3):
            self.xrow('v_add_f32', 64 + r, 80)
        A('s_lshl_b32 s45, s26, 6')
        A(f's_add_u32 s45, s45, {RED}')
        A('v_lshlrev_b32 v72, 4, v1')
        A('v_add_u32 v72, s45, v72')
        A('s_mov_b64 exec, 15')
        A('ds_write_b128 v72, v[64:67]')
        A('s_mov_b64 exec, -1')
        A('s_waitcnt lgkmcnt(0)')
        A('s_barrier')
        A('s_cmp_lg_u32 s26, 0')
        A('s_cbranch_scc1 L_end')
        A('v_lshrrev_b32 v72, 2, v1')
        A('v_and_b32 v73, 3, v1')
        A('v_lshlrev_b32 v72, 2, v72')
        A('v_lshl_add_u32 v72, v73, 4, v72')
        A(f'v_add_u32 v73, {RED}, v72')
        for k in range(4):
            A(f'ds_read_b32 v{64 + k}, v73 offset:{64 * k}')
        A(f'v_add_u32 v73, {FFNR}, v72')
        A('ds_read_b32 v68, v73')
        A('s_waitcnt lgkmcnt(0) vmcnt(0)')
        A('v_add_f32 v64, v64, v65')
        A('v_add_f32 v66, v66, v67')
        A('v_add_f32 v64, v64, v66')
        self.bf16r(64, 64, 70)
        self.bf16r(68, 68, 70)
        A('v_lshlrev_b32 v69, 16, v120')
        A('v_add_f32 v64, v69, v64')
        self.bf16r(64, 64, 70)
        A('v_add_f32 v64, v64, v68')
        A('v_cvt_pk_bf16_f32 v64, v64, v64')
        A('s_mov_b32 s52, s20')
        A('s_mov_b32 s53, s21')
        A('s_mov_b32 s54, 1152')
        A('s_mov_b32 s55, 0x00020000')
        A('s_mov_b64 exec, 0xfff')
        A('buffer_store_short v64, v121, s[52:55], 0 offen')
        A('s_mov_b64 exec, -1')
        self.stamp(6)
        self.flush_stamps()
        A('s_cmp_lg_u32 s97, 0')
        A('s_cbranch_scc1 L_end')
        A('v_mov_b32 v64, s29')
        A('v_mov_b32 v65, 0')
        A('s_mov_b64 exec, 1')
        A('global_store_dword v65, v64, s[24:25] sc1')
        A('s_branch L_end')

    def gemv64(self, acc, first, xoff_sreg):
        A = self.A
        NB = 5
        A(f'v_add_u32 v21, s{xoff_sreg}, v20')
        def rd(s):
            b = 40 + 10 * (s % NB)
            A(f'ds_read_b64 v[{b}:{b+1}], v21 offset:{32 * s}')
            for t in range(4):
                A(f'ds_read_b64_tr_b16 v[{b+2+2*t}:{b+3+2*t}], v{16 + t} offset:{2048 * s}')
        NP = 3
        for s in range(NP):
            rd(s)
        for s in range(9):
            left = min(9, s + NP) - s - 1
            A(f's_waitcnt lgkmcnt({5 * left})')
            b = 40 + 10 * (s % NB)
            for t in range(4):
                c = '0' if (first and s == 0) else f'v[{acc + 4*t}:{acc + 4*t + 3}]'
                A(f'v_mfma_f32_16x16x16_bf16 v[{acc + 4*t}:{acc + 4*t + 3}], v[{b}:{b+1}], v[{b+2+2*t}:{b+3+2*t}], {c}')
            if s + NP < 9:
                rd(s + NP)

    def dma_cols(self, sbase, pitch, voff, win=None):
        A = self.A
        A(f's_mov_b32 s36, s{sbase}')
        A(f's_mov_b32 s37, s{sbase+1}')
        for s in range(18):
            A(f's_mov_b32 m0, {STG + 1024 * s}')
            if win:
                A(f's_waitcnt vmcnt({win - 1})')
            else:
                A('s_nop 0')
            A(f'global_load_lds_dwordx4 v{voff}, s[36:37] nt')
            if s < 17:
                A(f's_add_u32 s36, s36, {8 * pitch}')
                A('s_addc_u32 s37, s37, 0')

    def dma_rows(self, sbase, win=None):
        A = self.A
        A(f's_mov_b32 s36, s{sbase}')
        A(f's_mov_b32 s37, s{sbase+1}')
        for s in range(18):
            if s % 4 == 0:
                A(f's_mov_b32 m0, {STG + 1024 * s}')
                A('s_nop 0')
            if win:
                A(f's_waitcnt vmcnt({win - 1})')
            A(f'global_load_lds_dwordx4 v23, s[36:37] offset:{1024 * (s % 4)} nt')
            if s % 4 == 3:
                A('s_add_u32 s36, s36, 4096')
                A('s_addc_u32 s37, s37, 0')

    def helper(self):
        A = self.A
        FW = self.ffn_win
        self.L('L_helper')
        self.pending = []
        A('s_setprio 3')
        self.stamp(0)
        if 'nohelper' in self.exp:
            self.flush_stamps()
            A('s_endpgm')
        A('v_mov_b32 v2, 0')
        A('global_load_dword v3, v2, s[24:25] sc1')
        A('s_and_b32 s40, s2, 15')
        A('s_cmp_lg_u32 s40, 0')
        A('s_cbranch_scc1 L_h_nozero')
        A('s_lshr_b32 s40, s2, 4')
        A(f's_mul_i32 s40, s40, {self.cstride}')
        A(f's_add_u32 s40, s40, {WS_CNT}')
        A('v_mov_b32 v5, s40')
        A('s_mov_b64 exec, 1')
        A('global_store_dword v5, v2, s[24:25] sc1')
        A('s_mov_b64 exec, -1')
        self.L('L_h_nozero')
        A('s_mov_b32 s52, s4')
        A('s_mov_b32 s53, s5')
        A('s_mov_b32 s54, 1152')
        A('s_mov_b32 s55, 0x00020000')
        A('v_lshlrev_b32 v4, 1, v1')
        for k in range(9):
            A(f'buffer_load_ushort v{30 + k}, v4, s[52:55], 0 offen offset:{128 * k}')
        A('s_lshr_b32 s50, s2, 2')
        A('s_and_b32 s51, s2, 3')
        A('s_lshl_b32 s40, s50, 7')
        A(f's_mul_i32 s58, s51, {144 * 8192}')
        A('s_add_u32 s40, s40, s58')
        A('s_add_u32 s56, s10, s40')
        A('s_addc_u32 s57, s11, 0')
        A('v_lshrrev_b32 v5, 3, v1')
        A('v_and_b32 v6, 7, v1')
        A('v_lshrrev_b32 v7, 4, v1')
        A('v_lshlrev_b32 v7, 1, v7')
        A('v_xor_b32 v6, v6, v7')
        A('v_lshlrev_b32 v6, 4, v6')
        A('v_lshl_add_u32 v22, v5, 13, v6')
        A('v_mul_u32_u24 v25, 9216, v5')
        A('v_add_u32 v25, v25, v6')
        A('v_lshlrev_b32 v23, 4, v1')
        if 'nowq' not in self.exp:
            self.dma_cols(56, 8192, 22)
        A('s_lshl_b32 s40, s27, 13')
        A(f's_add_u32 s40, s40, {WS_Q}')
        A('s_add_u32 s62, s24, s40')
        A('s_addc_u32 s63, s25, 0')
        A('v_lshrrev_b32 v14, 5, v1')
        A('v_lshlrev_b32 v14, 11, v14')
        A('v_and_b32 v15, 31, v1')
        A('v_lshl_add_u32 v14, v15, 4, v14')
        A('v_add_u32 v15, 4096, v14')
        nwarm = 0
        if 'qwarm' in self.exp:
            for H in range(2):
                for kp in range(4):
                    A(f'global_load_dwordx4 v[{96 + 4*kp}:{99 + 4*kp}], v{14 + H}, s[62:63] offset:{512 * kp} sc1')
                    nwarm += 1
        A('v_lshrrev_b32 v26, 4, v1')
        A('v_and_b32 v27, 15, v1')
        A('v_lshlrev_b32 v20, 3, v26')
        A(f'v_add_u32 v20, {XN}, v20')
        A('v_lshrrev_b32 v28, 2, v27')
        A('v_lshl_add_u32 v28, v26, 2, v28')
        A('v_and_b32 v29, 3, v27')
        A('v_lshlrev_b32 v8, 7, v28')
        A('v_lshl_add_u32 v8, v29, 3, v8')
        A(f'v_add_u32 v8, {STG}, v8')
        A('v_lshrrev_b32 v9, 1, v28')
        A('v_and_b32 v9, 3, v9')
        for t in range(4):
            A(f'v_xor_b32 v10, {t}, v9')
            A(f'v_lshl_add_u32 v{16 + t}, v10, 5, v8')
        A('v_mul_u32_u24 v24, 1152, v28')
        A('v_lshl_add_u32 v24, v29, 3, v24')
        A(f'v_add_u32 v24, {STG}, v24')
        nq = 0 if 'nowq' in self.exp else 18
        A(f's_waitcnt vmcnt({nq + nwarm})')
        self.stamp(11)
        A('v_readfirstlane_b32 s29, v3')
        X = 30
        for k in range(9):
            A(f'v_lshlrev_b32 v{X + k}, 16, v{X + k}')
        A('s_add_u32 s29, s29, 1')
        A(f'v_add_f32 v10, v{X}, v{X+1}')
        for k in range(2, 9):
            A(f'v_add_f32 v10, v10, v{X + k}')
        self.wavesum(10, 11)
        A(f'v_mul_f32 v10, {0x3AE38E39:#x}, v10')
        for k in range(9):
            A(f'v_sub_f32 v{40 + k}, v{X + k}, v10')
        A('v_mul_f32 v12, v40, v40')
        for k in range(1, 9):
            A(f'v_fmac_f32 v12, v{40 + k}, v{40 + k}')
        self.wavesum(12, 11)
        A(f'v_mul_f32 v12, {0x3AE38E39:#x}, v12')
        self.bf16r(10, 10, 11)
        self.bf16r(12, 12, 11)
        A(f'v_add_f32 v12, {0x3727C5AC:#x}, v12')
        self.bf16r(12, 12, 11)
        A('v_sqrt_f32 v12, v12')
        A('s_nop 0')
        self.bf16r(12, 12, 11)
        A('v_rcp_f32 v13, v12')
        for k in range(9):
            A(f'v_sub_f32 v{40 + k}, v{X + k}, v10')
        for k in range(0, 9, 2):
            k2 = min(k + 1, 8)
            A(f'v_cvt_pk_bf16_f32 v{50 + k // 2}, v{40 + k}, v{40 + k2}')
        for k in range(9):
            if k % 2 == 0:
                A(f'v_lshlrev_b32 v{40 + k}, 16, v{50 + k // 2}')
            else:
                A(f'v_and_b32 v{40 + k}, 0xffff0000, v{50 + k // 2}')
        for k in range(9):
            A(f'v_mul_f32 v{60 + k}, v{40 + k}, v13')
            A(f'v_fma_f32 v{70 + k}, -v{60 + k}, v12, v{40 + k}')
            A(f'v_fma_f32 v{60 + k}, v{70 + k}, v13, v{60 + k}')
        for k in range(0, 9, 2):
            k2 = min(k + 1, 8)
            A(f'v_cvt_pk_bf16_f32 v{50 + k // 2}, v{60 + k}, v{60 + k2}')
        A(f'v_add_u32 v11, {XN}, v4')
        for k in range(9):
            op = 'ds_write_b16' if k % 2 == 0 else 'ds_write_b16_d16_hi'
            A(f'{op} v11, v{50 + k // 2} offset:{128 * k}')
        A('s_mul_i32 s58, s51, 288')
        self.stamp(12)
        A('s_waitcnt vmcnt(0) lgkmcnt(0)')
        self.stamp(13)
        self.gemv64(96, True, 58)
        A('s_nop 7')
        self.stamp(10)
        A('s_mov_b32 s46, 0xffff0000')
        A('s_mov_b32 s47, 0')
        A('v_cndmask_b32 v32, v96, v104, s[46:47]')
        A('v_cndmask_b32 v34, v100, v108, s[46:47]')
        A('v_mov_b32 v33, s29')
        A('v_mov_b32 v35, s29')
        A('s_lshl_b32 s40, s2, 9')
        A(f's_add_u32 s40, s40, {WS_Q}')
        A('s_add_u32 s48, s24, s40')
        A('s_addc_u32 s49, s25, 0')
        A('s_mov_b32 s46, -1')
        A('s_mov_b64 exec, s[46:47]')
        A('global_store_dwordx4 v23, v[32:35], s[48:49] sc1')
        A('s_mov_b64 exec, -1')
        A('s_mov_b32 s48, s62')
        A('s_mov_b32 s49, s63')
        A('v_mov_b32 v30, v14')
        A('v_mov_b32 v31, v15')
        loads = []
        for H in range(2):
            for kp in range(4):
                b = 40 + 16 * H + 4 * kp
                loads.append(f'global_load_dwordx4 v[{b}:{b+3}], v{30 + H}, s[48:49] offset:{512 * kp} sc1')
        def qchk():
            A('v_xor_b32 v72, s29, v41')
            for q in range(43, 72, 2):
                A(f'v_xor_b32 v73, s29, v{q}')
                A('v_or_b32 v72, v72, v73')
            return 72
        self.poll('L_h_q', loads, qchk, sleep=1, probe=('qsweep' not in self.exp))
        self.stamp(14)
        for H in range(2):
            b = 40 + 16 * H
            for e in (0, 2):
                A(f'v_add_f32 v{b+e}, v{b+e}, v{b+4+e}')
                A(f'v_add_f32 v{b+8+e}, v{b+8+e}, v{b+12+e}')
                A(f'v_add_f32 v{b+e}, v{b+e}, v{b+8+e}')
            A(f'v_cvt_pk_bf16_f32 v{74 + H}, v{b}, v{b+2}')
        A('v_lshrrev_b32 v32, 4, v1')
        A('v_lshlrev_b32 v32, 6, v32')
        A('v_lshl_add_u32 v32, v27, 1, v32')
        A(f'v_add_u32 v32, {QL}, v32')
        for H in range(2):
            A(f'ds_write_b16 v32, v{74 + H} offset:{256 * H}')
            A(f'ds_write_b16_d16_hi v32, v{74 + H} offset:{256 * H + 32}')
        A('v_mov_b32 v42, 1')
        A('v_mov_b32 v43, s29')
        A(f'v_mov_b32 v41, {FL}')
        A('s_waitcnt lgkmcnt(0)')
        A('s_mov_b64 exec, 1')
        A('ds_write_b64 v41, v[42:43] offset:32')
        A('s_mov_b64 exec, -1')
        A('s_setprio 0')
        A(f's_cmp_ge_u32 s96, {NFFN}')
        A('s_cbranch_scc1 L_h_ffn_done')
        if 'noffn' in self.exp:
            A('s_branch L_h_ffn_done')
        A('s_mov_b32 s59, 0')
        self.L('L_h_f1')
        A('s_lshl_b32 s40, s96, 7')
        A(f's_mul_i32 s58, s59, {144 * 9216}')
        A('s_add_u32 s40, s40, s58')
        A('s_add_u32 s56, s16, s40')
        A('s_addc_u32 s57, s17, 0')
        if 'now1' not in self.exp:
            self.dma_cols(56, 9216, 25, win=FW)
        A('s_mul_i32 s58, s59, 288')
        A('s_waitcnt vmcnt(0)')
        A('s_cmp_lg_u32 s59, 0')
        A('s_cbranch_scc1 L_h_f1b')
        for r in range(16):
            A(f'v_mov_b32 v{96 + r}, 0')
        self.L('L_h_f1b')
        A('s_nop 1')
        self.gemv64(96, False, 58)
        A('s_add_u32 s59, s59, 1')
        A('s_cmp_lt_u32 s59, 4')
        A('s_cbranch_scc1 L_h_f1')
        A('s_nop 7')
        A('v_lshlrev_b32 v34, 1, v27')
        A(f'v_add_u32 v34, {OB}, v34')
        for t in range(4):
            self.bf16r(30, 96 + 4 * t, 31)
            A(f'v_mul_f32 v31, {0xBFB8AA3B:#x}, v30')
            A('v_exp_f32 v31, v31')
            A('s_nop 0')
            A('v_add_f32 v31, 1.0, v31')
            A('v_rcp_f32 v32, v31')
            A('s_nop 0')
            A('v_mul_f32 v33, v30, v32')
            A('v_cvt_pk_bf16_f32 v33, v33, v33')
            A('s_mov_b64 exec, 0xffff')
            A(f'ds_write_b16 v34, v33 offset:{32 * t}')
            A('s_mov_b64 exec, -1')
        for r in range(12):
            A(f'v_mov_b32 v{112 + r}, 0')
        A('v_lshlrev_b32 v35, 3, v26')
        A(f'v_add_u32 v35, {OB}, v35')
        A('s_mov_b32 s59, 0')
        self.L('L_h_f2')
        A('s_lshl_b32 s40, s96, 2')
        A('s_add_u32 s40, s40, s59')
        A('s_mul_i32 s40, s40, 18432')
        A('s_add_u32 s56, s18, s40')
        A('s_addc_u32 s57, s19, 0')
        if 'now2' not in self.exp:
            self.dma_rows(56, win=FW)
        A('s_lshl_b32 s40, s59, 5')
        A('v_add_u32 v38, s40, v35')
        A('s_waitcnt lgkmcnt(0)')
        A('ds_read_b64 v[36:37], v38')
        A('s_waitcnt vmcnt(0) lgkmcnt(0)')
        for t0 in range(0, 36, 12):
            for t in range(t0, t0 + 12):
                A(f'ds_read_b64_tr_b16 v[{40 + 2*(t - t0)}:{41 + 2*(t - t0)}], v24 offset:{32 * t}')
            A('s_waitcnt lgkmcnt(0)')
            for t in range(t0, t0 + 12):
                grp, r = t // 3, t % 3
                a = 112 + 4 * (grp // 4)
                row = 4 * (grp % 4) + r
                A(f's_mov_b32 s46, {0x00010001 << row:#x}')
                A(f's_mov_b32 s47, {0x00010001 << row:#x}')
                A(f'v_cndmask_b32 v{88 + 2*(t&1)}, 0, v36, s[46:47]')
                A(f'v_cndmask_b32 v{89 + 2*(t&1)}, 0, v37, s[46:47]')
                A('s_nop 1')
                A(f'v_mfma_f32_16x16x16_bf16 v[{a}:{a+3}], v[{88 + 2*(t&1)}:{89 + 2*(t&1)}], v[{40 + 2*(t - t0)}:{41 + 2*(t - t0)}], v[{a}:{a+3}]')
        A('s_add_u32 s59, s59, 1')
        A('s_cmp_lt_u32 s59, 4')
        A('s_cbranch_scc1 L_h_f2')
        A('s_nop 7')
        A('s_mul_i32 s40, s96, 3072')
        A(f's_add_u32 s40, s40, {WS_F}')
        A('s_add_u32 s48, s24, s40')
        A('s_addc_u32 s49, s25, 0')
        for a in range(3):
            self.mkchk(112 + 4 * a)
            A(f'global_store_dwordx4 v23, v[{112 + 4*a}:{115 + 4*a}], s[48:49] offset:{1024 * a} sc1')
        self.L('L_h_ffn_done')
        if 'nowo' not in self.exp and not self.wotail:
            A('s_lshl_b32 s40, s27, 4')
            A('s_add_u32 s40, s40, s28')
            A('s_mul_i32 s40, s40, 18432')
            A('s_add_u32 s56, s12, s40')
            A('s_addc_u32 s57, s13, 0')
            self.dma_rows(56, win=FW)
        A(f's_cmp_ge_u32 s97, {NRED}')
        A('s_cbranch_scc1 L_h_tail')
        if 'nofgather' in self.exp or 'noffn' in self.exp:
            A('s_branch L_h_tail')
        A(f'v_mov_b32 v34, {FL}')
        self.spin_begin(42)
        self.L('L_h_fwait')
        A('ds_read_b32 v35, v34 offset:16')
        A('s_waitcnt lgkmcnt(0)')
        A('v_readfirstlane_b32 s40, v35')
        A(f's_cmp_ge_u32 s40, {self.nunits // 2}')
        A('s_cbranch_scc1 L_h_fgo')
        self.spin_retry(42, 'L_h_fwait', sleep=64)
        self.L('L_h_fgo')
        A('s_lshl_b32 s40, s97, 6')
        A(f's_add_u32 s40, s40, {WS_F}')
        A('s_add_u32 s48, s24, s40')
        A('s_addc_u32 s49, s25, 0')
        A('v_lshrrev_b32 v30, 2, v1')
        A('v_mul_u32_u24 v30, 3072, v30')
        A('v_and_b32 v31, 3, v1')
        A('v_lshl_add_u32 v30, v31, 4, v30')
        for i in range(1, 5):
            A(f'v_add_u32 v{30 + i}, {3072 * 16 * i}, v30')
        A('s_mov_b32 s46, 0')
        A('s_mov_b32 s47, -1')
        A(f'v_add_u32 v35, {-3072 * 8 & 0xffffffff:#x}, v34')
        A('v_cndmask_b32 v34, v34, v35, s[46:47]')
        self.poll('L_h_f', [f'global_load_dwordx4 v[{40 + 4*i}:{43 + 4*i}], v{30 + i}, s[48:49] sc1' for i in range(5)],
                  lambda: self.chk3([40, 44, 48, 52, 56], 60, 61), sleep=32)
        A('s_mov_b32 s46, 0')
        A('s_mov_b32 s47, -1')
        for r in range(3):
            A(f'v_cndmask_b32 v{56 + r}, v{56 + r}, 0, s[46:47]')
        for r in range(3):
            A(f'v_add_f32 v{40 + r}, v{40 + r}, v{44 + r}')
            A(f'v_add_f32 v{48 + r}, v{48 + r}, v{52 + r}')
            A(f'v_add_f32 v{40 + r}, v{40 + r}, v{56 + r}')
        for r in range(3):
            A(f'v_add_f32 v{40 + r}, v{40 + r}, v{48 + r}')
        for r in range(3):
            self.rowred('v_add_f32', 40 + r, rors=(4, 8))
        for r in range(3):
            self.xrow('v_add_f32', 40 + r, 60)
        A('v_lshlrev_b32 v34, 4, v1')
        A(f'v_add_u32 v34, {FFNR}, v34')
        A('s_mov_b64 exec, 15')
        A('ds_write_b128 v34, v[40:43]')
        A('s_mov_b64 exec, -1')
        self.L('L_h_tail')
        A('s_waitcnt vmcnt(0) lgkmcnt(0)')
        self.stamp(7)
        if 'notail' in self.exp:
            self.flush_stamps()
            A('s_endpgm')
        A('v_lshrrev_b32 v30, 3, v1')
        A('v_and_b32 v31, 7, v1')
        A('v_min_u32 v32, 5, v31')
        if self.headmap == 'lin':
            A('s_lshl_b32 s58, s27, 15')
            A('v_lshlrev_b32 v33, 11, v30')
            step8 = 8 * 2048
        else:
            A('s_and_b32 s58, s27, 1')
            A('s_lshl_b32 s58, s58, 3')
            A('s_lshr_b32 s59, s27, 1')
            A('s_add_u32 s58, s58, s59')
            A('s_lshl_b32 s58, s58, 11')
            A('v_lshlrev_b32 v33, 15, v30')
            step8 = 8 * 16 * 2048
        A('s_lshl_b32 s40, s28, 7')
        A('s_add_u32 s58, s58, s40')
        A(f's_add_u32 s58, s58, {WS_P}')
        A('s_add_u32 s48, s24, s58')
        A('s_addc_u32 s49, s25, 0')
        A('v_lshl_add_u32 v34, v32, 4, v33')
        A(f'v_add_u32 v35, {step8}, v34')
        A('v_add_u32 v36, 80, v33')
        A(f'v_add_u32 v37, {step8}, v36')
        US, LA, NI = self.US, self.LA, self.NI
        A(f'v_mov_b32 v38, {FL}')
        def put_id(kreg, valreg_v):
            A(f's_lshl_b32 s40, s{kreg}, 2')
            A(f's_add_u32 s40, s40, {IDS}')
            A('v_mov_b32 v39, s40')
            A('s_mov_b64 exec, 1')
            A(f'ds_write_b32 v39, v{valreg_v}')
            A('s_mov_b64 exec, -1')
        if NI == 0:
            A('s_mov_b32 s50, 0')
            A('v_mov_b32 v44, -1')
            put_id(50, 44)
        else:
            A(f's_mul_i32 s40, s27, {self.cstride}')
            A(f's_add_u32 s40, s40, {WS_CNT}')
            A('s_add_u32 s56, s24, s40')
            A('s_addc_u32 s57, s25, 0')
            A('v_mov_b32 v40, 0')
            A('v_mov_b32 v41, 1')
            def wait_progress(kreg, lab):
                A(f's_add_u32 s51, s{kreg}, {US - LA}')
                self.spin_begin(42)
                self.L(lab)
                A('ds_read_b128 v[44:47], v38')
                A('s_waitcnt lgkmcnt(0)')
                A('v_max_u32 v44, v44, v45')
                A('v_max3_u32 v44, v44, v46, v47')
                A('s_nop 0')
                A('v_readfirstlane_b32 s40, v44')
                A('s_cmp_ge_u32 s40, s51')
                A(f's_cbranch_scc1 {lab}_ok')
                self.spin_retry(42, lab, sleep=4)
                self.L(f'{lab}_ok')
            def claim(dst):
                A('s_mov_b64 exec, 1')
                A(f'global_atomic_add v{dst}, v40, v41, s[56:57] sc0')
                A('s_mov_b64 exec, -1')
            A('s_mov_b32 s50, 0')
            A('s_mov_b32 s58, 0')
            wait_progress(50, 'L_h_cw0')
            claim(42)
            A('s_mov_b32 s50, 1')
            self.L('L_h_claim')
            for par in range(2):
                cur, nxt = 42 + par, 43 - par
                last = self.lab('L_h_clast')
                res = self.lab('L_h_cres')
                A(f's_cmp_ge_u32 s50, {CAP}')
                A(f's_cbranch_scc1 {last}')
                wait_progress(50, self.lab('L_h_cw'))
                claim(nxt)
                A('s_add_u32 s50, s50, 1')
                A('s_waitcnt vmcnt(1)')
                A(f's_branch {res}')
                self.L(last)
                A('s_waitcnt vmcnt(0)')
                A(f'v_mov_b32 v{nxt}, {NI}')
                self.L(res)
                A(f'v_readfirstlane_b32 s40, v{cur}')
                if self.endmargin:
                    nm = self.lab('L_h_nom')
                    A(f's_cmp_lt_u32 s40, {max(NI - self.endmargin, 0)}')
                    A(f's_cbranch_scc1 {nm}')
                    for q in range(4):
                        A(f'v_mov_b32 v{44 + q}, 1')
                    A('s_mov_b64 exec, 1')
                    A('ds_write_b128 v38, v[44:47] offset:48')
                    A('s_mov_b64 exec, -1')
                    self.L(nm)
                A(f's_cmp_ge_u32 s40, {NI}')
                A('s_cselect_b32 s40, -2, s40')
                A('s_add_u32 s59, s40, 1')
                A('v_mov_b32 v44, s59')
                put_id(58, 44)
                A('s_add_u32 s58, s58, 1')
                A('s_cmp_eq_u32 s59, -1')
                A('s_cbranch_scc1 L_h_cdone')
            A('s_branch L_h_claim')
            self.L('L_h_cdone')
            A('v_mov_b32 v44, 1')
            A('v_mov_b32 v45, 1')
            A('v_mov_b32 v46, 1')
            A('v_mov_b32 v47, 1')
            A('s_mov_b64 exec, 1')
            A('ds_write_b128 v38, v[44:47] offset:48')
            A('s_mov_b64 exec, -1')
            A('s_waitcnt vmcnt(0) lgkmcnt(0)')
        if 'nowarm' not in self.exp:
            for i in range(2):
                A(f'global_load_dwordx4 v[{40 + 4*i}:{43 + 4*i}], v{34 + i}, s[48:49] sc1')
            A(f's_cmp_ge_u32 s97, {NRED}')
            A('s_cbranch_scc1 L_h_wdone')
            A('s_lshl_b32 s40, s97, 6')
            A(f's_add_u32 s40, s40, {WS_Y}')
            A('s_add_u32 s56, s24, s40')
            A('s_addc_u32 s57, s25, 0')
            A('v_lshrrev_b32 v38, 2, v1')
            A('v_mul_u32_u24 v38, 3072, v38')
            A('v_and_b32 v39, 3, v1')
            A('v_lshl_add_u32 v38, v39, 4, v38')
            for i in range(16):
                A(f'global_load_dwordx4 v[{48 + 4*(i%8)}:{51 + 4*(i%8)}], v38, s[56:57] sc1')
                A(f'v_add_u32 v38, {3072 * 16}, v38')
            self.L('L_h_wdone')
            A('s_waitcnt vmcnt(0)')
        A('s_barrier')
        self.poll('L_h_b', [f'global_load_dwordx4 v[{40 + 4*i}:{43 + 4*i}], v{34 + i}, s[48:49] sc1' for i in range(4)],
                  lambda: self.chk3([40, 44, 48, 52], 56, 57), sleep=2)
        self.stamp(15)
        A('v_max_f32 v56, v49, v53')
        self.rowred('v_max_f32', 56, rors=(8,))
        self.xrow('v_max_f32', 56, 57)
        A('v_sub_f32 v58, v49, v56')
        A('v_sub_f32 v59, v53, v56')
        A('v_exp_f32 v58, v58')
        A('v_exp_f32 v59, v59')
        A('s_nop 0')
        A('v_mul_f32 v60, v50, v58')
        A('v_fmac_f32 v60, v54, v59')
        for i in range(3):
            A(f'v_mul_f32 v{61 + i}, v{40 + i}, v58')
            A(f'v_fmac_f32 v{61 + i}, v{44 + i}, v59')
        for r in (60, 61, 62, 63):
            self.rowred('v_add_f32', r, rors=(8,))
        for r in (60, 61, 62, 63):
            self.xrow('v_add_f32', r, 57)
        A('v_rcp_f32 v64, v60')
        A('s_nop 0')
        for r in (61, 62, 63):
            A(f'v_mul_f32 v65, v{r}, v64')
            A(f'v_fma_f32 v66, -v65, v60, v{r}')
            A(f'v_fma_f32 v{r}, v66, v64, v65')
        A('v_cvt_pk_bf16_f32 v61, v61, v62')
        A('v_cvt_pk_bf16_f32 v63, v63, v63')
        A('v_mul_u32_u24 v62, 6, v31')
        A(f'v_add_u32 v62, {OB}, v62')
        A('s_mov_b64 exec, 0x3f')
        A('ds_write_b16 v62, v61')
        A('s_mov_b64 exec, 0x1f')
        A('ds_write_b16_d16_hi v62, v61 offset:2')
        A('ds_write_b16 v62, v63 offset:4')
        A('s_mov_b64 exec, -1')
        A('s_waitcnt lgkmcnt(0)')
        A('s_barrier')
        self.flush_stamps()
        A('s_endpgm')

    def build(self):
        head = HEADER + f'; @launch grid=(256,1,1) block=(576,1,1) lds={LDS_BYTES}\n'
        head += '.amdgcn_target "amdgcn-amd-amdhsa--gfx950"\n.text\n'
        head += f'.globl {KNAME}\n.p2align 8\n.type {KNAME},@function\n{KNAME}:\n'
        self.entry()
        self.consumer()
        self.loader()
        self.helper()
        self.L('L_end')
        self.A('s_endpgm')
        tail = f'''.section .rodata,"a"
.p2align 6
.amdhsa_kernel {KNAME}
  .amdhsa_next_free_vgpr 160
  .amdhsa_next_free_sgpr 100
  .amdhsa_accum_offset 160
  .amdhsa_group_segment_fixed_size 0
  .amdhsa_kernarg_size 88
  .amdhsa_user_sgpr_count 2
  .amdhsa_user_sgpr_kernarg_segment_ptr 1
  .amdhsa_system_sgpr_workgroup_id_x 1
  .amdhsa_float_denorm_mode_32 3
  .amdhsa_float_denorm_mode_16_64 3
.end_amdhsa_kernel
'''
        return head + '\n'.join(self.o) + '\n' + tail


if __name__ == '__main__':
    import argparse
    ap = argparse.ArgumentParser()
    ap.add_argument('-o', default='parallel_sum__gqa_block_cached__dense_activation_silu__decode.s')
    ap.add_argument('--W', type=int, default=5)
    ap.add_argument('--rot', type=int, default=5)
    ap.add_argument('--headmap', default='lin')
    ap.add_argument('--stamps', action='store_true')
    ap.add_argument('--exp', default='')
    a = ap.parse_args()
    open(a.o, 'w').write(Gen(W=a.W, rot=a.rot, headmap=a.headmap, stamps=a.stamps, exp=[e for e in a.exp.split(',') if e]).build())
    print('wrote', a.o)
```

```python
import sys

KNAME = 'parallel_sum__gqa_block_cached__dense_activation_silu__decode_kernel'

HEADER = '''; Kernarg layout for this problem (88 bytes, ptrs only, base s[0:1]):
'''

RING = 32768
STG = 0x20000
XN = 0x24800
QL = 0x24D00
FL = 0x25000
OC = 0x25100
OCML = 0x26100
OB = 0x26180
RED = 0x26200
FFNR = 0x26300
LDS_BYTES = 0x28000

WS_EPOCH = 0x0
WS_Q = 0x10000
WS_P = 0x80000
WS_Y = 0x100000
WS_F = 0x30000
NRED = 48
NFFN = 72
WS_DBG = 0x800000

SCALE = 0x3DB504F3
LOG2E = 0x3FB8AA3B
SPIN = 0x40000
IDS = FL + 64
CAP = 40
WS_CNT = 0x1C0000


class Gen:
    def __init__(self, W=5, rot=5, headmap='lin', stamps=False, nunits=64, exp=(), ffn_win=6, warm_before=4, US=60, LA=2, preread=True, wotail=True, Wend=12, endmargin=32, cstride=12544, earlyflags=True, fastpoll=True):
        self.o = []
        self.W = W
        self.rot = rot
        self.headmap = headmap
        self.stamps = stamps
        self.nunits = nunits
        self.uid = 0
        self.pending = []
        self.exp = set(exp)
        self.ffn_win = ffn_win
        self.warm_before = warm_before
        self.US = US
        self.LA = LA
        self.NI = (64 - US) * 16
        self.preread = preread
        self.wotail = wotail
        self.Wend = Wend
        self.fastpoll = fastpoll
        self.earlyflags = earlyflags
        self.cstride = cstride
        self.endmargin = endmargin
        self.sleepmul = 8 if 'slowpoll' in self.exp else 1

    def A(self, s):
        self.o.append('  ' + s)

    def L(self, s):
        self.o.append(s + ':')

    def lab(self, base):
        self.uid += 1
        return f'{base}_{self.uid}'

    def stamp(self, idx, vtmp=126):
        if not self.stamps:
            return
        k = len(self.pending)
        assert k < 12
        self.pending.append(idx)
        self.A(f's_memrealtime s[{66 + 2*k}:{67 + 2*k}]')

    def flush_stamps(self, vtmp=126, extra=()):
        if not self.stamps:
            return
        A = self.A
        A('s_lshl_b32 s92, s2, 7')
        A(f's_add_u32 s92, s92, {WS_DBG}')
        A('s_add_u32 s94, s24, s92')
        A('s_addc_u32 s95, s25, 0')
        A('s_waitcnt lgkmcnt(0)')
        A(f'v_mov_b32 v{vtmp+1}, 0')
        A('s_mov_b64 exec, 1')
        for k, idx in enumerate(self.pending):
            A(f'v_mov_b32 v{vtmp}, s{66 + 2*k}')
            A(f'global_store_dword v{vtmp+1}, v{vtmp}, s[94:95] offset:{idx * 4}')
        for idx, sreg in extra:
            A(f'v_mov_b32 v{vtmp}, s{sreg}')
            A(f'global_store_dword v{vtmp+1}, v{vtmp}, s[94:95] offset:{idx * 4}')
        A('s_mov_b64 exec, -1')

    def xrow(self, op, v, t):
        A = self.A
        A(f'v_mov_b32 v{t}, v{v}')
        A('s_nop 1')
        A(f'v_permlane16_swap_b32 v{v}, v{t}')
        A('s_nop 1')
        A(f'{op} v{v}, v{v}, v{t}')
        A(f'v_mov_b32 v{t}, v{v}')
        A('s_nop 1')
        A(f'v_permlane32_swap_b32 v{v}, v{t}')
        A('s_nop 1')
        A(f'{op} v{v}, v{v}, v{t}')

    def rowred(self, op, v, rors=(8, 4, 2, 1)):
        A = self.A
        for r in rors:
            A('s_nop 1')
            A(f'{op}_dpp v{v}, v{v}, v{v} row_ror:{r} row_mask:0xf bank_mask:0xf')

    def wavesum(self, v, t):
        self.rowred('v_add_f32', v)
        self.xrow('v_add_f32', v, t)

    def bf16r(self, dst, src, t):
        self.A(f'v_cvt_pk_bf16_f32 v{t}, v{src}, v{src}')
        self.A(f'v_lshlrev_b32 v{dst}, 16, v{t}')

    def spin_begin(self, sreg):
        self.A(f's_mov_b32 s{sreg}, {SPIN}')

    def spin_retry(self, sreg, loop, sleep=2):
        A = self.A
        A(f's_sleep {min(127, sleep * self.sleepmul)}')
        A(f's_sub_u32 s{sreg}, s{sreg}, 1')
        A(f's_cmp_lg_u32 s{sreg}, 0')
        A(f's_cbranch_scc1 {loop}')

    def wg_of(self, dst, s_h, s_or_imm_j):
        pass

    def entry(self):
        A = self.A
        A('s_cmp_ge_u32 s2, 256')
        A('s_cbranch_scc1 L_end')
        A('s_load_dwordx16 s[4:19], s[0:1], 0')
        A('s_load_dwordx4 s[20:23], s[0:1], 64')
        A('s_load_dwordx2 s[24:25], s[0:1], 80')
        A('v_lshrrev_b32 v1, 6, v0')
        if self.headmap == 'lin':
            A('s_lshr_b32 s27, s2, 4')
            A('s_and_b32 s28, s2, 15')
        else:
            A('s_and_b32 s27, s2, 7')
            A('s_lshl_b32 s27, s27, 1')
            A('s_lshr_b32 s28, s2, 3')
            A('s_and_b32 s28, s28, 1')
            A('s_add_u32 s27, s27, s28')
            A('s_lshr_b32 s28, s2, 4')
        A('s_lshl_b32 s96, s27, 2')
        A('s_add_u32 s96, s96, s28')
        A('s_add_u32 s97, s27, 64')
        A('s_cmp_lt_u32 s27, 8')
        A('s_cselect_b32 s97, s97, 255')
        A('s_cmp_eq_u32 s28, 4')
        A('s_cselect_b32 s97, s97, 255')
        A('s_cmp_lt_u32 s28, 4')
        A('s_cselect_b32 s96, s96, s97')
        A('s_mul_i32 s97, s27, 3')
        A('s_add_u32 s97, s97, s28')
        A('s_sub_u32 s97, s97, 13')
        A('s_cmp_ge_u32 s28, 13')
        A('s_cselect_b32 s97, s97, 255')
        A('v_readfirstlane_b32 s26, v1')
        A('v_and_b32 v1, 63, v0')
        A('s_cmp_lg_u32 s26, 0')
        A('s_cbranch_scc1 L_noinit')
        A(f'v_lshlrev_b32 v2, 2, v1')
        A(f'v_add_u32 v2, {FL}, v2')
        A('v_mov_b32 v3, 0')
        A('ds_write_b32 v2, v3')
        self.L('L_noinit')
        A('s_waitcnt lgkmcnt(0)')
        A('s_barrier')
        A('s_cmp_ge_u32 s26, 8')
        A('s_cbranch_scc1 L_helper')
        A('s_cmp_ge_u32 s26, 4')
        A('s_cbranch_scc1 L_loader')

    def loader(self):
        A, W = self.A, self.W
        self.L('L_loader')
        self.pending = []
        if 'noload' in self.exp:
            A('s_endpgm')
        A('s_sub_u32 s29, s26, 4')
        A('s_lshl_b32 s40, s27, 24')
        A('s_add_u32 s30, s6, s40')
        A('s_addc_u32 s31, s7, 0')
        A('s_add_u32 s32, s8, s40')
        A('s_addc_u32 s33, s9, 0')
        A('s_lshl_b32 s41, s28, 2')
        A('s_add_u32 s41, s41, s29')
        A(f's_mul_i32 s40, s27, {self.rot * 64}')
        A('s_add_u32 s41, s41, s40')
        A('s_and_b32 s41, s41, 4095')
        A(f's_mul_i32 s38, s29, {RING}')
        A('v_lshrrev_b32 v2, 4, v1')
        A('v_and_b32 v3, 15, v1')
        A('v_lshlrev_b32 v4, 1, v2')
        A('v_xor_b32 v3, v3, v4')
        A('v_lshlrev_b32 v3, 4, v3')
        A('v_lshl_add_u32 v6, v2, 8, v3')
        A('v_xor_b32 v7, 128, v6')
        A('s_lshl_b32 s40, s29, 2')
        A(f's_add_u32 s40, s40, {FL}')
        A('v_mov_b32 v8, s40')
        A('s_mov_b32 s35, 0')
        A('s_mov_b32 s39, 0')
        A('v_mov_b32 v10, 0')
        A('s_mov_b32 s60, 0')
        A('s_mov_b32 s61, 0')
        if 'noprio' not in self.exp:
            A('s_setprio 2')
        pub_pos = (W - 1) % 8
        pub_off = (pub_pos - W + 1) // 8

        def publish(val_sreg_or_expr):
            A(f'v_mov_b32 v9, {val_sreg_or_expr}')
            A('s_mov_b64 exec, 1')
            A('ds_write_b32 v8, v9')
            A('s_mov_b64 exec, -1')

        US = self.US
        A(f's_mul_i32 s44, s27, {self.rot * 64}')
        A('s_add_u32 s44, s44, s29')
        A(f's_add_u32 s44, s44, {US * 64}')
        A('v_mov_b32 v11, 0')
        A('v_mov_b32 v13, 0')
        self.L('L_ld_loop')
        for u in range(4):
            ok = self.lab('L_ld_ok')
            sp = self.lab('L_ld_spin')
            st = self.lab('L_ld_static')
            idok = self.lab('L_ld_idok')
            idsp = self.lab('L_ld_idspin')
            if self.stamps and u == 0:
                for q, nn in enumerate((4, 8, 16, 32, 48)):
                    l = self.lab('L_ld_st')
                    A(f's_cmp_lg_u32 s35, {nn}')
                    A(f's_cbranch_scc1 {l}')
                    self.stamp(16 + q)
                    self.L(l)
            A('s_waitcnt lgkmcnt(0)')
            A('v_readfirstlane_b32 s39, v10')
            A('v_readfirstlane_b32 s45, v11')
            if self.Wend:
                A('v_readfirstlane_b32 s47, v13')
            A(f's_cmp_lt_u32 s35, {US}')
            A(f's_cbranch_scc1 {st}')
            A('s_cmp_lg_u32 s45, 0')
            A(f's_cbranch_scc1 {idok}')
            if self.stamps:
                A('s_add_u32 s61, s61, 1')
            A('s_waitcnt vmcnt(0)')
            publish('s35')
            self.spin_begin(42)
            self.L(idsp)
            A('ds_read_b32 v11, v12')
            A('s_waitcnt lgkmcnt(0)')
            A('v_readfirstlane_b32 s45, v11')
            A('s_cmp_lg_u32 s45, 0')
            A(f's_cbranch_scc1 {idok}')
            self.spin_retry(42, idsp, sleep=1)
            A('s_branch L_ld_end')
            self.L(idok)
            A('s_cmp_eq_u32 s45, -1')
            A('s_cbranch_scc1 L_ld_end')
            A('s_sub_u32 s45, s45, 1')
            A('s_lshl_b32 s45, s45, 2')
            A('s_add_u32 s41, s45, s44')
            A('s_and_b32 s41, s41, 4095')
            self.L(st)
            A('s_add_u32 s40, s39, 3')
            A('s_cmp_ge_u32 s40, s35')
            A(f's_cbranch_scc1 {ok}')
            A('s_waitcnt vmcnt(0)')
            publish('s35')
            if self.stamps:
                A('s_add_u32 s60, s60, 1')
            self.spin_begin(42)
            self.L(sp)
            A('ds_read_b32 v10, v8 offset:16')
            A('s_waitcnt lgkmcnt(0)')
            A('v_readfirstlane_b32 s39, v10')
            A('s_add_u32 s40, s39, 3')
            A('s_cmp_ge_u32 s40, s35')
            A(f's_cbranch_scc1 {ok}')
            self.spin_retry(42, sp, sleep=1)
            self.L(ok)
            A('s_lshl_b32 s40, s41, 12')
            A('s_add_u32 s46, s35, 1')
            A(f's_sub_i32 s46, s46, {US}')
            A('s_max_i32 s46, s46, 0')
            A('s_lshl_b32 s46, s46, 2')
            A(f's_add_u32 s46, s46, {IDS}')
            A('v_mov_b32 v12, s46')
            def issue(Wx):
                pp = (Wx - 1) % 8
                po = (pp - Wx + 1) // 8
                for kv in range(2):
                    A(f's_add_u32 s36, s{30 + 2 * kv}, s40')
                    A(f's_addc_u32 s37, s{31 + 2 * kv}, 0')
                    A(f's_add_u32 m0, s38, {(2 * u + kv) * 4096}')
                    for jj in range(4):
                        A(f's_waitcnt vmcnt({Wx - 1})')
                        if kv * 4 + jj == pp:
                            skip = self.lab('L_ld_np')
                            if po < 0:
                                A(f's_cmp_lt_u32 s35, {-po}')
                                A(f's_cbranch_scc1 {skip}')
                                A(f's_sub_u32 s43, s35, {-po}')
                                publish('s43')
                                self.L(skip)
                            else:
                                publish('s35')
                        pol = ' nt'
                        if (kv == 1 and 'vplain' in self.exp) or (kv == 0 and 'kplain' in self.exp):
                            pol = ''
                        A(f'global_load_lds_dwordx4 v{6 + (jj & 1)}, s[36:37] offset:{jj * 1024}{pol}')
                        if self.earlyflags and kv == 1 and jj == 1:
                            A('ds_read_b32 v10, v8 offset:16')
                            A('ds_read_b32 v11, v12')
                            if self.Wend:
                                A('ds_read_b32 v13, v8 offset:48')
            if self.Wend:
                fast = self.lab('L_ld_fast')
                join = self.lab('L_ld_join')
                A('s_cmp_lg_u32 s47, 0')
                A(f's_cbranch_scc1 {fast}')
                issue(W)
                A(f's_branch {join}')
                self.L(fast)
                issue(self.Wend)
                self.L(join)
                if not self.earlyflags:
                    A('ds_read_b32 v13, v8 offset:48')
            else:
                issue(W)
            if not self.earlyflags:
                A('ds_read_b32 v10, v8 offset:16')
                A('ds_read_b32 v11, v12')
            A('s_add_u32 s41, s41, 64')
            A('s_and_b32 s41, s41, 4095')
            A('s_add_u32 s35, s35, 1')
        A('s_branch L_ld_loop')
        self.L('L_ld_end')
        A('s_waitcnt vmcnt(0)')
        A('s_or_b32 s43, s35, 0x80000000')
        publish('s43')
        A('s_waitcnt lgkmcnt(0)')
        if self.stamps:
            A('s_cmp_lg_u32 s26, 4')
            A('s_cbranch_scc1 L_ld_ns')
            self.stamp(8)
            self.flush_stamps(extra=[(9, 60), (21, 35), (22, 61)])
            self.L('L_ld_ns')
        A('s_endpgm')


    def poll(self, name, loads, checks, sleep, allmask='-1', sr=60, probe=True):
        A = self.A
        inv, n, sw, cnt = sr, sr + 2, sr + 3, sr + 4
        if allmask == '-1':
            A(f's_mov_b64 s[{inv}:{inv+1}], -1')
        else:
            A(f's_mov_b64 s[{inv}:{inv+1}], {allmask}')
        A(f's_mov_b32 s{sw}, 1')
        A(f's_mov_b32 s{cnt}, {SPIN}')
        self.L(f'{name}_loop')
        A(f's_bcnt1_i32_b64 s{n}, s[{inv}:{inv+1}]')
        A(f's_cmp_le_u32 s{n}, {8 if probe else 64}')
        A(f's_cselect_b32 s{sw}, 1, s{sw}')
        A(f's_mov_b64 exec, s[{inv}:{inv+1}]')
        A(f's_cmp_lg_u32 s{sw}, 0')
        A(f's_cbranch_scc1 {name}_go')
        A(f's_ff1_i32_b64 s{n}, s[{inv}:{inv+1}]')
        A(f's_lshl_b64 exec, 1, s{n}')
        self.L(f'{name}_go')
        for l in loads:
            A(l)
        A('s_waitcnt vmcnt(0)')
        acc = checks()
        A(f'v_cmp_eq_u32 vcc, 0, v{acc}')
        A(f's_andn2_b64 s[{inv}:{inv+1}], s[{inv}:{inv+1}], vcc')
        A(f's_cmp_lg_u64 vcc, 0')
        A(f's_cselect_b32 s{n}, 1, 0')
        A(f's_xor_b32 s{sw}, s{sw}, 1')
        A(f's_and_b32 s{sw}, s{sw}, s{n}')
        A('s_mov_b64 exec, -1')
        A(f's_cmp_eq_u64 s[{inv}:{inv+1}], 0')
        A(f's_cbranch_scc1 {name}_done')
        if self.fastpoll:
            A(f's_bcnt1_i32_b64 s{n}, s[{inv}:{inv+1}]')
            A(f's_cmp_le_u32 s{n}, 8')
            A(f's_cbranch_scc1 {name}_ns')
        A(f's_sleep {sleep}')
        if self.fastpoll:
            self.L(f'{name}_ns')
        A(f's_sub_u32 s{cnt}, s{cnt}, 1')
        A(f's_cmp_lg_u32 s{cnt}, 0')
        A(f's_cbranch_scc1 {name}_loop')
        self.L(f'{name}_done')

    def chk3(self, groups, acc, tmp, tag=29):
        A = self.A
        for n, b in enumerate(groups):
            d = acc if n == 0 else tmp
            A(f'v_bitop3_b32 v{d}, v{b}, v{b+1}, v{b+2} bitop3:0x96')
            A(f'v_bitop3_b32 v{d}, v{d}, v{b+3}, s{tag} bitop3:0x96')
            if n:
                A(f'v_or_b32 v{acc}, v{acc}, v{tmp}')
        return acc

    def mkchk(self, b, tag=29):
        self.A(f'v_bitop3_b32 v{b+3}, v{b}, v{b+1}, v{b+2} bitop3:0x96')
        self.A(f'v_xor_b32 v{b+3}, s{tag}, v{b+3}')

    def cstamp(self, idx):
        self.stamp(idx)

    def cflush(self):
        if self.stamps:
            l = self.lab('L_nf')
            self.A('s_cmp_lg_u32 s26, 0')
            self.A(f's_cbranch_scc1 {l}')
            self.flush_stamps()
            self.L(l)

    def consumer(self):
        A = self.A
        self.pending = []
        KA, VA, FA = 2, 6, 14
        Q, O, KF, VF, S = 16, 32, 64, 80, 96
        MC, LS = 100, 101
        T = 102
        P = 118
        A(f's_mul_i32 s38, s26, {RING}')
        A('v_and_b32 v20, 15, v1')
        A('v_lshrrev_b32 v21, 4, v1')
        A('v_and_b32 v22, 7, v20')
        A('v_lshlrev_b32 v22, 1, v22')
        A('v_lshlrev_b32 v23, 8, v20')
        A('v_add_u32 v23, s38, v23')
        for i in range(4):
            A(f'v_add_u32 v24, {4 * i}, v21')
            A('v_xor_b32 v24, v24, v22')
            A(f'v_lshl_add_u32 v{KA + i}, v24, 4, v23')
        A('v_lshrrev_b32 v22, 2, v20')
        A('v_lshl_add_u32 v22, v21, 2, v22')
        A('v_and_b32 v24, 7, v22')
        A('v_lshlrev_b32 v23, 8, v22')
        A('v_add_u32 v23, s38, v23')
        A('v_and_b32 v25, 3, v20')
        A('v_lshl_add_u32 v23, v25, 3, v23')
        for m in range(8):
            A(f'v_xor_b32 v25, {m}, v24')
            A(f'v_lshl_add_u32 v{VA + m}, v25, 5, v23')
        A('s_lshl_b32 s40, s26, 2')
        A(f's_add_u32 s40, s40, {FL}')
        A(f'v_mov_b32 v{FA}, s40')
        for r in range(32):
            A(f'v_mov_b32 v{O + r}, 0')
        A(f'v_mov_b32 v{MC}, 0xff800000')
        A(f'v_mov_b32 v{LS}, 0')
        A(f's_mov_b32 s44, {LOG2E}')
        KB, VB = 128, 144
        def wait_full(done_label):
            go = self.lab('L_c_go')
            pl = self.lab('L_c_poll')
            A('s_and_b32 s40, s39, 0x7fffffff')
            A('s_cmp_gt_u32 s40, s35')
            A(f's_cbranch_scc1 {go}')
            self.spin_begin(42)
            self.L(pl)
            A(f'ds_read_b32 v{T}, v{FA}')
            A('s_waitcnt lgkmcnt(0)')
            A(f'v_readfirstlane_b32 s39, v{T}')
            A('s_and_b32 s40, s39, 0x7fffffff')
            A('s_cmp_gt_u32 s40, s35')
            A(f's_cbranch_scc1 {go}')
            A('s_cmp_lt_i32 s39, 0')
            A(f's_cbranch_scc1 {done_label}')
            self.spin_retry(42, pl, sleep=1)
            A(f's_branch {done_label}')
            self.L(go)
        def reads(u, kf, vf):
            for i in range(4):
                A(f'ds_read_b128 v[{kf + 4*i}:{kf + 4*i + 3}], v{KA + i} offset:{(2*u) * 4096}')
            for m in range(8):
                A(f'ds_read_b64_tr_b16 v[{vf + 2*m}:{vf + 2*m + 1}], v{VA + m} offset:{(2*u + 1) * 4096}')
            A('s_add_u32 s35, s35, 1')
        def qk(kf):
            for i in range(4):
                c = '0' if i == 0 else f'v[{S}:{S+3}]'
                A(f'v_mfma_f32_16x16x32_bf16 v[{S}:{S+3}], v[{kf + 4*i}:{kf + 4*i + 3}], v[{Q + 4*i}:{Q + 4*i + 3}], {c}')
        def free():
            A(f'v_mov_b32 v{T}, s35')
            A('s_waitcnt lgkmcnt(0)')
            A('s_mov_b64 exec, 1')
            A(f'ds_write_b32 v{FA}, v{T} offset:16')
            A('s_mov_b64 exec, -1')
        def softmax_pv(vf):
            nr = self.lab('L_c_nr')
            A(f'v_cvt_pk_bf16_f32 v{T}, v{S}, v{S+1}')
            A(f'v_cvt_pk_bf16_f32 v{T+1}, v{S+2}, v{S+3}')
            A(f'v_lshlrev_b32 v{T+2}, 16, v{T}')
            A(f'v_and_b32 v{T+3}, 0xffff0000, v{T}')
            A(f'v_lshlrev_b32 v{T+4}, 16, v{T+1}')
            A(f'v_and_b32 v{T+5}, 0xffff0000, v{T+1}')
            for r in range(4):
                A(f'v_mul_f32 v{T+2+r}, {SCALE:#x}, v{T+2+r}')
            A(f'v_cvt_pk_bf16_f32 v{T}, v{T+2}, v{T+3}')
            A(f'v_cvt_pk_bf16_f32 v{T+1}, v{T+4}, v{T+5}')
            A(f'v_lshlrev_b32 v{T+2}, 16, v{T}')
            A(f'v_and_b32 v{T+3}, 0xffff0000, v{T}')
            A(f'v_lshlrev_b32 v{T+4}, 16, v{T+1}')
            A(f'v_and_b32 v{T+5}, 0xffff0000, v{T+1}')
            A(f'v_max3_f32 v{T+6}, v{T+2}, v{T+3}, v{T+4}')
            A(f'v_max_f32 v{T+6}, v{T+6}, v{T+5}')
            A(f'v_mul_f32 v{T+6}, s44, v{T+6}')
            A(f'v_cmp_gt_f32 vcc, v{T+6}, v{MC}')
            A(f's_cbranch_vccz {nr}')
            self.xrow('v_max_f32', T + 6, T + 7)
            A(f'v_max_f32 v{T+6}, v{T+6}, v{MC}')
            A(f'v_sub_f32 v{T+7}, v{MC}, v{T+6}')
            A(f'v_exp_f32 v{T+7}, v{T+7}')
            A(f'v_mov_b32 v{MC}, v{T+6}')
            A(f'v_mul_f32 v{LS}, v{LS}, v{T+7}')
            for r in range(32):
                A(f'v_mul_f32 v{O + r}, v{O + r}, v{T+7}')
            self.L(nr)
            for r in range(4):
                A(f'v_fma_f32 v{T+2+r}, v{T+2+r}, s44, -v{MC}')
            for r in range(4):
                A(f'v_exp_f32 v{T+2+r}, v{T+2+r}')
            A('s_nop 0')
            A(f'v_cvt_pk_bf16_f32 v{P}, v{T+2}, v{T+3}')
            A(f'v_cvt_pk_bf16_f32 v{P+1}, v{T+4}, v{T+5}')
            A(f'v_add_f32 v{T+2}, v{T+2}, v{T+3}')
            A(f'v_add_f32 v{T+4}, v{T+4}, v{T+5}')
            A(f'v_add_f32 v{LS}, v{LS}, v{T+2}')
            A(f'v_add_f32 v{LS}, v{LS}, v{T+4}')
            for m in range(8):
                A(f'v_mfma_f32_16x16x16_bf16 v[{O + 4*m}:{O + 4*m + 3}], v[{vf + 2*m}:{vf + 2*m + 1}], v[{P}:{P+1}], v[{O + 4*m}:{O + 4*m + 3}]')

        A('s_mov_b32 s35, 0')
        A('s_mov_b32 s39, 0')
        A(f'v_and_b32 v15, 1, v20')
        A(f'v_lshlrev_b32 v15, 8, v15')
        A(f'v_lshl_add_u32 v15, v21, 4, v15')
        A(f'v_add_u32 v15, {QL}, v15')
        if self.preread and 'noload' not in self.exp:
            wait_full('L_c_done')
            reads(0, KF, VF)
            free()
            wait_full('L_c_done')
            reads(1, KB, VB)
            free()
        A(f'v_mov_b32 v{T}, {FL}')
        self.spin_begin(42)
        self.L('L_c_qwait')
        A(f'ds_read_b32 v{T+2}, v{T} offset:32')
        A('s_waitcnt lgkmcnt(0)')
        A(f'v_readfirstlane_b32 s40, v{T+2}')
        A('s_cmp_lg_u32 s40, 0')
        A('s_cbranch_scc1 L_c_qok')
        if 'noq' in self.exp:
            A('s_branch L_c_qok')
        self.spin_retry(42, 'L_c_qwait', sleep=2)
        self.L('L_c_qok')
        for i in range(4):
            A(f'ds_read_b128 v[{Q + 4*i}:{Q + 4*i + 3}], v15 offset:{64 * i}')
        A('s_waitcnt lgkmcnt(0)')
        self.cstamp(1)
        if 'noload' in self.exp:
            self.cflush()
            A('s_endpgm')
        if self.preread:
            qk(KF)
            A('s_nop 7')
            softmax_pv(VF)
            qk(KB)
            A('s_nop 7')
            softmax_pv(VB)
            A('s_branch L_c_u2')
        self.L('L_c_loop')
        for u in range(4):
            if u == 2:
                self.L('L_c_u2')
            wait_full('L_c_done')
            reads(u, KF, VF)
            A('s_waitcnt lgkmcnt(8)')
            qk(KF)
            free()
            A('s_nop 3')
            softmax_pv(VF)
        A('s_branch L_c_loop')
        self.L('L_c_done')

        self.cstamp(2)
        if 'notail' in self.exp:
            self.cflush()
            A('s_endpgm')
        self.xrow('v_add_f32', LS, T)
        A('s_nop 7')
        A(f'v_and_b32 v{T}, 15, v1')
        A(f'v_lshrrev_b32 v{T+1}, 4, v1')
        A(f'v_lshlrev_b32 v{T+2}, 9, v{T}')
        A(f'v_lshl_add_u32 v{T+2}, v{T+1}, 4, v{T+2}')
        A('s_lshl_b32 s40, s26, 10')
        A(f's_add_u32 s40, s40, {OC}')
        A(f'v_add_u32 v{T+2}, s40, v{T+2}')
        A('s_mov_b32 s46, 0x00030003')
        A('s_mov_b32 s47, 0x00030003')
        A('s_mov_b64 exec, s[46:47]')
        for m in range(8):
            A(f'ds_write_b128 v{T+2}, v[{O + 4*m}:{O + 4*m + 3}] offset:{64 * m}')
        A('s_lshl_b32 s40, s26, 4')
        A(f's_add_u32 s40, s40, {OCML}')
        A(f'v_lshlrev_b32 v{T+3}, 3, v{T}')
        A(f'v_add_u32 v{T+3}, s40, v{T+3}')
        A('s_mov_b64 exec, 3')
        A(f'ds_write_b64 v{T+3}, v[{MC}:{LS}]')
        A('s_mov_b64 exec, -1')
        A('s_waitcnt lgkmcnt(0)')
        A('s_barrier')
        A(f'v_mov_b32 v{T+3}, {FL}')
        A(f'ds_read_b32 v68, v{T+3} offset:36')
        A('s_cmp_ge_u32 s26, 2')
        A('s_cbranch_scc1 L_c_nopub')
        A('s_lshl_b32 s40, s26, 6')
        A(f'v_add_u32 v{T}, s40, v1')
        A(f'v_lshrrev_b32 v{T+1}, 3, v{T}')
        A(f'v_and_b32 v{T+2}, 7, v{T}')
        A(f'v_lshlrev_b32 v{T+1}, 6, v{T+1}')
        A(f'v_mul_u32_u24 v{T+2}, 12, v{T+2}')
        A(f'v_add3_u32 v{T+1}, v{T+1}, v{T+2}, 0')
        A(f'v_add_u32 v{T+1}, {OC}, v{T+1}')
        A('s_lshl_b32 s45, s26, 3')
        A(f's_add_u32 s45, s45, {OCML}')
        A(f'v_mov_b32 v{T+2}, s45')
        for k in range(4):
            A(f'ds_read_b64 v[{70 + 2*k}:{71 + 2*k}], v{T+2} offset:{16 * k}')
        for k in range(4):
            for i in range(3):
                A(f'ds_read_b32 v{32 + 4*i + k}, v{T+1} offset:{1024 * k + 4 * i}')
        A('s_waitcnt lgkmcnt(12)')
        A('v_readfirstlane_b32 s29, v68')
        A('v_max3_f32 v80, v70, v72, v74')
        A('v_max_f32 v80, v80, v76')
        for k in range(4):
            A(f'v_sub_f32 v{82 + k}, v{70 + 2*k}, v80')
        for k in range(4):
            A(f'v_exp_f32 v{82 + k}, v{82 + k}')
        A('s_nop 0')
        A('v_mul_f32 v81, v71, v82')
        for k in range(1, 4):
            A(f'v_fmac_f32 v81, v{71 + 2*k}, v{82 + k}')
        A('s_waitcnt lgkmcnt(0)')
        for i in range(3):
            A(f'v_mul_f32 v{88 + i}, v{32 + 4*i}, v82')
            for k in range(1, 4):
                A(f'v_fmac_f32 v{88 + i}, v{32 + 4*i + k}, v{82 + k}')
        A('s_mov_b32 s46, 0x20202020')
        A('s_mov_b32 s47, 0x20202020')
        A('v_cndmask_b32 v89, v89, v80, s[46:47]')
        A('v_cndmask_b32 v90, v90, v81, s[46:47]')
        self.mkchk(88)
        A('s_lshl_b32 s45, s2, 11')
        A(f's_add_u32 s45, s45, {WS_P}')
        A('s_add_u32 s48, s24, s45')
        A('s_addc_u32 s49, s25, 0')
        A(f'v_lshlrev_b32 v{T+3}, 4, v{T}')
        A(f'global_store_dwordx4 v{T+3}, v[88:91], s[48:49] sc1')
        if self.wotail:
            A('s_branch L_c_pubdone')
        self.L('L_c_nopub')
        if self.wotail:
            A('s_lshl_b32 s40, s27, 4')
            A('s_add_u32 s40, s40, s28')
            A('s_mul_i32 s40, s40, 18432')
            A('s_sub_u32 s45, s26, 2')
            A('s_mul_i32 s45, s45, 9216')
            A('s_add_u32 s40, s40, s45')
            A('s_add_u32 s48, s12, s40')
            A('s_addc_u32 s49, s13, 0')
            A(f's_add_u32 s45, s45, {STG}')
            A(f'v_lshlrev_b32 v{T}, 4, v1')
            for i in range(9):
                if i % 4 == 0:
                    A(f's_add_u32 m0, s45, {1024 * i}')
                    A('s_nop 0')
                A(f'global_load_lds_dwordx4 v{T}, s[48:49] offset:{1024 * (i % 4)} nt')
                if i % 4 == 3:
                    A('s_add_u32 s48, s48, 4096')
                    A('s_addc_u32 s49, s49, 0')
            A('s_lshl_b32 s45, s26, 2')
            A(f's_add_u32 s45, s45, {FL + 32}')
            A(f'v_mov_b32 v{T+1}, s45')
            A(f'v_mov_b32 v{T+2}, 1')
            A('s_waitcnt vmcnt(0)')
            A('s_mov_b64 exec, 1')
            A(f'ds_write_b32 v{T+1}, v{T+2}')
            A('s_mov_b64 exec, -1')
            self.L('L_c_pubdone')
        A('s_waitcnt lgkmcnt(0)')
        A('v_readfirstlane_b32 s29, v68')
        self.cstamp(3)
        if self.wotail:
            A(f'v_mov_b32 v{T}, {FL}')
            self.spin_begin(42)
            self.L('L_c_wowait')
            A(f'ds_read_b64 v[{T+2}:{T+3}], v{T} offset:40')
            A('s_waitcnt lgkmcnt(0)')
            A(f'v_and_b32 v{T+2}, v{T+2}, v{T+3}')
            A('s_nop 0')
            A(f'v_readfirstlane_b32 s40, v{T+2}')
            A('s_cmp_lg_u32 s40, 0')
            A('s_cbranch_scc1 L_c_wook')
            self.spin_retry(42, 'L_c_wowait', sleep=1)
            self.L('L_c_wook')
        A(f'v_and_b32 v{T}, 15, v1')
        A(f'v_lshrrev_b32 v{T+1}, 4, v1')
        A(f'v_lshrrev_b32 v{T+3}, 2, v{T}')
        A(f'v_lshl_add_u32 v{T+3}, v{T+1}, 2, v{T+3}')
        A(f'v_mul_u32_u24 v{T+3}, 1152, v{T+3}')
        A(f'v_and_b32 v{T+4}, 3, v{T}')
        A(f'v_lshl_add_u32 v{T+3}, v{T+4}, 3, v{T+3}')
        A('s_mul_i32 s45, s26, 288')
        A(f's_add_u32 s45, s45, {STG}')
        A(f'v_add_u32 v{T+3}, s45, v{T+3}')
        for t in range(9):
            A(f'ds_read_b64_tr_b16 v[{68 + 2*t}:{69 + 2*t}], v{T+3} offset:{32 * t}')
        for r in range(4):
            A(f'v_mov_b32 v{96 + r}, 0')
        A(f'v_lshlrev_b32 v{T+2}, 3, v{T+1}')
        A(f'v_add_u32 v{T+2}, {OB}, v{T+2}')
        A('s_mul_i32 s50, s97, 0x5556')
        A('s_lshr_b32 s50, s50, 18')
        A('s_mul_i32 s51, s50, 12')
        A('s_sub_u32 s51, s97, s51')
        A('s_lshr_b32 s58, s51, 2')
        A('s_and_b32 s51, s51, 3')
        A('s_mul_i32 s50, s50, 9')
        A('s_mul_i32 s58, s58, 3')
        A('s_add_u32 s50, s50, s58')
        A('s_lshl_b32 s50, s50, 4')
        A('s_lshl_b32 s51, s51, 2')
        A('s_add_u32 s50, s50, s51')
        A('v_lshrrev_b32 v121, 2, v1')
        A('v_and_b32 v122, 3, v1')
        A('v_lshl_add_u32 v121, v121, 4, v122')
        A('v_add_u32 v121, s50, v121')
        A('v_lshlrev_b32 v121, 1, v121')
        A('s_mov_b32 s52, s4')
        A('s_mov_b32 s53, s5')
        A('s_mov_b32 s54, 1152')
        A('s_mov_b32 s55, 0x00020000')
        A('buffer_load_ushort v120, v121, s[52:55], 0 offen')
        A('s_waitcnt lgkmcnt(0)')
        A('s_barrier')
        self.cstamp(4)
        A(f'ds_read_b64 v[64:65], v{T+2}')
        A('s_waitcnt lgkmcnt(0)')
        for t in range(9):
            row = 4 * (t // 3) + t % 3
            A(f's_mov_b32 s46, {0x00010001 << row:#x}')
            A(f's_mov_b32 s47, {0x00010001 << row:#x}')
            A(f'v_cndmask_b32 v{88 + 2*(t&1)}, 0, v64, s[46:47]')
            A(f'v_cndmask_b32 v{89 + 2*(t&1)}, 0, v65, s[46:47]')
            A('s_nop 1')
            A(f'v_mfma_f32_16x16x16_bf16 v[96:99], v[{88 + 2*(t&1)}:{89 + 2*(t&1)}], v[{68 + 2*t}:{69 + 2*t}], v[96:99]')
        A('s_mul_i32 s45, s2, 3072')
        A(f's_add_u32 s45, s45, {WS_Y}')
        A('s_add_u32 s48, s24, s45')
        A('s_addc_u32 s49, s25, 0')
        A('s_mul_i32 s45, s26, 768')
        A(f'v_lshlrev_b32 v{T+2}, 4, v1')
        A(f'v_add_u32 v{T+2}, s45, v{T+2}')
        A('s_nop 3')
        self.mkchk(96)
        A('s_mov_b32 s46, -1')
        A('s_mov_b32 s47, 0xffff')
        A('s_mov_b64 exec, s[46:47]')
        A(f'global_store_dwordx4 v{T+2}, v[96:99], s[48:49] sc1')
        A('s_mov_b64 exec, -1')
        self.cstamp(5)
        A(f's_cmp_lt_u32 s97, {NRED}')
        A('s_cbranch_scc1 L_c_red')
        self.cflush()
        A('s_endpgm')
        self.L('L_c_red')
        A('s_lshl_b32 s45, s26, 6')
        A(f'v_lshrrev_b32 v{T}, 2, v1')
        A(f'v_add_u32 v{T}, s45, v{T}')
        A(f'v_mul_u32_u24 v{T}, 3072, v{T}')
        A(f'v_and_b32 v{T+1}, 3, v1')
        A(f'v_lshl_add_u32 v{T}, v{T+1}, 4, v{T}')
        for i in range(1, 4):
            A(f'v_add_u32 v{T+i}, {3072 * 16 * i}, v{T}')
        A('s_lshl_b32 s45, s97, 6')
        A(f's_add_u32 s45, s45, {WS_Y}')
        A('s_add_u32 s48, s24, s45')
        A('s_addc_u32 s49, s25, 0')
        self.poll('L_c_d', [f'global_load_dwordx4 v[{64 + 4*i}:{67 + 4*i}], v{T+i}, s[48:49] sc1' for i in range(4)],
                  lambda: self.chk3([64, 68, 72, 76], 80, 81), sleep=3)
        for r in range(3):
            A(f'v_add_f32 v{64 + r}, v{64 + r}, v{68 + r}')
            A(f'v_add_f32 v{72 + r}, v{72 + r}, v{76 + r}')
        for r in range(3):
            A(f'v_add_f32 v{64 + r}, v{64 + r}, v{72 + r}')
        for r in range(3):
            self.rowred('v_add_f32', 64 + r, rors=(4, 8))
        for r in range(3):
            self.xrow('v_add_f32', 64 + r, 80)
        A('s_lshl_b32 s45, s26, 6')
        A(f's_add_u32 s45, s45, {RED}')
        A('v_lshlrev_b32 v72, 4, v1')
        A('v_add_u32 v72, s45, v72')
        A('s_mov_b64 exec, 15')
        A('ds_write_b128 v72, v[64:67]')
        A('s_mov_b64 exec, -1')
        A('s_waitcnt lgkmcnt(0)')
        A('s_barrier')
        A('s_cmp_lg_u32 s26, 0')
        A('s_cbranch_scc1 L_end')
        A('v_lshrrev_b32 v72, 2, v1')
        A('v_and_b32 v73, 3, v1')
        A('v_lshlrev_b32 v72, 2, v72')
        A('v_lshl_add_u32 v72, v73, 4, v72')
        A(f'v_add_u32 v73, {RED}, v72')
        for k in range(4):
            A(f'ds_read_b32 v{64 + k}, v73 offset:{64 * k}')
        A(f'v_add_u32 v73, {FFNR}, v72')
        A('ds_read_b32 v68, v73')
        A('s_waitcnt lgkmcnt(0) vmcnt(0)')
        A('v_add_f32 v64, v64, v65')
        A('v_add_f32 v66, v66, v67')
        A('v_add_f32 v64, v64, v66')
        self.bf16r(64, 64, 70)
        self.bf16r(68, 68, 70)
        A('v_lshlrev_b32 v69, 16, v120')
        A('v_add_f32 v64, v69, v64')
        self.bf16r(64, 64, 70)
        A('v_add_f32 v64, v64, v68')
        A('v_cvt_pk_bf16_f32 v64, v64, v64')
        A('s_mov_b32 s52, s20')
        A('s_mov_b32 s53, s21')
        A('s_mov_b32 s54, 1152')
        A('s_mov_b32 s55, 0x00020000')
        A('s_mov_b64 exec, 0xfff')
        A('buffer_store_short v64, v121, s[52:55], 0 offen')
        A('s_mov_b64 exec, -1')
        self.stamp(6)
        self.flush_stamps()
        A('s_cmp_lg_u32 s97, 0')
        A('s_cbranch_scc1 L_end')
        A('v_mov_b32 v64, s29')
        A('v_mov_b32 v65, 0')
        A('s_mov_b64 exec, 1')
        A('global_store_dword v65, v64, s[24:25] sc1')
        A('s_branch L_end')

    def gemv64(self, acc, first, xoff_sreg):
        A = self.A
        NB = 5
        A(f'v_add_u32 v21, s{xoff_sreg}, v20')
        def rd(s):
            b = 40 + 10 * (s % NB)
            A(f'ds_read_b64 v[{b}:{b+1}], v21 offset:{32 * s}')
            for t in range(4):
                A(f'ds_read_b64_tr_b16 v[{b+2+2*t}:{b+3+2*t}], v{16 + t} offset:{2048 * s}')
        NP = 3
        for s in range(NP):
            rd(s)
        for s in range(9):
            left = min(9, s + NP) - s - 1
            A(f's_waitcnt lgkmcnt({5 * left})')
            b = 40 + 10 * (s % NB)
            for t in range(4):
                c = '0' if (first and s == 0) else f'v[{acc + 4*t}:{acc + 4*t + 3}]'
                A(f'v_mfma_f32_16x16x16_bf16 v[{acc + 4*t}:{acc + 4*t + 3}], v[{b}:{b+1}], v[{b+2+2*t}:{b+3+2*t}], {c}')
            if s + NP < 9:
                rd(s + NP)

    def dma_cols(self, sbase, pitch, voff, win=None):
        A = self.A
        A(f's_mov_b32 s36, s{sbase}')
        A(f's_mov_b32 s37, s{sbase+1}')
        for s in range(18):
            A(f's_mov_b32 m0, {STG + 1024 * s}')
            if win:
                A(f's_waitcnt vmcnt({win - 1})')
            else:
                A('s_nop 0')
            A(f'global_load_lds_dwordx4 v{voff}, s[36:37] nt')
            if s < 17:
                A(f's_add_u32 s36, s36, {8 * pitch}')
                A('s_addc_u32 s37, s37, 0')

    def dma_rows(self, sbase, win=None):
        A = self.A
        A(f's_mov_b32 s36, s{sbase}')
        A(f's_mov_b32 s37, s{sbase+1}')
        for s in range(18):
            if s % 4 == 0:
                A(f's_mov_b32 m0, {STG + 1024 * s}')
                A('s_nop 0')
            if win:
                A(f's_waitcnt vmcnt({win - 1})')
            A(f'global_load_lds_dwordx4 v23, s[36:37] offset:{1024 * (s % 4)} nt')
            if s % 4 == 3:
                A('s_add_u32 s36, s36, 4096')
                A('s_addc_u32 s37, s37, 0')

    def helper(self):
        A = self.A
        FW = self.ffn_win
        self.L('L_helper')
        self.pending = []
        A('s_setprio 3')
        self.stamp(0)
        if 'nohelper' in self.exp:
            self.flush_stamps()
            A('s_endpgm')
        A('v_mov_b32 v2, 0')
        A('global_load_dword v3, v2, s[24:25] sc1')
        A('s_and_b32 s40, s2, 15')
        A('s_cmp_lg_u32 s40, 0')
        A('s_cbranch_scc1 L_h_nozero')
        A('s_lshr_b32 s40, s2, 4')
        A(f's_mul_i32 s40, s40, {self.cstride}')
        A(f's_add_u32 s40, s40, {WS_CNT}')
        A('v_mov_b32 v5, s40')
        A('s_mov_b64 exec, 1')
        A('global_store_dword v5, v2, s[24:25] sc1')
        A('s_mov_b64 exec, -1')
        self.L('L_h_nozero')
        A('s_mov_b32 s52, s4')
        A('s_mov_b32 s53, s5')
        A('s_mov_b32 s54, 1152')
        A('s_mov_b32 s55, 0x00020000')
        A('v_lshlrev_b32 v4, 1, v1')
        for k in range(9):
            A(f'buffer_load_ushort v{30 + k}, v4, s[52:55], 0 offen offset:{128 * k}')
        A('s_lshr_b32 s50, s2, 2')
        A('s_and_b32 s51, s2, 3')
        A('s_lshl_b32 s40, s50, 7')
        A(f's_mul_i32 s58, s51, {144 * 8192}')
        A('s_add_u32 s40, s40, s58')
        A('s_add_u32 s56, s10, s40')
        A('s_addc_u32 s57, s11, 0')
        A('v_lshrrev_b32 v5, 3, v1')
        A('v_and_b32 v6, 7, v1')
        A('v_lshrrev_b32 v7, 4, v1')
        A('v_lshlrev_b32 v7, 1, v7')
        A('v_xor_b32 v6, v6, v7')
        A('v_lshlrev_b32 v6, 4, v6')
        A('v_lshl_add_u32 v22, v5, 13, v6')
        A('v_mul_u32_u24 v25, 9216, v5')
        A('v_add_u32 v25, v25, v6')
        A('v_lshlrev_b32 v23, 4, v1')
        if 'nowq' not in self.exp:
            self.dma_cols(56, 8192, 22)
        A('s_lshl_b32 s40, s27, 13')
        A(f's_add_u32 s40, s40, {WS_Q}')
        A('s_add_u32 s62, s24, s40')
        A('s_addc_u32 s63, s25, 0')
        A('v_lshrrev_b32 v14, 5, v1')
        A('v_lshlrev_b32 v14, 11, v14')
        A('v_and_b32 v15, 31, v1')
        A('v_lshl_add_u32 v14, v15, 4, v14')
        A('v_add_u32 v15, 4096, v14')
        nwarm = 0
        if 'qwarm' in self.exp:
            for H in range(2):
                for kp in range(4):
                    A(f'global_load_dwordx4 v[{96 + 4*kp}:{99 + 4*kp}], v{14 + H}, s[62:63] offset:{512 * kp} sc1')
                    nwarm += 1
        A('v_lshrrev_b32 v26, 4, v1')
        A('v_and_b32 v27, 15, v1')
        A('v_lshlrev_b32 v20, 3, v26')
        A(f'v_add_u32 v20, {XN}, v20')
        A('v_lshrrev_b32 v28, 2, v27')
        A('v_lshl_add_u32 v28, v26, 2, v28')
        A('v_and_b32 v29, 3, v27')
        A('v_lshlrev_b32 v8, 7, v28')
        A('v_lshl_add_u32 v8, v29, 3, v8')
        A(f'v_add_u32 v8, {STG}, v8')
        A('v_lshrrev_b32 v9, 1, v28')
        A('v_and_b32 v9, 3, v9')
        for t in range(4):
            A(f'v_xor_b32 v10, {t}, v9')
            A(f'v_lshl_add_u32 v{16 + t}, v10, 5, v8')
        A('v_mul_u32_u24 v24, 1152, v28')
        A('v_lshl_add_u32 v24, v29, 3, v24')
        A(f'v_add_u32 v24, {STG}, v24')
        nq = 0 if 'nowq' in self.exp else 18
        A(f's_waitcnt vmcnt({nq + nwarm})')
        self.stamp(11)
        A('v_readfirstlane_b32 s29, v3')
        X = 30
        for k in range(9):
            A(f'v_lshlrev_b32 v{X + k}, 16, v{X + k}')
        A('s_add_u32 s29, s29, 1')
        A(f'v_add_f32 v10, v{X}, v{X+1}')
        for k in range(2, 9):
            A(f'v_add_f32 v10, v10, v{X + k}')
        self.wavesum(10, 11)
        A(f'v_mul_f32 v10, {0x3AE38E39:#x}, v10')
        for k in range(9):
            A(f'v_sub_f32 v{40 + k}, v{X + k}, v10')
        A('v_mul_f32 v12, v40, v40')
        for k in range(1, 9):
            A(f'v_fmac_f32 v12, v{40 + k}, v{40 + k}')
        self.wavesum(12, 11)
        A(f'v_mul_f32 v12, {0x3AE38E39:#x}, v12')
        self.bf16r(10, 10, 11)
        self.bf16r(12, 12, 11)
        A(f'v_add_f32 v12, {0x3727C5AC:#x}, v12')
        self.bf16r(12, 12, 11)
        A('v_sqrt_f32 v12, v12')
        A('s_nop 0')
        self.bf16r(12, 12, 11)
        A('v_rcp_f32 v13, v12')
        for k in range(9):
            A(f'v_sub_f32 v{40 + k}, v{X + k}, v10')
        for k in range(0, 9, 2):
            k2 = min(k + 1, 8)
            A(f'v_cvt_pk_bf16_f32 v{50 + k // 2}, v{40 + k}, v{40 + k2}')
        for k in range(9):
            if k % 2 == 0:
                A(f'v_lshlrev_b32 v{40 + k}, 16, v{50 + k // 2}')
            else:
                A(f'v_and_b32 v{40 + k}, 0xffff0000, v{50 + k // 2}')
        for k in range(9):
            A(f'v_mul_f32 v{60 + k}, v{40 + k}, v13')
            A(f'v_fma_f32 v{70 + k}, -v{60 + k}, v12, v{40 + k}')
            A(f'v_fma_f32 v{60 + k}, v{70 + k}, v13, v{60 + k}')
        for k in range(0, 9, 2):
            k2 = min(k + 1, 8)
            A(f'v_cvt_pk_bf16_f32 v{50 + k // 2}, v{60 + k}, v{60 + k2}')
        A(f'v_add_u32 v11, {XN}, v4')
        for k in range(9):
            op = 'ds_write_b16' if k % 2 == 0 else 'ds_write_b16_d16_hi'
            A(f'{op} v11, v{50 + k // 2} offset:{128 * k}')
        A('s_mul_i32 s58, s51, 288')
        self.stamp(12)
        A('s_waitcnt vmcnt(0) lgkmcnt(0)')
        self.stamp(13)
        self.gemv64(96, True, 58)
        A('s_nop 7')
        self.stamp(10)
        A('s_mov_b32 s46, 0xffff0000')
        A('s_mov_b32 s47, 0')
        A('v_cndmask_b32 v32, v96, v104, s[46:47]')
        A('v_cndmask_b32 v34, v100, v108, s[46:47]')
        A('v_mov_b32 v33, s29')
        A('v_mov_b32 v35, s29')
        A('s_lshl_b32 s40, s2, 9')
        A(f's_add_u32 s40, s40, {WS_Q}')
        A('s_add_u32 s48, s24, s40')
        A('s_addc_u32 s49, s25, 0')
        A('s_mov_b32 s46, -1')
        A('s_mov_b64 exec, s[46:47]')
        A('global_store_dwordx4 v23, v[32:35], s[48:49] sc1')
        A('s_mov_b64 exec, -1')
        A('s_mov_b32 s48, s62')
        A('s_mov_b32 s49, s63')
        A('v_mov_b32 v30, v14')
        A('v_mov_b32 v31, v15')
        loads = []
        for H in range(2):
            for kp in range(4):
                b = 40 + 16 * H + 4 * kp
                loads.append(f'global_load_dwordx4 v[{b}:{b+3}], v{30 + H}, s[48:49] offset:{512 * kp} sc1')
        def qchk():
            A('v_xor_b32 v72, s29, v41')
            for q in range(43, 72, 2):
                A(f'v_xor_b32 v73, s29, v{q}')
                A('v_or_b32 v72, v72, v73')
            return 72
        self.poll('L_h_q', loads, qchk, sleep=1, probe=('qsweep' not in self.exp))
        self.stamp(14)
        for H in range(2):
            b = 40 + 16 * H
            for e in (0, 2):
                A(f'v_add_f32 v{b+e}, v{b+e}, v{b+4+e}')
                A(f'v_add_f32 v{b+8+e}, v{b+8+e}, v{b+12+e}')
                A(f'v_add_f32 v{b+e}, v{b+e}, v{b+8+e}')
            A(f'v_cvt_pk_bf16_f32 v{74 + H}, v{b}, v{b+2}')
        A('v_lshrrev_b32 v32, 4, v1')
        A('v_lshlrev_b32 v32, 6, v32')
        A('v_lshl_add_u32 v32, v27, 1, v32')
        A(f'v_add_u32 v32, {QL}, v32')
        for H in range(2):
            A(f'ds_write_b16 v32, v{74 + H} offset:{256 * H}')
            A(f'ds_write_b16_d16_hi v32, v{74 + H} offset:{256 * H + 32}')
        A('v_mov_b32 v42, 1')
        A('v_mov_b32 v43, s29')
        A(f'v_mov_b32 v41, {FL}')
        A('s_waitcnt lgkmcnt(0)')
        A('s_mov_b64 exec, 1')
        A('ds_write_b64 v41, v[42:43] offset:32')
        A('s_mov_b64 exec, -1')
        A('s_setprio 0')
        A(f's_cmp_ge_u32 s96, {NFFN}')
        A('s_cbranch_scc1 L_h_ffn_done')
        if 'noffn' in self.exp:
            A('s_branch L_h_ffn_done')
        A('s_mov_b32 s59, 0')
        self.L('L_h_f1')
        A('s_lshl_b32 s40, s96, 7')
        A(f's_mul_i32 s58, s59, {144 * 9216}')
        A('s_add_u32 s40, s40, s58')
        A('s_add_u32 s56, s16, s40')
        A('s_addc_u32 s57, s17, 0')
        if 'now1' not in self.exp:
            self.dma_cols(56, 9216, 25, win=FW)
        A('s_mul_i32 s58, s59, 288')
        A('s_waitcnt vmcnt(0)')
        A('s_cmp_lg_u32 s59, 0')
        A('s_cbranch_scc1 L_h_f1b')
        for r in range(16):
            A(f'v_mov_b32 v{96 + r}, 0')
        self.L('L_h_f1b')
        A('s_nop 1')
        self.gemv64(96, False, 58)
        A('s_add_u32 s59, s59, 1')
        A('s_cmp_lt_u32 s59, 4')
        A('s_cbranch_scc1 L_h_f1')
        A('s_nop 7')
        A('v_lshlrev_b32 v34, 1, v27')
        A(f'v_add_u32 v34, {OB}, v34')
        for t in range(4):
            self.bf16r(30, 96 + 4 * t, 31)
            A(f'v_mul_f32 v31, {0xBFB8AA3B:#x}, v30')
            A('v_exp_f32 v31, v31')
            A('s_nop 0')
            A('v_add_f32 v31, 1.0, v31')
            A('v_rcp_f32 v32, v31')
            A('s_nop 0')
            A('v_mul_f32 v33, v30, v32')
            A('v_cvt_pk_bf16_f32 v33, v33, v33')
            A('s_mov_b64 exec, 0xffff')
            A(f'ds_write_b16 v34, v33 offset:{32 * t}')
            A('s_mov_b64 exec, -1')
        for r in range(12):
            A(f'v_mov_b32 v{112 + r}, 0')
        A('v_lshlrev_b32 v35, 3, v26')
        A(f'v_add_u32 v35, {OB}, v35')
        A('s_mov_b32 s59, 0')
        self.L('L_h_f2')
        A('s_lshl_b32 s40, s96, 2')
        A('s_add_u32 s40, s40, s59')
        A('s_mul_i32 s40, s40, 18432')
        A('s_add_u32 s56, s18, s40')
        A('s_addc_u32 s57, s19, 0')
        if 'now2' not in self.exp:
            self.dma_rows(56, win=FW)
        A('s_lshl_b32 s40, s59, 5')
        A('v_add_u32 v38, s40, v35')
        A('s_waitcnt lgkmcnt(0)')
        A('ds_read_b64 v[36:37], v38')
        A('s_waitcnt vmcnt(0) lgkmcnt(0)')
        for t0 in range(0, 36, 12):
            for t in range(t0, t0 + 12):
                A(f'ds_read_b64_tr_b16 v[{40 + 2*(t - t0)}:{41 + 2*(t - t0)}], v24 offset:{32 * t}')
            A('s_waitcnt lgkmcnt(0)')
            for t in range(t0, t0 + 12):
                grp, r = t // 3, t % 3
                a = 112 + 4 * (grp // 4)
                row = 4 * (grp % 4) + r
                A(f's_mov_b32 s46, {0x00010001 << row:#x}')
                A(f's_mov_b32 s47, {0x00010001 << row:#x}')
                A(f'v_cndmask_b32 v{88 + 2*(t&1)}, 0, v36, s[46:47]')
                A(f'v_cndmask_b32 v{89 + 2*(t&1)}, 0, v37, s[46:47]')
                A('s_nop 1')
                A(f'v_mfma_f32_16x16x16_bf16 v[{a}:{a+3}], v[{88 + 2*(t&1)}:{89 + 2*(t&1)}], v[{40 + 2*(t - t0)}:{41 + 2*(t - t0)}], v[{a}:{a+3}]')
        A('s_add_u32 s59, s59, 1')
        A('s_cmp_lt_u32 s59, 4')
        A('s_cbranch_scc1 L_h_f2')
        A('s_nop 7')
        A('s_mul_i32 s40, s96, 3072')
        A(f's_add_u32 s40, s40, {WS_F}')
        A('s_add_u32 s48, s24, s40')
        A('s_addc_u32 s49, s25, 0')
        for a in range(3):
            self.mkchk(112 + 4 * a)
            A(f'global_store_dwordx4 v23, v[{112 + 4*a}:{115 + 4*a}], s[48:49] offset:{1024 * a} sc1')
        self.L('L_h_ffn_done')
        if 'nowo' not in self.exp and not self.wotail:
            A('s_lshl_b32 s40, s27, 4')
            A('s_add_u32 s40, s40, s28')
            A('s_mul_i32 s40, s40, 18432')
            A('s_add_u32 s56, s12, s40')
            A('s_addc_u32 s57, s13, 0')
            self.dma_rows(56, win=FW)
        A(f's_cmp_ge_u32 s97, {NRED}')
        A('s_cbranch_scc1 L_h_tail')
        if 'nofgather' in self.exp or 'noffn' in self.exp:
            A('s_branch L_h_tail')
        A(f'v_mov_b32 v34, {FL}')
        self.spin_begin(42)
        self.L('L_h_fwait')
        A('ds_read_b32 v35, v34 offset:16')
        A('s_waitcnt lgkmcnt(0)')
        A('v_readfirstlane_b32 s40, v35')
        A(f's_cmp_ge_u32 s40, {self.nunits // 2}')
        A('s_cbranch_scc1 L_h_fgo')
        self.spin_retry(42, 'L_h_fwait', sleep=64)
        self.L('L_h_fgo')
        A('s_lshl_b32 s40, s97, 6')
        A(f's_add_u32 s40, s40, {WS_F}')
        A('s_add_u32 s48, s24, s40')
        A('s_addc_u32 s49, s25, 0')
        A('v_lshrrev_b32 v30, 2, v1')
        A('v_mul_u32_u24 v30, 3072, v30')
        A('v_and_b32 v31, 3, v1')
        A('v_lshl_add_u32 v30, v31, 4, v30')
        for i in range(1, 5):
            A(f'v_add_u32 v{30 + i}, {3072 * 16 * i}, v30')
        A('s_mov_b32 s46, 0')
        A('s_mov_b32 s47, -1')
        A(f'v_add_u32 v35, {-3072 * 8 & 0xffffffff:#x}, v34')
        A('v_cndmask_b32 v34, v34, v35, s[46:47]')
        self.poll('L_h_f', [f'global_load_dwordx4 v[{40 + 4*i}:{43 + 4*i}], v{30 + i}, s[48:49] sc1' for i in range(5)],
                  lambda: self.chk3([40, 44, 48, 52, 56], 60, 61), sleep=32)
        A('s_mov_b32 s46, 0')
        A('s_mov_b32 s47, -1')
        for r in range(3):
            A(f'v_cndmask_b32 v{56 + r}, v{56 + r}, 0, s[46:47]')
        for r in range(3):
            A(f'v_add_f32 v{40 + r}, v{40 + r}, v{44 + r}')
            A(f'v_add_f32 v{48 + r}, v{48 + r}, v{52 + r}')
            A(f'v_add_f32 v{40 + r}, v{40 + r}, v{56 + r}')
        for r in range(3):
            A(f'v_add_f32 v{40 + r}, v{40 + r}, v{48 + r}')
        for r in range(3):
            self.rowred('v_add_f32', 40 + r, rors=(4, 8))
        for r in range(3):
            self.xrow('v_add_f32', 40 + r, 60)
        A('v_lshlrev_b32 v34, 4, v1')
        A(f'v_add_u32 v34, {FFNR}, v34')
        A('s_mov_b64 exec, 15')
        A('ds_write_b128 v34, v[40:43]')
        A('s_mov_b64 exec, -1')
        self.L('L_h_tail')
        A('s_waitcnt vmcnt(0) lgkmcnt(0)')
        self.stamp(7)
        if 'notail' in self.exp:
            self.flush_stamps()
            A('s_endpgm')
        A('v_lshrrev_b32 v30, 3, v1')
        A('v_and_b32 v31, 7, v1')
        A('v_min_u32 v32, 5, v31')
        if self.headmap == 'lin':
            A('s_lshl_b32 s58, s27, 15')
            A('v_lshlrev_b32 v33, 11, v30')
            step8 = 8 * 2048
        else:
            A('s_and_b32 s58, s27, 1')
            A('s_lshl_b32 s58, s58, 3')
            A('s_lshr_b32 s59, s27, 1')
            A('s_add_u32 s58, s58, s59')
            A('s_lshl_b32 s58, s58, 11')
            A('v_lshlrev_b32 v33, 15, v30')
            step8 = 8 * 16 * 2048
        A('s_lshl_b32 s40, s28, 7')
        A('s_add_u32 s58, s58, s40')
        A(f's_add_u32 s58, s58, {WS_P}')
        A('s_add_u32 s48, s24, s58')
        A('s_addc_u32 s49, s25, 0')
        A('v_lshl_add_u32 v34, v32, 4, v33')
        A(f'v_add_u32 v35, {step8}, v34')
        A('v_add_u32 v36, 80, v33')
        A(f'v_add_u32 v37, {step8}, v36')
        US, LA, NI = self.US, self.LA, self.NI
        A(f'v_mov_b32 v38, {FL}')
        def put_id(kreg, valreg_v):
            A(f's_lshl_b32 s40, s{kreg}, 2')
            A(f's_add_u32 s40, s40, {IDS}')
            A('v_mov_b32 v39, s40')
            A('s_mov_b64 exec, 1')
            A(f'ds_write_b32 v39, v{valreg_v}')
            A('s_mov_b64 exec, -1')
        if NI == 0:
            A('s_mov_b32 s50, 0')
            A('v_mov_b32 v44, -1')
            put_id(50, 44)
        else:
            A(f's_mul_i32 s40, s27, {self.cstride}')
            A(f's_add_u32 s40, s40, {WS_CNT}')
            A('s_add_u32 s56, s24, s40')
            A('s_addc_u32 s57, s25, 0')
            A('v_mov_b32 v40, 0')
            A('v_mov_b32 v41, 1')
            def wait_progress(kreg, lab):
                A(f's_add_u32 s51, s{kreg}, {US - LA}')
                self.spin_begin(42)
                self.L(lab)
                A('ds_read_b128 v[44:47], v38')
                A('s_waitcnt lgkmcnt(0)')
                A('v_max_u32 v44, v44, v45')
                A('v_max3_u32 v44, v44, v46, v47')
                A('s_nop 0')
                A('v_readfirstlane_b32 s40, v44')
                A('s_cmp_ge_u32 s40, s51')
                A(f's_cbranch_scc1 {lab}_ok')
                self.spin_retry(42, lab, sleep=4)
                self.L(f'{lab}_ok')
            def claim(dst):
                A('s_mov_b64 exec, 1')
                A(f'global_atomic_add v{dst}, v40, v41, s[56:57] sc0')
                A('s_mov_b64 exec, -1')
            A('s_mov_b32 s50, 0')
            A('s_mov_b32 s58, 0')
            wait_progress(50, 'L_h_cw0')
            claim(42)
            A('s_mov_b32 s50, 1')
            self.L('L_h_claim')
            for par in range(2):
                cur, nxt = 42 + par, 43 - par
                last = self.lab('L_h_clast')
                res = self.lab('L_h_cres')
                A(f's_cmp_ge_u32 s50, {CAP}')
                A(f's_cbranch_scc1 {last}')
                wait_progress(50, self.lab('L_h_cw'))
                claim(nxt)
                A('s_add_u32 s50, s50, 1')
                A('s_waitcnt vmcnt(1)')
                A(f's_branch {res}')
                self.L(last)
                A('s_waitcnt vmcnt(0)')
                A(f'v_mov_b32 v{nxt}, {NI}')
                self.L(res)
                A(f'v_readfirstlane_b32 s40, v{cur}')
                if self.endmargin:
                    nm = self.lab('L_h_nom')
                    A(f's_cmp_lt_u32 s40, {max(NI - self.endmargin, 0)}')
                    A(f's_cbranch_scc1 {nm}')
                    for q in range(4):
                        A(f'v_mov_b32 v{44 + q}, 1')
                    A('s_mov_b64 exec, 1')
                    A('ds_write_b128 v38, v[44:47] offset:48')
                    A('s_mov_b64 exec, -1')
                    self.L(nm)
                A(f's_cmp_ge_u32 s40, {NI}')
                A('s_cselect_b32 s40, -2, s40')
                A('s_add_u32 s59, s40, 1')
                A('v_mov_b32 v44, s59')
                put_id(58, 44)
                A('s_add_u32 s58, s58, 1')
                A('s_cmp_eq_u32 s59, -1')
                A('s_cbranch_scc1 L_h_cdone')
            A('s_branch L_h_claim')
            self.L('L_h_cdone')
            A('v_mov_b32 v44, 1')
            A('v_mov_b32 v45, 1')
            A('v_mov_b32 v46, 1')
            A('v_mov_b32 v47, 1')
            A('s_mov_b64 exec, 1')
            A('ds_write_b128 v38, v[44:47] offset:48')
            A('s_mov_b64 exec, -1')
            A('s_waitcnt vmcnt(0) lgkmcnt(0)')
        if 'nowarm' not in self.exp:
            for i in range(2):
                A(f'global_load_dwordx4 v[{40 + 4*i}:{43 + 4*i}], v{34 + i}, s[48:49] sc1')
            A(f's_cmp_ge_u32 s97, {NRED}')
            A('s_cbranch_scc1 L_h_wdone')
            A('s_lshl_b32 s40, s97, 6')
            A(f's_add_u32 s40, s40, {WS_Y}')
            A('s_add_u32 s56, s24, s40')
            A('s_addc_u32 s57, s25, 0')
            A('v_lshrrev_b32 v38, 2, v1')
            A('v_mul_u32_u24 v38, 3072, v38')
            A('v_and_b32 v39, 3, v1')
            A('v_lshl_add_u32 v38, v39, 4, v38')
            for i in range(16):
                A(f'global_load_dwordx4 v[{48 + 4*(i%8)}:{51 + 4*(i%8)}], v38, s[56:57] sc1')
                A(f'v_add_u32 v38, {3072 * 16}, v38')
            self.L('L_h_wdone')
            A('s_waitcnt vmcnt(0)')
        A('s_barrier')
        self.poll('L_h_b', [f'global_load_dwordx4 v[{40 + 4*i}:{43 + 4*i}], v{34 + i}, s[48:49] sc1' for i in range(4)],
                  lambda: self.chk3([40, 44, 48, 52], 56, 57), sleep=2)
        self.stamp(15)
        A('v_max_f32 v56, v49, v53')
        self.rowred('v_max_f32', 56, rors=(8,))
        self.xrow('v_max_f32', 56, 57)
        A('v_sub_f32 v58, v49, v56')
        A('v_sub_f32 v59, v53, v56')
        A('v_exp_f32 v58, v58')
        A('v_exp_f32 v59, v59')
        A('s_nop 0')
        A('v_mul_f32 v60, v50, v58')
        A('v_fmac_f32 v60, v54, v59')
        for i in range(3):
            A(f'v_mul_f32 v{61 + i}, v{40 + i}, v58')
            A(f'v_fmac_f32 v{61 + i}, v{44 + i}, v59')
        for r in (60, 61, 62, 63):
            self.rowred('v_add_f32', r, rors=(8,))
        for r in (60, 61, 62, 63):
            self.xrow('v_add_f32', r, 57)
        A('v_rcp_f32 v64, v60')
        A('s_nop 0')
        for r in (61, 62, 63):
            A(f'v_mul_f32 v65, v{r}, v64')
            A(f'v_fma_f32 v66, -v65, v60, v{r}')
            A(f'v_fma_f32 v{r}, v66, v64, v65')
        A('v_cvt_pk_bf16_f32 v61, v61, v62')
        A('v_cvt_pk_bf16_f32 v63, v63, v63')
        A('v_mul_u32_u24 v62, 6, v31')
        A(f'v_add_u32 v62, {OB}, v62')
        A('s_mov_b64 exec, 0x3f')
        A('ds_write_b16 v62, v61')
        A('s_mov_b64 exec, 0x1f')
        A('ds_write_b16_d16_hi v62, v61 offset:2')
        A('ds_write_b16 v62, v63 offset:4')
        A('s_mov_b64 exec, -1')
        A('s_waitcnt lgkmcnt(0)')
        A('s_barrier')
        self.flush_stamps()
        A('s_endpgm')

    def build(self):
        head = HEADER + f'; @launch grid=(256,1,1) block=(576,1,1) lds={LDS_BYTES}\n'
        head += '.amdgcn_target "amdgcn-amd-amdhsa--gfx950"\n.text\n'
        head += f'.globl {KNAME}\n.p2align 8\n.type {KNAME},@function\n{KNAME}:\n'
        self.entry()
        self.consumer()
        self.loader()
        self.helper()
        self.L('L_end')
        self.A('s_endpgm')
        tail = f'''.section .rodata,"a"
.p2align 6
.amdhsa_kernel {KNAME}
  .amdhsa_next_free_vgpr 160
  .amdhsa_next_free_sgpr 100
  .amdhsa_accum_offset 160
  .amdhsa_group_segment_fixed_size 0
  .amdhsa_kernarg_size 88
  .amdhsa_user_sgpr_count 2
  .amdhsa_user_sgpr_kernarg_segment_ptr 1
  .amdhsa_system_sgpr_workgroup_id_x 1
  .amdhsa_float_denorm_mode_32 3
  .amdhsa_float_denorm_mode_16_64 3
.end_amdhsa_kernel
'''
        return head + '\n'.join(self.o) + '\n' + tail


if __name__ == '__main__':
    import argparse
    ap = argparse.ArgumentParser()
    ap.add_argument('-o', default='parallel_sum__gqa_block_cached__dense_activation_silu__decode.s')
    ap.add_argument('--W', type=int, default=5)
    ap.add_argument('--rot', type=int, default=5)
    ap.add_argument('--headmap', default='lin')
    ap.add_argument('--stamps', action='store_true')
    ap.add_argument('--exp', default='')
    a = ap.parse_args()
    open(a.o, 'w').write(Gen(W=a.W, rot=a.rot, headmap=a.headmap, stamps=a.stamps, exp=[e for e in a.exp.split(',') if e]).build())
    print('wrote', a.o)
```

```python
import sys

KNAME = 'parallel_sum__gqa_block_cached__dense_activation_silu__decode_kernel'

HEADER = '''; Kernarg layout for this problem (88 bytes, ptrs only, base s[0:1]):
'''

RING = 32768
STG = 0x20000
XN = 0x24800
QL = 0x24D00
FL = 0x25000
OC = 0x25100
OCML = 0x26100
OB = 0x26180
RED = 0x26200
FFNR = 0x26480
AB = 0x26400
W2S = 0
LDS_BYTES = 0x28000

WS_EPOCH = 0x0
WS_Q = 0x10000
WS_P = 0x80000
WS_Y2 = 0x200000
WS_Y = 0x100000
WS_A = 0x30000
WS_F = 0x38000
NRED = 48
NFFN = 72
WS_DBG = 0x800000

SCALE = 0x3DB504F3
LOG2E = 0x3FB8AA3B
SPIN = 0x40000
IDS = FL + 64
CAP = 40
WS_T = 0x4000
WS_CNT = 0x1C0000


class Gen:
    def __init__(self, W=5, rot=7, headmap='lin', stamps=False, nunits=64, exp=(), ffn_win=6, warm_before=4, US=58, LA=2, preread=True, wotail=True, Wend=12, endmargin=32, cstride=12544, earlyflags=True, fastpoll=True, dpoll=True, stag=4, tickets=True, LAt=6, tk_pos=4, prog_pts=(4, 8, 16, 32, 48), nstart=0, share=True, C=50, Gd=3, xfast=8, taufac=0.95, warm_tiles=10, tsleep=0, thresh=16, a_at=36, warm_late=False, w2late=False, wo_by='w23', pertau=False, C0=34, lam=0.7):
        self.o = []
        self.W = W
        self.rot = rot
        self.headmap = headmap
        self.stamps = stamps
        self.nunits = nunits
        self.uid = 0
        self.pending = []
        self.exp = set(exp)
        self.ffn_win = ffn_win
        self.warm_before = warm_before
        self.US = US
        self.LA = LA
        self.NI = (64 - US) * 16
        self.preread = preread
        self.wotail = wotail
        self.Wend = Wend
        self.pertau = pertau
        self.C0 = C0
        self.lam = lam
        self.wo_by = wo_by
        self.w2late = w2late
        self.warm_late = warm_late
        self.a_at = a_at
        self.tsleep = tsleep
        self.thresh = thresh
        self.share = share
        self.C = C
        self.Gd = Gd
        self.xfast = xfast
        self.taufac = taufac
        self.warm_tiles = warm_tiles
        self.nstart = nstart
        self.prog_pts = prog_pts
        self.dpoll = dpoll
        self.stag = stag
        self.tickets = tickets
        self.LAt = LAt
        self.tk_pos = tk_pos
        self.fastpoll = fastpoll
        self.earlyflags = earlyflags
        self.cstride = cstride
        self.endmargin = endmargin
        self.sleepmul = 8 if 'slowpoll' in self.exp else 1

    def A(self, s):
        self.o.append('  ' + s)

    def L(self, s):
        self.o.append(s + ':')

    def lab(self, base):
        self.uid += 1
        return f'{base}_{self.uid}'

    def stamp(self, idx, vtmp=126):
        if not self.stamps:
            return
        k = len(self.pending)
        assert k < 12
        self.pending.append(idx)
        self.A(f's_memrealtime s[{66 + 2*k}:{67 + 2*k}]')

    def stamp_at(self, idx, k):
        while len(self.pending) <= k:
            self.pending.append(None)
        self.pending[k] = idx
        self.A(f's_memrealtime s[{66 + 2*k}:{67 + 2*k}]')

    def flush_stamps(self, vtmp=126, extra=()):
        if not self.stamps:
            return
        A = self.A
        A('s_lshl_b32 s92, s2, 7')
        A(f's_add_u32 s92, s92, {WS_DBG}')
        A('s_add_u32 s94, s24, s92')
        A('s_addc_u32 s95, s25, 0')
        A('s_waitcnt lgkmcnt(0)')
        A(f'v_mov_b32 v{vtmp+1}, 0')
        A('s_mov_b64 exec, 1')
        for k, idx in enumerate(self.pending):
            if idx is None:
                continue
            A(f'v_mov_b32 v{vtmp}, s{66 + 2*k}')
            A(f'global_store_dword v{vtmp+1}, v{vtmp}, s[94:95] offset:{idx * 4}')
        for idx, sreg in extra:
            A(f'v_mov_b32 v{vtmp}, s{sreg}')
            A(f'global_store_dword v{vtmp+1}, v{vtmp}, s[94:95] offset:{idx * 4}')
        A('s_mov_b64 exec, -1')

    def xrow(self, op, v, t):
        A = self.A
        A(f'v_mov_b32 v{t}, v{v}')
        A('s_nop 1')
        A(f'v_permlane16_swap_b32 v{v}, v{t}')
        A('s_nop 1')
        A(f'{op} v{v}, v{v}, v{t}')
        A(f'v_mov_b32 v{t}, v{v}')
        A('s_nop 1')
        A(f'v_permlane32_swap_b32 v{v}, v{t}')
        A('s_nop 1')
        A(f'{op} v{v}, v{v}, v{t}')

    def rowred(self, op, v, rors=(8, 4, 2, 1)):
        A = self.A
        for r in rors:
            A('s_nop 1')
            A(f'{op}_dpp v{v}, v{v}, v{v} row_ror:{r} row_mask:0xf bank_mask:0xf')

    def mrowred(self, op, regs, rors):
        A = self.A
        pad = max(0, 3 - len(regs))
        for r in rors:
            for _ in range(pad):
                A('s_nop 0')
            for v in regs:
                A(f'{op}_dpp v{v}, v{v}, v{v} row_ror:{r} row_mask:0xf bank_mask:0xf')
        return

    def mxrow(self, op, regs, tmps):
        A = self.A
        pad = max(0, 3 - len(regs))
        for swap in ('v_permlane16_swap_b32', 'v_permlane32_swap_b32'):
            for v, t in zip(regs, tmps):
                A(f'v_mov_b32 v{t}, v{v}')
            for _ in range(pad + 1):
                A('s_nop 0')
            for v, t in zip(regs, tmps):
                A(f'{swap} v{v}, v{t}')
            for _ in range(pad):
                A('s_nop 0')
            for v, t in zip(regs, tmps):
                A(f'{op} v{v}, v{v}, v{t}')

    def wavesum(self, v, t):
        self.rowred('v_add_f32', v)
        self.xrow('v_add_f32', v, t)

    def bf16r(self, dst, src, t):
        self.A(f'v_cvt_pk_bf16_f32 v{t}, v{src}, v{src}')
        self.A(f'v_lshlrev_b32 v{dst}, 16, v{t}')

    def spin_begin(self, sreg):
        self.A(f's_mov_b32 s{sreg}, {SPIN}')

    def spin_retry(self, sreg, loop, sleep=2):
        A = self.A
        A(f's_sleep {min(127, sleep * self.sleepmul)}')
        A(f's_sub_u32 s{sreg}, s{sreg}, 1')
        A(f's_cmp_lg_u32 s{sreg}, 0')
        A(f's_cbranch_scc1 {loop}')

    def wg_of(self, dst, s_h, s_or_imm_j):
        pass

    def entry(self):
        A = self.A
        A('s_cmp_ge_u32 s2, 256')
        A('s_cbranch_scc1 L_end')
        A('s_load_dwordx16 s[4:19], s[0:1], 0')
        A('s_load_dwordx4 s[20:23], s[0:1], 64')
        A('s_load_dwordx2 s[24:25], s[0:1], 80')
        A('v_lshrrev_b32 v1, 6, v0')
        if self.headmap == 'lin':
            A('s_lshr_b32 s27, s2, 4')
            A('s_and_b32 s28, s2, 15')
        elif self.headmap.startswith('G'):
            G = int(self.headmap[1:]); per = 16 // G
            A('s_and_b32 s40, s2, 7')
            A('s_lshr_b32 s41, s2, 3')
            A(f's_lshr_b32 s27, s41, {per.bit_length() - 1}')
            A(f's_and_b32 s28, s41, {per - 1}')
            A(f's_mul_i32 s28, s28, {G}')
            A(f's_and_b32 s41, s40, {G - 1}')
            A('s_add_u32 s28, s28, s41')
            A(f's_lshr_b32 s40, s40, {G.bit_length() - 1}')
            A(f's_mul_i32 s40, s40, {2 * G}')
            A('s_add_u32 s27, s27, s40')
        else:
            A('s_and_b32 s27, s2, 7')
            A('s_lshl_b32 s27, s27, 1')
            A('s_lshr_b32 s28, s2, 3')
            A('s_and_b32 s28, s28, 1')
            A('s_add_u32 s27, s27, s28')
            A('s_lshr_b32 s28, s2, 4')
        A('s_lshl_b32 s96, s27, 2')
        A('s_add_u32 s96, s96, s28')
        A('s_add_u32 s97, s27, 64')
        A('s_cmp_lt_u32 s27, 8')
        A('s_cselect_b32 s97, s97, 255')
        A('s_cmp_eq_u32 s28, 4')
        A('s_cselect_b32 s97, s97, 255')
        A('s_cmp_lt_u32 s28, 4')
        A('s_cselect_b32 s96, s96, s97')
        A('s_mul_i32 s97, s27, 3')
        A('s_add_u32 s97, s97, s28')
        A('s_sub_u32 s97, s97, 13')
        A('s_cmp_ge_u32 s28, 13')
        A('s_cselect_b32 s97, s97, 255')
        A('v_readfirstlane_b32 s26, v1')
        A('v_and_b32 v1, 63, v0')
        A('s_cmp_lg_u32 s26, 0')
        A('s_cbranch_scc1 L_noinit')
        A(f'v_lshlrev_b32 v2, 2, v1')
        A(f'v_add_u32 v2, {FL}, v2')
        A('v_mov_b32 v3, 0')
        A('ds_write_b32 v2, v3')
        self.L('L_noinit')
        A('s_waitcnt lgkmcnt(0)')
        A('s_barrier')
        A('s_cmp_ge_u32 s26, 8')
        A('s_cbranch_scc1 L_helper')
        A('s_cmp_ge_u32 s26, 4')
        A('s_cbranch_scc1 L_loader')

    def loader(self):
        A, W = self.A, self.W
        self.L('L_loader')
        self.pending = []
        if 'noload' in self.exp:
            A('s_endpgm')
        A('s_sub_u32 s29, s26, 4')
        A('s_lshl_b32 s40, s27, 24')
        A('s_add_u32 s30, s6, s40')
        A('s_addc_u32 s31, s7, 0')
        A('s_add_u32 s32, s8, s40')
        A('s_addc_u32 s33, s9, 0')
        A('s_lshl_b32 s41, s28, 2')
        A('s_add_u32 s41, s41, s29')
        A(f's_mul_i32 s40, s27, {self.rot * 64}')
        A('s_add_u32 s41, s41, s40')
        A('s_and_b32 s41, s41, 4095')
        A(f's_mul_i32 s38, s29, {RING}')
        A('v_lshrrev_b32 v2, 4, v1')
        A('v_and_b32 v3, 15, v1')
        A('v_lshlrev_b32 v4, 1, v2')
        A('v_xor_b32 v3, v3, v4')
        A('v_lshlrev_b32 v3, 4, v3')
        A('v_lshl_add_u32 v6, v2, 8, v3')
        A('v_xor_b32 v7, 128, v6')
        A('s_lshl_b32 s40, s29, 2')
        A(f's_add_u32 s40, s40, {FL}')
        A('v_mov_b32 v8, s40')
        A('s_mov_b32 s35, 0')
        A('s_mov_b32 s39, 0')
        A('v_mov_b32 v10, 0')
        A('s_mov_b32 s60, 0')
        A('s_mov_b32 s61, 0')
        if 'noprio' not in self.exp:
            A('s_setprio 2')
        pub_pos = (W - 1) % 8
        pub_off = (pub_pos - W + 1) // 8

        def publish(val_sreg_or_expr):
            A(f'v_mov_b32 v9, {val_sreg_or_expr}')
            A('s_mov_b64 exec, 1')
            A('ds_write_b32 v8, v9')
            A('s_mov_b64 exec, -1')

        US = self.US
        A(f's_mul_i32 s44, s27, {self.rot * 64}')
        A('s_add_u32 s44, s44, s29')
        A(f's_add_u32 s44, s44, {US * 64}')
        A('v_mov_b32 v11, 0')
        A('v_mov_b32 v13, 0')
        self.L('L_ld_loop')
        for u in range(4):
            ok = self.lab('L_ld_ok')
            sp = self.lab('L_ld_spin')
            st = self.lab('L_ld_static')
            idok = self.lab('L_ld_idok')
            idsp = self.lab('L_ld_idspin')
            if self.stamps and u == 0:
                for q, nn in enumerate((4, 8, 16, 32, 48)):
                    l = self.lab('L_ld_st')
                    A(f's_cmp_lg_u32 s35, {nn}')
                    A(f's_cbranch_scc1 {l}')
                    self.stamp(16 + q)
                    self.L(l)
            A('s_waitcnt lgkmcnt(0)')
            A('v_readfirstlane_b32 s39, v10')
            A('v_readfirstlane_b32 s45, v11')
            if self.Wend:
                A('v_readfirstlane_b32 s47, v13')
            A(f's_cmp_lt_u32 s35, {US}')
            A(f's_cbranch_scc1 {st}')
            A('s_cmp_lg_u32 s45, 0')
            A(f's_cbranch_scc1 {idok}')
            if self.stamps:
                A('s_add_u32 s61, s61, 1')
            A('s_waitcnt vmcnt(0)')
            publish('s35')
            self.spin_begin(42)
            self.L(idsp)
            A('ds_read_b32 v11, v12')
            A('s_waitcnt lgkmcnt(0)')
            A('v_readfirstlane_b32 s45, v11')
            A('s_cmp_lg_u32 s45, 0')
            A(f's_cbranch_scc1 {idok}')
            self.spin_retry(42, idsp, sleep=1)
            A('s_branch L_ld_end')
            self.L(idok)
            A('s_cmp_eq_u32 s45, -1')
            A('s_cbranch_scc1 L_ld_end')
            A('s_sub_u32 s45, s45, 1')
            A('s_lshl_b32 s45, s45, 2')
            A('s_add_u32 s41, s45, s44')
            A('s_and_b32 s41, s41, 4095')
            self.L(st)
            A('s_add_u32 s40, s39, 3')
            A('s_cmp_ge_u32 s40, s35')
            A(f's_cbranch_scc1 {ok}')
            A('s_waitcnt vmcnt(0)')
            publish('s35')
            if self.stamps:
                A('s_add_u32 s60, s60, 1')
            self.spin_begin(42)
            self.L(sp)
            A('ds_read_b32 v10, v8 offset:16')
            A('s_waitcnt lgkmcnt(0)')
            A('v_readfirstlane_b32 s39, v10')
            A('s_add_u32 s40, s39, 3')
            A('s_cmp_ge_u32 s40, s35')
            A(f's_cbranch_scc1 {ok}')
            self.spin_retry(42, sp, sleep=1)
            self.L(ok)
            A('s_lshl_b32 s40, s41, 12')
            A('s_add_u32 s46, s35, 1')
            A(f's_sub_i32 s46, s46, {US}')
            A('s_max_i32 s46, s46, 0')
            A('s_lshl_b32 s46, s46, 2')
            A(f's_add_u32 s46, s46, {IDS}')
            A('v_mov_b32 v12, s46')
            def issue(Wx):
                pp = (Wx - 1) % 8
                po = (pp - Wx + 1) // 8
                for kv in range(2):
                    A(f's_add_u32 s36, s{30 + 2 * kv}, s40')
                    A(f's_addc_u32 s37, s{31 + 2 * kv}, 0')
                    A(f's_add_u32 m0, s38, {(2 * u + kv) * 4096}')
                    for jj in range(4):
                        A(f's_waitcnt vmcnt({Wx - 1})')
                        if kv * 4 + jj == pp:
                            skip = self.lab('L_ld_np')
                            if po < 0:
                                A(f's_cmp_lt_u32 s35, {-po}')
                                A(f's_cbranch_scc1 {skip}')
                                A(f's_sub_u32 s43, s35, {-po}')
                                publish('s43')
                                self.L(skip)
                            else:
                                publish('s35')
                        pol = ' nt'
                        if (kv == 1 and 'vplain' in self.exp) or (kv == 0 and 'kplain' in self.exp):
                            pol = ''
                        A(f'global_load_lds_dwordx4 v{6 + (jj & 1)}, s[36:37] offset:{jj * 1024}{pol}')
                        if self.earlyflags and kv == 1 and jj == 1:
                            A('ds_read_b32 v10, v8 offset:16')
                            A('ds_read_b32 v11, v12')
                            if self.Wend:
                                A('ds_read_b32 v13, v8 offset:48')
            if self.Wend:
                fast = self.lab('L_ld_fast')
                join = self.lab('L_ld_join')
                A('s_cmp_lg_u32 s47, 0')
                A(f's_cbranch_scc1 {fast}')
                issue(W)
                A(f's_branch {join}')
                self.L(fast)
                issue(self.Wend)
                self.L(join)
                if not self.earlyflags:
                    A('ds_read_b32 v13, v8 offset:48')
            else:
                issue(W)
            if not self.earlyflags:
                A('ds_read_b32 v10, v8 offset:16')
                A('ds_read_b32 v11, v12')
            A('s_add_u32 s41, s41, 64')
            A('s_and_b32 s41, s41, 4095')
            A('s_add_u32 s35, s35, 1')
        A('s_branch L_ld_loop')
        self.L('L_ld_end')
        A('s_waitcnt vmcnt(0)')
        A('s_or_b32 s43, s35, 0x80000000')
        publish('s43')
        A('s_waitcnt lgkmcnt(0)')
        if self.stamps:
            A('s_cmp_lg_u32 s26, 4')
            A('s_cbranch_scc1 L_ld_ns')
            self.stamp(8)
            self.flush_stamps(extra=[(9, 60), (21, 35), (22, 61)])
            self.L('L_ld_ns')
        A('s_endpgm')


    def loader_tk(self):
        A, W, US = self.A, self.W, self.US
        self.L('L_loader')
        self.pending = []
        if 'noload' in self.exp:
            A('s_endpgm')
        A('s_sub_u32 s29, s26, 4')
        A('s_lshl_b32 s40, s27, 24')
        A('s_add_u32 s30, s6, s40')
        A('s_addc_u32 s31, s7, 0')
        A('s_add_u32 s32, s8, s40')
        A('s_addc_u32 s33, s9, 0')
        A(f's_mul_i32 s44, s27, {self.rot * 64}')
        A('s_lshl_b32 s41, s28, 2')
        A('s_add_u32 s49, s41, s44')
        A(f's_add_u32 s44, s44, {US * 64}')
        A(f's_mul_i32 s38, s29, {RING}')
        A('v_lshrrev_b32 v2, 4, v1')
        A('v_and_b32 v3, 15, v1')
        A('v_lshlrev_b32 v4, 1, v2')
        A('v_xor_b32 v3, v3, v4')
        A('v_lshlrev_b32 v3, 4, v3')
        A('v_lshl_add_u32 v6, v2, 8, v3')
        A('v_xor_b32 v7, 128, v6')
        A('s_lshl_b32 s40, s29, 2')
        A(f's_add_u32 s40, s40, {FL}')
        A('v_mov_b32 v8, s40')
        A(f'v_mov_b32 v14, {FL}')
        A('v_mov_b32 v16, 1')
        A('s_mov_b32 s35, 0')
        A('s_mov_b32 s46, s29')
        A('v_mov_b32 v10, 0')
        A('v_mov_b32 v11, 0')
        A('v_mov_b32 v13, 0')
        A(f'v_mov_b32 v12, {IDS}')
        A('v_mov_b32 v18, 0')
        A('v_mov_b32 v19, 0')
        A('s_mov_b32 s60, 0')
        A('s_mov_b32 s61, 0')
        A('s_setprio 2')

        def publish(val):
            A(f'v_mov_b32 v9, {val}')
            A('s_mov_b64 exec, 1')
            A('ds_write_b32 v8, v9')
            A('s_mov_b64 exec, -1')

        self.L('L_ld_loop')
        for u in range(4):
            ok = self.lab('L_ld_ok')
            sp = self.lab('L_ld_spin')
            st = self.lab('L_ld_static')
            adr = self.lab('L_ld_adr')
            idok = self.lab('L_ld_idok')
            idsp = self.lab('L_ld_idspin')
            if self.stamps:
                for q, nn in enumerate(self.prog_pts):
                    if nn % 4 != u:
                        continue
                    l = self.lab('L_ld_st')
                    A(f's_cmp_lg_u32 s35, {nn}')
                    A(f's_cbranch_scc1 {l}')
                    self.stamp_at(16 + q, q)
                    self.L(l)
            A('s_waitcnt lgkmcnt(0)')
            A('v_readfirstlane_b32 s39, v10')
            A('v_readfirstlane_b32 s45, v11')
            A('v_readfirstlane_b32 s47, v13')
            A('s_lshr_b32 s41, s46, 2')
            A('s_and_b32 s43, s46, 3')
            A(f's_cmp_lt_u32 s41, {US}')
            A(f's_cbranch_scc1 {st}')
            if self.share:
                rdy = self.lab('L_ld_rdy')
                shsp = self.lab('L_ld_shspin')
                A('v_readfirstlane_b32 s45, v18')
                A('s_cmp_lg_u32 s45, 0')
                A(f's_cbranch_scc1 {rdy}')
                if self.stamps:
                    A('s_add_u32 s61, s61, 1')
                A('s_waitcnt vmcnt(0)')
                publish('s35')
                self.spin_begin(42)
                self.L(shsp)
                A(f'ds_read_b64 v[18:19], v12')
                A('s_waitcnt lgkmcnt(0)')
                A('v_readfirstlane_b32 s45, v18')
                A('s_cmp_lg_u32 s45, 0')
                A(f's_cbranch_scc1 {rdy}')
                self.spin_retry(42, shsp, sleep=1)
                A('s_branch L_ld_end')
                self.L(rdy)
                A('v_readfirstlane_b32 s50, v19')
                A(f's_sub_u32 s51, s46, {4 * US - 1}')
                A('s_cmp_ge_u32 s51, s45')
                A('s_cbranch_scc1 L_ld_end')
                A(f's_add_u32 s47, s51, {self.xfast}')
                A('s_cmp_ge_u32 s47, s45')
                A('s_cselect_b32 s47, 1, 0')
                A('s_add_u32 s41, s50, s51')
                A('s_add_u32 s41, s41, s44')
                A('s_sub_u32 s41, s41, 1')
                A('s_and_b32 s41, s41, 4095')
                A(f's_branch {adr}_b')
            A('s_cmp_lg_u32 s45, 0')
            A(f's_cbranch_scc1 {idok}')
            if self.stamps:
                A('s_add_u32 s61, s61, 1')
            A('s_waitcnt vmcnt(0)')
            publish('s35')
            self.spin_begin(42)
            self.L(idsp)
            A('ds_read_b32 v11, v12')
            A('s_waitcnt lgkmcnt(0)')
            A('v_readfirstlane_b32 s45, v11')
            A('s_cmp_lg_u32 s45, 0')
            A(f's_cbranch_scc1 {idok}')
            self.spin_retry(42, idsp, sleep=1)
            A('s_branch L_ld_end')
            self.L(idok)
            A('s_cmp_eq_u32 s45, -1')
            A('s_cbranch_scc1 L_ld_end')
            A('s_sub_u32 s45, s45, 1')
            A('s_lshl_b32 s41, s45, 2')
            A('s_add_u32 s41, s41, s44')
            A(f's_branch {adr}')
            self.L(st)
            A('s_lshl_b32 s41, s41, 6')
            A('s_add_u32 s41, s41, s49')
            self.L(adr)
            A('s_add_u32 s41, s41, s43')
            A('s_and_b32 s41, s41, 4095')
            self.L(f'{adr}_b')
            A('s_add_u32 s40, s39, 3')
            A('s_cmp_ge_u32 s40, s35')
            A(f's_cbranch_scc1 {ok}')
            A('s_waitcnt vmcnt(0)')
            publish('s35')
            if self.stamps:
                A('s_add_u32 s60, s60, 1')
            self.spin_begin(42)
            self.L(sp)
            A('ds_read_b32 v10, v8 offset:16')
            A('s_waitcnt lgkmcnt(0)')
            A('v_readfirstlane_b32 s39, v10')
            A('s_add_u32 s40, s39, 3')
            A('s_cmp_ge_u32 s40, s35')
            A(f's_cbranch_scc1 {ok}')
            self.spin_retry(42, sp, sleep=1)
            self.L(ok)
            A('s_lshl_b32 s40, s41, 12')

            def issue(Wx):
                pp = (Wx - 1) % 8
                po = (pp - Wx + 1) // 8
                for kv in range(2):
                    A(f's_add_u32 s36, s{30 + 2 * kv}, s40')
                    A(f's_addc_u32 s37, s{31 + 2 * kv}, 0')
                    A(f's_add_u32 m0, s38, {(2 * u + kv) * 4096}')
                    for jj in range(4):
                        A(f's_waitcnt vmcnt({Wx - 1})')
                        if kv * 4 + jj == pp:
                            skip = self.lab('L_ld_np')
                            if po < 0:
                                A(f's_cmp_lt_u32 s35, {-po}')
                                A(f's_cbranch_scc1 {skip}')
                                A(f's_sub_u32 s43, s35, {-po}')
                                publish('s43')
                                self.L(skip)
                            else:
                                publish('s35')
                        A(f'global_load_lds_dwordx4 v{6 + (jj & 1)}, s[36:37] offset:{jj * 1024} nt')
                        if kv * 4 + jj == self.tk_pos:
                            A('s_mov_b64 exec, 1')
                            A('ds_add_rtn_u32 v15, v14, v16 offset:52')
                            A('s_mov_b64 exec, -1')
                        if kv * 4 + jj == self.tk_pos + 2:
                            A('s_waitcnt lgkmcnt(0)')
                            A('v_readfirstlane_b32 s46, v15')
                            A('s_add_u32 s46, s46, 4')
                            if self.share and self.pertau:
                                for q, row in enumerate((self.C0, self.C)):
                                    l = self.lab('L_ld_ts')
                                    A(f's_cmp_lg_u32 s46, {4 * row}')
                                    A(f's_cbranch_scc1 {l}')
                                    A('s_memrealtime s[52:53]')
                                    A('s_waitcnt lgkmcnt(0)')
                                    A('v_mov_b32 v20, s52')
                                    A('s_mov_b64 exec, 1')
                                    A(f'ds_write_b32 v14, v20 offset:{232 + 4 * q}')
                                    A('s_mov_b64 exec, -1')
                                    self.L(l)
                            A('s_lshr_b32 s48, s46, 2')
                            A(f's_sub_i32 s48, s48, {US}')
                            A('s_max_i32 s48, s48, 0')
                            A(f's_min_i32 s48, s48, {CAP + 1}')
                            A('s_lshl_b32 s48, s48, 2')
                            A(f's_add_u32 s48, s48, {IDS}')
                            A('ds_read_b32 v10, v8 offset:16')
                            if self.share:
                                A('ds_read_b64 v[18:19], v12')
                            else:
                                A('v_mov_b32 v12, s48')
                                A('ds_read_b32 v11, v12')
                                A('ds_read_b32 v13, v14 offset:48')
            fast = self.lab('L_ld_fast')
            join = self.lab('L_ld_join')
            A('s_cmp_lg_u32 s47, 0')
            A(f's_cbranch_scc1 {fast}')
            if self.nstart > u:
                A(f's_cmp_lt_u32 s35, {self.nstart}')
                A(f's_cbranch_scc1 {fast}')
            issue(W)
            A(f's_branch {join}')
            self.L(fast)
            issue(self.Wend)
            self.L(join)
            A('s_add_u32 s35, s35, 1')
        A('s_branch L_ld_loop')
        self.L('L_ld_end')
        if not self.w2late and self.wo_by == 'loader' and 'nowo' not in self.exp:
            A('s_lshl_b32 s40, s27, 4')
            A('s_add_u32 s40, s40, s28')
            A('s_mul_i32 s40, s40, 18432')
            A('s_mul_i32 s41, s29, 5120')
            A('s_add_u32 s40, s40, s41')
            A('s_add_u32 s36, s12, s40')
            A('s_addc_u32 s37, s13, 0')
            A(f's_add_u32 s41, s41, {STG}')
            A('s_mov_b32 m0, s41')
            A('v_lshlrev_b32 v17, 4, v1')
            for i in range(3):
                A(f'global_load_lds_dwordx4 v17, s[36:37] offset:{1024 * i} nt')
            A('s_cmp_eq_u32 s29, 3')
            A('s_cbranch_scc1 L_ld_wo3')
            A('global_load_lds_dwordx4 v17, s[36:37] offset:3072 nt')
            A('s_add_u32 s36, s36, 4096')
            A('s_addc_u32 s37, s37, 0')
            A('s_add_u32 m0, s41, 4096')
            A('s_nop 0')
            A('global_load_lds_dwordx4 v17, s[36:37] nt')
            A('s_waitcnt vmcnt(5)')
            A('s_branch L_ld_wodn')
            self.L('L_ld_wo3')
            A('s_waitcnt vmcnt(3)')
            self.L('L_ld_wodn')
        else:
            A('s_waitcnt vmcnt(0)')
        A('s_or_b32 s43, s35, 0x80000000')
        publish('s43')
        if not self.w2late and self.wo_by == 'loader':
            A('s_waitcnt lgkmcnt(0)')
            A('s_barrier')
            A('s_waitcnt vmcnt(0)')
            A('v_mov_b32 v9, 1')
            A('s_mov_b64 exec, 1')
            A('ds_write_b32 v8, v9 offset:240')
            A('s_mov_b64 exec, -1')
        A('s_waitcnt lgkmcnt(0)')
        if self.stamps:
            A('s_cmp_lg_u32 s26, 4')
            A('s_cbranch_scc1 L_ld_ns')
            while len(self.pending) < 5:
                self.pending.append(None)
            self.stamp(8)
            self.flush_stamps(extra=[(9, 60), (21, 35), (22, 61)])
            self.L('L_ld_ns')
        A('s_endpgm')


    def poll(self, name, loads, checks, sleep, allmask='-1', sr=60, probe=True):
        A = self.A
        inv, n, sw, cnt = sr, sr + 2, sr + 3, sr + 4
        if allmask == '-1':
            A(f's_mov_b64 s[{inv}:{inv+1}], -1')
        else:
            A(f's_mov_b64 s[{inv}:{inv+1}], {allmask}')
        A(f's_mov_b32 s{sw}, 1')
        A(f's_mov_b32 s{cnt}, {SPIN}')
        self.L(f'{name}_loop')
        A(f's_bcnt1_i32_b64 s{n}, s[{inv}:{inv+1}]')
        A(f's_cmp_le_u32 s{n}, {8 if probe else 64}')
        A(f's_cselect_b32 s{sw}, 1, s{sw}')
        A(f's_mov_b64 exec, s[{inv}:{inv+1}]')
        A(f's_cmp_lg_u32 s{sw}, 0')
        A(f's_cbranch_scc1 {name}_go')
        A(f's_ff1_i32_b64 s{n}, s[{inv}:{inv+1}]')
        A(f's_lshl_b64 exec, 1, s{n}')
        self.L(f'{name}_go')
        for l in loads:
            A(l)
        A('s_waitcnt vmcnt(0)')
        acc = checks()
        A(f'v_cmp_eq_u32 vcc, 0, v{acc}')
        A(f's_andn2_b64 s[{inv}:{inv+1}], s[{inv}:{inv+1}], vcc')
        A(f's_cmp_lg_u64 vcc, 0')
        A(f's_cselect_b32 s{n}, 1, 0')
        A(f's_xor_b32 s{sw}, s{sw}, 1')
        A(f's_and_b32 s{sw}, s{sw}, s{n}')
        A('s_mov_b64 exec, -1')
        A(f's_cmp_eq_u64 s[{inv}:{inv+1}], 0')
        A(f's_cbranch_scc1 {name}_done')
        if self.fastpoll:
            A(f's_bcnt1_i32_b64 s{n}, s[{inv}:{inv+1}]')
            A(f's_cmp_le_u32 s{n}, 8')
            A(f's_cbranch_scc1 {name}_ns')
        A(f's_sleep {sleep}')
        if self.fastpoll:
            self.L(f'{name}_ns')
        A(f's_sub_u32 s{cnt}, s{cnt}, 1')
        A(f's_cmp_lg_u32 s{cnt}, 0')
        A(f's_cbranch_scc1 {name}_loop')
        self.L(f'{name}_done')


    def poll2(self, name, mk_loads, basesA, basesB, acc, tmp, sleep, sr=60, stag=4, thresh=16):
        A = self.A
        inv, n, sw, cnt = sr, sr + 2, sr + 3, sr + 4
        nl = len(basesA)
        A(f's_mov_b64 s[{inv}:{inv+1}], -1')
        A(f's_mov_b32 s{sw}, 1')
        A(f's_mov_b32 s{cnt}, {SPIN}')
        self.L(f'{name}_loop')
        A(f's_mov_b64 exec, s[{inv}:{inv+1}]')
        A(f's_cmp_lg_u32 s{sw}, 0')
        A(f's_cbranch_scc1 {name}_go')
        A(f's_ff1_i32_b64 s{n}, s[{inv}:{inv+1}]')
        A(f's_lshl_b64 exec, 1, s{n}')
        self.L(f'{name}_go')
        for l in mk_loads(basesA):
            A(l)
        A('s_waitcnt vmcnt(0)')
        self.chk3(basesA, acc, tmp)
        A(f'v_cmp_eq_u32 vcc, 0, v{acc}')
        A(f's_andn2_b64 s[{inv}:{inv+1}], s[{inv}:{inv+1}], vcc')
        A(f's_cmp_lg_u64 vcc, 0')
        A(f's_cselect_b32 s{n}, 1, 0')
        A(f's_xor_b32 s{sw}, s{sw}, 1')
        A(f's_and_b32 s{sw}, s{sw}, s{n}')
        A('s_mov_b64 exec, -1')
        A(f's_cmp_eq_u64 s[{inv}:{inv+1}], 0')
        A(f's_cbranch_scc1 {name}_done')
        A(f's_bcnt1_i32_b64 s{n}, s[{inv}:{inv+1}]')
        A(f's_cmp_le_u32 s{n}, {thresh}')
        A(f's_cbranch_scc1 {name}_p2')
        A(f's_sleep {sleep}')
        A(f's_sub_u32 s{cnt}, s{cnt}, 1')
        A(f's_cmp_lg_u32 s{cnt}, 0')
        A(f's_cbranch_scc1 {name}_loop')
        A(f's_branch {name}_done')
        self.L(f'{name}_p2')
        A(f's_mov_b64 exec, s[{inv}:{inv+1}]')
        for l in mk_loads(basesA):
            A(l)
        A(f's_sleep {stag}')
        for l in mk_loads(basesB):
            A(l)
        self.L(f'{name}_p2l')
        for X, other in ((basesA, basesB), (basesB, basesA)):
            A(f's_waitcnt vmcnt({nl})')
            self.chk3(X, acc, tmp)
            A(f'v_cmp_eq_u32 vcc, 0, v{acc}')
            A(f's_and_b64 vcc, vcc, s[{inv}:{inv+1}]')
            if X is basesB:
                A('s_mov_b64 exec, vcc')
                for bA, bB in zip(basesA, basesB):
                    for r in range(3):
                        A(f'v_mov_b32 v{bA + r}, v{bB + r}')
            A(f's_andn2_b64 s[{inv}:{inv+1}], s[{inv}:{inv+1}], vcc')
            A(f's_cmp_eq_u64 s[{inv}:{inv+1}], 0')
            A(f's_cbranch_scc1 {name}_done')
            A(f's_mov_b64 exec, s[{inv}:{inv+1}]')
            for l in mk_loads(X):
                A(l)
        A(f's_sub_u32 s{cnt}, s{cnt}, 1')
        A(f's_cmp_lg_u32 s{cnt}, 0')
        A(f's_cbranch_scc1 {name}_p2l')
        self.L(f'{name}_done')
        A('s_mov_b64 exec, -1')

    def chk3(self, groups, acc, tmp, tag=29):
        A = self.A
        for n, b in enumerate(groups):
            d = acc if n == 0 else tmp
            A(f'v_bitop3_b32 v{d}, v{b}, v{b+1}, v{b+2} bitop3:0x96')
            A(f'v_bitop3_b32 v{d}, v{d}, v{b+3}, s{tag} bitop3:0x96')
            if n:
                A(f'v_or_b32 v{acc}, v{acc}, v{tmp}')
        return acc

    def mkchk(self, b, tag=29):
        self.A(f'v_bitop3_b32 v{b+3}, v{b}, v{b+1}, v{b+2} bitop3:0x96')
        self.A(f'v_xor_b32 v{b+3}, s{tag}, v{b+3}')

    def cstamp(self, idx):
        self.stamp(idx)

    def cflush(self):
        if self.stamps:
            l = self.lab('L_nf')
            self.A('s_cmp_lg_u32 s26, 0')
            self.A(f's_cbranch_scc1 {l}')
            self.flush_stamps()
            self.L(l)

    def consumer(self):
        A = self.A
        self.pending = []
        KA, VA, FA = 2, 6, 14
        Q, O, KF, VF, S = 16, 32, 64, 80, 96
        MC, LS = 100, 101
        T = 102
        P = 118
        A(f's_mul_i32 s38, s26, {RING}')
        A('v_and_b32 v20, 15, v1')
        A('v_lshrrev_b32 v21, 4, v1')
        A('v_and_b32 v22, 7, v20')
        A('v_lshlrev_b32 v22, 1, v22')
        A('v_lshlrev_b32 v23, 8, v20')
        A('v_add_u32 v23, s38, v23')
        for i in range(4):
            A(f'v_add_u32 v24, {4 * i}, v21')
            A('v_xor_b32 v24, v24, v22')
            A(f'v_lshl_add_u32 v{KA + i}, v24, 4, v23')
        A('v_lshrrev_b32 v22, 2, v20')
        A('v_lshl_add_u32 v22, v21, 2, v22')
        A('v_and_b32 v24, 7, v22')
        A('v_lshlrev_b32 v23, 8, v22')
        A('v_add_u32 v23, s38, v23')
        A('v_and_b32 v25, 3, v20')
        A('v_lshl_add_u32 v23, v25, 3, v23')
        for m in range(8):
            A(f'v_xor_b32 v25, {m}, v24')
            A(f'v_lshl_add_u32 v{VA + m}, v25, 5, v23')
        A('s_lshl_b32 s40, s26, 2')
        A(f's_add_u32 s40, s40, {FL}')
        A(f'v_mov_b32 v{FA}, s40')
        for r in range(32):
            A(f'v_mov_b32 v{O + r}, 0')
        A(f'v_mov_b32 v{MC}, 0xff800000')
        A(f'v_mov_b32 v{LS}, 0')
        A(f's_mov_b32 s44, {LOG2E}')
        KB, VB = 128, 144
        def wait_full(done_label):
            go = self.lab('L_c_go')
            pl = self.lab('L_c_poll')
            A('s_and_b32 s40, s39, 0x7fffffff')
            A('s_cmp_gt_u32 s40, s35')
            A(f's_cbranch_scc1 {go}')
            self.spin_begin(42)
            self.L(pl)
            A(f'ds_read_b32 v{T}, v{FA}')
            A('s_waitcnt lgkmcnt(0)')
            A(f'v_readfirstlane_b32 s39, v{T}')
            A('s_and_b32 s40, s39, 0x7fffffff')
            A('s_cmp_gt_u32 s40, s35')
            A(f's_cbranch_scc1 {go}')
            A('s_cmp_lt_i32 s39, 0')
            A(f's_cbranch_scc1 {done_label}')
            self.spin_retry(42, pl, sleep=1)
            A(f's_branch {done_label}')
            self.L(go)
        def reads(u, kf, vf):
            for i in range(4):
                A(f'ds_read_b128 v[{kf + 4*i}:{kf + 4*i + 3}], v{KA + i} offset:{(2*u) * 4096}')
            for m in range(8):
                A(f'ds_read_b64_tr_b16 v[{vf + 2*m}:{vf + 2*m + 1}], v{VA + m} offset:{(2*u + 1) * 4096}')
            A('s_add_u32 s35, s35, 1')
        def qk(kf):
            for i in range(4):
                c = '0' if i == 0 else f'v[{S}:{S+3}]'
                A(f'v_mfma_f32_16x16x32_bf16 v[{S}:{S+3}], v[{kf + 4*i}:{kf + 4*i + 3}], v[{Q + 4*i}:{Q + 4*i + 3}], {c}')
        def free():
            A(f'v_mov_b32 v{T}, s35')
            A('s_waitcnt lgkmcnt(0)')
            A('s_mov_b64 exec, 1')
            A(f'ds_write_b32 v{FA}, v{T} offset:16')
            A('s_mov_b64 exec, -1')
        def softmax_pv(vf):
            nr = self.lab('L_c_nr')
            A(f'v_cvt_pk_bf16_f32 v{T}, v{S}, v{S+1}')
            A(f'v_cvt_pk_bf16_f32 v{T+1}, v{S+2}, v{S+3}')
            A(f'v_lshlrev_b32 v{T+2}, 16, v{T}')
            A(f'v_and_b32 v{T+3}, 0xffff0000, v{T}')
            A(f'v_lshlrev_b32 v{T+4}, 16, v{T+1}')
            A(f'v_and_b32 v{T+5}, 0xffff0000, v{T+1}')
            for r in range(4):
                A(f'v_mul_f32 v{T+2+r}, {SCALE:#x}, v{T+2+r}')
            A(f'v_cvt_pk_bf16_f32 v{T}, v{T+2}, v{T+3}')
            A(f'v_cvt_pk_bf16_f32 v{T+1}, v{T+4}, v{T+5}')
            A(f'v_lshlrev_b32 v{T+2}, 16, v{T}')
            A(f'v_and_b32 v{T+3}, 0xffff0000, v{T}')
            A(f'v_lshlrev_b32 v{T+4}, 16, v{T+1}')
            A(f'v_and_b32 v{T+5}, 0xffff0000, v{T+1}')
            A(f'v_max3_f32 v{T+6}, v{T+2}, v{T+3}, v{T+4}')
            A(f'v_max_f32 v{T+6}, v{T+6}, v{T+5}')
            A(f'v_mul_f32 v{T+6}, s44, v{T+6}')
            A(f'v_cmp_gt_f32 vcc, v{T+6}, v{MC}')
            A(f's_cbranch_vccz {nr}')
            self.xrow('v_max_f32', T + 6, T + 7)
            A(f'v_max_f32 v{T+6}, v{T+6}, v{MC}')
            A(f'v_sub_f32 v{T+7}, v{MC}, v{T+6}')
            A(f'v_exp_f32 v{T+7}, v{T+7}')
            A(f'v_mov_b32 v{MC}, v{T+6}')
            A(f'v_mul_f32 v{LS}, v{LS}, v{T+7}')
            for r in range(32):
                A(f'v_mul_f32 v{O + r}, v{O + r}, v{T+7}')
            self.L(nr)
            for r in range(4):
                A(f'v_fma_f32 v{T+2+r}, v{T+2+r}, s44, -v{MC}')
            for r in range(4):
                A(f'v_exp_f32 v{T+2+r}, v{T+2+r}')
            A('s_nop 0')
            A(f'v_cvt_pk_bf16_f32 v{P}, v{T+2}, v{T+3}')
            A(f'v_cvt_pk_bf16_f32 v{P+1}, v{T+4}, v{T+5}')
            A(f'v_add_f32 v{T+2}, v{T+2}, v{T+3}')
            A(f'v_add_f32 v{T+4}, v{T+4}, v{T+5}')
            A(f'v_add_f32 v{LS}, v{LS}, v{T+2}')
            A(f'v_add_f32 v{LS}, v{LS}, v{T+4}')
            for m in range(8):
                A(f'v_mfma_f32_16x16x16_bf16 v[{O + 4*m}:{O + 4*m + 3}], v[{vf + 2*m}:{vf + 2*m + 1}], v[{P}:{P+1}], v[{O + 4*m}:{O + 4*m + 3}]')

        A('v_lshlrev_b32 v123, 9, v20')
        A('v_lshl_add_u32 v123, v21, 4, v123')
        A('s_lshl_b32 s40, s26, 10')
        A(f's_add_u32 s40, s40, {OC}')
        A('v_add_u32 v123, s40, v123')
        A('s_lshl_b32 s40, s26, 4')
        A(f's_add_u32 s40, s40, {OCML}')
        A('v_lshlrev_b32 v124, 3, v20')
        A('v_add_u32 v124, s40, v124')
        A('s_lshl_b32 s40, s26, 6')
        A('v_add_u32 v122, s40, v1')
        A('v_lshrrev_b32 v125, 3, v122')
        A('v_lshlrev_b32 v125, 6, v125')
        A('v_and_b32 v122, 7, v122')
        A('v_mul_u32_u24 v122, 12, v122')
        A('v_add_u32 v125, v125, v122')
        A(f'v_add_u32 v125, {OC}, v125')
        A('s_mov_b32 s35, 0')
        A('s_mov_b32 s39, 0')
        A(f'v_and_b32 v15, 1, v20')
        A(f'v_lshlrev_b32 v15, 8, v15')
        A(f'v_lshl_add_u32 v15, v21, 4, v15')
        A(f'v_add_u32 v15, {QL}, v15')
        if self.preread and 'noload' not in self.exp:
            wait_full('L_c_done')
            reads(0, KF, VF)
            free()
            wait_full('L_c_done')
            reads(1, KB, VB)
            free()
        A(f'v_mov_b32 v{T}, {FL}')
        self.spin_begin(42)
        self.L('L_c_qwait')
        A(f'ds_read_b32 v{T+2}, v{T} offset:32')
        A('s_waitcnt lgkmcnt(0)')
        A(f'v_readfirstlane_b32 s40, v{T+2}')
        A('s_cmp_lg_u32 s40, 0')
        A('s_cbranch_scc1 L_c_qok')
        if 'noq' in self.exp:
            A('s_branch L_c_qok')
        self.spin_retry(42, 'L_c_qwait', sleep=2)
        self.L('L_c_qok')
        for i in range(4):
            A(f'ds_read_b128 v[{Q + 4*i}:{Q + 4*i + 3}], v15 offset:{64 * i}')
        A('s_waitcnt lgkmcnt(0)')
        self.cstamp(1)
        if 'noload' in self.exp:
            self.cflush()
            A('s_endpgm')
        if self.preread:
            qk(KF)
            A('s_nop 7')
            softmax_pv(VF)
            qk(KB)
            A('s_nop 7')
            softmax_pv(VB)
            A('s_branch L_c_u2')
        self.L('L_c_loop')
        for u in range(4):
            if u == 2:
                self.L('L_c_u2')
            wait_full('L_c_done')
            reads(u, KF, VF)
            A('s_waitcnt lgkmcnt(8)')
            qk(KF)
            free()
            A('s_nop 3')
            softmax_pv(VF)
        A('s_branch L_c_loop')
        self.L('L_c_done')

        self.cstamp(2)
        if 'notail' in self.exp:
            self.cflush()
            A('s_endpgm')
        A('s_mov_b32 s46, 0x00030003')
        A('s_mov_b32 s47, 0x00030003')
        A('s_mov_b64 exec, s[46:47]')
        for m in range(8):
            A(f'ds_write_b128 v123, v[{O + 4*m}:{O + 4*m + 3}] offset:{64 * m}')
        A('s_mov_b64 exec, -1')
        self.xrow('v_add_f32', LS, T)
        A('s_mov_b64 exec, 3')
        A(f'ds_write_b64 v124, v[{MC}:{LS}]')
        A('s_mov_b64 exec, -1')
        A(f'v_mov_b32 v{T+3}, {FL}')
        A(f'ds_read_b32 v68, v{T+3} offset:36')
        A('s_lshl_b32 s51, s27, 4')
        A('s_add_u32 s51, s51, s28')
        A('s_waitcnt lgkmcnt(0)')
        A('s_barrier')
        A('v_readfirstlane_b32 s29, v68')
        A('s_cmp_ge_u32 s26, 2')
        A('s_cbranch_scc1 L_c_nopub')
        A('s_lshl_b32 s45, s26, 3')
        A(f's_add_u32 s45, s45, {OCML}')
        A(f'v_mov_b32 v{T+2}, s45')
        for k in range(4):
            A(f'ds_read_b64 v[{70 + 2*k}:{71 + 2*k}], v{T+2} offset:{16 * k}')
        for k in range(4):
            for i in range(3):
                A(f'ds_read_b32 v{32 + 4*i + k}, v125 offset:{1024 * k + 4 * i}')
        A('s_lshl_b32 s45, s51, 11')
        A(f's_add_u32 s45, s45, {WS_P}')
        A('s_add_u32 s48, s24, s45')
        A('s_addc_u32 s49, s25, 0')
        A('s_lshl_b32 s40, s26, 10')
        A(f'v_lshlrev_b32 v{T+3}, 4, v1')
        A(f'v_add_u32 v{T+3}, s40, v{T+3}')
        A('s_mov_b32 s46, 0x20202020')
        A('s_mov_b32 s47, 0x20202020')
        A('s_waitcnt lgkmcnt(12)')
        A('v_max3_f32 v80, v70, v72, v74')
        A('v_max_f32 v80, v80, v76')
        for k in range(4):
            A(f'v_sub_f32 v{82 + k}, v{70 + 2*k}, v80')
        for k in range(4):
            A(f'v_exp_f32 v{82 + k}, v{82 + k}')
        A('s_nop 0')
        A('v_mul_f32 v81, v71, v82')
        for k in range(1, 4):
            A(f'v_fmac_f32 v81, v{71 + 2*k}, v{82 + k}')
        A('s_waitcnt lgkmcnt(0)')
        for i in range(3):
            A(f'v_mul_f32 v{88 + i}, v{32 + 4*i}, v82')
        for k in range(1, 4):
            for i in range(3):
                A(f'v_fmac_f32 v{88 + i}, v{32 + 4*i + k}, v{82 + k}')
        A('v_cndmask_b32 v89, v89, v80, s[46:47]')
        A('v_cndmask_b32 v90, v90, v81, s[46:47]')
        self.mkchk(88)
        A(f'global_store_dwordx4 v{T+3}, v[88:91], s[48:49] sc1')
        A('s_branch L_c_pubdone')
        self.L('L_c_nopub')
        if self.w2late:
            A(f'v_lshlrev_b32 v{T}, 4, v1')
            A('s_sub_u32 s45, s26, 2')
            A('s_mul_i32 s40, s51, 20736')
            A('s_mul_i32 s58, s45, 11264')
            A('s_add_u32 s40, s40, s58')
            A('s_add_u32 s48, s18, s40')
            A('s_addc_u32 s49, s19, 0')
            A(f's_add_u32 s58, s58, {W2S}')
            for i in range(11):
                if i % 4 == 0:
                    A(f's_add_u32 m0, s58, {1024 * i}')
                    A('s_nop 0')
                if i == 9:
                    A('s_cmp_eq_u32 s45, 0')
                    A('s_cselect_b64 s[46:47], -1, 0xffff')
                    A('s_mov_b64 exec, s[46:47]')
                if i == 10:
                    A('s_mov_b64 exec, -1')
                    A('s_cmp_lg_u32 s45, 0')
                    A('s_cbranch_scc1 L_c_w2x')
                A(f'global_load_lds_dwordx4 v{T}, s[48:49] offset:{1024 * (i % 4)} nt')
                if i % 4 == 3:
                    A('s_add_u32 s48, s48, 4096')
                    A('s_addc_u32 s49, s49, 0')
            self.L('L_c_w2x')
            A('s_mul_i32 s40, s51, 18432')
            A('s_mul_i32 s58, s45, 9216')
            A('s_add_u32 s40, s40, s58')
            A('s_add_u32 s48, s12, s40')
            A('s_addc_u32 s49, s13, 0')
            A(f's_add_u32 s58, s58, {STG}')
            for i in range(9):
                if i % 4 == 0:
                    A(f's_add_u32 m0, s58, {1024 * i}')
                    A('s_nop 0')
                A(f'global_load_lds_dwordx4 v{T}, s[48:49] offset:{1024 * (i % 4)} nt')
                if i % 4 == 3:
                    A('s_add_u32 s48, s48, 4096')
                    A('s_addc_u32 s49, s49, 0')
            A('s_lshl_b32 s45, s26, 2')
            A(f's_add_u32 s45, s45, {FL + 32}')
            A(f'v_mov_b32 v{T+1}, s45')
            A(f'v_mov_b32 v{T+2}, 1')
            A('s_waitcnt vmcnt(9)')
            A('s_mov_b64 exec, 1')
            A(f'ds_write_b32 v{T+1}, v{T+2} offset:16')
            A('s_mov_b64 exec, -1')
        if not self.w2late and self.wo_by == 'w23':
            A(f'v_lshlrev_b32 v{T}, 4, v1')
            A('s_sub_u32 s45, s26, 2')
            A('s_mul_i32 s40, s51, 18432')
            A('s_mul_i32 s58, s45, 9216')
            A('s_add_u32 s40, s40, s58')
            A('s_add_u32 s48, s12, s40')
            A('s_addc_u32 s49, s13, 0')
            A(f's_add_u32 s58, s58, {STG}')
            for i in range(9):
                if i % 4 == 0:
                    A(f's_add_u32 m0, s58, {1024 * i}')
                    A('s_nop 0')
                A(f'global_load_lds_dwordx4 v{T}, s[48:49] offset:{1024 * (i % 4)} nt')
                if i % 4 == 3:
                    A('s_add_u32 s48, s48, 4096')
                    A('s_addc_u32 s49, s49, 0')
            A('s_lshl_b32 s45, s26, 2')
            A(f's_add_u32 s45, s45, {FL + 32}')
            A(f'v_mov_b32 v{T+1}, s45')
            A(f'v_mov_b32 v{T+2}, 1')
            A('s_waitcnt vmcnt(0)')
            A('s_mov_b64 exec, 1')
            A(f'ds_write_b32 v{T+1}, v{T+2}')
            A('s_mov_b64 exec, -1')
        self.L('L_c_pubdone')
        self.cstamp(3)
        A(f'v_and_b32 v{T}, 15, v1')
        A(f'v_lshrrev_b32 v{T+1}, 4, v1')
        A(f'v_lshrrev_b32 v{T+3}, 2, v{T}')
        A(f'v_and_b32 v{T+4}, 3, v{T}')
        A(f'v_lshl_add_u32 v{T+5}, v{T+1}, 3, v{T+3}')
        A(f'v_mul_u32_u24 v{T+5}, 1152, v{T+5}')
        A(f'v_lshl_add_u32 v{T+5}, v{T+4}, 3, v{T+5}')
        A('s_mul_i32 s45, s26, 288')
        A(f'v_add_u32 v{T+5}, s45, v{T+5}')
        A(f'v_lshl_add_u32 v{T+3}, v{T+1}, 2, v{T+3}')
        A(f'v_mul_u32_u24 v{T+3}, 1152, v{T+3}')
        A(f'v_lshl_add_u32 v{T+3}, v{T+4}, 3, v{T+3}')
        A(f's_add_u32 s45, s45, {STG}')
        A(f'v_add_u32 v{T+3}, s45, v{T+3}')
        A(f'v_lshlrev_b32 v{T+6}, 4, v{T+1}')
        A(f'v_add_u32 v{T+6}, {AB}, v{T+6}')
        A(f'ds_read_b128 v[68:71], v{T+6}')
        A(f'v_lshlrev_b32 v{T+2}, 3, v{T+1}')
        A(f'v_add_u32 v{T+2}, {OB}, v{T+2}')
        A('s_mul_i32 s50, s97, 0x5556')
        A('s_lshr_b32 s50, s50, 18')
        A('s_mul_i32 s58, s50, 12')
        A('s_sub_u32 s58, s97, s58')
        A('s_lshr_b32 s59, s58, 2')
        A('s_and_b32 s58, s58, 3')
        A('s_mul_i32 s50, s50, 9')
        A('s_mul_i32 s59, s59, 3')
        A('s_add_u32 s50, s50, s59')
        A('s_lshl_b32 s50, s50, 4')
        A('s_lshl_b32 s58, s58, 2')
        A('s_add_u32 s50, s50, s58')
        A('v_lshrrev_b32 v121, 2, v1')
        A('v_and_b32 v122, 3, v1')
        A('v_lshl_add_u32 v121, v121, 4, v122')
        A('v_add_u32 v121, s50, v121')
        A('v_lshlrev_b32 v121, 1, v121')
        A('s_mov_b32 s52, s4')
        A('s_mov_b32 s53, s5')
        A('s_mov_b32 s54, 1152')
        A('s_mov_b32 s55, 0x00020000')
        A('buffer_load_ushort v120, v121, s[52:55], 0 offen')
        def wait_flags(off, lab):
            A(f'v_mov_b32 v{T}, {FL}')
            self.spin_begin(42)
            self.L(lab)
            A(f'ds_read_b64 v[{T+8}:{T+9}], v{T} offset:{off}')
            A('s_waitcnt lgkmcnt(0)')
            A(f'v_and_b32 v{T+8}, v{T+8}, v{T+9}')
            A('s_nop 0')
            A(f'v_readfirstlane_b32 s40, v{T+8}')
            A('s_cmp_lg_u32 s40, 0')
            A(f's_cbranch_scc1 {lab}_ok')
            self.spin_retry(42, lab, sleep=1)
            self.L(f'{lab}_ok')
        if self.w2late:
            wait_flags(56, 'L_c_w2wait')
            for t in range(9):
                A(f'ds_read_b64_tr_b16 v[{32 + 4*t}:{33 + 4*t}], v{T+5} offset:{32 * t}')
                A(f'ds_read_b64_tr_b16 v[{34 + 4*t}:{35 + 4*t}], v{T+5} offset:{32 * t + 4608}')
                if t == 6:
                    A('s_waitcnt lgkmcnt(8)')
            for r in range(4):
                A(f'v_mov_b32 v{80 + r}, 0')
            A('s_waitcnt lgkmcnt(0)')
            for t in range(9):
                row = 4 * (t // 3) + t % 3
                A(f's_mov_b32 s46, {0x00010001 << row:#x}')
                A(f's_mov_b32 s47, {0x00010001 << row:#x}')
                m = 72 + 4 * (t & 1)
                for r in range(4):
                    A(f'v_cndmask_b32 v{m + r}, 0, v{68 + r}, s[46:47]')
                A('s_nop 1')
                A(f'v_mfma_f32_16x16x32_bf16 v[80:83], v[{m}:{m+3}], v[{32 + 4*t}:{35 + 4*t}], v[80:83]')
            A('s_mul_i32 s45, s51, 3072')
            A(f's_add_u32 s45, s45, {WS_Y2}')
            A('s_add_u32 s48, s24, s45')
            A('s_addc_u32 s49, s25, 0')
            A('s_mul_i32 s45, s26, 768')
            A(f'v_lshlrev_b32 v{T+7}, 4, v1')
            A(f'v_add_u32 v{T+7}, s45, v{T+7}')
            A('s_nop 3')
            self.mkchk(80)
            A('s_mov_b32 s46, -1')
            A('s_mov_b32 s47, 0xffff')
            A('s_mov_b64 exec, s[46:47]')
            A(f'global_store_dwordx4 v{T+7}, v[80:83], s[48:49] sc1')
            A('s_mov_b64 exec, -1')
            A('s_cmp_lt_u32 s26, 2')
            A('s_cbranch_scc1 L_c_nowo')
            A('s_lshl_b32 s45, s26, 2')
            A(f's_add_u32 s45, s45, {FL + 32}')
            A(f'v_mov_b32 v{T+8}, s45')
            A(f'v_mov_b32 v{T+9}, 1')
            A('s_waitcnt vmcnt(2)')
            A('s_mov_b64 exec, 1')
            A(f'ds_write_b32 v{T+8}, v{T+9}')
            A('s_mov_b64 exec, -1')
            self.L('L_c_nowo')
        else:
            A('s_mul_i32 s45, s26, 768')
            A(f'v_lshlrev_b32 v{T+7}, 4, v1')
            A(f'v_add_u32 v{T+7}, s45, v{T+7}')
        if self.w2late or self.wo_by == 'w23':
            wait_flags(40, 'L_c_wowait')
        else:
            A(f'v_mov_b32 v{T}, {FL}')
            self.spin_begin(42)
            self.L('L_c_wowait')
            A(f'ds_read_b128 v[{T+8}:{T+11}], v{T} offset:240')
            A('s_waitcnt lgkmcnt(0)')
            A(f'v_and_b32 v{T+8}, v{T+8}, v{T+9}')
            A(f'v_and_b32 v{T+10}, v{T+10}, v{T+11}')
            A(f'v_and_b32 v{T+8}, v{T+8}, v{T+10}')
            A('s_nop 0')
            A(f'v_readfirstlane_b32 s40, v{T+8}')
            A('s_cmp_lg_u32 s40, 0')
            A('s_cbranch_scc1 L_c_wowait_ok')
            self.spin_retry(42, 'L_c_wowait', sleep=1)
            self.L('L_c_wowait_ok')
        for t in range(9):
            A(f'ds_read_b64_tr_b16 v[{68 + 2*t}:{69 + 2*t}], v{T+3} offset:{32 * t}')
        for r in range(4):
            A(f'v_mov_b32 v{96 + r}, 0')
        A('s_mul_i32 s45, s51, 3072')
        A(f's_add_u32 s45, s45, {WS_Y}')
        A('s_add_u32 s48, s24, s45')
        A('s_addc_u32 s49, s25, 0')
        A('s_waitcnt lgkmcnt(0)')
        A('s_barrier')
        self.cstamp(4)
        A(f'ds_read_b64 v[64:65], v{T+2}')
        A('s_mov_b32 s46, 0x00010001')
        A('s_mov_b32 s47, 0x00010001')
        A('s_waitcnt lgkmcnt(0)')
        for t in range(9):
            row = 4 * (t // 3) + t % 3
            A(f'v_cndmask_b32 v{88 + 2*(t&1)}, 0, v64, s[46:47]')
            A(f'v_cndmask_b32 v{89 + 2*(t&1)}, 0, v65, s[46:47]')
            if t < 8:
                nrow = 4 * ((t + 1) // 3) + (t + 1) % 3
                A(f's_lshl_b64 s[46:47], s[46:47], {nrow - row}')
            else:
                A('s_nop 0')
            A('s_nop 0')
            A(f'v_mfma_f32_16x16x16_bf16 v[96:99], v[{88 + 2*(t&1)}:{89 + 2*(t&1)}], v[{68 + 2*t}:{69 + 2*t}], v[96:99]')
        A('s_mov_b32 s46, -1')
        A('s_mov_b32 s47, 0xffff')
        A('s_nop 5')
        self.mkchk(96)
        A('s_mov_b64 exec, s[46:47]')
        A(f'global_store_dwordx4 v{T+7}, v[96:99], s[48:49] sc1')
        A('s_mov_b64 exec, -1')
        self.cstamp(5)
        A(f's_cmp_lt_u32 s97, {NRED}')
        A('s_cbranch_scc1 L_c_red')
        self.cflush()
        A('s_endpgm')
        self.L('L_c_red')
        A('s_lshl_b32 s45, s26, 6')
        A(f'v_lshrrev_b32 v{T}, 2, v1')
        A(f'v_add_u32 v{T}, s45, v{T}')
        A(f'v_mul_u32_u24 v{T}, 3072, v{T}')
        A(f'v_and_b32 v{T+1}, 3, v1')
        A(f'v_lshl_add_u32 v{T}, v{T+1}, 4, v{T}')
        for i in range(1, 4):
            A(f'v_add_u32 v{T+i}, {3072 * 16 * i}, v{T}')
        A('s_lshl_b32 s45, s97, 6')
        A(f's_add_u32 s58, s45, {WS_Y}')
        A('s_add_u32 s48, s24, s58')
        A('s_addc_u32 s49, s25, 0')
        A(f's_add_u32 s58, s45, {WS_Y2}')
        A('s_add_u32 s56, s24, s58')
        A('s_addc_u32 s57, s25, 0')
        if self.w2late:
            def dl(bs):
                return [f'global_load_dwordx4 v[{b}:{b+3}], v{T + (i % 4)}, s[{48 if i < 4 else 56}:{49 if i < 4 else 57}] sc1' for i, b in enumerate(bs)]
            self.poll2('L_c_d', dl, [64, 68, 72, 76, 32, 36, 40, 44], [80, 84, 88, 92, 48, 52, 56, 60], 96, 97,
                       sleep=self.tsleep or 3, stag=self.stag, thresh=self.thresh)
            self.cstamp(24)
            S1, S2 = [106, 107, 108], [109, 110, 111]
            for r in range(3):
                A(f'v_add_f32 v{S1[r]}, v{64 + r}, v{68 + r}')
                A(f'v_add_f32 v{S2[r]}, v{32 + r}, v{36 + r}')
                A(f'v_add_f32 v{112 + r}, v{72 + r}, v{76 + r}')
                A(f'v_add_f32 v{115 + r}, v{40 + r}, v{44 + r}')
            for r in range(3):
                A(f'v_add_f32 v{S1[r]}, v{S1[r]}, v{112 + r}')
                A(f'v_add_f32 v{S2[r]}, v{S2[r]}, v{115 + r}')
            self.mrowred('v_add_f32', S1 + S2, (4, 8))
            self.mxrow('v_add_f32', S1 + S2, [112, 113, 114, 115, 116, 117])
            A('v_mov_b32 v112, v109')
            A('v_mov_b32 v113, v110')
            A('v_mov_b32 v114, v111')
            A('v_mov_b32 v104, v106')
            A('v_mov_b32 v105, v107')
            A('v_mov_b32 v106, v108')
            A('s_lshl_b32 s45, s26, 7')
            A(f's_add_u32 s45, s45, {RED}')
            A('v_lshlrev_b32 v118, 5, v1')
            A('v_add_u32 v118, s45, v118')
            A('s_mov_b64 exec, 15')
            A('ds_write_b128 v118, v[104:107]')
            A('ds_write_b128 v118, v[112:115] offset:16')
            A('s_mov_b64 exec, -1')
            A('v_lshrrev_b32 v116, 2, v1')
            A('v_and_b32 v117, 3, v1')
            A('v_lshlrev_b32 v116, 2, v116')
            A('v_lshl_add_u32 v116, v117, 5, v116')
            A(f'v_add_u32 v116, {RED}, v116')
            A('s_mov_b32 s52, s20')
            A('s_mov_b32 s53, s21')
            A('s_waitcnt lgkmcnt(0)')
            self.cstamp(25)
            A('s_barrier')
            self.cstamp(26)
            A('s_cmp_lg_u32 s26, 0')
            A('s_cbranch_scc1 L_end')
            for k in range(4):
                A(f'ds_read_b32 v{100 + k}, v116 offset:{128 * k}')
            for k in range(4):
                A(f'ds_read_b32 v{104 + k}, v116 offset:{128 * k + 16}')
            A('v_lshlrev_b32 v111, 16, v120')
            A('s_waitcnt lgkmcnt(0)')
            A('v_add_f32 v100, v100, v101')
            A('v_add_f32 v104, v104, v105')
            A('v_add_f32 v102, v102, v103')
            A('v_add_f32 v106, v106, v107')
            A('v_add_f32 v100, v100, v102')
            A('v_add_f32 v104, v104, v106')
            A('v_cvt_pk_bf16_f32 v100, v100, v104')
            A('v_lshlrev_b32 v101, 16, v100')
            A('v_and_b32 v104, 0xffff0000, v100')
            A('v_add_f32 v101, v111, v101')
            self.bf16r(101, 101, 102)
            A('v_add_f32 v101, v101, v104')
            A('v_cvt_pk_bf16_f32 v101, v101, v101')
            A('s_mov_b64 exec, 0xfff')
            A('buffer_store_short v101, v121, s[52:55], 0 offen')
            A('s_mov_b64 exec, -1')
        else:
            self.poll2('L_c_d', lambda bs: [f'global_load_dwordx4 v[{b}:{b+3}], v{T+i}, s[48:49] sc1' for i, b in enumerate(bs)],
                       [64, 68, 72, 76], [80, 84, 88, 92], 96, 97, sleep=self.tsleep or 3, stag=self.stag, thresh=self.thresh)
            self.cstamp(24)
            S1 = [106, 107, 108]
            for r in range(3):
                A(f'v_add_f32 v{S1[r]}, v{64 + r}, v{68 + r}')
                A(f'v_add_f32 v{112 + r}, v{72 + r}, v{76 + r}')
            for r in range(3):
                A(f'v_add_f32 v{S1[r]}, v{S1[r]}, v{112 + r}')
            self.mrowred('v_add_f32', S1, (4, 8))
            self.mxrow('v_add_f32', S1, [112, 113, 114])
            A('s_lshl_b32 s45, s26, 6')
            A(f's_add_u32 s45, s45, {RED}')
            A('v_lshlrev_b32 v118, 4, v1')
            A('v_add_u32 v118, s45, v118')
            A('v_mov_b32 v104, v106')
            A('v_mov_b32 v105, v107')
            A('v_mov_b32 v106, v108')
            A('s_mov_b64 exec, 15')
            A('ds_write_b128 v118, v[104:107]')
            A('s_mov_b64 exec, -1')
            A('v_lshrrev_b32 v116, 2, v1')
            A('v_and_b32 v117, 3, v1')
            A('v_lshlrev_b32 v116, 2, v116')
            A('v_lshl_add_u32 v116, v117, 4, v116')
            A(f'v_add_u32 v117, {FFNR}, v116')
            A(f'v_add_u32 v116, {RED}, v116')
            A('ds_read_b32 v119, v117')
            A('s_mov_b32 s52, s20')
            A('s_mov_b32 s53, s21')
            A('s_waitcnt lgkmcnt(0)')
            self.cstamp(25)
            A('s_barrier')
            self.cstamp(26)
            A('s_cmp_lg_u32 s26, 0')
            A('s_cbranch_scc1 L_end')
            for k in range(4):
                A(f'ds_read_b32 v{100 + k}, v116 offset:{64 * k}')
            A('v_lshlrev_b32 v111, 16, v120')
            A('s_waitcnt lgkmcnt(0)')
            A('v_add_f32 v100, v100, v101')
            A('v_add_f32 v102, v102, v103')
            A('v_add_f32 v100, v100, v102')
            A('v_cvt_pk_bf16_f32 v100, v100, v119')
            A('v_lshlrev_b32 v101, 16, v100')
            A('v_and_b32 v104, 0xffff0000, v100')
            A('v_add_f32 v101, v111, v101')
            self.bf16r(101, 101, 102)
            A('v_add_f32 v101, v101, v104')
            A('v_cvt_pk_bf16_f32 v101, v101, v101')
            A('s_mov_b64 exec, 0xfff')
            A('buffer_store_short v101, v121, s[52:55], 0 offen')
            A('s_mov_b64 exec, -1')
        self.stamp(6)
        self.flush_stamps()
        A('s_cmp_lg_u32 s97, 0')
        A('s_cbranch_scc1 L_end')
        A('v_mov_b32 v106, s29')
        A('v_mov_b32 v107, 0')
        A('s_mov_b64 exec, 1')
        A('global_store_dword v107, v106, s[24:25] sc1')
        A('s_branch L_end')

    def gemv64(self, acc, first, xoff_sreg):
        A = self.A
        NB = 5
        A(f'v_add_u32 v21, s{xoff_sreg}, v20')
        def rd(s):
            b = 40 + 10 * (s % NB)
            A(f'ds_read_b64 v[{b}:{b+1}], v21 offset:{32 * s}')
            for t in range(4):
                A(f'ds_read_b64_tr_b16 v[{b+2+2*t}:{b+3+2*t}], v{16 + t} offset:{2048 * s}')
        NP = 3
        for s in range(NP):
            rd(s)
        for s in range(9):
            left = min(9, s + NP) - s - 1
            A(f's_waitcnt lgkmcnt({5 * left})')
            b = 40 + 10 * (s % NB)
            for t in range(4):
                c = '0' if (first and s == 0) else f'v[{acc + 4*t}:{acc + 4*t + 3}]'
                A(f'v_mfma_f32_16x16x16_bf16 v[{acc + 4*t}:{acc + 4*t + 3}], v[{b}:{b+1}], v[{b+2+2*t}:{b+3+2*t}], {c}')
            if s + NP < 9:
                rd(s + NP)

    def dma_cols(self, sbase, pitch, voff, win=None):
        A = self.A
        A(f's_mov_b32 s36, s{sbase}')
        A(f's_mov_b32 s37, s{sbase+1}')
        for s in range(18):
            A(f's_mov_b32 m0, {STG + 1024 * s}')
            if win:
                A(f's_waitcnt vmcnt({win - 1})')
            else:
                A('s_nop 0')
            A(f'global_load_lds_dwordx4 v{voff}, s[36:37]' + ('' if 'colplain' in self.exp else ' nt'))
            if s < 17:
                A(f's_add_u32 s36, s36, {8 * pitch}')
                A('s_addc_u32 s37, s37, 0')

    def dma_rows(self, sbase, win=None):
        A = self.A
        A(f's_mov_b32 s36, s{sbase}')
        A(f's_mov_b32 s37, s{sbase+1}')
        for s in range(18):
            if s % 4 == 0:
                A(f's_mov_b32 m0, {STG + 1024 * s}')
                A('s_nop 0')
            if win:
                A(f's_waitcnt vmcnt({win - 1})')
            A(f'global_load_lds_dwordx4 v23, s[36:37] offset:{1024 * (s % 4)}' + ('' if 'rowplain' in self.exp else ' nt'))
            if s % 4 == 3:
                A('s_add_u32 s36, s36, 4096')
                A('s_addc_u32 s37, s37, 0')

    def tail_warm(self):
        A = self.A
        if 'nowarm' in self.exp:
            return
        if True:
            for i in range(2):
                A(f'global_load_dwordx4 v[{40 + 4*i}:{43 + 4*i}], v{34 + i}, s[48:49] sc1')
            A(f's_cmp_ge_u32 s97, {NRED}')
            A('s_cbranch_scc1 L_h_wdone')
            A('s_lshl_b32 s40, s97, 6')
            A(f's_add_u32 s40, s40, {WS_Y}')
            A('s_add_u32 s56, s24, s40')
            A('s_addc_u32 s57, s25, 0')
            A('v_lshrrev_b32 v38, 2, v1')
            A('v_mul_u32_u24 v38, 3072, v38')
            A('v_and_b32 v39, 3, v1')
            A('v_lshl_add_u32 v38, v39, 4, v38')
            A(f's_add_u32 s40, s40, {WS_Y2 - WS_Y}')
            A('s_add_u32 s50, s24, s40')
            A('s_addc_u32 s51, s25, 0')
            for i in range(16):
                A(f'global_load_dwordx4 v[{48 + 4*(i%4)}:{51 + 4*(i%4)}], v38, s[56:57] sc1')
                if self.w2late:
                    A(f'global_load_dwordx4 v[{64 + 4*(i%4)}:{67 + 4*(i%4)}], v38, s[50:51] sc1')
                A(f'v_add_u32 v38, {3072 * 16}, v38')
            self.L('L_h_wdone')
            A('s_waitcnt vmcnt(0)')

    def helper(self):
        A = self.A
        FW = self.ffn_win
        self.L('L_helper')
        self.pending = []
        A('s_memrealtime s[98:99]')
        A('s_setprio 3')
        self.stamp(0)
        if 'nohelper' in self.exp:
            self.flush_stamps()
            A('s_endpgm')
        A('v_mov_b32 v2, 0')
        A('global_load_dword v3, v2, s[24:25] sc1')
        A('s_and_b32 s40, s2, 15')
        A('s_cmp_lg_u32 s40, 0')
        A('s_cbranch_scc1 L_h_nozero')
        A('s_lshr_b32 s40, s2, 4')
        A(f's_mul_i32 s40, s40, {self.cstride}')
        A(f's_add_u32 s40, s40, {WS_CNT}')
        A('v_mov_b32 v5, s40')
        A('s_mov_b64 exec, 1')
        A('global_store_dword v5, v2, s[24:25] sc1')
        A('s_mov_b64 exec, -1')
        self.L('L_h_nozero')
        A('s_mov_b32 s52, s4')
        A('s_mov_b32 s53, s5')
        A('s_mov_b32 s54, 1152')
        A('s_mov_b32 s55, 0x00020000')
        A('v_lshlrev_b32 v4, 1, v1')
        for k in range(9):
            A(f'buffer_load_ushort v{30 + k}, v4, s[52:55], 0 offen offset:{128 * k}')
        A('s_lshr_b32 s50, s2, 2')
        A('s_and_b32 s51, s2, 3')
        A('s_lshl_b32 s40, s50, 7')
        A(f's_mul_i32 s58, s51, {144 * 8192}')
        A('s_add_u32 s40, s40, s58')
        A('s_add_u32 s56, s10, s40')
        A('s_addc_u32 s57, s11, 0')
        A('v_lshrrev_b32 v5, 3, v1')
        A('v_and_b32 v6, 7, v1')
        A('v_lshrrev_b32 v7, 4, v1')
        A('v_lshlrev_b32 v7, 1, v7')
        A('v_xor_b32 v6, v6, v7')
        A('v_lshlrev_b32 v6, 4, v6')
        A('v_lshl_add_u32 v22, v5, 13, v6')
        A('v_mul_u32_u24 v25, 9216, v5')
        A('v_add_u32 v25, v25, v6')
        A('v_lshlrev_b32 v23, 4, v1')
        if 'nowq' not in self.exp:
            self.dma_cols(56, 8192, 22)
        A('s_lshl_b32 s40, s27, 13')
        A(f's_add_u32 s40, s40, {WS_Q}')
        A('s_add_u32 s62, s24, s40')
        A('s_addc_u32 s63, s25, 0')
        A('v_lshrrev_b32 v14, 5, v1')
        A('v_lshlrev_b32 v14, 11, v14')
        A('v_and_b32 v15, 31, v1')
        A('v_lshl_add_u32 v14, v15, 4, v14')
        A('v_add_u32 v15, 4096, v14')
        nwarm = 0
        if 'qwarm' in self.exp:
            for H in range(2):
                for kp in range(4):
                    A(f'global_load_dwordx4 v[{96 + 4*kp}:{99 + 4*kp}], v{14 + H}, s[62:63] offset:{512 * kp} sc1')
                    nwarm += 1
        A('v_lshrrev_b32 v26, 4, v1')
        A('v_and_b32 v27, 15, v1')
        A('v_lshlrev_b32 v20, 3, v26')
        A(f'v_add_u32 v20, {XN}, v20')
        A('v_lshrrev_b32 v28, 2, v27')
        A('v_lshl_add_u32 v28, v26, 2, v28')
        A('v_and_b32 v29, 3, v27')
        A('v_lshlrev_b32 v8, 7, v28')
        A('v_lshl_add_u32 v8, v29, 3, v8')
        A(f'v_add_u32 v8, {STG}, v8')
        A('v_lshrrev_b32 v9, 1, v28')
        A('v_and_b32 v9, 3, v9')
        for t in range(4):
            A(f'v_xor_b32 v10, {t}, v9')
            A(f'v_lshl_add_u32 v{16 + t}, v10, 5, v8')
        A('v_mul_u32_u24 v24, 1152, v28')
        A('v_lshl_add_u32 v24, v29, 3, v24')
        A(f'v_add_u32 v24, {STG}, v24')
        nq = 0 if 'nowq' in self.exp else 18
        A(f's_waitcnt vmcnt({nq + nwarm})')
        self.stamp(11)
        A('v_readfirstlane_b32 s29, v3')
        X = 30
        for k in range(9):
            A(f'v_lshlrev_b32 v{X + k}, 16, v{X + k}')
        A('s_add_u32 s29, s29, 1')
        A(f'v_add_f32 v10, v{X}, v{X+1}')
        for k in range(2, 9):
            A(f'v_add_f32 v10, v10, v{X + k}')
        self.wavesum(10, 11)
        A(f'v_mul_f32 v10, {0x3AE38E39:#x}, v10')
        for k in range(9):
            A(f'v_sub_f32 v{40 + k}, v{X + k}, v10')
        A('v_mul_f32 v12, v40, v40')
        for k in range(1, 9):
            A(f'v_fmac_f32 v12, v{40 + k}, v{40 + k}')
        self.wavesum(12, 11)
        A(f'v_mul_f32 v12, {0x3AE38E39:#x}, v12')
        self.bf16r(10, 10, 11)
        self.bf16r(12, 12, 11)
        A(f'v_add_f32 v12, {0x3727C5AC:#x}, v12')
        self.bf16r(12, 12, 11)
        A('v_sqrt_f32 v12, v12')
        A('s_nop 0')
        self.bf16r(12, 12, 11)
        A('v_rcp_f32 v13, v12')
        for k in range(9):
            A(f'v_sub_f32 v{40 + k}, v{X + k}, v10')
        for k in range(0, 9, 2):
            k2 = min(k + 1, 8)
            A(f'v_cvt_pk_bf16_f32 v{50 + k // 2}, v{40 + k}, v{40 + k2}')
        for k in range(9):
            if k % 2 == 0:
                A(f'v_lshlrev_b32 v{40 + k}, 16, v{50 + k // 2}')
            else:
                A(f'v_and_b32 v{40 + k}, 0xffff0000, v{50 + k // 2}')
        for k in range(9):
            A(f'v_mul_f32 v{60 + k}, v{40 + k}, v13')
            A(f'v_fma_f32 v{70 + k}, -v{60 + k}, v12, v{40 + k}')
            A(f'v_fma_f32 v{60 + k}, v{70 + k}, v13, v{60 + k}')
        for k in range(0, 9, 2):
            k2 = min(k + 1, 8)
            A(f'v_cvt_pk_bf16_f32 v{50 + k // 2}, v{60 + k}, v{60 + k2}')
        A(f'v_add_u32 v11, {XN}, v4')
        for k in range(9):
            op = 'ds_write_b16' if k % 2 == 0 else 'ds_write_b16_d16_hi'
            A(f'{op} v11, v{50 + k // 2} offset:{128 * k}')
        A('s_mul_i32 s58, s51, 288')
        self.stamp(12)
        A('s_waitcnt vmcnt(0) lgkmcnt(0)')
        self.stamp(13)
        self.gemv64(96, True, 58)
        A('s_nop 7')
        self.stamp(10)
        A('s_mov_b32 s46, 0xffff0000')
        A('s_mov_b32 s47, 0')
        A('v_cndmask_b32 v32, v96, v104, s[46:47]')
        A('v_cndmask_b32 v34, v100, v108, s[46:47]')
        A('v_mov_b32 v33, s29')
        A('v_mov_b32 v35, s29')
        A('s_lshl_b32 s40, s2, 9')
        A(f's_add_u32 s40, s40, {WS_Q}')
        A('s_add_u32 s48, s24, s40')
        A('s_addc_u32 s49, s25, 0')
        A('s_mov_b32 s46, -1')
        A('s_mov_b64 exec, s[46:47]')
        A('global_store_dwordx4 v23, v[32:35], s[48:49] sc1')
        A('s_mov_b64 exec, -1')
        A('s_mov_b32 s48, s62')
        A('s_mov_b32 s49, s63')
        A('v_mov_b32 v30, v14')
        A('v_mov_b32 v31, v15')
        loads = []
        for H in range(2):
            for kp in range(4):
                b = 40 + 16 * H + 4 * kp
                loads.append(f'global_load_dwordx4 v[{b}:{b+3}], v{30 + H}, s[48:49] offset:{512 * kp} sc1')
        def qchk():
            A('v_xor_b32 v72, s29, v41')
            for q in range(43, 72, 2):
                A(f'v_xor_b32 v73, s29, v{q}')
                A('v_or_b32 v72, v72, v73')
            return 72
        self.poll('L_h_q', loads, qchk, sleep=1, probe=('qsweep' not in self.exp))
        self.stamp(14)
        for H in range(2):
            b = 40 + 16 * H
            for e in (0, 2):
                A(f'v_add_f32 v{b+e}, v{b+e}, v{b+4+e}')
                A(f'v_add_f32 v{b+8+e}, v{b+8+e}, v{b+12+e}')
                A(f'v_add_f32 v{b+e}, v{b+e}, v{b+8+e}')
            A(f'v_cvt_pk_bf16_f32 v{74 + H}, v{b}, v{b+2}')
        A('v_lshrrev_b32 v32, 4, v1')
        A('v_lshlrev_b32 v32, 6, v32')
        A('v_lshl_add_u32 v32, v27, 1, v32')
        A(f'v_add_u32 v32, {QL}, v32')
        for H in range(2):
            A(f'ds_write_b16 v32, v{74 + H} offset:{256 * H}')
            A(f'ds_write_b16_d16_hi v32, v{74 + H} offset:{256 * H + 32}')
        A('v_mov_b32 v42, 1')
        A('v_mov_b32 v43, s29')
        A(f'v_mov_b32 v41, {FL}')
        A('s_waitcnt lgkmcnt(0)')
        A('s_mov_b64 exec, 1')
        A('ds_write_b64 v41, v[42:43] offset:32')
        A('s_mov_b64 exec, -1')
        A('s_setprio 0')
        A(f's_cmp_ge_u32 s96, {NFFN}')
        A('s_cbranch_scc1 L_h_ffn_done')
        if 'noffn' in self.exp:
            A('s_branch L_h_ffn_done')
        A('s_mov_b32 s59, 0')
        self.L('L_h_f1')
        A('s_lshl_b32 s40, s96, 7')
        A(f's_mul_i32 s58, s59, {144 * 9216}')
        A('s_add_u32 s40, s40, s58')
        A('s_add_u32 s56, s16, s40')
        A('s_addc_u32 s57, s17, 0')
        if 'now1' not in self.exp:
            self.dma_cols(56, 9216, 25, win=FW)
        A('s_mul_i32 s58, s59, 288')
        A('s_waitcnt vmcnt(0)')
        A('s_cmp_lg_u32 s59, 0')
        A('s_cbranch_scc1 L_h_f1b')
        for r in range(16):
            A(f'v_mov_b32 v{96 + r}, 0')
        self.L('L_h_f1b')
        A('s_nop 1')
        self.gemv64(96, False, 58)
        A('s_add_u32 s59, s59, 1')
        A('s_cmp_lt_u32 s59, 4')
        A('s_cbranch_scc1 L_h_f1')
        A('s_nop 7')
        A('v_lshlrev_b32 v34, 1, v27')
        A(f'v_add_u32 v34, {OB}, v34')
        for t in range(4):
            self.bf16r(30, 96 + 4 * t, 31)
            A(f'v_mul_f32 v31, {0xBFB8AA3B:#x}, v30')
            A('v_exp_f32 v31, v31')
            A('s_nop 0')
            A('v_add_f32 v31, 1.0, v31')
            A('v_rcp_f32 v32, v31')
            A('s_nop 0')
            A('v_mul_f32 v33, v30, v32')
            A('v_cvt_pk_bf16_f32 v33, v33, v33')
            A('s_mov_b64 exec, 0xffff')
            A(f'ds_write_b16 v34, v33 offset:{32 * t}')
            A('s_mov_b64 exec, -1')
        if self.w2late:
            A('v_lshlrev_b32 v35, 2, v1')
            A(f'v_add_u32 v36, {OB}, v35')
            A('s_waitcnt lgkmcnt(0)')
            A('ds_read_b32 v32, v36')
            A('v_mov_b32 v33, s29')
            A('s_lshl_b32 s40, s96, 8')
            A(f's_add_u32 s40, s40, {WS_A}')
            A('s_add_u32 s48, s24, s40')
            A('s_addc_u32 s49, s25, 0')
            A('v_lshlrev_b32 v35, 3, v1')
            A('s_mov_b32 s46, -1')
            A('s_mov_b32 s47, 0')
            A('s_waitcnt lgkmcnt(0)')
            A('s_mov_b64 exec, s[46:47]')
            A('global_store_dwordx2 v35, v[32:33], s[48:49] sc1')
            A('s_mov_b64 exec, -1')
            self.L('L_h_ffn_done')
            A(f'v_mov_b32 v34, {FL}')
            self.spin_begin(42)
            self.L('L_h_fwait')
            A('ds_read_b32 v35, v34 offset:16')
            A('s_waitcnt lgkmcnt(0)')
            A('v_readfirstlane_b32 s40, v35')
            A(f's_cmp_ge_u32 s40, {self.a_at}')
            A('s_cbranch_scc1 L_h_fgo')
            self.spin_retry(42, 'L_h_fwait', sleep=64)
            self.L('L_h_fgo')
            A('s_lshl_b32 s40, s27, 4')
            A('s_add_u32 s40, s40, s28')
            A('s_mul_i32 s40, s40, 72')
            A(f's_add_u32 s40, s40, {WS_A}')
            A('s_add_u32 s48, s24, s40')
            A('s_addc_u32 s49, s25, 0')
            A('v_min_u32 v30, 8, v1')
            A('v_lshlrev_b32 v30, 3, v30')
            if 'noffn' not in self.exp:
                def achk():
                    A('v_xor_b32 v34, s29, v33')
                    return 34
                self.poll('L_h_a', ['global_load_dwordx2 v[32:33], v30, s[48:49] sc1'], achk, sleep=32, probe=False)
            A('v_cmp_gt_u32 vcc, 9, v1')
            A('s_nop 1')
            A('v_cndmask_b32 v32, 0, v32, vcc')
            A('v_lshlrev_b32 v35, 2, v1')
            A(f'v_add_u32 v35, {AB}, v35')
            A('s_mov_b64 exec, 0xffff')
            A('ds_write_b32 v35, v32')
            A('s_mov_b64 exec, -1')
        else:
            for r in range(12):
                A(f'v_mov_b32 v{112 + r}, 0')
            A('v_lshlrev_b32 v35, 3, v26')
            A(f'v_add_u32 v35, {OB}, v35')
            A('s_mov_b32 s59, 0')
            self.L('L_h_f2')
            A('s_lshl_b32 s40, s96, 2')
            A('s_add_u32 s40, s40, s59')
            A('s_mul_i32 s40, s40, 18432')
            A('s_add_u32 s56, s18, s40')
            A('s_addc_u32 s57, s19, 0')
            if 'now2' not in self.exp:
                self.dma_rows(56, win=FW)
            A('s_lshl_b32 s40, s59, 5')
            A('v_add_u32 v38, s40, v35')
            A('s_waitcnt lgkmcnt(0)')
            A('ds_read_b64 v[36:37], v38')
            A('s_waitcnt vmcnt(0) lgkmcnt(0)')
            for t0 in range(0, 36, 12):
                for t in range(t0, t0 + 12):
                    A(f'ds_read_b64_tr_b16 v[{40 + 2*(t - t0)}:{41 + 2*(t - t0)}], v24 offset:{32 * t}')
                A('s_waitcnt lgkmcnt(0)')
                for t in range(t0, t0 + 12):
                    grp, r = t // 3, t % 3
                    a = 112 + 4 * (grp // 4)
                    row = 4 * (grp % 4) + r
                    A(f's_mov_b32 s46, {0x00010001 << row:#x}')
                    A(f's_mov_b32 s47, {0x00010001 << row:#x}')
                    A(f'v_cndmask_b32 v{88 + 2*(t&1)}, 0, v36, s[46:47]')
                    A(f'v_cndmask_b32 v{89 + 2*(t&1)}, 0, v37, s[46:47]')
                    A('s_nop 1')
                    A(f'v_mfma_f32_16x16x16_bf16 v[{a}:{a+3}], v[{88 + 2*(t&1)}:{89 + 2*(t&1)}], v[{40 + 2*(t - t0)}:{41 + 2*(t - t0)}], v[{a}:{a+3}]')
            A('s_add_u32 s59, s59, 1')
            A('s_cmp_lt_u32 s59, 4')
            A('s_cbranch_scc1 L_h_f2')
            A('s_nop 7')
            A('s_mul_i32 s40, s96, 3072')
            A(f's_add_u32 s40, s40, {WS_F}')
            A('s_add_u32 s48, s24, s40')
            A('s_addc_u32 s49, s25, 0')
            for a in range(3):
                self.mkchk(112 + 4 * a)
                A(f'global_store_dwordx4 v23, v[{112 + 4*a}:{115 + 4*a}], s[48:49] offset:{1024 * a} sc1')
            self.L('L_h_ffn_done')
            A(f's_cmp_ge_u32 s97, {NRED}')
            A('s_cbranch_scc1 L_h_tail')
            if 'nofgather' in self.exp or 'noffn' in self.exp:
                A('s_branch L_h_tail')
            A(f'v_mov_b32 v34, {FL}')
            self.spin_begin(42)
            self.L('L_h_fwait')
            A('ds_read_b32 v35, v34 offset:16')
            A('s_waitcnt lgkmcnt(0)')
            A('v_readfirstlane_b32 s40, v35')
            A(f's_cmp_ge_u32 s40, {self.nunits // 2}')
            A('s_cbranch_scc1 L_h_fgo')
            self.spin_retry(42, 'L_h_fwait', sleep=64)
            self.L('L_h_fgo')
            A('s_lshl_b32 s40, s97, 6')
            A(f's_add_u32 s40, s40, {WS_F}')
            A('s_add_u32 s48, s24, s40')
            A('s_addc_u32 s49, s25, 0')
            A('v_lshrrev_b32 v30, 2, v1')
            A('v_mul_u32_u24 v30, 3072, v30')
            A('v_and_b32 v31, 3, v1')
            A('v_lshl_add_u32 v30, v31, 4, v30')
            for i in range(1, 5):
                A(f'v_add_u32 v{30 + i}, {3072 * 16 * i}, v30')
            A('s_mov_b32 s46, 0')
            A('s_mov_b32 s47, -1')
            A(f'v_add_u32 v35, {-3072 * 8 & 0xffffffff:#x}, v34')
            A('v_cndmask_b32 v34, v34, v35, s[46:47]')
            self.poll('L_h_f', [f'global_load_dwordx4 v[{40 + 4*i}:{43 + 4*i}], v{30 + i}, s[48:49] sc1' for i in range(5)],
                      lambda: self.chk3([40, 44, 48, 52, 56], 60, 61), sleep=32)
            A('s_mov_b32 s46, 0')
            A('s_mov_b32 s47, -1')
            for r in range(3):
                A(f'v_cndmask_b32 v{56 + r}, v{56 + r}, 0, s[46:47]')
            for r in range(3):
                A(f'v_add_f32 v{40 + r}, v{40 + r}, v{44 + r}')
                A(f'v_add_f32 v{48 + r}, v{48 + r}, v{52 + r}')
                A(f'v_add_f32 v{40 + r}, v{40 + r}, v{56 + r}')
            for r in range(3):
                A(f'v_add_f32 v{40 + r}, v{40 + r}, v{48 + r}')
            for r in range(3):
                self.rowred('v_add_f32', 40 + r, rors=(4, 8))
            for r in range(3):
                self.xrow('v_add_f32', 40 + r, 60)
            A('v_lshlrev_b32 v34, 4, v1')
            A(f'v_add_u32 v34, {FFNR}, v34')
            A('s_mov_b64 exec, 15')
            A('ds_write_b128 v34, v[40:43]')
            A('s_mov_b64 exec, -1')
        self.L('L_h_tail')
        A('s_waitcnt vmcnt(0) lgkmcnt(0)')
        self.stamp(7)
        A('v_lshrrev_b32 v30, 3, v1')
        A('v_and_b32 v31, 7, v1')
        A('v_min_u32 v32, 5, v31')
        A('s_lshl_b32 s58, s27, 15')
        A('v_lshlrev_b32 v33, 11, v30')
        step8 = 8 * 2048
        A('s_lshl_b32 s40, s28, 7')
        A('s_add_u32 s58, s58, s40')
        A(f's_add_u32 s58, s58, {WS_P}')
        A('s_add_u32 s48, s24, s58')
        A('s_addc_u32 s49, s25, 0')
        A('v_lshl_add_u32 v34, v32, 4, v33')
        A(f'v_add_u32 v35, {step8}, v34')
        A('v_add_u32 v36, 80, v33')
        A(f'v_add_u32 v37, {step8}, v36')
        if not self.warm_late:
            self.tail_warm()
        US, LA, NI = self.US, self.LA, self.NI
        A(f'v_mov_b32 v38, {FL}')
        def put_id(kreg, valreg_v):
            A(f's_lshl_b32 s40, s{kreg}, 2')
            A(f's_add_u32 s40, s40, {IDS}')
            A('v_mov_b32 v39, s40')
            A('s_mov_b64 exec, 1')
            A(f'ds_write_b32 v39, v{valreg_v}')
            A('s_mov_b64 exec, -1')
        def wait_tk(val, lab, sleep=1):
            self.spin_begin(42)
            self.L(lab)
            A('ds_read_b32 v44, v38 offset:52')
            A('s_waitcnt lgkmcnt(0)')
            A('v_readfirstlane_b32 s40, v44')
            A(f's_cmp_ge_u32 s40, {val}')
            A(f's_cbranch_scc1 {lab}_ok')
            self.spin_retry(42, lab, sleep=sleep)
            self.L(f'{lab}_ok')
        if self.share:
            C, pool = self.C, (64 - US) * 64
            navg = pool / 16
            import struct as _st
            f2h = lambda x: '%#x' % _st.unpack('<I', _st.pack('<f', x))[0]
            if self.pertau:
                self.spin_begin(42)
                self.L('L_h_sw1')
                A('ds_read_b64 v[40:41], v38 offset:232')
                A('s_waitcnt lgkmcnt(0)')
                A('v_readfirstlane_b32 s40, v41')
                A('s_cmp_lg_u32 s40, 0')
                A('s_cbranch_scc1 L_h_sw1_ok')
                self.spin_retry(42, 'L_h_sw1', sleep=8)
                self.L('L_h_sw1_ok')
                A('v_mov_b32 v42, v40')
                A('v_mov_b32 v40, v41')
                A('v_mov_b32 v41, v42')
                A('v_mov_b32 v42, 0')
                A('s_lshl_b32 s40, s27, 8')
                A(f's_add_u32 s40, s40, {WS_T}')
                A('s_add_u32 s56, s24, s40')
                A('s_addc_u32 s57, s25, 0')
                A('s_lshl_b32 s58, s28, 4')
                A('v_mov_b32 v39, s58')
                self.mkchk(40)
                A('s_mov_b64 exec, 1')
                A('global_store_dwordx4 v39, v[40:43], s[56:57] sc1')
                A('s_mov_b64 exec, -1')
                wait_tk(4 * (C + self.Gd) - 4, 'L_h_sw2', sleep=4)
                A('v_and_b32 v39, 15, v1')
                A('v_lshlrev_b32 v39, 4, v39')
                self.poll('L_h_t', ['global_load_dwordx4 v[40:43], v39, s[56:57] sc1'], lambda: self.chk3([40], 44, 45), sleep=4, probe=False)
                A('v_readfirstlane_b32 s40, v40')
                A('v_sub_u32 v45, v40, v41')
                A('s_nop 0')
                A('v_subrev_u32 v44, s40, v40')
                A('v_cvt_f32_i32 v44, v44')
                A('v_cvt_f32_u32 v45, v45')
                A(f'v_mul_f32 v45, {f2h(1 / (4 * (C - self.C0)))}, v45')
                A('v_mov_b32 v46, v45')
                self.rowred('v_add_f32', 46)
                A(f'v_mul_f32 v46, {f2h(1 / 16)}, v46')
                A('v_sub_f32 v45, v45, v46')
                A(f'v_mul_f32 v45, {f2h(self.lam)}, v45')
                A('v_add_f32 v45, v45, v46')
                A('v_rcp_f32 v45, v45')
                A('s_nop 0')
                A('v_mul_f32 v46, v44, v45')
                A('v_mov_b32 v47, v45')
                self.mrowred('v_add_f32', [46, 47], (8, 4, 2, 1))
                A(f'v_add_f32 v46, {f2h(float(pool + 64 * (US - C)))}, v46')
                A('v_rcp_f32 v47, v47')
                A('s_nop 0')
                A('v_mul_f32 v46, v46, v47')
                A('v_sub_f32 v46, v46, v44')
                A('v_mul_f32 v46, v46, v45')
                A(f'v_subrev_f32 v46, {f2h(float(4 * (US - C)))}, v46')
            else:
                wait_tk(4 * C - 4, 'L_h_sw1')
                A('s_memrealtime s[50:51]')
                A('s_lshl_b32 s40, s27, 8')
                A(f's_add_u32 s40, s40, {WS_T}')
                A('s_add_u32 s56, s24, s40')
                A('s_addc_u32 s57, s25, 0')
                A('s_lshl_b32 s58, s28, 4')
                A('v_mov_b32 v39, s58')
                A('s_waitcnt lgkmcnt(0)')
                A('v_mov_b32 v40, s50')
                A('v_mov_b32 v41, s98')
                A('v_mov_b32 v42, 0')
                self.mkchk(40)
                A('s_mov_b64 exec, 1')
                A('global_store_dwordx4 v39, v[40:43], s[56:57] sc1')
                A('s_mov_b64 exec, -1')
                wait_tk(4 * (C + self.Gd) - 4, 'L_h_sw2', sleep=4)
                A('v_and_b32 v39, 15, v1')
                A('v_lshlrev_b32 v39, 4, v39')
                self.poll('L_h_t', ['global_load_dwordx4 v[40:43], v39, s[56:57] sc1'], lambda: self.chk3([40], 44, 45), sleep=4, probe=False)
                A('v_readfirstlane_b32 s40, v40')
                A('v_sub_u32 v45, v40, v41')
                A('s_nop 0')
                A('v_subrev_u32 v44, s40, v40')
                A('v_cvt_f32_i32 v44, v44')
                A('v_cvt_f32_u32 v45, v45')
                A('v_mov_b32 v46, v44')
                self.rowred('v_add_f32', 46)
                self.rowred('v_add_f32', 45)
                import struct as _st
                f2h = lambda x: '%#x' % _st.unpack('<I', _st.pack('<f', x))[0]
                A(f'v_mul_f32 v46, {f2h(1 / 16)}, v46')
                A(f'v_mul_f32 v45, {f2h(self.taufac / (16 * 4 * C))}, v45')
                A('v_rcp_f32 v45, v45')
                A('v_sub_f32 v46, v46, v44')
                A('s_nop 0')
                A('v_mul_f32 v46, v46, v45')
                A(f'v_add_f32 v46, {f2h(navg)}, v46')
            A('v_max_f32 v46, 0, v46')
            A(f'v_min_f32 v46, {f2h(2.5 * navg)}, v46')
            A('v_mov_b32 v47, v46')
            self.rowred('v_add_f32', 47)
            A('v_rcp_f32 v47, v47')
            A('s_nop 0')
            A(f'v_mul_f32 v47, {f2h(float(pool))}, v47')
            A('v_mul_f32 v46, v46, v47')
            for sh in (1, 2, 4, 8):
                A('s_nop 1')
                A(f'v_add_f32_dpp v46, v46, v46 row_shr:{sh} row_mask:0xf bank_mask:0xf bound_ctrl:0')
            A('v_add_f32 v46, 0.5, v46')
            A('v_cvt_i32_f32 v46, v46')
            A(f'v_min_i32 v46, {pool}, v46')
            A('s_mov_b32 s50, 0x80008000')
            A('s_mov_b32 s51, 0x80008000')
            A(f'v_mov_b32 v47, {pool}')
            A('v_cndmask_b32 v46, v46, v47, s[50:51]')
            A('v_mov_b32 v47, 0')
            A('s_nop 1')
            A('v_mov_b32_dpp v47, v46 row_shr:1 row_mask:0xf bank_mask:0xf bound_ctrl:0')
            A('v_sub_u32 v46, v46, v47')
            A('v_add_u32 v46, 1, v46')
            A('s_nop 0')
            A('v_readlane_b32 s50, v46, s28')
            A('v_readlane_b32 s51, v47, s28')
            A('s_nop 1')
            A('v_mov_b32 v46, s50')
            A('v_mov_b32 v47, s51')
            A(f'v_mov_b32 v39, {IDS}')
            A('s_mov_b64 exec, 1')
            A('ds_write_b64 v39, v[46:47]')
            A('s_mov_b64 exec, -1')
            A(f's_add_u32 s50, s50, {4 * US - 4 - self.warm_tiles}')
            self.spin_begin(42)
            self.L('L_h_sw3')
            A('ds_read_b32 v44, v38 offset:52')
            A('s_waitcnt lgkmcnt(0)')
            A('v_readfirstlane_b32 s40, v44')
            A('s_cmp_ge_u32 s40, s50')
            A('s_cbranch_scc1 L_h_sw3_ok')
            self.spin_retry(42, 'L_h_sw3', sleep=4)
            self.L('L_h_sw3_ok')
            self.stamp(23)
        elif NI == 0:
            A('s_mov_b32 s50, 0')
            A('v_mov_b32 v44, -1')
            put_id(50, 44)
            if 'dumat' in self.exp:
                A(f's_mul_i32 s40, s27, {self.cstride}')
                A(f's_add_u32 s40, s40, {WS_CNT}')
                A('s_add_u32 s56, s24, s40')
                A('s_addc_u32 s57, s25, 0')
                A('v_mov_b32 v40, 0')
                A('v_mov_b32 v41, 1')
                A('s_mov_b32 s58, 48')
                self.L('L_h_da')
                A('s_lshl_b32 s51, s58, 2')
                self.spin_begin(42)
                self.L('L_h_daw')
                A('ds_read_b32 v44, v38 offset:52')
                A('s_waitcnt lgkmcnt(0)')
                A('v_readfirstlane_b32 s40, v44')
                A('s_cmp_ge_u32 s40, s51')
                A('s_cbranch_scc1 L_h_daok')
                self.spin_retry(42, 'L_h_daw', sleep=2)
                self.L('L_h_daok')
                A('s_mov_b64 exec, 1')
                A('global_atomic_add v42, v40, v41, s[56:57] sc0')
                A('s_mov_b64 exec, -1')
                A('s_waitcnt vmcnt(0)')
                A('s_add_u32 s58, s58, 1')
                A('s_cmp_lt_u32 s58, 63')
                A('s_cbranch_scc1 L_h_da')
        else:
            A(f's_mul_i32 s40, s27, {self.cstride}')
            A(f's_add_u32 s40, s40, {WS_CNT}')
            A('s_add_u32 s56, s24, s40')
            A('s_addc_u32 s57, s25, 0')
            A('v_mov_b32 v40, 0')
            A('v_mov_b32 v41, 1')
            def wait_progress(kreg, lab):
                A(f's_add_u32 s51, s{kreg}, {US - LA}')
                self.spin_begin(42)
                self.L(lab)
                A('ds_read_b128 v[44:47], v38')
                A('s_waitcnt lgkmcnt(0)')
                A('v_max_u32 v44, v44, v45')
                A('v_max3_u32 v44, v44, v46, v47')
                A('s_nop 0')
                A('v_readfirstlane_b32 s40, v44')
                A('s_cmp_ge_u32 s40, s51')
                A(f's_cbranch_scc1 {lab}_ok')
                self.spin_retry(42, lab, sleep=4)
                self.L(f'{lab}_ok')
            def claim(dst):
                A('s_mov_b64 exec, 1')
                A(f'global_atomic_add v{dst}, v40, v41, s[56:57] sc0')
                A('s_mov_b64 exec, -1')
            if self.tickets:
                A('s_mov_b32 s58, 0')
                self.L('L_h_claim')
                A('s_lshl_b32 s51, s58, 2')
                A(f's_add_u32 s51, s51, {4 * US - 4 - self.LAt}')
                self.spin_begin(42)
                self.L('L_h_tw')
                A('ds_read_b32 v44, v38 offset:52')
                A('s_waitcnt lgkmcnt(0)')
                A('v_readfirstlane_b32 s40, v44')
                A('s_cmp_ge_u32 s40, s51')
                A('s_cbranch_scc1 L_h_tw_ok')
                self.spin_retry(42, 'L_h_tw', sleep=2)
                self.L('L_h_tw_ok')
                A(f's_mov_b32 s40, {NI}')
                A(f's_cmp_ge_u32 s58, {CAP}')
                A('s_cbranch_scc1 L_h_tres')
                claim(42)
                A('s_waitcnt vmcnt(0)')
                A('v_readfirstlane_b32 s40, v42')
                self.L('L_h_tres')
                if self.endmargin:
                    A(f's_cmp_lt_u32 s40, {max(NI - self.endmargin, 0)}')
                    A('s_cbranch_scc1 L_h_tnom')
                    A('v_mov_b32 v44, 1')
                    A('s_mov_b64 exec, 1')
                    A('ds_write_b32 v38, v44 offset:48')
                    A('s_mov_b64 exec, -1')
                    self.L('L_h_tnom')
                A(f's_cmp_ge_u32 s40, {NI}')
                A('s_cselect_b32 s40, -2, s40')
                A('s_add_u32 s59, s40, 1')
                A('v_mov_b32 v44, s59')
                put_id(58, 44)
                A('s_add_u32 s58, s58, 1')
                A('s_cmp_lg_u32 s59, -1')
                A('s_cbranch_scc1 L_h_claim')
            else:
                A('s_mov_b32 s50, 0')
                A('s_mov_b32 s58, 0')
                wait_progress(50, 'L_h_cw0')
                claim(42)
                A('s_mov_b32 s50, 1')
                self.L('L_h_claim')
                for par in range(2):
                    cur, nxt = 42 + par, 43 - par
                    last = self.lab('L_h_clast')
                    res = self.lab('L_h_cres')
                    A(f's_cmp_ge_u32 s50, {CAP}')
                    A(f's_cbranch_scc1 {last}')
                    wait_progress(50, self.lab('L_h_cw'))
                    claim(nxt)
                    A('s_add_u32 s50, s50, 1')
                    A('s_waitcnt vmcnt(1)')
                    A(f's_branch {res}')
                    self.L(last)
                    A('s_waitcnt vmcnt(0)')
                    A(f'v_mov_b32 v{nxt}, {NI}')
                    self.L(res)
                    A(f'v_readfirstlane_b32 s40, v{cur}')
                    if self.endmargin:
                        nm = self.lab('L_h_nom')
                        A(f's_cmp_lt_u32 s40, {max(NI - self.endmargin, 0)}')
                        A(f's_cbranch_scc1 {nm}')
                        for q in range(4):
                            A(f'v_mov_b32 v{44 + q}, 1')
                        A('s_mov_b64 exec, 1')
                        A('ds_write_b128 v38, v[44:47] offset:48')
                        A('s_mov_b64 exec, -1')
                        self.L(nm)
                    A(f's_cmp_ge_u32 s40, {NI}')
                    A('s_cselect_b32 s40, -2, s40')
                    A('s_add_u32 s59, s40, 1')
                    A('v_mov_b32 v44, s59')
                    put_id(58, 44)
                    A('s_add_u32 s58, s58, 1')
                    A('s_cmp_eq_u32 s59, -1')
                    A('s_cbranch_scc1 L_h_cdone')
                A('s_branch L_h_claim')
            self.L('L_h_cdone')
            self.stamp(23)
            A('v_mov_b32 v44, 1')
            A('v_mov_b32 v45, 1')
            A('v_mov_b32 v46, 1')
            A('v_mov_b32 v47, 1')
            A('s_mov_b64 exec, 1')
            if self.tickets:
                A('ds_write_b32 v38, v44 offset:48')
            else:
                A('ds_write_b128 v38, v[44:47] offset:48')
            A('s_mov_b64 exec, -1')
            A('s_waitcnt vmcnt(0) lgkmcnt(0)')
        if self.warm_late:
            self.tail_warm()
        if 'notail' in self.exp:
            self.flush_stamps()
            A('s_endpgm')
        A('s_barrier')
        if self.dpoll:
            self.poll2('L_h_b', lambda bs: [f'global_load_dwordx4 v[{b}:{b+3}], v{34 + i}, s[48:49] sc1' for i, b in enumerate(bs)],
                       [40, 44, 48, 52], [68, 72, 76, 80], 56, 57, sleep=self.tsleep or 2, stag=self.stag, thresh=self.thresh)
        else:
            self.poll('L_h_b', [f'global_load_dwordx4 v[{40 + 4*i}:{43 + 4*i}], v{34 + i}, s[48:49] sc1' for i in range(4)],
                      lambda: self.chk3([40, 44, 48, 52], 56, 57), sleep=2)
        self.stamp(15)
        A('v_max_f32 v56, v49, v53')
        self.rowred('v_max_f32', 56, rors=(8,))
        self.xrow('v_max_f32', 56, 57)
        A('v_sub_f32 v58, v49, v56')
        A('v_sub_f32 v59, v53, v56')
        A('v_exp_f32 v58, v58')
        A('v_exp_f32 v59, v59')
        A('s_nop 0')
        A('v_mul_f32 v60, v50, v58')
        for i in range(3):
            A(f'v_mul_f32 v{61 + i}, v{40 + i}, v58')
        A('v_fmac_f32 v60, v54, v59')
        for i in range(3):
            A(f'v_fmac_f32 v{61 + i}, v{44 + i}, v59')
        self.mrowred('v_add_f32', [60, 61, 62, 63], (8,))
        self.mxrow('v_add_f32', [60, 61, 62, 63], [84, 85, 86, 87])
        A('v_rcp_f32 v64, v60')
        A('s_nop 0')
        for r in (61, 62, 63):
            A(f'v_mul_f32 v65, v{r}, v64')
            A(f'v_fma_f32 v66, -v65, v60, v{r}')
            A(f'v_fma_f32 v{r}, v66, v64, v65')
        A('v_cvt_pk_bf16_f32 v61, v61, v62')
        A('v_cvt_pk_bf16_f32 v63, v63, v63')
        A('v_mul_u32_u24 v62, 6, v31')
        A(f'v_add_u32 v62, {OB}, v62')
        A('s_mov_b64 exec, 0x3f')
        A('ds_write_b16 v62, v61')
        A('s_mov_b64 exec, 0x1f')
        A('ds_write_b16_d16_hi v62, v61 offset:2')
        A('ds_write_b16 v62, v63 offset:4')
        A('s_mov_b64 exec, -1')
        A('s_waitcnt lgkmcnt(0)')
        A('s_barrier')
        self.flush_stamps()
        A('s_endpgm')

    def build(self):
        head = HEADER + f'; @launch grid=(256,1,1) block=(576,1,1) lds={LDS_BYTES}\n'
        head += '.amdgcn_target "amdgcn-amd-amdhsa--gfx950"\n.text\n'
        head += f'.globl {KNAME}\n.p2align 8\n.type {KNAME},@function\n{KNAME}:\n'
        self.entry()
        self.consumer()
        if self.tickets:
            self.loader_tk()
        else:
            self.loader()
        self.helper()
        self.L('L_end')
        self.A('s_endpgm')
        tail = f'''.section .rodata,"a"
.p2align 6
.amdhsa_kernel {KNAME}
  .amdhsa_next_free_vgpr 160
  .amdhsa_next_free_sgpr 100
  .amdhsa_accum_offset 160
  .amdhsa_group_segment_fixed_size 0
  .amdhsa_kernarg_size 88
  .amdhsa_user_sgpr_count 2
  .amdhsa_user_sgpr_kernarg_segment_ptr 1
  .amdhsa_system_sgpr_workgroup_id_x 1
  .amdhsa_float_denorm_mode_32 3
  .amdhsa_float_denorm_mode_16_64 3
.end_amdhsa_kernel
'''
        return head + '\n'.join(self.o) + '\n' + tail


if __name__ == '__main__':
    import argparse
    ap = argparse.ArgumentParser()
    ap.add_argument('-o', default='parallel_sum__gqa_block_cached__dense_activation_silu__decode.s')
    ap.add_argument('--W', type=int, default=5)
    ap.add_argument('--rot', type=int, default=7)
    ap.add_argument('--headmap', default='lin')
    ap.add_argument('--stamps', action='store_true')
    ap.add_argument('--exp', default='')
    a = ap.parse_args()
    open(a.o, 'w').write(Gen(W=a.W, rot=a.rot, headmap=a.headmap, stamps=a.stamps, exp=[e for e in a.exp.split(',') if e]).build())
    print('wrote', a.o)
```

```python
import sys

KNAME = 'parallel_sum__gqa_block_cached__dense_activation_silu__decode_kernel'

HEADER = '''; Kernarg layout for this problem (88 bytes, ptrs only, base s[0:1]):
'''

RING = 32768
STG = 0x20000
XN = 0x24800
QL = 0x24D00
FL = 0x25000
OC = 0x25100
OCML = 0x26100
OB = 0x26180
RED = 0x26200
FFNR = 0x26480
AB = 0x26400
W2S = 0
LDS_BYTES = 0x28000

WS_EPOCH = 0x0
WS_Q = 0x10000
WS_P = 0x80000
WS_Y2 = 0x200000
WS_Y = 0x100000
WS_A = 0x30000
WS_F = 0x38000
NRED = 48
NFFN = 72
WS_DBG = 0x800000

SCALE = 0x3DB504F3
LOG2E = 0x3FB8AA3B
SPIN = 0x40000
IDS = FL + 64
CAP = 40
WS_T = 0x4000
WS_T2 = 0x6000
WS_CNT = 0x1C0000


class Gen:
    def __init__(self, W=5, rot=7, headmap='lin', stamps=False, nunits=64, exp=(), ffn_win=6, warm_before=4, US=56, LA=2, preread=True, wotail=True, Wend=12, endmargin=32, cstride=12544, earlyflags=True, fastpoll=True, dpoll=True, stag=8, tickets=True, LAt=6, tk_pos=4, prog_pts=(4, 8, 16, 32, 48), nstart=0, share=True, C=50, Gd=3, xfast=8, taufac=0.95, warm_tiles=10, tsleep=0, thresh=64, a_at=36, warm_late=False, w2late=False, wo_by='w23', pertau=False, C0=34, lam=0.7, hfirst=False, ffnboost=False, xrot=448, share2=True, UB=61, K2=12, Gd2=5, taufac2=1.0, cap2=2.5, fastpro=True, nset_b=2, nset_d=2, stag_b=None, stag_d=None, thresh_b=None, thresh_d=None, pm_b=False, pm_d=False, redmap='spread', ffnmap='spread'):
        self.o = []
        self.W = W
        self.rot = rot
        self.headmap = headmap
        self.stamps = stamps
        self.nunits = nunits
        self.uid = 0
        self.pending = []
        self.exp = set(exp)
        self.ffn_win = ffn_win
        self.warm_before = warm_before
        self.US = US
        self.LA = LA
        self.NI = (64 - US) * 16
        self.preread = preread
        self.wotail = wotail
        self.Wend = Wend
        self.ffnboost = ffnboost
        self.xrot = xrot
        self.share2 = share2
        self.fastpro = fastpro
        self.nset_b = nset_b
        self.pm_b = pm_b
        self.redmap = redmap
        self.ffnmap = ffnmap
        self.pm_d = pm_d
        self.nset_d = nset_d
        self.stag_b = stag if stag_b is None else stag_b
        self.stag_d = stag if stag_d is None else stag_d
        self.thresh_b = thresh if thresh_b is None else thresh_b
        self.thresh_d = thresh if thresh_d is None else thresh_d
        self.UB = UB
        self.K2 = K2
        self.Gd2 = Gd2
        self.taufac2 = taufac2
        self.cap2 = cap2
        self.hfirst = hfirst
        self.pertau = pertau
        self.C0 = C0
        self.lam = lam
        self.wo_by = wo_by
        self.w2late = w2late
        self.warm_late = warm_late
        self.a_at = a_at
        self.tsleep = tsleep
        self.thresh = thresh
        self.share = share
        self.C = C
        self.Gd = Gd
        self.xfast = xfast
        self.taufac = taufac
        self.warm_tiles = warm_tiles
        self.nstart = nstart
        self.prog_pts = prog_pts
        self.dpoll = dpoll
        self.stag = stag
        self.tickets = tickets
        self.LAt = LAt
        self.tk_pos = tk_pos
        self.fastpoll = fastpoll
        self.earlyflags = earlyflags
        self.cstride = cstride
        self.endmargin = endmargin
        self.sleepmul = 8 if 'slowpoll' in self.exp else 1

    def A(self, s):
        self.o.append('  ' + s)

    def L(self, s):
        self.o.append(s + ':')

    def lab(self, base):
        self.uid += 1
        return f'{base}_{self.uid}'

    def stamp(self, idx, vtmp=126):
        if not self.stamps:
            return
        k = len(self.pending)
        assert k < 12
        self.pending.append(idx)
        self.A(f's_memrealtime s[{66 + 2*k}:{67 + 2*k}]')

    def stamp_at(self, idx, k):
        while len(self.pending) <= k:
            self.pending.append(None)
        self.pending[k] = idx
        self.A(f's_memrealtime s[{66 + 2*k}:{67 + 2*k}]')

    def flush_stamps(self, vtmp=126, extra=()):
        if not self.stamps:
            return
        A = self.A
        A('s_lshl_b32 s92, s2, 7')
        A(f's_add_u32 s92, s92, {WS_DBG}')
        A('s_add_u32 s94, s24, s92')
        A('s_addc_u32 s95, s25, 0')
        A('s_waitcnt lgkmcnt(0)')
        A(f'v_mov_b32 v{vtmp+1}, 0')
        A('s_mov_b64 exec, 1')
        for k, idx in enumerate(self.pending):
            if idx is None:
                continue
            A(f'v_mov_b32 v{vtmp}, s{66 + 2*k}')
            A(f'global_store_dword v{vtmp+1}, v{vtmp}, s[94:95] offset:{idx * 4}')
        for idx, sreg in extra:
            A(f'v_mov_b32 v{vtmp}, s{sreg}')
            A(f'global_store_dword v{vtmp+1}, v{vtmp}, s[94:95] offset:{idx * 4}')
        A('s_mov_b64 exec, -1')

    def xrow(self, op, v, t):
        A = self.A
        A(f'v_mov_b32 v{t}, v{v}')
        A('s_nop 1')
        A(f'v_permlane16_swap_b32 v{v}, v{t}')
        A('s_nop 1')
        A(f'{op} v{v}, v{v}, v{t}')
        A(f'v_mov_b32 v{t}, v{v}')
        A('s_nop 1')
        A(f'v_permlane32_swap_b32 v{v}, v{t}')
        A('s_nop 1')
        A(f'{op} v{v}, v{v}, v{t}')

    def rowred(self, op, v, rors=(8, 4, 2, 1)):
        A = self.A
        for r in rors:
            A('s_nop 1')
            A(f'{op}_dpp v{v}, v{v}, v{v} row_ror:{r} row_mask:0xf bank_mask:0xf')

    def mrowred(self, op, regs, rors):
        A = self.A
        pad = max(0, 3 - len(regs))
        for r in rors:
            for _ in range(pad):
                A('s_nop 0')
            for v in regs:
                A(f'{op}_dpp v{v}, v{v}, v{v} row_ror:{r} row_mask:0xf bank_mask:0xf')
        return

    def mxrow(self, op, regs, tmps):
        A = self.A
        pad = max(0, 3 - len(regs))
        for swap in ('v_permlane16_swap_b32', 'v_permlane32_swap_b32'):
            for v, t in zip(regs, tmps):
                A(f'v_mov_b32 v{t}, v{v}')
            for _ in range(pad + 1):
                A('s_nop 0')
            for v, t in zip(regs, tmps):
                A(f'{swap} v{v}, v{t}')
            for _ in range(pad):
                A('s_nop 0')
            for v, t in zip(regs, tmps):
                A(f'{op} v{v}, v{v}, v{t}')

    def wavesum(self, v, t):
        self.rowred('v_add_f32', v)
        self.xrow('v_add_f32', v, t)

    def bf16r(self, dst, src, t):
        self.A(f'v_cvt_pk_bf16_f32 v{t}, v{src}, v{src}')
        self.A(f'v_lshlrev_b32 v{dst}, 16, v{t}')

    def spin_begin(self, sreg):
        self.A(f's_mov_b32 s{sreg}, {SPIN}')

    def spin_retry(self, sreg, loop, sleep=2):
        A = self.A
        A(f's_sleep {min(127, sleep * self.sleepmul)}')
        A(f's_sub_u32 s{sreg}, s{sreg}, 1')
        A(f's_cmp_lg_u32 s{sreg}, 0')
        A(f's_cbranch_scc1 {loop}')

    def wg_of(self, dst, s_h, s_or_imm_j):
        pass

    def entry(self):
        A = self.A
        if self.stamps:
            A('s_memrealtime s[90:91]')
        A('s_cmp_ge_u32 s2, 256')
        A('s_cbranch_scc1 L_end')
        A('s_load_dwordx16 s[4:19], s[0:1], 0')
        A('s_load_dwordx4 s[20:23], s[0:1], 64')
        A('s_load_dwordx2 s[24:25], s[0:1], 80')
        A('v_lshrrev_b32 v1, 6, v0')
        if self.headmap == 'lin':
            A('s_lshr_b32 s27, s2, 4')
            A('s_and_b32 s28, s2, 15')
        elif self.headmap == 'X4':
            A('s_and_b32 s40, s2, 7')
            A('s_lshr_b32 s41, s2, 3')
            A('s_lshl_b32 s41, s41, 1')
            A('s_and_b32 s28, s2, 1')
            A('s_add_u32 s41, s41, s28')
            A('s_lshr_b32 s40, s40, 1')
            A('s_lshl_b32 s27, s40, 2')
            A('s_lshr_b32 s28, s41, 4')
            A('s_add_u32 s27, s27, s28')
            A('s_and_b32 s28, s41, 15')
        elif self.headmap.startswith('G'):
            G = int(self.headmap[1:]); per = 16 // G
            A('s_and_b32 s40, s2, 7')
            A('s_lshr_b32 s41, s2, 3')
            A(f's_lshr_b32 s27, s41, {per.bit_length() - 1}')
            A(f's_and_b32 s28, s41, {per - 1}')
            A(f's_mul_i32 s28, s28, {G}')
            A(f's_and_b32 s41, s40, {G - 1}')
            A('s_add_u32 s28, s28, s41')
            A(f's_lshr_b32 s40, s40, {G.bit_length() - 1}')
            A(f's_mul_i32 s40, s40, {2 * G}')
            A('s_add_u32 s27, s27, s40')
        else:
            A('s_and_b32 s27, s2, 7')
            A('s_lshl_b32 s27, s27, 1')
            A('s_lshr_b32 s28, s2, 3')
            A('s_and_b32 s28, s28, 1')
            A('s_add_u32 s27, s27, s28')
            A('s_lshr_b32 s28, s2, 4')
        if self.ffnmap == 'spread':
            A('s_and_b32 s40, s27, 1')
            A('s_lshl_b32 s96, s27, 2')
            A('s_and_b32 s41, s28, 3')
            A('s_add_u32 s96, s96, s41')
            A('s_xor_b32 s41, s40, 1')
            A('s_lshl_b32 s41, s41, 2')
            A('s_bfe_u32 s42, s27, 0x20001')
            A('s_add_u32 s41, s41, s42')
            A('s_add_u32 s97, s27, 64')
            A('s_cmp_lt_u32 s27, 8')
            A('s_cselect_b32 s97, s97, 255')
            A('s_cmp_eq_u32 s28, s41')
            A('s_cselect_b32 s97, s97, 255')
            A('s_lshr_b32 s41, s28, 2')
            A('s_cmp_eq_u32 s41, s40')
            A('s_cselect_b32 s96, s96, s97')
        else:
            A('s_lshl_b32 s96, s27, 2')
            A('s_add_u32 s96, s96, s28')
            A('s_add_u32 s97, s27, 64')
            A('s_cmp_lt_u32 s27, 8')
            A('s_cselect_b32 s97, s97, 255')
            A('s_cmp_eq_u32 s28, 4')
            A('s_cselect_b32 s97, s97, 255')
            A('s_cmp_lt_u32 s28, 4')
            A('s_cselect_b32 s96, s96, s97')
        if self.redmap == 'spread':
            A('s_mul_i32 s97, s27, 3')
            A('s_sub_u32 s40, s28, s97')
            A('s_and_b32 s40, s40, 7')
            A('s_add_u32 s97, s97, s40')
            A('s_cmp_lt_u32 s40, 3')
            A('s_cselect_b32 s97, s97, 255')
            A('s_cmp_ge_u32 s28, 8')
            A('s_cselect_b32 s97, s97, 255')
        else:
            A('s_mul_i32 s97, s27, 3')
            A('s_add_u32 s97, s97, s28')
            A('s_sub_u32 s97, s97, 13')
            A('s_cmp_ge_u32 s28, 13')
            A('s_cselect_b32 s97, s97, 255')
        A('v_readfirstlane_b32 s26, v1')
        A('v_and_b32 v1, 63, v0')
        if self.fastpro:
            A('s_cmp_ge_u32 s26, 8')
            A('s_cbranch_scc1 L_helper')
            A('s_cmp_ge_u32 s26, 4')
            A('s_cbranch_scc1 L_loader')
        A('s_cmp_lg_u32 s26, 0')
        A('s_cbranch_scc1 L_noinit')
        A(f'v_lshlrev_b32 v2, 2, v1')
        A(f'v_add_u32 v2, {FL}, v2')
        A('v_mov_b32 v3, 0')
        A('ds_write_b32 v2, v3')
        self.L('L_noinit')
        A('s_waitcnt lgkmcnt(0)')
        if self.fastpro:
            A('s_barrier')
            return
        if self.hfirst:
            A('s_cmp_ge_u32 s26, 8')
            A('s_cbranch_scc1 L_helper')
        A('s_barrier')
        if not self.hfirst:
            A('s_cmp_ge_u32 s26, 8')
            A('s_cbranch_scc1 L_helper')
        A('s_cmp_ge_u32 s26, 4')
        A('s_cbranch_scc1 L_loader')

    def loader(self):
        A, W = self.A, self.W
        self.L('L_loader')
        self.pending = []
        if 'noload' in self.exp:
            A('s_endpgm')
        A('s_sub_u32 s29, s26, 4')
        A('s_lshl_b32 s40, s27, 24')
        A('s_add_u32 s30, s6, s40')
        A('s_addc_u32 s31, s7, 0')
        A('s_add_u32 s32, s8, s40')
        A('s_addc_u32 s33, s9, 0')
        A('s_lshl_b32 s41, s28, 2')
        A('s_add_u32 s41, s41, s29')
        A(f's_mul_i32 s40, s27, {self.rot * 64}')
        A('s_add_u32 s41, s41, s40')
        A('s_and_b32 s41, s41, 4095')
        A(f's_mul_i32 s38, s29, {RING}')
        A('v_lshrrev_b32 v2, 4, v1')
        A('v_and_b32 v3, 15, v1')
        A('v_lshlrev_b32 v4, 1, v2')
        A('v_xor_b32 v3, v3, v4')
        A('v_lshlrev_b32 v3, 4, v3')
        A('v_lshl_add_u32 v6, v2, 8, v3')
        A('v_xor_b32 v7, 128, v6')
        A('s_lshl_b32 s40, s29, 2')
        A(f's_add_u32 s40, s40, {FL}')
        A('v_mov_b32 v8, s40')
        A('s_mov_b32 s35, 0')
        A('s_mov_b32 s39, 0')
        A('v_mov_b32 v10, 0')
        A('s_mov_b32 s60, 0')
        A('s_mov_b32 s61, 0')
        if 'noprio' not in self.exp:
            A('s_setprio 2')
        pub_pos = (W - 1) % 8
        pub_off = (pub_pos - W + 1) // 8

        def publish(val_sreg_or_expr):
            A(f'v_mov_b32 v9, {val_sreg_or_expr}')
            A('s_mov_b64 exec, 1')
            A('ds_write_b32 v8, v9')
            A('s_mov_b64 exec, -1')

        US = self.US
        A(f's_mul_i32 s44, s27, {self.rot * 64}')
        A('s_add_u32 s44, s44, s29')
        A(f's_add_u32 s44, s44, {US * 64}')
        A('v_mov_b32 v11, 0')
        A('v_mov_b32 v13, 0')
        self.L('L_ld_loop')
        for u in range(4):
            ok = self.lab('L_ld_ok')
            sp = self.lab('L_ld_spin')
            st = self.lab('L_ld_static')
            idok = self.lab('L_ld_idok')
            idsp = self.lab('L_ld_idspin')
            if self.stamps and u == 0:
                for q, nn in enumerate((4, 8, 16, 32, 48)):
                    l = self.lab('L_ld_st')
                    A(f's_cmp_lg_u32 s35, {nn}')
                    A(f's_cbranch_scc1 {l}')
                    self.stamp(16 + q)
                    self.L(l)
            A('s_waitcnt lgkmcnt(0)')
            A('v_readfirstlane_b32 s39, v10')
            A('v_readfirstlane_b32 s45, v11')
            if self.Wend:
                A('v_readfirstlane_b32 s47, v13')
            A(f's_cmp_lt_u32 s35, {US}')
            A(f's_cbranch_scc1 {st}')
            A('s_cmp_lg_u32 s45, 0')
            A(f's_cbranch_scc1 {idok}')
            if self.stamps:
                A('s_add_u32 s61, s61, 1')
            A('s_waitcnt vmcnt(0)')
            publish('s35')
            self.spin_begin(42)
            self.L(idsp)
            A('ds_read_b32 v11, v12')
            A('s_waitcnt lgkmcnt(0)')
            A('v_readfirstlane_b32 s45, v11')
            A('s_cmp_lg_u32 s45, 0')
            A(f's_cbranch_scc1 {idok}')
            self.spin_retry(42, idsp, sleep=1)
            A('s_branch L_ld_end')
            self.L(idok)
            A('s_cmp_eq_u32 s45, -1')
            A('s_cbranch_scc1 L_ld_end')
            A('s_sub_u32 s45, s45, 1')
            A('s_lshl_b32 s45, s45, 2')
            A('s_add_u32 s41, s45, s44')
            A('s_and_b32 s41, s41, 4095')
            self.L(st)
            A('s_add_u32 s40, s39, 3')
            A('s_cmp_ge_u32 s40, s35')
            A(f's_cbranch_scc1 {ok}')
            A('s_waitcnt vmcnt(0)')
            publish('s35')
            if self.stamps:
                A('s_add_u32 s60, s60, 1')
            self.spin_begin(42)
            self.L(sp)
            A('ds_read_b32 v10, v8 offset:16')
            A('s_waitcnt lgkmcnt(0)')
            A('v_readfirstlane_b32 s39, v10')
            A('s_add_u32 s40, s39, 3')
            A('s_cmp_ge_u32 s40, s35')
            A(f's_cbranch_scc1 {ok}')
            self.spin_retry(42, sp, sleep=1)
            self.L(ok)
            A('s_lshl_b32 s40, s41, 12')
            A('s_add_u32 s46, s35, 1')
            A(f's_sub_i32 s46, s46, {US}')
            A('s_max_i32 s46, s46, 0')
            A('s_lshl_b32 s46, s46, 2')
            A(f's_add_u32 s46, s46, {IDS}')
            A('v_mov_b32 v12, s46')
            def issue(Wx):
                pp = (Wx - 1) % 8
                po = (pp - Wx + 1) // 8
                for kv in range(2):
                    A(f's_add_u32 s36, s{30 + 2 * kv}, s40')
                    A(f's_addc_u32 s37, s{31 + 2 * kv}, 0')
                    A(f's_add_u32 m0, s38, {(2 * u + kv) * 4096}')
                    for jj in range(4):
                        A(f's_waitcnt vmcnt({Wx - 1})')
                        if kv * 4 + jj == pp:
                            skip = self.lab('L_ld_np')
                            if po < 0:
                                A(f's_cmp_lt_u32 s35, {-po}')
                                A(f's_cbranch_scc1 {skip}')
                                A(f's_sub_u32 s43, s35, {-po}')
                                publish('s43')
                                self.L(skip)
                            else:
                                publish('s35')
                        pol = ' nt'
                        if (kv == 1 and 'vplain' in self.exp) or (kv == 0 and 'kplain' in self.exp):
                            pol = ''
                        A(f'global_load_lds_dwordx4 v{6 + (jj & 1)}, s[36:37] offset:{jj * 1024}{pol}')
                        if self.earlyflags and kv == 1 and jj == 1:
                            A('ds_read_b32 v10, v8 offset:16')
                            A('ds_read_b32 v11, v12')
                            if self.Wend:
                                A('ds_read_b32 v13, v8 offset:48')
            if self.Wend:
                fast = self.lab('L_ld_fast')
                join = self.lab('L_ld_join')
                A('s_cmp_lg_u32 s47, 0')
                A(f's_cbranch_scc1 {fast}')
                issue(W)
                A(f's_branch {join}')
                self.L(fast)
                issue(self.Wend)
                self.L(join)
                if not self.earlyflags:
                    A('ds_read_b32 v13, v8 offset:48')
            else:
                issue(W)
            if not self.earlyflags:
                A('ds_read_b32 v10, v8 offset:16')
                A('ds_read_b32 v11, v12')
            A('s_add_u32 s41, s41, 64')
            A('s_and_b32 s41, s41, 4095')
            A('s_add_u32 s35, s35, 1')
        A('s_branch L_ld_loop')
        self.L('L_ld_end')
        A('s_waitcnt vmcnt(0)')
        A('s_or_b32 s43, s35, 0x80000000')
        publish('s43')
        A('s_waitcnt lgkmcnt(0)')
        if self.stamps:
            A('s_cmp_lg_u32 s26, 4')
            A('s_cbranch_scc1 L_ld_ns')
            self.stamp(8)
            self.flush_stamps(extra=[(9, 60), (21, 35), (22, 61)])
            self.L('L_ld_ns')
        A('s_endpgm')


    def loader_tk(self):
        A, W, US = self.A, self.W, self.US
        self.L('L_loader')
        self.pending = []
        if 'noload' in self.exp:
            A('s_endpgm')
        A('s_sub_u32 s29, s26, 4')
        xt = 'xt4' in self.exp
        if xt:
            A('s_mov_b32 s30, s6')
            A('s_mov_b32 s31, s7')
            A('s_mov_b32 s32, s8')
            A('s_mov_b32 s33, s9')
            A('s_lshr_b32 s54, s27, 2')
            A(f's_mul_i32 s44, s54, {self.xrot}')
            A('s_and_b32 s40, s27, 3')
            A('s_lshl_b32 s41, s40, 4')
            A('s_add_u32 s41, s41, s28')
            A('s_lshl_b32 s41, s41, 2')
            A('s_add_u32 s49, s41, s44')
            A(f's_mul_i32 s40, s40, {(64 - US) * 64}')
            A('s_add_u32 s44, s44, s40')
            A(f's_add_u32 s44, s44, {(US - 48) * 256}')
            A('s_lshl_b32 s54, s54, 2')
            A('s_add_u32 s55, s54, 3')
            A('s_lshl_b32 s55, s55, 12')
        else:
            if not self.fastpro:
                A('s_lshl_b32 s40, s27, 24')
                A('s_add_u32 s30, s6, s40')
                A('s_addc_u32 s31, s7, 0')
                A('s_add_u32 s32, s8, s40')
                A('s_addc_u32 s33, s9, 0')
            A(f's_mul_i32 s44, s27, {self.rot * 64}')
            A('s_lshl_b32 s41, s28, 2')
            A('s_add_u32 s49, s41, s44')
            A(f's_add_u32 s44, s44, {US * 64}')
        A(f's_mul_i32 s38, s29, {RING}')
        A('v_lshrrev_b32 v2, 4, v1')
        A('v_and_b32 v3, 15, v1')
        A('v_lshlrev_b32 v4, 1, v2')
        A('v_xor_b32 v3, v3, v4')
        A('v_lshlrev_b32 v3, 4, v3')
        A('v_lshl_add_u32 v6, v2, 8, v3')
        A('v_xor_b32 v7, 128, v6')
        A('s_lshl_b32 s40, s29, 2')
        A(f's_add_u32 s40, s40, {FL}')
        A('v_mov_b32 v8, s40')
        A(f'v_mov_b32 v14, {FL}')
        A('v_mov_b32 v16, 1')
        if self.fastpro:
            A('s_add_u32 s41, s49, s29')
            A('s_and_b32 s41, s41, 4095')
            A('s_lshl_b32 s41, s41, 12')
            A('s_lshl_b32 s40, s27, 24')
            A('s_add_u32 s41, s41, s40')
            A('s_mov_b32 m0, s38')
            A('s_waitcnt lgkmcnt(0)')
        A('s_mov_b32 s35, 0')
        A('s_mov_b32 s46, s29')
        A('v_mov_b32 v10, 0')
        A('v_mov_b32 v11, 0')
        A('v_mov_b32 v13, 0')
        A(f'v_mov_b32 v12, {IDS}')
        A('v_mov_b32 v18, 0')
        A('v_mov_b32 v19, 0')
        if self.share2:
            for r in range(20, 24):
                A(f'v_mov_b32 v{r}, 0')
        A('s_mov_b32 s60, 0')
        A('s_mov_b32 s61, 0')
        A('s_setprio 2')

        def publish(val):
            A(f'v_mov_b32 v9, {val}')
            A('s_mov_b64 exec, 1')
            A('ds_write_b32 v8, v9')
            A('s_mov_b64 exec, -1')

        if self.fastpro:
            assert not xt and self.tk_pos >= 4 and (W - 1) % 8 >= 4
            A('s_add_u32 s36, s6, s41')
            A('s_addc_u32 s37, s7, 0')
            for jj in range(4):
                A(f'global_load_lds_dwordx4 v{6 + (jj & 1)}, s[36:37] offset:{jj * 1024} nt')
            A('s_add_u32 s30, s6, s40')
            A('s_addc_u32 s31, s7, 0')
            A('s_add_u32 s32, s8, s40')
            A('s_addc_u32 s33, s9, 0')
            A('s_sub_u32 s40, s41, s40')
            A('s_barrier')
            if self.stamps:
                self.stamp_at(28, 6)
            A('s_branch L_ld_first_v')
        elif self.stamps:
            self.stamp_at(28, 6)
        self.L('L_ld_loop')
        for u in range(4):
            ok = self.lab('L_ld_ok')
            sp = self.lab('L_ld_spin')
            st = self.lab('L_ld_static')
            adr = self.lab('L_ld_adr')
            idok = self.lab('L_ld_idok')
            idsp = self.lab('L_ld_idspin')
            if self.stamps:
                for q, nn in enumerate(self.prog_pts):
                    if nn % 4 != u:
                        continue
                    l = self.lab('L_ld_st')
                    A(f's_cmp_lg_u32 s35, {nn}')
                    A(f's_cbranch_scc1 {l}')
                    self.stamp_at(16 + q, q)
                    self.L(l)
            A('s_waitcnt lgkmcnt(0)')
            A('v_readfirstlane_b32 s39, v10')
            A('v_readfirstlane_b32 s45, v11')
            A('v_readfirstlane_b32 s47, v13')
            A('s_lshr_b32 s41, s46, 2')
            A('s_and_b32 s43, s46, 3')
            A(f's_cmp_lt_u32 s41, {US}')
            A(f's_cbranch_scc1 {st}')
            if self.share and self.share2:
                rdy = self.lab('L_ld_rdy')
                shsp = self.lab('L_ld_shspin')
                zb = self.lab('L_ld_zb')
                zrdy = self.lab('L_ld_zrdy')
                zsp = self.lab('L_ld_zspin')
                zf = self.lab('L_ld_zf')
                A('v_readfirstlane_b32 s45, v20')
                A('s_cmp_lg_u32 s45, 0')
                A(f's_cbranch_scc1 {rdy}')
                if self.stamps:
                    A('s_add_u32 s61, s61, 1')
                A('s_waitcnt vmcnt(0)')
                publish('s35')
                self.spin_begin(42)
                self.L(shsp)
                A(f'ds_read_b128 v[20:23], v12')
                A('s_waitcnt lgkmcnt(0)')
                A('v_readfirstlane_b32 s45, v20')
                A('s_cmp_lg_u32 s45, 0')
                A(f's_cbranch_scc1 {rdy}')
                self.spin_retry(42, shsp, sleep=1)
                A('s_branch L_ld_end')
                self.L(rdy)
                A('v_readfirstlane_b32 s52, v22')
                A(f's_sub_u32 s51, s46, {4 * US - 1}')
                A('s_cmp_ge_u32 s51, s45')
                A(f's_cbranch_scc1 {zb}')
                A('v_readfirstlane_b32 s50, v21')
                A('s_add_u32 s41, s50, s51')
                A('s_add_u32 s41, s41, s44')
                A(f's_branch {zf}')
                self.L(zb)
                A('s_cmp_lg_u32 s52, 0')
                A(f's_cbranch_scc1 {zrdy}')
                A(f'ds_read_b128 v[20:23], v12')
                A('s_waitcnt lgkmcnt(0)')
                A('v_readfirstlane_b32 s52, v22')
                A('s_cmp_lg_u32 s52, 0')
                A(f's_cbranch_scc1 {zrdy}')
                if self.stamps:
                    A('s_add_u32 s61, s61, 0x100')
                A('s_waitcnt vmcnt(0)')
                publish('s35')
                self.spin_begin(42)
                self.L(zsp)
                A(f'ds_read_b128 v[20:23], v12')
                A('s_waitcnt lgkmcnt(0)')
                A('v_readfirstlane_b32 s52, v22')
                A('s_cmp_lg_u32 s52, 0')
                A(f's_cbranch_scc1 {zrdy}')
                self.spin_retry(42, zsp, sleep=1)
                A('s_branch L_ld_end')
                self.L(zrdy)
                A('v_readfirstlane_b32 s50, v23')
                A('s_sub_u32 s41, s51, s45')
                A('s_add_u32 s41, s41, 1')
                A('s_cmp_ge_u32 s41, s52')
                A('s_cbranch_scc1 L_ld_end')
                A('s_add_u32 s41, s41, s50')
                A('s_add_u32 s41, s41, s44')
                A(f's_add_u32 s41, s41, {(self.UB - US) * 64}')
                self.L(zf)
                A('s_add_u32 s47, s45, s52')
                A(f's_add_u32 s51, s51, {self.xfast + 1}')
                A('s_cmp_ge_u32 s51, s47')
                A('s_cselect_b32 s47, 1, 0')
                A('s_cmp_eq_u32 s52, 0')
                A('s_cselect_b32 s47, 0, s47')
                A('s_sub_u32 s41, s41, 1')
                A('s_and_b32 s41, s41, 4095')
                if xt:
                    A('s_or_b32 s41, s41, s55')
                A(f's_branch {adr}_b')
            elif self.share:
                rdy = self.lab('L_ld_rdy')
                shsp = self.lab('L_ld_shspin')
                A('v_readfirstlane_b32 s45, v18')
                A('s_cmp_lg_u32 s45, 0')
                A(f's_cbranch_scc1 {rdy}')
                if self.stamps:
                    A('s_add_u32 s61, s61, 1')
                A('s_waitcnt vmcnt(0)')
                publish('s35')
                self.spin_begin(42)
                self.L(shsp)
                A(f'ds_read_b64 v[18:19], v12')
                A('s_waitcnt lgkmcnt(0)')
                A('v_readfirstlane_b32 s45, v18')
                A('s_cmp_lg_u32 s45, 0')
                A(f's_cbranch_scc1 {rdy}')
                self.spin_retry(42, shsp, sleep=1)
                A('s_branch L_ld_end')
                self.L(rdy)
                A('v_readfirstlane_b32 s50, v19')
                A(f's_sub_u32 s51, s46, {4 * US - 1}')
                A('s_cmp_ge_u32 s51, s45')
                A('s_cbranch_scc1 L_ld_end')
                A(f's_add_u32 s47, s51, {self.xfast}')
                A('s_cmp_ge_u32 s47, s45')
                A('s_cselect_b32 s47, 1, 0')
                A('s_add_u32 s41, s50, s51')
                A('s_add_u32 s41, s41, s44')
                A('s_sub_u32 s41, s41, 1')
                A('s_and_b32 s41, s41, 4095')
                if xt:
                    A('s_or_b32 s41, s41, s55')
                A(f's_branch {adr}_b')
            A('s_cmp_lg_u32 s45, 0')
            A(f's_cbranch_scc1 {idok}')
            if self.stamps:
                A('s_add_u32 s61, s61, 1')
            A('s_waitcnt vmcnt(0)')
            publish('s35')
            self.spin_begin(42)
            self.L(idsp)
            A('ds_read_b32 v11, v12')
            A('s_waitcnt lgkmcnt(0)')
            A('v_readfirstlane_b32 s45, v11')
            A('s_cmp_lg_u32 s45, 0')
            A(f's_cbranch_scc1 {idok}')
            self.spin_retry(42, idsp, sleep=1)
            A('s_branch L_ld_end')
            self.L(idok)
            A('s_cmp_eq_u32 s45, -1')
            A('s_cbranch_scc1 L_ld_end')
            A('s_sub_u32 s45, s45, 1')
            A('s_lshl_b32 s41, s45, 2')
            A('s_add_u32 s41, s41, s44')
            A(f's_branch {adr}')
            self.L(st)
            if xt:
                A('s_lshr_b32 s48, s41, 4')
                A('s_add_u32 s48, s48, s54')
                A('s_lshl_b32 s48, s48, 12')
                A('s_and_b32 s41, s41, 15')
                A('s_lshl_b32 s41, s41, 8')
            else:
                A('s_lshl_b32 s41, s41, 6')
            A('s_add_u32 s41, s41, s49')
            self.L(adr)
            A('s_add_u32 s41, s41, s43')
            A('s_and_b32 s41, s41, 4095')
            if xt:
                A('s_or_b32 s41, s41, s48')
            self.L(f'{adr}_b')
            A('s_add_u32 s40, s39, 3')
            A('s_cmp_ge_u32 s40, s35')
            A(f's_cbranch_scc1 {ok}')
            A('s_waitcnt vmcnt(0)')
            publish('s35')
            if self.stamps:
                A('s_add_u32 s60, s60, 1')
            self.spin_begin(42)
            self.L(sp)
            A('ds_read_b32 v10, v8 offset:16')
            A('s_waitcnt lgkmcnt(0)')
            A('v_readfirstlane_b32 s39, v10')
            A('s_add_u32 s40, s39, 3')
            A('s_cmp_ge_u32 s40, s35')
            A(f's_cbranch_scc1 {ok}')
            self.spin_retry(42, sp, sleep=1)
            self.L(ok)
            A('s_lshl_b32 s40, s41, 12')

            def issue(Wx):
                pp = (Wx - 1) % 8
                po = (pp - Wx + 1) // 8
                for kv in range(2):
                    if self.fastpro and u == 0 and kv == 1 and Wx == W:
                        self.L('L_ld_first_v')
                    A(f's_add_u32 s36, s{30 + 2 * kv}, s40')
                    A(f's_addc_u32 s37, s{31 + 2 * kv}, 0')
                    A(f's_add_u32 m0, s38, {(2 * u + kv) * 4096}')
                    for jj in range(4):
                        A(f's_waitcnt vmcnt({Wx - 1})')
                        if kv * 4 + jj == pp:
                            skip = self.lab('L_ld_np')
                            if po < 0:
                                A(f's_cmp_lt_u32 s35, {-po}')
                                A(f's_cbranch_scc1 {skip}')
                                A(f's_sub_u32 s43, s35, {-po}')
                                publish('s43')
                                self.L(skip)
                            else:
                                publish('s35')
                        A(f'global_load_lds_dwordx4 v{6 + (jj & 1)}, s[36:37] offset:{jj * 1024} nt')
                        if kv * 4 + jj == self.tk_pos:
                            A('s_mov_b64 exec, 1')
                            A('ds_add_rtn_u32 v15, v14, v16 offset:52')
                            A('s_mov_b64 exec, -1')
                        if kv * 4 + jj == self.tk_pos + 2:
                            A('s_waitcnt lgkmcnt(0)')
                            A('v_readfirstlane_b32 s46, v15')
                            A('s_add_u32 s46, s46, 4')
                            if self.share and self.pertau:
                                for q, row in enumerate((self.C0, self.C)):
                                    l = self.lab('L_ld_ts')
                                    A(f's_cmp_lg_u32 s46, {4 * row}')
                                    A(f's_cbranch_scc1 {l}')
                                    A('s_memrealtime s[52:53]')
                                    A('s_waitcnt lgkmcnt(0)')
                                    A('v_mov_b32 v20, s52')
                                    A('s_mov_b64 exec, 1')
                                    A(f'ds_write_b32 v14, v20 offset:{232 + 4 * q}')
                                    A('s_mov_b64 exec, -1')
                                    self.L(l)
                            A('s_lshr_b32 s48, s46, 2')
                            A(f's_sub_i32 s48, s48, {US}')
                            A('s_max_i32 s48, s48, 0')
                            A(f's_min_i32 s48, s48, {CAP + 1}')
                            A('s_lshl_b32 s48, s48, 2')
                            A(f's_add_u32 s48, s48, {IDS}')
                            A('ds_read_b32 v10, v8 offset:16')
                            if self.share and self.share2:
                                A('ds_read_b128 v[20:23], v12')
                            elif self.share:
                                A('ds_read_b64 v[18:19], v12')
                                if self.ffnboost:
                                    A('ds_read_b32 v13, v14 offset:48')
                            else:
                                A('v_mov_b32 v12, s48')
                                A('ds_read_b32 v11, v12')
                                A('ds_read_b32 v13, v14 offset:48')
            fast = self.lab('L_ld_fast')
            join = self.lab('L_ld_join')
            A('s_cmp_lg_u32 s47, 0')
            A(f's_cbranch_scc1 {fast}')
            if self.nstart > u:
                A(f's_cmp_lt_u32 s35, {self.nstart}')
                A(f's_cbranch_scc1 {fast}')
            issue(W)
            A(f's_branch {join}')
            self.L(fast)
            issue(self.Wend)
            self.L(join)
            A('s_add_u32 s35, s35, 1')
        A('s_branch L_ld_loop')
        self.L('L_ld_end')
        if not self.w2late and self.wo_by == 'loader' and 'nowo' not in self.exp:
            A('s_lshl_b32 s40, s27, 4')
            A('s_add_u32 s40, s40, s28')
            A('s_mul_i32 s40, s40, 18432')
            A('s_mul_i32 s41, s29, 5120')
            A('s_add_u32 s40, s40, s41')
            A('s_add_u32 s36, s12, s40')
            A('s_addc_u32 s37, s13, 0')
            A(f's_add_u32 s41, s41, {STG}')
            A('s_mov_b32 m0, s41')
            A('v_lshlrev_b32 v17, 4, v1')
            for i in range(3):
                A(f'global_load_lds_dwordx4 v17, s[36:37] offset:{1024 * i} nt')
            A('s_cmp_eq_u32 s29, 3')
            A('s_cbranch_scc1 L_ld_wo3')
            A('global_load_lds_dwordx4 v17, s[36:37] offset:3072 nt')
            A('s_add_u32 s36, s36, 4096')
            A('s_addc_u32 s37, s37, 0')
            A('s_add_u32 m0, s41, 4096')
            A('s_nop 0')
            A('global_load_lds_dwordx4 v17, s[36:37] nt')
            A('s_waitcnt vmcnt(5)')
            A('s_branch L_ld_wodn')
            self.L('L_ld_wo3')
            A('s_waitcnt vmcnt(3)')
            self.L('L_ld_wodn')
        else:
            A('s_waitcnt vmcnt(0)')
        A('s_or_b32 s43, s35, 0x80000000')
        publish('s43')
        if not self.w2late and self.wo_by == 'loader':
            A('s_waitcnt lgkmcnt(0)')
            A('s_barrier')
            A('s_waitcnt vmcnt(0)')
            A('v_mov_b32 v9, 1')
            A('s_mov_b64 exec, 1')
            A('ds_write_b32 v8, v9 offset:240')
            A('s_mov_b64 exec, -1')
        A('s_waitcnt lgkmcnt(0)')
        if self.stamps:
            A('s_cmp_lg_u32 s26, 4')
            A('s_cbranch_scc1 L_ld_ns')
            while len(self.pending) < 5:
                self.pending.append(None)
            self.stamp(8)
            self.flush_stamps(extra=[(9, 60), (21, 35), (22, 61), (27, 90)])
            self.L('L_ld_ns')
        A('s_endpgm')


    def poll(self, name, loads, checks, sleep, allmask='-1', sr=60, probe=True):
        A = self.A
        inv, n, sw, cnt = sr, sr + 2, sr + 3, sr + 4
        if allmask == '-1':
            A(f's_mov_b64 s[{inv}:{inv+1}], -1')
        else:
            A(f's_mov_b64 s[{inv}:{inv+1}], {allmask}')
        A(f's_mov_b32 s{sw}, 1')
        A(f's_mov_b32 s{cnt}, {SPIN}')
        self.L(f'{name}_loop')
        A(f's_bcnt1_i32_b64 s{n}, s[{inv}:{inv+1}]')
        A(f's_cmp_le_u32 s{n}, {8 if probe else 64}')
        A(f's_cselect_b32 s{sw}, 1, s{sw}')
        A(f's_mov_b64 exec, s[{inv}:{inv+1}]')
        A(f's_cmp_lg_u32 s{sw}, 0')
        A(f's_cbranch_scc1 {name}_go')
        A(f's_ff1_i32_b64 s{n}, s[{inv}:{inv+1}]')
        A(f's_lshl_b64 exec, 1, s{n}')
        self.L(f'{name}_go')
        for l in loads:
            A(l)
        A('s_waitcnt vmcnt(0)')
        acc = checks()
        A(f'v_cmp_eq_u32 vcc, 0, v{acc}')
        A(f's_andn2_b64 s[{inv}:{inv+1}], s[{inv}:{inv+1}], vcc')
        A(f's_cmp_lg_u64 vcc, 0')
        A(f's_cselect_b32 s{n}, 1, 0')
        A(f's_xor_b32 s{sw}, s{sw}, 1')
        A(f's_and_b32 s{sw}, s{sw}, s{n}')
        A('s_mov_b64 exec, -1')
        A(f's_cmp_eq_u64 s[{inv}:{inv+1}], 0')
        A(f's_cbranch_scc1 {name}_done')
        if self.fastpoll:
            A(f's_bcnt1_i32_b64 s{n}, s[{inv}:{inv+1}]')
            A(f's_cmp_le_u32 s{n}, 8')
            A(f's_cbranch_scc1 {name}_ns')
        A(f's_sleep {sleep}')
        if self.fastpoll:
            self.L(f'{name}_ns')
        A(f's_sub_u32 s{cnt}, s{cnt}, 1')
        A(f's_cmp_lg_u32 s{cnt}, 0')
        A(f's_cbranch_scc1 {name}_loop')
        self.L(f'{name}_done')


    def poll2(self, name, mk_loads, basesA, basesB, acc, tmp, sleep, sr=60, stag=4, thresh=16, more=()):
        A = self.A
        inv, n, sw, cnt = sr, sr + 2, sr + 3, sr + 4
        nl = len(basesA)
        sets = [basesA, basesB] + list(more)
        A(f's_mov_b64 s[{inv}:{inv+1}], -1')
        A(f's_mov_b32 s{sw}, 1')
        A(f's_mov_b32 s{cnt}, {SPIN}')
        self.L(f'{name}_loop')
        A(f's_mov_b64 exec, s[{inv}:{inv+1}]')
        A(f's_cmp_lg_u32 s{sw}, 0')
        A(f's_cbranch_scc1 {name}_go')
        A(f's_ff1_i32_b64 s{n}, s[{inv}:{inv+1}]')
        A(f's_lshl_b64 exec, 1, s{n}')
        self.L(f'{name}_go')
        for l in mk_loads(basesA):
            A(l)
        A('s_waitcnt vmcnt(0)')
        self.chk3(basesA, acc, tmp)
        A(f'v_cmp_eq_u32 vcc, 0, v{acc}')
        A(f's_andn2_b64 s[{inv}:{inv+1}], s[{inv}:{inv+1}], vcc')
        A(f's_cmp_lg_u64 vcc, 0')
        A(f's_cselect_b32 s{n}, 1, 0')
        A(f's_xor_b32 s{sw}, s{sw}, 1')
        A(f's_and_b32 s{sw}, s{sw}, s{n}')
        A('s_mov_b64 exec, -1')
        A(f's_cmp_eq_u64 s[{inv}:{inv+1}], 0')
        A(f's_cbranch_scc1 {name}_done')
        A(f's_bcnt1_i32_b64 s{n}, s[{inv}:{inv+1}]')
        A(f's_cmp_le_u32 s{n}, {thresh}')
        A(f's_cbranch_scc1 {name}_p2')
        A(f's_sleep {sleep}')
        A(f's_sub_u32 s{cnt}, s{cnt}, 1')
        A(f's_cmp_lg_u32 s{cnt}, 0')
        A(f's_cbranch_scc1 {name}_loop')
        A(f's_branch {name}_done')
        self.L(f'{name}_p2')
        A(f's_mov_b64 exec, s[{inv}:{inv+1}]')
        for k, X in enumerate(sets):
            if k:
                A(f's_sleep {stag}')
            for l in mk_loads(X):
                A(l)
        self.L(f'{name}_p2l')
        for X in sets:
            A(f's_waitcnt vmcnt({nl * (len(sets) - 1)})')
            self.chk3(X, acc, tmp)
            A(f'v_cmp_eq_u32 vcc, 0, v{acc}')
            A(f's_and_b64 vcc, vcc, s[{inv}:{inv+1}]')
            if X is not basesA:
                A('s_mov_b64 exec, vcc')
                for bA, bB in zip(basesA, X):
                    for r in range(3):
                        A(f'v_mov_b32 v{bA + r}, v{bB + r}')
            A(f's_andn2_b64 s[{inv}:{inv+1}], s[{inv}:{inv+1}], vcc')
            A(f's_cmp_eq_u64 s[{inv}:{inv+1}], 0')
            A(f's_cbranch_scc1 {name}_done')
            A(f's_mov_b64 exec, s[{inv}:{inv+1}]')
            for l in mk_loads(X):
                A(l)
        A(f's_sub_u32 s{cnt}, s{cnt}, 1')
        A(f's_cmp_lg_u32 s{cnt}, 0')
        A(f's_cbranch_scc1 {name}_p2l')
        self.L(f'{name}_done')
        A('s_mov_b64 exec, -1')

    def pollm(self, name, mk_loads, sets, acc, stag, invs, anyr=60, first=True):
        A = self.A
        nl = len(sets[0])
        cnt = anyr + 4
        for iv in invs:
            A(f's_mov_b64 s[{iv}:{iv+1}], -1')
        A(f's_mov_b32 s{cnt}, {SPIN}')

        def check(X):
            for i, (b, iv) in enumerate(zip(X, invs)):
                A(f's_mov_b64 exec, s[{iv}:{iv+1}]')
                A(f'v_bitop3_b32 v{acc}, v{b}, v{b+1}, v{b+2} bitop3:0x96')
                A(f'v_bitop3_b32 v{acc}, v{acc}, v{b+3}, s29 bitop3:0x96')
                A(f'v_cmp_eq_u32 vcc, 0, v{acc}')
                A(f's_andn2_b64 s[{iv}:{iv+1}], s[{iv}:{iv+1}], vcc')
                if X is not sets[0]:
                    A('s_mov_b64 exec, vcc')
                    for r in range(3):
                        A(f'v_mov_b32 v{sets[0][i] + r}, v{b + r}')
            A(f's_or_b64 s[{anyr}:{anyr+1}], s[{invs[0]}:{invs[0]+1}], s[{invs[1]}:{invs[1]+1}]')
            for iv in invs[2:]:
                A(f's_or_b64 s[{anyr}:{anyr+1}], s[{anyr}:{anyr+1}], s[{iv}:{iv+1}]')
            A(f's_cbranch_scc0 {name}_done')

        def issue(X):
            for l, iv in zip(mk_loads(X), invs):
                A(f's_cmp_eq_u64 s[{iv}:{iv+1}], 0')
                A(f's_cselect_b64 exec, 1, s[{iv}:{iv+1}]')
                A(l)

        if first and len(sets) > 1:
            for l in mk_loads(sets[0]):
                A(l)
            A('s_waitcnt vmcnt(0)')
            check(sets[0])
            for k, X in enumerate(sets):
                if k:
                    A(f's_sleep {stag}')
                issue(X)
        else:
            for k, X in enumerate(sets):
                if k:
                    A(f's_sleep {stag}')
                for l in mk_loads(X):
                    A(l)
        self.L(f'{name}_loop')
        for X in sets:
            A(f's_waitcnt vmcnt({nl * (len(sets) - 1)})')
            check(X)
            issue(X)
        A(f's_sub_u32 s{cnt}, s{cnt}, 1')
        A(f's_cmp_lg_u32 s{cnt}, 0')
        A(f's_cbranch_scc1 {name}_loop')
        self.L(f'{name}_done')
        A('s_mov_b64 exec, -1')

    def chk3(self, groups, acc, tmp, tag=29):
        A = self.A
        for n, b in enumerate(groups):
            d = acc if n == 0 else tmp
            A(f'v_bitop3_b32 v{d}, v{b}, v{b+1}, v{b+2} bitop3:0x96')
            A(f'v_bitop3_b32 v{d}, v{d}, v{b+3}, s{tag} bitop3:0x96')
            if n:
                A(f'v_or_b32 v{acc}, v{acc}, v{tmp}')
        return acc

    def mkchk(self, b, tag=29):
        self.A(f'v_bitop3_b32 v{b+3}, v{b}, v{b+1}, v{b+2} bitop3:0x96')
        self.A(f'v_xor_b32 v{b+3}, s{tag}, v{b+3}')

    def cstamp(self, idx):
        self.stamp(idx)

    def cflush(self):
        if self.stamps:
            l = self.lab('L_nf')
            self.A('s_cmp_lg_u32 s26, 0')
            self.A(f's_cbranch_scc1 {l}')
            self.flush_stamps()
            self.L(l)

    def consumer(self):
        A = self.A
        self.pending = []
        KA, VA, FA = 2, 6, 14
        Q, O, KF, VF, S = 16, 32, 64, 80, 96
        MC, LS = 100, 101
        T = 102
        P = 118
        A(f's_mul_i32 s38, s26, {RING}')
        A('v_and_b32 v20, 15, v1')
        A('v_lshrrev_b32 v21, 4, v1')
        A('v_and_b32 v22, 7, v20')
        A('v_lshlrev_b32 v22, 1, v22')
        A('v_lshlrev_b32 v23, 8, v20')
        A('v_add_u32 v23, s38, v23')
        for i in range(4):
            A(f'v_add_u32 v24, {4 * i}, v21')
            A('v_xor_b32 v24, v24, v22')
            A(f'v_lshl_add_u32 v{KA + i}, v24, 4, v23')
        A('v_lshrrev_b32 v22, 2, v20')
        A('v_lshl_add_u32 v22, v21, 2, v22')
        A('v_and_b32 v24, 7, v22')
        A('v_lshlrev_b32 v23, 8, v22')
        A('v_add_u32 v23, s38, v23')
        A('v_and_b32 v25, 3, v20')
        A('v_lshl_add_u32 v23, v25, 3, v23')
        for m in range(8):
            A(f'v_xor_b32 v25, {m}, v24')
            A(f'v_lshl_add_u32 v{VA + m}, v25, 5, v23')
        A('s_lshl_b32 s40, s26, 2')
        A(f's_add_u32 s40, s40, {FL}')
        A(f'v_mov_b32 v{FA}, s40')
        for r in range(32):
            A(f'v_mov_b32 v{O + r}, 0')
        A(f'v_mov_b32 v{MC}, 0xff800000')
        A(f'v_mov_b32 v{LS}, 0')
        A(f's_mov_b32 s44, {LOG2E}')
        KB, VB = 128, 144
        def wait_full(done_label):
            go = self.lab('L_c_go')
            pl = self.lab('L_c_poll')
            A('s_and_b32 s40, s39, 0x7fffffff')
            A('s_cmp_gt_u32 s40, s35')
            A(f's_cbranch_scc1 {go}')
            self.spin_begin(42)
            self.L(pl)
            A(f'ds_read_b32 v{T}, v{FA}')
            A('s_waitcnt lgkmcnt(0)')
            A(f'v_readfirstlane_b32 s39, v{T}')
            A('s_and_b32 s40, s39, 0x7fffffff')
            A('s_cmp_gt_u32 s40, s35')
            A(f's_cbranch_scc1 {go}')
            A('s_cmp_lt_i32 s39, 0')
            A(f's_cbranch_scc1 {done_label}')
            self.spin_retry(42, pl, sleep=1)
            A(f's_branch {done_label}')
            self.L(go)
        def reads(u, kf, vf):
            for i in range(4):
                A(f'ds_read_b128 v[{kf + 4*i}:{kf + 4*i + 3}], v{KA + i} offset:{(2*u) * 4096}')
            for m in range(8):
                A(f'ds_read_b64_tr_b16 v[{vf + 2*m}:{vf + 2*m + 1}], v{VA + m} offset:{(2*u + 1) * 4096}')
            A('s_add_u32 s35, s35, 1')
        def qk(kf):
            for i in range(4):
                c = '0' if i == 0 else f'v[{S}:{S+3}]'
                A(f'v_mfma_f32_16x16x32_bf16 v[{S}:{S+3}], v[{kf + 4*i}:{kf + 4*i + 3}], v[{Q + 4*i}:{Q + 4*i + 3}], {c}')
        def free():
            A(f'v_mov_b32 v{T}, s35')
            A('s_waitcnt lgkmcnt(0)')
            A('s_mov_b64 exec, 1')
            A(f'ds_write_b32 v{FA}, v{T} offset:16')
            A('s_mov_b64 exec, -1')
        def softmax_pv(vf):
            nr = self.lab('L_c_nr')
            A(f'v_cvt_pk_bf16_f32 v{T}, v{S}, v{S+1}')
            A(f'v_cvt_pk_bf16_f32 v{T+1}, v{S+2}, v{S+3}')
            A(f'v_lshlrev_b32 v{T+2}, 16, v{T}')
            A(f'v_and_b32 v{T+3}, 0xffff0000, v{T}')
            A(f'v_lshlrev_b32 v{T+4}, 16, v{T+1}')
            A(f'v_and_b32 v{T+5}, 0xffff0000, v{T+1}')
            for r in range(4):
                A(f'v_mul_f32 v{T+2+r}, {SCALE:#x}, v{T+2+r}')
            A(f'v_cvt_pk_bf16_f32 v{T}, v{T+2}, v{T+3}')
            A(f'v_cvt_pk_bf16_f32 v{T+1}, v{T+4}, v{T+5}')
            A(f'v_lshlrev_b32 v{T+2}, 16, v{T}')
            A(f'v_and_b32 v{T+3}, 0xffff0000, v{T}')
            A(f'v_lshlrev_b32 v{T+4}, 16, v{T+1}')
            A(f'v_and_b32 v{T+5}, 0xffff0000, v{T+1}')
            A(f'v_max3_f32 v{T+6}, v{T+2}, v{T+3}, v{T+4}')
            A(f'v_max_f32 v{T+6}, v{T+6}, v{T+5}')
            A(f'v_mul_f32 v{T+6}, s44, v{T+6}')
            A(f'v_cmp_gt_f32 vcc, v{T+6}, v{MC}')
            A(f's_cbranch_vccz {nr}')
            self.xrow('v_max_f32', T + 6, T + 7)
            A(f'v_max_f32 v{T+6}, v{T+6}, v{MC}')
            A(f'v_sub_f32 v{T+7}, v{MC}, v{T+6}')
            A(f'v_exp_f32 v{T+7}, v{T+7}')
            A(f'v_mov_b32 v{MC}, v{T+6}')
            A(f'v_mul_f32 v{LS}, v{LS}, v{T+7}')
            for r in range(32):
                A(f'v_mul_f32 v{O + r}, v{O + r}, v{T+7}')
            self.L(nr)
            for r in range(4):
                A(f'v_fma_f32 v{T+2+r}, v{T+2+r}, s44, -v{MC}')
            for r in range(4):
                A(f'v_exp_f32 v{T+2+r}, v{T+2+r}')
            A('s_nop 0')
            A(f'v_cvt_pk_bf16_f32 v{P}, v{T+2}, v{T+3}')
            A(f'v_cvt_pk_bf16_f32 v{P+1}, v{T+4}, v{T+5}')
            A(f'v_add_f32 v{T+2}, v{T+2}, v{T+3}')
            A(f'v_add_f32 v{T+4}, v{T+4}, v{T+5}')
            A(f'v_add_f32 v{LS}, v{LS}, v{T+2}')
            A(f'v_add_f32 v{LS}, v{LS}, v{T+4}')
            for m in range(8):
                A(f'v_mfma_f32_16x16x16_bf16 v[{O + 4*m}:{O + 4*m + 3}], v[{vf + 2*m}:{vf + 2*m + 1}], v[{P}:{P+1}], v[{O + 4*m}:{O + 4*m + 3}]')

        A('v_lshlrev_b32 v123, 9, v20')
        A('v_lshl_add_u32 v123, v21, 4, v123')
        A('s_lshl_b32 s40, s26, 10')
        A(f's_add_u32 s40, s40, {OC}')
        A('v_add_u32 v123, s40, v123')
        A('s_lshl_b32 s40, s26, 4')
        A(f's_add_u32 s40, s40, {OCML}')
        A('v_lshlrev_b32 v124, 3, v20')
        A('v_add_u32 v124, s40, v124')
        A('s_lshl_b32 s40, s26, 6')
        A('v_add_u32 v122, s40, v1')
        A('v_lshrrev_b32 v125, 3, v122')
        A('v_lshlrev_b32 v125, 6, v125')
        A('v_and_b32 v122, 7, v122')
        A('v_mul_u32_u24 v122, 12, v122')
        A('v_add_u32 v125, v125, v122')
        A(f'v_add_u32 v125, {OC}, v125')
        A('s_mov_b32 s35, 0')
        A('s_mov_b32 s39, 0')
        A(f'v_and_b32 v15, 1, v20')
        A(f'v_lshlrev_b32 v15, 8, v15')
        A(f'v_lshl_add_u32 v15, v21, 4, v15')
        A(f'v_add_u32 v15, {QL}, v15')
        if self.preread and 'noload' not in self.exp:
            wait_full('L_c_done')
            reads(0, KF, VF)
            free()
            wait_full('L_c_done')
            reads(1, KB, VB)
            free()
        A(f'v_mov_b32 v{T}, {FL}')
        self.spin_begin(42)
        self.L('L_c_qwait')
        A(f'ds_read_b32 v{T+2}, v{T} offset:32')
        A('s_waitcnt lgkmcnt(0)')
        A(f'v_readfirstlane_b32 s40, v{T+2}')
        A('s_cmp_lg_u32 s40, 0')
        A('s_cbranch_scc1 L_c_qok')
        if 'noq' in self.exp:
            A('s_branch L_c_qok')
        self.spin_retry(42, 'L_c_qwait', sleep=2)
        self.L('L_c_qok')
        for i in range(4):
            A(f'ds_read_b128 v[{Q + 4*i}:{Q + 4*i + 3}], v15 offset:{64 * i}')
        A('s_waitcnt lgkmcnt(0)')
        self.cstamp(1)
        if 'noload' in self.exp:
            self.cflush()
            A('s_endpgm')
        if self.preread:
            qk(KF)
            A('s_nop 7')
            softmax_pv(VF)
            qk(KB)
            A('s_nop 7')
            softmax_pv(VB)
            A('s_branch L_c_u2')
        self.L('L_c_loop')
        for u in range(4):
            if u == 2:
                self.L('L_c_u2')
            wait_full('L_c_done')
            reads(u, KF, VF)
            A('s_waitcnt lgkmcnt(8)')
            qk(KF)
            free()
            A('s_nop 3')
            softmax_pv(VF)
        A('s_branch L_c_loop')
        self.L('L_c_done')

        self.cstamp(2)
        if 'notail' in self.exp:
            self.cflush()
            A('s_endpgm')
        A('s_mov_b32 s46, 0x00030003')
        A('s_mov_b32 s47, 0x00030003')
        A('s_mov_b64 exec, s[46:47]')
        for m in range(8):
            A(f'ds_write_b128 v123, v[{O + 4*m}:{O + 4*m + 3}] offset:{64 * m}')
        A('s_mov_b64 exec, -1')
        self.xrow('v_add_f32', LS, T)
        A('s_mov_b64 exec, 3')
        A(f'ds_write_b64 v124, v[{MC}:{LS}]')
        A('s_mov_b64 exec, -1')
        A(f'v_mov_b32 v{T+3}, {FL}')
        A(f'ds_read_b32 v68, v{T+3} offset:36')
        A('s_lshl_b32 s51, s27, 4')
        A('s_add_u32 s51, s51, s28')
        A('s_waitcnt lgkmcnt(0)')
        A('s_barrier')
        A('v_readfirstlane_b32 s29, v68')
        A('s_cmp_ge_u32 s26, 2')
        A('s_cbranch_scc1 L_c_nopub')
        A('s_lshl_b32 s45, s26, 3')
        A(f's_add_u32 s45, s45, {OCML}')
        A(f'v_mov_b32 v{T+2}, s45')
        for k in range(4):
            A(f'ds_read_b64 v[{70 + 2*k}:{71 + 2*k}], v{T+2} offset:{16 * k}')
        for k in range(4):
            for i in range(3):
                A(f'ds_read_b32 v{32 + 4*i + k}, v125 offset:{1024 * k + 4 * i}')
        A('s_lshl_b32 s45, s51, 11')
        A(f's_add_u32 s45, s45, {WS_P}')
        A('s_add_u32 s48, s24, s45')
        A('s_addc_u32 s49, s25, 0')
        A('s_lshl_b32 s40, s26, 10')
        A(f'v_lshlrev_b32 v{T+3}, 4, v1')
        A(f'v_add_u32 v{T+3}, s40, v{T+3}')
        A('s_mov_b32 s46, 0x20202020')
        A('s_mov_b32 s47, 0x20202020')
        A('s_waitcnt lgkmcnt(12)')
        A('v_max3_f32 v80, v70, v72, v74')
        A('v_max_f32 v80, v80, v76')
        for k in range(4):
            A(f'v_sub_f32 v{82 + k}, v{70 + 2*k}, v80')
        for k in range(4):
            A(f'v_exp_f32 v{82 + k}, v{82 + k}')
        A('s_nop 0')
        A('v_mul_f32 v81, v71, v82')
        for k in range(1, 4):
            A(f'v_fmac_f32 v81, v{71 + 2*k}, v{82 + k}')
        A('s_waitcnt lgkmcnt(0)')
        for i in range(3):
            A(f'v_mul_f32 v{88 + i}, v{32 + 4*i}, v82')
        for k in range(1, 4):
            for i in range(3):
                A(f'v_fmac_f32 v{88 + i}, v{32 + 4*i + k}, v{82 + k}')
        A('v_cndmask_b32 v89, v89, v80, s[46:47]')
        A('v_cndmask_b32 v90, v90, v81, s[46:47]')
        self.mkchk(88)
        A(f'global_store_dwordx4 v{T+3}, v[88:91], s[48:49] sc1')
        A('s_branch L_c_pubdone')
        self.L('L_c_nopub')
        if self.w2late == 'after':
            A(f'v_lshlrev_b32 v{T}, 4, v1')
            A('s_sub_u32 s45, s26, 2')
            A('s_mul_i32 s40, s51, 18432')
            A('s_mul_i32 s58, s45, 9216')
            A('s_add_u32 s40, s40, s58')
            A('s_add_u32 s48, s12, s40')
            A('s_addc_u32 s49, s13, 0')
            A(f's_add_u32 s58, s58, {STG}')
            for i in range(9):
                if i % 4 == 0:
                    A(f's_add_u32 m0, s58, {1024 * i}')
                    A('s_nop 0')
                A(f'global_load_lds_dwordx4 v{T}, s[48:49] offset:{1024 * (i % 4)} nt')
                if i % 4 == 3:
                    A('s_add_u32 s48, s48, 4096')
                    A('s_addc_u32 s49, s49, 0')
            A('s_mul_i32 s40, s51, 20736')
            A('s_mul_i32 s58, s45, 11264')
            A('s_add_u32 s40, s40, s58')
            A('s_add_u32 s48, s18, s40')
            A('s_addc_u32 s49, s19, 0')
            A(f's_add_u32 s58, s58, {W2S}')
            for i in range(11):
                if i % 4 == 0:
                    A(f's_add_u32 m0, s58, {1024 * i}')
                    A('s_nop 0')
                if i == 9:
                    A('s_cmp_eq_u32 s45, 0')
                    A('s_cselect_b64 s[46:47], -1, 0xffff')
                    A('s_mov_b64 exec, s[46:47]')
                if i == 10:
                    A('s_mov_b64 exec, -1')
                    A('s_cmp_lg_u32 s45, 0')
                    A('s_cbranch_scc1 L_c_w2x')
                A(f'global_load_lds_dwordx4 v{T}, s[48:49] offset:{1024 * (i % 4)} nt')
                if i % 4 == 3:
                    A('s_add_u32 s48, s48, 4096')
                    A('s_addc_u32 s49, s49, 0')
            self.L('L_c_w2x')
            A('s_lshl_b32 s45, s26, 2')
            A(f's_add_u32 s45, s45, {FL + 32}')
            A(f'v_mov_b32 v{T+1}, s45')
            A(f'v_mov_b32 v{T+2}, 1')
            A('s_waitcnt vmcnt(10)')
            A('s_mov_b64 exec, 1')
            A(f'ds_write_b32 v{T+1}, v{T+2}')
            A('s_mov_b64 exec, -1')
        elif self.w2late:
            A(f'v_lshlrev_b32 v{T}, 4, v1')
            A('s_sub_u32 s45, s26, 2')
            A('s_mul_i32 s40, s51, 20736')
            A('s_mul_i32 s58, s45, 11264')
            A('s_add_u32 s40, s40, s58')
            A('s_add_u32 s48, s18, s40')
            A('s_addc_u32 s49, s19, 0')
            A(f's_add_u32 s58, s58, {W2S}')
            for i in range(11):
                if i % 4 == 0:
                    A(f's_add_u32 m0, s58, {1024 * i}')
                    A('s_nop 0')
                if i == 9:
                    A('s_cmp_eq_u32 s45, 0')
                    A('s_cselect_b64 s[46:47], -1, 0xffff')
                    A('s_mov_b64 exec, s[46:47]')
                if i == 10:
                    A('s_mov_b64 exec, -1')
                    A('s_cmp_lg_u32 s45, 0')
                    A('s_cbranch_scc1 L_c_w2x')
                A(f'global_load_lds_dwordx4 v{T}, s[48:49] offset:{1024 * (i % 4)} nt')
                if i % 4 == 3:
                    A('s_add_u32 s48, s48, 4096')
                    A('s_addc_u32 s49, s49, 0')
            self.L('L_c_w2x')
            A('s_mul_i32 s40, s51, 18432')
            A('s_mul_i32 s58, s45, 9216')
            A('s_add_u32 s40, s40, s58')
            A('s_add_u32 s48, s12, s40')
            A('s_addc_u32 s49, s13, 0')
            A(f's_add_u32 s58, s58, {STG}')
            for i in range(9):
                if i % 4 == 0:
                    A(f's_add_u32 m0, s58, {1024 * i}')
                    A('s_nop 0')
                A(f'global_load_lds_dwordx4 v{T}, s[48:49] offset:{1024 * (i % 4)} nt')
                if i % 4 == 3:
                    A('s_add_u32 s48, s48, 4096')
                    A('s_addc_u32 s49, s49, 0')
            A('s_lshl_b32 s45, s26, 2')
            A(f's_add_u32 s45, s45, {FL + 32}')
            A(f'v_mov_b32 v{T+1}, s45')
            A(f'v_mov_b32 v{T+2}, 1')
            A('s_waitcnt vmcnt(9)')
            A('s_mov_b64 exec, 1')
            A(f'ds_write_b32 v{T+1}, v{T+2} offset:16')
            A('s_mov_b64 exec, -1')
        if not self.w2late and self.wo_by == 'w23':
            A(f'v_lshlrev_b32 v{T}, 4, v1')
            A('s_sub_u32 s45, s26, 2')
            A('s_mul_i32 s40, s51, 18432')
            A('s_mul_i32 s58, s45, 9216')
            A('s_add_u32 s40, s40, s58')
            A('s_add_u32 s48, s12, s40')
            A('s_addc_u32 s49, s13, 0')
            A(f's_add_u32 s58, s58, {STG}')
            for i in range(9):
                if i % 4 == 0:
                    A(f's_add_u32 m0, s58, {1024 * i}')
                    A('s_nop 0')
                A(f'global_load_lds_dwordx4 v{T}, s[48:49] offset:{1024 * (i % 4)} nt')
                if i % 4 == 3:
                    A('s_add_u32 s48, s48, 4096')
                    A('s_addc_u32 s49, s49, 0')
            A('s_lshl_b32 s45, s26, 2')
            A(f's_add_u32 s45, s45, {FL + 32}')
            A(f'v_mov_b32 v{T+1}, s45')
            A(f'v_mov_b32 v{T+2}, 1')
            A('s_waitcnt vmcnt(0)')
            A('s_mov_b64 exec, 1')
            A(f'ds_write_b32 v{T+1}, v{T+2}')
            A('s_mov_b64 exec, -1')
        self.L('L_c_pubdone')
        self.cstamp(3)
        A(f'v_and_b32 v{T}, 15, v1')
        A(f'v_lshrrev_b32 v{T+1}, 4, v1')
        A(f'v_lshrrev_b32 v{T+3}, 2, v{T}')
        A(f'v_and_b32 v{T+4}, 3, v{T}')
        A(f'v_lshl_add_u32 v{T+5}, v{T+1}, 3, v{T+3}')
        A(f'v_mul_u32_u24 v{T+5}, 1152, v{T+5}')
        A(f'v_lshl_add_u32 v{T+5}, v{T+4}, 3, v{T+5}')
        A('s_mul_i32 s45, s26, 288')
        A(f'v_add_u32 v{T+5}, s45, v{T+5}')
        A(f'v_lshl_add_u32 v{T+3}, v{T+1}, 2, v{T+3}')
        A(f'v_mul_u32_u24 v{T+3}, 1152, v{T+3}')
        A(f'v_lshl_add_u32 v{T+3}, v{T+4}, 3, v{T+3}')
        A(f's_add_u32 s45, s45, {STG}')
        A(f'v_add_u32 v{T+3}, s45, v{T+3}')
        A(f'v_lshlrev_b32 v{T+6}, 4, v{T+1}')
        A(f'v_add_u32 v{T+6}, {AB}, v{T+6}')
        if self.w2late is True:
            A(f'ds_read_b128 v[68:71], v{T+6}')
        A(f'v_lshlrev_b32 v{T+2}, 3, v{T+1}')
        A(f'v_add_u32 v{T+2}, {OB}, v{T+2}')
        A('s_mul_i32 s50, s97, 0x5556')
        A('s_lshr_b32 s50, s50, 18')
        A('s_mul_i32 s58, s50, 12')
        A('s_sub_u32 s58, s97, s58')
        A('s_lshr_b32 s59, s58, 2')
        A('s_and_b32 s58, s58, 3')
        A('s_mul_i32 s50, s50, 9')
        A('s_mul_i32 s59, s59, 3')
        A('s_add_u32 s50, s50, s59')
        A('s_lshl_b32 s50, s50, 4')
        A('s_lshl_b32 s58, s58, 2')
        A('s_add_u32 s50, s50, s58')
        A('v_lshrrev_b32 v121, 2, v1')
        A('v_and_b32 v122, 3, v1')
        A('v_lshl_add_u32 v121, v121, 4, v122')
        A('v_add_u32 v121, s50, v121')
        A('v_lshlrev_b32 v121, 1, v121')
        A('s_mov_b32 s52, s4')
        A('s_mov_b32 s53, s5')
        A('s_mov_b32 s54, 1152')
        A('s_mov_b32 s55, 0x00020000')
        A('buffer_load_ushort v120, v121, s[52:55], 0 offen')
        def wait_flags(off, lab):
            A(f'v_mov_b32 v{T}, {FL}')
            self.spin_begin(42)
            self.L(lab)
            A(f'ds_read_b64 v[{T+8}:{T+9}], v{T} offset:{off}')
            A('s_waitcnt lgkmcnt(0)')
            A(f'v_and_b32 v{T+8}, v{T+8}, v{T+9}')
            A('s_nop 0')
            A(f'v_readfirstlane_b32 s40, v{T+8}')
            A('s_cmp_lg_u32 s40, 0')
            A(f's_cbranch_scc1 {lab}_ok')
            self.spin_retry(42, lab, sleep=1)
            self.L(f'{lab}_ok')
        def y_ffn():
            wait_flags(56, 'L_c_w2wait')
            for t in range(9):
                A(f'ds_read_b64_tr_b16 v[{32 + 4*t}:{33 + 4*t}], v{T+5} offset:{32 * t}')
                A(f'ds_read_b64_tr_b16 v[{34 + 4*t}:{35 + 4*t}], v{T+5} offset:{32 * t + 4608}')
                if t == 6:
                    A('s_waitcnt lgkmcnt(8)')
            for r in range(4):
                A(f'v_mov_b32 v{80 + r}, 0')
            A('s_waitcnt lgkmcnt(0)')
            for t in range(9):
                row = 4 * (t // 3) + t % 3
                A(f's_mov_b32 s46, {0x00010001 << row:#x}')
                A(f's_mov_b32 s47, {0x00010001 << row:#x}')
                m = 72 + 4 * (t & 1)
                for r in range(4):
                    A(f'v_cndmask_b32 v{m + r}, 0, v{68 + r}, s[46:47]')
                A('s_nop 1')
                A(f'v_mfma_f32_16x16x32_bf16 v[80:83], v[{m}:{m+3}], v[{32 + 4*t}:{35 + 4*t}], v[80:83]')
            A('s_mul_i32 s45, s51, 3072')
            A(f's_add_u32 s45, s45, {WS_Y2}')
            A('s_add_u32 s48, s24, s45')
            A('s_addc_u32 s49, s25, 0')
            A('s_mul_i32 s45, s26, 768')
            A(f'v_lshlrev_b32 v{T+7}, 4, v1')
            A(f'v_add_u32 v{T+7}, s45, v{T+7}')
            A('s_nop 3')
            self.mkchk(80)
            A('s_mov_b32 s46, -1')
            A('s_mov_b32 s47, 0xffff')
            A('s_mov_b64 exec, s[46:47]')
            A(f'global_store_dwordx4 v{T+7}, v[80:83], s[48:49] sc1')
            A('s_mov_b64 exec, -1')
        if self.w2late is True:
            y_ffn()
            A('s_cmp_lt_u32 s26, 2')
            A('s_cbranch_scc1 L_c_nowo')
            A('s_lshl_b32 s45, s26, 2')
            A(f's_add_u32 s45, s45, {FL + 32}')
            A(f'v_mov_b32 v{T+8}, s45')
            A(f'v_mov_b32 v{T+9}, 1')
            A('s_waitcnt vmcnt(2)')
            A('s_mov_b64 exec, 1')
            A(f'ds_write_b32 v{T+8}, v{T+9}')
            A('s_mov_b64 exec, -1')
            self.L('L_c_nowo')
        if self.w2late is not True:
            A('s_mul_i32 s45, s26, 768')
            A(f'v_lshlrev_b32 v{T+7}, 4, v1')
            A(f'v_add_u32 v{T+7}, s45, v{T+7}')
        if self.w2late or self.wo_by == 'w23':
            wait_flags(40, 'L_c_wowait')
        else:
            A(f'v_mov_b32 v{T}, {FL}')
            self.spin_begin(42)
            self.L('L_c_wowait')
            A(f'ds_read_b128 v[{T+8}:{T+11}], v{T} offset:240')
            A('s_waitcnt lgkmcnt(0)')
            A(f'v_and_b32 v{T+8}, v{T+8}, v{T+9}')
            A(f'v_and_b32 v{T+10}, v{T+10}, v{T+11}')
            A(f'v_and_b32 v{T+8}, v{T+8}, v{T+10}')
            A('s_nop 0')
            A(f'v_readfirstlane_b32 s40, v{T+8}')
            A('s_cmp_lg_u32 s40, 0')
            A('s_cbranch_scc1 L_c_wowait_ok')
            self.spin_retry(42, 'L_c_wowait', sleep=1)
            self.L('L_c_wowait_ok')
        for t in range(9):
            A(f'ds_read_b64_tr_b16 v[{68 + 2*t}:{69 + 2*t}], v{T+3} offset:{32 * t}')
        for r in range(4):
            A(f'v_mov_b32 v{96 + r}, 0')
        A('s_mul_i32 s45, s51, 3072')
        A(f's_add_u32 s45, s45, {WS_Y}')
        A('s_add_u32 s48, s24, s45')
        A('s_addc_u32 s49, s25, 0')
        A('s_waitcnt lgkmcnt(0)')
        A('s_barrier')
        self.cstamp(4)
        A(f'ds_read_b64 v[64:65], v{T+2}')
        A('s_mov_b32 s46, 0x00010001')
        A('s_mov_b32 s47, 0x00010001')
        A('s_waitcnt lgkmcnt(0)')
        for t in range(9):
            row = 4 * (t // 3) + t % 3
            A(f'v_cndmask_b32 v{88 + 2*(t&1)}, 0, v64, s[46:47]')
            A(f'v_cndmask_b32 v{89 + 2*(t&1)}, 0, v65, s[46:47]')
            if t < 8:
                nrow = 4 * ((t + 1) // 3) + (t + 1) % 3
                A(f's_lshl_b64 s[46:47], s[46:47], {nrow - row}')
            else:
                A('s_nop 0')
            A('s_nop 0')
            A(f'v_mfma_f32_16x16x16_bf16 v[96:99], v[{88 + 2*(t&1)}:{89 + 2*(t&1)}], v[{68 + 2*t}:{69 + 2*t}], v[96:99]')
        A('s_mov_b32 s46, -1')
        A('s_mov_b32 s47, 0xffff')
        A('s_nop 5')
        self.mkchk(96)
        A('s_mov_b64 exec, s[46:47]')
        A(f'global_store_dwordx4 v{T+7}, v[96:99], s[48:49] sc1')
        A('s_mov_b64 exec, -1')
        self.cstamp(5)
        if self.w2late == 'after':
            A('s_cmp_lt_u32 s26, 2')
            A('s_cbranch_scc1 L_c_now2')
            A('s_lshl_b32 s45, s26, 2')
            A(f's_add_u32 s45, s45, {FL + 48}')
            A(f'v_mov_b32 v{T+8}, s45')
            A(f'v_mov_b32 v{T+9}, 1')
            A('s_waitcnt vmcnt(2)')
            A('s_mov_b64 exec, 1')
            A(f'ds_write_b32 v{T+8}, v{T+9}')
            A('s_mov_b64 exec, -1')
            self.L('L_c_now2')
            A(f'ds_read_b128 v[68:71], v{T+6}')
            y_ffn()
        A(f's_cmp_lt_u32 s97, {NRED}')
        A('s_cbranch_scc1 L_c_red')
        self.cflush()
        A('s_endpgm')
        self.L('L_c_red')
        A('s_lshl_b32 s45, s26, 6')
        A(f'v_lshrrev_b32 v{T}, 2, v1')
        A(f'v_add_u32 v{T}, s45, v{T}')
        A(f'v_mul_u32_u24 v{T}, 3072, v{T}')
        A(f'v_and_b32 v{T+1}, 3, v1')
        A(f'v_lshl_add_u32 v{T}, v{T+1}, 4, v{T}')
        for i in range(1, 4):
            A(f'v_add_u32 v{T+i}, {3072 * 16 * i}, v{T}')
        A('s_lshl_b32 s45, s97, 6')
        A(f's_add_u32 s58, s45, {WS_Y}')
        A('s_add_u32 s48, s24, s58')
        A('s_addc_u32 s49, s25, 0')
        A(f's_add_u32 s58, s45, {WS_Y2}')
        A('s_add_u32 s56, s24, s58')
        A('s_addc_u32 s57, s25, 0')
        if self.w2late:
            def dl(bs):
                return [f'global_load_dwordx4 v[{b}:{b+3}], v{T + (i % 4)}, s[{48 if i < 4 else 56}:{49 if i < 4 else 57}] sc1' for i, b in enumerate(bs)]
            self.poll2('L_c_d', dl, [64, 68, 72, 76, 32, 36, 40, 44], [80, 84, 88, 92, 48, 52, 56, 60], 96, 97,
                       sleep=self.tsleep or 3, stag=self.stag, thresh=self.thresh)
            self.cstamp(24)
            S1, S2 = [106, 107, 108], [109, 110, 111]
            for r in range(3):
                A(f'v_add_f32 v{S1[r]}, v{64 + r}, v{68 + r}')
                A(f'v_add_f32 v{S2[r]}, v{32 + r}, v{36 + r}')
                A(f'v_add_f32 v{112 + r}, v{72 + r}, v{76 + r}')
                A(f'v_add_f32 v{115 + r}, v{40 + r}, v{44 + r}')
            for r in range(3):
                A(f'v_add_f32 v{S1[r]}, v{S1[r]}, v{112 + r}')
                A(f'v_add_f32 v{S2[r]}, v{S2[r]}, v{115 + r}')
            self.mrowred('v_add_f32', S1 + S2, (4, 8))
            self.mxrow('v_add_f32', S1 + S2, [112, 113, 114, 115, 116, 117])
            A('v_mov_b32 v112, v109')
            A('v_mov_b32 v113, v110')
            A('v_mov_b32 v114, v111')
            A('v_mov_b32 v104, v106')
            A('v_mov_b32 v105, v107')
            A('v_mov_b32 v106, v108')
            A('s_lshl_b32 s45, s26, 7')
            A(f's_add_u32 s45, s45, {RED}')
            A('v_lshlrev_b32 v118, 5, v1')
            A('v_add_u32 v118, s45, v118')
            A('s_mov_b64 exec, 15')
            A('ds_write_b128 v118, v[104:107]')
            A('ds_write_b128 v118, v[112:115] offset:16')
            A('s_mov_b64 exec, -1')
            A('v_lshrrev_b32 v116, 2, v1')
            A('v_and_b32 v117, 3, v1')
            A('v_lshlrev_b32 v116, 2, v116')
            A('v_lshl_add_u32 v116, v117, 5, v116')
            A(f'v_add_u32 v116, {RED}, v116')
            A('s_mov_b32 s52, s20')
            A('s_mov_b32 s53, s21')
            A('s_waitcnt lgkmcnt(0)')
            self.cstamp(25)
            A('s_barrier')
            self.cstamp(26)
            A('s_cmp_lg_u32 s26, 0')
            A('s_cbranch_scc1 L_end')
            for k in range(4):
                A(f'ds_read_b32 v{100 + k}, v116 offset:{128 * k}')
            for k in range(4):
                A(f'ds_read_b32 v{104 + k}, v116 offset:{128 * k + 16}')
            A('v_lshlrev_b32 v111, 16, v120')
            A('s_waitcnt lgkmcnt(0)')
            A('v_add_f32 v100, v100, v101')
            A('v_add_f32 v104, v104, v105')
            A('v_add_f32 v102, v102, v103')
            A('v_add_f32 v106, v106, v107')
            A('v_add_f32 v100, v100, v102')
            A('v_add_f32 v104, v104, v106')
            A('v_cvt_pk_bf16_f32 v100, v100, v104')
            A('v_lshlrev_b32 v101, 16, v100')
            A('v_and_b32 v104, 0xffff0000, v100')
            A('v_add_f32 v101, v111, v101')
            self.bf16r(101, 101, 102)
            A('v_add_f32 v101, v101, v104')
            A('v_cvt_pk_bf16_f32 v101, v101, v101')
            A('s_mov_b64 exec, 0xfff')
            A('buffer_store_short v101, v121, s[52:55], 0 offen')
            A('s_mov_b64 exec, -1')
        else:
            dl = lambda bs: [f'global_load_dwordx4 v[{b}:{b+3}], v{T+i}, s[48:49] sc1' for i, b in enumerate(bs)]
            if self.pm_d:
                self.pollm('L_c_d', dl, [[64, 68, 72, 76], [80, 84, 88, 92], [32, 36, 40, 44], [48, 52, 56, 60]][:self.nset_d], 96,
                           stag=self.stag_d, invs=[30, 32, 34, 36])
            else:
                self.poll2('L_c_d', dl,
                           [64, 68, 72, 76], [80, 84, 88, 92], 96, 97, sleep=self.tsleep or 3, stag=self.stag_d, thresh=self.thresh_d,
                           more=([32, 36, 40, 44], [48, 52, 56, 60])[:self.nset_d - 2])
            self.cstamp(24)
            S1 = [106, 107, 108]
            for r in range(3):
                A(f'v_add_f32 v{S1[r]}, v{64 + r}, v{68 + r}')
                A(f'v_add_f32 v{112 + r}, v{72 + r}, v{76 + r}')
            for r in range(3):
                A(f'v_add_f32 v{S1[r]}, v{S1[r]}, v{112 + r}')
            self.mrowred('v_add_f32', S1, (4, 8))
            self.mxrow('v_add_f32', S1, [112, 113, 114])
            A('s_lshl_b32 s45, s26, 6')
            A(f's_add_u32 s45, s45, {RED}')
            A('v_lshlrev_b32 v118, 4, v1')
            A('v_add_u32 v118, s45, v118')
            A('v_mov_b32 v104, v106')
            A('v_mov_b32 v105, v107')
            A('v_mov_b32 v106, v108')
            A('s_mov_b64 exec, 15')
            A('ds_write_b128 v118, v[104:107]')
            A('s_mov_b64 exec, -1')
            A('v_lshrrev_b32 v116, 2, v1')
            A('v_and_b32 v117, 3, v1')
            A('v_lshlrev_b32 v116, 2, v116')
            A('v_lshl_add_u32 v116, v117, 4, v116')
            A(f'v_add_u32 v117, {FFNR}, v116')
            A(f'v_add_u32 v116, {RED}, v116')
            A('ds_read_b32 v119, v117')
            A('s_mov_b32 s52, s20')
            A('s_mov_b32 s53, s21')
            A('s_waitcnt lgkmcnt(0)')
            self.cstamp(25)
            A('s_barrier')
            self.cstamp(26)
            A('s_cmp_lg_u32 s26, 0')
            A('s_cbranch_scc1 L_end')
            for k in range(4):
                A(f'ds_read_b32 v{100 + k}, v116 offset:{64 * k}')
            A('v_lshlrev_b32 v111, 16, v120')
            A('s_waitcnt lgkmcnt(0)')
            A('v_add_f32 v100, v100, v101')
            A('v_add_f32 v102, v102, v103')
            A('v_add_f32 v100, v100, v102')
            A('v_cvt_pk_bf16_f32 v100, v100, v119')
            A('v_lshlrev_b32 v101, 16, v100')
            A('v_and_b32 v104, 0xffff0000, v100')
            A('v_add_f32 v101, v111, v101')
            self.bf16r(101, 101, 102)
            A('v_add_f32 v101, v101, v104')
            A('v_cvt_pk_bf16_f32 v101, v101, v101')
            A('s_mov_b64 exec, 0xfff')
            A('buffer_store_short v101, v121, s[52:55], 0 offen')
            A('s_mov_b64 exec, -1')
        self.stamp(6)
        self.flush_stamps(extra=[(29, 64)])
        A('s_cmp_lg_u32 s97, 0')
        A('s_cbranch_scc1 L_end')
        A('v_mov_b32 v106, s29')
        A('v_mov_b32 v107, 0')
        A('s_mov_b64 exec, 1')
        A('global_store_dword v107, v106, s[24:25] sc1')
        A('s_branch L_end')

    def gemv64(self, acc, first, xoff_sreg):
        A = self.A
        NB = 5
        A(f'v_add_u32 v21, s{xoff_sreg}, v20')
        def rd(s):
            b = 40 + 10 * (s % NB)
            A(f'ds_read_b64 v[{b}:{b+1}], v21 offset:{32 * s}')
            for t in range(4):
                A(f'ds_read_b64_tr_b16 v[{b+2+2*t}:{b+3+2*t}], v{16 + t} offset:{2048 * s}')
        NP = 3
        for s in range(NP):
            rd(s)
        for s in range(9):
            left = min(9, s + NP) - s - 1
            A(f's_waitcnt lgkmcnt({5 * left})')
            b = 40 + 10 * (s % NB)
            for t in range(4):
                c = '0' if (first and s == 0) else f'v[{acc + 4*t}:{acc + 4*t + 3}]'
                A(f'v_mfma_f32_16x16x16_bf16 v[{acc + 4*t}:{acc + 4*t + 3}], v[{b}:{b+1}], v[{b+2+2*t}:{b+3+2*t}], {c}')
            if s + NP < 9:
                rd(s + NP)

    def dma_cols(self, sbase, pitch, voff, win=None):
        A = self.A
        A(f's_mov_b32 s36, s{sbase}')
        A(f's_mov_b32 s37, s{sbase+1}')
        for s in range(18):
            A(f's_mov_b32 m0, {STG + 1024 * s}')
            if win:
                A(f's_waitcnt vmcnt({win - 1})')
            else:
                A('s_nop 0')
            A(f'global_load_lds_dwordx4 v{voff}, s[36:37]' + ('' if 'colplain' in self.exp else ' nt'))
            if s < 17:
                A(f's_add_u32 s36, s36, {8 * pitch}')
                A('s_addc_u32 s37, s37, 0')

    def dma_rows(self, sbase, win=None):
        A = self.A
        A(f's_mov_b32 s36, s{sbase}')
        A(f's_mov_b32 s37, s{sbase+1}')
        for s in range(18):
            if s % 4 == 0:
                A(f's_mov_b32 m0, {STG + 1024 * s}')
                A('s_nop 0')
            if win:
                A(f's_waitcnt vmcnt({win - 1})')
            A(f'global_load_lds_dwordx4 v23, s[36:37] offset:{1024 * (s % 4)}' + ('' if 'rowplain' in self.exp else ' nt'))
            if s % 4 == 3:
                A('s_add_u32 s36, s36, 4096')
                A('s_addc_u32 s37, s37, 0')

    def tail_warm(self):
        A = self.A
        if 'nowarm' in self.exp:
            return
        if True:
            for i in range(2):
                A(f'global_load_dwordx4 v[{40 + 4*i}:{43 + 4*i}], v{34 + i}, s[48:49] sc1')
            A(f's_cmp_ge_u32 s97, {NRED}')
            A('s_cbranch_scc1 L_h_wdone')
            A('s_lshl_b32 s40, s97, 6')
            A(f's_add_u32 s40, s40, {WS_Y}')
            A('s_add_u32 s56, s24, s40')
            A('s_addc_u32 s57, s25, 0')
            A('v_lshrrev_b32 v38, 2, v1')
            A('v_mul_u32_u24 v38, 3072, v38')
            A('v_and_b32 v39, 3, v1')
            A('v_lshl_add_u32 v38, v39, 4, v38')
            A(f's_add_u32 s40, s40, {WS_Y2 - WS_Y}')
            A('s_add_u32 s50, s24, s40')
            A('s_addc_u32 s51, s25, 0')
            for i in range(16):
                A(f'global_load_dwordx4 v[{48 + 4*(i%4)}:{51 + 4*(i%4)}], v38, s[56:57] sc1')
                if self.w2late:
                    A(f'global_load_dwordx4 v[{64 + 4*(i%4)}:{67 + 4*(i%4)}], v38, s[50:51] sc1')
                A(f'v_add_u32 v38, {3072 * 16}, v38')
            self.L('L_h_wdone')
            A('s_waitcnt vmcnt(0)')

    def helper(self):
        A = self.A
        FW = self.ffn_win
        self.L('L_helper')
        self.pending = []
        A('s_memrealtime s[98:99]')
        A('s_setprio 3')
        if self.fastpro:
            A('v_mov_b32 v2, 0')
            A('s_mov_b32 s54, 1152')
            A('s_mov_b32 s55, 0x00020000')
            A('v_lshlrev_b32 v4, 1, v1')
            A('s_lshr_b32 s50, s2, 2')
            A('s_and_b32 s51, s2, 3')
            A('s_lshl_b32 s40, s50, 7')
            A(f's_mul_i32 s58, s51, {144 * 8192}')
            A('s_add_u32 s40, s40, s58')
            A('v_lshrrev_b32 v5, 3, v1')
            A('v_and_b32 v6, 7, v1')
            A('v_lshrrev_b32 v7, 4, v1')
            A('v_lshlrev_b32 v7, 1, v7')
            A('v_xor_b32 v6, v6, v7')
            A('v_lshlrev_b32 v6, 4, v6')
            A('v_lshl_add_u32 v22, v5, 13, v6')
            A('v_mul_u32_u24 v25, 9216, v5')
            A('v_add_u32 v25, v25, v6')
            A('v_lshlrev_b32 v23, 4, v1')
            A('s_waitcnt lgkmcnt(0)')
            A('s_mov_b32 s52, s4')
            A('s_mov_b32 s53, s5')
            for k in range(9):
                A(f'buffer_load_ushort v{30 + k}, v4, s[52:55], 0 offen offset:{128 * k}')
            A('global_load_dword v3, v2, s[24:25] sc1')
            A('s_add_u32 s56, s10, s40')
            A('s_addc_u32 s57, s11, 0')
            self.stamp(0)
            assert self.share
        else:
            self.stamp(0)
            if 'nohelper' in self.exp:
                self.flush_stamps()
                A('s_endpgm')
            A('v_mov_b32 v2, 0')
            A('global_load_dword v3, v2, s[24:25] sc1')
            A('s_and_b32 s40, s2, 15')
            A('s_cmp_lg_u32 s40, 0')
            A('s_cbranch_scc1 L_h_nozero')
            A('s_lshr_b32 s40, s2, 4')
            A(f's_mul_i32 s40, s40, {self.cstride}')
            A(f's_add_u32 s40, s40, {WS_CNT}')
            A('v_mov_b32 v5, s40')
            A('s_mov_b64 exec, 1')
            A('global_store_dword v5, v2, s[24:25] sc1')
            A('s_mov_b64 exec, -1')
            self.L('L_h_nozero')
            A('s_mov_b32 s52, s4')
            A('s_mov_b32 s53, s5')
            A('s_mov_b32 s54, 1152')
            A('s_mov_b32 s55, 0x00020000')
            A('v_lshlrev_b32 v4, 1, v1')
            for k in range(9):
                A(f'buffer_load_ushort v{30 + k}, v4, s[52:55], 0 offen offset:{128 * k}')
            A('s_lshr_b32 s50, s2, 2')
            A('s_and_b32 s51, s2, 3')
            A('s_lshl_b32 s40, s50, 7')
            A(f's_mul_i32 s58, s51, {144 * 8192}')
            A('s_add_u32 s40, s40, s58')
            A('s_add_u32 s56, s10, s40')
            A('s_addc_u32 s57, s11, 0')
            A('v_lshrrev_b32 v5, 3, v1')
            A('v_and_b32 v6, 7, v1')
            A('v_lshrrev_b32 v7, 4, v1')
            A('v_lshlrev_b32 v7, 1, v7')
            A('v_xor_b32 v6, v6, v7')
            A('v_lshlrev_b32 v6, 4, v6')
            A('v_lshl_add_u32 v22, v5, 13, v6')
            A('v_mul_u32_u24 v25, 9216, v5')
            A('v_add_u32 v25, v25, v6')
            A('v_lshlrev_b32 v23, 4, v1')
        if 'nowq' not in self.exp:
            self.dma_cols(56, 8192, 22)
        if self.hfirst or self.fastpro:
            A('s_barrier')
        A('s_lshl_b32 s40, s27, 13')
        A(f's_add_u32 s40, s40, {WS_Q}')
        A('s_add_u32 s62, s24, s40')
        A('s_addc_u32 s63, s25, 0')
        A('v_lshrrev_b32 v14, 5, v1')
        A('v_lshlrev_b32 v14, 11, v14')
        A('v_and_b32 v15, 31, v1')
        A('v_lshl_add_u32 v14, v15, 4, v14')
        A('v_add_u32 v15, 4096, v14')
        nwarm = 0
        if 'qwarm' in self.exp:
            for H in range(2):
                for kp in range(4):
                    A(f'global_load_dwordx4 v[{96 + 4*kp}:{99 + 4*kp}], v{14 + H}, s[62:63] offset:{512 * kp} sc1')
                    nwarm += 1
        A('v_lshrrev_b32 v26, 4, v1')
        A('v_and_b32 v27, 15, v1')
        A('v_lshlrev_b32 v20, 3, v26')
        A(f'v_add_u32 v20, {XN}, v20')
        A('v_lshrrev_b32 v28, 2, v27')
        A('v_lshl_add_u32 v28, v26, 2, v28')
        A('v_and_b32 v29, 3, v27')
        A('v_lshlrev_b32 v8, 7, v28')
        A('v_lshl_add_u32 v8, v29, 3, v8')
        A(f'v_add_u32 v8, {STG}, v8')
        A('v_lshrrev_b32 v9, 1, v28')
        A('v_and_b32 v9, 3, v9')
        for t in range(4):
            A(f'v_xor_b32 v10, {t}, v9')
            A(f'v_lshl_add_u32 v{16 + t}, v10, 5, v8')
        A('v_mul_u32_u24 v24, 1152, v28')
        A('v_lshl_add_u32 v24, v29, 3, v24')
        A(f'v_add_u32 v24, {STG}, v24')
        nq = 0 if 'nowq' in self.exp else 18
        A(f's_waitcnt vmcnt({nq + nwarm})')
        self.stamp(11)
        A('v_readfirstlane_b32 s29, v3')
        X = 30
        for k in range(9):
            A(f'v_lshlrev_b32 v{X + k}, 16, v{X + k}')
        A('s_add_u32 s29, s29, 1')
        A('s_bitset1_b32 s29, 31')
        A(f'v_add_f32 v10, v{X}, v{X+1}')
        for k in range(2, 9):
            A(f'v_add_f32 v10, v10, v{X + k}')
        self.wavesum(10, 11)
        A(f'v_mul_f32 v10, {0x3AE38E39:#x}, v10')
        for k in range(9):
            A(f'v_sub_f32 v{40 + k}, v{X + k}, v10')
        A('v_mul_f32 v12, v40, v40')
        for k in range(1, 9):
            A(f'v_fmac_f32 v12, v{40 + k}, v{40 + k}')
        self.wavesum(12, 11)
        A(f'v_mul_f32 v12, {0x3AE38E39:#x}, v12')
        self.bf16r(10, 10, 11)
        self.bf16r(12, 12, 11)
        A(f'v_add_f32 v12, {0x3727C5AC:#x}, v12')
        self.bf16r(12, 12, 11)
        A('v_sqrt_f32 v12, v12')
        A('s_nop 0')
        self.bf16r(12, 12, 11)
        A('v_rcp_f32 v13, v12')
        for k in range(9):
            A(f'v_sub_f32 v{40 + k}, v{X + k}, v10')
        for k in range(0, 9, 2):
            k2 = min(k + 1, 8)
            A(f'v_cvt_pk_bf16_f32 v{50 + k // 2}, v{40 + k}, v{40 + k2}')
        for k in range(9):
            if k % 2 == 0:
                A(f'v_lshlrev_b32 v{40 + k}, 16, v{50 + k // 2}')
            else:
                A(f'v_and_b32 v{40 + k}, 0xffff0000, v{50 + k // 2}')
        for k in range(9):
            A(f'v_mul_f32 v{60 + k}, v{40 + k}, v13')
            A(f'v_fma_f32 v{70 + k}, -v{60 + k}, v12, v{40 + k}')
            A(f'v_fma_f32 v{60 + k}, v{70 + k}, v13, v{60 + k}')
        for k in range(0, 9, 2):
            k2 = min(k + 1, 8)
            A(f'v_cvt_pk_bf16_f32 v{50 + k // 2}, v{60 + k}, v{60 + k2}')
        A(f'v_add_u32 v11, {XN}, v4')
        for k in range(9):
            op = 'ds_write_b16' if k % 2 == 0 else 'ds_write_b16_d16_hi'
            A(f'{op} v11, v{50 + k // 2} offset:{128 * k}')
        A('s_mul_i32 s58, s51, 288')
        self.stamp(12)
        A('s_waitcnt vmcnt(0) lgkmcnt(0)')
        self.stamp(13)
        self.gemv64(96, True, 58)
        A('s_nop 7')
        self.stamp(10)
        A('s_mov_b32 s46, 0xffff0000')
        A('s_mov_b32 s47, 0')
        A('v_cndmask_b32 v32, v96, v104, s[46:47]')
        A('v_cndmask_b32 v34, v100, v108, s[46:47]')
        A('v_mov_b32 v33, s29')
        A('v_mov_b32 v35, s29')
        A('s_lshl_b32 s40, s2, 9')
        A(f's_add_u32 s40, s40, {WS_Q}')
        A('s_add_u32 s48, s24, s40')
        A('s_addc_u32 s49, s25, 0')
        A('s_mov_b32 s46, -1')
        A('s_mov_b64 exec, s[46:47]')
        A('global_store_dwordx4 v23, v[32:35], s[48:49] sc1')
        A('s_mov_b64 exec, -1')
        A('s_mov_b32 s48, s62')
        A('s_mov_b32 s49, s63')
        A('v_mov_b32 v30, v14')
        A('v_mov_b32 v31, v15')
        loads = []
        for H in range(2):
            for kp in range(4):
                b = 40 + 16 * H + 4 * kp
                loads.append(f'global_load_dwordx4 v[{b}:{b+3}], v{30 + H}, s[48:49] offset:{512 * kp} sc1')
        def qchk():
            A('v_xor_b32 v72, s29, v41')
            for q in range(43, 72, 2):
                A(f'v_xor_b32 v73, s29, v{q}')
                A('v_or_b32 v72, v72, v73')
            return 72
        self.poll('L_h_q', loads, qchk, sleep=1, probe=('qsweep' not in self.exp))
        self.stamp(14)
        for H in range(2):
            b = 40 + 16 * H
            for e in (0, 2):
                A(f'v_add_f32 v{b+e}, v{b+e}, v{b+4+e}')
                A(f'v_add_f32 v{b+8+e}, v{b+8+e}, v{b+12+e}')
                A(f'v_add_f32 v{b+e}, v{b+e}, v{b+8+e}')
            A(f'v_cvt_pk_bf16_f32 v{74 + H}, v{b}, v{b+2}')
        A('v_lshrrev_b32 v32, 4, v1')
        A('v_lshlrev_b32 v32, 6, v32')
        A('v_lshl_add_u32 v32, v27, 1, v32')
        A(f'v_add_u32 v32, {QL}, v32')
        for H in range(2):
            A(f'ds_write_b16 v32, v{74 + H} offset:{256 * H}')
            A(f'ds_write_b16_d16_hi v32, v{74 + H} offset:{256 * H + 32}')
        A('v_mov_b32 v42, 1')
        A('v_mov_b32 v43, s29')
        A(f'v_mov_b32 v41, {FL}')
        A('s_waitcnt lgkmcnt(0)')
        A('s_mov_b64 exec, 1')
        A('ds_write_b64 v41, v[42:43] offset:32')
        A('s_mov_b64 exec, -1')
        A('s_setprio 0')
        A(f's_cmp_ge_u32 s96, {NFFN}')
        A('s_cbranch_scc1 L_h_ffn_done')
        if 'noffn' in self.exp:
            A('s_branch L_h_ffn_done')
        if self.ffnboost:
            A(f'v_mov_b32 v30, {FL}')
            A('v_mov_b32 v31, 1')
            A('s_mov_b64 exec, 1')
            A('ds_write_b32 v30, v31 offset:48')
            A('s_mov_b64 exec, -1')
        A('s_mov_b32 s59, 0')
        self.L('L_h_f1')
        A('s_lshl_b32 s40, s96, 7')
        A(f's_mul_i32 s58, s59, {144 * 9216}')
        A('s_add_u32 s40, s40, s58')
        A('s_add_u32 s56, s16, s40')
        A('s_addc_u32 s57, s17, 0')
        if 'now1' not in self.exp:
            self.dma_cols(56, 9216, 25, win=FW)
        A('s_mul_i32 s58, s59, 288')
        A('s_waitcnt vmcnt(0)')
        A('s_cmp_lg_u32 s59, 0')
        A('s_cbranch_scc1 L_h_f1b')
        for r in range(16):
            A(f'v_mov_b32 v{96 + r}, 0')
        self.L('L_h_f1b')
        A('s_nop 1')
        self.gemv64(96, False, 58)
        A('s_add_u32 s59, s59, 1')
        A('s_cmp_lt_u32 s59, 4')
        A('s_cbranch_scc1 L_h_f1')
        A('s_nop 7')
        A('v_lshlrev_b32 v34, 1, v27')
        A(f'v_add_u32 v34, {OB}, v34')
        for t in range(4):
            self.bf16r(30, 96 + 4 * t, 31)
            A(f'v_mul_f32 v31, {0xBFB8AA3B:#x}, v30')
            A('v_exp_f32 v31, v31')
            A('s_nop 0')
            A('v_add_f32 v31, 1.0, v31')
            A('v_rcp_f32 v32, v31')
            A('s_nop 0')
            A('v_mul_f32 v33, v30, v32')
            A('v_cvt_pk_bf16_f32 v33, v33, v33')
            A('s_mov_b64 exec, 0xffff')
            A(f'ds_write_b16 v34, v33 offset:{32 * t}')
            A('s_mov_b64 exec, -1')
        if self.w2late:
            A('v_lshlrev_b32 v35, 2, v1')
            A(f'v_add_u32 v36, {OB}, v35')
            A('s_waitcnt lgkmcnt(0)')
            A('ds_read_b32 v32, v36')
            A('v_mov_b32 v33, s29')
            A('s_lshl_b32 s40, s96, 8')
            A(f's_add_u32 s40, s40, {WS_A}')
            A('s_add_u32 s48, s24, s40')
            A('s_addc_u32 s49, s25, 0')
            A('v_lshlrev_b32 v35, 3, v1')
            A('s_mov_b32 s46, -1')
            A('s_mov_b32 s47, 0')
            A('s_waitcnt lgkmcnt(0)')
            A('s_mov_b64 exec, s[46:47]')
            A('global_store_dwordx2 v35, v[32:33], s[48:49] sc1')
            A('s_mov_b64 exec, -1')
            if self.ffnboost:
                A(f'v_mov_b32 v30, {FL}')
                A('v_mov_b32 v31, 0')
                A('s_mov_b64 exec, 1')
                A('ds_write_b32 v30, v31 offset:48')
                A('s_mov_b64 exec, -1')
            self.L('L_h_ffn_done')
            A(f'v_mov_b32 v34, {FL}')
            self.spin_begin(42)
            self.L('L_h_fwait')
            A('ds_read_b32 v35, v34 offset:16')
            A('s_waitcnt lgkmcnt(0)')
            A('v_readfirstlane_b32 s40, v35')
            A(f's_cmp_ge_u32 s40, {self.a_at}')
            A('s_cbranch_scc1 L_h_fgo')
            self.spin_retry(42, 'L_h_fwait', sleep=64)
            self.L('L_h_fgo')
            A('s_lshl_b32 s40, s27, 4')
            A('s_add_u32 s40, s40, s28')
            A('s_mul_i32 s40, s40, 72')
            A(f's_add_u32 s40, s40, {WS_A}')
            A('s_add_u32 s48, s24, s40')
            A('s_addc_u32 s49, s25, 0')
            A('v_min_u32 v30, 8, v1')
            A('v_lshlrev_b32 v30, 3, v30')
            if 'noffn' not in self.exp:
                def achk():
                    A('v_xor_b32 v34, s29, v33')
                    return 34
                self.poll('L_h_a', ['global_load_dwordx2 v[32:33], v30, s[48:49] sc1'], achk, sleep=32, probe=False)
            A('v_cmp_gt_u32 vcc, 9, v1')
            A('s_nop 1')
            A('v_cndmask_b32 v32, 0, v32, vcc')
            A('v_lshlrev_b32 v35, 2, v1')
            A(f'v_add_u32 v35, {AB}, v35')
            A('s_mov_b64 exec, 0xffff')
            A('ds_write_b32 v35, v32')
            A('s_mov_b64 exec, -1')
        else:
            for r in range(12):
                A(f'v_mov_b32 v{112 + r}, 0')
            A('v_lshlrev_b32 v35, 3, v26')
            A(f'v_add_u32 v35, {OB}, v35')
            A('s_mov_b32 s59, 0')
            self.L('L_h_f2')
            A('s_lshl_b32 s40, s96, 2')
            A('s_add_u32 s40, s40, s59')
            A('s_mul_i32 s40, s40, 18432')
            A('s_add_u32 s56, s18, s40')
            A('s_addc_u32 s57, s19, 0')
            if 'now2' not in self.exp:
                self.dma_rows(56, win=FW)
            A('s_lshl_b32 s40, s59, 5')
            A('v_add_u32 v38, s40, v35')
            A('s_waitcnt lgkmcnt(0)')
            A('ds_read_b64 v[36:37], v38')
            A('s_waitcnt vmcnt(0) lgkmcnt(0)')
            for t0 in range(0, 36, 12):
                for t in range(t0, t0 + 12):
                    A(f'ds_read_b64_tr_b16 v[{40 + 2*(t - t0)}:{41 + 2*(t - t0)}], v24 offset:{32 * t}')
                A('s_waitcnt lgkmcnt(0)')
                for t in range(t0, t0 + 12):
                    grp, r = t // 3, t % 3
                    a = 112 + 4 * (grp // 4)
                    row = 4 * (grp % 4) + r
                    A(f's_mov_b32 s46, {0x00010001 << row:#x}')
                    A(f's_mov_b32 s47, {0x00010001 << row:#x}')
                    A(f'v_cndmask_b32 v{88 + 2*(t&1)}, 0, v36, s[46:47]')
                    A(f'v_cndmask_b32 v{89 + 2*(t&1)}, 0, v37, s[46:47]')
                    A('s_nop 1')
                    A(f'v_mfma_f32_16x16x16_bf16 v[{a}:{a+3}], v[{88 + 2*(t&1)}:{89 + 2*(t&1)}], v[{40 + 2*(t - t0)}:{41 + 2*(t - t0)}], v[{a}:{a+3}]')
            A('s_add_u32 s59, s59, 1')
            A('s_cmp_lt_u32 s59, 4')
            A('s_cbranch_scc1 L_h_f2')
            A('s_nop 7')
            A('s_mul_i32 s40, s96, 3072')
            A(f's_add_u32 s40, s40, {WS_F}')
            A('s_add_u32 s48, s24, s40')
            A('s_addc_u32 s49, s25, 0')
            for a in range(3):
                self.mkchk(112 + 4 * a)
                A(f'global_store_dwordx4 v23, v[{112 + 4*a}:{115 + 4*a}], s[48:49] offset:{1024 * a} sc1')
            if self.ffnboost:
                A(f'v_mov_b32 v30, {FL}')
                A('v_mov_b32 v31, 0')
                A('s_mov_b64 exec, 1')
                A('ds_write_b32 v30, v31 offset:48')
                A('s_mov_b64 exec, -1')
            self.L('L_h_ffn_done')
            A(f's_cmp_ge_u32 s97, {NRED}')
            A('s_cbranch_scc1 L_h_tail')
            if 'nofgather' in self.exp or 'noffn' in self.exp:
                A('s_branch L_h_tail')
            A(f'v_mov_b32 v34, {FL}')
            self.spin_begin(42)
            self.L('L_h_fwait')
            A('ds_read_b32 v35, v34 offset:16')
            A('s_waitcnt lgkmcnt(0)')
            A('v_readfirstlane_b32 s40, v35')
            A(f's_cmp_ge_u32 s40, {self.nunits // 2}')
            A('s_cbranch_scc1 L_h_fgo')
            self.spin_retry(42, 'L_h_fwait', sleep=64)
            self.L('L_h_fgo')
            A('s_lshl_b32 s40, s97, 6')
            A(f's_add_u32 s40, s40, {WS_F}')
            A('s_add_u32 s48, s24, s40')
            A('s_addc_u32 s49, s25, 0')
            A('v_lshrrev_b32 v30, 2, v1')
            A('v_mul_u32_u24 v30, 3072, v30')
            A('v_and_b32 v31, 3, v1')
            A('v_lshl_add_u32 v30, v31, 4, v30')
            for i in range(1, 5):
                A(f'v_add_u32 v{30 + i}, {3072 * 16 * i}, v30')
            A('s_mov_b32 s46, 0')
            A('s_mov_b32 s47, -1')
            A(f'v_add_u32 v35, {-3072 * 8 & 0xffffffff:#x}, v34')
            A('v_cndmask_b32 v34, v34, v35, s[46:47]')
            self.poll('L_h_f', [f'global_load_dwordx4 v[{40 + 4*i}:{43 + 4*i}], v{30 + i}, s[48:49] sc1' for i in range(5)],
                      lambda: self.chk3([40, 44, 48, 52, 56], 60, 61), sleep=32)
            A('s_mov_b32 s46, 0')
            A('s_mov_b32 s47, -1')
            for r in range(3):
                A(f'v_cndmask_b32 v{56 + r}, v{56 + r}, 0, s[46:47]')
            for r in range(3):
                A(f'v_add_f32 v{40 + r}, v{40 + r}, v{44 + r}')
                A(f'v_add_f32 v{48 + r}, v{48 + r}, v{52 + r}')
                A(f'v_add_f32 v{40 + r}, v{40 + r}, v{56 + r}')
            for r in range(3):
                A(f'v_add_f32 v{40 + r}, v{40 + r}, v{48 + r}')
            for r in range(3):
                self.rowred('v_add_f32', 40 + r, rors=(4, 8))
            for r in range(3):
                self.xrow('v_add_f32', 40 + r, 60)
            A('v_lshlrev_b32 v34, 4, v1')
            A(f'v_add_u32 v34, {FFNR}, v34')
            A('s_mov_b64 exec, 15')
            A('ds_write_b128 v34, v[40:43]')
            A('s_mov_b64 exec, -1')
        self.L('L_h_tail')
        A('s_waitcnt vmcnt(0) lgkmcnt(0)')
        self.stamp(7)
        A('v_lshrrev_b32 v30, 3, v1')
        A('v_and_b32 v31, 7, v1')
        A('v_min_u32 v32, 5, v31')
        A('s_lshl_b32 s58, s27, 15')
        A('v_lshlrev_b32 v33, 11, v30')
        step8 = 8 * 2048
        A('s_lshl_b32 s40, s28, 7')
        A('s_add_u32 s58, s58, s40')
        A(f's_add_u32 s58, s58, {WS_P}')
        A('s_add_u32 s48, s24, s58')
        A('s_addc_u32 s49, s25, 0')
        A('v_lshl_add_u32 v34, v32, 4, v33')
        A(f'v_add_u32 v35, {step8}, v34')
        A('v_add_u32 v36, 80, v33')
        A(f'v_add_u32 v37, {step8}, v36')
        if not self.warm_late:
            self.tail_warm()
        US, LA, NI = self.US, self.LA, self.NI
        A(f'v_mov_b32 v38, {FL}')
        def put_id(kreg, valreg_v):
            A(f's_lshl_b32 s40, s{kreg}, 2')
            A(f's_add_u32 s40, s40, {IDS}')
            A('v_mov_b32 v39, s40')
            A('s_mov_b64 exec, 1')
            A(f'ds_write_b32 v39, v{valreg_v}')
            A('s_mov_b64 exec, -1')
        def wait_tk(val, lab, sleep=1):
            self.spin_begin(42)
            self.L(lab)
            A('ds_read_b32 v44, v38 offset:52')
            A('s_waitcnt lgkmcnt(0)')
            A('v_readfirstlane_b32 s40, v44')
            A(f's_cmp_ge_u32 s40, {val}')
            A(f's_cbranch_scc1 {lab}_ok')
            self.spin_retry(42, lab, sleep=sleep)
            self.L(f'{lab}_ok')
        if self.share:
            C, pool = self.C, ((self.UB if self.share2 else 64) - US) * 64
            navg = pool / 16
            import struct as _st
            f2h = lambda x: '%#x' % _st.unpack('<I', _st.pack('<f', x))[0]
            if self.pertau:
                self.spin_begin(42)
                self.L('L_h_sw1')
                A('ds_read_b64 v[40:41], v38 offset:232')
                A('s_waitcnt lgkmcnt(0)')
                A('v_readfirstlane_b32 s40, v41')
                A('s_cmp_lg_u32 s40, 0')
                A('s_cbranch_scc1 L_h_sw1_ok')
                self.spin_retry(42, 'L_h_sw1', sleep=8)
                self.L('L_h_sw1_ok')
                A('v_mov_b32 v42, v40')
                A('v_mov_b32 v40, v41')
                A('v_mov_b32 v41, v42')
                A('v_mov_b32 v42, 0')
                A('s_lshl_b32 s40, s27, 8')
                A(f's_add_u32 s40, s40, {WS_T}')
                A('s_add_u32 s56, s24, s40')
                A('s_addc_u32 s57, s25, 0')
                A('s_lshl_b32 s58, s28, 4')
                A('v_mov_b32 v39, s58')
                self.mkchk(40)
                A('s_mov_b64 exec, 1')
                A('global_store_dwordx4 v39, v[40:43], s[56:57] sc1')
                A('s_mov_b64 exec, -1')
                wait_tk(4 * (C + self.Gd) - 4, 'L_h_sw2', sleep=4)
                A('v_and_b32 v39, 15, v1')
                A('v_lshlrev_b32 v39, 4, v39')
                self.poll('L_h_t', ['global_load_dwordx4 v[40:43], v39, s[56:57] sc1'], lambda: self.chk3([40], 44, 45), sleep=4, probe=False)
                A('v_readfirstlane_b32 s40, v40')
                A('v_sub_u32 v45, v40, v41')
                A('s_nop 0')
                A('v_subrev_u32 v44, s40, v40')
                A('v_cvt_f32_i32 v44, v44')
                A('v_cvt_f32_u32 v45, v45')
                A(f'v_mul_f32 v45, {f2h(1 / (4 * (C - self.C0)))}, v45')
                A('v_mov_b32 v46, v45')
                self.rowred('v_add_f32', 46)
                A(f'v_mul_f32 v46, {f2h(1 / 16)}, v46')
                A('v_sub_f32 v45, v45, v46')
                A(f'v_mul_f32 v45, {f2h(self.lam)}, v45')
                A('v_add_f32 v45, v45, v46')
                A('v_rcp_f32 v45, v45')
                A('s_nop 0')
                A('v_mul_f32 v46, v44, v45')
                A('v_mov_b32 v47, v45')
                self.mrowred('v_add_f32', [46, 47], (8, 4, 2, 1))
                A(f'v_add_f32 v46, {f2h(float(pool + 64 * (US - C)))}, v46')
                A('v_rcp_f32 v47, v47')
                A('s_nop 0')
                A('v_mul_f32 v46, v46, v47')
                A('v_sub_f32 v46, v46, v44')
                A('v_mul_f32 v46, v46, v45')
                A(f'v_subrev_f32 v46, {f2h(float(4 * (US - C)))}, v46')
            else:
                wait_tk(4 * C - 4, 'L_h_sw1')
                A('s_memrealtime s[50:51]')
                A('s_lshl_b32 s40, s27, 8')
                A(f's_add_u32 s40, s40, {WS_T}')
                A('s_add_u32 s56, s24, s40')
                A('s_addc_u32 s57, s25, 0')
                A('s_lshl_b32 s58, s28, 4')
                A('v_mov_b32 v39, s58')
                A('s_waitcnt lgkmcnt(0)')
                A('v_mov_b32 v40, s50')
                A('v_mov_b32 v41, s98')
                A('v_mov_b32 v42, 0')
                self.mkchk(40)
                A('s_mov_b64 exec, 1')
                A('global_store_dwordx4 v39, v[40:43], s[56:57] sc1')
                A('s_mov_b64 exec, -1')
                wait_tk(4 * (C + self.Gd) - 4, 'L_h_sw2', sleep=4)
                A('v_and_b32 v39, 15, v1')
                A('v_lshlrev_b32 v39, 4, v39')
                self.poll('L_h_t', ['global_load_dwordx4 v[40:43], v39, s[56:57] sc1'], lambda: self.chk3([40], 44, 45), sleep=4, probe=False)
                A('v_readfirstlane_b32 s40, v40')
                A('v_sub_u32 v45, v40, v41')
                A('s_nop 0')
                A('v_subrev_u32 v44, s40, v40')
                A('v_cvt_f32_i32 v44, v44')
                A('v_cvt_f32_u32 v45, v45')
                A('v_mov_b32 v46, v44')
                self.rowred('v_add_f32', 46)
                self.rowred('v_add_f32', 45)
                import struct as _st
                f2h = lambda x: '%#x' % _st.unpack('<I', _st.pack('<f', x))[0]
                A(f'v_mul_f32 v46, {f2h(1 / 16)}, v46')
                A(f'v_mul_f32 v45, {f2h(self.taufac / (16 * 4 * C))}, v45')
                A('v_rcp_f32 v45, v45')
                A('v_sub_f32 v46, v46, v44')
                A('s_nop 0')
                A('v_mul_f32 v46, v46, v45')
                A(f'v_add_f32 v46, {f2h(navg)}, v46')
            def shares(pool_, cap_, off):
                A('v_max_f32 v46, 0, v46')
                A(f'v_min_f32 v46, {f2h(cap_)}, v46')
                A('v_mov_b32 v47, v46')
                self.rowred('v_add_f32', 47)
                A('v_rcp_f32 v47, v47')
                A('s_nop 0')
                A(f'v_mul_f32 v47, {f2h(float(pool_))}, v47')
                A('v_mul_f32 v46, v46, v47')
                for sh in (1, 2, 4, 8):
                    A('s_nop 1')
                    A(f'v_add_f32_dpp v46, v46, v46 row_shr:{sh} row_mask:0xf bank_mask:0xf bound_ctrl:0')
                A('v_add_f32 v46, 0.5, v46')
                A('v_cvt_i32_f32 v46, v46')
                A(f'v_min_i32 v46, {pool_}, v46')
                A('s_mov_b32 s50, 0x80008000')
                A('s_mov_b32 s51, 0x80008000')
                A(f'v_mov_b32 v47, {pool_}')
                A('v_cndmask_b32 v46, v46, v47, s[50:51]')
                A('v_mov_b32 v47, 0')
                A('s_nop 1')
                A('v_mov_b32_dpp v47, v46 row_shr:1 row_mask:0xf bank_mask:0xf bound_ctrl:0')
                A('v_sub_u32 v46, v46, v47')
                A('v_add_u32 v46, 1, v46')
                A('s_nop 0')
                A('v_readlane_b32 s50, v46, s28')
                A('v_readlane_b32 s51, v47, s28')
                A('s_nop 1')
                A('v_mov_b32 v46, s50')
                A('v_mov_b32 v47, s51')
                A(f'v_mov_b32 v39, {IDS + off}')
                A('s_mov_b64 exec, 1')
                A('ds_write_b64 v39, v[46:47]')
                A('s_mov_b64 exec, -1')
            if self.share2:
                A('v_mov_b32 v48, v45')
            shares(pool, 2.5 * navg, 0)
            if self.share2:
                pool2 = (64 - self.UB) * 64
                navg2 = pool2 / 16
                A(f's_add_u32 s58, s50, {4 * US - 1 - 4 - self.K2}')
                def wait_tks(sreg, lab, sleep):
                    self.spin_begin(42)
                    self.L(lab)
                    A('ds_read_b32 v44, v38 offset:52')
                    A('s_waitcnt lgkmcnt(0)')
                    A('v_readfirstlane_b32 s40, v44')
                    A(f's_cmp_ge_u32 s40, s{sreg}')
                    A(f's_cbranch_scc1 {lab}_ok')
                    self.spin_retry(42, lab, sleep=sleep)
                    self.L(f'{lab}_ok')
                wait_tks(58, 'L_h_s2a', 2)
                A('s_memrealtime s[56:57]')
                A(f's_add_u32 s59, s50, {4 * US - 1 - 4}')
                A('s_sub_i32 s59, s59, s40')
                A('s_max_i32 s59, s59, 0')
                A('s_waitcnt lgkmcnt(0)')
                A('v_mov_b32 v40, s56')
                A('v_mov_b32 v41, s59')
                A('v_mov_b32 v42, 0')
                A('s_lshl_b32 s40, s27, 8')
                A(f's_add_u32 s40, s40, {WS_T2}')
                A('s_add_u32 s56, s24, s40')
                A('s_addc_u32 s57, s25, 0')
                A('s_lshl_b32 s59, s28, 4')
                A('v_mov_b32 v39, s59')
                self.mkchk(40)
                A('s_mov_b64 exec, 1')
                A('global_store_dwordx4 v39, v[40:43], s[56:57] sc1')
                A('s_mov_b64 exec, -1')
                A(f's_add_u32 s58, s58, {self.Gd2}')
                wait_tks(58, 'L_h_s2b', 2)
                A('v_and_b32 v39, 15, v1')
                A('v_lshlrev_b32 v39, 4, v39')
                self.poll('L_h_t2', ['global_load_dwordx4 v[40:43], v39, s[56:57] sc1'], lambda: self.chk3([40], 44, 45), sleep=2, probe=False)
                A('v_readfirstlane_b32 s40, v40')
                A('v_cvt_f32_u32 v45, v41')
                A('s_nop 0')
                A('v_subrev_u32 v44, s40, v40')
                A('v_cvt_f32_i32 v44, v44')
                A(f'v_mul_f32 v44, v44, v48')
                A(f'v_mul_f32 v44, {f2h(1 / self.taufac2)}, v44')
                A('v_add_f32 v44, v44, v45')
                A('v_mov_b32 v46, v44')
                self.rowred('v_add_f32', 46)
                A(f'v_mul_f32 v46, {f2h(1 / 16)}, v46')
                A('v_sub_f32 v46, v46, v44')
                A(f'v_add_f32 v46, {f2h(navg2)}, v46')
                shares(pool2, self.cap2 * navg2, 8)
                A('s_mov_b32 s50, 1')
            A(f's_add_u32 s50, s50, {4 * US - 4 - self.warm_tiles}')
            self.spin_begin(42)
            self.L('L_h_sw3')
            A('ds_read_b32 v44, v38 offset:52')
            A('s_waitcnt lgkmcnt(0)')
            A('v_readfirstlane_b32 s40, v44')
            A('s_cmp_ge_u32 s40, s50')
            A('s_cbranch_scc1 L_h_sw3_ok')
            self.spin_retry(42, 'L_h_sw3', sleep=4)
            self.L('L_h_sw3_ok')
            self.stamp(23)
        elif NI == 0:
            A('s_mov_b32 s50, 0')
            A('v_mov_b32 v44, -1')
            put_id(50, 44)
            if 'dumat' in self.exp:
                A(f's_mul_i32 s40, s27, {self.cstride}')
                A(f's_add_u32 s40, s40, {WS_CNT}')
                A('s_add_u32 s56, s24, s40')
                A('s_addc_u32 s57, s25, 0')
                A('v_mov_b32 v40, 0')
                A('v_mov_b32 v41, 1')
                A('s_mov_b32 s58, 48')
                self.L('L_h_da')
                A('s_lshl_b32 s51, s58, 2')
                self.spin_begin(42)
                self.L('L_h_daw')
                A('ds_read_b32 v44, v38 offset:52')
                A('s_waitcnt lgkmcnt(0)')
                A('v_readfirstlane_b32 s40, v44')
                A('s_cmp_ge_u32 s40, s51')
                A('s_cbranch_scc1 L_h_daok')
                self.spin_retry(42, 'L_h_daw', sleep=2)
                self.L('L_h_daok')
                A('s_mov_b64 exec, 1')
                A('global_atomic_add v42, v40, v41, s[56:57] sc0')
                A('s_mov_b64 exec, -1')
                A('s_waitcnt vmcnt(0)')
                A('s_add_u32 s58, s58, 1')
                A('s_cmp_lt_u32 s58, 63')
                A('s_cbranch_scc1 L_h_da')
        else:
            A(f's_mul_i32 s40, s27, {self.cstride}')
            A(f's_add_u32 s40, s40, {WS_CNT}')
            A('s_add_u32 s56, s24, s40')
            A('s_addc_u32 s57, s25, 0')
            A('v_mov_b32 v40, 0')
            A('v_mov_b32 v41, 1')
            def wait_progress(kreg, lab):
                A(f's_add_u32 s51, s{kreg}, {US - LA}')
                self.spin_begin(42)
                self.L(lab)
                A('ds_read_b128 v[44:47], v38')
                A('s_waitcnt lgkmcnt(0)')
                A('v_max_u32 v44, v44, v45')
                A('v_max3_u32 v44, v44, v46, v47')
                A('s_nop 0')
                A('v_readfirstlane_b32 s40, v44')
                A('s_cmp_ge_u32 s40, s51')
                A(f's_cbranch_scc1 {lab}_ok')
                self.spin_retry(42, lab, sleep=4)
                self.L(f'{lab}_ok')
            def claim(dst):
                A('s_mov_b64 exec, 1')
                A(f'global_atomic_add v{dst}, v40, v41, s[56:57] sc0')
                A('s_mov_b64 exec, -1')
            if self.tickets:
                A('s_mov_b32 s58, 0')
                self.L('L_h_claim')
                A('s_lshl_b32 s51, s58, 2')
                A(f's_add_u32 s51, s51, {4 * US - 4 - self.LAt}')
                self.spin_begin(42)
                self.L('L_h_tw')
                A('ds_read_b32 v44, v38 offset:52')
                A('s_waitcnt lgkmcnt(0)')
                A('v_readfirstlane_b32 s40, v44')
                A('s_cmp_ge_u32 s40, s51')
                A('s_cbranch_scc1 L_h_tw_ok')
                self.spin_retry(42, 'L_h_tw', sleep=2)
                self.L('L_h_tw_ok')
                A(f's_mov_b32 s40, {NI}')
                A(f's_cmp_ge_u32 s58, {CAP}')
                A('s_cbranch_scc1 L_h_tres')
                claim(42)
                A('s_waitcnt vmcnt(0)')
                A('v_readfirstlane_b32 s40, v42')
                self.L('L_h_tres')
                if self.endmargin:
                    A(f's_cmp_lt_u32 s40, {max(NI - self.endmargin, 0)}')
                    A('s_cbranch_scc1 L_h_tnom')
                    A('v_mov_b32 v44, 1')
                    A('s_mov_b64 exec, 1')
                    A('ds_write_b32 v38, v44 offset:48')
                    A('s_mov_b64 exec, -1')
                    self.L('L_h_tnom')
                A(f's_cmp_ge_u32 s40, {NI}')
                A('s_cselect_b32 s40, -2, s40')
                A('s_add_u32 s59, s40, 1')
                A('v_mov_b32 v44, s59')
                put_id(58, 44)
                A('s_add_u32 s58, s58, 1')
                A('s_cmp_lg_u32 s59, -1')
                A('s_cbranch_scc1 L_h_claim')
            else:
                A('s_mov_b32 s50, 0')
                A('s_mov_b32 s58, 0')
                wait_progress(50, 'L_h_cw0')
                claim(42)
                A('s_mov_b32 s50, 1')
                self.L('L_h_claim')
                for par in range(2):
                    cur, nxt = 42 + par, 43 - par
                    last = self.lab('L_h_clast')
                    res = self.lab('L_h_cres')
                    A(f's_cmp_ge_u32 s50, {CAP}')
                    A(f's_cbranch_scc1 {last}')
                    wait_progress(50, self.lab('L_h_cw'))
                    claim(nxt)
                    A('s_add_u32 s50, s50, 1')
                    A('s_waitcnt vmcnt(1)')
                    A(f's_branch {res}')
                    self.L(last)
                    A('s_waitcnt vmcnt(0)')
                    A(f'v_mov_b32 v{nxt}, {NI}')
                    self.L(res)
                    A(f'v_readfirstlane_b32 s40, v{cur}')
                    if self.endmargin:
                        nm = self.lab('L_h_nom')
                        A(f's_cmp_lt_u32 s40, {max(NI - self.endmargin, 0)}')
                        A(f's_cbranch_scc1 {nm}')
                        for q in range(4):
                            A(f'v_mov_b32 v{44 + q}, 1')
                        A('s_mov_b64 exec, 1')
                        A('ds_write_b128 v38, v[44:47] offset:48')
                        A('s_mov_b64 exec, -1')
                        self.L(nm)
                    A(f's_cmp_ge_u32 s40, {NI}')
                    A('s_cselect_b32 s40, -2, s40')
                    A('s_add_u32 s59, s40, 1')
                    A('v_mov_b32 v44, s59')
                    put_id(58, 44)
                    A('s_add_u32 s58, s58, 1')
                    A('s_cmp_eq_u32 s59, -1')
                    A('s_cbranch_scc1 L_h_cdone')
                A('s_branch L_h_claim')
            self.L('L_h_cdone')
            self.stamp(23)
            A('v_mov_b32 v44, 1')
            A('v_mov_b32 v45, 1')
            A('v_mov_b32 v46, 1')
            A('v_mov_b32 v47, 1')
            A('s_mov_b64 exec, 1')
            if self.tickets:
                A('ds_write_b32 v38, v44 offset:48')
            else:
                A('ds_write_b128 v38, v[44:47] offset:48')
            A('s_mov_b64 exec, -1')
            A('s_waitcnt vmcnt(0) lgkmcnt(0)')
        if self.warm_late:
            self.tail_warm()
        if 'notail' in self.exp:
            self.flush_stamps()
            A('s_endpgm')
        A('s_barrier')
        if self.pm_b:
            self.pollm('L_h_b', lambda bs: [f'global_load_dwordx4 v[{b}:{b+3}], v{34 + i}, s[48:49] sc1' for i, b in enumerate(bs)],
                       [[40, 44, 48, 52], [68, 72, 76, 80], [96, 100, 104, 108], [128, 132, 136, 140]][:self.nset_b], 56,
                       stag=self.stag_b, invs=[30, 32, 34, 36])
        elif self.dpoll:
            self.poll2('L_h_b', lambda bs: [f'global_load_dwordx4 v[{b}:{b+3}], v{34 + i}, s[48:49] sc1' for i, b in enumerate(bs)],
                       [40, 44, 48, 52], [68, 72, 76, 80], 56, 57, sleep=self.tsleep or 2, stag=self.stag_b, thresh=self.thresh_b,
                       more=([96, 100, 104, 108], [128, 132, 136, 140])[:self.nset_b - 2])
        else:
            self.poll('L_h_b', [f'global_load_dwordx4 v[{40 + 4*i}:{43 + 4*i}], v{34 + i}, s[48:49] sc1' for i in range(4)],
                      lambda: self.chk3([40, 44, 48, 52], 56, 57), sleep=2)
        self.stamp(15)
        A('v_max_f32 v56, v49, v53')
        self.rowred('v_max_f32', 56, rors=(8,))
        self.xrow('v_max_f32', 56, 57)
        A('v_sub_f32 v58, v49, v56')
        A('v_sub_f32 v59, v53, v56')
        A('v_exp_f32 v58, v58')
        A('v_exp_f32 v59, v59')
        A('s_nop 0')
        A('v_mul_f32 v60, v50, v58')
        for i in range(3):
            A(f'v_mul_f32 v{61 + i}, v{40 + i}, v58')
        A('v_fmac_f32 v60, v54, v59')
        for i in range(3):
            A(f'v_fmac_f32 v{61 + i}, v{44 + i}, v59')
        self.mrowred('v_add_f32', [60, 61, 62, 63], (8,))
        self.mxrow('v_add_f32', [60, 61, 62, 63], [84, 85, 86, 87])
        A('v_rcp_f32 v64, v60')
        A('s_nop 0')
        for r in (61, 62, 63):
            A(f'v_mul_f32 v65, v{r}, v64')
            A(f'v_fma_f32 v66, -v65, v60, v{r}')
            A(f'v_fma_f32 v{r}, v66, v64, v65')
        A('v_cvt_pk_bf16_f32 v61, v61, v62')
        A('v_cvt_pk_bf16_f32 v63, v63, v63')
        A('v_mul_u32_u24 v62, 6, v31')
        A(f'v_add_u32 v62, {OB}, v62')
        A('s_mov_b64 exec, 0x3f')
        A('ds_write_b16 v62, v61')
        A('s_mov_b64 exec, 0x1f')
        A('ds_write_b16_d16_hi v62, v61 offset:2')
        A('ds_write_b16 v62, v63 offset:4')
        A('s_mov_b64 exec, -1')
        A('s_waitcnt lgkmcnt(0)')
        A('s_barrier')
        self.flush_stamps(extra=[(30, 64)])
        A('s_endpgm')

    def build(self):
        head = HEADER + f'; @launch grid=(256,1,1) block=(576,1,1) lds={LDS_BYTES}\n'
        head += '.amdgcn_target "amdgcn-amd-amdhsa--gfx950"\n.text\n'
        head += f'.globl {KNAME}\n.p2align 8\n.type {KNAME},@function\n{KNAME}:\n'
        self.entry()
        self.consumer()
        if self.tickets:
            self.loader_tk()
        else:
            self.loader()
        self.helper()
        self.L('L_end')
        self.A('s_endpgm')
        tail = f'''.section .rodata,"a"
.p2align 6
.amdhsa_kernel {KNAME}
  .amdhsa_next_free_vgpr 160
  .amdhsa_next_free_sgpr 100
  .amdhsa_accum_offset 160
  .amdhsa_group_segment_fixed_size 0
  .amdhsa_kernarg_size 88
  .amdhsa_user_sgpr_count 2
  .amdhsa_user_sgpr_kernarg_segment_ptr 1
  .amdhsa_system_sgpr_workgroup_id_x 1
  .amdhsa_float_denorm_mode_32 3
  .amdhsa_float_denorm_mode_16_64 3
.end_amdhsa_kernel
'''
        return head + '\n'.join(self.o) + '\n' + tail


if __name__ == '__main__':
    import argparse
    ap = argparse.ArgumentParser()
    ap.add_argument('-o', default='parallel_sum__gqa_block_cached__dense_activation_silu__decode.s')
    ap.add_argument('--W', type=int, default=5)
    ap.add_argument('--rot', type=int, default=7)
    ap.add_argument('--headmap', default='lin')
    ap.add_argument('--stamps', action='store_true')
    ap.add_argument('--exp', default='')
    a = ap.parse_args()
    open(a.o, 'w').write(Gen(W=a.W, rot=a.rot, headmap=a.headmap, stamps=a.stamps, exp=[e for e in a.exp.split(',') if e]).build())
    print('wrote', a.o)
```

```python
import sys

KNAME = 'parallel_sum__gqa_block_cached__dense_activation_silu__decode_kernel'

HEADER = '''; Kernarg layout for this problem (88 bytes, ptrs only, base s[0:1]):
'''

RING = 32768
STG = 0x20000
XN = 0x24800
QL = 0x24D00
FL = 0x25000
OC = 0x25100
OCML = 0x26100
OB = 0x26180
RED = 0x26200
FFNR = 0x26480
AB = 0x26400
W2S = 0
FB = 0x26500
LDS_BYTES = 0x28000

WS_EPOCH = 0x0
WS_Q = 0x10000
WS_P = 0x80000
WS_Y2 = 0x200000
WS_Y = 0x100000
WS_A = 0x30000
WS_F = 0x38000
NRED = 48
NFFN = 72
WS_DBG = 0x800000

SCALE = 0x3DB504F3
LOG2E = 0x3FB8AA3B
SPIN = 0x40000
IDS = FL + 64
CAP = 40
WS_T = 0x4000
WS_T2 = 0x6000
WS_CNT = 0x1C0000


class Gen:
    def __init__(self, W=5, rot=7, headmap='lin', stamps=False, nunits=64, exp=(), ffn_win=6, warm_before=4, US=56, LA=2, preread=True, wotail=True, Wend=12, endmargin=32, cstride=12544, earlyflags=True, fastpoll=True, dpoll=True, stag=8, tickets=True, LAt=6, tk_pos=4, prog_pts=(4, 8, 16, 32, 48), nstart=0, share=True, C=50, Gd=3, xfast=8, taufac=0.95, warm_tiles=10, tsleep=0, thresh=64, a_at=36, warm_late=False, w2late=False, wo_by='w23', pertau=False, C0=34, lam=0.7, hfirst=False, ffnboost=False, xrot=448, share2=True, UB=61, K2=12, Gd2=5, taufac2=1.0, cap2=2.5, fastpro=True, nset_b=2, nset_d=2, stag_b=None, stag_d=None, thresh_b=None, thresh_d=None, pm_b=False, pm_d=False, redmap='spread', ffnmap='spread', warmP='selfld', warmY='selfld', flate=False, fwave=0, fsleep=2, wo_delay=False, wo_win=0, stage_end=True, tau2=False, lam2=0.7):
        self.o = []
        self.W = W
        self.rot = rot
        self.headmap = headmap
        self.stamps = stamps
        self.nunits = nunits
        self.uid = 0
        self.pending = []
        self.exp = set(exp)
        self.ffn_win = ffn_win
        self.warm_before = warm_before
        self.US = US
        self.LA = LA
        self.NI = (64 - US) * 16
        self.preread = preread
        self.wotail = wotail
        self.Wend = Wend
        self.ffnboost = ffnboost
        self.xrot = xrot
        self.share2 = share2
        self.fastpro = fastpro
        self.nset_b = nset_b
        self.pm_b = pm_b
        self.redmap = redmap
        self.warmP = warmP
        self.flate = flate
        self.fwave = fwave
        self.wo_delay = wo_delay
        self.stage_end = stage_end
        self.tau2 = tau2
        self.lam2 = lam2
        self.wo_win = wo_win
        self.fsleep = fsleep
        self.warmY = warmY
        self.ffnmap = ffnmap
        self.pm_d = pm_d
        self.nset_d = nset_d
        self.stag_b = stag if stag_b is None else stag_b
        self.stag_d = stag if stag_d is None else stag_d
        self.thresh_b = thresh if thresh_b is None else thresh_b
        self.thresh_d = thresh if thresh_d is None else thresh_d
        self.UB = UB
        self.K2 = K2
        self.Gd2 = Gd2
        self.taufac2 = taufac2
        self.cap2 = cap2
        self.hfirst = hfirst
        self.pertau = pertau
        self.C0 = C0
        self.lam = lam
        self.wo_by = wo_by
        self.w2late = w2late
        self.warm_late = warm_late
        self.a_at = a_at
        self.tsleep = tsleep
        self.thresh = thresh
        self.share = share
        self.C = C
        self.Gd = Gd
        self.xfast = xfast
        self.taufac = taufac
        self.warm_tiles = warm_tiles
        self.nstart = nstart
        self.prog_pts = prog_pts
        self.dpoll = dpoll
        self.stag = stag
        self.tickets = tickets
        self.LAt = LAt
        self.tk_pos = tk_pos
        self.fastpoll = fastpoll
        self.earlyflags = earlyflags
        self.cstride = cstride
        self.endmargin = endmargin
        self.sleepmul = 8 if 'slowpoll' in self.exp else 1

    def A(self, s):
        self.o.append('  ' + s)

    def L(self, s):
        self.o.append(s + ':')

    def lab(self, base):
        self.uid += 1
        return f'{base}_{self.uid}'

    def stamp(self, idx, vtmp=126):
        if not self.stamps:
            return
        k = len(self.pending)
        assert k < 12
        self.pending.append(idx)
        self.A(f's_memrealtime s[{66 + 2*k}:{67 + 2*k}]')

    def stamp_at(self, idx, k):
        while len(self.pending) <= k:
            self.pending.append(None)
        self.pending[k] = idx
        self.A(f's_memrealtime s[{66 + 2*k}:{67 + 2*k}]')

    def flush_stamps(self, vtmp=126, extra=()):
        if not self.stamps:
            return
        A = self.A
        A('s_lshl_b32 s92, s2, 7')
        A(f's_add_u32 s92, s92, {WS_DBG}')
        A('s_add_u32 s94, s24, s92')
        A('s_addc_u32 s95, s25, 0')
        A('s_waitcnt lgkmcnt(0)')
        A(f'v_mov_b32 v{vtmp+1}, 0')
        A('s_mov_b64 exec, 1')
        for k, idx in enumerate(self.pending):
            if idx is None:
                continue
            A(f'v_mov_b32 v{vtmp}, s{66 + 2*k}')
            A(f'global_store_dword v{vtmp+1}, v{vtmp}, s[94:95] offset:{idx * 4}')
        for idx, sreg in extra:
            A(f'v_mov_b32 v{vtmp}, s{sreg}')
            A(f'global_store_dword v{vtmp+1}, v{vtmp}, s[94:95] offset:{idx * 4}')
        A('s_mov_b64 exec, -1')

    def xrow(self, op, v, t):
        A = self.A
        A(f'v_mov_b32 v{t}, v{v}')
        A('s_nop 1')
        A(f'v_permlane16_swap_b32 v{v}, v{t}')
        A('s_nop 1')
        A(f'{op} v{v}, v{v}, v{t}')
        A(f'v_mov_b32 v{t}, v{v}')
        A('s_nop 1')
        A(f'v_permlane32_swap_b32 v{v}, v{t}')
        A('s_nop 1')
        A(f'{op} v{v}, v{v}, v{t}')

    def rowred(self, op, v, rors=(8, 4, 2, 1)):
        A = self.A
        for r in rors:
            A('s_nop 1')
            A(f'{op}_dpp v{v}, v{v}, v{v} row_ror:{r} row_mask:0xf bank_mask:0xf')

    def mrowred(self, op, regs, rors):
        A = self.A
        pad = max(0, 3 - len(regs))
        for r in rors:
            for _ in range(pad):
                A('s_nop 0')
            for v in regs:
                A(f'{op}_dpp v{v}, v{v}, v{v} row_ror:{r} row_mask:0xf bank_mask:0xf')
        return

    def mxrow(self, op, regs, tmps):
        A = self.A
        pad = max(0, 3 - len(regs))
        for swap in ('v_permlane16_swap_b32', 'v_permlane32_swap_b32'):
            for v, t in zip(regs, tmps):
                A(f'v_mov_b32 v{t}, v{v}')
            for _ in range(pad + 1):
                A('s_nop 0')
            for v, t in zip(regs, tmps):
                A(f'{swap} v{v}, v{t}')
            for _ in range(pad):
                A('s_nop 0')
            for v, t in zip(regs, tmps):
                A(f'{op} v{v}, v{v}, v{t}')

    def wavesum(self, v, t):
        self.rowred('v_add_f32', v)
        self.xrow('v_add_f32', v, t)

    def bf16r(self, dst, src, t):
        self.A(f'v_cvt_pk_bf16_f32 v{t}, v{src}, v{src}')
        self.A(f'v_lshlrev_b32 v{dst}, 16, v{t}')

    def spin_begin(self, sreg):
        self.A(f's_mov_b32 s{sreg}, {SPIN}')

    def spin_retry(self, sreg, loop, sleep=2):
        A = self.A
        A(f's_sleep {min(127, sleep * self.sleepmul)}')
        A(f's_sub_u32 s{sreg}, s{sreg}, 1')
        A(f's_cmp_lg_u32 s{sreg}, 0')
        A(f's_cbranch_scc1 {loop}')

    def wg_of(self, dst, s_h, s_or_imm_j):
        pass

    def entry(self):
        A = self.A
        if self.stamps:
            A('s_memrealtime s[90:91]')
        A('s_cmp_ge_u32 s2, 256')
        A('s_cbranch_scc1 L_end')
        A('s_load_dwordx16 s[4:19], s[0:1], 0')
        A('s_load_dwordx4 s[20:23], s[0:1], 64')
        A('s_load_dwordx2 s[24:25], s[0:1], 80')
        A('v_lshrrev_b32 v1, 6, v0')
        if self.headmap == 'lin':
            A('s_lshr_b32 s27, s2, 4')
            A('s_and_b32 s28, s2, 15')
        elif self.headmap == 'X4':
            A('s_and_b32 s40, s2, 7')
            A('s_lshr_b32 s41, s2, 3')
            A('s_lshl_b32 s41, s41, 1')
            A('s_and_b32 s28, s2, 1')
            A('s_add_u32 s41, s41, s28')
            A('s_lshr_b32 s40, s40, 1')
            A('s_lshl_b32 s27, s40, 2')
            A('s_lshr_b32 s28, s41, 4')
            A('s_add_u32 s27, s27, s28')
            A('s_and_b32 s28, s41, 15')
        elif self.headmap.startswith('G'):
            G = int(self.headmap[1:]); per = 16 // G
            A('s_and_b32 s40, s2, 7')
            A('s_lshr_b32 s41, s2, 3')
            A(f's_lshr_b32 s27, s41, {per.bit_length() - 1}')
            A(f's_and_b32 s28, s41, {per - 1}')
            A(f's_mul_i32 s28, s28, {G}')
            A(f's_and_b32 s41, s40, {G - 1}')
            A('s_add_u32 s28, s28, s41')
            A(f's_lshr_b32 s40, s40, {G.bit_length() - 1}')
            A(f's_mul_i32 s40, s40, {2 * G}')
            A('s_add_u32 s27, s27, s40')
        else:
            A('s_and_b32 s27, s2, 7')
            A('s_lshl_b32 s27, s27, 1')
            A('s_lshr_b32 s28, s2, 3')
            A('s_and_b32 s28, s28, 1')
            A('s_add_u32 s27, s27, s28')
            A('s_lshr_b32 s28, s2, 4')
        if self.ffnmap == 'spread':
            A('s_and_b32 s40, s27, 1')
            A('s_lshl_b32 s96, s27, 2')
            A('s_and_b32 s41, s28, 3')
            A('s_add_u32 s96, s96, s41')
            A('s_xor_b32 s41, s40, 1')
            A('s_lshl_b32 s41, s41, 2')
            A('s_bfe_u32 s42, s27, 0x20001')
            A('s_add_u32 s41, s41, s42')
            A('s_add_u32 s97, s27, 64')
            A('s_cmp_lt_u32 s27, 8')
            A('s_cselect_b32 s97, s97, 255')
            A('s_cmp_eq_u32 s28, s41')
            A('s_cselect_b32 s97, s97, 255')
            A('s_lshr_b32 s41, s28, 2')
            A('s_cmp_eq_u32 s41, s40')
            A('s_cselect_b32 s96, s96, s97')
        else:
            A('s_lshl_b32 s96, s27, 2')
            A('s_add_u32 s96, s96, s28')
            A('s_add_u32 s97, s27, 64')
            A('s_cmp_lt_u32 s27, 8')
            A('s_cselect_b32 s97, s97, 255')
            A('s_cmp_eq_u32 s28, 4')
            A('s_cselect_b32 s97, s97, 255')
            A('s_cmp_lt_u32 s28, 4')
            A('s_cselect_b32 s96, s96, s97')
        if self.redmap == 'spread':
            A('s_mul_i32 s97, s27, 3')
            A('s_sub_u32 s40, s28, s97')
            A('s_and_b32 s40, s40, 7')
            A('s_add_u32 s97, s97, s40')
            A('s_cmp_lt_u32 s40, 3')
            A('s_cselect_b32 s97, s97, 255')
            A('s_cmp_ge_u32 s28, 8')
            A('s_cselect_b32 s97, s97, 255')
        else:
            A('s_mul_i32 s97, s27, 3')
            A('s_add_u32 s97, s97, s28')
            A('s_sub_u32 s97, s97, 13')
            A('s_cmp_ge_u32 s28, 13')
            A('s_cselect_b32 s97, s97, 255')
        A('v_readfirstlane_b32 s26, v1')
        A('v_and_b32 v1, 63, v0')
        if self.fastpro:
            A('s_cmp_ge_u32 s26, 8')
            A('s_cbranch_scc1 L_helper')
            A('s_cmp_ge_u32 s26, 4')
            A('s_cbranch_scc1 L_loader')
        A('s_cmp_lg_u32 s26, 0')
        A('s_cbranch_scc1 L_noinit')
        A(f'v_lshlrev_b32 v2, 2, v1')
        A(f'v_add_u32 v2, {FL}, v2')
        A('v_mov_b32 v3, 0')
        A('ds_write_b32 v2, v3')
        self.L('L_noinit')
        A('s_waitcnt lgkmcnt(0)')
        if self.fastpro:
            A('s_barrier')
            return
        if self.hfirst:
            A('s_cmp_ge_u32 s26, 8')
            A('s_cbranch_scc1 L_helper')
        A('s_barrier')
        if not self.hfirst:
            A('s_cmp_ge_u32 s26, 8')
            A('s_cbranch_scc1 L_helper')
        A('s_cmp_ge_u32 s26, 4')
        A('s_cbranch_scc1 L_loader')

    def loader(self):
        A, W = self.A, self.W
        self.L('L_loader')
        self.pending = []
        if 'noload' in self.exp:
            A('s_endpgm')
        A('s_sub_u32 s29, s26, 4')
        A('s_lshl_b32 s40, s27, 24')
        A('s_add_u32 s30, s6, s40')
        A('s_addc_u32 s31, s7, 0')
        A('s_add_u32 s32, s8, s40')
        A('s_addc_u32 s33, s9, 0')
        A('s_lshl_b32 s41, s28, 2')
        A('s_add_u32 s41, s41, s29')
        A(f's_mul_i32 s40, s27, {self.rot * 64}')
        A('s_add_u32 s41, s41, s40')
        A('s_and_b32 s41, s41, 4095')
        A(f's_mul_i32 s38, s29, {RING}')
        A('v_lshrrev_b32 v2, 4, v1')
        A('v_and_b32 v3, 15, v1')
        A('v_lshlrev_b32 v4, 1, v2')
        A('v_xor_b32 v3, v3, v4')
        A('v_lshlrev_b32 v3, 4, v3')
        A('v_lshl_add_u32 v6, v2, 8, v3')
        A('v_xor_b32 v7, 128, v6')
        A('s_lshl_b32 s40, s29, 2')
        A(f's_add_u32 s40, s40, {FL}')
        A('v_mov_b32 v8, s40')
        A('s_mov_b32 s35, 0')
        A('s_mov_b32 s39, 0')
        A('v_mov_b32 v10, 0')
        A('s_mov_b32 s60, 0')
        A('s_mov_b32 s61, 0')
        if 'noprio' not in self.exp:
            A('s_setprio 2')
        pub_pos = (W - 1) % 8
        pub_off = (pub_pos - W + 1) // 8

        def publish(val_sreg_or_expr):
            A(f'v_mov_b32 v9, {val_sreg_or_expr}')
            A('s_mov_b64 exec, 1')
            A('ds_write_b32 v8, v9')
            A('s_mov_b64 exec, -1')

        US = self.US
        A(f's_mul_i32 s44, s27, {self.rot * 64}')
        A('s_add_u32 s44, s44, s29')
        A(f's_add_u32 s44, s44, {US * 64}')
        A('v_mov_b32 v11, 0')
        A('v_mov_b32 v13, 0')
        self.L('L_ld_loop')
        for u in range(4):
            ok = self.lab('L_ld_ok')
            sp = self.lab('L_ld_spin')
            st = self.lab('L_ld_static')
            idok = self.lab('L_ld_idok')
            idsp = self.lab('L_ld_idspin')
            if self.stamps and u == 0:
                for q, nn in enumerate((4, 8, 16, 32, 48)):
                    l = self.lab('L_ld_st')
                    A(f's_cmp_lg_u32 s35, {nn}')
                    A(f's_cbranch_scc1 {l}')
                    self.stamp(16 + q)
                    self.L(l)
            A('s_waitcnt lgkmcnt(0)')
            A('v_readfirstlane_b32 s39, v10')
            A('v_readfirstlane_b32 s45, v11')
            if self.Wend:
                A('v_readfirstlane_b32 s47, v13')
            A(f's_cmp_lt_u32 s35, {US}')
            A(f's_cbranch_scc1 {st}')
            A('s_cmp_lg_u32 s45, 0')
            A(f's_cbranch_scc1 {idok}')
            if self.stamps:
                A('s_add_u32 s61, s61, 1')
            A('s_waitcnt vmcnt(0)')
            publish('s35')
            self.spin_begin(42)
            self.L(idsp)
            A('ds_read_b32 v11, v12')
            A('s_waitcnt lgkmcnt(0)')
            A('v_readfirstlane_b32 s45, v11')
            A('s_cmp_lg_u32 s45, 0')
            A(f's_cbranch_scc1 {idok}')
            self.spin_retry(42, idsp, sleep=1)
            A('s_branch L_ld_end')
            self.L(idok)
            A('s_cmp_eq_u32 s45, -1')
            A('s_cbranch_scc1 L_ld_end')
            A('s_sub_u32 s45, s45, 1')
            A('s_lshl_b32 s45, s45, 2')
            A('s_add_u32 s41, s45, s44')
            A('s_and_b32 s41, s41, 4095')
            self.L(st)
            A('s_add_u32 s40, s39, 3')
            A('s_cmp_ge_u32 s40, s35')
            A(f's_cbranch_scc1 {ok}')
            A('s_waitcnt vmcnt(0)')
            publish('s35')
            if self.stamps:
                A('s_add_u32 s60, s60, 1')
            self.spin_begin(42)
            self.L(sp)
            A('ds_read_b32 v10, v8 offset:16')
            A('s_waitcnt lgkmcnt(0)')
            A('v_readfirstlane_b32 s39, v10')
            A('s_add_u32 s40, s39, 3')
            A('s_cmp_ge_u32 s40, s35')
            A(f's_cbranch_scc1 {ok}')
            self.spin_retry(42, sp, sleep=1)
            self.L(ok)
            A('s_lshl_b32 s40, s41, 12')
            A('s_add_u32 s46, s35, 1')
            A(f's_sub_i32 s46, s46, {US}')
            A('s_max_i32 s46, s46, 0')
            A('s_lshl_b32 s46, s46, 2')
            A(f's_add_u32 s46, s46, {IDS}')
            A('v_mov_b32 v12, s46')
            def issue(Wx):
                pp = (Wx - 1) % 8
                po = (pp - Wx + 1) // 8
                for kv in range(2):
                    A(f's_add_u32 s36, s{30 + 2 * kv}, s40')
                    A(f's_addc_u32 s37, s{31 + 2 * kv}, 0')
                    A(f's_add_u32 m0, s38, {(2 * u + kv) * 4096}')
                    for jj in range(4):
                        A(f's_waitcnt vmcnt({Wx - 1})')
                        if kv * 4 + jj == pp:
                            skip = self.lab('L_ld_np')
                            if po < 0:
                                A(f's_cmp_lt_u32 s35, {-po}')
                                A(f's_cbranch_scc1 {skip}')
                                A(f's_sub_u32 s43, s35, {-po}')
                                publish('s43')
                                self.L(skip)
                            else:
                                publish('s35')
                        pol = ' nt'
                        if (kv == 1 and 'vplain' in self.exp) or (kv == 0 and 'kplain' in self.exp):
                            pol = ''
                        A(f'global_load_lds_dwordx4 v{6 + (jj & 1)}, s[36:37] offset:{jj * 1024}{pol}')
                        if self.earlyflags and kv == 1 and jj == 1:
                            A('ds_read_b32 v10, v8 offset:16')
                            A('ds_read_b32 v11, v12')
                            if self.Wend:
                                A('ds_read_b32 v13, v8 offset:48')
            if self.Wend:
                fast = self.lab('L_ld_fast')
                join = self.lab('L_ld_join')
                A('s_cmp_lg_u32 s47, 0')
                A(f's_cbranch_scc1 {fast}')
                issue(W)
                A(f's_branch {join}')
                self.L(fast)
                issue(self.Wend)
                self.L(join)
                if not self.earlyflags:
                    A('ds_read_b32 v13, v8 offset:48')
            else:
                issue(W)
            if not self.earlyflags:
                A('ds_read_b32 v10, v8 offset:16')
                A('ds_read_b32 v11, v12')
            A('s_add_u32 s41, s41, 64')
            A('s_and_b32 s41, s41, 4095')
            A('s_add_u32 s35, s35, 1')
        A('s_branch L_ld_loop')
        self.L('L_ld_end')
        A('s_waitcnt vmcnt(0)')
        A('s_or_b32 s43, s35, 0x80000000')
        publish('s43')
        A('s_waitcnt lgkmcnt(0)')
        if self.stamps:
            A('s_cmp_lg_u32 s26, 4')
            A('s_cbranch_scc1 L_ld_ns')
            self.stamp(8)
            self.flush_stamps(extra=[(9, 60), (21, 35), (22, 61)])
            self.L('L_ld_ns')
        A('s_endpgm')


    def loader_tk(self):
        A, W, US = self.A, self.W, self.US
        self.L('L_loader')
        self.pending = []
        if 'noload' in self.exp:
            A('s_endpgm')
        A('s_sub_u32 s29, s26, 4')
        xt = 'xt4' in self.exp
        if xt:
            A('s_mov_b32 s30, s6')
            A('s_mov_b32 s31, s7')
            A('s_mov_b32 s32, s8')
            A('s_mov_b32 s33, s9')
            A('s_lshr_b32 s54, s27, 2')
            A(f's_mul_i32 s44, s54, {self.xrot}')
            A('s_and_b32 s40, s27, 3')
            A('s_lshl_b32 s41, s40, 4')
            A('s_add_u32 s41, s41, s28')
            A('s_lshl_b32 s41, s41, 2')
            A('s_add_u32 s49, s41, s44')
            A(f's_mul_i32 s40, s40, {(64 - US) * 64}')
            A('s_add_u32 s44, s44, s40')
            A(f's_add_u32 s44, s44, {(US - 48) * 256}')
            A('s_lshl_b32 s54, s54, 2')
            A('s_add_u32 s55, s54, 3')
            A('s_lshl_b32 s55, s55, 12')
        else:
            if not self.fastpro:
                A('s_lshl_b32 s40, s27, 24')
                A('s_add_u32 s30, s6, s40')
                A('s_addc_u32 s31, s7, 0')
                A('s_add_u32 s32, s8, s40')
                A('s_addc_u32 s33, s9, 0')
            A(f's_mul_i32 s44, s27, {self.rot * 64}')
            A('s_lshl_b32 s41, s28, 2')
            A('s_add_u32 s49, s41, s44')
            A(f's_add_u32 s44, s44, {US * 64}')
        A(f's_mul_i32 s38, s29, {RING}')
        A('v_lshrrev_b32 v2, 4, v1')
        A('v_and_b32 v3, 15, v1')
        A('v_lshlrev_b32 v4, 1, v2')
        A('v_xor_b32 v3, v3, v4')
        A('v_lshlrev_b32 v3, 4, v3')
        A('v_lshl_add_u32 v6, v2, 8, v3')
        A('v_xor_b32 v7, 128, v6')
        A('s_lshl_b32 s40, s29, 2')
        A(f's_add_u32 s40, s40, {FL}')
        A('v_mov_b32 v8, s40')
        A(f'v_mov_b32 v14, {FL}')
        A('v_mov_b32 v16, 1')
        if self.fastpro:
            A('s_add_u32 s41, s49, s29')
            A('s_and_b32 s41, s41, 4095')
            A('s_lshl_b32 s41, s41, 12')
            A('s_lshl_b32 s40, s27, 24')
            A('s_add_u32 s41, s41, s40')
            A('s_mov_b32 m0, s38')
            A('s_waitcnt lgkmcnt(0)')
        A('s_mov_b32 s35, 0')
        A('s_mov_b32 s46, s29')
        A('v_mov_b32 v10, 0')
        A('v_mov_b32 v11, 0')
        A('v_mov_b32 v13, 0')
        A(f'v_mov_b32 v12, {IDS}')
        A('v_mov_b32 v18, 0')
        A('v_mov_b32 v19, 0')
        if self.share2:
            for r in range(20, 24):
                A(f'v_mov_b32 v{r}, 0')
        A('s_mov_b32 s60, 0')
        A('s_mov_b32 s61, 0')
        A('s_setprio 2')

        def publish(val):
            A(f'v_mov_b32 v9, {val}')
            A('s_mov_b64 exec, 1')
            A('ds_write_b32 v8, v9')
            A('s_mov_b64 exec, -1')

        if self.fastpro:
            assert not xt and self.tk_pos >= 4 and (W - 1) % 8 >= 4
            A('s_add_u32 s36, s6, s41')
            A('s_addc_u32 s37, s7, 0')
            for jj in range(4):
                A(f'global_load_lds_dwordx4 v{6 + (jj & 1)}, s[36:37] offset:{jj * 1024} nt')
            A('s_add_u32 s30, s6, s40')
            A('s_addc_u32 s31, s7, 0')
            A('s_add_u32 s32, s8, s40')
            A('s_addc_u32 s33, s9, 0')
            A('s_sub_u32 s40, s41, s40')
            A('s_barrier')
            if self.stamps:
                self.stamp_at(28, 6)
            A('s_branch L_ld_first_v')
        elif self.stamps:
            self.stamp_at(28, 6)
        self.L('L_ld_loop')
        for u in range(4):
            ok = self.lab('L_ld_ok')
            sp = self.lab('L_ld_spin')
            st = self.lab('L_ld_static')
            adr = self.lab('L_ld_adr')
            idok = self.lab('L_ld_idok')
            idsp = self.lab('L_ld_idspin')
            if self.stamps:
                for q, nn in enumerate(self.prog_pts):
                    if nn % 4 != u:
                        continue
                    l = self.lab('L_ld_st')
                    A(f's_cmp_lg_u32 s35, {nn}')
                    A(f's_cbranch_scc1 {l}')
                    self.stamp_at(16 + q, q)
                    self.L(l)
            A('s_waitcnt lgkmcnt(0)')
            A('v_readfirstlane_b32 s39, v10')
            A('v_readfirstlane_b32 s45, v11')
            A('v_readfirstlane_b32 s47, v13')
            A('s_lshr_b32 s41, s46, 2')
            A('s_and_b32 s43, s46, 3')
            A(f's_cmp_lt_u32 s41, {US}')
            A(f's_cbranch_scc1 {st}')
            if self.share and self.share2:
                rdy = self.lab('L_ld_rdy')
                shsp = self.lab('L_ld_shspin')
                zb = self.lab('L_ld_zb')
                zrdy = self.lab('L_ld_zrdy')
                zsp = self.lab('L_ld_zspin')
                zf = self.lab('L_ld_zf')
                A('v_readfirstlane_b32 s45, v20')
                A('s_cmp_lg_u32 s45, 0')
                A(f's_cbranch_scc1 {rdy}')
                if self.stamps:
                    A('s_add_u32 s61, s61, 1')
                A('s_waitcnt vmcnt(0)')
                publish('s35')
                self.spin_begin(42)
                self.L(shsp)
                A(f'ds_read_b128 v[20:23], v12')
                A('s_waitcnt lgkmcnt(0)')
                A('v_readfirstlane_b32 s45, v20')
                A('s_cmp_lg_u32 s45, 0')
                A(f's_cbranch_scc1 {rdy}')
                self.spin_retry(42, shsp, sleep=1)
                A('s_branch L_ld_end')
                self.L(rdy)
                A('v_readfirstlane_b32 s52, v22')
                A(f's_sub_u32 s51, s46, {4 * US - 1}')
                A('s_cmp_ge_u32 s51, s45')
                A(f's_cbranch_scc1 {zb}')
                A('v_readfirstlane_b32 s50, v21')
                A('s_add_u32 s41, s50, s51')
                A('s_add_u32 s41, s41, s44')
                A(f's_branch {zf}')
                self.L(zb)
                A('s_cmp_lg_u32 s52, 0')
                A(f's_cbranch_scc1 {zrdy}')
                A(f'ds_read_b128 v[20:23], v12')
                A('s_waitcnt lgkmcnt(0)')
                A('v_readfirstlane_b32 s52, v22')
                A('s_cmp_lg_u32 s52, 0')
                A(f's_cbranch_scc1 {zrdy}')
                if self.stamps:
                    A('s_add_u32 s61, s61, 0x100')
                A('s_waitcnt vmcnt(0)')
                publish('s35')
                self.spin_begin(42)
                self.L(zsp)
                A(f'ds_read_b128 v[20:23], v12')
                A('s_waitcnt lgkmcnt(0)')
                A('v_readfirstlane_b32 s52, v22')
                A('s_cmp_lg_u32 s52, 0')
                A(f's_cbranch_scc1 {zrdy}')
                self.spin_retry(42, zsp, sleep=1)
                A('s_branch L_ld_end')
                self.L(zrdy)
                A('v_readfirstlane_b32 s50, v23')
                A('s_sub_u32 s41, s51, s45')
                A('s_add_u32 s41, s41, 1')
                A('s_cmp_ge_u32 s41, s52')
                A('s_cbranch_scc1 L_ld_end')
                A('s_add_u32 s41, s41, s50')
                A('s_add_u32 s41, s41, s44')
                A(f's_add_u32 s41, s41, {(self.UB - US) * 64}')
                self.L(zf)
                A('s_add_u32 s47, s45, s52')
                A(f's_add_u32 s51, s51, {self.xfast + 1}')
                A('s_cmp_ge_u32 s51, s47')
                A('s_cselect_b32 s47, 1, 0')
                A('s_cmp_eq_u32 s52, 0')
                A('s_cselect_b32 s47, 0, s47')
                A('s_sub_u32 s41, s41, 1')
                A('s_and_b32 s41, s41, 4095')
                if xt:
                    A('s_or_b32 s41, s41, s55')
                A(f's_branch {adr}_b')
            elif self.share:
                rdy = self.lab('L_ld_rdy')
                shsp = self.lab('L_ld_shspin')
                A('v_readfirstlane_b32 s45, v18')
                A('s_cmp_lg_u32 s45, 0')
                A(f's_cbranch_scc1 {rdy}')
                if self.stamps:
                    A('s_add_u32 s61, s61, 1')
                A('s_waitcnt vmcnt(0)')
                publish('s35')
                self.spin_begin(42)
                self.L(shsp)
                A(f'ds_read_b64 v[18:19], v12')
                A('s_waitcnt lgkmcnt(0)')
                A('v_readfirstlane_b32 s45, v18')
                A('s_cmp_lg_u32 s45, 0')
                A(f's_cbranch_scc1 {rdy}')
                self.spin_retry(42, shsp, sleep=1)
                A('s_branch L_ld_end')
                self.L(rdy)
                A('v_readfirstlane_b32 s50, v19')
                A(f's_sub_u32 s51, s46, {4 * US - 1}')
                A('s_cmp_ge_u32 s51, s45')
                A('s_cbranch_scc1 L_ld_end')
                A(f's_add_u32 s47, s51, {self.xfast}')
                A('s_cmp_ge_u32 s47, s45')
                A('s_cselect_b32 s47, 1, 0')
                A('s_add_u32 s41, s50, s51')
                A('s_add_u32 s41, s41, s44')
                A('s_sub_u32 s41, s41, 1')
                A('s_and_b32 s41, s41, 4095')
                if xt:
                    A('s_or_b32 s41, s41, s55')
                A(f's_branch {adr}_b')
            A('s_cmp_lg_u32 s45, 0')
            A(f's_cbranch_scc1 {idok}')
            if self.stamps:
                A('s_add_u32 s61, s61, 1')
            A('s_waitcnt vmcnt(0)')
            publish('s35')
            self.spin_begin(42)
            self.L(idsp)
            A('ds_read_b32 v11, v12')
            A('s_waitcnt lgkmcnt(0)')
            A('v_readfirstlane_b32 s45, v11')
            A('s_cmp_lg_u32 s45, 0')
            A(f's_cbranch_scc1 {idok}')
            self.spin_retry(42, idsp, sleep=1)
            A('s_branch L_ld_end')
            self.L(idok)
            A('s_cmp_eq_u32 s45, -1')
            A('s_cbranch_scc1 L_ld_end')
            A('s_sub_u32 s45, s45, 1')
            A('s_lshl_b32 s41, s45, 2')
            A('s_add_u32 s41, s41, s44')
            A(f's_branch {adr}')
            self.L(st)
            if xt:
                A('s_lshr_b32 s48, s41, 4')
                A('s_add_u32 s48, s48, s54')
                A('s_lshl_b32 s48, s48, 12')
                A('s_and_b32 s41, s41, 15')
                A('s_lshl_b32 s41, s41, 8')
            else:
                A('s_lshl_b32 s41, s41, 6')
            A('s_add_u32 s41, s41, s49')
            self.L(adr)
            A('s_add_u32 s41, s41, s43')
            A('s_and_b32 s41, s41, 4095')
            if xt:
                A('s_or_b32 s41, s41, s48')
            self.L(f'{adr}_b')
            A('s_add_u32 s40, s39, 3')
            A('s_cmp_ge_u32 s40, s35')
            A(f's_cbranch_scc1 {ok}')
            A('s_waitcnt vmcnt(0)')
            publish('s35')
            if self.stamps:
                A('s_add_u32 s60, s60, 1')
            self.spin_begin(42)
            self.L(sp)
            A('ds_read_b32 v10, v8 offset:16')
            A('s_waitcnt lgkmcnt(0)')
            A('v_readfirstlane_b32 s39, v10')
            A('s_add_u32 s40, s39, 3')
            A('s_cmp_ge_u32 s40, s35')
            A(f's_cbranch_scc1 {ok}')
            self.spin_retry(42, sp, sleep=1)
            self.L(ok)
            A('s_lshl_b32 s40, s41, 12')

            def issue(Wx):
                pp = (Wx - 1) % 8
                po = (pp - Wx + 1) // 8
                for kv in range(2):
                    if self.fastpro and u == 0 and kv == 1 and Wx == W:
                        self.L('L_ld_first_v')
                    A(f's_add_u32 s36, s{30 + 2 * kv}, s40')
                    A(f's_addc_u32 s37, s{31 + 2 * kv}, 0')
                    A(f's_add_u32 m0, s38, {(2 * u + kv) * 4096}')
                    for jj in range(4):
                        A(f's_waitcnt vmcnt({Wx - 1})')
                        if kv * 4 + jj == pp:
                            skip = self.lab('L_ld_np')
                            if po < 0:
                                A(f's_cmp_lt_u32 s35, {-po}')
                                A(f's_cbranch_scc1 {skip}')
                                A(f's_sub_u32 s43, s35, {-po}')
                                publish('s43')
                                self.L(skip)
                            else:
                                publish('s35')
                        A(f'global_load_lds_dwordx4 v{6 + (jj & 1)}, s[36:37] offset:{jj * 1024} nt')
                        if kv * 4 + jj == self.tk_pos:
                            A('s_mov_b64 exec, 1')
                            A('ds_add_rtn_u32 v15, v14, v16 offset:52')
                            A('s_mov_b64 exec, -1')
                        if kv * 4 + jj == self.tk_pos + 2:
                            A('s_waitcnt lgkmcnt(0)')
                            A('v_readfirstlane_b32 s46, v15')
                            A('s_add_u32 s46, s46, 4')
                            if self.share and self.pertau:
                                for q, row in enumerate((self.C0, self.C)):
                                    l = self.lab('L_ld_ts')
                                    A(f's_cmp_lg_u32 s46, {4 * row}')
                                    A(f's_cbranch_scc1 {l}')
                                    A('s_memrealtime s[52:53]')
                                    A('s_waitcnt lgkmcnt(0)')
                                    A('v_mov_b32 v20, s52')
                                    A('s_mov_b64 exec, 1')
                                    A(f'ds_write_b32 v14, v20 offset:{232 + 4 * q}')
                                    A('s_mov_b64 exec, -1')
                                    self.L(l)
                            A('s_lshr_b32 s48, s46, 2')
                            A(f's_sub_i32 s48, s48, {US}')
                            A('s_max_i32 s48, s48, 0')
                            A(f's_min_i32 s48, s48, {CAP + 1}')
                            A('s_lshl_b32 s48, s48, 2')
                            A(f's_add_u32 s48, s48, {IDS}')
                            A('ds_read_b32 v10, v8 offset:16')
                            if self.share and self.share2:
                                A('ds_read_b128 v[20:23], v12')
                            elif self.share:
                                A('ds_read_b64 v[18:19], v12')
                                if self.ffnboost:
                                    A('ds_read_b32 v13, v14 offset:48')
                            else:
                                A('v_mov_b32 v12, s48')
                                A('ds_read_b32 v11, v12')
                                A('ds_read_b32 v13, v14 offset:48')
            fast = self.lab('L_ld_fast')
            join = self.lab('L_ld_join')
            A('s_cmp_lg_u32 s47, 0')
            A(f's_cbranch_scc1 {fast}')
            if self.nstart > u:
                A(f's_cmp_lt_u32 s35, {self.nstart}')
                A(f's_cbranch_scc1 {fast}')
            issue(W)
            A(f's_branch {join}')
            self.L(fast)
            issue(self.Wend)
            self.L(join)
            A('s_add_u32 s35, s35, 1')
        A('s_branch L_ld_loop')
        self.L('L_ld_end')
        if not self.w2late and self.wo_by == 'loader' and 'nowo' not in self.exp:
            A('s_lshl_b32 s40, s27, 4')
            A('s_add_u32 s40, s40, s28')
            A('s_mul_i32 s40, s40, 18432')
            A('s_mul_i32 s41, s29, 5120')
            A('s_add_u32 s40, s40, s41')
            A('s_add_u32 s36, s12, s40')
            A('s_addc_u32 s37, s13, 0')
            A(f's_add_u32 s41, s41, {STG}')
            A('s_mov_b32 m0, s41')
            A('v_lshlrev_b32 v17, 4, v1')
            for i in range(3):
                A(f'global_load_lds_dwordx4 v17, s[36:37] offset:{1024 * i} nt')
            A('s_cmp_eq_u32 s29, 3')
            A('s_cbranch_scc1 L_ld_wo3')
            A('global_load_lds_dwordx4 v17, s[36:37] offset:3072 nt')
            A('s_add_u32 s36, s36, 4096')
            A('s_addc_u32 s37, s37, 0')
            A('s_add_u32 m0, s41, 4096')
            A('s_nop 0')
            A('global_load_lds_dwordx4 v17, s[36:37] nt')
            A('s_waitcnt vmcnt(5)')
            A('s_branch L_ld_wodn')
            self.L('L_ld_wo3')
            A('s_waitcnt vmcnt(3)')
            self.L('L_ld_wodn')
        else:
            if self.stage_end:
                A('s_waitcnt vmcnt(8)')
                A('s_sub_i32 s43, s35, 1')
                A('s_max_i32 s43, s43, 0')
                publish('s43')
            A('s_waitcnt vmcnt(0)')
        A('s_or_b32 s43, s35, 0x80000000')
        publish('s43')
        if not self.w2late and self.wo_by == 'loader':
            A('s_waitcnt lgkmcnt(0)')
            A('s_barrier')
            A('s_waitcnt vmcnt(0)')
            A('v_mov_b32 v9, 1')
            A('s_mov_b64 exec, 1')
            A('ds_write_b32 v8, v9 offset:240')
            A('s_mov_b64 exec, -1')
        A('s_waitcnt lgkmcnt(0)')
        if self.stamps:
            A('s_cmp_lg_u32 s26, 4')
            A('s_cbranch_scc1 L_ld_ns')
            while len(self.pending) < 5:
                self.pending.append(None)
            self.stamp(8)
            self.flush_stamps(extra=[(9, 60), (21, 35), (22, 61), (27, 90)])
            self.L('L_ld_ns')
        A('s_endpgm')


    def poll(self, name, loads, checks, sleep, allmask='-1', sr=60, probe=True):
        A = self.A
        inv, n, sw, cnt = sr, sr + 2, sr + 3, sr + 4
        if allmask == '-1':
            A(f's_mov_b64 s[{inv}:{inv+1}], -1')
        else:
            A(f's_mov_b64 s[{inv}:{inv+1}], {allmask}')
        A(f's_mov_b32 s{sw}, 1')
        A(f's_mov_b32 s{cnt}, {SPIN}')
        self.L(f'{name}_loop')
        A(f's_bcnt1_i32_b64 s{n}, s[{inv}:{inv+1}]')
        A(f's_cmp_le_u32 s{n}, {8 if probe else 64}')
        A(f's_cselect_b32 s{sw}, 1, s{sw}')
        A(f's_mov_b64 exec, s[{inv}:{inv+1}]')
        A(f's_cmp_lg_u32 s{sw}, 0')
        A(f's_cbranch_scc1 {name}_go')
        A(f's_ff1_i32_b64 s{n}, s[{inv}:{inv+1}]')
        A(f's_lshl_b64 exec, 1, s{n}')
        self.L(f'{name}_go')
        for l in loads:
            A(l)
        A('s_waitcnt vmcnt(0)')
        acc = checks()
        A(f'v_cmp_eq_u32 vcc, 0, v{acc}')
        A(f's_andn2_b64 s[{inv}:{inv+1}], s[{inv}:{inv+1}], vcc')
        A(f's_cmp_lg_u64 vcc, 0')
        A(f's_cselect_b32 s{n}, 1, 0')
        A(f's_xor_b32 s{sw}, s{sw}, 1')
        A(f's_and_b32 s{sw}, s{sw}, s{n}')
        A('s_mov_b64 exec, -1')
        A(f's_cmp_eq_u64 s[{inv}:{inv+1}], 0')
        A(f's_cbranch_scc1 {name}_done')
        if self.fastpoll:
            A(f's_bcnt1_i32_b64 s{n}, s[{inv}:{inv+1}]')
            A(f's_cmp_le_u32 s{n}, 8')
            A(f's_cbranch_scc1 {name}_ns')
        A(f's_sleep {sleep}')
        if self.fastpoll:
            self.L(f'{name}_ns')
        A(f's_sub_u32 s{cnt}, s{cnt}, 1')
        A(f's_cmp_lg_u32 s{cnt}, 0')
        A(f's_cbranch_scc1 {name}_loop')
        self.L(f'{name}_done')


    def poll2(self, name, mk_loads, basesA, basesB, acc, tmp, sleep, sr=60, stag=4, thresh=16, more=()):
        A = self.A
        inv, n, sw, cnt = sr, sr + 2, sr + 3, sr + 4
        nl = len(basesA)
        sets = [basesA, basesB] + list(more)
        A(f's_mov_b64 s[{inv}:{inv+1}], -1')
        A(f's_mov_b32 s{sw}, 1')
        A(f's_mov_b32 s{cnt}, {SPIN}')
        self.L(f'{name}_loop')
        A(f's_mov_b64 exec, s[{inv}:{inv+1}]')
        A(f's_cmp_lg_u32 s{sw}, 0')
        A(f's_cbranch_scc1 {name}_go')
        A(f's_ff1_i32_b64 s{n}, s[{inv}:{inv+1}]')
        A(f's_lshl_b64 exec, 1, s{n}')
        self.L(f'{name}_go')
        for l in mk_loads(basesA):
            A(l)
        A('s_waitcnt vmcnt(0)')
        self.chk3(basesA, acc, tmp)
        A(f'v_cmp_eq_u32 vcc, 0, v{acc}')
        A(f's_andn2_b64 s[{inv}:{inv+1}], s[{inv}:{inv+1}], vcc')
        A(f's_cmp_lg_u64 vcc, 0')
        A(f's_cselect_b32 s{n}, 1, 0')
        A(f's_xor_b32 s{sw}, s{sw}, 1')
        A(f's_and_b32 s{sw}, s{sw}, s{n}')
        A('s_mov_b64 exec, -1')
        A(f's_cmp_eq_u64 s[{inv}:{inv+1}], 0')
        A(f's_cbranch_scc1 {name}_done')
        A(f's_bcnt1_i32_b64 s{n}, s[{inv}:{inv+1}]')
        A(f's_cmp_le_u32 s{n}, {thresh}')
        A(f's_cbranch_scc1 {name}_p2')
        A(f's_sleep {sleep}')
        A(f's_sub_u32 s{cnt}, s{cnt}, 1')
        A(f's_cmp_lg_u32 s{cnt}, 0')
        A(f's_cbranch_scc1 {name}_loop')
        A(f's_branch {name}_done')
        self.L(f'{name}_p2')
        A(f's_mov_b64 exec, s[{inv}:{inv+1}]')
        for k, X in enumerate(sets):
            if k:
                A(f's_sleep {stag}')
            for l in mk_loads(X):
                A(l)
        self.L(f'{name}_p2l')
        for X in sets:
            A(f's_waitcnt vmcnt({nl * (len(sets) - 1)})')
            self.chk3(X, acc, tmp)
            A(f'v_cmp_eq_u32 vcc, 0, v{acc}')
            A(f's_and_b64 vcc, vcc, s[{inv}:{inv+1}]')
            if X is not basesA:
                A('s_mov_b64 exec, vcc')
                for bA, bB in zip(basesA, X):
                    for r in range(3):
                        A(f'v_mov_b32 v{bA + r}, v{bB + r}')
            A(f's_andn2_b64 s[{inv}:{inv+1}], s[{inv}:{inv+1}], vcc')
            A(f's_cmp_eq_u64 s[{inv}:{inv+1}], 0')
            A(f's_cbranch_scc1 {name}_done')
            A(f's_mov_b64 exec, s[{inv}:{inv+1}]')
            for l in mk_loads(X):
                A(l)
        A(f's_sub_u32 s{cnt}, s{cnt}, 1')
        A(f's_cmp_lg_u32 s{cnt}, 0')
        A(f's_cbranch_scc1 {name}_p2l')
        self.L(f'{name}_done')
        A('s_mov_b64 exec, -1')

    def pollm(self, name, mk_loads, sets, acc, stag, invs, anyr=60, first=True):
        A = self.A
        nl = len(sets[0])
        cnt = anyr + 4
        for iv in invs:
            A(f's_mov_b64 s[{iv}:{iv+1}], -1')
        A(f's_mov_b32 s{cnt}, {SPIN}')

        def check(X):
            for i, (b, iv) in enumerate(zip(X, invs)):
                A(f's_mov_b64 exec, s[{iv}:{iv+1}]')
                A(f'v_bitop3_b32 v{acc}, v{b}, v{b+1}, v{b+2} bitop3:0x96')
                A(f'v_bitop3_b32 v{acc}, v{acc}, v{b+3}, s29 bitop3:0x96')
                A(f'v_cmp_eq_u32 vcc, 0, v{acc}')
                A(f's_andn2_b64 s[{iv}:{iv+1}], s[{iv}:{iv+1}], vcc')
                if X is not sets[0]:
                    A('s_mov_b64 exec, vcc')
                    for r in range(3):
                        A(f'v_mov_b32 v{sets[0][i] + r}, v{b + r}')
            A(f's_or_b64 s[{anyr}:{anyr+1}], s[{invs[0]}:{invs[0]+1}], s[{invs[1]}:{invs[1]+1}]')
            for iv in invs[2:]:
                A(f's_or_b64 s[{anyr}:{anyr+1}], s[{anyr}:{anyr+1}], s[{iv}:{iv+1}]')
            A(f's_cbranch_scc0 {name}_done')

        def issue(X):
            for l, iv in zip(mk_loads(X), invs):
                A(f's_cmp_eq_u64 s[{iv}:{iv+1}], 0')
                A(f's_cselect_b64 exec, 1, s[{iv}:{iv+1}]')
                A(l)

        if first and len(sets) > 1:
            for l in mk_loads(sets[0]):
                A(l)
            A('s_waitcnt vmcnt(0)')
            check(sets[0])
            for k, X in enumerate(sets):
                if k:
                    A(f's_sleep {stag}')
                issue(X)
        else:
            for k, X in enumerate(sets):
                if k:
                    A(f's_sleep {stag}')
                for l in mk_loads(X):
                    A(l)
        self.L(f'{name}_loop')
        for X in sets:
            A(f's_waitcnt vmcnt({nl * (len(sets) - 1)})')
            check(X)
            issue(X)
        A(f's_sub_u32 s{cnt}, s{cnt}, 1')
        A(f's_cmp_lg_u32 s{cnt}, 0')
        A(f's_cbranch_scc1 {name}_loop')
        self.L(f'{name}_done')
        A('s_mov_b64 exec, -1')

    def chk3(self, groups, acc, tmp, tag=29):
        A = self.A
        for n, b in enumerate(groups):
            d = acc if n == 0 else tmp
            A(f'v_bitop3_b32 v{d}, v{b}, v{b+1}, v{b+2} bitop3:0x96')
            A(f'v_bitop3_b32 v{d}, v{d}, v{b+3}, s{tag} bitop3:0x96')
            if n:
                A(f'v_or_b32 v{acc}, v{acc}, v{tmp}')
        return acc

    def mkchk(self, b, tag=29):
        self.A(f'v_bitop3_b32 v{b+3}, v{b}, v{b+1}, v{b+2} bitop3:0x96')
        self.A(f'v_xor_b32 v{b+3}, s{tag}, v{b+3}')

    def cstamp(self, idx):
        self.stamp(idx)

    def cflush(self):
        if self.stamps:
            l = self.lab('L_nf')
            self.A('s_cmp_lg_u32 s26, 0')
            self.A(f's_cbranch_scc1 {l}')
            self.flush_stamps()
            self.L(l)

    def consumer(self):
        A = self.A
        self.pending = []
        KA, VA, FA = 2, 6, 14
        Q, O, KF, VF, S = 16, 32, 64, 80, 96
        MC, LS = 100, 101
        T = 102
        P = 118
        A(f's_mul_i32 s38, s26, {RING}')
        A('v_and_b32 v20, 15, v1')
        A('v_lshrrev_b32 v21, 4, v1')
        A('v_and_b32 v22, 7, v20')
        A('v_lshlrev_b32 v22, 1, v22')
        A('v_lshlrev_b32 v23, 8, v20')
        A('v_add_u32 v23, s38, v23')
        for i in range(4):
            A(f'v_add_u32 v24, {4 * i}, v21')
            A('v_xor_b32 v24, v24, v22')
            A(f'v_lshl_add_u32 v{KA + i}, v24, 4, v23')
        A('v_lshrrev_b32 v22, 2, v20')
        A('v_lshl_add_u32 v22, v21, 2, v22')
        A('v_and_b32 v24, 7, v22')
        A('v_lshlrev_b32 v23, 8, v22')
        A('v_add_u32 v23, s38, v23')
        A('v_and_b32 v25, 3, v20')
        A('v_lshl_add_u32 v23, v25, 3, v23')
        for m in range(8):
            A(f'v_xor_b32 v25, {m}, v24')
            A(f'v_lshl_add_u32 v{VA + m}, v25, 5, v23')
        A('s_lshl_b32 s40, s26, 2')
        A(f's_add_u32 s40, s40, {FL}')
        A(f'v_mov_b32 v{FA}, s40')
        for r in range(32):
            A(f'v_mov_b32 v{O + r}, 0')
        A(f'v_mov_b32 v{MC}, 0xff800000')
        A(f'v_mov_b32 v{LS}, 0')
        A(f's_mov_b32 s44, {LOG2E}')
        KB, VB = 128, 144
        def wait_full(done_label):
            go = self.lab('L_c_go')
            pl = self.lab('L_c_poll')
            A('s_and_b32 s40, s39, 0x7fffffff')
            A('s_cmp_gt_u32 s40, s35')
            A(f's_cbranch_scc1 {go}')
            self.spin_begin(42)
            self.L(pl)
            A(f'ds_read_b32 v{T}, v{FA}')
            A('s_waitcnt lgkmcnt(0)')
            A(f'v_readfirstlane_b32 s39, v{T}')
            A('s_and_b32 s40, s39, 0x7fffffff')
            A('s_cmp_gt_u32 s40, s35')
            A(f's_cbranch_scc1 {go}')
            A('s_cmp_lt_i32 s39, 0')
            A(f's_cbranch_scc1 {done_label}')
            self.spin_retry(42, pl, sleep=1)
            A(f's_branch {done_label}')
            self.L(go)
        def reads(u, kf, vf):
            for i in range(4):
                A(f'ds_read_b128 v[{kf + 4*i}:{kf + 4*i + 3}], v{KA + i} offset:{(2*u) * 4096}')
            for m in range(8):
                A(f'ds_read_b64_tr_b16 v[{vf + 2*m}:{vf + 2*m + 1}], v{VA + m} offset:{(2*u + 1) * 4096}')
            A('s_add_u32 s35, s35, 1')
        def qk(kf):
            for i in range(4):
                c = '0' if i == 0 else f'v[{S}:{S+3}]'
                A(f'v_mfma_f32_16x16x32_bf16 v[{S}:{S+3}], v[{kf + 4*i}:{kf + 4*i + 3}], v[{Q + 4*i}:{Q + 4*i + 3}], {c}')
        def free():
            A(f'v_mov_b32 v{T}, s35')
            A('s_waitcnt lgkmcnt(0)')
            A('s_mov_b64 exec, 1')
            A(f'ds_write_b32 v{FA}, v{T} offset:16')
            A('s_mov_b64 exec, -1')
        def softmax_pv(vf):
            nr = self.lab('L_c_nr')
            A(f'v_cvt_pk_bf16_f32 v{T}, v{S}, v{S+1}')
            A(f'v_cvt_pk_bf16_f32 v{T+1}, v{S+2}, v{S+3}')
            A(f'v_lshlrev_b32 v{T+2}, 16, v{T}')
            A(f'v_and_b32 v{T+3}, 0xffff0000, v{T}')
            A(f'v_lshlrev_b32 v{T+4}, 16, v{T+1}')
            A(f'v_and_b32 v{T+5}, 0xffff0000, v{T+1}')
            for r in range(4):
                A(f'v_mul_f32 v{T+2+r}, {SCALE:#x}, v{T+2+r}')
            A(f'v_cvt_pk_bf16_f32 v{T}, v{T+2}, v{T+3}')
            A(f'v_cvt_pk_bf16_f32 v{T+1}, v{T+4}, v{T+5}')
            A(f'v_lshlrev_b32 v{T+2}, 16, v{T}')
            A(f'v_and_b32 v{T+3}, 0xffff0000, v{T}')
            A(f'v_lshlrev_b32 v{T+4}, 16, v{T+1}')
            A(f'v_and_b32 v{T+5}, 0xffff0000, v{T+1}')
            A(f'v_max3_f32 v{T+6}, v{T+2}, v{T+3}, v{T+4}')
            A(f'v_max_f32 v{T+6}, v{T+6}, v{T+5}')
            A(f'v_mul_f32 v{T+6}, s44, v{T+6}')
            A(f'v_cmp_gt_f32 vcc, v{T+6}, v{MC}')
            A(f's_cbranch_vccz {nr}')
            self.xrow('v_max_f32', T + 6, T + 7)
            A(f'v_max_f32 v{T+6}, v{T+6}, v{MC}')
            A(f'v_sub_f32 v{T+7}, v{MC}, v{T+6}')
            A(f'v_exp_f32 v{T+7}, v{T+7}')
            A(f'v_mov_b32 v{MC}, v{T+6}')
            A(f'v_mul_f32 v{LS}, v{LS}, v{T+7}')
            for r in range(32):
                A(f'v_mul_f32 v{O + r}, v{O + r}, v{T+7}')
            self.L(nr)
            for r in range(4):
                A(f'v_fma_f32 v{T+2+r}, v{T+2+r}, s44, -v{MC}')
            for r in range(4):
                A(f'v_exp_f32 v{T+2+r}, v{T+2+r}')
            A('s_nop 0')
            A(f'v_cvt_pk_bf16_f32 v{P}, v{T+2}, v{T+3}')
            A(f'v_cvt_pk_bf16_f32 v{P+1}, v{T+4}, v{T+5}')
            A(f'v_add_f32 v{T+2}, v{T+2}, v{T+3}')
            A(f'v_add_f32 v{T+4}, v{T+4}, v{T+5}')
            A(f'v_add_f32 v{LS}, v{LS}, v{T+2}')
            A(f'v_add_f32 v{LS}, v{LS}, v{T+4}')
            for m in range(8):
                A(f'v_mfma_f32_16x16x16_bf16 v[{O + 4*m}:{O + 4*m + 3}], v[{vf + 2*m}:{vf + 2*m + 1}], v[{P}:{P+1}], v[{O + 4*m}:{O + 4*m + 3}]')

        A('v_lshlrev_b32 v123, 9, v20')
        A('v_lshl_add_u32 v123, v21, 4, v123')
        A('s_lshl_b32 s40, s26, 10')
        A(f's_add_u32 s40, s40, {OC}')
        A('v_add_u32 v123, s40, v123')
        A('s_lshl_b32 s40, s26, 4')
        A(f's_add_u32 s40, s40, {OCML}')
        A('v_lshlrev_b32 v124, 3, v20')
        A('v_add_u32 v124, s40, v124')
        A('s_lshl_b32 s40, s26, 6')
        A('v_add_u32 v122, s40, v1')
        A('v_lshrrev_b32 v125, 3, v122')
        A('v_lshlrev_b32 v125, 6, v125')
        A('v_and_b32 v122, 7, v122')
        A('v_mul_u32_u24 v122, 12, v122')
        A('v_add_u32 v125, v125, v122')
        A(f'v_add_u32 v125, {OC}, v125')
        A('s_mov_b32 s35, 0')
        A('s_mov_b32 s39, 0')
        A(f'v_and_b32 v15, 1, v20')
        A(f'v_lshlrev_b32 v15, 8, v15')
        A(f'v_lshl_add_u32 v15, v21, 4, v15')
        A(f'v_add_u32 v15, {QL}, v15')
        if self.preread and 'noload' not in self.exp:
            wait_full('L_c_done')
            reads(0, KF, VF)
            free()
            wait_full('L_c_done')
            reads(1, KB, VB)
            free()
        A(f'v_mov_b32 v{T}, {FL}')
        self.spin_begin(42)
        self.L('L_c_qwait')
        A(f'ds_read_b32 v{T+2}, v{T} offset:32')
        A('s_waitcnt lgkmcnt(0)')
        A(f'v_readfirstlane_b32 s40, v{T+2}')
        A('s_cmp_lg_u32 s40, 0')
        A('s_cbranch_scc1 L_c_qok')
        if 'noq' in self.exp:
            A('s_branch L_c_qok')
        self.spin_retry(42, 'L_c_qwait', sleep=2)
        self.L('L_c_qok')
        for i in range(4):
            A(f'ds_read_b128 v[{Q + 4*i}:{Q + 4*i + 3}], v15 offset:{64 * i}')
        A('s_waitcnt lgkmcnt(0)')
        self.cstamp(1)
        if 'noload' in self.exp:
            self.cflush()
            A('s_endpgm')
        if self.preread:
            qk(KF)
            A('s_nop 7')
            softmax_pv(VF)
            qk(KB)
            A('s_nop 7')
            softmax_pv(VB)
            A('s_branch L_c_u2')
        self.L('L_c_loop')
        for u in range(4):
            if u == 2:
                self.L('L_c_u2')
            wait_full('L_c_done')
            reads(u, KF, VF)
            A('s_waitcnt lgkmcnt(8)')
            qk(KF)
            free()
            A('s_nop 3')
            softmax_pv(VF)
        A('s_branch L_c_loop')
        self.L('L_c_done')

        self.cstamp(2)
        if 'notail' in self.exp:
            self.cflush()
            A('s_endpgm')
        A('s_mov_b32 s46, 0x00030003')
        A('s_mov_b32 s47, 0x00030003')
        A('s_mov_b64 exec, s[46:47]')
        for m in range(8):
            A(f'ds_write_b128 v123, v[{O + 4*m}:{O + 4*m + 3}] offset:{64 * m}')
        A('s_mov_b64 exec, -1')
        self.xrow('v_add_f32', LS, T)
        A('s_mov_b64 exec, 3')
        A(f'ds_write_b64 v124, v[{MC}:{LS}]')
        A('s_mov_b64 exec, -1')
        A(f'v_mov_b32 v{T+3}, {FL}')
        A(f'ds_read_b32 v68, v{T+3} offset:36')
        A('s_lshl_b32 s51, s27, 4')
        A('s_add_u32 s51, s51, s28')
        A('s_waitcnt lgkmcnt(0)')
        A('s_barrier')
        A('v_readfirstlane_b32 s29, v68')
        A('s_cmp_ge_u32 s26, 2')
        A('s_cbranch_scc1 L_c_nopub')
        A('s_lshl_b32 s45, s26, 3')
        A(f's_add_u32 s45, s45, {OCML}')
        A(f'v_mov_b32 v{T+2}, s45')
        for k in range(4):
            A(f'ds_read_b64 v[{70 + 2*k}:{71 + 2*k}], v{T+2} offset:{16 * k}')
        for k in range(4):
            for i in range(3):
                A(f'ds_read_b32 v{32 + 4*i + k}, v125 offset:{1024 * k + 4 * i}')
        A('s_lshl_b32 s45, s51, 11')
        A(f's_add_u32 s45, s45, {WS_P}')
        A('s_add_u32 s48, s24, s45')
        A('s_addc_u32 s49, s25, 0')
        A('s_lshl_b32 s40, s26, 10')
        A(f'v_lshlrev_b32 v{T+3}, 4, v1')
        A(f'v_add_u32 v{T+3}, s40, v{T+3}')
        A('s_mov_b32 s46, 0x20202020')
        A('s_mov_b32 s47, 0x20202020')
        A('s_waitcnt lgkmcnt(12)')
        A('v_max3_f32 v80, v70, v72, v74')
        A('v_max_f32 v80, v80, v76')
        for k in range(4):
            A(f'v_sub_f32 v{82 + k}, v{70 + 2*k}, v80')
        for k in range(4):
            A(f'v_exp_f32 v{82 + k}, v{82 + k}')
        A('s_nop 0')
        A('v_mul_f32 v81, v71, v82')
        for k in range(1, 4):
            A(f'v_fmac_f32 v81, v{71 + 2*k}, v{82 + k}')
        A('s_waitcnt lgkmcnt(0)')
        for i in range(3):
            A(f'v_mul_f32 v{88 + i}, v{32 + 4*i}, v82')
        for k in range(1, 4):
            for i in range(3):
                A(f'v_fmac_f32 v{88 + i}, v{32 + 4*i + k}, v{82 + k}')
        A('v_cndmask_b32 v89, v89, v80, s[46:47]')
        A('v_cndmask_b32 v90, v90, v81, s[46:47]')
        self.mkchk(88)
        A(f'global_store_dwordx4 v{T+3}, v[88:91], s[48:49] sc1')
        if self.wo_delay:
            A('s_lshl_b32 s45, s26, 2')
            A(f's_add_u32 s45, s45, {FL + 56}')
            A(f'v_mov_b32 v{T+1}, s45')
            A(f'v_mov_b32 v{T}, 1')
            A('s_mov_b64 exec, 1')
            A(f'ds_write_b32 v{T+1}, v{T}')
            A('s_mov_b64 exec, -1')
        self.cstamp(3)
        if self.flate is True:
            A(f's_cmp_ge_u32 s96, {NFFN}')
            A('s_cbranch_scc1 L_c_nofp')
            A('s_mul_i32 s45, s26, 1536')
            A('v_lshlrev_b32 v30, 4, v1')
            A('v_add_u32 v30, s45, v30')
            A(f'v_add_u32 v31, {FB}, v30')
            A('ds_read_b128 v[32:35], v31')
            A('ds_read_b128 v[36:39], v31 offset:1024')
            A('s_mul_i32 s45, s96, 3072')
            A(f's_add_u32 s45, s45, {WS_F}')
            A('s_add_u32 s56, s24, s45')
            A('s_addc_u32 s57, s25, 0')
            A('s_waitcnt lgkmcnt(0)')
            A('global_store_dwordx4 v30, v[32:35], s[56:57] sc1')
            A('s_mov_b32 s46, -1')
            A('s_mov_b32 s47, 0')
            A('s_mov_b64 exec, s[46:47]')
            A('global_store_dwordx4 v30, v[36:39], s[56:57] offset:1024 sc1')
            A('s_mov_b64 exec, -1')
            A('s_branch L_c_pubdone')
            self.L('L_c_nofp')
            A(f's_cmp_ge_u32 s97, {NRED}')
            A('s_cbranch_scc1 L_c_pubdone')
            A(f's_cmp_lg_u32 s26, {self.fwave}')
            A('s_cbranch_scc1 L_c_pubdone')
            self.f_gather('L_c_f', sleep=self.fsleep, probe=False)
        A('s_branch L_c_pubdone')
        self.L('L_c_nopub')
        if self.w2late == 'after':
            A(f'v_lshlrev_b32 v{T}, 4, v1')
            A('s_sub_u32 s45, s26, 2')
            A('s_mul_i32 s40, s51, 18432')
            A('s_mul_i32 s58, s45, 9216')
            A('s_add_u32 s40, s40, s58')
            A('s_add_u32 s48, s12, s40')
            A('s_addc_u32 s49, s13, 0')
            A(f's_add_u32 s58, s58, {STG}')
            for i in range(9):
                if i % 4 == 0:
                    A(f's_add_u32 m0, s58, {1024 * i}')
                    A('s_nop 0')
                A(f'global_load_lds_dwordx4 v{T}, s[48:49] offset:{1024 * (i % 4)} nt')
                if i % 4 == 3:
                    A('s_add_u32 s48, s48, 4096')
                    A('s_addc_u32 s49, s49, 0')
            A('s_mul_i32 s40, s51, 20736')
            A('s_mul_i32 s58, s45, 11264')
            A('s_add_u32 s40, s40, s58')
            A('s_add_u32 s48, s18, s40')
            A('s_addc_u32 s49, s19, 0')
            A(f's_add_u32 s58, s58, {W2S}')
            for i in range(11):
                if i % 4 == 0:
                    A(f's_add_u32 m0, s58, {1024 * i}')
                    A('s_nop 0')
                if i == 9:
                    A('s_cmp_eq_u32 s45, 0')
                    A('s_cselect_b64 s[46:47], -1, 0xffff')
                    A('s_mov_b64 exec, s[46:47]')
                if i == 10:
                    A('s_mov_b64 exec, -1')
                    A('s_cmp_lg_u32 s45, 0')
                    A('s_cbranch_scc1 L_c_w2x')
                A(f'global_load_lds_dwordx4 v{T}, s[48:49] offset:{1024 * (i % 4)} nt')
                if i % 4 == 3:
                    A('s_add_u32 s48, s48, 4096')
                    A('s_addc_u32 s49, s49, 0')
            self.L('L_c_w2x')
            A('s_lshl_b32 s45, s26, 2')
            A(f's_add_u32 s45, s45, {FL + 32}')
            A(f'v_mov_b32 v{T+1}, s45')
            A(f'v_mov_b32 v{T+2}, 1')
            A('s_waitcnt vmcnt(10)')
            A('s_mov_b64 exec, 1')
            A(f'ds_write_b32 v{T+1}, v{T+2}')
            A('s_mov_b64 exec, -1')
        elif self.w2late:
            A(f'v_lshlrev_b32 v{T}, 4, v1')
            A('s_sub_u32 s45, s26, 2')
            A('s_mul_i32 s40, s51, 20736')
            A('s_mul_i32 s58, s45, 11264')
            A('s_add_u32 s40, s40, s58')
            A('s_add_u32 s48, s18, s40')
            A('s_addc_u32 s49, s19, 0')
            A(f's_add_u32 s58, s58, {W2S}')
            for i in range(11):
                if i % 4 == 0:
                    A(f's_add_u32 m0, s58, {1024 * i}')
                    A('s_nop 0')
                if i == 9:
                    A('s_cmp_eq_u32 s45, 0')
                    A('s_cselect_b64 s[46:47], -1, 0xffff')
                    A('s_mov_b64 exec, s[46:47]')
                if i == 10:
                    A('s_mov_b64 exec, -1')
                    A('s_cmp_lg_u32 s45, 0')
                    A('s_cbranch_scc1 L_c_w2x')
                A(f'global_load_lds_dwordx4 v{T}, s[48:49] offset:{1024 * (i % 4)} nt')
                if i % 4 == 3:
                    A('s_add_u32 s48, s48, 4096')
                    A('s_addc_u32 s49, s49, 0')
            self.L('L_c_w2x')
            A('s_mul_i32 s40, s51, 18432')
            A('s_mul_i32 s58, s45, 9216')
            A('s_add_u32 s40, s40, s58')
            A('s_add_u32 s48, s12, s40')
            A('s_addc_u32 s49, s13, 0')
            A(f's_add_u32 s58, s58, {STG}')
            for i in range(9):
                if i % 4 == 0:
                    A(f's_add_u32 m0, s58, {1024 * i}')
                    A('s_nop 0')
                A(f'global_load_lds_dwordx4 v{T}, s[48:49] offset:{1024 * (i % 4)} nt')
                if i % 4 == 3:
                    A('s_add_u32 s48, s48, 4096')
                    A('s_addc_u32 s49, s49, 0')
            A('s_lshl_b32 s45, s26, 2')
            A(f's_add_u32 s45, s45, {FL + 32}')
            A(f'v_mov_b32 v{T+1}, s45')
            A(f'v_mov_b32 v{T+2}, 1')
            A('s_waitcnt vmcnt(9)')
            A('s_mov_b64 exec, 1')
            A(f'ds_write_b32 v{T+1}, v{T+2} offset:16')
            A('s_mov_b64 exec, -1')
        if not self.w2late and self.wo_by == 'w23':
            A(f'v_lshlrev_b32 v{T}, 4, v1')
            A('s_sub_u32 s45, s26, 2')
            A('s_mul_i32 s40, s51, 18432')
            A('s_mul_i32 s58, s45, 9216')
            A('s_add_u32 s40, s40, s58')
            A('s_add_u32 s48, s12, s40')
            A('s_addc_u32 s49, s13, 0')
            A(f's_add_u32 s58, s58, {STG}')
            if self.wo_delay:
                A(f'v_mov_b32 v{T+1}, {FL}')
                self.spin_begin(42)
                self.L('L_c_wod')
                A(f'ds_read_b64 v[{T+8}:{T+9}], v{T+1} offset:56')
                A('s_waitcnt lgkmcnt(0)')
                A(f'v_and_b32 v{T+8}, v{T+8}, v{T+9}')
                A('s_nop 0')
                A(f'v_readfirstlane_b32 s40, v{T+8}')
                A('s_cmp_lg_u32 s40, 0')
                A('s_cbranch_scc1 L_c_wod_ok')
                self.spin_retry(42, 'L_c_wod', sleep=0)
                self.L('L_c_wod_ok')
            for i in range(9):
                if i % 4 == 0:
                    A(f's_add_u32 m0, s58, {1024 * i}')
                    A('s_nop 0')
                if self.wo_win and i >= self.wo_win:
                    A(f's_waitcnt vmcnt({self.wo_win - 1})')
                if 'nowo' not in self.exp:
                    A(f'global_load_lds_dwordx4 v{T}, s[48:49] offset:{1024 * (i % 4)} nt')
                if i % 4 == 3:
                    A('s_add_u32 s48, s48, 4096')
                    A('s_addc_u32 s49, s49, 0')
            A('s_lshl_b32 s45, s26, 2')
            A(f's_add_u32 s45, s45, {FL + 32}')
            A(f'v_mov_b32 v{T+1}, s45')
            A(f'v_mov_b32 v{T+2}, 1')
            A('s_waitcnt vmcnt(0)')
            A('s_mov_b64 exec, 1')
            A(f'ds_write_b32 v{T+1}, v{T+2}')
            A('s_mov_b64 exec, -1')
        self.L('L_c_pubdone')
        A(f'v_and_b32 v{T}, 15, v1')
        A(f'v_lshrrev_b32 v{T+1}, 4, v1')
        A(f'v_lshrrev_b32 v{T+3}, 2, v{T}')
        A(f'v_and_b32 v{T+4}, 3, v{T}')
        A(f'v_lshl_add_u32 v{T+5}, v{T+1}, 3, v{T+3}')
        A(f'v_mul_u32_u24 v{T+5}, 1152, v{T+5}')
        A(f'v_lshl_add_u32 v{T+5}, v{T+4}, 3, v{T+5}')
        A('s_mul_i32 s45, s26, 288')
        A(f'v_add_u32 v{T+5}, s45, v{T+5}')
        A(f'v_lshl_add_u32 v{T+3}, v{T+1}, 2, v{T+3}')
        A(f'v_mul_u32_u24 v{T+3}, 1152, v{T+3}')
        A(f'v_lshl_add_u32 v{T+3}, v{T+4}, 3, v{T+3}')
        A(f's_add_u32 s45, s45, {STG}')
        A(f'v_add_u32 v{T+3}, s45, v{T+3}')
        A(f'v_lshlrev_b32 v{T+6}, 4, v{T+1}')
        A(f'v_add_u32 v{T+6}, {AB}, v{T+6}')
        if self.w2late is True:
            A(f'ds_read_b128 v[68:71], v{T+6}')
        A(f'v_lshlrev_b32 v{T+2}, 3, v{T+1}')
        A(f'v_add_u32 v{T+2}, {OB}, v{T+2}')
        A('s_mul_i32 s50, s97, 0x5556')
        A('s_lshr_b32 s50, s50, 18')
        A('s_mul_i32 s58, s50, 12')
        A('s_sub_u32 s58, s97, s58')
        A('s_lshr_b32 s59, s58, 2')
        A('s_and_b32 s58, s58, 3')
        A('s_mul_i32 s50, s50, 9')
        A('s_mul_i32 s59, s59, 3')
        A('s_add_u32 s50, s50, s59')
        A('s_lshl_b32 s50, s50, 4')
        A('s_lshl_b32 s58, s58, 2')
        A('s_add_u32 s50, s50, s58')
        A('v_lshrrev_b32 v121, 2, v1')
        A('v_and_b32 v122, 3, v1')
        A('v_lshl_add_u32 v121, v121, 4, v122')
        A('v_add_u32 v121, s50, v121')
        A('v_lshlrev_b32 v121, 1, v121')
        A('s_mov_b32 s52, s4')
        A('s_mov_b32 s53, s5')
        A('s_mov_b32 s54, 1152')
        A('s_mov_b32 s55, 0x00020000')
        A('buffer_load_ushort v120, v121, s[52:55], 0 offen')
        def wait_flags(off, lab):
            A(f'v_mov_b32 v{T}, {FL}')
            self.spin_begin(42)
            self.L(lab)
            A(f'ds_read_b64 v[{T+8}:{T+9}], v{T} offset:{off}')
            A('s_waitcnt lgkmcnt(0)')
            A(f'v_and_b32 v{T+8}, v{T+8}, v{T+9}')
            A('s_nop 0')
            A(f'v_readfirstlane_b32 s40, v{T+8}')
            A('s_cmp_lg_u32 s40, 0')
            A(f's_cbranch_scc1 {lab}_ok')
            self.spin_retry(42, lab, sleep=1)
            self.L(f'{lab}_ok')
        def y_ffn():
            wait_flags(56, 'L_c_w2wait')
            for t in range(9):
                A(f'ds_read_b64_tr_b16 v[{32 + 4*t}:{33 + 4*t}], v{T+5} offset:{32 * t}')
                A(f'ds_read_b64_tr_b16 v[{34 + 4*t}:{35 + 4*t}], v{T+5} offset:{32 * t + 4608}')
                if t == 6:
                    A('s_waitcnt lgkmcnt(8)')
            for r in range(4):
                A(f'v_mov_b32 v{80 + r}, 0')
            A('s_waitcnt lgkmcnt(0)')
            for t in range(9):
                row = 4 * (t // 3) + t % 3
                A(f's_mov_b32 s46, {0x00010001 << row:#x}')
                A(f's_mov_b32 s47, {0x00010001 << row:#x}')
                m = 72 + 4 * (t & 1)
                for r in range(4):
                    A(f'v_cndmask_b32 v{m + r}, 0, v{68 + r}, s[46:47]')
                A('s_nop 1')
                A(f'v_mfma_f32_16x16x32_bf16 v[80:83], v[{m}:{m+3}], v[{32 + 4*t}:{35 + 4*t}], v[80:83]')
            A('s_mul_i32 s45, s51, 3072')
            A(f's_add_u32 s45, s45, {WS_Y2}')
            A('s_add_u32 s48, s24, s45')
            A('s_addc_u32 s49, s25, 0')
            A('s_mul_i32 s45, s26, 768')
            A(f'v_lshlrev_b32 v{T+7}, 4, v1')
            A(f'v_add_u32 v{T+7}, s45, v{T+7}')
            A('s_nop 3')
            self.mkchk(80)
            A('s_mov_b32 s46, -1')
            A('s_mov_b32 s47, 0xffff')
            A('s_mov_b64 exec, s[46:47]')
            A(f'global_store_dwordx4 v{T+7}, v[80:83], s[48:49] sc1')
            A('s_mov_b64 exec, -1')
        if self.w2late is True:
            y_ffn()
            A('s_cmp_lt_u32 s26, 2')
            A('s_cbranch_scc1 L_c_nowo')
            A('s_lshl_b32 s45, s26, 2')
            A(f's_add_u32 s45, s45, {FL + 32}')
            A(f'v_mov_b32 v{T+8}, s45')
            A(f'v_mov_b32 v{T+9}, 1')
            A('s_waitcnt vmcnt(2)')
            A('s_mov_b64 exec, 1')
            A(f'ds_write_b32 v{T+8}, v{T+9}')
            A('s_mov_b64 exec, -1')
            self.L('L_c_nowo')
        if self.w2late is not True:
            A('s_mul_i32 s45, s26, 768')
            A(f'v_lshlrev_b32 v{T+7}, 4, v1')
            A(f'v_add_u32 v{T+7}, s45, v{T+7}')
        if self.w2late or self.wo_by == 'w23':
            wait_flags(40, 'L_c_wowait')
        else:
            A(f'v_mov_b32 v{T}, {FL}')
            self.spin_begin(42)
            self.L('L_c_wowait')
            A(f'ds_read_b128 v[{T+8}:{T+11}], v{T} offset:240')
            A('s_waitcnt lgkmcnt(0)')
            A(f'v_and_b32 v{T+8}, v{T+8}, v{T+9}')
            A(f'v_and_b32 v{T+10}, v{T+10}, v{T+11}')
            A(f'v_and_b32 v{T+8}, v{T+8}, v{T+10}')
            A('s_nop 0')
            A(f'v_readfirstlane_b32 s40, v{T+8}')
            A('s_cmp_lg_u32 s40, 0')
            A('s_cbranch_scc1 L_c_wowait_ok')
            self.spin_retry(42, 'L_c_wowait', sleep=1)
            self.L('L_c_wowait_ok')
        for t in range(9):
            A(f'ds_read_b64_tr_b16 v[{68 + 2*t}:{69 + 2*t}], v{T+3} offset:{32 * t}')
        if self.flate == 'd':
            A(f'v_add_u32 v36, {FB}, v{T+7}')
            A('ds_read_b128 v[32:35], v36')
            A('s_mul_i32 s45, s96, 3072')
            A(f's_add_u32 s45, s45, {WS_F}')
            A('s_add_u32 s56, s24, s45')
            A('s_addc_u32 s57, s25, 0')
        for r in range(4):
            A(f'v_mov_b32 v{96 + r}, 0')
        A('s_mul_i32 s45, s51, 3072')
        A(f's_add_u32 s45, s45, {WS_Y}')
        A('s_add_u32 s48, s24, s45')
        A('s_addc_u32 s49, s25, 0')
        A('s_waitcnt lgkmcnt(0)')
        A('s_barrier')
        self.cstamp(4)
        A(f'ds_read_b64 v[64:65], v{T+2}')
        A('s_mov_b32 s46, 0x00010001')
        A('s_mov_b32 s47, 0x00010001')
        A('s_waitcnt lgkmcnt(0)')
        for t in range(9):
            row = 4 * (t // 3) + t % 3
            A(f'v_cndmask_b32 v{88 + 2*(t&1)}, 0, v64, s[46:47]')
            A(f'v_cndmask_b32 v{89 + 2*(t&1)}, 0, v65, s[46:47]')
            if t < 8:
                nrow = 4 * ((t + 1) // 3) + (t + 1) % 3
                A(f's_lshl_b64 s[46:47], s[46:47], {nrow - row}')
            else:
                A('s_nop 0')
            A('s_nop 0')
            A(f'v_mfma_f32_16x16x16_bf16 v[96:99], v[{88 + 2*(t&1)}:{89 + 2*(t&1)}], v[{68 + 2*t}:{69 + 2*t}], v[96:99]')
        A('s_mov_b32 s46, -1')
        A('s_mov_b32 s47, 0xffff')
        A('s_nop 5')
        self.mkchk(96)
        A('s_mov_b64 exec, s[46:47]')
        A(f'global_store_dwordx4 v{T+7}, v[96:99], s[48:49] sc1')
        if self.flate == 'd':
            A(f's_cmp_ge_u32 s96, {NFFN}')
            A('s_cbranch_scc1 L_c_nofd')
            A(f'global_store_dwordx4 v{T+7}, v[32:35], s[56:57] sc1')
            self.L('L_c_nofd')
        A('s_mov_b64 exec, -1')
        self.cstamp(5)
        if self.w2late == 'after':
            A('s_cmp_lt_u32 s26, 2')
            A('s_cbranch_scc1 L_c_now2')
            A('s_lshl_b32 s45, s26, 2')
            A(f's_add_u32 s45, s45, {FL + 48}')
            A(f'v_mov_b32 v{T+8}, s45')
            A(f'v_mov_b32 v{T+9}, 1')
            A('s_waitcnt vmcnt(2)')
            A('s_mov_b64 exec, 1')
            A(f'ds_write_b32 v{T+8}, v{T+9}')
            A('s_mov_b64 exec, -1')
            self.L('L_c_now2')
            A(f'ds_read_b128 v[68:71], v{T+6}')
            y_ffn()
        A(f's_cmp_lt_u32 s97, {NRED}')
        A('s_cbranch_scc1 L_c_red')
        self.cflush()
        A('s_endpgm')
        self.L('L_c_red')
        A('s_lshl_b32 s45, s26, 6')
        A(f'v_lshrrev_b32 v{T}, 2, v1')
        A(f'v_add_u32 v{T}, s45, v{T}')
        A(f'v_mul_u32_u24 v{T}, 3072, v{T}')
        A(f'v_and_b32 v{T+1}, 3, v1')
        A(f'v_lshl_add_u32 v{T}, v{T+1}, 4, v{T}')
        for i in range(1, 4):
            A(f'v_add_u32 v{T+i}, {3072 * 16 * i}, v{T}')
        A('s_lshl_b32 s45, s97, 6')
        A(f's_add_u32 s58, s45, {WS_Y}')
        A('s_add_u32 s48, s24, s58')
        A('s_addc_u32 s49, s25, 0')
        A(f's_add_u32 s58, s45, {WS_Y2}')
        A('s_add_u32 s56, s24, s58')
        A('s_addc_u32 s57, s25, 0')
        if self.w2late or self.flate == 'd':
            S1, S2 = [106, 107, 108], [109, 110, 111]
            if self.w2late:
                def dl(bs):
                    return [f'global_load_dwordx4 v[{b}:{b+3}], v{T + (i % 4)}, s[{48 if i < 4 else 56}:{49 if i < 4 else 57}] sc1' for i, b in enumerate(bs)]
                self.poll2('L_c_d', dl, [64, 68, 72, 76, 32, 36, 40, 44], [80, 84, 88, 92, 48, 52, 56, 60], 96, 97,
                           sleep=self.tsleep or 3, stag=self.stag, thresh=self.thresh)
                self.cstamp(24)
                for r in range(3):
                    A(f'v_add_f32 v{S1[r]}, v{64 + r}, v{68 + r}')
                    A(f'v_add_f32 v{S2[r]}, v{32 + r}, v{36 + r}')
                    A(f'v_add_f32 v{112 + r}, v{72 + r}, v{76 + r}')
                    A(f'v_add_f32 v{115 + r}, v{40 + r}, v{44 + r}')
                for r in range(3):
                    A(f'v_add_f32 v{S1[r]}, v{S1[r]}, v{112 + r}')
                    A(f'v_add_f32 v{S2[r]}, v{S2[r]}, v{115 + r}')
            else:
                A('s_lshl_b32 s45, s97, 6')
                A(f's_add_u32 s58, s45, {WS_F}')
                A('s_add_u32 s56, s24, s58')
                A('s_addc_u32 s57, s25, 0')
                A('s_lshl_b32 s45, s26, 4')
                A(f'v_lshrrev_b32 v{T+4}, 2, v1')
                A(f'v_add_u32 v{T+4}, s45, v{T+4}')
                A(f'v_mul_u32_u24 v{T+4}, 3072, v{T+4}')
                A(f'v_and_b32 v{T+6}, 3, v1')
                A(f'v_lshl_add_u32 v{T+4}, v{T+6}, 4, v{T+4}')
                A('s_lshl_b32 s45, s26, 1')
                A('s_add_u32 s45, s45, 64')
                A(f'v_bfe_u32 v{T+5}, v1, 2, 1')
                A(f'v_add_u32 v{T+5}, s45, v{T+5}')
                A(f'v_mul_u32_u24 v{T+5}, 3072, v{T+5}')
                A(f'v_lshl_add_u32 v{T+5}, v{T+6}, 4, v{T+5}')
                def dl(bs):
                    return [f'global_load_dwordx4 v[{b}:{b+3}], v{T + i}, s[{48 if i < 4 else 56}:{49 if i < 4 else 57}] sc1' for i, b in enumerate(bs)]
                self.poll2('L_c_d', dl, [64, 68, 72, 76, 32, 36], [80, 84, 88, 92, 48, 52], 96, 97,
                           sleep=self.tsleep or 3, stag=self.stag_d, thresh=self.thresh_d)
                self.cstamp(24)
                A('s_mov_b64 s[46:47], 0xff')
                for r in range(3):
                    A(f'v_cndmask_b32 v{115 + r}, 0, v{36 + r}, s[46:47]')
                    A(f'v_add_f32 v{S1[r]}, v{64 + r}, v{68 + r}')
                    A(f'v_add_f32 v{112 + r}, v{72 + r}, v{76 + r}')
                for r in range(3):
                    A(f'v_add_f32 v{S2[r]}, v{32 + r}, v{115 + r}')
                    A(f'v_add_f32 v{S1[r]}, v{S1[r]}, v{112 + r}')
            self.mrowred('v_add_f32', S1 + S2, (4, 8))
            self.mxrow('v_add_f32', S1 + S2, [112, 113, 114, 115, 116, 117])
            A('v_mov_b32 v112, v109')
            A('v_mov_b32 v113, v110')
            A('v_mov_b32 v114, v111')
            A('v_mov_b32 v104, v106')
            A('v_mov_b32 v105, v107')
            A('v_mov_b32 v106, v108')
            A('s_lshl_b32 s45, s26, 7')
            A(f's_add_u32 s45, s45, {RED}')
            A('v_lshlrev_b32 v118, 5, v1')
            A('v_add_u32 v118, s45, v118')
            A('s_mov_b64 exec, 15')
            A('ds_write_b128 v118, v[104:107]')
            A('ds_write_b128 v118, v[112:115] offset:16')
            A('s_mov_b64 exec, -1')
            A('v_lshrrev_b32 v116, 2, v1')
            A('v_and_b32 v117, 3, v1')
            A('v_lshlrev_b32 v116, 2, v116')
            A('v_lshl_add_u32 v116, v117, 5, v116')
            A(f'v_add_u32 v116, {RED}, v116')
            A('s_mov_b32 s52, s20')
            A('s_mov_b32 s53, s21')
            A('s_waitcnt lgkmcnt(0)')
            self.cstamp(25)
            A('s_barrier')
            self.cstamp(26)
            A('s_cmp_lg_u32 s26, 0')
            A('s_cbranch_scc1 L_end')
            for k in range(4):
                A(f'ds_read_b32 v{100 + k}, v116 offset:{128 * k}')
            for k in range(4):
                A(f'ds_read_b32 v{104 + k}, v116 offset:{128 * k + 16}')
            A('v_lshlrev_b32 v111, 16, v120')
            A('s_waitcnt lgkmcnt(0)')
            A('v_add_f32 v100, v100, v101')
            A('v_add_f32 v104, v104, v105')
            A('v_add_f32 v102, v102, v103')
            A('v_add_f32 v106, v106, v107')
            A('v_add_f32 v100, v100, v102')
            A('v_add_f32 v104, v104, v106')
            A('v_cvt_pk_bf16_f32 v100, v100, v104')
            A('v_lshlrev_b32 v101, 16, v100')
            A('v_and_b32 v104, 0xffff0000, v100')
            A('v_add_f32 v101, v111, v101')
            self.bf16r(101, 101, 102)
            A('v_add_f32 v101, v101, v104')
            A('v_cvt_pk_bf16_f32 v101, v101, v101')
            A('s_mov_b64 exec, 0xfff')
            A('buffer_store_short v101, v121, s[52:55], 0 offen')
            A('s_mov_b64 exec, -1')
        else:
            dl = lambda bs: [f'global_load_dwordx4 v[{b}:{b+3}], v{T+i}, s[48:49] sc1' for i, b in enumerate(bs)]
            if self.pm_d:
                self.pollm('L_c_d', dl, [[64, 68, 72, 76], [80, 84, 88, 92], [32, 36, 40, 44], [48, 52, 56, 60]][:self.nset_d], 96,
                           stag=self.stag_d, invs=[30, 32, 34, 36])
            else:
                self.poll2('L_c_d', dl,
                           [64, 68, 72, 76], [80, 84, 88, 92], 96, 97, sleep=self.tsleep or 3, stag=self.stag_d, thresh=self.thresh_d,
                           more=([32, 36, 40, 44], [48, 52, 56, 60])[:self.nset_d - 2])
            self.cstamp(24)
            S1 = [106, 107, 108]
            for r in range(3):
                A(f'v_add_f32 v{S1[r]}, v{64 + r}, v{68 + r}')
                A(f'v_add_f32 v{112 + r}, v{72 + r}, v{76 + r}')
            for r in range(3):
                A(f'v_add_f32 v{S1[r]}, v{S1[r]}, v{112 + r}')
            self.mrowred('v_add_f32', S1, (4, 8))
            self.mxrow('v_add_f32', S1, [112, 113, 114])
            A('s_lshl_b32 s45, s26, 6')
            A(f's_add_u32 s45, s45, {RED}')
            A('v_lshlrev_b32 v118, 4, v1')
            A('v_add_u32 v118, s45, v118')
            A('v_mov_b32 v104, v106')
            A('v_mov_b32 v105, v107')
            A('v_mov_b32 v106, v108')
            A('s_mov_b64 exec, 15')
            A('ds_write_b128 v118, v[104:107]')
            A('s_mov_b64 exec, -1')
            A('v_lshrrev_b32 v116, 2, v1')
            A('v_and_b32 v117, 3, v1')
            A('v_lshlrev_b32 v116, 2, v116')
            A('v_lshl_add_u32 v116, v117, 4, v116')
            A(f'v_add_u32 v117, {FFNR}, v116')
            A(f'v_add_u32 v116, {RED}, v116')
            A('ds_read_b32 v119, v117')
            A('s_mov_b32 s52, s20')
            A('s_mov_b32 s53, s21')
            A('s_waitcnt lgkmcnt(0)')
            self.cstamp(25)
            A('s_barrier')
            self.cstamp(26)
            A('s_cmp_lg_u32 s26, 0')
            A('s_cbranch_scc1 L_end')
            for k in range(4):
                A(f'ds_read_b32 v{100 + k}, v116 offset:{64 * k}')
            A('v_lshlrev_b32 v111, 16, v120')
            A('s_waitcnt lgkmcnt(0)')
            A('v_add_f32 v100, v100, v101')
            A('v_add_f32 v102, v102, v103')
            A('v_add_f32 v100, v100, v102')
            A('v_cvt_pk_bf16_f32 v100, v100, v119')
            A('v_lshlrev_b32 v101, 16, v100')
            A('v_and_b32 v104, 0xffff0000, v100')
            A('v_add_f32 v101, v111, v101')
            self.bf16r(101, 101, 102)
            A('v_add_f32 v101, v101, v104')
            A('v_cvt_pk_bf16_f32 v101, v101, v101')
            A('s_mov_b64 exec, 0xfff')
            A('buffer_store_short v101, v121, s[52:55], 0 offen')
            A('s_mov_b64 exec, -1')
        self.stamp(6)
        self.flush_stamps(extra=[(29, 64)])
        A('s_cmp_lg_u32 s97, 0')
        A('s_cbranch_scc1 L_end')
        A('v_mov_b32 v106, s29')
        A('v_mov_b32 v107, 0')
        A('s_mov_b64 exec, 1')
        A('global_store_dword v107, v106, s[24:25] sc1')
        A('s_branch L_end')

    def gemv64(self, acc, first, xoff_sreg):
        A = self.A
        NB = 5
        A(f'v_add_u32 v21, s{xoff_sreg}, v20')
        def rd(s):
            b = 40 + 10 * (s % NB)
            A(f'ds_read_b64 v[{b}:{b+1}], v21 offset:{32 * s}')
            for t in range(4):
                A(f'ds_read_b64_tr_b16 v[{b+2+2*t}:{b+3+2*t}], v{16 + t} offset:{2048 * s}')
        NP = 3
        for s in range(NP):
            rd(s)
        for s in range(9):
            left = min(9, s + NP) - s - 1
            A(f's_waitcnt lgkmcnt({5 * left})')
            b = 40 + 10 * (s % NB)
            for t in range(4):
                c = '0' if (first and s == 0) else f'v[{acc + 4*t}:{acc + 4*t + 3}]'
                A(f'v_mfma_f32_16x16x16_bf16 v[{acc + 4*t}:{acc + 4*t + 3}], v[{b}:{b+1}], v[{b+2+2*t}:{b+3+2*t}], {c}')
            if s + NP < 9:
                rd(s + NP)

    def dma_cols(self, sbase, pitch, voff, win=None):
        A = self.A
        A(f's_mov_b32 s36, s{sbase}')
        A(f's_mov_b32 s37, s{sbase+1}')
        for s in range(18):
            A(f's_mov_b32 m0, {STG + 1024 * s}')
            if win:
                A(f's_waitcnt vmcnt({win - 1})')
            else:
                A('s_nop 0')
            A(f'global_load_lds_dwordx4 v{voff}, s[36:37]' + ('' if 'colplain' in self.exp else ' nt'))
            if s < 17:
                A(f's_add_u32 s36, s36, {8 * pitch}')
                A('s_addc_u32 s37, s37, 0')

    def dma_rows(self, sbase, win=None):
        A = self.A
        A(f's_mov_b32 s36, s{sbase}')
        A(f's_mov_b32 s37, s{sbase+1}')
        for s in range(18):
            if s % 4 == 0:
                A(f's_mov_b32 m0, {STG + 1024 * s}')
                A('s_nop 0')
            if win:
                A(f's_waitcnt vmcnt({win - 1})')
            A(f'global_load_lds_dwordx4 v23, s[36:37] offset:{1024 * (s % 4)}' + ('' if 'rowplain' in self.exp else ' nt'))
            if s % 4 == 3:
                A('s_add_u32 s36, s36, 4096')
                A('s_addc_u32 s37, s37, 0')

    def f_gather(self, name, sleep, probe, warm=False):
        A = self.A
        A('s_lshl_b32 s40, s97, 6')
        A(f's_add_u32 s40, s40, {WS_F}')
        A('s_add_u32 s56, s24, s40')
        A('s_addc_u32 s57, s25, 0')
        A('v_lshrrev_b32 v30, 2, v1')
        A('v_mul_u32_u24 v30, 3072, v30')
        A('v_and_b32 v31, 3, v1')
        A('v_lshl_add_u32 v30, v31, 4, v30')
        for i in range(1, 5):
            A(f'v_add_u32 v{30 + i}, {3072 * 16 * i}, v30')
        A('s_mov_b32 s46, 0')
        A('s_mov_b32 s47, -1')
        A(f'v_add_u32 v35, {-3072 * 8 & 0xffffffff:#x}, v34')
        A('v_cndmask_b32 v34, v34, v35, s[46:47]')
        loads = [f'global_load_dwordx4 v[{40 + 4*i}:{43 + 4*i}], v{30 + i}, s[56:57] sc1' for i in range(5)]
        if warm:
            for l in loads:
                A(l)
            return
        self.poll(name, loads, lambda: self.chk3([40, 44, 48, 52, 56], 60, 61), sleep=sleep, probe=probe)
        A('s_mov_b32 s46, 0')
        A('s_mov_b32 s47, -1')
        for r in range(3):
            A(f'v_cndmask_b32 v{56 + r}, v{56 + r}, 0, s[46:47]')
        for r in range(3):
            A(f'v_add_f32 v{40 + r}, v{40 + r}, v{44 + r}')
            A(f'v_add_f32 v{48 + r}, v{48 + r}, v{52 + r}')
            A(f'v_add_f32 v{40 + r}, v{40 + r}, v{56 + r}')
        for r in range(3):
            A(f'v_add_f32 v{40 + r}, v{40 + r}, v{48 + r}')
        self.mrowred('v_add_f32', [40, 41, 42], (4, 8))
        self.mxrow('v_add_f32', [40, 41, 42], [44, 45, 46])
        A('v_lshlrev_b32 v34, 4, v1')
        A(f'v_add_u32 v34, {FFNR}, v34')
        A('s_mov_b64 exec, 15')
        A('ds_write_b128 v34, v[40:43]')
        A('s_mov_b64 exec, -1')

    def tail_warm(self):
        A = self.A
        if 'nowarm' in self.exp:
            return
        if True:
            def own(base, stride, n, mode):
                A('s_lshl_b32 s40, s27, 4')
                A('s_add_u32 s40, s40, s28')
                A(f's_mul_i32 s40, s40, {stride}')
                A(f's_add_u32 s40, s40, {base}')
                A('s_add_u32 s56, s24, s40')
                A('s_addc_u32 s57, s25, 0')
                for i in range(n):
                    if mode == 'selfld':
                        A(f'global_load_dwordx4 v[{48 + 4*i}:{51 + 4*i}], v23, s[56:57] offset:{1024 * i} sc1')
                    else:
                        A(f'global_store_dwordx4 v23, v[60:63], s[56:57] offset:{1024 * i} sc1')
            if 'selfst' in (self.warmP, self.warmY):
                for r in range(60, 64):
                    A(f'v_mov_b32 v{r}, 0')
            if self.warmP == 'poll' and 'nowarmp' not in self.exp:
                for i in range(2):
                    A(f'global_load_dwordx4 v[{40 + 4*i}:{43 + 4*i}], v{34 + i}, s[48:49] sc1')
            elif self.warmP in ('selfld', 'selfst'):
                own(WS_P, 2048, 2, self.warmP)
            if self.warmY in ('selfld', 'selfst'):
                own(WS_Y, 3072, 3, self.warmY)
            if self.warmY != 'poll' and not self.flate:
                A('s_waitcnt vmcnt(0)')
                return
            if 'nowarmy' in self.exp or self.warmY != 'poll':
                A('s_branch L_h_wdone')
            A(f's_cmp_ge_u32 s97, {NRED}')
            A('s_cbranch_scc1 L_h_wdone')
            if self.flate and 'nowarmf' not in self.exp:
                for r in range(6):
                    A(f'v_mov_b32 v{64 + r}, v{30 + r}')
                A('v_mov_b32 v70, v36')
                A('v_mov_b32 v71, v37')
                self.f_gather(None, 0, False, warm=True)
                A('s_waitcnt vmcnt(0)')
                for r in range(6):
                    A(f'v_mov_b32 v{30 + r}, v{64 + r}')
            A('s_lshl_b32 s40, s97, 6')
            A(f's_add_u32 s40, s40, {WS_Y}')
            A('s_add_u32 s56, s24, s40')
            A('s_addc_u32 s57, s25, 0')
            A('v_lshrrev_b32 v38, 2, v1')
            A('v_mul_u32_u24 v38, 3072, v38')
            A('v_and_b32 v39, 3, v1')
            A('v_lshl_add_u32 v38, v39, 4, v38')
            A(f's_add_u32 s40, s40, {WS_Y2 - WS_Y}')
            A('s_add_u32 s50, s24, s40')
            A('s_addc_u32 s51, s25, 0')
            for i in range(16):
                A(f'global_load_dwordx4 v[{48 + 4*(i%4)}:{51 + 4*(i%4)}], v38, s[56:57] sc1')
                if self.w2late:
                    A(f'global_load_dwordx4 v[{64 + 4*(i%4)}:{67 + 4*(i%4)}], v38, s[50:51] sc1')
                A(f'v_add_u32 v38, {3072 * 16}, v38')
            self.L('L_h_wdone')
            A('s_waitcnt vmcnt(0)')

    def helper(self):
        A = self.A
        FW = self.ffn_win
        self.L('L_helper')
        self.pending = []
        A('s_memrealtime s[98:99]')
        A('s_setprio 3')
        if self.fastpro:
            A('v_mov_b32 v2, 0')
            A('s_mov_b32 s54, 1152')
            A('s_mov_b32 s55, 0x00020000')
            A('v_lshlrev_b32 v4, 1, v1')
            A('s_lshr_b32 s50, s2, 2')
            A('s_and_b32 s51, s2, 3')
            A('s_lshl_b32 s40, s50, 7')
            A(f's_mul_i32 s58, s51, {144 * 8192}')
            A('s_add_u32 s40, s40, s58')
            A('v_lshrrev_b32 v5, 3, v1')
            A('v_and_b32 v6, 7, v1')
            A('v_lshrrev_b32 v7, 4, v1')
            A('v_lshlrev_b32 v7, 1, v7')
            A('v_xor_b32 v6, v6, v7')
            A('v_lshlrev_b32 v6, 4, v6')
            A('v_lshl_add_u32 v22, v5, 13, v6')
            A('v_mul_u32_u24 v25, 9216, v5')
            A('v_add_u32 v25, v25, v6')
            A('v_lshlrev_b32 v23, 4, v1')
            A('s_waitcnt lgkmcnt(0)')
            A('s_mov_b32 s52, s4')
            A('s_mov_b32 s53, s5')
            for k in range(9):
                A(f'buffer_load_ushort v{30 + k}, v4, s[52:55], 0 offen offset:{128 * k}')
            A('global_load_dword v3, v2, s[24:25] sc1')
            A('s_add_u32 s56, s10, s40')
            A('s_addc_u32 s57, s11, 0')
            self.stamp(0)
            assert self.share
        else:
            self.stamp(0)
            if 'nohelper' in self.exp:
                self.flush_stamps()
                A('s_endpgm')
            A('v_mov_b32 v2, 0')
            A('global_load_dword v3, v2, s[24:25] sc1')
            A('s_and_b32 s40, s2, 15')
            A('s_cmp_lg_u32 s40, 0')
            A('s_cbranch_scc1 L_h_nozero')
            A('s_lshr_b32 s40, s2, 4')
            A(f's_mul_i32 s40, s40, {self.cstride}')
            A(f's_add_u32 s40, s40, {WS_CNT}')
            A('v_mov_b32 v5, s40')
            A('s_mov_b64 exec, 1')
            A('global_store_dword v5, v2, s[24:25] sc1')
            A('s_mov_b64 exec, -1')
            self.L('L_h_nozero')
            A('s_mov_b32 s52, s4')
            A('s_mov_b32 s53, s5')
            A('s_mov_b32 s54, 1152')
            A('s_mov_b32 s55, 0x00020000')
            A('v_lshlrev_b32 v4, 1, v1')
            for k in range(9):
                A(f'buffer_load_ushort v{30 + k}, v4, s[52:55], 0 offen offset:{128 * k}')
            A('s_lshr_b32 s50, s2, 2')
            A('s_and_b32 s51, s2, 3')
            A('s_lshl_b32 s40, s50, 7')
            A(f's_mul_i32 s58, s51, {144 * 8192}')
            A('s_add_u32 s40, s40, s58')
            A('s_add_u32 s56, s10, s40')
            A('s_addc_u32 s57, s11, 0')
            A('v_lshrrev_b32 v5, 3, v1')
            A('v_and_b32 v6, 7, v1')
            A('v_lshrrev_b32 v7, 4, v1')
            A('v_lshlrev_b32 v7, 1, v7')
            A('v_xor_b32 v6, v6, v7')
            A('v_lshlrev_b32 v6, 4, v6')
            A('v_lshl_add_u32 v22, v5, 13, v6')
            A('v_mul_u32_u24 v25, 9216, v5')
            A('v_add_u32 v25, v25, v6')
            A('v_lshlrev_b32 v23, 4, v1')
        if 'nowq' not in self.exp:
            self.dma_cols(56, 8192, 22)
        if self.hfirst or self.fastpro:
            A('s_barrier')
        A('s_lshl_b32 s40, s27, 13')
        A(f's_add_u32 s40, s40, {WS_Q}')
        A('s_add_u32 s62, s24, s40')
        A('s_addc_u32 s63, s25, 0')
        A('v_lshrrev_b32 v14, 5, v1')
        A('v_lshlrev_b32 v14, 11, v14')
        A('v_and_b32 v15, 31, v1')
        A('v_lshl_add_u32 v14, v15, 4, v14')
        A('v_add_u32 v15, 4096, v14')
        nwarm = 0
        if 'qwarm' in self.exp:
            for H in range(2):
                for kp in range(4):
                    A(f'global_load_dwordx4 v[{96 + 4*kp}:{99 + 4*kp}], v{14 + H}, s[62:63] offset:{512 * kp} sc1')
                    nwarm += 1
        A('v_lshrrev_b32 v26, 4, v1')
        A('v_and_b32 v27, 15, v1')
        A('v_lshlrev_b32 v20, 3, v26')
        A(f'v_add_u32 v20, {XN}, v20')
        A('v_lshrrev_b32 v28, 2, v27')
        A('v_lshl_add_u32 v28, v26, 2, v28')
        A('v_and_b32 v29, 3, v27')
        A('v_lshlrev_b32 v8, 7, v28')
        A('v_lshl_add_u32 v8, v29, 3, v8')
        A(f'v_add_u32 v8, {STG}, v8')
        A('v_lshrrev_b32 v9, 1, v28')
        A('v_and_b32 v9, 3, v9')
        for t in range(4):
            A(f'v_xor_b32 v10, {t}, v9')
            A(f'v_lshl_add_u32 v{16 + t}, v10, 5, v8')
        A('v_mul_u32_u24 v24, 1152, v28')
        A('v_lshl_add_u32 v24, v29, 3, v24')
        A(f'v_add_u32 v24, {STG}, v24')
        nq = 0 if 'nowq' in self.exp else 18
        A(f's_waitcnt vmcnt({nq + nwarm})')
        self.stamp(11)
        A('v_readfirstlane_b32 s29, v3')
        X = 30
        for k in range(9):
            A(f'v_lshlrev_b32 v{X + k}, 16, v{X + k}')
        A('s_add_u32 s29, s29, 1')
        A('s_bitset1_b32 s29, 31')
        A(f'v_add_f32 v10, v{X}, v{X+1}')
        for k in range(2, 9):
            A(f'v_add_f32 v10, v10, v{X + k}')
        self.wavesum(10, 11)
        A(f'v_mul_f32 v10, {0x3AE38E39:#x}, v10')
        for k in range(9):
            A(f'v_sub_f32 v{40 + k}, v{X + k}, v10')
        A('v_mul_f32 v12, v40, v40')
        for k in range(1, 9):
            A(f'v_fmac_f32 v12, v{40 + k}, v{40 + k}')
        self.wavesum(12, 11)
        A(f'v_mul_f32 v12, {0x3AE38E39:#x}, v12')
        self.bf16r(10, 10, 11)
        self.bf16r(12, 12, 11)
        A(f'v_add_f32 v12, {0x3727C5AC:#x}, v12')
        self.bf16r(12, 12, 11)
        A('v_sqrt_f32 v12, v12')
        A('s_nop 0')
        self.bf16r(12, 12, 11)
        A('v_rcp_f32 v13, v12')
        for k in range(9):
            A(f'v_sub_f32 v{40 + k}, v{X + k}, v10')
        for k in range(0, 9, 2):
            k2 = min(k + 1, 8)
            A(f'v_cvt_pk_bf16_f32 v{50 + k // 2}, v{40 + k}, v{40 + k2}')
        for k in range(9):
            if k % 2 == 0:
                A(f'v_lshlrev_b32 v{40 + k}, 16, v{50 + k // 2}')
            else:
                A(f'v_and_b32 v{40 + k}, 0xffff0000, v{50 + k // 2}')
        for k in range(9):
            A(f'v_mul_f32 v{60 + k}, v{40 + k}, v13')
            A(f'v_fma_f32 v{70 + k}, -v{60 + k}, v12, v{40 + k}')
            A(f'v_fma_f32 v{60 + k}, v{70 + k}, v13, v{60 + k}')
        for k in range(0, 9, 2):
            k2 = min(k + 1, 8)
            A(f'v_cvt_pk_bf16_f32 v{50 + k // 2}, v{60 + k}, v{60 + k2}')
        A(f'v_add_u32 v11, {XN}, v4')
        for k in range(9):
            op = 'ds_write_b16' if k % 2 == 0 else 'ds_write_b16_d16_hi'
            A(f'{op} v11, v{50 + k // 2} offset:{128 * k}')
        A('s_mul_i32 s58, s51, 288')
        self.stamp(12)
        A('s_waitcnt vmcnt(0) lgkmcnt(0)')
        self.stamp(13)
        self.gemv64(96, True, 58)
        A('s_nop 7')
        self.stamp(10)
        A('s_mov_b32 s46, 0xffff0000')
        A('s_mov_b32 s47, 0')
        A('v_cndmask_b32 v32, v96, v104, s[46:47]')
        A('v_cndmask_b32 v34, v100, v108, s[46:47]')
        A('v_mov_b32 v33, s29')
        A('v_mov_b32 v35, s29')
        A('s_lshl_b32 s40, s2, 9')
        A(f's_add_u32 s40, s40, {WS_Q}')
        A('s_add_u32 s48, s24, s40')
        A('s_addc_u32 s49, s25, 0')
        A('s_mov_b32 s46, -1')
        A('s_mov_b64 exec, s[46:47]')
        A('global_store_dwordx4 v23, v[32:35], s[48:49] sc1')
        A('s_mov_b64 exec, -1')
        A('s_mov_b32 s48, s62')
        A('s_mov_b32 s49, s63')
        A('v_mov_b32 v30, v14')
        A('v_mov_b32 v31, v15')
        loads = []
        for H in range(2):
            for kp in range(4):
                b = 40 + 16 * H + 4 * kp
                loads.append(f'global_load_dwordx4 v[{b}:{b+3}], v{30 + H}, s[48:49] offset:{512 * kp} sc1')
        def qchk():
            A('v_xor_b32 v72, s29, v41')
            for q in range(43, 72, 2):
                A(f'v_xor_b32 v73, s29, v{q}')
                A('v_or_b32 v72, v72, v73')
            return 72
        self.poll('L_h_q', loads, qchk, sleep=1, probe=('qsweep' not in self.exp))
        self.stamp(14)
        for H in range(2):
            b = 40 + 16 * H
            for e in (0, 2):
                A(f'v_add_f32 v{b+e}, v{b+e}, v{b+4+e}')
                A(f'v_add_f32 v{b+8+e}, v{b+8+e}, v{b+12+e}')
                A(f'v_add_f32 v{b+e}, v{b+e}, v{b+8+e}')
            A(f'v_cvt_pk_bf16_f32 v{74 + H}, v{b}, v{b+2}')
        A('v_lshrrev_b32 v32, 4, v1')
        A('v_lshlrev_b32 v32, 6, v32')
        A('v_lshl_add_u32 v32, v27, 1, v32')
        A(f'v_add_u32 v32, {QL}, v32')
        for H in range(2):
            A(f'ds_write_b16 v32, v{74 + H} offset:{256 * H}')
            A(f'ds_write_b16_d16_hi v32, v{74 + H} offset:{256 * H + 32}')
        A('v_mov_b32 v42, 1')
        A('v_mov_b32 v43, s29')
        A(f'v_mov_b32 v41, {FL}')
        A('s_waitcnt lgkmcnt(0)')
        A('s_mov_b64 exec, 1')
        A('ds_write_b64 v41, v[42:43] offset:32')
        A('s_mov_b64 exec, -1')
        A('s_setprio 0')
        A(f's_cmp_ge_u32 s96, {NFFN}')
        A('s_cbranch_scc1 L_h_ffn_done')
        if 'noffn' in self.exp:
            A('s_branch L_h_ffn_done')
        if self.ffnboost:
            A(f'v_mov_b32 v30, {FL}')
            A('v_mov_b32 v31, 1')
            A('s_mov_b64 exec, 1')
            A('ds_write_b32 v30, v31 offset:48')
            A('s_mov_b64 exec, -1')
        A('s_mov_b32 s59, 0')
        self.L('L_h_f1')
        A('s_lshl_b32 s40, s96, 7')
        A(f's_mul_i32 s58, s59, {144 * 9216}')
        A('s_add_u32 s40, s40, s58')
        A('s_add_u32 s56, s16, s40')
        A('s_addc_u32 s57, s17, 0')
        if 'now1' not in self.exp:
            self.dma_cols(56, 9216, 25, win=FW)
        A('s_mul_i32 s58, s59, 288')
        A('s_waitcnt vmcnt(0)')
        A('s_cmp_lg_u32 s59, 0')
        A('s_cbranch_scc1 L_h_f1b')
        for r in range(16):
            A(f'v_mov_b32 v{96 + r}, 0')
        self.L('L_h_f1b')
        A('s_nop 1')
        self.gemv64(96, False, 58)
        A('s_add_u32 s59, s59, 1')
        A('s_cmp_lt_u32 s59, 4')
        A('s_cbranch_scc1 L_h_f1')
        A('s_nop 7')
        A('v_lshlrev_b32 v34, 1, v27')
        A(f'v_add_u32 v34, {OB}, v34')
        for t in range(4):
            self.bf16r(30, 96 + 4 * t, 31)
            A(f'v_mul_f32 v31, {0xBFB8AA3B:#x}, v30')
            A('v_exp_f32 v31, v31')
            A('s_nop 0')
            A('v_add_f32 v31, 1.0, v31')
            A('v_rcp_f32 v32, v31')
            A('s_nop 0')
            A('v_mul_f32 v33, v30, v32')
            A('v_cvt_pk_bf16_f32 v33, v33, v33')
            A('s_mov_b64 exec, 0xffff')
            A(f'ds_write_b16 v34, v33 offset:{32 * t}')
            A('s_mov_b64 exec, -1')
        if self.w2late:
            A('v_lshlrev_b32 v35, 2, v1')
            A(f'v_add_u32 v36, {OB}, v35')
            A('s_waitcnt lgkmcnt(0)')
            A('ds_read_b32 v32, v36')
            A('v_mov_b32 v33, s29')
            A('s_lshl_b32 s40, s96, 8')
            A(f's_add_u32 s40, s40, {WS_A}')
            A('s_add_u32 s48, s24, s40')
            A('s_addc_u32 s49, s25, 0')
            A('v_lshlrev_b32 v35, 3, v1')
            A('s_mov_b32 s46, -1')
            A('s_mov_b32 s47, 0')
            A('s_waitcnt lgkmcnt(0)')
            A('s_mov_b64 exec, s[46:47]')
            A('global_store_dwordx2 v35, v[32:33], s[48:49] sc1')
            A('s_mov_b64 exec, -1')
            if self.ffnboost:
                A(f'v_mov_b32 v30, {FL}')
                A('v_mov_b32 v31, 0')
                A('s_mov_b64 exec, 1')
                A('ds_write_b32 v30, v31 offset:48')
                A('s_mov_b64 exec, -1')
            self.L('L_h_ffn_done')
            A(f'v_mov_b32 v34, {FL}')
            self.spin_begin(42)
            self.L('L_h_fwait')
            A('ds_read_b32 v35, v34 offset:16')
            A('s_waitcnt lgkmcnt(0)')
            A('v_readfirstlane_b32 s40, v35')
            A(f's_cmp_ge_u32 s40, {self.a_at}')
            A('s_cbranch_scc1 L_h_fgo')
            self.spin_retry(42, 'L_h_fwait', sleep=64)
            self.L('L_h_fgo')
            A('s_lshl_b32 s40, s27, 4')
            A('s_add_u32 s40, s40, s28')
            A('s_mul_i32 s40, s40, 72')
            A(f's_add_u32 s40, s40, {WS_A}')
            A('s_add_u32 s48, s24, s40')
            A('s_addc_u32 s49, s25, 0')
            A('v_min_u32 v30, 8, v1')
            A('v_lshlrev_b32 v30, 3, v30')
            if 'noffn' not in self.exp:
                def achk():
                    A('v_xor_b32 v34, s29, v33')
                    return 34
                self.poll('L_h_a', ['global_load_dwordx2 v[32:33], v30, s[48:49] sc1'], achk, sleep=32, probe=False)
            A('v_cmp_gt_u32 vcc, 9, v1')
            A('s_nop 1')
            A('v_cndmask_b32 v32, 0, v32, vcc')
            A('v_lshlrev_b32 v35, 2, v1')
            A(f'v_add_u32 v35, {AB}, v35')
            A('s_mov_b64 exec, 0xffff')
            A('ds_write_b32 v35, v32')
            A('s_mov_b64 exec, -1')
        else:
            for r in range(12):
                A(f'v_mov_b32 v{112 + r}, 0')
            A('v_lshlrev_b32 v35, 3, v26')
            A(f'v_add_u32 v35, {OB}, v35')
            A('s_mov_b32 s59, 0')
            self.L('L_h_f2')
            A('s_lshl_b32 s40, s96, 2')
            A('s_add_u32 s40, s40, s59')
            A('s_mul_i32 s40, s40, 18432')
            A('s_add_u32 s56, s18, s40')
            A('s_addc_u32 s57, s19, 0')
            if 'now2' not in self.exp:
                self.dma_rows(56, win=FW)
            A('s_lshl_b32 s40, s59, 5')
            A('v_add_u32 v38, s40, v35')
            A('s_waitcnt lgkmcnt(0)')
            A('ds_read_b64 v[36:37], v38')
            A('s_waitcnt vmcnt(0) lgkmcnt(0)')
            for t0 in range(0, 36, 12):
                for t in range(t0, t0 + 12):
                    A(f'ds_read_b64_tr_b16 v[{40 + 2*(t - t0)}:{41 + 2*(t - t0)}], v24 offset:{32 * t}')
                A('s_waitcnt lgkmcnt(0)')
                for t in range(t0, t0 + 12):
                    grp, r = t // 3, t % 3
                    a = 112 + 4 * (grp // 4)
                    row = 4 * (grp % 4) + r
                    A(f's_mov_b32 s46, {0x00010001 << row:#x}')
                    A(f's_mov_b32 s47, {0x00010001 << row:#x}')
                    A(f'v_cndmask_b32 v{88 + 2*(t&1)}, 0, v36, s[46:47]')
                    A(f'v_cndmask_b32 v{89 + 2*(t&1)}, 0, v37, s[46:47]')
                    A('s_nop 1')
                    A(f'v_mfma_f32_16x16x16_bf16 v[{a}:{a+3}], v[{88 + 2*(t&1)}:{89 + 2*(t&1)}], v[{40 + 2*(t - t0)}:{41 + 2*(t - t0)}], v[{a}:{a+3}]')
            A('s_add_u32 s59, s59, 1')
            A('s_cmp_lt_u32 s59, 4')
            A('s_cbranch_scc1 L_h_f2')
            A('s_nop 7')
            if self.flate:
                A(f'v_add_u32 v30, {FB}, v23')
                for a in range(3):
                    self.mkchk(112 + 4 * a)
                    A(f'ds_write_b128 v30, v[{112 + 4*a}:{115 + 4*a}] offset:{1024 * a}')
            else:
                A('s_mul_i32 s40, s96, 3072')
                A(f's_add_u32 s40, s40, {WS_F}')
                A('s_add_u32 s48, s24, s40')
                A('s_addc_u32 s49, s25, 0')
                for a in range(3):
                    self.mkchk(112 + 4 * a)
                    if 'nofpub' not in self.exp:
                        A(f'global_store_dwordx4 v23, v[{112 + 4*a}:{115 + 4*a}], s[48:49] offset:{1024 * a} sc1')
            if self.ffnboost:
                A(f'v_mov_b32 v30, {FL}')
                A('v_mov_b32 v31, 0')
                A('s_mov_b64 exec, 1')
                A('ds_write_b32 v30, v31 offset:48')
                A('s_mov_b64 exec, -1')
            self.L('L_h_ffn_done')
            if not self.flate:
                A(f's_cmp_ge_u32 s97, {NRED}')
                A('s_cbranch_scc1 L_h_tail')
                if 'nofgather' in self.exp or 'noffn' in self.exp:
                    A('s_branch L_h_tail')
                A(f'v_mov_b32 v34, {FL}')
                self.spin_begin(42)
                self.L('L_h_fwait')
                A('ds_read_b32 v35, v34 offset:16')
                A('s_waitcnt lgkmcnt(0)')
                A('v_readfirstlane_b32 s40, v35')
                A(f's_cmp_ge_u32 s40, {self.nunits // 2}')
                A('s_cbranch_scc1 L_h_fgo')
                self.spin_retry(42, 'L_h_fwait', sleep=64)
                self.L('L_h_fgo')
                self.f_gather('L_h_f', sleep=32, probe=True)
        self.L('L_h_tail')
        A('s_waitcnt vmcnt(0) lgkmcnt(0)')
        self.stamp(7)
        A('v_lshrrev_b32 v30, 3, v1')
        A('v_and_b32 v31, 7, v1')
        A('v_min_u32 v32, 5, v31')
        A('s_lshl_b32 s58, s27, 15')
        A('v_lshlrev_b32 v33, 11, v30')
        step8 = 8 * 2048
        A('s_lshl_b32 s40, s28, 7')
        A('s_add_u32 s58, s58, s40')
        A(f's_add_u32 s58, s58, {WS_P}')
        A('s_add_u32 s48, s24, s58')
        A('s_addc_u32 s49, s25, 0')
        A('v_lshl_add_u32 v34, v32, 4, v33')
        A(f'v_add_u32 v35, {step8}, v34')
        A('v_add_u32 v36, 80, v33')
        A(f'v_add_u32 v37, {step8}, v36')
        if not self.warm_late:
            self.tail_warm()
        US, LA, NI = self.US, self.LA, self.NI
        A(f'v_mov_b32 v38, {FL}')
        def put_id(kreg, valreg_v):
            A(f's_lshl_b32 s40, s{kreg}, 2')
            A(f's_add_u32 s40, s40, {IDS}')
            A('v_mov_b32 v39, s40')
            A('s_mov_b64 exec, 1')
            A(f'ds_write_b32 v39, v{valreg_v}')
            A('s_mov_b64 exec, -1')
        def wait_tk(val, lab, sleep=1):
            self.spin_begin(42)
            self.L(lab)
            A('ds_read_b32 v44, v38 offset:52')
            A('s_waitcnt lgkmcnt(0)')
            A('v_readfirstlane_b32 s40, v44')
            A(f's_cmp_ge_u32 s40, {val}')
            A(f's_cbranch_scc1 {lab}_ok')
            self.spin_retry(42, lab, sleep=sleep)
            self.L(f'{lab}_ok')
        if self.share:
            C, pool = self.C, ((self.UB if self.share2 else 64) - US) * 64
            navg = pool / 16
            import struct as _st
            f2h = lambda x: '%#x' % _st.unpack('<I', _st.pack('<f', x))[0]
            if self.pertau:
                self.spin_begin(42)
                self.L('L_h_sw1')
                A('ds_read_b64 v[40:41], v38 offset:232')
                A('s_waitcnt lgkmcnt(0)')
                A('v_readfirstlane_b32 s40, v41')
                A('s_cmp_lg_u32 s40, 0')
                A('s_cbranch_scc1 L_h_sw1_ok')
                self.spin_retry(42, 'L_h_sw1', sleep=8)
                self.L('L_h_sw1_ok')
                A('v_mov_b32 v42, v40')
                A('v_mov_b32 v40, v41')
                A('v_mov_b32 v41, v42')
                A('v_mov_b32 v42, 0')
                A('s_lshl_b32 s40, s27, 8')
                A(f's_add_u32 s40, s40, {WS_T}')
                A('s_add_u32 s56, s24, s40')
                A('s_addc_u32 s57, s25, 0')
                A('s_lshl_b32 s58, s28, 4')
                A('v_mov_b32 v39, s58')
                self.mkchk(40)
                A('s_mov_b64 exec, 1')
                A('global_store_dwordx4 v39, v[40:43], s[56:57] sc1')
                A('s_mov_b64 exec, -1')
                wait_tk(4 * (C + self.Gd) - 4, 'L_h_sw2', sleep=4)
                A('v_and_b32 v39, 15, v1')
                A('v_lshlrev_b32 v39, 4, v39')
                self.poll('L_h_t', ['global_load_dwordx4 v[40:43], v39, s[56:57] sc1'], lambda: self.chk3([40], 44, 45), sleep=4, probe=False)
                A('v_readfirstlane_b32 s40, v40')
                A('v_sub_u32 v45, v40, v41')
                A('s_nop 0')
                A('v_subrev_u32 v44, s40, v40')
                A('v_cvt_f32_i32 v44, v44')
                A('v_cvt_f32_u32 v45, v45')
                A(f'v_mul_f32 v45, {f2h(1 / (4 * (C - self.C0)))}, v45')
                A('v_mov_b32 v46, v45')
                self.rowred('v_add_f32', 46)
                A(f'v_mul_f32 v46, {f2h(1 / 16)}, v46')
                A('v_sub_f32 v45, v45, v46')
                A(f'v_mul_f32 v45, {f2h(self.lam)}, v45')
                A('v_add_f32 v45, v45, v46')
                A('v_rcp_f32 v45, v45')
                A('s_nop 0')
                A('v_mul_f32 v46, v44, v45')
                A('v_mov_b32 v47, v45')
                self.mrowred('v_add_f32', [46, 47], (8, 4, 2, 1))
                A(f'v_add_f32 v46, {f2h(float(pool + 64 * (US - C)))}, v46')
                A('v_rcp_f32 v47, v47')
                A('s_nop 0')
                A('v_mul_f32 v46, v46, v47')
                A('v_sub_f32 v46, v46, v44')
                A('v_mul_f32 v46, v46, v45')
                A(f'v_subrev_f32 v46, {f2h(float(4 * (US - C)))}, v46')
            else:
                wait_tk(4 * C - 4, 'L_h_sw1')
                A('s_memrealtime s[50:51]')
                if self.tau2:
                    A(f's_sub_u32 s31, s40, {4 * C - 4}')
                A('s_lshl_b32 s40, s27, 8')
                A(f's_add_u32 s40, s40, {WS_T}')
                A('s_add_u32 s56, s24, s40')
                A('s_addc_u32 s57, s25, 0')
                A('s_lshl_b32 s58, s28, 4')
                A('v_mov_b32 v39, s58')
                A('s_waitcnt lgkmcnt(0)')
                A('v_mov_b32 v40, s50')
                A('v_mov_b32 v41, s98')
                A('v_mov_b32 v42, 0')
                if self.tau2:
                    A('s_mov_b32 s30, s50')
                self.mkchk(40)
                A('s_mov_b64 exec, 1')
                A('global_store_dwordx4 v39, v[40:43], s[56:57] sc1')
                A('s_mov_b64 exec, -1')
                wait_tk(4 * (C + self.Gd) - 4, 'L_h_sw2', sleep=4)
                A('v_and_b32 v39, 15, v1')
                A('v_lshlrev_b32 v39, 4, v39')
                self.poll('L_h_t', ['global_load_dwordx4 v[40:43], v39, s[56:57] sc1'], lambda: self.chk3([40], 44, 45), sleep=4, probe=False)
                A('v_readfirstlane_b32 s40, v40')
                A('v_sub_u32 v45, v40, v41')
                A('s_nop 0')
                A('v_subrev_u32 v44, s40, v40')
                A('v_cvt_f32_i32 v44, v44')
                A('v_cvt_f32_u32 v45, v45')
                A('v_mov_b32 v46, v44')
                self.rowred('v_add_f32', 46)
                self.rowred('v_add_f32', 45)
                import struct as _st
                f2h = lambda x: '%#x' % _st.unpack('<I', _st.pack('<f', x))[0]
                A(f'v_mul_f32 v46, {f2h(1 / 16)}, v46')
                A(f'v_mul_f32 v45, {f2h(self.taufac / (16 * 4 * C))}, v45')
                A('v_rcp_f32 v45, v45')
                A('v_sub_f32 v46, v46, v44')
                A('s_nop 0')
                A('v_mul_f32 v46, v46, v45')
                A(f'v_add_f32 v46, {f2h(navg)}, v46')
            def shares(pool_, cap_, off):
                A('v_max_f32 v46, 0, v46')
                A(f'v_min_f32 v46, {f2h(cap_)}, v46')
                A('v_mov_b32 v47, v46')
                self.rowred('v_add_f32', 47)
                A('v_rcp_f32 v47, v47')
                A('s_nop 0')
                A(f'v_mul_f32 v47, {f2h(float(pool_))}, v47')
                A('v_mul_f32 v46, v46, v47')
                for sh in (1, 2, 4, 8):
                    A('s_nop 1')
                    A(f'v_add_f32_dpp v46, v46, v46 row_shr:{sh} row_mask:0xf bank_mask:0xf bound_ctrl:0')
                A('v_add_f32 v46, 0.5, v46')
                A('v_cvt_i32_f32 v46, v46')
                A(f'v_min_i32 v46, {pool_}, v46')
                A('s_mov_b32 s50, 0x80008000')
                A('s_mov_b32 s51, 0x80008000')
                A(f'v_mov_b32 v47, {pool_}')
                A('v_cndmask_b32 v46, v46, v47, s[50:51]')
                A('v_mov_b32 v47, 0')
                A('s_nop 1')
                A('v_mov_b32_dpp v47, v46 row_shr:1 row_mask:0xf bank_mask:0xf bound_ctrl:0')
                A('v_sub_u32 v46, v46, v47')
                A('v_add_u32 v46, 1, v46')
                A('s_nop 0')
                A('v_readlane_b32 s50, v46, s28')
                A('v_readlane_b32 s51, v47, s28')
                A('s_nop 1')
                A('v_mov_b32 v46, s50')
                A('v_mov_b32 v47, s51')
                A(f'v_mov_b32 v39, {IDS + off}')
                A('s_mov_b64 exec, 1')
                A('ds_write_b64 v39, v[46:47]')
                A('s_mov_b64 exec, -1')
            if self.share2:
                A('v_mov_b32 v48, v45')
            shares(pool, 2.5 * navg, 0)
            if self.share2:
                pool2 = (64 - self.UB) * 64
                navg2 = pool2 / 16
                A(f's_add_u32 s58, s50, {4 * US - 1 - 4 - self.K2}')
                def wait_tks(sreg, lab, sleep):
                    self.spin_begin(42)
                    self.L(lab)
                    A('ds_read_b32 v44, v38 offset:52')
                    A('s_waitcnt lgkmcnt(0)')
                    A('v_readfirstlane_b32 s40, v44')
                    A(f's_cmp_ge_u32 s40, s{sreg}')
                    A(f's_cbranch_scc1 {lab}_ok')
                    self.spin_retry(42, lab, sleep=sleep)
                    self.L(f'{lab}_ok')
                wait_tks(58, 'L_h_s2a', 2)
                A('s_memrealtime s[56:57]')
                A(f's_add_u32 s59, s50, {4 * US - 1 - 4}')
                A('s_sub_i32 s59, s59, s40')
                A('s_max_i32 s59, s59, 0')
                A('s_waitcnt lgkmcnt(0)')
                A('v_mov_b32 v40, s56')
                A('v_mov_b32 v41, s59')
                if self.tau2:
                    A(f's_sub_u32 s40, s40, {4 * C - 4}')
                    A('s_sub_u32 s40, s40, s31')
                    A('s_sub_u32 s59, s56, s30')
                    A('v_cvt_f32_u32 v42, s40')
                    A('v_cvt_f32_u32 v43, s59')
                    A('v_rcp_f32 v42, v42')
                    A('s_nop 0')
                    A('v_mul_f32 v42, v42, v43')
                else:
                    A('v_mov_b32 v42, 0')
                A('s_lshl_b32 s40, s27, 8')
                A(f's_add_u32 s40, s40, {WS_T2}')
                A('s_add_u32 s56, s24, s40')
                A('s_addc_u32 s57, s25, 0')
                A('s_lshl_b32 s59, s28, 4')
                A('v_mov_b32 v39, s59')
                self.mkchk(40)
                A('s_mov_b64 exec, 1')
                A('global_store_dwordx4 v39, v[40:43], s[56:57] sc1')
                A('s_mov_b64 exec, -1')
                A(f's_add_u32 s58, s58, {self.Gd2}')
                wait_tks(58, 'L_h_s2b', 2)
                A('v_and_b32 v39, 15, v1')
                A('v_lshlrev_b32 v39, 4, v39')
                self.poll('L_h_t2', ['global_load_dwordx4 v[40:43], v39, s[56:57] sc1'], lambda: self.chk3([40], 44, 45), sleep=2, probe=False)
                A('v_readfirstlane_b32 s40, v40')
                A('v_cvt_f32_u32 v45, v41')
                A('s_nop 0')
                A('v_subrev_u32 v44, s40, v40')
                A('v_cvt_f32_i32 v44, v44')
                if self.tau2:
                    A('v_mov_b32 v46, v42')
                    self.rowred('v_add_f32', 46)
                    A(f'v_mul_f32 v46, {f2h(1 / 16)}, v46')
                    A('v_sub_f32 v42, v42, v46')
                    A(f'v_mul_f32 v42, {f2h(self.lam2)}, v42')
                    A('v_add_f32 v42, v42, v46')
                    A('v_rcp_f32 v42, v42')
                    A('s_nop 0')
                    A('v_mul_f32 v46, v44, v42')
                    A('v_add_f32 v46, v46, v45')
                    A('v_mov_b32 v47, v42')
                    self.mrowred('v_add_f32', [46, 47], (8, 4, 2, 1))
                    A(f'v_add_f32 v46, {f2h(float(pool2))}, v46')
                    A('v_rcp_f32 v47, v47')
                    A('s_nop 0')
                    A('v_mul_f32 v46, v46, v47')
                    A('v_sub_f32 v46, v46, v44')
                    A('v_mul_f32 v46, v46, v42')
                    A('v_sub_f32 v46, v46, v45')
                else:
                    A(f'v_mul_f32 v44, v44, v48')
                    A(f'v_mul_f32 v44, {f2h(1 / self.taufac2)}, v44')
                    A('v_add_f32 v44, v44, v45')
                    A('v_mov_b32 v46, v44')
                    self.rowred('v_add_f32', 46)
                    A(f'v_mul_f32 v46, {f2h(1 / 16)}, v46')
                    A('v_sub_f32 v46, v46, v44')
                    A(f'v_add_f32 v46, {f2h(navg2)}, v46')
                shares(pool2, self.cap2 * navg2, 8)
                A('s_mov_b32 s50, 1')
            A(f's_add_u32 s50, s50, {4 * US - 4 - self.warm_tiles}')
            self.spin_begin(42)
            self.L('L_h_sw3')
            A('ds_read_b32 v44, v38 offset:52')
            A('s_waitcnt lgkmcnt(0)')
            A('v_readfirstlane_b32 s40, v44')
            A('s_cmp_ge_u32 s40, s50')
            A('s_cbranch_scc1 L_h_sw3_ok')
            self.spin_retry(42, 'L_h_sw3', sleep=4)
            self.L('L_h_sw3_ok')
            self.stamp(23)
        elif NI == 0:
            A('s_mov_b32 s50, 0')
            A('v_mov_b32 v44, -1')
            put_id(50, 44)
            if 'dumat' in self.exp:
                A(f's_mul_i32 s40, s27, {self.cstride}')
                A(f's_add_u32 s40, s40, {WS_CNT}')
                A('s_add_u32 s56, s24, s40')
                A('s_addc_u32 s57, s25, 0')
                A('v_mov_b32 v40, 0')
                A('v_mov_b32 v41, 1')
                A('s_mov_b32 s58, 48')
                self.L('L_h_da')
                A('s_lshl_b32 s51, s58, 2')
                self.spin_begin(42)
                self.L('L_h_daw')
                A('ds_read_b32 v44, v38 offset:52')
                A('s_waitcnt lgkmcnt(0)')
                A('v_readfirstlane_b32 s40, v44')
                A('s_cmp_ge_u32 s40, s51')
                A('s_cbranch_scc1 L_h_daok')
                self.spin_retry(42, 'L_h_daw', sleep=2)
                self.L('L_h_daok')
                A('s_mov_b64 exec, 1')
                A('global_atomic_add v42, v40, v41, s[56:57] sc0')
                A('s_mov_b64 exec, -1')
                A('s_waitcnt vmcnt(0)')
                A('s_add_u32 s58, s58, 1')
                A('s_cmp_lt_u32 s58, 63')
                A('s_cbranch_scc1 L_h_da')
        else:
            A(f's_mul_i32 s40, s27, {self.cstride}')
            A(f's_add_u32 s40, s40, {WS_CNT}')
            A('s_add_u32 s56, s24, s40')
            A('s_addc_u32 s57, s25, 0')
            A('v_mov_b32 v40, 0')
            A('v_mov_b32 v41, 1')
            def wait_progress(kreg, lab):
                A(f's_add_u32 s51, s{kreg}, {US - LA}')
                self.spin_begin(42)
                self.L(lab)
                A('ds_read_b128 v[44:47], v38')
                A('s_waitcnt lgkmcnt(0)')
                A('v_max_u32 v44, v44, v45')
                A('v_max3_u32 v44, v44, v46, v47')
                A('s_nop 0')
                A('v_readfirstlane_b32 s40, v44')
                A('s_cmp_ge_u32 s40, s51')
                A(f's_cbranch_scc1 {lab}_ok')
                self.spin_retry(42, lab, sleep=4)
                self.L(f'{lab}_ok')
            def claim(dst):
                A('s_mov_b64 exec, 1')
                A(f'global_atomic_add v{dst}, v40, v41, s[56:57] sc0')
                A('s_mov_b64 exec, -1')
            if self.tickets:
                A('s_mov_b32 s58, 0')
                self.L('L_h_claim')
                A('s_lshl_b32 s51, s58, 2')
                A(f's_add_u32 s51, s51, {4 * US - 4 - self.LAt}')
                self.spin_begin(42)
                self.L('L_h_tw')
                A('ds_read_b32 v44, v38 offset:52')
                A('s_waitcnt lgkmcnt(0)')
                A('v_readfirstlane_b32 s40, v44')
                A('s_cmp_ge_u32 s40, s51')
                A('s_cbranch_scc1 L_h_tw_ok')
                self.spin_retry(42, 'L_h_tw', sleep=2)
                self.L('L_h_tw_ok')
                A(f's_mov_b32 s40, {NI}')
                A(f's_cmp_ge_u32 s58, {CAP}')
                A('s_cbranch_scc1 L_h_tres')
                claim(42)
                A('s_waitcnt vmcnt(0)')
                A('v_readfirstlane_b32 s40, v42')
                self.L('L_h_tres')
                if self.endmargin:
                    A(f's_cmp_lt_u32 s40, {max(NI - self.endmargin, 0)}')
                    A('s_cbranch_scc1 L_h_tnom')
                    A('v_mov_b32 v44, 1')
                    A('s_mov_b64 exec, 1')
                    A('ds_write_b32 v38, v44 offset:48')
                    A('s_mov_b64 exec, -1')
                    self.L('L_h_tnom')
                A(f's_cmp_ge_u32 s40, {NI}')
                A('s_cselect_b32 s40, -2, s40')
                A('s_add_u32 s59, s40, 1')
                A('v_mov_b32 v44, s59')
                put_id(58, 44)
                A('s_add_u32 s58, s58, 1')
                A('s_cmp_lg_u32 s59, -1')
                A('s_cbranch_scc1 L_h_claim')
            else:
                A('s_mov_b32 s50, 0')
                A('s_mov_b32 s58, 0')
                wait_progress(50, 'L_h_cw0')
                claim(42)
                A('s_mov_b32 s50, 1')
                self.L('L_h_claim')
                for par in range(2):
                    cur, nxt = 42 + par, 43 - par
                    last = self.lab('L_h_clast')
                    res = self.lab('L_h_cres')
                    A(f's_cmp_ge_u32 s50, {CAP}')
                    A(f's_cbranch_scc1 {last}')
                    wait_progress(50, self.lab('L_h_cw'))
                    claim(nxt)
                    A('s_add_u32 s50, s50, 1')
                    A('s_waitcnt vmcnt(1)')
                    A(f's_branch {res}')
                    self.L(last)
                    A('s_waitcnt vmcnt(0)')
                    A(f'v_mov_b32 v{nxt}, {NI}')
                    self.L(res)
                    A(f'v_readfirstlane_b32 s40, v{cur}')
                    if self.endmargin:
                        nm = self.lab('L_h_nom')
                        A(f's_cmp_lt_u32 s40, {max(NI - self.endmargin, 0)}')
                        A(f's_cbranch_scc1 {nm}')
                        for q in range(4):
                            A(f'v_mov_b32 v{44 + q}, 1')
                        A('s_mov_b64 exec, 1')
                        A('ds_write_b128 v38, v[44:47] offset:48')
                        A('s_mov_b64 exec, -1')
                        self.L(nm)
                    A(f's_cmp_ge_u32 s40, {NI}')
                    A('s_cselect_b32 s40, -2, s40')
                    A('s_add_u32 s59, s40, 1')
                    A('v_mov_b32 v44, s59')
                    put_id(58, 44)
                    A('s_add_u32 s58, s58, 1')
                    A('s_cmp_eq_u32 s59, -1')
                    A('s_cbranch_scc1 L_h_cdone')
                A('s_branch L_h_claim')
            self.L('L_h_cdone')
            self.stamp(23)
            A('v_mov_b32 v44, 1')
            A('v_mov_b32 v45, 1')
            A('v_mov_b32 v46, 1')
            A('v_mov_b32 v47, 1')
            A('s_mov_b64 exec, 1')
            if self.tickets:
                A('ds_write_b32 v38, v44 offset:48')
            else:
                A('ds_write_b128 v38, v[44:47] offset:48')
            A('s_mov_b64 exec, -1')
            A('s_waitcnt vmcnt(0) lgkmcnt(0)')
        if self.warm_late:
            self.tail_warm()
        if 'notail' in self.exp:
            self.flush_stamps()
            A('s_endpgm')
        A('s_barrier')
        if self.pm_b:
            self.pollm('L_h_b', lambda bs: [f'global_load_dwordx4 v[{b}:{b+3}], v{34 + i}, s[48:49] sc1' for i, b in enumerate(bs)],
                       [[40, 44, 48, 52], [68, 72, 76, 80], [96, 100, 104, 108], [128, 132, 136, 140]][:self.nset_b], 56,
                       stag=self.stag_b, invs=[30, 32, 34, 36])
        elif self.dpoll:
            self.poll2('L_h_b', lambda bs: [f'global_load_dwordx4 v[{b}:{b+3}], v{34 + i}, s[48:49] sc1' for i, b in enumerate(bs)],
                       [40, 44, 48, 52], [68, 72, 76, 80], 56, 57, sleep=self.tsleep or 2, stag=self.stag_b, thresh=self.thresh_b,
                       more=([96, 100, 104, 108], [128, 132, 136, 140])[:self.nset_b - 2])
        else:
            self.poll('L_h_b', [f'global_load_dwordx4 v[{40 + 4*i}:{43 + 4*i}], v{34 + i}, s[48:49] sc1' for i in range(4)],
                      lambda: self.chk3([40, 44, 48, 52], 56, 57), sleep=2)
        self.stamp(15)
        A('v_max_f32 v56, v49, v53')
        self.rowred('v_max_f32', 56, rors=(8,))
        self.xrow('v_max_f32', 56, 57)
        A('v_sub_f32 v58, v49, v56')
        A('v_sub_f32 v59, v53, v56')
        A('v_exp_f32 v58, v58')
        A('v_exp_f32 v59, v59')
        A('s_nop 0')
        A('v_mul_f32 v60, v50, v58')
        for i in range(3):
            A(f'v_mul_f32 v{61 + i}, v{40 + i}, v58')
        A('v_fmac_f32 v60, v54, v59')
        for i in range(3):
            A(f'v_fmac_f32 v{61 + i}, v{44 + i}, v59')
        self.mrowred('v_add_f32', [60, 61, 62, 63], (8,))
        self.mxrow('v_add_f32', [60, 61, 62, 63], [84, 85, 86, 87])
        A('v_rcp_f32 v64, v60')
        A('s_nop 0')
        for r in (61, 62, 63):
            A(f'v_mul_f32 v65, v{r}, v64')
            A(f'v_fma_f32 v66, -v65, v60, v{r}')
            A(f'v_fma_f32 v{r}, v66, v64, v65')
        A('v_cvt_pk_bf16_f32 v61, v61, v62')
        A('v_cvt_pk_bf16_f32 v63, v63, v63')
        A('v_mul_u32_u24 v62, 6, v31')
        A(f'v_add_u32 v62, {OB}, v62')
        A('s_mov_b64 exec, 0x3f')
        A('ds_write_b16 v62, v61')
        A('s_mov_b64 exec, 0x1f')
        A('ds_write_b16_d16_hi v62, v61 offset:2')
        A('ds_write_b16 v62, v63 offset:4')
        A('s_mov_b64 exec, -1')
        A('s_waitcnt lgkmcnt(0)')
        A('s_barrier')
        self.flush_stamps(extra=[(30, 64)])
        A('s_endpgm')

    def build(self):
        head = HEADER + f'; @launch grid=(256,1,1) block=(576,1,1) lds={LDS_BYTES}\n'
        head += '.amdgcn_target "amdgcn-amd-amdhsa--gfx950"\n.text\n'
        head += f'.globl {KNAME}\n.p2align 8\n.type {KNAME},@function\n{KNAME}:\n'
        self.entry()
        self.consumer()
        if self.tickets:
            self.loader_tk()
        else:
            self.loader()
        self.helper()
        self.L('L_end')
        self.A('s_endpgm')
        tail = f'''.section .rodata,"a"
.p2align 6
.amdhsa_kernel {KNAME}
  .amdhsa_next_free_vgpr 160
  .amdhsa_next_free_sgpr 100
  .amdhsa_accum_offset 160
  .amdhsa_group_segment_fixed_size 0
  .amdhsa_kernarg_size 88
  .amdhsa_user_sgpr_count 2
  .amdhsa_user_sgpr_kernarg_segment_ptr 1
  .amdhsa_system_sgpr_workgroup_id_x 1
  .amdhsa_float_denorm_mode_32 3
  .amdhsa_float_denorm_mode_16_64 3
.end_amdhsa_kernel
'''
        return head + '\n'.join(self.o) + '\n' + tail


if __name__ == '__main__':
    import argparse
    ap = argparse.ArgumentParser()
    ap.add_argument('-o', default='parallel_sum__gqa_block_cached__dense_activation_silu__decode.s')
    ap.add_argument('--W', type=int, default=5)
    ap.add_argument('--rot', type=int, default=7)
    ap.add_argument('--headmap', default='lin')
    ap.add_argument('--stamps', action='store_true')
    ap.add_argument('--exp', default='')
    a = ap.parse_args()
    open(a.o, 'w').write(Gen(W=a.W, rot=a.rot, headmap=a.headmap, stamps=a.stamps, exp=[e for e in a.exp.split(',') if e]).build())
    print('wrote', a.o)
```

```python
import sys

KNAME = 'parallel_sum__gqa_block_cached__dense_activation_silu__decode_kernel'

HEADER = '''; Kernarg layout for this problem (88 bytes, ptrs only, base s[0:1]):
'''

RING = 32768
STG = 0x20000
XN = 0x24800
QL = 0x24D00
FL = 0x25000
OC = 0x25100
OCML = 0x26100
OB = 0x26180
RED = 0x26200
FFNR = 0x26480
AB = 0x26400
W2S = 0
FB = 0x26500
LDS_BYTES = 0x28000

WS_EPOCH = 0x0
WS_Q = 0x10000
WS_P = 0x80000
WS_Y2 = 0x200000
WS_Y = 0x100000
WS_A = 0x30000
WS_F = 0x38000
NRED = 48
NFFN = 72
WS_DBG = 0x800000

SCALE = 0x3DB504F3
LOG2E = 0x3FB8AA3B
SPIN = 0x40000
IDS = FL + 64
CAP = 40
WS_T = 0x4000
WS_T2 = 0x6000
WS_CNT = 0x1C0000


class Gen:
    def __init__(self, W=5, rot=7, headmap='lin', stamps=False, nunits=64, exp=(), ffn_win=6, warm_before=4, US=56, LA=2, preread=True, wotail=True, Wend=12, endmargin=32, cstride=12544, earlyflags=True, fastpoll=True, dpoll=True, stag=8, tickets=True, LAt=6, tk_pos=4, prog_pts=(4, 8, 16, 32, 48), nstart=0, share=True, C=50, Gd=3, xfast=8, taufac=0.95, warm_tiles=10, tsleep=0, thresh=64, a_at=36, warm_late=False, w2late=False, wo_by='w23', pertau=False, C0=34, lam=0.7, hfirst=False, ffnboost=False, xrot=448, share2=True, UB=61, K2=12, Gd2=5, taufac2=1.0, cap2=2.5, fastpro=True, nset_b=2, nset_d=2, stag_b=None, stag_d=None, thresh_b=None, thresh_d=None, pm_b=False, pm_d=False, redmap='spread', ffnmap='spread', warmP='selfld', warmY='selfld', flate=False, fwave=0, fsleep=2, wo_delay=False, wo_win=0, stage_end=True, tau2=False, lam2=0.7, layout3=True, pads=True, halign=True, npads=7, hchain=True, skipffn=True, latetail=True):
        self.o = []
        self.W = W
        self.rot = rot
        self.headmap = headmap
        self.stamps = stamps
        self.nunits = nunits
        self.uid = 0
        self.pending = []
        self.exp = set(exp)
        self.ffn_win = ffn_win
        self.warm_before = warm_before
        self.US = US
        self.LA = LA
        self.NI = (64 - US) * 16
        self.preread = preread
        self.wotail = wotail
        self.Wend = Wend
        self.ffnboost = ffnboost
        self.xrot = xrot
        self.share2 = share2
        self.fastpro = fastpro
        self.nset_b = nset_b
        self.pm_b = pm_b
        self.redmap = redmap
        self.warmP = warmP
        self.flate = flate
        self.fwave = fwave
        self.wo_delay = wo_delay
        self.stage_end = stage_end
        self.tau2 = tau2
        self.layout3 = layout3
        self.pads = pads
        self.halign = halign
        self.npads = npads
        self.hchain = hchain
        self.skipffn = skipffn
        self.latetail = latetail
        self.lam2 = lam2
        self.wo_win = wo_win
        self.fsleep = fsleep
        self.warmY = warmY
        self.ffnmap = ffnmap
        self.pm_d = pm_d
        self.nset_d = nset_d
        self.stag_b = stag if stag_b is None else stag_b
        self.stag_d = stag if stag_d is None else stag_d
        self.thresh_b = thresh if thresh_b is None else thresh_b
        self.thresh_d = thresh if thresh_d is None else thresh_d
        self.UB = UB
        self.K2 = K2
        self.Gd2 = Gd2
        self.taufac2 = taufac2
        self.cap2 = cap2
        self.hfirst = hfirst
        self.pertau = pertau
        self.C0 = C0
        self.lam = lam
        self.wo_by = wo_by
        self.w2late = w2late
        self.warm_late = warm_late
        self.a_at = a_at
        self.tsleep = tsleep
        self.thresh = thresh
        self.share = share
        self.C = C
        self.Gd = Gd
        self.xfast = xfast
        self.taufac = taufac
        self.warm_tiles = warm_tiles
        self.nstart = nstart
        self.prog_pts = prog_pts
        self.dpoll = dpoll
        self.stag = stag
        self.tickets = tickets
        self.LAt = LAt
        self.tk_pos = tk_pos
        self.fastpoll = fastpoll
        self.earlyflags = earlyflags
        self.cstride = cstride
        self.endmargin = endmargin
        self.sleepmul = 8 if 'slowpoll' in self.exp else 1

    def A(self, s):
        self.o.append('  ' + s)

    def L(self, s):
        self.o.append(s + ':')

    def lab(self, base):
        self.uid += 1
        return f'{base}_{self.uid}'

    def stamp(self, idx, vtmp=126):
        if not self.stamps:
            return
        k = len(self.pending)
        assert k < 12
        self.pending.append(idx)
        self.A(f's_memrealtime s[{66 + 2*k}:{67 + 2*k}]')

    def stamp_at(self, idx, k):
        while len(self.pending) <= k:
            self.pending.append(None)
        self.pending[k] = idx
        self.A(f's_memrealtime s[{66 + 2*k}:{67 + 2*k}]')

    def flush_stamps(self, vtmp=126, extra=()):
        if not self.stamps:
            return
        A = self.A
        A('s_lshl_b32 s92, s2, 7')
        A(f's_add_u32 s92, s92, {WS_DBG}')
        A('s_add_u32 s94, s24, s92')
        A('s_addc_u32 s95, s25, 0')
        A('s_waitcnt lgkmcnt(0)')
        A(f'v_mov_b32 v{vtmp+1}, 0')
        A('s_mov_b64 exec, 1')
        for k, idx in enumerate(self.pending):
            if idx is None:
                continue
            A(f'v_mov_b32 v{vtmp}, s{66 + 2*k}')
            A(f'global_store_dword v{vtmp+1}, v{vtmp}, s[94:95] offset:{idx * 4}')
        for idx, sreg in extra:
            A(f'v_mov_b32 v{vtmp}, s{sreg}')
            A(f'global_store_dword v{vtmp+1}, v{vtmp}, s[94:95] offset:{idx * 4}')
        A('s_mov_b64 exec, -1')

    def xrow(self, op, v, t):
        A = self.A
        A(f'v_mov_b32 v{t}, v{v}')
        A('s_nop 1')
        A(f'v_permlane16_swap_b32 v{v}, v{t}')
        A('s_nop 1')
        A(f'{op} v{v}, v{v}, v{t}')
        A(f'v_mov_b32 v{t}, v{v}')
        A('s_nop 1')
        A(f'v_permlane32_swap_b32 v{v}, v{t}')
        A('s_nop 1')
        A(f'{op} v{v}, v{v}, v{t}')

    def rowred(self, op, v, rors=(8, 4, 2, 1)):
        A = self.A
        for r in rors:
            A('s_nop 1')
            A(f'{op}_dpp v{v}, v{v}, v{v} row_ror:{r} row_mask:0xf bank_mask:0xf')

    def mrowred(self, op, regs, rors):
        A = self.A
        pad = max(0, 3 - len(regs))
        for r in rors:
            for _ in range(pad):
                A('s_nop 0')
            for v in regs:
                A(f'{op}_dpp v{v}, v{v}, v{v} row_ror:{r} row_mask:0xf bank_mask:0xf')
        return

    def mxrow(self, op, regs, tmps):
        A = self.A
        pad = max(0, 3 - len(regs))
        for swap in ('v_permlane16_swap_b32', 'v_permlane32_swap_b32'):
            for v, t in zip(regs, tmps):
                A(f'v_mov_b32 v{t}, v{v}')
            for _ in range(pad + 1):
                A('s_nop 0')
            for v, t in zip(regs, tmps):
                A(f'{swap} v{v}, v{t}')
            for _ in range(pad):
                A('s_nop 0')
            for v, t in zip(regs, tmps):
                A(f'{op} v{v}, v{v}, v{t}')

    def wavesum(self, v, t):
        self.rowred('v_add_f32', v)
        self.xrow('v_add_f32', v, t)

    def bf16r(self, dst, src, t):
        self.A(f'v_cvt_pk_bf16_f32 v{t}, v{src}, v{src}')
        self.A(f'v_lshlrev_b32 v{dst}, 16, v{t}')

    def spin_begin(self, sreg):
        self.A(f's_mov_b32 s{sreg}, {SPIN}')

    def spin_retry(self, sreg, loop, sleep=2):
        A = self.A
        A(f's_sleep {min(127, sleep * self.sleepmul)}')
        A(f's_sub_u32 s{sreg}, s{sreg}, 1')
        A(f's_cmp_lg_u32 s{sreg}, 0')
        A(f's_cbranch_scc1 {loop}')

    def wg_of(self, dst, s_h, s_or_imm_j):
        pass

    def entry(self):
        A = self.A
        if self.stamps:
            A('s_memrealtime s[90:91]')
        A('s_cmp_ge_u32 s2, 256')
        A('s_cbranch_scc1 L_end')
        A('s_load_dwordx16 s[4:19], s[0:1], 0')
        A('s_load_dwordx4 s[20:23], s[0:1], 64')
        A('s_load_dwordx2 s[24:25], s[0:1], 80')
        A('v_lshrrev_b32 v1, 6, v0')
        if self.headmap == 'lin':
            A('s_lshr_b32 s27, s2, 4')
            A('s_and_b32 s28, s2, 15')
        elif self.headmap == 'X4':
            A('s_and_b32 s40, s2, 7')
            A('s_lshr_b32 s41, s2, 3')
            A('s_lshl_b32 s41, s41, 1')
            A('s_and_b32 s28, s2, 1')
            A('s_add_u32 s41, s41, s28')
            A('s_lshr_b32 s40, s40, 1')
            A('s_lshl_b32 s27, s40, 2')
            A('s_lshr_b32 s28, s41, 4')
            A('s_add_u32 s27, s27, s28')
            A('s_and_b32 s28, s41, 15')
        elif self.headmap.startswith('G'):
            G = int(self.headmap[1:]); per = 16 // G
            A('s_and_b32 s40, s2, 7')
            A('s_lshr_b32 s41, s2, 3')
            A(f's_lshr_b32 s27, s41, {per.bit_length() - 1}')
            A(f's_and_b32 s28, s41, {per - 1}')
            A(f's_mul_i32 s28, s28, {G}')
            A(f's_and_b32 s41, s40, {G - 1}')
            A('s_add_u32 s28, s28, s41')
            A(f's_lshr_b32 s40, s40, {G.bit_length() - 1}')
            A(f's_mul_i32 s40, s40, {2 * G}')
            A('s_add_u32 s27, s27, s40')
        else:
            A('s_and_b32 s27, s2, 7')
            A('s_lshl_b32 s27, s27, 1')
            A('s_lshr_b32 s28, s2, 3')
            A('s_and_b32 s28, s28, 1')
            A('s_add_u32 s27, s27, s28')
            A('s_lshr_b32 s28, s2, 4')
        if self.ffnmap == 'spread':
            A('s_and_b32 s40, s27, 1')
            A('s_lshl_b32 s96, s27, 2')
            A('s_and_b32 s41, s28, 3')
            A('s_add_u32 s96, s96, s41')
            A('s_xor_b32 s41, s40, 1')
            A('s_lshl_b32 s41, s41, 2')
            A('s_bfe_u32 s42, s27, 0x20001')
            A('s_add_u32 s41, s41, s42')
            A('s_add_u32 s97, s27, 64')
            A('s_cmp_lt_u32 s27, 8')
            A('s_cselect_b32 s97, s97, 255')
            A('s_cmp_eq_u32 s28, s41')
            A('s_cselect_b32 s97, s97, 255')
            A('s_lshr_b32 s41, s28, 2')
            A('s_cmp_eq_u32 s41, s40')
            A('s_cselect_b32 s96, s96, s97')
        else:
            A('s_lshl_b32 s96, s27, 2')
            A('s_add_u32 s96, s96, s28')
            A('s_add_u32 s97, s27, 64')
            A('s_cmp_lt_u32 s27, 8')
            A('s_cselect_b32 s97, s97, 255')
            A('s_cmp_eq_u32 s28, 4')
            A('s_cselect_b32 s97, s97, 255')
            A('s_cmp_lt_u32 s28, 4')
            A('s_cselect_b32 s96, s96, s97')
        if self.redmap == 'spread':
            A('s_mul_i32 s97, s27, 3')
            A('s_sub_u32 s40, s28, s97')
            A('s_and_b32 s40, s40, 7')
            A('s_add_u32 s97, s97, s40')
            A('s_cmp_lt_u32 s40, 3')
            A('s_cselect_b32 s97, s97, 255')
            A('s_cmp_ge_u32 s28, 8')
            A('s_cselect_b32 s97, s97, 255')
        else:
            A('s_mul_i32 s97, s27, 3')
            A('s_add_u32 s97, s97, s28')
            A('s_sub_u32 s97, s97, 13')
            A('s_cmp_ge_u32 s28, 13')
            A('s_cselect_b32 s97, s97, 255')
        A('v_readfirstlane_b32 s26, v1')
        A('v_and_b32 v1, 63, v0')
        if self.fastpro:
            A('s_cmp_ge_u32 s26, 8')
            A('s_cbranch_scc1 L_helper')
            A('s_cmp_ge_u32 s26, 4')
            A('s_cbranch_scc1 L_loader')
        A('s_cmp_lg_u32 s26, 0')
        A('s_cbranch_scc1 L_noinit')
        A(f'v_lshlrev_b32 v2, 2, v1')
        A(f'v_add_u32 v2, {FL}, v2')
        A('v_mov_b32 v3, 0')
        A('ds_write_b32 v2, v3')
        self.L('L_noinit')
        A('s_waitcnt lgkmcnt(0)')
        if self.fastpro:
            A('s_barrier')
            return
        if self.hfirst:
            A('s_cmp_ge_u32 s26, 8')
            A('s_cbranch_scc1 L_helper')
        A('s_barrier')
        if not self.hfirst:
            A('s_cmp_ge_u32 s26, 8')
            A('s_cbranch_scc1 L_helper')
        A('s_cmp_ge_u32 s26, 4')
        A('s_cbranch_scc1 L_loader')

    def loader(self):
        A, W = self.A, self.W
        self.L('L_loader')
        self.pending = []
        if 'noload' in self.exp:
            A('s_endpgm')
        A('s_sub_u32 s29, s26, 4')
        A('s_lshl_b32 s40, s27, 24')
        A('s_add_u32 s30, s6, s40')
        A('s_addc_u32 s31, s7, 0')
        A('s_add_u32 s32, s8, s40')
        A('s_addc_u32 s33, s9, 0')
        A('s_lshl_b32 s41, s28, 2')
        A('s_add_u32 s41, s41, s29')
        A(f's_mul_i32 s40, s27, {self.rot * 64}')
        A('s_add_u32 s41, s41, s40')
        A('s_and_b32 s41, s41, 4095')
        A(f's_mul_i32 s38, s29, {RING}')
        A('v_lshrrev_b32 v2, 4, v1')
        A('v_and_b32 v3, 15, v1')
        A('v_lshlrev_b32 v4, 1, v2')
        A('v_xor_b32 v3, v3, v4')
        A('v_lshlrev_b32 v3, 4, v3')
        A('v_lshl_add_u32 v6, v2, 8, v3')
        A('v_xor_b32 v7, 128, v6')
        A('s_lshl_b32 s40, s29, 2')
        A(f's_add_u32 s40, s40, {FL}')
        A('v_mov_b32 v8, s40')
        A('s_mov_b32 s35, 0')
        A('s_mov_b32 s39, 0')
        A('v_mov_b32 v10, 0')
        A('s_mov_b32 s60, 0')
        A('s_mov_b32 s61, 0')
        if 'noprio' not in self.exp:
            A('s_setprio 2')
        pub_pos = (W - 1) % 8
        pub_off = (pub_pos - W + 1) // 8

        def publish(val_sreg_or_expr):
            A(f'v_mov_b32 v9, {val_sreg_or_expr}')
            A('s_mov_b64 exec, 1')
            A('ds_write_b32 v8, v9')
            A('s_mov_b64 exec, -1')

        US = self.US
        A(f's_mul_i32 s44, s27, {self.rot * 64}')
        A('s_add_u32 s44, s44, s29')
        A(f's_add_u32 s44, s44, {US * 64}')
        A('v_mov_b32 v11, 0')
        A('v_mov_b32 v13, 0')
        self.L('L_ld_loop')
        for u in range(4):
            ok = self.lab('L_ld_ok')
            sp = self.lab('L_ld_spin')
            st = self.lab('L_ld_static')
            idok = self.lab('L_ld_idok')
            idsp = self.lab('L_ld_idspin')
            if self.stamps and u == 0:
                for q, nn in enumerate((4, 8, 16, 32, 48)):
                    l = self.lab('L_ld_st')
                    A(f's_cmp_lg_u32 s35, {nn}')
                    A(f's_cbranch_scc1 {l}')
                    self.stamp(16 + q)
                    self.L(l)
            A('s_waitcnt lgkmcnt(0)')
            A('v_readfirstlane_b32 s39, v10')
            A('v_readfirstlane_b32 s45, v11')
            if self.Wend:
                A('v_readfirstlane_b32 s47, v13')
            A(f's_cmp_lt_u32 s35, {US}')
            A(f's_cbranch_scc1 {st}')
            A('s_cmp_lg_u32 s45, 0')
            A(f's_cbranch_scc1 {idok}')
            if self.stamps:
                A('s_add_u32 s61, s61, 1')
            A('s_waitcnt vmcnt(0)')
            publish('s35')
            self.spin_begin(42)
            self.L(idsp)
            A('ds_read_b32 v11, v12')
            A('s_waitcnt lgkmcnt(0)')
            A('v_readfirstlane_b32 s45, v11')
            A('s_cmp_lg_u32 s45, 0')
            A(f's_cbranch_scc1 {idok}')
            self.spin_retry(42, idsp, sleep=1)
            A('s_branch L_ld_end')
            self.L(idok)
            A('s_cmp_eq_u32 s45, -1')
            A('s_cbranch_scc1 L_ld_end')
            A('s_sub_u32 s45, s45, 1')
            A('s_lshl_b32 s45, s45, 2')
            A('s_add_u32 s41, s45, s44')
            A('s_and_b32 s41, s41, 4095')
            self.L(st)
            A('s_add_u32 s40, s39, 3')
            A('s_cmp_ge_u32 s40, s35')
            A(f's_cbranch_scc1 {ok}')
            A('s_waitcnt vmcnt(0)')
            publish('s35')
            if self.stamps:
                A('s_add_u32 s60, s60, 1')
            self.spin_begin(42)
            self.L(sp)
            A('ds_read_b32 v10, v8 offset:16')
            A('s_waitcnt lgkmcnt(0)')
            A('v_readfirstlane_b32 s39, v10')
            A('s_add_u32 s40, s39, 3')
            A('s_cmp_ge_u32 s40, s35')
            A(f's_cbranch_scc1 {ok}')
            self.spin_retry(42, sp, sleep=1)
            self.L(ok)
            A('s_lshl_b32 s40, s41, 12')
            A('s_add_u32 s46, s35, 1')
            A(f's_sub_i32 s46, s46, {US}')
            A('s_max_i32 s46, s46, 0')
            A('s_lshl_b32 s46, s46, 2')
            A(f's_add_u32 s46, s46, {IDS}')
            A('v_mov_b32 v12, s46')
            def issue(Wx):
                pp = (Wx - 1) % 8
                po = (pp - Wx + 1) // 8
                for kv in range(2):
                    A(f's_add_u32 s36, s{30 + 2 * kv}, s40')
                    A(f's_addc_u32 s37, s{31 + 2 * kv}, 0')
                    A(f's_add_u32 m0, s38, {(2 * u + kv) * 4096}')
                    for jj in range(4):
                        A(f's_waitcnt vmcnt({Wx - 1})')
                        if kv * 4 + jj == pp:
                            skip = self.lab('L_ld_np')
                            if po < 0:
                                A(f's_cmp_lt_u32 s35, {-po}')
                                A(f's_cbranch_scc1 {skip}')
                                A(f's_sub_u32 s43, s35, {-po}')
                                publish('s43')
                                self.L(skip)
                            else:
                                publish('s35')
                        pol = ' nt'
                        if (kv == 1 and 'vplain' in self.exp) or (kv == 0 and 'kplain' in self.exp):
                            pol = ''
                        A(f'global_load_lds_dwordx4 v{6 + (jj & 1)}, s[36:37] offset:{jj * 1024}{pol}')
                        if self.earlyflags and kv == 1 and jj == 1:
                            A('ds_read_b32 v10, v8 offset:16')
                            A('ds_read_b32 v11, v12')
                            if self.Wend:
                                A('ds_read_b32 v13, v8 offset:48')
            if self.Wend:
                fast = self.lab('L_ld_fast')
                join = self.lab('L_ld_join')
                A('s_cmp_lg_u32 s47, 0')
                A(f's_cbranch_scc1 {fast}')
                issue(W)
                A(f's_branch {join}')
                self.L(fast)
                issue(self.Wend)
                self.L(join)
                if not self.earlyflags:
                    A('ds_read_b32 v13, v8 offset:48')
            else:
                issue(W)
            if not self.earlyflags:
                A('ds_read_b32 v10, v8 offset:16')
                A('ds_read_b32 v11, v12')
            A('s_add_u32 s41, s41, 64')
            A('s_and_b32 s41, s41, 4095')
            A('s_add_u32 s35, s35, 1')
        A('s_branch L_ld_loop')
        self.L('L_ld_end')
        A('s_waitcnt vmcnt(0)')
        A('s_or_b32 s43, s35, 0x80000000')
        publish('s43')
        A('s_waitcnt lgkmcnt(0)')
        if self.stamps:
            A('s_cmp_lg_u32 s26, 4')
            A('s_cbranch_scc1 L_ld_ns')
            self.stamp(8)
            self.flush_stamps(extra=[(9, 60), (21, 35), (22, 61)])
            self.L('L_ld_ns')
        A('s_endpgm')


    def loader_tk(self):
        A, W, US = self.A, self.W, self.US
        self.L('L_loader')
        self.pending = []
        if 'noload' in self.exp:
            A('s_endpgm')
        if 'coldprobe' in self.exp:
            A('s_branch L_cp0')
            self.L('L_cpback')
        A('s_sub_u32 s29, s26, 4')
        xt = 'xt4' in self.exp
        if xt:
            A('s_mov_b32 s30, s6')
            A('s_mov_b32 s31, s7')
            A('s_mov_b32 s32, s8')
            A('s_mov_b32 s33, s9')
            A('s_lshr_b32 s54, s27, 2')
            A(f's_mul_i32 s44, s54, {self.xrot}')
            A('s_and_b32 s40, s27, 3')
            A('s_lshl_b32 s41, s40, 4')
            A('s_add_u32 s41, s41, s28')
            A('s_lshl_b32 s41, s41, 2')
            A('s_add_u32 s49, s41, s44')
            A(f's_mul_i32 s40, s40, {(64 - US) * 64}')
            A('s_add_u32 s44, s44, s40')
            A(f's_add_u32 s44, s44, {(US - 48) * 256}')
            A('s_lshl_b32 s54, s54, 2')
            A('s_add_u32 s55, s54, 3')
            A('s_lshl_b32 s55, s55, 12')
        else:
            if not self.fastpro:
                A('s_lshl_b32 s40, s27, 24')
                A('s_add_u32 s30, s6, s40')
                A('s_addc_u32 s31, s7, 0')
                A('s_add_u32 s32, s8, s40')
                A('s_addc_u32 s33, s9, 0')
            A(f's_mul_i32 s44, s27, {self.rot * 64}')
            A('s_lshl_b32 s41, s28, 2')
            A('s_add_u32 s49, s41, s44')
            A(f's_add_u32 s44, s44, {US * 64}')
        A(f's_mul_i32 s38, s29, {RING}')
        A('v_lshrrev_b32 v2, 4, v1')
        A('v_and_b32 v3, 15, v1')
        A('v_lshlrev_b32 v4, 1, v2')
        A('v_xor_b32 v3, v3, v4')
        A('v_lshlrev_b32 v3, 4, v3')
        A('v_lshl_add_u32 v6, v2, 8, v3')
        A('v_xor_b32 v7, 128, v6')
        A('s_lshl_b32 s40, s29, 2')
        A(f's_add_u32 s40, s40, {FL}')
        A('v_mov_b32 v8, s40')
        A(f'v_mov_b32 v14, {FL}')
        A('v_mov_b32 v16, 1')
        if self.fastpro:
            A('s_add_u32 s41, s49, s29')
            A('s_and_b32 s41, s41, 4095')
            A('s_lshl_b32 s41, s41, 12')
            A('s_lshl_b32 s40, s27, 24')
            A('s_add_u32 s41, s41, s40')
            A('s_mov_b32 m0, s38')
            A('s_waitcnt lgkmcnt(0)')
        A('s_mov_b32 s35, 0')
        A('s_mov_b32 s46, s29')
        A('v_mov_b32 v10, 0')
        A('v_mov_b32 v11, 0')
        A('v_mov_b32 v13, 0')
        A(f'v_mov_b32 v12, {IDS}')
        A('v_mov_b32 v18, 0')
        A('v_mov_b32 v19, 0')
        if self.share2:
            for r in range(20, 24):
                A(f'v_mov_b32 v{r}, 0')
        A('s_mov_b32 s60, 0')
        A('s_mov_b32 s61, 0')
        A('s_setprio 2')

        def publish(val):
            A(f'v_mov_b32 v9, {val}')
            A('s_mov_b64 exec, 1')
            A('ds_write_b32 v8, v9')
            A('s_mov_b64 exec, -1')

        if self.fastpro:
            assert not xt and self.tk_pos >= 4 and (W - 1) % 8 >= 4
            A('s_add_u32 s36, s6, s41')
            A('s_addc_u32 s37, s7, 0')
            for jj in range(4):
                A(f'global_load_lds_dwordx4 v{6 + (jj & 1)}, s[36:37] offset:{jj * 1024} nt')
            A('s_add_u32 s30, s6, s40')
            A('s_addc_u32 s31, s7, 0')
            A('s_add_u32 s32, s8, s40')
            A('s_addc_u32 s33, s9, 0')
            A('s_sub_u32 s40, s41, s40')
            A('s_barrier')
            if self.stamps:
                self.stamp_at(28, 6)
            A('s_branch L_ld_first_v')
        elif self.stamps:
            self.stamp_at(28, 6)
        self.L('L_ld_loop')
        for u in range(4):
            ok = self.lab('L_ld_ok')
            sp = self.lab('L_ld_spin')
            st = self.lab('L_ld_static')
            adr = self.lab('L_ld_adr')
            idok = self.lab('L_ld_idok')
            idsp = self.lab('L_ld_idspin')
            if self.stamps:
                for q, nn in enumerate(self.prog_pts):
                    if nn % 4 != u:
                        continue
                    l = self.lab('L_ld_st')
                    A(f's_cmp_lg_u32 s35, {nn}')
                    A(f's_cbranch_scc1 {l}')
                    self.stamp_at(16 + q, q)
                    self.L(l)
            A('s_waitcnt lgkmcnt(0)')
            A('v_readfirstlane_b32 s39, v10')
            A('v_readfirstlane_b32 s45, v11')
            A('v_readfirstlane_b32 s47, v13')
            A('s_lshr_b32 s41, s46, 2')
            A('s_and_b32 s43, s46, 3')
            A(f's_cmp_lt_u32 s41, {US}')
            A(f's_cbranch_scc1 {st}')
            if self.share and self.share2:
                rdy = self.lab('L_ld_rdy')
                shsp = self.lab('L_ld_shspin')
                zb = self.lab('L_ld_zb')
                zrdy = self.lab('L_ld_zrdy')
                zsp = self.lab('L_ld_zspin')
                zf = self.lab('L_ld_zf')
                A('v_readfirstlane_b32 s45, v20')
                A('s_cmp_lg_u32 s45, 0')
                A(f's_cbranch_scc1 {rdy}')
                if self.stamps:
                    A('s_add_u32 s61, s61, 1')
                A('s_waitcnt vmcnt(0)')
                publish('s35')
                self.spin_begin(42)
                self.L(shsp)
                A(f'ds_read_b128 v[20:23], v12')
                A('s_waitcnt lgkmcnt(0)')
                A('v_readfirstlane_b32 s45, v20')
                A('s_cmp_lg_u32 s45, 0')
                A(f's_cbranch_scc1 {rdy}')
                self.spin_retry(42, shsp, sleep=1)
                A('s_branch L_ld_end')
                self.L(rdy)
                A('v_readfirstlane_b32 s52, v22')
                A(f's_sub_u32 s51, s46, {4 * US - 1}')
                A('s_cmp_ge_u32 s51, s45')
                A(f's_cbranch_scc1 {zb}')
                A('v_readfirstlane_b32 s50, v21')
                A('s_add_u32 s41, s50, s51')
                A('s_add_u32 s41, s41, s44')
                A(f's_branch {zf}')
                self.L(zb)
                A('s_cmp_lg_u32 s52, 0')
                A(f's_cbranch_scc1 {zrdy}')
                A(f'ds_read_b128 v[20:23], v12')
                A('s_waitcnt lgkmcnt(0)')
                A('v_readfirstlane_b32 s52, v22')
                A('s_cmp_lg_u32 s52, 0')
                A(f's_cbranch_scc1 {zrdy}')
                if self.stamps:
                    A('s_add_u32 s61, s61, 0x100')
                A('s_waitcnt vmcnt(0)')
                publish('s35')
                self.spin_begin(42)
                self.L(zsp)
                A(f'ds_read_b128 v[20:23], v12')
                A('s_waitcnt lgkmcnt(0)')
                A('v_readfirstlane_b32 s52, v22')
                A('s_cmp_lg_u32 s52, 0')
                A(f's_cbranch_scc1 {zrdy}')
                self.spin_retry(42, zsp, sleep=1)
                A('s_branch L_ld_end')
                self.L(zrdy)
                A('v_readfirstlane_b32 s50, v23')
                A('s_sub_u32 s41, s51, s45')
                A('s_add_u32 s41, s41, 1')
                A('s_cmp_ge_u32 s41, s52')
                A('s_cbranch_scc1 L_ld_end')
                A('s_add_u32 s41, s41, s50')
                A('s_add_u32 s41, s41, s44')
                A(f's_add_u32 s41, s41, {(self.UB - US) * 64}')
                self.L(zf)
                A('s_add_u32 s47, s45, s52')
                A(f's_add_u32 s51, s51, {self.xfast + 1}')
                A('s_cmp_ge_u32 s51, s47')
                A('s_cselect_b32 s47, 1, 0')
                A('s_cmp_eq_u32 s52, 0')
                A('s_cselect_b32 s47, 0, s47')
                A('s_sub_u32 s41, s41, 1')
                A('s_and_b32 s41, s41, 4095')
                if xt:
                    A('s_or_b32 s41, s41, s55')
                A(f's_branch {adr}_b')
            elif self.share:
                rdy = self.lab('L_ld_rdy')
                shsp = self.lab('L_ld_shspin')
                A('v_readfirstlane_b32 s45, v18')
                A('s_cmp_lg_u32 s45, 0')
                A(f's_cbranch_scc1 {rdy}')
                if self.stamps:
                    A('s_add_u32 s61, s61, 1')
                A('s_waitcnt vmcnt(0)')
                publish('s35')
                self.spin_begin(42)
                self.L(shsp)
                A(f'ds_read_b64 v[18:19], v12')
                A('s_waitcnt lgkmcnt(0)')
                A('v_readfirstlane_b32 s45, v18')
                A('s_cmp_lg_u32 s45, 0')
                A(f's_cbranch_scc1 {rdy}')
                self.spin_retry(42, shsp, sleep=1)
                A('s_branch L_ld_end')
                self.L(rdy)
                A('v_readfirstlane_b32 s50, v19')
                A(f's_sub_u32 s51, s46, {4 * US - 1}')
                A('s_cmp_ge_u32 s51, s45')
                A('s_cbranch_scc1 L_ld_end')
                A(f's_add_u32 s47, s51, {self.xfast}')
                A('s_cmp_ge_u32 s47, s45')
                A('s_cselect_b32 s47, 1, 0')
                A('s_add_u32 s41, s50, s51')
                A('s_add_u32 s41, s41, s44')
                A('s_sub_u32 s41, s41, 1')
                A('s_and_b32 s41, s41, 4095')
                if xt:
                    A('s_or_b32 s41, s41, s55')
                A(f's_branch {adr}_b')
            A('s_cmp_lg_u32 s45, 0')
            A(f's_cbranch_scc1 {idok}')
            if self.stamps:
                A('s_add_u32 s61, s61, 1')
            A('s_waitcnt vmcnt(0)')
            publish('s35')
            self.spin_begin(42)
            self.L(idsp)
            A('ds_read_b32 v11, v12')
            A('s_waitcnt lgkmcnt(0)')
            A('v_readfirstlane_b32 s45, v11')
            A('s_cmp_lg_u32 s45, 0')
            A(f's_cbranch_scc1 {idok}')
            self.spin_retry(42, idsp, sleep=1)
            A('s_branch L_ld_end')
            self.L(idok)
            A('s_cmp_eq_u32 s45, -1')
            A('s_cbranch_scc1 L_ld_end')
            A('s_sub_u32 s45, s45, 1')
            A('s_lshl_b32 s41, s45, 2')
            A('s_add_u32 s41, s41, s44')
            A(f's_branch {adr}')
            self.L(st)
            if xt:
                A('s_lshr_b32 s48, s41, 4')
                A('s_add_u32 s48, s48, s54')
                A('s_lshl_b32 s48, s48, 12')
                A('s_and_b32 s41, s41, 15')
                A('s_lshl_b32 s41, s41, 8')
            else:
                A('s_lshl_b32 s41, s41, 6')
            A('s_add_u32 s41, s41, s49')
            self.L(adr)
            A('s_add_u32 s41, s41, s43')
            A('s_and_b32 s41, s41, 4095')
            if xt:
                A('s_or_b32 s41, s41, s48')
            self.L(f'{adr}_b')
            A('s_add_u32 s40, s39, 3')
            A('s_cmp_ge_u32 s40, s35')
            A(f's_cbranch_scc1 {ok}')
            A('s_waitcnt vmcnt(0)')
            publish('s35')
            if self.stamps:
                A('s_add_u32 s60, s60, 1')
            self.spin_begin(42)
            self.L(sp)
            A('ds_read_b32 v10, v8 offset:16')
            A('s_waitcnt lgkmcnt(0)')
            A('v_readfirstlane_b32 s39, v10')
            A('s_add_u32 s40, s39, 3')
            A('s_cmp_ge_u32 s40, s35')
            A(f's_cbranch_scc1 {ok}')
            self.spin_retry(42, sp, sleep=1)
            self.L(ok)
            A('s_lshl_b32 s40, s41, 12')

            def issue(Wx):
                pp = (Wx - 1) % 8
                po = (pp - Wx + 1) // 8
                for kv in range(2):
                    if self.fastpro and u == 0 and kv == 1 and Wx == W:
                        self.L('L_ld_first_v')
                    A(f's_add_u32 s36, s{30 + 2 * kv}, s40')
                    A(f's_addc_u32 s37, s{31 + 2 * kv}, 0')
                    A(f's_add_u32 m0, s38, {(2 * u + kv) * 4096}')
                    for jj in range(4):
                        A(f's_waitcnt vmcnt({Wx - 1})')
                        if kv * 4 + jj == pp:
                            skip = self.lab('L_ld_np')
                            if po < 0:
                                A(f's_cmp_lt_u32 s35, {-po}')
                                A(f's_cbranch_scc1 {skip}')
                                A(f's_sub_u32 s43, s35, {-po}')
                                publish('s43')
                                self.L(skip)
                            else:
                                publish('s35')
                        A(f'global_load_lds_dwordx4 v{6 + (jj & 1)}, s[36:37] offset:{jj * 1024} nt')
                        if kv * 4 + jj == self.tk_pos:
                            A('s_mov_b64 exec, 1')
                            A('ds_add_rtn_u32 v15, v14, v16 offset:52')
                            A('s_mov_b64 exec, -1')
                        if kv * 4 + jj == self.tk_pos + 2:
                            A('s_waitcnt lgkmcnt(0)')
                            A('v_readfirstlane_b32 s46, v15')
                            A('s_add_u32 s46, s46, 4')
                            if self.share and self.pertau:
                                for q, row in enumerate((self.C0, self.C)):
                                    l = self.lab('L_ld_ts')
                                    A(f's_cmp_lg_u32 s46, {4 * row}')
                                    A(f's_cbranch_scc1 {l}')
                                    A('s_memrealtime s[52:53]')
                                    A('s_waitcnt lgkmcnt(0)')
                                    A('v_mov_b32 v20, s52')
                                    A('s_mov_b64 exec, 1')
                                    A(f'ds_write_b32 v14, v20 offset:{232 + 4 * q}')
                                    A('s_mov_b64 exec, -1')
                                    self.L(l)
                            A('s_lshr_b32 s48, s46, 2')
                            A(f's_sub_i32 s48, s48, {US}')
                            A('s_max_i32 s48, s48, 0')
                            A(f's_min_i32 s48, s48, {CAP + 1}')
                            A('s_lshl_b32 s48, s48, 2')
                            A(f's_add_u32 s48, s48, {IDS}')
                            A('ds_read_b32 v10, v8 offset:16')
                            if self.share and self.share2:
                                A('ds_read_b128 v[20:23], v12')
                            elif self.share:
                                A('ds_read_b64 v[18:19], v12')
                                if self.ffnboost:
                                    A('ds_read_b32 v13, v14 offset:48')
                            else:
                                A('v_mov_b32 v12, s48')
                                A('ds_read_b32 v11, v12')
                                A('ds_read_b32 v13, v14 offset:48')
            fast = self.lab('L_ld_fast')
            join = self.lab('L_ld_join')
            A('s_cmp_lg_u32 s47, 0')
            A(f's_cbranch_scc1 {fast}')
            if self.nstart > u:
                A(f's_cmp_lt_u32 s35, {self.nstart}')
                A(f's_cbranch_scc1 {fast}')
            issue(W)
            A(f's_branch {join}')
            self.L(fast)
            issue(self.Wend)
            self.L(join)
            A('s_add_u32 s35, s35, 1')
        A('s_branch L_ld_loop')
        self.L('L_ld_end')
        if not self.w2late and self.wo_by == 'loader' and 'nowo' not in self.exp:
            A('s_lshl_b32 s40, s27, 4')
            A('s_add_u32 s40, s40, s28')
            A('s_mul_i32 s40, s40, 18432')
            A('s_mul_i32 s41, s29, 5120')
            A('s_add_u32 s40, s40, s41')
            A('s_add_u32 s36, s12, s40')
            A('s_addc_u32 s37, s13, 0')
            A(f's_add_u32 s41, s41, {STG}')
            A('s_mov_b32 m0, s41')
            A('v_lshlrev_b32 v17, 4, v1')
            for i in range(3):
                A(f'global_load_lds_dwordx4 v17, s[36:37] offset:{1024 * i} nt')
            A('s_cmp_eq_u32 s29, 3')
            A('s_cbranch_scc1 L_ld_wo3')
            A('global_load_lds_dwordx4 v17, s[36:37] offset:3072 nt')
            A('s_add_u32 s36, s36, 4096')
            A('s_addc_u32 s37, s37, 0')
            A('s_add_u32 m0, s41, 4096')
            A('s_nop 0')
            A('global_load_lds_dwordx4 v17, s[36:37] nt')
            A('s_waitcnt vmcnt(5)')
            A('s_branch L_ld_wodn')
            self.L('L_ld_wo3')
            A('s_waitcnt vmcnt(3)')
            self.L('L_ld_wodn')
        else:
            if self.stage_end:
                A('s_waitcnt vmcnt(8)')
                A('s_sub_i32 s43, s35, 1')
                A('s_max_i32 s43, s43, 0')
                publish('s43')
            A('s_waitcnt vmcnt(0)')
        A('s_or_b32 s43, s35, 0x80000000')
        publish('s43')
        if not self.w2late and self.wo_by == 'loader':
            A('s_waitcnt lgkmcnt(0)')
            A('s_barrier')
            A('s_waitcnt vmcnt(0)')
            A('v_mov_b32 v9, 1')
            A('s_mov_b64 exec, 1')
            A('ds_write_b32 v8, v9 offset:240')
            A('s_mov_b64 exec, -1')
        A('s_waitcnt lgkmcnt(0)')
        if self.stamps:
            A('s_cmp_lg_u32 s26, 4')
            A('s_cbranch_scc1 L_ld_ns')
            while len(self.pending) < 5:
                self.pending.append(None)
            self.stamp(8)
            self.flush_stamps(extra=[(9, 60), (21, 35), (22, 61), (27, 90)])
            self.L('L_ld_ns')
        A('s_endpgm')

    def ids(self):
        A = self.A
        assert self.ffnmap == 'spread' and self.redmap == 'spread' and self.headmap == 'lin'
        A('s_and_b32 s40, s27, 1')
        A('s_lshl_b32 s96, s27, 2')
        A('s_and_b32 s41, s28, 3')
        A('s_add_u32 s96, s96, s41')
        A('s_xor_b32 s41, s40, 1')
        A('s_lshl_b32 s41, s41, 2')
        A('s_bfe_u32 s42, s27, 0x20001')
        A('s_add_u32 s41, s41, s42')
        A('s_add_u32 s97, s27, 64')
        A('s_cmp_lt_u32 s27, 8')
        A('s_cselect_b32 s97, s97, 255')
        A('s_cmp_eq_u32 s28, s41')
        A('s_cselect_b32 s97, s97, 255')
        A('s_lshr_b32 s41, s28, 2')
        A('s_cmp_eq_u32 s41, s40')
        A('s_cselect_b32 s96, s96, s97')
        A('s_mul_i32 s97, s27, 3')
        A('s_sub_u32 s40, s28, s97')
        A('s_and_b32 s40, s40, 7')
        A('s_add_u32 s97, s97, s40')
        A('s_cmp_lt_u32 s40, 3')
        A('s_cselect_b32 s97, s97, 255')
        A('s_cmp_ge_u32 s28, 8')
        A('s_cselect_b32 s97, s97, 255')

    def entry3(self):
        A = self.A
        if self.pads:
            A('s_branch L_pad_e')
            self.L('L_e1')
        if self.stamps:
            A('s_memrealtime s[90:91]')
        A('s_cmp_ge_u32 s2, 256')
        A('s_cbranch_scc1 L_end')
        A('s_load_dwordx16 s[4:19], s[0:1], 0')
        A('s_load_dwordx4 s[20:23], s[0:1], 64')
        A('s_load_dwordx2 s[24:25], s[0:1], 80')
        A('v_lshrrev_b32 v1, 6, v0')
        A('s_lshr_b32 s27, s2, 4')
        A('s_and_b32 s28, s2, 15')
        A('v_readfirstlane_b32 s26, v1')
        A('v_and_b32 v1, 63, v0')
        A('s_cmp_ge_u32 s26, 8')
        A('s_cbranch_scc1 L_helper')
        A('s_cmp_ge_u32 s26, 4')
        A('s_cbranch_scc1 L_ld0')
        A(f'v_lshlrev_b32 v2, 2, v1')
        A(f'v_add_u32 v2, {FL}, v2')
        A('v_mov_b32 v3, 0')
        A('ds_write_b32 v2, v3')
        A('s_waitcnt lgkmcnt(0)')
        A('s_barrier')
        A('s_branch L_cons1')
        self.L('L_ld0')

    def loader3(self):
        A, W, US = self.A, self.W, self.US
        assert self.share and self.share2 and self.stage_end and self.wo_by == 'w23' and not self.w2late
        assert self.tk_pos >= 4 and (W - 1) % 8 >= 4
        self.pending = []
        A('s_sub_u32 s29, s26, 4')
        A(f's_mul_i32 s44, s27, {self.rot * 64}')
        A('s_lshl_b32 s41, s28, 2')
        A('s_add_u32 s49, s41, s44')
        A('s_add_u32 s41, s49, s29')
        A('s_and_b32 s41, s41, 4095')
        A('s_lshl_b32 s41, s41, 12')
        A('s_lshl_b32 s40, s27, 24')
        A('s_add_u32 s41, s41, s40')
        A('s_lshl_b32 s38, s29, 15')
        A('s_mov_b32 m0, s38')
        A('v_lshrrev_b32 v2, 4, v1')
        A('v_and_b32 v3, 15, v1')
        A('v_lshlrev_b32 v4, 1, v2')
        A('v_xor_b32 v3, v3, v4')
        A('v_lshlrev_b32 v3, 4, v3')
        A('v_lshl_add_u32 v6, v2, 8, v3')
        A('v_xor_b32 v7, 128, v6')
        A('s_waitcnt lgkmcnt(0)')
        A('s_add_u32 s36, s6, s41')
        A('s_addc_u32 s37, s7, 0')
        for jj in range(4):
            A(f'global_load_lds_dwordx4 v{6 + (jj & 1)}, s[36:37] offset:{jj * 1024} nt')
        A('s_add_u32 s30, s6, s40')
        A('s_addc_u32 s31, s7, 0')
        A('s_add_u32 s32, s8, s40')
        A('s_addc_u32 s33, s9, 0')
        A('s_sub_u32 s40, s41, s40')
        A(f's_add_u32 s44, s44, {US * 64}')
        A('s_lshl_b32 s41, s29, 2')
        A(f's_add_u32 s41, s41, {FL}')
        A('v_mov_b32 v8, s41')
        A(f'v_mov_b32 v14, {FL}')
        A('v_mov_b32 v16, 1')
        A('s_mov_b32 s35, 0')
        A('s_mov_b32 s47, 0')
        A('v_mov_b32 v10, 0')
        A(f'v_mov_b32 v12, {IDS}')
        for r in range(20, 24):
            A(f'v_mov_b32 v{r}, 0')
        if self.stamps:
            A('s_mov_b32 s60, 0')
            A('s_mov_b32 s61, 0')
        A('s_setprio 2')
        if self.stamps:
            self.stamp_at(28, 6)
        A('s_barrier')
        A('s_branch L_ld_first_v')

        def publish(val):
            A(f'v_mov_b32 v9, {val}')
            A('s_mov_b64 exec, 1')
            A('ds_write_b32 v8, v9')
            A('s_mov_b64 exec, -1')

        def issue(u, Wx):
            pp = (Wx - 1) % 8
            po = (pp - Wx + 1) // 8
            for kv in range(2):
                if u == 0 and kv == 1 and Wx == W:
                    self.L('L_ld_first_v')
                A(f's_add_u32 s36, s{30 + 2 * kv}, s40')
                A(f's_addc_u32 s37, s{31 + 2 * kv}, 0')
                A(f's_add_u32 m0, s38, {(2 * u + kv) * 4096}')
                for jj in range(4):
                    A(f's_waitcnt vmcnt({Wx - 1})')
                    if kv * 4 + jj == pp:
                        skip = self.lab('L_ld_np')
                        if po < 0:
                            A(f's_cmp_lt_u32 s35, {-po}')
                            A(f's_cbranch_scc1 {skip}')
                            A(f's_sub_u32 s43, s35, {-po}')
                            publish('s43')
                            self.L(skip)
                        else:
                            publish('s35')
                    A(f'global_load_lds_dwordx4 v{6 + (jj & 1)}, s[36:37] offset:{jj * 1024} nt')
                    if kv * 4 + jj == self.tk_pos:
                        A('s_mov_b64 exec, 1')
                        A('ds_add_rtn_u32 v15, v14, v16 offset:52')
                        A('s_mov_b64 exec, -1')
                    if kv * 4 + jj == self.tk_pos + 2:
                        A('s_waitcnt lgkmcnt(0)')
                        A('v_readfirstlane_b32 s46, v15')
                        A('ds_read_b32 v10, v8 offset:16')
                        A('ds_read_b128 v[20:23], v12')
                        A('s_add_u32 s46, s46, 4')

        self.L('L_ld_loop')
        for u in range(4):
            if self.stamps:
                for q, nn in enumerate(self.prog_pts):
                    if nn % 4 != u:
                        continue
                    l = self.lab('L_ld_st')
                    A(f's_cmp_lg_u32 s35, {nn}')
                    A(f's_cbranch_scc1 {l}')
                    self.stamp_at(16 + q, q)
                    self.L(l)
            A('s_waitcnt lgkmcnt(0)')
            A('v_readfirstlane_b32 s39, v10')
            A('s_lshr_b32 s41, s46, 2')
            A('s_and_b32 s43, s46, 3')
            A(f's_cmp_ge_u32 s41, {US}')
            A(f's_cbranch_scc1 L_ld_sh{u}')
            A('s_lshl_b32 s41, s41, 6')
            A('s_add_u32 s41, s41, s49')
            A('s_add_u32 s41, s41, s43')
            A('s_and_b32 s41, s41, 4095')
            self.L(f'L_ld_adr{u}')
            A('s_add_u32 s40, s39, 3')
            A('s_cmp_lt_u32 s40, s35')
            A(f's_cbranch_scc1 L_ld_sp{u}')
            self.L(f'L_ld_ok{u}')
            A('s_lshl_b32 s40, s41, 12')
            A('s_cmp_lg_u32 s47, 0')
            A(f's_cbranch_scc1 L_ld_fast{u}')
            issue(u, W)
            self.L(f'L_ld_join{u}')
            A('s_add_u32 s35, s35, 1')
        A('s_branch L_ld_loop')
        for u in range(4):
            self.L(f'L_ld_sp{u}')
            A('s_waitcnt vmcnt(0)')
            publish('s35')
            if self.stamps:
                A('s_add_u32 s60, s60, 1')
            self.spin_begin(42)
            self.L(f'L_ld_spl{u}')
            A('ds_read_b32 v10, v8 offset:16')
            A('s_waitcnt lgkmcnt(0)')
            A('v_readfirstlane_b32 s39, v10')
            A('s_add_u32 s40, s39, 3')
            A('s_cmp_ge_u32 s40, s35')
            A(f's_cbranch_scc1 L_ld_ok{u}')
            self.spin_retry(42, f'L_ld_spl{u}', sleep=1)
            A(f's_branch L_ld_ok{u}')
        for u in range(4):
            rdy, shsp, zb, zrdy, zsp, zf = (f'L_ld_{x}{u}' for x in ('rdy', 'shspin', 'zb', 'zrdy', 'zspin', 'zf'))
            self.L(f'L_ld_sh{u}')
            A('v_readfirstlane_b32 s45, v20')
            A('s_cmp_lg_u32 s45, 0')
            A(f's_cbranch_scc1 {rdy}')
            if self.stamps:
                A('s_add_u32 s61, s61, 1')
            A('s_waitcnt vmcnt(0)')
            publish('s35')
            self.spin_begin(42)
            self.L(shsp)
            A(f'ds_read_b128 v[20:23], v12')
            A('s_waitcnt lgkmcnt(0)')
            A('v_readfirstlane_b32 s45, v20')
            A('s_cmp_lg_u32 s45, 0')
            A(f's_cbranch_scc1 {rdy}')
            self.spin_retry(42, shsp, sleep=1)
            A('s_branch L_ld_end')
            self.L(rdy)
            A('v_readfirstlane_b32 s52, v22')
            A(f's_sub_u32 s51, s46, {4 * US - 1}')
            A('s_cmp_ge_u32 s51, s45')
            A(f's_cbranch_scc1 {zb}')
            A('v_readfirstlane_b32 s50, v21')
            A('s_add_u32 s41, s50, s51')
            A('s_add_u32 s41, s41, s44')
            A(f's_branch {zf}')
            self.L(zb)
            A('s_cmp_lg_u32 s52, 0')
            A(f's_cbranch_scc1 {zrdy}')
            A(f'ds_read_b128 v[20:23], v12')
            A('s_waitcnt lgkmcnt(0)')
            A('v_readfirstlane_b32 s52, v22')
            A('s_cmp_lg_u32 s52, 0')
            A(f's_cbranch_scc1 {zrdy}')
            if self.stamps:
                A('s_add_u32 s61, s61, 0x100')
            A('s_waitcnt vmcnt(0)')
            publish('s35')
            self.spin_begin(42)
            self.L(zsp)
            A(f'ds_read_b128 v[20:23], v12')
            A('s_waitcnt lgkmcnt(0)')
            A('v_readfirstlane_b32 s52, v22')
            A('s_cmp_lg_u32 s52, 0')
            A(f's_cbranch_scc1 {zrdy}')
            self.spin_retry(42, zsp, sleep=1)
            A('s_branch L_ld_end')
            self.L(zrdy)
            A('v_readfirstlane_b32 s50, v23')
            A('s_sub_u32 s41, s51, s45')
            A('s_add_u32 s41, s41, 1')
            A('s_cmp_ge_u32 s41, s52')
            A('s_cbranch_scc1 L_ld_end')
            A('s_add_u32 s41, s41, s50')
            A('s_add_u32 s41, s41, s44')
            A(f's_add_u32 s41, s41, {(self.UB - US) * 64}')
            self.L(zf)
            A('s_add_u32 s47, s45, s52')
            A(f's_add_u32 s51, s51, {self.xfast + 1}')
            A('s_cmp_ge_u32 s51, s47')
            A('s_cselect_b32 s47, 1, 0')
            A('s_cmp_eq_u32 s52, 0')
            A('s_cselect_b32 s47, 0, s47')
            A('s_sub_u32 s41, s41, 1')
            A('s_and_b32 s41, s41, 4095')
            A(f's_branch L_ld_adr{u}')
        for u in range(4):
            self.L(f'L_ld_fast{u}')
            issue(u, self.Wend)
            A(f's_branch L_ld_join{u}')
        self.L('L_ld_end')
        A('s_waitcnt vmcnt(8)')
        A('s_sub_i32 s43, s35, 1')
        A('s_max_i32 s43, s43, 0')
        publish('s43')
        A('s_waitcnt vmcnt(0)')
        A('s_or_b32 s43, s35, 0x80000000')
        publish('s43')
        A('s_waitcnt lgkmcnt(0)')
        if self.stamps:
            A('s_cmp_lg_u32 s26, 4')
            A('s_cbranch_scc1 L_ld_ns')
            while len(self.pending) < 5:
                self.pending.append(None)
            self.stamp(8)
            self.flush_stamps(extra=[(9, 60), (21, 35), (22, 61), (27, 90)])
            self.L('L_ld_ns')
        A('s_endpgm')

    def cons0(self):
        A = self.A
        self.L('L_cons1')
        if self.pads:
            self.o.append('@CHAIN')
        self.ids()


    def poll(self, name, loads, checks, sleep, allmask='-1', sr=60, probe=True):
        A = self.A
        inv, n, sw, cnt = sr, sr + 2, sr + 3, sr + 4
        if allmask == '-1':
            A(f's_mov_b64 s[{inv}:{inv+1}], -1')
        else:
            A(f's_mov_b64 s[{inv}:{inv+1}], {allmask}')
        A(f's_mov_b32 s{sw}, 1')
        A(f's_mov_b32 s{cnt}, {SPIN}')
        self.L(f'{name}_loop')
        A(f's_bcnt1_i32_b64 s{n}, s[{inv}:{inv+1}]')
        A(f's_cmp_le_u32 s{n}, {8 if probe else 64}')
        A(f's_cselect_b32 s{sw}, 1, s{sw}')
        A(f's_mov_b64 exec, s[{inv}:{inv+1}]')
        A(f's_cmp_lg_u32 s{sw}, 0')
        A(f's_cbranch_scc1 {name}_go')
        A(f's_ff1_i32_b64 s{n}, s[{inv}:{inv+1}]')
        A(f's_lshl_b64 exec, 1, s{n}')
        self.L(f'{name}_go')
        for l in loads:
            A(l)
        A('s_waitcnt vmcnt(0)')
        acc = checks()
        A(f'v_cmp_eq_u32 vcc, 0, v{acc}')
        A(f's_andn2_b64 s[{inv}:{inv+1}], s[{inv}:{inv+1}], vcc')
        A(f's_cmp_lg_u64 vcc, 0')
        A(f's_cselect_b32 s{n}, 1, 0')
        A(f's_xor_b32 s{sw}, s{sw}, 1')
        A(f's_and_b32 s{sw}, s{sw}, s{n}')
        A('s_mov_b64 exec, -1')
        A(f's_cmp_eq_u64 s[{inv}:{inv+1}], 0')
        A(f's_cbranch_scc1 {name}_done')
        if self.fastpoll:
            A(f's_bcnt1_i32_b64 s{n}, s[{inv}:{inv+1}]')
            A(f's_cmp_le_u32 s{n}, 8')
            A(f's_cbranch_scc1 {name}_ns')
        A(f's_sleep {sleep}')
        if self.fastpoll:
            self.L(f'{name}_ns')
        A(f's_sub_u32 s{cnt}, s{cnt}, 1')
        A(f's_cmp_lg_u32 s{cnt}, 0')
        A(f's_cbranch_scc1 {name}_loop')
        self.L(f'{name}_done')


    def poll2(self, name, mk_loads, basesA, basesB, acc, tmp, sleep, sr=60, stag=4, thresh=16, more=()):
        A = self.A
        inv, n, sw, cnt = sr, sr + 2, sr + 3, sr + 4
        nl = len(basesA)
        sets = [basesA, basesB] + list(more)
        A(f's_mov_b64 s[{inv}:{inv+1}], -1')
        A(f's_mov_b32 s{sw}, 1')
        A(f's_mov_b32 s{cnt}, {SPIN}')
        self.L(f'{name}_loop')
        A(f's_mov_b64 exec, s[{inv}:{inv+1}]')
        A(f's_cmp_lg_u32 s{sw}, 0')
        A(f's_cbranch_scc1 {name}_go')
        A(f's_ff1_i32_b64 s{n}, s[{inv}:{inv+1}]')
        A(f's_lshl_b64 exec, 1, s{n}')
        self.L(f'{name}_go')
        for l in mk_loads(basesA):
            A(l)
        A('s_waitcnt vmcnt(0)')
        self.chk3(basesA, acc, tmp)
        A(f'v_cmp_eq_u32 vcc, 0, v{acc}')
        A(f's_andn2_b64 s[{inv}:{inv+1}], s[{inv}:{inv+1}], vcc')
        A(f's_cmp_lg_u64 vcc, 0')
        A(f's_cselect_b32 s{n}, 1, 0')
        A(f's_xor_b32 s{sw}, s{sw}, 1')
        A(f's_and_b32 s{sw}, s{sw}, s{n}')
        A('s_mov_b64 exec, -1')
        A(f's_cmp_eq_u64 s[{inv}:{inv+1}], 0')
        A(f's_cbranch_scc1 {name}_done')
        A(f's_bcnt1_i32_b64 s{n}, s[{inv}:{inv+1}]')
        A(f's_cmp_le_u32 s{n}, {thresh}')
        A(f's_cbranch_scc1 {name}_p2')
        A(f's_sleep {sleep}')
        A(f's_sub_u32 s{cnt}, s{cnt}, 1')
        A(f's_cmp_lg_u32 s{cnt}, 0')
        A(f's_cbranch_scc1 {name}_loop')
        A(f's_branch {name}_done')
        self.L(f'{name}_p2')
        A(f's_mov_b64 exec, s[{inv}:{inv+1}]')
        for k, X in enumerate(sets):
            if k:
                A(f's_sleep {stag}')
            for l in mk_loads(X):
                A(l)
        self.L(f'{name}_p2l')
        for X in sets:
            A(f's_waitcnt vmcnt({nl * (len(sets) - 1)})')
            self.chk3(X, acc, tmp)
            A(f'v_cmp_eq_u32 vcc, 0, v{acc}')
            A(f's_and_b64 vcc, vcc, s[{inv}:{inv+1}]')
            if X is not basesA:
                A('s_mov_b64 exec, vcc')
                for bA, bB in zip(basesA, X):
                    for r in range(3):
                        A(f'v_mov_b32 v{bA + r}, v{bB + r}')
            A(f's_andn2_b64 s[{inv}:{inv+1}], s[{inv}:{inv+1}], vcc')
            A(f's_cmp_eq_u64 s[{inv}:{inv+1}], 0')
            A(f's_cbranch_scc1 {name}_done')
            A(f's_mov_b64 exec, s[{inv}:{inv+1}]')
            for l in mk_loads(X):
                A(l)
        A(f's_sub_u32 s{cnt}, s{cnt}, 1')
        A(f's_cmp_lg_u32 s{cnt}, 0')
        A(f's_cbranch_scc1 {name}_p2l')
        self.L(f'{name}_done')
        A('s_mov_b64 exec, -1')

    def pollm(self, name, mk_loads, sets, acc, stag, invs, anyr=60, first=True):
        A = self.A
        nl = len(sets[0])
        cnt = anyr + 4
        for iv in invs:
            A(f's_mov_b64 s[{iv}:{iv+1}], -1')
        A(f's_mov_b32 s{cnt}, {SPIN}')

        def check(X):
            for i, (b, iv) in enumerate(zip(X, invs)):
                A(f's_mov_b64 exec, s[{iv}:{iv+1}]')
                A(f'v_bitop3_b32 v{acc}, v{b}, v{b+1}, v{b+2} bitop3:0x96')
                A(f'v_bitop3_b32 v{acc}, v{acc}, v{b+3}, s29 bitop3:0x96')
                A(f'v_cmp_eq_u32 vcc, 0, v{acc}')
                A(f's_andn2_b64 s[{iv}:{iv+1}], s[{iv}:{iv+1}], vcc')
                if X is not sets[0]:
                    A('s_mov_b64 exec, vcc')
                    for r in range(3):
                        A(f'v_mov_b32 v{sets[0][i] + r}, v{b + r}')
            A(f's_or_b64 s[{anyr}:{anyr+1}], s[{invs[0]}:{invs[0]+1}], s[{invs[1]}:{invs[1]+1}]')
            for iv in invs[2:]:
                A(f's_or_b64 s[{anyr}:{anyr+1}], s[{anyr}:{anyr+1}], s[{iv}:{iv+1}]')
            A(f's_cbranch_scc0 {name}_done')

        def issue(X):
            for l, iv in zip(mk_loads(X), invs):
                A(f's_cmp_eq_u64 s[{iv}:{iv+1}], 0')
                A(f's_cselect_b64 exec, 1, s[{iv}:{iv+1}]')
                A(l)

        if first and len(sets) > 1:
            for l in mk_loads(sets[0]):
                A(l)
            A('s_waitcnt vmcnt(0)')
            check(sets[0])
            for k, X in enumerate(sets):
                if k:
                    A(f's_sleep {stag}')
                issue(X)
        else:
            for k, X in enumerate(sets):
                if k:
                    A(f's_sleep {stag}')
                for l in mk_loads(X):
                    A(l)
        self.L(f'{name}_loop')
        for X in sets:
            A(f's_waitcnt vmcnt({nl * (len(sets) - 1)})')
            check(X)
            issue(X)
        A(f's_sub_u32 s{cnt}, s{cnt}, 1')
        A(f's_cmp_lg_u32 s{cnt}, 0')
        A(f's_cbranch_scc1 {name}_loop')
        self.L(f'{name}_done')
        A('s_mov_b64 exec, -1')

    def chk3(self, groups, acc, tmp, tag=29):
        A = self.A
        for n, b in enumerate(groups):
            d = acc if n == 0 else tmp
            A(f'v_bitop3_b32 v{d}, v{b}, v{b+1}, v{b+2} bitop3:0x96')
            A(f'v_bitop3_b32 v{d}, v{d}, v{b+3}, s{tag} bitop3:0x96')
            if n:
                A(f'v_or_b32 v{acc}, v{acc}, v{tmp}')
        return acc

    def mkchk(self, b, tag=29):
        self.A(f'v_bitop3_b32 v{b+3}, v{b}, v{b+1}, v{b+2} bitop3:0x96')
        self.A(f'v_xor_b32 v{b+3}, s{tag}, v{b+3}')

    def cstamp(self, idx):
        self.stamp(idx)

    def cflush(self):
        if self.stamps:
            l = self.lab('L_nf')
            self.A('s_cmp_lg_u32 s26, 0')
            self.A(f's_cbranch_scc1 {l}')
            self.flush_stamps()
            self.L(l)

    def consumer(self):
        A = self.A
        self.pending = []
        KA, VA, FA = 2, 6, 14
        Q, O, KF, VF, S = 16, 32, 64, 80, 96
        MC, LS = 100, 101
        T = 102
        P = 118
        A(f's_mul_i32 s38, s26, {RING}')
        A('v_and_b32 v20, 15, v1')
        A('v_lshrrev_b32 v21, 4, v1')
        A('v_and_b32 v22, 7, v20')
        A('v_lshlrev_b32 v22, 1, v22')
        A('v_lshlrev_b32 v23, 8, v20')
        A('v_add_u32 v23, s38, v23')
        for i in range(4):
            A(f'v_add_u32 v24, {4 * i}, v21')
            A('v_xor_b32 v24, v24, v22')
            A(f'v_lshl_add_u32 v{KA + i}, v24, 4, v23')
        A('v_lshrrev_b32 v22, 2, v20')
        A('v_lshl_add_u32 v22, v21, 2, v22')
        A('v_and_b32 v24, 7, v22')
        A('v_lshlrev_b32 v23, 8, v22')
        A('v_add_u32 v23, s38, v23')
        A('v_and_b32 v25, 3, v20')
        A('v_lshl_add_u32 v23, v25, 3, v23')
        for m in range(8):
            A(f'v_xor_b32 v25, {m}, v24')
            A(f'v_lshl_add_u32 v{VA + m}, v25, 5, v23')
        A('s_lshl_b32 s40, s26, 2')
        A(f's_add_u32 s40, s40, {FL}')
        A(f'v_mov_b32 v{FA}, s40')
        for r in range(32):
            A(f'v_mov_b32 v{O + r}, 0')
        A(f'v_mov_b32 v{MC}, 0xff800000')
        A(f'v_mov_b32 v{LS}, 0')
        A(f's_mov_b32 s44, {LOG2E}')
        KB, VB = 128, 144
        def wait_full(done_label):
            go = self.lab('L_c_go')
            pl = self.lab('L_c_poll')
            A('s_and_b32 s40, s39, 0x7fffffff')
            A('s_cmp_gt_u32 s40, s35')
            A(f's_cbranch_scc1 {go}')
            self.spin_begin(42)
            self.L(pl)
            A(f'ds_read_b32 v{T}, v{FA}')
            A('s_waitcnt lgkmcnt(0)')
            A(f'v_readfirstlane_b32 s39, v{T}')
            A('s_and_b32 s40, s39, 0x7fffffff')
            A('s_cmp_gt_u32 s40, s35')
            A(f's_cbranch_scc1 {go}')
            A('s_cmp_lt_i32 s39, 0')
            A(f's_cbranch_scc1 {done_label}')
            self.spin_retry(42, pl, sleep=1)
            A(f's_branch {done_label}')
            self.L(go)
        def reads(u, kf, vf):
            for i in range(4):
                A(f'ds_read_b128 v[{kf + 4*i}:{kf + 4*i + 3}], v{KA + i} offset:{(2*u) * 4096}')
            for m in range(8):
                A(f'ds_read_b64_tr_b16 v[{vf + 2*m}:{vf + 2*m + 1}], v{VA + m} offset:{(2*u + 1) * 4096}')
            A('s_add_u32 s35, s35, 1')
        def qk(kf):
            for i in range(4):
                c = '0' if i == 0 else f'v[{S}:{S+3}]'
                A(f'v_mfma_f32_16x16x32_bf16 v[{S}:{S+3}], v[{kf + 4*i}:{kf + 4*i + 3}], v[{Q + 4*i}:{Q + 4*i + 3}], {c}')
        def free():
            A(f'v_mov_b32 v{T}, s35')
            A('s_waitcnt lgkmcnt(0)')
            A('s_mov_b64 exec, 1')
            A(f'ds_write_b32 v{FA}, v{T} offset:16')
            A('s_mov_b64 exec, -1')
        def softmax_pv(vf):
            nr = self.lab('L_c_nr')
            A(f'v_cvt_pk_bf16_f32 v{T}, v{S}, v{S+1}')
            A(f'v_cvt_pk_bf16_f32 v{T+1}, v{S+2}, v{S+3}')
            A(f'v_lshlrev_b32 v{T+2}, 16, v{T}')
            A(f'v_and_b32 v{T+3}, 0xffff0000, v{T}')
            A(f'v_lshlrev_b32 v{T+4}, 16, v{T+1}')
            A(f'v_and_b32 v{T+5}, 0xffff0000, v{T+1}')
            for r in range(4):
                A(f'v_mul_f32 v{T+2+r}, {SCALE:#x}, v{T+2+r}')
            A(f'v_cvt_pk_bf16_f32 v{T}, v{T+2}, v{T+3}')
            A(f'v_cvt_pk_bf16_f32 v{T+1}, v{T+4}, v{T+5}')
            A(f'v_lshlrev_b32 v{T+2}, 16, v{T}')
            A(f'v_and_b32 v{T+3}, 0xffff0000, v{T}')
            A(f'v_lshlrev_b32 v{T+4}, 16, v{T+1}')
            A(f'v_and_b32 v{T+5}, 0xffff0000, v{T+1}')
            A(f'v_max3_f32 v{T+6}, v{T+2}, v{T+3}, v{T+4}')
            A(f'v_max_f32 v{T+6}, v{T+6}, v{T+5}')
            A(f'v_mul_f32 v{T+6}, s44, v{T+6}')
            A(f'v_cmp_gt_f32 vcc, v{T+6}, v{MC}')
            A(f's_cbranch_vccz {nr}')
            self.xrow('v_max_f32', T + 6, T + 7)
            A(f'v_max_f32 v{T+6}, v{T+6}, v{MC}')
            A(f'v_sub_f32 v{T+7}, v{MC}, v{T+6}')
            A(f'v_exp_f32 v{T+7}, v{T+7}')
            A(f'v_mov_b32 v{MC}, v{T+6}')
            A(f'v_mul_f32 v{LS}, v{LS}, v{T+7}')
            for r in range(32):
                A(f'v_mul_f32 v{O + r}, v{O + r}, v{T+7}')
            self.L(nr)
            for r in range(4):
                A(f'v_fma_f32 v{T+2+r}, v{T+2+r}, s44, -v{MC}')
            for r in range(4):
                A(f'v_exp_f32 v{T+2+r}, v{T+2+r}')
            A('s_nop 0')
            A(f'v_cvt_pk_bf16_f32 v{P}, v{T+2}, v{T+3}')
            A(f'v_cvt_pk_bf16_f32 v{P+1}, v{T+4}, v{T+5}')
            A(f'v_add_f32 v{T+2}, v{T+2}, v{T+3}')
            A(f'v_add_f32 v{T+4}, v{T+4}, v{T+5}')
            A(f'v_add_f32 v{LS}, v{LS}, v{T+2}')
            A(f'v_add_f32 v{LS}, v{LS}, v{T+4}')
            for m in range(8):
                A(f'v_mfma_f32_16x16x16_bf16 v[{O + 4*m}:{O + 4*m + 3}], v[{vf + 2*m}:{vf + 2*m + 1}], v[{P}:{P+1}], v[{O + 4*m}:{O + 4*m + 3}]')

        A('v_lshlrev_b32 v123, 9, v20')
        A('v_lshl_add_u32 v123, v21, 4, v123')
        A('s_lshl_b32 s40, s26, 10')
        A(f's_add_u32 s40, s40, {OC}')
        A('v_add_u32 v123, s40, v123')
        A('s_lshl_b32 s40, s26, 4')
        A(f's_add_u32 s40, s40, {OCML}')
        A('v_lshlrev_b32 v124, 3, v20')
        A('v_add_u32 v124, s40, v124')
        A('s_lshl_b32 s40, s26, 6')
        A('v_add_u32 v122, s40, v1')
        A('v_lshrrev_b32 v125, 3, v122')
        A('v_lshlrev_b32 v125, 6, v125')
        A('v_and_b32 v122, 7, v122')
        A('v_mul_u32_u24 v122, 12, v122')
        A('v_add_u32 v125, v125, v122')
        A(f'v_add_u32 v125, {OC}, v125')
        A('s_mov_b32 s35, 0')
        A('s_mov_b32 s39, 0')
        A(f'v_and_b32 v15, 1, v20')
        A(f'v_lshlrev_b32 v15, 8, v15')
        A(f'v_lshl_add_u32 v15, v21, 4, v15')
        A(f'v_add_u32 v15, {QL}, v15')
        if self.preread and 'noload' not in self.exp:
            wait_full('L_c_done')
            reads(0, KF, VF)
            free()
            wait_full('L_c_done')
            reads(1, KB, VB)
            free()
        A(f'v_mov_b32 v{T}, {FL}')
        self.spin_begin(42)
        self.L('L_c_qwait')
        A(f'ds_read_b32 v{T+2}, v{T} offset:32')
        A('s_waitcnt lgkmcnt(0)')
        A(f'v_readfirstlane_b32 s40, v{T+2}')
        A('s_cmp_lg_u32 s40, 0')
        A('s_cbranch_scc1 L_c_qok')
        if 'noq' in self.exp:
            A('s_branch L_c_qok')
        self.spin_retry(42, 'L_c_qwait', sleep=2)
        self.L('L_c_qok')
        for i in range(4):
            A(f'ds_read_b128 v[{Q + 4*i}:{Q + 4*i + 3}], v15 offset:{64 * i}')
        A('s_waitcnt lgkmcnt(0)')
        self.cstamp(1)
        if 'noload' in self.exp:
            self.cflush()
            A('s_endpgm')
        if self.preread:
            qk(KF)
            A('s_nop 7')
            softmax_pv(VF)
            qk(KB)
            A('s_nop 7')
            softmax_pv(VB)
            A('s_branch L_c_u2')
        self.L('L_c_loop')
        for u in range(4):
            if u == 2:
                self.L('L_c_u2')
            wait_full('L_c_done')
            reads(u, KF, VF)
            A('s_waitcnt lgkmcnt(8)')
            qk(KF)
            free()
            A('s_nop 3')
            softmax_pv(VF)
        A('s_branch L_c_loop')
        self.L('L_c_done')

        self.cstamp(2)
        if 'notail' in self.exp:
            self.cflush()
            A('s_endpgm')
        A('s_mov_b32 s46, 0x00030003')
        A('s_mov_b32 s47, 0x00030003')
        A('s_mov_b64 exec, s[46:47]')
        for m in range(8):
            A(f'ds_write_b128 v123, v[{O + 4*m}:{O + 4*m + 3}] offset:{64 * m}')
        A('s_mov_b64 exec, -1')
        self.xrow('v_add_f32', LS, T)
        A('s_mov_b64 exec, 3')
        A(f'ds_write_b64 v124, v[{MC}:{LS}]')
        A('s_mov_b64 exec, -1')
        A(f'v_mov_b32 v{T+3}, {FL}')
        A(f'ds_read_b32 v68, v{T+3} offset:36')
        A('s_lshl_b32 s51, s27, 4')
        A('s_add_u32 s51, s51, s28')
        A('s_waitcnt lgkmcnt(0)')
        A('s_barrier')
        A('v_readfirstlane_b32 s29, v68')
        A('s_cmp_ge_u32 s26, 2')
        A('s_cbranch_scc1 L_c_nopub')
        A('s_lshl_b32 s45, s26, 3')
        A(f's_add_u32 s45, s45, {OCML}')
        A(f'v_mov_b32 v{T+2}, s45')
        for k in range(4):
            A(f'ds_read_b64 v[{70 + 2*k}:{71 + 2*k}], v{T+2} offset:{16 * k}')
        for k in range(4):
            for i in range(3):
                A(f'ds_read_b32 v{32 + 4*i + k}, v125 offset:{1024 * k + 4 * i}')
        A('s_lshl_b32 s45, s51, 11')
        A(f's_add_u32 s45, s45, {WS_P}')
        A('s_add_u32 s48, s24, s45')
        A('s_addc_u32 s49, s25, 0')
        A('s_lshl_b32 s40, s26, 10')
        A(f'v_lshlrev_b32 v{T+3}, 4, v1')
        A(f'v_add_u32 v{T+3}, s40, v{T+3}')
        A('s_mov_b32 s46, 0x20202020')
        A('s_mov_b32 s47, 0x20202020')
        A('s_waitcnt lgkmcnt(12)')
        A('v_max3_f32 v80, v70, v72, v74')
        A('v_max_f32 v80, v80, v76')
        for k in range(4):
            A(f'v_sub_f32 v{82 + k}, v{70 + 2*k}, v80')
        for k in range(4):
            A(f'v_exp_f32 v{82 + k}, v{82 + k}')
        A('s_nop 0')
        A('v_mul_f32 v81, v71, v82')
        for k in range(1, 4):
            A(f'v_fmac_f32 v81, v{71 + 2*k}, v{82 + k}')
        A('s_waitcnt lgkmcnt(0)')
        for i in range(3):
            A(f'v_mul_f32 v{88 + i}, v{32 + 4*i}, v82')
        for k in range(1, 4):
            for i in range(3):
                A(f'v_fmac_f32 v{88 + i}, v{32 + 4*i + k}, v{82 + k}')
        A('v_cndmask_b32 v89, v89, v80, s[46:47]')
        A('v_cndmask_b32 v90, v90, v81, s[46:47]')
        self.mkchk(88)
        A(f'global_store_dwordx4 v{T+3}, v[88:91], s[48:49] sc1')
        if self.wo_delay:
            A('s_lshl_b32 s45, s26, 2')
            A(f's_add_u32 s45, s45, {FL + 56}')
            A(f'v_mov_b32 v{T+1}, s45')
            A(f'v_mov_b32 v{T}, 1')
            A('s_mov_b64 exec, 1')
            A(f'ds_write_b32 v{T+1}, v{T}')
            A('s_mov_b64 exec, -1')
        self.cstamp(3)
        if self.flate is True:
            A(f's_cmp_ge_u32 s96, {NFFN}')
            A('s_cbranch_scc1 L_c_nofp')
            A('s_mul_i32 s45, s26, 1536')
            A('v_lshlrev_b32 v30, 4, v1')
            A('v_add_u32 v30, s45, v30')
            A(f'v_add_u32 v31, {FB}, v30')
            A('ds_read_b128 v[32:35], v31')
            A('ds_read_b128 v[36:39], v31 offset:1024')
            A('s_mul_i32 s45, s96, 3072')
            A(f's_add_u32 s45, s45, {WS_F}')
            A('s_add_u32 s56, s24, s45')
            A('s_addc_u32 s57, s25, 0')
            A('s_waitcnt lgkmcnt(0)')
            A('global_store_dwordx4 v30, v[32:35], s[56:57] sc1')
            A('s_mov_b32 s46, -1')
            A('s_mov_b32 s47, 0')
            A('s_mov_b64 exec, s[46:47]')
            A('global_store_dwordx4 v30, v[36:39], s[56:57] offset:1024 sc1')
            A('s_mov_b64 exec, -1')
            A('s_branch L_c_pubdone')
            self.L('L_c_nofp')
            A(f's_cmp_ge_u32 s97, {NRED}')
            A('s_cbranch_scc1 L_c_pubdone')
            A(f's_cmp_lg_u32 s26, {self.fwave}')
            A('s_cbranch_scc1 L_c_pubdone')
            self.f_gather('L_c_f', sleep=self.fsleep, probe=False)
        A('s_branch L_c_pubdone')
        self.L('L_c_nopub')
        if self.w2late == 'after':
            A(f'v_lshlrev_b32 v{T}, 4, v1')
            A('s_sub_u32 s45, s26, 2')
            A('s_mul_i32 s40, s51, 18432')
            A('s_mul_i32 s58, s45, 9216')
            A('s_add_u32 s40, s40, s58')
            A('s_add_u32 s48, s12, s40')
            A('s_addc_u32 s49, s13, 0')
            A(f's_add_u32 s58, s58, {STG}')
            for i in range(9):
                if i % 4 == 0:
                    A(f's_add_u32 m0, s58, {1024 * i}')
                    A('s_nop 0')
                A(f'global_load_lds_dwordx4 v{T}, s[48:49] offset:{1024 * (i % 4)} nt')
                if i % 4 == 3:
                    A('s_add_u32 s48, s48, 4096')
                    A('s_addc_u32 s49, s49, 0')
            A('s_mul_i32 s40, s51, 20736')
            A('s_mul_i32 s58, s45, 11264')
            A('s_add_u32 s40, s40, s58')
            A('s_add_u32 s48, s18, s40')
            A('s_addc_u32 s49, s19, 0')
            A(f's_add_u32 s58, s58, {W2S}')
            for i in range(11):
                if i % 4 == 0:
                    A(f's_add_u32 m0, s58, {1024 * i}')
                    A('s_nop 0')
                if i == 9:
                    A('s_cmp_eq_u32 s45, 0')
                    A('s_cselect_b64 s[46:47], -1, 0xffff')
                    A('s_mov_b64 exec, s[46:47]')
                if i == 10:
                    A('s_mov_b64 exec, -1')
                    A('s_cmp_lg_u32 s45, 0')
                    A('s_cbranch_scc1 L_c_w2x')
                A(f'global_load_lds_dwordx4 v{T}, s[48:49] offset:{1024 * (i % 4)} nt')
                if i % 4 == 3:
                    A('s_add_u32 s48, s48, 4096')
                    A('s_addc_u32 s49, s49, 0')
            self.L('L_c_w2x')
            A('s_lshl_b32 s45, s26, 2')
            A(f's_add_u32 s45, s45, {FL + 32}')
            A(f'v_mov_b32 v{T+1}, s45')
            A(f'v_mov_b32 v{T+2}, 1')
            A('s_waitcnt vmcnt(10)')
            A('s_mov_b64 exec, 1')
            A(f'ds_write_b32 v{T+1}, v{T+2}')
            A('s_mov_b64 exec, -1')
        elif self.w2late:
            A(f'v_lshlrev_b32 v{T}, 4, v1')
            A('s_sub_u32 s45, s26, 2')
            A('s_mul_i32 s40, s51, 20736')
            A('s_mul_i32 s58, s45, 11264')
            A('s_add_u32 s40, s40, s58')
            A('s_add_u32 s48, s18, s40')
            A('s_addc_u32 s49, s19, 0')
            A(f's_add_u32 s58, s58, {W2S}')
            for i in range(11):
                if i % 4 == 0:
                    A(f's_add_u32 m0, s58, {1024 * i}')
                    A('s_nop 0')
                if i == 9:
                    A('s_cmp_eq_u32 s45, 0')
                    A('s_cselect_b64 s[46:47], -1, 0xffff')
                    A('s_mov_b64 exec, s[46:47]')
                if i == 10:
                    A('s_mov_b64 exec, -1')
                    A('s_cmp_lg_u32 s45, 0')
                    A('s_cbranch_scc1 L_c_w2x')
                A(f'global_load_lds_dwordx4 v{T}, s[48:49] offset:{1024 * (i % 4)} nt')
                if i % 4 == 3:
                    A('s_add_u32 s48, s48, 4096')
                    A('s_addc_u32 s49, s49, 0')
            self.L('L_c_w2x')
            A('s_mul_i32 s40, s51, 18432')
            A('s_mul_i32 s58, s45, 9216')
            A('s_add_u32 s40, s40, s58')
            A('s_add_u32 s48, s12, s40')
            A('s_addc_u32 s49, s13, 0')
            A(f's_add_u32 s58, s58, {STG}')
            for i in range(9):
                if i % 4 == 0:
                    A(f's_add_u32 m0, s58, {1024 * i}')
                    A('s_nop 0')
                A(f'global_load_lds_dwordx4 v{T}, s[48:49] offset:{1024 * (i % 4)} nt')
                if i % 4 == 3:
                    A('s_add_u32 s48, s48, 4096')
                    A('s_addc_u32 s49, s49, 0')
            A('s_lshl_b32 s45, s26, 2')
            A(f's_add_u32 s45, s45, {FL + 32}')
            A(f'v_mov_b32 v{T+1}, s45')
            A(f'v_mov_b32 v{T+2}, 1')
            A('s_waitcnt vmcnt(9)')
            A('s_mov_b64 exec, 1')
            A(f'ds_write_b32 v{T+1}, v{T+2} offset:16')
            A('s_mov_b64 exec, -1')
        if not self.w2late and self.wo_by == 'w23':
            A(f'v_lshlrev_b32 v{T}, 4, v1')
            A('s_sub_u32 s45, s26, 2')
            A('s_mul_i32 s40, s51, 18432')
            A('s_mul_i32 s58, s45, 9216')
            A('s_add_u32 s40, s40, s58')
            A('s_add_u32 s48, s12, s40')
            A('s_addc_u32 s49, s13, 0')
            A(f's_add_u32 s58, s58, {STG}')
            if self.wo_delay:
                A(f'v_mov_b32 v{T+1}, {FL}')
                self.spin_begin(42)
                self.L('L_c_wod')
                A(f'ds_read_b64 v[{T+8}:{T+9}], v{T+1} offset:56')
                A('s_waitcnt lgkmcnt(0)')
                A(f'v_and_b32 v{T+8}, v{T+8}, v{T+9}')
                A('s_nop 0')
                A(f'v_readfirstlane_b32 s40, v{T+8}')
                A('s_cmp_lg_u32 s40, 0')
                A('s_cbranch_scc1 L_c_wod_ok')
                self.spin_retry(42, 'L_c_wod', sleep=0)
                self.L('L_c_wod_ok')
            for i in range(9):
                if i % 4 == 0:
                    A(f's_add_u32 m0, s58, {1024 * i}')
                    A('s_nop 0')
                if self.wo_win and i >= self.wo_win:
                    A(f's_waitcnt vmcnt({self.wo_win - 1})')
                if 'nowo' not in self.exp:
                    A(f'global_load_lds_dwordx4 v{T}, s[48:49] offset:{1024 * (i % 4)} nt')
                if i % 4 == 3:
                    A('s_add_u32 s48, s48, 4096')
                    A('s_addc_u32 s49, s49, 0')
            A('s_lshl_b32 s45, s26, 2')
            A(f's_add_u32 s45, s45, {FL + 32}')
            A(f'v_mov_b32 v{T+1}, s45')
            A(f'v_mov_b32 v{T+2}, 1')
            A('s_waitcnt vmcnt(0)')
            A('s_mov_b64 exec, 1')
            A(f'ds_write_b32 v{T+1}, v{T+2}')
            A('s_mov_b64 exec, -1')
        self.L('L_c_pubdone')
        A(f'v_and_b32 v{T}, 15, v1')
        A(f'v_lshrrev_b32 v{T+1}, 4, v1')
        A(f'v_lshrrev_b32 v{T+3}, 2, v{T}')
        A(f'v_and_b32 v{T+4}, 3, v{T}')
        A(f'v_lshl_add_u32 v{T+5}, v{T+1}, 3, v{T+3}')
        A(f'v_mul_u32_u24 v{T+5}, 1152, v{T+5}')
        A(f'v_lshl_add_u32 v{T+5}, v{T+4}, 3, v{T+5}')
        A('s_mul_i32 s45, s26, 288')
        A(f'v_add_u32 v{T+5}, s45, v{T+5}')
        A(f'v_lshl_add_u32 v{T+3}, v{T+1}, 2, v{T+3}')
        A(f'v_mul_u32_u24 v{T+3}, 1152, v{T+3}')
        A(f'v_lshl_add_u32 v{T+3}, v{T+4}, 3, v{T+3}')
        A(f's_add_u32 s45, s45, {STG}')
        A(f'v_add_u32 v{T+3}, s45, v{T+3}')
        A(f'v_lshlrev_b32 v{T+6}, 4, v{T+1}')
        A(f'v_add_u32 v{T+6}, {AB}, v{T+6}')
        if self.w2late is True:
            A(f'ds_read_b128 v[68:71], v{T+6}')
        A(f'v_lshlrev_b32 v{T+2}, 3, v{T+1}')
        A(f'v_add_u32 v{T+2}, {OB}, v{T+2}')
        A('s_mul_i32 s50, s97, 0x5556')
        A('s_lshr_b32 s50, s50, 18')
        A('s_mul_i32 s58, s50, 12')
        A('s_sub_u32 s58, s97, s58')
        A('s_lshr_b32 s59, s58, 2')
        A('s_and_b32 s58, s58, 3')
        A('s_mul_i32 s50, s50, 9')
        A('s_mul_i32 s59, s59, 3')
        A('s_add_u32 s50, s50, s59')
        A('s_lshl_b32 s50, s50, 4')
        A('s_lshl_b32 s58, s58, 2')
        A('s_add_u32 s50, s50, s58')
        A('v_lshrrev_b32 v121, 2, v1')
        A('v_and_b32 v122, 3, v1')
        A('v_lshl_add_u32 v121, v121, 4, v122')
        A('v_add_u32 v121, s50, v121')
        A('v_lshlrev_b32 v121, 1, v121')
        A('s_mov_b32 s52, s4')
        A('s_mov_b32 s53, s5')
        A('s_mov_b32 s54, 1152')
        A('s_mov_b32 s55, 0x00020000')
        A('buffer_load_ushort v120, v121, s[52:55], 0 offen')
        def wait_flags(off, lab):
            A(f'v_mov_b32 v{T}, {FL}')
            self.spin_begin(42)
            self.L(lab)
            A(f'ds_read_b64 v[{T+8}:{T+9}], v{T} offset:{off}')
            A('s_waitcnt lgkmcnt(0)')
            A(f'v_and_b32 v{T+8}, v{T+8}, v{T+9}')
            A('s_nop 0')
            A(f'v_readfirstlane_b32 s40, v{T+8}')
            A('s_cmp_lg_u32 s40, 0')
            A(f's_cbranch_scc1 {lab}_ok')
            self.spin_retry(42, lab, sleep=1)
            self.L(f'{lab}_ok')
        def y_ffn():
            wait_flags(56, 'L_c_w2wait')
            for t in range(9):
                A(f'ds_read_b64_tr_b16 v[{32 + 4*t}:{33 + 4*t}], v{T+5} offset:{32 * t}')
                A(f'ds_read_b64_tr_b16 v[{34 + 4*t}:{35 + 4*t}], v{T+5} offset:{32 * t + 4608}')
                if t == 6:
                    A('s_waitcnt lgkmcnt(8)')
            for r in range(4):
                A(f'v_mov_b32 v{80 + r}, 0')
            A('s_waitcnt lgkmcnt(0)')
            for t in range(9):
                row = 4 * (t // 3) + t % 3
                A(f's_mov_b32 s46, {0x00010001 << row:#x}')
                A(f's_mov_b32 s47, {0x00010001 << row:#x}')
                m = 72 + 4 * (t & 1)
                for r in range(4):
                    A(f'v_cndmask_b32 v{m + r}, 0, v{68 + r}, s[46:47]')
                A('s_nop 1')
                A(f'v_mfma_f32_16x16x32_bf16 v[80:83], v[{m}:{m+3}], v[{32 + 4*t}:{35 + 4*t}], v[80:83]')
            A('s_mul_i32 s45, s51, 3072')
            A(f's_add_u32 s45, s45, {WS_Y2}')
            A('s_add_u32 s48, s24, s45')
            A('s_addc_u32 s49, s25, 0')
            A('s_mul_i32 s45, s26, 768')
            A(f'v_lshlrev_b32 v{T+7}, 4, v1')
            A(f'v_add_u32 v{T+7}, s45, v{T+7}')
            A('s_nop 3')
            self.mkchk(80)
            A('s_mov_b32 s46, -1')
            A('s_mov_b32 s47, 0xffff')
            A('s_mov_b64 exec, s[46:47]')
            A(f'global_store_dwordx4 v{T+7}, v[80:83], s[48:49] sc1')
            A('s_mov_b64 exec, -1')
        if self.w2late is True:
            y_ffn()
            A('s_cmp_lt_u32 s26, 2')
            A('s_cbranch_scc1 L_c_nowo')
            A('s_lshl_b32 s45, s26, 2')
            A(f's_add_u32 s45, s45, {FL + 32}')
            A(f'v_mov_b32 v{T+8}, s45')
            A(f'v_mov_b32 v{T+9}, 1')
            A('s_waitcnt vmcnt(2)')
            A('s_mov_b64 exec, 1')
            A(f'ds_write_b32 v{T+8}, v{T+9}')
            A('s_mov_b64 exec, -1')
            self.L('L_c_nowo')
        if self.w2late is not True:
            A('s_mul_i32 s45, s26, 768')
            A(f'v_lshlrev_b32 v{T+7}, 4, v1')
            A(f'v_add_u32 v{T+7}, s45, v{T+7}')
        if self.w2late or self.wo_by == 'w23':
            wait_flags(40, 'L_c_wowait')
        else:
            A(f'v_mov_b32 v{T}, {FL}')
            self.spin_begin(42)
            self.L('L_c_wowait')
            A(f'ds_read_b128 v[{T+8}:{T+11}], v{T} offset:240')
            A('s_waitcnt lgkmcnt(0)')
            A(f'v_and_b32 v{T+8}, v{T+8}, v{T+9}')
            A(f'v_and_b32 v{T+10}, v{T+10}, v{T+11}')
            A(f'v_and_b32 v{T+8}, v{T+8}, v{T+10}')
            A('s_nop 0')
            A(f'v_readfirstlane_b32 s40, v{T+8}')
            A('s_cmp_lg_u32 s40, 0')
            A('s_cbranch_scc1 L_c_wowait_ok')
            self.spin_retry(42, 'L_c_wowait', sleep=1)
            self.L('L_c_wowait_ok')
        for t in range(9):
            A(f'ds_read_b64_tr_b16 v[{68 + 2*t}:{69 + 2*t}], v{T+3} offset:{32 * t}')
        if self.flate == 'd':
            A(f'v_add_u32 v36, {FB}, v{T+7}')
            A('ds_read_b128 v[32:35], v36')
            A('s_mul_i32 s45, s96, 3072')
            A(f's_add_u32 s45, s45, {WS_F}')
            A('s_add_u32 s56, s24, s45')
            A('s_addc_u32 s57, s25, 0')
        for r in range(4):
            A(f'v_mov_b32 v{96 + r}, 0')
        A('s_mul_i32 s45, s51, 3072')
        A(f's_add_u32 s45, s45, {WS_Y}')
        A('s_add_u32 s48, s24, s45')
        A('s_addc_u32 s49, s25, 0')
        A('s_waitcnt lgkmcnt(0)')
        A('s_barrier')
        self.cstamp(4)
        A(f'ds_read_b64 v[64:65], v{T+2}')
        A('s_mov_b32 s46, 0x00010001')
        A('s_mov_b32 s47, 0x00010001')
        A('s_waitcnt lgkmcnt(0)')
        for t in range(9):
            row = 4 * (t // 3) + t % 3
            A(f'v_cndmask_b32 v{88 + 2*(t&1)}, 0, v64, s[46:47]')
            A(f'v_cndmask_b32 v{89 + 2*(t&1)}, 0, v65, s[46:47]')
            if t < 8:
                nrow = 4 * ((t + 1) // 3) + (t + 1) % 3
                A(f's_lshl_b64 s[46:47], s[46:47], {nrow - row}')
            else:
                A('s_nop 0')
            A('s_nop 0')
            A(f'v_mfma_f32_16x16x16_bf16 v[96:99], v[{88 + 2*(t&1)}:{89 + 2*(t&1)}], v[{68 + 2*t}:{69 + 2*t}], v[96:99]')
        A('s_mov_b32 s46, -1')
        A('s_mov_b32 s47, 0xffff')
        A('s_nop 5')
        self.mkchk(96)
        A('s_mov_b64 exec, s[46:47]')
        A(f'global_store_dwordx4 v{T+7}, v[96:99], s[48:49] sc1')
        if self.flate == 'd':
            A(f's_cmp_ge_u32 s96, {NFFN}')
            A('s_cbranch_scc1 L_c_nofd')
            A(f'global_store_dwordx4 v{T+7}, v[32:35], s[56:57] sc1')
            self.L('L_c_nofd')
        A('s_mov_b64 exec, -1')
        self.cstamp(5)
        if self.w2late == 'after':
            A('s_cmp_lt_u32 s26, 2')
            A('s_cbranch_scc1 L_c_now2')
            A('s_lshl_b32 s45, s26, 2')
            A(f's_add_u32 s45, s45, {FL + 48}')
            A(f'v_mov_b32 v{T+8}, s45')
            A(f'v_mov_b32 v{T+9}, 1')
            A('s_waitcnt vmcnt(2)')
            A('s_mov_b64 exec, 1')
            A(f'ds_write_b32 v{T+8}, v{T+9}')
            A('s_mov_b64 exec, -1')
            self.L('L_c_now2')
            A(f'ds_read_b128 v[68:71], v{T+6}')
            y_ffn()
        A(f's_cmp_lt_u32 s97, {NRED}')
        A('s_cbranch_scc1 L_c_red')
        self.cflush()
        A('s_endpgm')
        self.L('L_c_red')
        A('s_lshl_b32 s45, s26, 6')
        A(f'v_lshrrev_b32 v{T}, 2, v1')
        A(f'v_add_u32 v{T}, s45, v{T}')
        A(f'v_mul_u32_u24 v{T}, 3072, v{T}')
        A(f'v_and_b32 v{T+1}, 3, v1')
        A(f'v_lshl_add_u32 v{T}, v{T+1}, 4, v{T}')
        for i in range(1, 4):
            A(f'v_add_u32 v{T+i}, {3072 * 16 * i}, v{T}')
        A('s_lshl_b32 s45, s97, 6')
        A(f's_add_u32 s58, s45, {WS_Y}')
        A('s_add_u32 s48, s24, s58')
        A('s_addc_u32 s49, s25, 0')
        A(f's_add_u32 s58, s45, {WS_Y2}')
        A('s_add_u32 s56, s24, s58')
        A('s_addc_u32 s57, s25, 0')
        if self.w2late or self.flate == 'd':
            S1, S2 = [106, 107, 108], [109, 110, 111]
            if self.w2late:
                def dl(bs):
                    return [f'global_load_dwordx4 v[{b}:{b+3}], v{T + (i % 4)}, s[{48 if i < 4 else 56}:{49 if i < 4 else 57}] sc1' for i, b in enumerate(bs)]
                self.poll2('L_c_d', dl, [64, 68, 72, 76, 32, 36, 40, 44], [80, 84, 88, 92, 48, 52, 56, 60], 96, 97,
                           sleep=self.tsleep or 3, stag=self.stag, thresh=self.thresh)
                self.cstamp(24)
                for r in range(3):
                    A(f'v_add_f32 v{S1[r]}, v{64 + r}, v{68 + r}')
                    A(f'v_add_f32 v{S2[r]}, v{32 + r}, v{36 + r}')
                    A(f'v_add_f32 v{112 + r}, v{72 + r}, v{76 + r}')
                    A(f'v_add_f32 v{115 + r}, v{40 + r}, v{44 + r}')
                for r in range(3):
                    A(f'v_add_f32 v{S1[r]}, v{S1[r]}, v{112 + r}')
                    A(f'v_add_f32 v{S2[r]}, v{S2[r]}, v{115 + r}')
            else:
                A('s_lshl_b32 s45, s97, 6')
                A(f's_add_u32 s58, s45, {WS_F}')
                A('s_add_u32 s56, s24, s58')
                A('s_addc_u32 s57, s25, 0')
                A('s_lshl_b32 s45, s26, 4')
                A(f'v_lshrrev_b32 v{T+4}, 2, v1')
                A(f'v_add_u32 v{T+4}, s45, v{T+4}')
                A(f'v_mul_u32_u24 v{T+4}, 3072, v{T+4}')
                A(f'v_and_b32 v{T+6}, 3, v1')
                A(f'v_lshl_add_u32 v{T+4}, v{T+6}, 4, v{T+4}')
                A('s_lshl_b32 s45, s26, 1')
                A('s_add_u32 s45, s45, 64')
                A(f'v_bfe_u32 v{T+5}, v1, 2, 1')
                A(f'v_add_u32 v{T+5}, s45, v{T+5}')
                A(f'v_mul_u32_u24 v{T+5}, 3072, v{T+5}')
                A(f'v_lshl_add_u32 v{T+5}, v{T+6}, 4, v{T+5}')
                def dl(bs):
                    return [f'global_load_dwordx4 v[{b}:{b+3}], v{T + i}, s[{48 if i < 4 else 56}:{49 if i < 4 else 57}] sc1' for i, b in enumerate(bs)]
                self.poll2('L_c_d', dl, [64, 68, 72, 76, 32, 36], [80, 84, 88, 92, 48, 52], 96, 97,
                           sleep=self.tsleep or 3, stag=self.stag_d, thresh=self.thresh_d)
                self.cstamp(24)
                A('s_mov_b64 s[46:47], 0xff')
                for r in range(3):
                    A(f'v_cndmask_b32 v{115 + r}, 0, v{36 + r}, s[46:47]')
                    A(f'v_add_f32 v{S1[r]}, v{64 + r}, v{68 + r}')
                    A(f'v_add_f32 v{112 + r}, v{72 + r}, v{76 + r}')
                for r in range(3):
                    A(f'v_add_f32 v{S2[r]}, v{32 + r}, v{115 + r}')
                    A(f'v_add_f32 v{S1[r]}, v{S1[r]}, v{112 + r}')
            self.mrowred('v_add_f32', S1 + S2, (4, 8))
            self.mxrow('v_add_f32', S1 + S2, [112, 113, 114, 115, 116, 117])
            A('v_mov_b32 v112, v109')
            A('v_mov_b32 v113, v110')
            A('v_mov_b32 v114, v111')
            A('v_mov_b32 v104, v106')
            A('v_mov_b32 v105, v107')
            A('v_mov_b32 v106, v108')
            A('s_lshl_b32 s45, s26, 7')
            A(f's_add_u32 s45, s45, {RED}')
            A('v_lshlrev_b32 v118, 5, v1')
            A('v_add_u32 v118, s45, v118')
            A('s_mov_b64 exec, 15')
            A('ds_write_b128 v118, v[104:107]')
            A('ds_write_b128 v118, v[112:115] offset:16')
            A('s_mov_b64 exec, -1')
            A('v_lshrrev_b32 v116, 2, v1')
            A('v_and_b32 v117, 3, v1')
            A('v_lshlrev_b32 v116, 2, v116')
            A('v_lshl_add_u32 v116, v117, 5, v116')
            A(f'v_add_u32 v116, {RED}, v116')
            A('s_mov_b32 s52, s20')
            A('s_mov_b32 s53, s21')
            A('s_waitcnt lgkmcnt(0)')
            self.cstamp(25)
            A('s_barrier')
            self.cstamp(26)
            A('s_cmp_lg_u32 s26, 0')
            A('s_cbranch_scc1 L_end')
            for k in range(4):
                A(f'ds_read_b32 v{100 + k}, v116 offset:{128 * k}')
            for k in range(4):
                A(f'ds_read_b32 v{104 + k}, v116 offset:{128 * k + 16}')
            A('v_lshlrev_b32 v111, 16, v120')
            A('s_waitcnt lgkmcnt(0)')
            A('v_add_f32 v100, v100, v101')
            A('v_add_f32 v104, v104, v105')
            A('v_add_f32 v102, v102, v103')
            A('v_add_f32 v106, v106, v107')
            A('v_add_f32 v100, v100, v102')
            A('v_add_f32 v104, v104, v106')
            A('v_cvt_pk_bf16_f32 v100, v100, v104')
            A('v_lshlrev_b32 v101, 16, v100')
            A('v_and_b32 v104, 0xffff0000, v100')
            A('v_add_f32 v101, v111, v101')
            self.bf16r(101, 101, 102)
            A('v_add_f32 v101, v101, v104')
            A('v_cvt_pk_bf16_f32 v101, v101, v101')
            A('s_mov_b64 exec, 0xfff')
            A('buffer_store_short v101, v121, s[52:55], 0 offen')
            A('s_mov_b64 exec, -1')
        else:
            dl = lambda bs: [f'global_load_dwordx4 v[{b}:{b+3}], v{T+i}, s[48:49] sc1' for i, b in enumerate(bs)]
            if self.pm_d:
                self.pollm('L_c_d', dl, [[64, 68, 72, 76], [80, 84, 88, 92], [32, 36, 40, 44], [48, 52, 56, 60]][:self.nset_d], 96,
                           stag=self.stag_d, invs=[30, 32, 34, 36])
            else:
                self.poll2('L_c_d', dl,
                           [64, 68, 72, 76], [80, 84, 88, 92], 96, 97, sleep=self.tsleep or 3, stag=self.stag_d, thresh=self.thresh_d,
                           more=([32, 36, 40, 44], [48, 52, 56, 60])[:self.nset_d - 2])
            self.cstamp(24)
            S1 = [106, 107, 108]
            for r in range(3):
                A(f'v_add_f32 v{S1[r]}, v{64 + r}, v{68 + r}')
                A(f'v_add_f32 v{112 + r}, v{72 + r}, v{76 + r}')
            for r in range(3):
                A(f'v_add_f32 v{S1[r]}, v{S1[r]}, v{112 + r}')
            self.mrowred('v_add_f32', S1, (4, 8))
            self.mxrow('v_add_f32', S1, [112, 113, 114])
            A('s_lshl_b32 s45, s26, 6')
            A(f's_add_u32 s45, s45, {RED}')
            A('v_lshlrev_b32 v118, 4, v1')
            A('v_add_u32 v118, s45, v118')
            A('v_mov_b32 v104, v106')
            A('v_mov_b32 v105, v107')
            A('v_mov_b32 v106, v108')
            A('s_mov_b64 exec, 15')
            A('ds_write_b128 v118, v[104:107]')
            A('s_mov_b64 exec, -1')
            A('v_lshrrev_b32 v116, 2, v1')
            A('v_and_b32 v117, 3, v1')
            A('v_lshlrev_b32 v116, 2, v116')
            A('v_lshl_add_u32 v116, v117, 4, v116')
            A(f'v_add_u32 v117, {FFNR}, v116')
            A(f'v_add_u32 v116, {RED}, v116')
            A('ds_read_b32 v119, v117')
            A('s_mov_b32 s52, s20')
            A('s_mov_b32 s53, s21')
            A('s_waitcnt lgkmcnt(0)')
            self.cstamp(25)
            A('s_barrier')
            self.cstamp(26)
            A('s_cmp_lg_u32 s26, 0')
            A('s_cbranch_scc1 L_end')
            for k in range(4):
                A(f'ds_read_b32 v{100 + k}, v116 offset:{64 * k}')
            A('v_lshlrev_b32 v111, 16, v120')
            A('s_waitcnt lgkmcnt(0)')
            A('v_add_f32 v100, v100, v101')
            A('v_add_f32 v102, v102, v103')
            A('v_add_f32 v100, v100, v102')
            A('v_cvt_pk_bf16_f32 v100, v100, v119')
            A('v_lshlrev_b32 v101, 16, v100')
            A('v_and_b32 v104, 0xffff0000, v100')
            A('v_add_f32 v101, v111, v101')
            self.bf16r(101, 101, 102)
            A('v_add_f32 v101, v101, v104')
            A('v_cvt_pk_bf16_f32 v101, v101, v101')
            A('s_mov_b64 exec, 0xfff')
            A('buffer_store_short v101, v121, s[52:55], 0 offen')
            A('s_mov_b64 exec, -1')
        self.stamp(6)
        self.flush_stamps(extra=[(29, 64)])
        A('s_cmp_lg_u32 s97, 0')
        A('s_cbranch_scc1 L_end')
        A('v_mov_b32 v106, s29')
        A('v_mov_b32 v107, 0')
        A('s_mov_b64 exec, 1')
        A('global_store_dword v107, v106, s[24:25] sc1')
        A('s_branch L_end')

    def gemv64(self, acc, first, xoff_sreg):
        A = self.A
        NB = 5
        A(f'v_add_u32 v21, s{xoff_sreg}, v20')
        def rd(s):
            b = 40 + 10 * (s % NB)
            A(f'ds_read_b64 v[{b}:{b+1}], v21 offset:{32 * s}')
            for t in range(4):
                A(f'ds_read_b64_tr_b16 v[{b+2+2*t}:{b+3+2*t}], v{16 + t} offset:{2048 * s}')
        NP = 3
        for s in range(NP):
            rd(s)
        for s in range(9):
            left = min(9, s + NP) - s - 1
            A(f's_waitcnt lgkmcnt({5 * left})')
            b = 40 + 10 * (s % NB)
            for t in range(4):
                c = '0' if (first and s == 0) else f'v[{acc + 4*t}:{acc + 4*t + 3}]'
                A(f'v_mfma_f32_16x16x16_bf16 v[{acc + 4*t}:{acc + 4*t + 3}], v[{b}:{b+1}], v[{b+2+2*t}:{b+3+2*t}], {c}')
            if s + NP < 9:
                rd(s + NP)

    def dma_cols(self, sbase, pitch, voff, win=None):
        A = self.A
        A(f's_mov_b32 s36, s{sbase}')
        A(f's_mov_b32 s37, s{sbase+1}')
        for s in range(18):
            A(f's_mov_b32 m0, {STG + 1024 * s}')
            if win:
                A(f's_waitcnt vmcnt({win - 1})')
            else:
                A('s_nop 0')
            A(f'global_load_lds_dwordx4 v{voff}, s[36:37]' + ('' if 'colplain' in self.exp else ' nt'))
            if s < 17:
                A(f's_add_u32 s36, s36, {8 * pitch}')
                A('s_addc_u32 s37, s37, 0')

    def dma_rows(self, sbase, win=None):
        A = self.A
        A(f's_mov_b32 s36, s{sbase}')
        A(f's_mov_b32 s37, s{sbase+1}')
        for s in range(18):
            if s % 4 == 0:
                A(f's_mov_b32 m0, {STG + 1024 * s}')
                A('s_nop 0')
            if win:
                A(f's_waitcnt vmcnt({win - 1})')
            A(f'global_load_lds_dwordx4 v23, s[36:37] offset:{1024 * (s % 4)}' + ('' if 'rowplain' in self.exp else ' nt'))
            if s % 4 == 3:
                A('s_add_u32 s36, s36, 4096')
                A('s_addc_u32 s37, s37, 0')

    def f_gather(self, name, sleep, probe, warm=False):
        A = self.A
        A('s_lshl_b32 s40, s97, 6')
        A(f's_add_u32 s40, s40, {WS_F}')
        A('s_add_u32 s56, s24, s40')
        A('s_addc_u32 s57, s25, 0')
        A('v_lshrrev_b32 v30, 2, v1')
        A('v_mul_u32_u24 v30, 3072, v30')
        A('v_and_b32 v31, 3, v1')
        A('v_lshl_add_u32 v30, v31, 4, v30')
        for i in range(1, 5):
            A(f'v_add_u32 v{30 + i}, {3072 * 16 * i}, v30')
        A('s_mov_b32 s46, 0')
        A('s_mov_b32 s47, -1')
        A(f'v_add_u32 v35, {-3072 * 8 & 0xffffffff:#x}, v34')
        A('v_cndmask_b32 v34, v34, v35, s[46:47]')
        loads = [f'global_load_dwordx4 v[{40 + 4*i}:{43 + 4*i}], v{30 + i}, s[56:57] sc1' for i in range(5)]
        if warm:
            for l in loads:
                A(l)
            return
        self.poll(name, loads, lambda: self.chk3([40, 44, 48, 52, 56], 60, 61), sleep=sleep, probe=probe)
        A('s_mov_b32 s46, 0')
        A('s_mov_b32 s47, -1')
        for r in range(3):
            A(f'v_cndmask_b32 v{56 + r}, v{56 + r}, 0, s[46:47]')
        for r in range(3):
            A(f'v_add_f32 v{40 + r}, v{40 + r}, v{44 + r}')
            A(f'v_add_f32 v{48 + r}, v{48 + r}, v{52 + r}')
            A(f'v_add_f32 v{40 + r}, v{40 + r}, v{56 + r}')
        for r in range(3):
            A(f'v_add_f32 v{40 + r}, v{40 + r}, v{48 + r}')
        self.mrowred('v_add_f32', [40, 41, 42], (4, 8))
        self.mxrow('v_add_f32', [40, 41, 42], [44, 45, 46])
        A('v_lshlrev_b32 v34, 4, v1')
        A(f'v_add_u32 v34, {FFNR}, v34')
        A('s_mov_b64 exec, 15')
        A('ds_write_b128 v34, v[40:43]')
        A('s_mov_b64 exec, -1')

    def tail_warm(self):
        A = self.A
        if 'nowarm' in self.exp:
            return
        if True:
            def own(base, stride, n, mode):
                A('s_lshl_b32 s40, s27, 4')
                A('s_add_u32 s40, s40, s28')
                A(f's_mul_i32 s40, s40, {stride}')
                A(f's_add_u32 s40, s40, {base}')
                A('s_add_u32 s56, s24, s40')
                A('s_addc_u32 s57, s25, 0')
                for i in range(n):
                    if mode == 'selfld':
                        A(f'global_load_dwordx4 v[{48 + 4*i}:{51 + 4*i}], v23, s[56:57] offset:{1024 * i} sc1')
                    else:
                        A(f'global_store_dwordx4 v23, v[60:63], s[56:57] offset:{1024 * i} sc1')
            if 'selfst' in (self.warmP, self.warmY):
                for r in range(60, 64):
                    A(f'v_mov_b32 v{r}, 0')
            if self.warmP == 'poll' and 'nowarmp' not in self.exp:
                for i in range(2):
                    A(f'global_load_dwordx4 v[{40 + 4*i}:{43 + 4*i}], v{34 + i}, s[48:49] sc1')
            elif self.warmP in ('selfld', 'selfst'):
                own(WS_P, 2048, 2, self.warmP)
            if self.warmY in ('selfld', 'selfst'):
                own(WS_Y, 3072, 3, self.warmY)
            if self.warmY != 'poll' and not self.flate:
                A('s_waitcnt vmcnt(0)')
                return
            if 'nowarmy' in self.exp or self.warmY != 'poll':
                A('s_branch L_h_wdone')
            A(f's_cmp_ge_u32 s97, {NRED}')
            A('s_cbranch_scc1 L_h_wdone')
            if self.flate and 'nowarmf' not in self.exp:
                for r in range(6):
                    A(f'v_mov_b32 v{64 + r}, v{30 + r}')
                A('v_mov_b32 v70, v36')
                A('v_mov_b32 v71, v37')
                self.f_gather(None, 0, False, warm=True)
                A('s_waitcnt vmcnt(0)')
                for r in range(6):
                    A(f'v_mov_b32 v{30 + r}, v{64 + r}')
            A('s_lshl_b32 s40, s97, 6')
            A(f's_add_u32 s40, s40, {WS_Y}')
            A('s_add_u32 s56, s24, s40')
            A('s_addc_u32 s57, s25, 0')
            A('v_lshrrev_b32 v38, 2, v1')
            A('v_mul_u32_u24 v38, 3072, v38')
            A('v_and_b32 v39, 3, v1')
            A('v_lshl_add_u32 v38, v39, 4, v38')
            A(f's_add_u32 s40, s40, {WS_Y2 - WS_Y}')
            A('s_add_u32 s50, s24, s40')
            A('s_addc_u32 s51, s25, 0')
            for i in range(16):
                A(f'global_load_dwordx4 v[{48 + 4*(i%4)}:{51 + 4*(i%4)}], v38, s[56:57] sc1')
                if self.w2late:
                    A(f'global_load_dwordx4 v[{64 + 4*(i%4)}:{67 + 4*(i%4)}], v38, s[50:51] sc1')
                A(f'v_add_u32 v38, {3072 * 16}, v38')
            self.L('L_h_wdone')
            A('s_waitcnt vmcnt(0)')

    def helper(self):
        A = self.A
        FW = self.ffn_win
        self.L('L_helper')
        self.pending = []
        A('s_memrealtime s[98:99]')
        A('s_setprio 3')
        if self.fastpro:
            A('v_mov_b32 v2, 0')
            A('s_mov_b32 s54, 1152')
            A('s_mov_b32 s55, 0x00020000')
            A('v_lshlrev_b32 v4, 1, v1')
            A('s_lshr_b32 s50, s2, 2')
            A('s_and_b32 s51, s2, 3')
            A('s_lshl_b32 s40, s50, 7')
            A(f's_mul_i32 s58, s51, {144 * 8192}')
            A('s_add_u32 s40, s40, s58')
            A('v_lshrrev_b32 v5, 3, v1')
            A('v_and_b32 v6, 7, v1')
            A('v_lshrrev_b32 v7, 4, v1')
            A('v_lshlrev_b32 v7, 1, v7')
            A('v_xor_b32 v6, v6, v7')
            A('v_lshlrev_b32 v6, 4, v6')
            A('v_lshl_add_u32 v22, v5, 13, v6')
            A('v_mul_u32_u24 v25, 9216, v5')
            A('v_add_u32 v25, v25, v6')
            A('v_lshlrev_b32 v23, 4, v1')
            A('s_waitcnt lgkmcnt(0)')
            A('s_mov_b32 s52, s4')
            A('s_mov_b32 s53, s5')
            for k in range(9):
                A(f'buffer_load_ushort v{30 + k}, v4, s[52:55], 0 offen offset:{128 * k}')
            A('global_load_dword v3, v2, s[24:25] sc1')
            A('s_add_u32 s56, s10, s40')
            A('s_addc_u32 s57, s11, 0')
            self.stamp(0)
            if self.layout3:
                A('s_barrier')
            assert self.share
        else:
            self.stamp(0)
            if 'nohelper' in self.exp:
                self.flush_stamps()
                A('s_endpgm')
            A('v_mov_b32 v2, 0')
            A('global_load_dword v3, v2, s[24:25] sc1')
            A('s_and_b32 s40, s2, 15')
            A('s_cmp_lg_u32 s40, 0')
            A('s_cbranch_scc1 L_h_nozero')
            A('s_lshr_b32 s40, s2, 4')
            A(f's_mul_i32 s40, s40, {self.cstride}')
            A(f's_add_u32 s40, s40, {WS_CNT}')
            A('v_mov_b32 v5, s40')
            A('s_mov_b64 exec, 1')
            A('global_store_dword v5, v2, s[24:25] sc1')
            A('s_mov_b64 exec, -1')
            self.L('L_h_nozero')
            A('s_mov_b32 s52, s4')
            A('s_mov_b32 s53, s5')
            A('s_mov_b32 s54, 1152')
            A('s_mov_b32 s55, 0x00020000')
            A('v_lshlrev_b32 v4, 1, v1')
            for k in range(9):
                A(f'buffer_load_ushort v{30 + k}, v4, s[52:55], 0 offen offset:{128 * k}')
            A('s_lshr_b32 s50, s2, 2')
            A('s_and_b32 s51, s2, 3')
            A('s_lshl_b32 s40, s50, 7')
            A(f's_mul_i32 s58, s51, {144 * 8192}')
            A('s_add_u32 s40, s40, s58')
            A('s_add_u32 s56, s10, s40')
            A('s_addc_u32 s57, s11, 0')
            A('v_lshrrev_b32 v5, 3, v1')
            A('v_and_b32 v6, 7, v1')
            A('v_lshrrev_b32 v7, 4, v1')
            A('v_lshlrev_b32 v7, 1, v7')
            A('v_xor_b32 v6, v6, v7')
            A('v_lshlrev_b32 v6, 4, v6')
            A('v_lshl_add_u32 v22, v5, 13, v6')
            A('v_mul_u32_u24 v25, 9216, v5')
            A('v_add_u32 v25, v25, v6')
            A('v_lshlrev_b32 v23, 4, v1')
        if 'nowq' not in self.exp:
            self.dma_cols(56, 8192, 22)
        if self.hfirst or (self.fastpro and not self.layout3):
            A('s_barrier')
        if self.layout3:
            self.ids()
        A('s_lshl_b32 s40, s27, 13')
        A(f's_add_u32 s40, s40, {WS_Q}')
        A('s_add_u32 s62, s24, s40')
        A('s_addc_u32 s63, s25, 0')
        A('v_lshrrev_b32 v14, 5, v1')
        A('v_lshlrev_b32 v14, 11, v14')
        A('v_and_b32 v15, 31, v1')
        A('v_lshl_add_u32 v14, v15, 4, v14')
        A('v_add_u32 v15, 4096, v14')
        nwarm = 0
        if 'qwarm' in self.exp:
            for H in range(2):
                for kp in range(4):
                    A(f'global_load_dwordx4 v[{96 + 4*kp}:{99 + 4*kp}], v{14 + H}, s[62:63] offset:{512 * kp} sc1')
                    nwarm += 1
        A('v_lshrrev_b32 v26, 4, v1')
        A('v_and_b32 v27, 15, v1')
        A('v_lshlrev_b32 v20, 3, v26')
        A(f'v_add_u32 v20, {XN}, v20')
        A('v_lshrrev_b32 v28, 2, v27')
        A('v_lshl_add_u32 v28, v26, 2, v28')
        A('v_and_b32 v29, 3, v27')
        A('v_lshlrev_b32 v8, 7, v28')
        A('v_lshl_add_u32 v8, v29, 3, v8')
        A(f'v_add_u32 v8, {STG}, v8')
        A('v_lshrrev_b32 v9, 1, v28')
        A('v_and_b32 v9, 3, v9')
        for t in range(4):
            A(f'v_xor_b32 v10, {t}, v9')
            A(f'v_lshl_add_u32 v{16 + t}, v10, 5, v8')
        A('v_mul_u32_u24 v24, 1152, v28')
        A('v_lshl_add_u32 v24, v29, 3, v24')
        A(f'v_add_u32 v24, {STG}, v24')
        nq = 0 if 'nowq' in self.exp else 18
        A(f's_waitcnt vmcnt({nq + nwarm})')
        self.stamp(11)
        A('v_readfirstlane_b32 s29, v3')
        X = 30
        for k in range(9):
            A(f'v_lshlrev_b32 v{X + k}, 16, v{X + k}')
        A('s_add_u32 s29, s29, 1')
        A('s_bitset1_b32 s29, 31')
        A(f'v_add_f32 v10, v{X}, v{X+1}')
        for k in range(2, 9):
            A(f'v_add_f32 v10, v10, v{X + k}')
        self.wavesum(10, 11)
        A(f'v_mul_f32 v10, {0x3AE38E39:#x}, v10')
        for k in range(9):
            A(f'v_sub_f32 v{40 + k}, v{X + k}, v10')
        A('v_mul_f32 v12, v40, v40')
        for k in range(1, 9):
            A(f'v_fmac_f32 v12, v{40 + k}, v{40 + k}')
        self.wavesum(12, 11)
        A(f'v_mul_f32 v12, {0x3AE38E39:#x}, v12')
        self.bf16r(10, 10, 11)
        self.bf16r(12, 12, 11)
        A(f'v_add_f32 v12, {0x3727C5AC:#x}, v12')
        self.bf16r(12, 12, 11)
        A('v_sqrt_f32 v12, v12')
        A('s_nop 0')
        self.bf16r(12, 12, 11)
        A('v_rcp_f32 v13, v12')
        for k in range(9):
            A(f'v_sub_f32 v{40 + k}, v{X + k}, v10')
        for k in range(0, 9, 2):
            k2 = min(k + 1, 8)
            A(f'v_cvt_pk_bf16_f32 v{50 + k // 2}, v{40 + k}, v{40 + k2}')
        for k in range(9):
            if k % 2 == 0:
                A(f'v_lshlrev_b32 v{40 + k}, 16, v{50 + k // 2}')
            else:
                A(f'v_and_b32 v{40 + k}, 0xffff0000, v{50 + k // 2}')
        for k in range(9):
            A(f'v_mul_f32 v{60 + k}, v{40 + k}, v13')
            A(f'v_fma_f32 v{70 + k}, -v{60 + k}, v12, v{40 + k}')
            A(f'v_fma_f32 v{60 + k}, v{70 + k}, v13, v{60 + k}')
        for k in range(0, 9, 2):
            k2 = min(k + 1, 8)
            A(f'v_cvt_pk_bf16_f32 v{50 + k // 2}, v{60 + k}, v{60 + k2}')
        A(f'v_add_u32 v11, {XN}, v4')
        for k in range(9):
            op = 'ds_write_b16' if k % 2 == 0 else 'ds_write_b16_d16_hi'
            A(f'{op} v11, v{50 + k // 2} offset:{128 * k}')
        A('s_mul_i32 s58, s51, 288')
        self.stamp(12)
        A('s_waitcnt vmcnt(0) lgkmcnt(0)')
        self.stamp(13)
        self.gemv64(96, True, 58)
        A('s_nop 7')
        self.stamp(10)
        A('s_mov_b32 s46, 0xffff0000')
        A('s_mov_b32 s47, 0')
        A('v_cndmask_b32 v32, v96, v104, s[46:47]')
        A('v_cndmask_b32 v34, v100, v108, s[46:47]')
        A('v_mov_b32 v33, s29')
        A('v_mov_b32 v35, s29')
        A('s_lshl_b32 s40, s2, 9')
        A(f's_add_u32 s40, s40, {WS_Q}')
        A('s_add_u32 s48, s24, s40')
        A('s_addc_u32 s49, s25, 0')
        A('s_mov_b32 s46, -1')
        A('s_mov_b64 exec, s[46:47]')
        A('global_store_dwordx4 v23, v[32:35], s[48:49] sc1')
        A('s_mov_b64 exec, -1')
        A('s_mov_b32 s48, s62')
        A('s_mov_b32 s49, s63')
        A('v_mov_b32 v30, v14')
        A('v_mov_b32 v31, v15')
        loads = []
        for H in range(2):
            for kp in range(4):
                b = 40 + 16 * H + 4 * kp
                loads.append(f'global_load_dwordx4 v[{b}:{b+3}], v{30 + H}, s[48:49] offset:{512 * kp} sc1')
        def qchk():
            A('v_xor_b32 v72, s29, v41')
            for q in range(43, 72, 2):
                A(f'v_xor_b32 v73, s29, v{q}')
                A('v_or_b32 v72, v72, v73')
            return 72
        self.poll('L_h_q', loads, qchk, sleep=1, probe=('qsweep' not in self.exp))
        self.stamp(14)
        for H in range(2):
            b = 40 + 16 * H
            for e in (0, 2):
                A(f'v_add_f32 v{b+e}, v{b+e}, v{b+4+e}')
                A(f'v_add_f32 v{b+8+e}, v{b+8+e}, v{b+12+e}')
                A(f'v_add_f32 v{b+e}, v{b+e}, v{b+8+e}')
            A(f'v_cvt_pk_bf16_f32 v{74 + H}, v{b}, v{b+2}')
        A('v_lshrrev_b32 v32, 4, v1')
        A('v_lshlrev_b32 v32, 6, v32')
        A('v_lshl_add_u32 v32, v27, 1, v32')
        A(f'v_add_u32 v32, {QL}, v32')
        for H in range(2):
            A(f'ds_write_b16 v32, v{74 + H} offset:{256 * H}')
            A(f'ds_write_b16_d16_hi v32, v{74 + H} offset:{256 * H + 32}')
        A('v_mov_b32 v42, 1')
        A('v_mov_b32 v43, s29')
        A(f'v_mov_b32 v41, {FL}')
        A('s_waitcnt lgkmcnt(0)')
        A('s_mov_b64 exec, 1')
        A('ds_write_b64 v41, v[42:43] offset:32')
        A('s_mov_b64 exec, -1')
        A('s_setprio 0')
        A(f's_cmp_ge_u32 s96, {NFFN}')
        A('s_cbranch_scc1 L_h_ffn_done')
        if 'noffn' in self.exp:
            A('s_branch L_h_ffn_done')
        if self.ffnboost:
            A(f'v_mov_b32 v30, {FL}')
            A('v_mov_b32 v31, 1')
            A('s_mov_b64 exec, 1')
            A('ds_write_b32 v30, v31 offset:48')
            A('s_mov_b64 exec, -1')
        A('s_mov_b32 s59, 0')
        self.L('L_h_f1')
        A('s_lshl_b32 s40, s96, 7')
        A(f's_mul_i32 s58, s59, {144 * 9216}')
        A('s_add_u32 s40, s40, s58')
        A('s_add_u32 s56, s16, s40')
        A('s_addc_u32 s57, s17, 0')
        if 'now1' not in self.exp:
            self.dma_cols(56, 9216, 25, win=FW)
        A('s_mul_i32 s58, s59, 288')
        A('s_waitcnt vmcnt(0)')
        A('s_cmp_lg_u32 s59, 0')
        A('s_cbranch_scc1 L_h_f1b')
        for r in range(16):
            A(f'v_mov_b32 v{96 + r}, 0')
        self.L('L_h_f1b')
        A('s_nop 1')
        self.gemv64(96, False, 58)
        A('s_add_u32 s59, s59, 1')
        A('s_cmp_lt_u32 s59, 4')
        A('s_cbranch_scc1 L_h_f1')
        A('s_nop 7')
        A('v_lshlrev_b32 v34, 1, v27')
        A(f'v_add_u32 v34, {OB}, v34')
        for t in range(4):
            self.bf16r(30, 96 + 4 * t, 31)
            A(f'v_mul_f32 v31, {0xBFB8AA3B:#x}, v30')
            A('v_exp_f32 v31, v31')
            A('s_nop 0')
            A('v_add_f32 v31, 1.0, v31')
            A('v_rcp_f32 v32, v31')
            A('s_nop 0')
            A('v_mul_f32 v33, v30, v32')
            A('v_cvt_pk_bf16_f32 v33, v33, v33')
            A('s_mov_b64 exec, 0xffff')
            A(f'ds_write_b16 v34, v33 offset:{32 * t}')
            A('s_mov_b64 exec, -1')
        if self.w2late:
            A('v_lshlrev_b32 v35, 2, v1')
            A(f'v_add_u32 v36, {OB}, v35')
            A('s_waitcnt lgkmcnt(0)')
            A('ds_read_b32 v32, v36')
            A('v_mov_b32 v33, s29')
            A('s_lshl_b32 s40, s96, 8')
            A(f's_add_u32 s40, s40, {WS_A}')
            A('s_add_u32 s48, s24, s40')
            A('s_addc_u32 s49, s25, 0')
            A('v_lshlrev_b32 v35, 3, v1')
            A('s_mov_b32 s46, -1')
            A('s_mov_b32 s47, 0')
            A('s_waitcnt lgkmcnt(0)')
            A('s_mov_b64 exec, s[46:47]')
            A('global_store_dwordx2 v35, v[32:33], s[48:49] sc1')
            A('s_mov_b64 exec, -1')
            if self.ffnboost:
                A(f'v_mov_b32 v30, {FL}')
                A('v_mov_b32 v31, 0')
                A('s_mov_b64 exec, 1')
                A('ds_write_b32 v30, v31 offset:48')
                A('s_mov_b64 exec, -1')
            self.L('L_h_ffn_done')
            A(f'v_mov_b32 v34, {FL}')
            self.spin_begin(42)
            self.L('L_h_fwait')
            A('ds_read_b32 v35, v34 offset:16')
            A('s_waitcnt lgkmcnt(0)')
            A('v_readfirstlane_b32 s40, v35')
            A(f's_cmp_ge_u32 s40, {self.a_at}')
            A('s_cbranch_scc1 L_h_fgo')
            self.spin_retry(42, 'L_h_fwait', sleep=64)
            self.L('L_h_fgo')
            A('s_lshl_b32 s40, s27, 4')
            A('s_add_u32 s40, s40, s28')
            A('s_mul_i32 s40, s40, 72')
            A(f's_add_u32 s40, s40, {WS_A}')
            A('s_add_u32 s48, s24, s40')
            A('s_addc_u32 s49, s25, 0')
            A('v_min_u32 v30, 8, v1')
            A('v_lshlrev_b32 v30, 3, v30')
            if 'noffn' not in self.exp:
                def achk():
                    A('v_xor_b32 v34, s29, v33')
                    return 34
                self.poll('L_h_a', ['global_load_dwordx2 v[32:33], v30, s[48:49] sc1'], achk, sleep=32, probe=False)
            A('v_cmp_gt_u32 vcc, 9, v1')
            A('s_nop 1')
            A('v_cndmask_b32 v32, 0, v32, vcc')
            A('v_lshlrev_b32 v35, 2, v1')
            A(f'v_add_u32 v35, {AB}, v35')
            A('s_mov_b64 exec, 0xffff')
            A('ds_write_b32 v35, v32')
            A('s_mov_b64 exec, -1')
        else:
            for r in range(12):
                A(f'v_mov_b32 v{112 + r}, 0')
            A('v_lshlrev_b32 v35, 3, v26')
            A(f'v_add_u32 v35, {OB}, v35')
            A('s_mov_b32 s59, 0')
            self.L('L_h_f2')
            A('s_lshl_b32 s40, s96, 2')
            A('s_add_u32 s40, s40, s59')
            A('s_mul_i32 s40, s40, 18432')
            A('s_add_u32 s56, s18, s40')
            A('s_addc_u32 s57, s19, 0')
            if 'now2' not in self.exp:
                self.dma_rows(56, win=FW)
            A('s_lshl_b32 s40, s59, 5')
            A('v_add_u32 v38, s40, v35')
            A('s_waitcnt lgkmcnt(0)')
            A('ds_read_b64 v[36:37], v38')
            A('s_waitcnt vmcnt(0) lgkmcnt(0)')
            for t0 in range(0, 36, 12):
                for t in range(t0, t0 + 12):
                    A(f'ds_read_b64_tr_b16 v[{40 + 2*(t - t0)}:{41 + 2*(t - t0)}], v24 offset:{32 * t}')
                A('s_waitcnt lgkmcnt(0)')
                for t in range(t0, t0 + 12):
                    grp, r = t // 3, t % 3
                    a = 112 + 4 * (grp // 4)
                    row = 4 * (grp % 4) + r
                    A(f's_mov_b32 s46, {0x00010001 << row:#x}')
                    A(f's_mov_b32 s47, {0x00010001 << row:#x}')
                    A(f'v_cndmask_b32 v{88 + 2*(t&1)}, 0, v36, s[46:47]')
                    A(f'v_cndmask_b32 v{89 + 2*(t&1)}, 0, v37, s[46:47]')
                    A('s_nop 1')
                    A(f'v_mfma_f32_16x16x16_bf16 v[{a}:{a+3}], v[{88 + 2*(t&1)}:{89 + 2*(t&1)}], v[{40 + 2*(t - t0)}:{41 + 2*(t - t0)}], v[{a}:{a+3}]')
            A('s_add_u32 s59, s59, 1')
            A('s_cmp_lt_u32 s59, 4')
            A('s_cbranch_scc1 L_h_f2')
            A('s_nop 7')
            if self.flate:
                A(f'v_add_u32 v30, {FB}, v23')
                for a in range(3):
                    self.mkchk(112 + 4 * a)
                    A(f'ds_write_b128 v30, v[{112 + 4*a}:{115 + 4*a}] offset:{1024 * a}')
            else:
                A('s_mul_i32 s40, s96, 3072')
                A(f's_add_u32 s40, s40, {WS_F}')
                A('s_add_u32 s48, s24, s40')
                A('s_addc_u32 s49, s25, 0')
                for a in range(3):
                    self.mkchk(112 + 4 * a)
                    if 'nofpub' not in self.exp:
                        A(f'global_store_dwordx4 v23, v[{112 + 4*a}:{115 + 4*a}], s[48:49] offset:{1024 * a} sc1')
            if self.ffnboost:
                A(f'v_mov_b32 v30, {FL}')
                A('v_mov_b32 v31, 0')
                A('s_mov_b64 exec, 1')
                A('ds_write_b32 v30, v31 offset:48')
                A('s_mov_b64 exec, -1')
            self.L('L_h_ffn_done')
            if not self.flate:
                A(f's_cmp_ge_u32 s97, {NRED}')
                A('s_cbranch_scc1 L_h_tail')
                if 'nofgather' in self.exp or 'noffn' in self.exp:
                    A('s_branch L_h_tail')
                A(f'v_mov_b32 v34, {FL}')
                self.spin_begin(42)
                self.L('L_h_fwait')
                A('ds_read_b32 v35, v34 offset:16')
                A('s_waitcnt lgkmcnt(0)')
                A('v_readfirstlane_b32 s40, v35')
                A(f's_cmp_ge_u32 s40, {self.nunits // 2}')
                A('s_cbranch_scc1 L_h_fgo')
                self.spin_retry(42, 'L_h_fwait', sleep=64)
                self.L('L_h_fgo')
                self.f_gather('L_h_f', sleep=32, probe=True)
        self.L('L_h_tail')
        A('s_waitcnt vmcnt(0) lgkmcnt(0)')
        self.stamp(7)
        A('v_lshrrev_b32 v30, 3, v1')
        A('v_and_b32 v31, 7, v1')
        A('v_min_u32 v32, 5, v31')
        A('s_lshl_b32 s58, s27, 15')
        A('v_lshlrev_b32 v33, 11, v30')
        step8 = 8 * 2048
        A('s_lshl_b32 s40, s28, 7')
        A('s_add_u32 s58, s58, s40')
        A(f's_add_u32 s58, s58, {WS_P}')
        A('s_add_u32 s48, s24, s58')
        A('s_addc_u32 s49, s25, 0')
        A('v_lshl_add_u32 v34, v32, 4, v33')
        A(f'v_add_u32 v35, {step8}, v34')
        A('v_add_u32 v36, 80, v33')
        A(f'v_add_u32 v37, {step8}, v36')
        if not self.warm_late:
            self.tail_warm()
        if self.layout3 and self.pads and self.hchain:
            self.o.append('@CHAIN2')
        US, LA, NI = self.US, self.LA, self.NI
        A(f'v_mov_b32 v38, {FL}')
        def put_id(kreg, valreg_v):
            A(f's_lshl_b32 s40, s{kreg}, 2')
            A(f's_add_u32 s40, s40, {IDS}')
            A('v_mov_b32 v39, s40')
            A('s_mov_b64 exec, 1')
            A(f'ds_write_b32 v39, v{valreg_v}')
            A('s_mov_b64 exec, -1')
        def wait_tk(val, lab, sleep=1):
            self.spin_begin(42)
            self.L(lab)
            A('ds_read_b32 v44, v38 offset:52')
            A('s_waitcnt lgkmcnt(0)')
            A('v_readfirstlane_b32 s40, v44')
            A(f's_cmp_ge_u32 s40, {val}')
            A(f's_cbranch_scc1 {lab}_ok')
            self.spin_retry(42, lab, sleep=sleep)
            self.L(f'{lab}_ok')
        if self.share:
            C, pool = self.C, ((self.UB if self.share2 else 64) - US) * 64
            navg = pool / 16
            import struct as _st
            f2h = lambda x: '%#x' % _st.unpack('<I', _st.pack('<f', x))[0]
            if self.pertau:
                self.spin_begin(42)
                self.L('L_h_sw1')
                A('ds_read_b64 v[40:41], v38 offset:232')
                A('s_waitcnt lgkmcnt(0)')
                A('v_readfirstlane_b32 s40, v41')
                A('s_cmp_lg_u32 s40, 0')
                A('s_cbranch_scc1 L_h_sw1_ok')
                self.spin_retry(42, 'L_h_sw1', sleep=8)
                self.L('L_h_sw1_ok')
                A('v_mov_b32 v42, v40')
                A('v_mov_b32 v40, v41')
                A('v_mov_b32 v41, v42')
                A('v_mov_b32 v42, 0')
                A('s_lshl_b32 s40, s27, 8')
                A(f's_add_u32 s40, s40, {WS_T}')
                A('s_add_u32 s56, s24, s40')
                A('s_addc_u32 s57, s25, 0')
                A('s_lshl_b32 s58, s28, 4')
                A('v_mov_b32 v39, s58')
                self.mkchk(40)
                A('s_mov_b64 exec, 1')
                A('global_store_dwordx4 v39, v[40:43], s[56:57] sc1')
                A('s_mov_b64 exec, -1')
                wait_tk(4 * (C + self.Gd) - 4, 'L_h_sw2', sleep=4)
                A('v_and_b32 v39, 15, v1')
                A('v_lshlrev_b32 v39, 4, v39')
                self.poll('L_h_t', ['global_load_dwordx4 v[40:43], v39, s[56:57] sc1'], lambda: self.chk3([40], 44, 45), sleep=4, probe=False)
                A('v_readfirstlane_b32 s40, v40')
                A('v_sub_u32 v45, v40, v41')
                A('s_nop 0')
                A('v_subrev_u32 v44, s40, v40')
                A('v_cvt_f32_i32 v44, v44')
                A('v_cvt_f32_u32 v45, v45')
                A(f'v_mul_f32 v45, {f2h(1 / (4 * (C - self.C0)))}, v45')
                A('v_mov_b32 v46, v45')
                self.rowred('v_add_f32', 46)
                A(f'v_mul_f32 v46, {f2h(1 / 16)}, v46')
                A('v_sub_f32 v45, v45, v46')
                A(f'v_mul_f32 v45, {f2h(self.lam)}, v45')
                A('v_add_f32 v45, v45, v46')
                A('v_rcp_f32 v45, v45')
                A('s_nop 0')
                A('v_mul_f32 v46, v44, v45')
                A('v_mov_b32 v47, v45')
                self.mrowred('v_add_f32', [46, 47], (8, 4, 2, 1))
                A(f'v_add_f32 v46, {f2h(float(pool + 64 * (US - C)))}, v46')
                A('v_rcp_f32 v47, v47')
                A('s_nop 0')
                A('v_mul_f32 v46, v46, v47')
                A('v_sub_f32 v46, v46, v44')
                A('v_mul_f32 v46, v46, v45')
                A(f'v_subrev_f32 v46, {f2h(float(4 * (US - C)))}, v46')
            else:
                wait_tk(4 * C - 4, 'L_h_sw1')
                A('s_memrealtime s[50:51]')
                if self.tau2:
                    A(f's_sub_u32 s31, s40, {4 * C - 4}')
                A('s_lshl_b32 s40, s27, 8')
                A(f's_add_u32 s40, s40, {WS_T}')
                A('s_add_u32 s56, s24, s40')
                A('s_addc_u32 s57, s25, 0')
                A('s_lshl_b32 s58, s28, 4')
                A('v_mov_b32 v39, s58')
                A('s_waitcnt lgkmcnt(0)')
                A('v_mov_b32 v40, s50')
                A('v_mov_b32 v41, s98')
                A('v_mov_b32 v42, 0')
                if self.tau2:
                    A('s_mov_b32 s30, s50')
                self.mkchk(40)
                A('s_mov_b64 exec, 1')
                A('global_store_dwordx4 v39, v[40:43], s[56:57] sc1')
                A('s_mov_b64 exec, -1')
                wait_tk(4 * (C + self.Gd) - 4, 'L_h_sw2', sleep=4)
                A('v_and_b32 v39, 15, v1')
                A('v_lshlrev_b32 v39, 4, v39')
                self.poll('L_h_t', ['global_load_dwordx4 v[40:43], v39, s[56:57] sc1'], lambda: self.chk3([40], 44, 45), sleep=4, probe=False)
                A('v_readfirstlane_b32 s40, v40')
                A('v_sub_u32 v45, v40, v41')
                A('s_nop 0')
                A('v_subrev_u32 v44, s40, v40')
                A('v_cvt_f32_i32 v44, v44')
                A('v_cvt_f32_u32 v45, v45')
                A('v_mov_b32 v46, v44')
                self.rowred('v_add_f32', 46)
                self.rowred('v_add_f32', 45)
                import struct as _st
                f2h = lambda x: '%#x' % _st.unpack('<I', _st.pack('<f', x))[0]
                A(f'v_mul_f32 v46, {f2h(1 / 16)}, v46')
                A(f'v_mul_f32 v45, {f2h(self.taufac / (16 * 4 * C))}, v45')
                A('v_rcp_f32 v45, v45')
                A('v_sub_f32 v46, v46, v44')
                A('s_nop 0')
                A('v_mul_f32 v46, v46, v45')
                A(f'v_add_f32 v46, {f2h(navg)}, v46')
            def shares(pool_, cap_, off):
                A('v_max_f32 v46, 0, v46')
                A(f'v_min_f32 v46, {f2h(cap_)}, v46')
                A('v_mov_b32 v47, v46')
                self.rowred('v_add_f32', 47)
                A('v_rcp_f32 v47, v47')
                A('s_nop 0')
                A(f'v_mul_f32 v47, {f2h(float(pool_))}, v47')
                A('v_mul_f32 v46, v46, v47')
                for sh in (1, 2, 4, 8):
                    A('s_nop 1')
                    A(f'v_add_f32_dpp v46, v46, v46 row_shr:{sh} row_mask:0xf bank_mask:0xf bound_ctrl:0')
                A('v_add_f32 v46, 0.5, v46')
                A('v_cvt_i32_f32 v46, v46')
                A(f'v_min_i32 v46, {pool_}, v46')
                A('s_mov_b32 s50, 0x80008000')
                A('s_mov_b32 s51, 0x80008000')
                A(f'v_mov_b32 v47, {pool_}')
                A('v_cndmask_b32 v46, v46, v47, s[50:51]')
                A('v_mov_b32 v47, 0')
                A('s_nop 1')
                A('v_mov_b32_dpp v47, v46 row_shr:1 row_mask:0xf bank_mask:0xf bound_ctrl:0')
                A('v_sub_u32 v46, v46, v47')
                A('v_add_u32 v46, 1, v46')
                A('s_nop 0')
                A('v_readlane_b32 s50, v46, s28')
                A('v_readlane_b32 s51, v47, s28')
                A('s_nop 1')
                A('v_mov_b32 v46, s50')
                A('v_mov_b32 v47, s51')
                A(f'v_mov_b32 v39, {IDS + off}')
                A('s_mov_b64 exec, 1')
                A('ds_write_b64 v39, v[46:47]')
                A('s_mov_b64 exec, -1')
            if self.share2:
                A('v_mov_b32 v48, v45')
            shares(pool, 2.5 * navg, 0)
            if self.share2:
                pool2 = (64 - self.UB) * 64
                navg2 = pool2 / 16
                A(f's_add_u32 s58, s50, {4 * US - 1 - 4 - self.K2}')
                def wait_tks(sreg, lab, sleep):
                    self.spin_begin(42)
                    self.L(lab)
                    A('ds_read_b32 v44, v38 offset:52')
                    A('s_waitcnt lgkmcnt(0)')
                    A('v_readfirstlane_b32 s40, v44')
                    A(f's_cmp_ge_u32 s40, s{sreg}')
                    A(f's_cbranch_scc1 {lab}_ok')
                    self.spin_retry(42, lab, sleep=sleep)
                    self.L(f'{lab}_ok')
                wait_tks(58, 'L_h_s2a', 2)
                A('s_memrealtime s[56:57]')
                A(f's_add_u32 s59, s50, {4 * US - 1 - 4}')
                A('s_sub_i32 s59, s59, s40')
                A('s_max_i32 s59, s59, 0')
                A('s_waitcnt lgkmcnt(0)')
                A('v_mov_b32 v40, s56')
                A('v_mov_b32 v41, s59')
                if self.tau2:
                    A(f's_sub_u32 s40, s40, {4 * C - 4}')
                    A('s_sub_u32 s40, s40, s31')
                    A('s_sub_u32 s59, s56, s30')
                    A('v_cvt_f32_u32 v42, s40')
                    A('v_cvt_f32_u32 v43, s59')
                    A('v_rcp_f32 v42, v42')
                    A('s_nop 0')
                    A('v_mul_f32 v42, v42, v43')
                else:
                    A('v_mov_b32 v42, 0')
                A('s_lshl_b32 s40, s27, 8')
                A(f's_add_u32 s40, s40, {WS_T2}')
                A('s_add_u32 s56, s24, s40')
                A('s_addc_u32 s57, s25, 0')
                A('s_lshl_b32 s59, s28, 4')
                A('v_mov_b32 v39, s59')
                self.mkchk(40)
                A('s_mov_b64 exec, 1')
                A('global_store_dwordx4 v39, v[40:43], s[56:57] sc1')
                A('s_mov_b64 exec, -1')
                A(f's_add_u32 s58, s58, {self.Gd2}')
                wait_tks(58, 'L_h_s2b', 2)
                A('v_and_b32 v39, 15, v1')
                A('v_lshlrev_b32 v39, 4, v39')
                self.poll('L_h_t2', ['global_load_dwordx4 v[40:43], v39, s[56:57] sc1'], lambda: self.chk3([40], 44, 45), sleep=2, probe=False)
                A('v_readfirstlane_b32 s40, v40')
                A('v_cvt_f32_u32 v45, v41')
                A('s_nop 0')
                A('v_subrev_u32 v44, s40, v40')
                A('v_cvt_f32_i32 v44, v44')
                if self.tau2:
                    A('v_mov_b32 v46, v42')
                    self.rowred('v_add_f32', 46)
                    A(f'v_mul_f32 v46, {f2h(1 / 16)}, v46')
                    A('v_sub_f32 v42, v42, v46')
                    A(f'v_mul_f32 v42, {f2h(self.lam2)}, v42')
                    A('v_add_f32 v42, v42, v46')
                    A('v_rcp_f32 v42, v42')
                    A('s_nop 0')
                    A('v_mul_f32 v46, v44, v42')
                    A('v_add_f32 v46, v46, v45')
                    A('v_mov_b32 v47, v42')
                    self.mrowred('v_add_f32', [46, 47], (8, 4, 2, 1))
                    A(f'v_add_f32 v46, {f2h(float(pool2))}, v46')
                    A('v_rcp_f32 v47, v47')
                    A('s_nop 0')
                    A('v_mul_f32 v46, v46, v47')
                    A('v_sub_f32 v46, v46, v44')
                    A('v_mul_f32 v46, v46, v42')
                    A('v_sub_f32 v46, v46, v45')
                else:
                    A(f'v_mul_f32 v44, v44, v48')
                    A(f'v_mul_f32 v44, {f2h(1 / self.taufac2)}, v44')
                    A('v_add_f32 v44, v44, v45')
                    A('v_mov_b32 v46, v44')
                    self.rowred('v_add_f32', 46)
                    A(f'v_mul_f32 v46, {f2h(1 / 16)}, v46')
                    A('v_sub_f32 v46, v46, v44')
                    A(f'v_add_f32 v46, {f2h(navg2)}, v46')
                shares(pool2, self.cap2 * navg2, 8)
                A('s_mov_b32 s50, 1')
            A(f's_add_u32 s50, s50, {4 * US - 4 - self.warm_tiles}')
            self.spin_begin(42)
            self.L('L_h_sw3')
            A('ds_read_b32 v44, v38 offset:52')
            A('s_waitcnt lgkmcnt(0)')
            A('v_readfirstlane_b32 s40, v44')
            A('s_cmp_ge_u32 s40, s50')
            A('s_cbranch_scc1 L_h_sw3_ok')
            self.spin_retry(42, 'L_h_sw3', sleep=4)
            self.L('L_h_sw3_ok')
            self.stamp(23)
        elif NI == 0:
            A('s_mov_b32 s50, 0')
            A('v_mov_b32 v44, -1')
            put_id(50, 44)
            if 'dumat' in self.exp:
                A(f's_mul_i32 s40, s27, {self.cstride}')
                A(f's_add_u32 s40, s40, {WS_CNT}')
                A('s_add_u32 s56, s24, s40')
                A('s_addc_u32 s57, s25, 0')
                A('v_mov_b32 v40, 0')
                A('v_mov_b32 v41, 1')
                A('s_mov_b32 s58, 48')
                self.L('L_h_da')
                A('s_lshl_b32 s51, s58, 2')
                self.spin_begin(42)
                self.L('L_h_daw')
                A('ds_read_b32 v44, v38 offset:52')
                A('s_waitcnt lgkmcnt(0)')
                A('v_readfirstlane_b32 s40, v44')
                A('s_cmp_ge_u32 s40, s51')
                A('s_cbranch_scc1 L_h_daok')
                self.spin_retry(42, 'L_h_daw', sleep=2)
                self.L('L_h_daok')
                A('s_mov_b64 exec, 1')
                A('global_atomic_add v42, v40, v41, s[56:57] sc0')
                A('s_mov_b64 exec, -1')
                A('s_waitcnt vmcnt(0)')
                A('s_add_u32 s58, s58, 1')
                A('s_cmp_lt_u32 s58, 63')
                A('s_cbranch_scc1 L_h_da')
        else:
            A(f's_mul_i32 s40, s27, {self.cstride}')
            A(f's_add_u32 s40, s40, {WS_CNT}')
            A('s_add_u32 s56, s24, s40')
            A('s_addc_u32 s57, s25, 0')
            A('v_mov_b32 v40, 0')
            A('v_mov_b32 v41, 1')
            def wait_progress(kreg, lab):
                A(f's_add_u32 s51, s{kreg}, {US - LA}')
                self.spin_begin(42)
                self.L(lab)
                A('ds_read_b128 v[44:47], v38')
                A('s_waitcnt lgkmcnt(0)')
                A('v_max_u32 v44, v44, v45')
                A('v_max3_u32 v44, v44, v46, v47')
                A('s_nop 0')
                A('v_readfirstlane_b32 s40, v44')
                A('s_cmp_ge_u32 s40, s51')
                A(f's_cbranch_scc1 {lab}_ok')
                self.spin_retry(42, lab, sleep=4)
                self.L(f'{lab}_ok')
            def claim(dst):
                A('s_mov_b64 exec, 1')
                A(f'global_atomic_add v{dst}, v40, v41, s[56:57] sc0')
                A('s_mov_b64 exec, -1')
            if self.tickets:
                A('s_mov_b32 s58, 0')
                self.L('L_h_claim')
                A('s_lshl_b32 s51, s58, 2')
                A(f's_add_u32 s51, s51, {4 * US - 4 - self.LAt}')
                self.spin_begin(42)
                self.L('L_h_tw')
                A('ds_read_b32 v44, v38 offset:52')
                A('s_waitcnt lgkmcnt(0)')
                A('v_readfirstlane_b32 s40, v44')
                A('s_cmp_ge_u32 s40, s51')
                A('s_cbranch_scc1 L_h_tw_ok')
                self.spin_retry(42, 'L_h_tw', sleep=2)
                self.L('L_h_tw_ok')
                A(f's_mov_b32 s40, {NI}')
                A(f's_cmp_ge_u32 s58, {CAP}')
                A('s_cbranch_scc1 L_h_tres')
                claim(42)
                A('s_waitcnt vmcnt(0)')
                A('v_readfirstlane_b32 s40, v42')
                self.L('L_h_tres')
                if self.endmargin:
                    A(f's_cmp_lt_u32 s40, {max(NI - self.endmargin, 0)}')
                    A('s_cbranch_scc1 L_h_tnom')
                    A('v_mov_b32 v44, 1')
                    A('s_mov_b64 exec, 1')
                    A('ds_write_b32 v38, v44 offset:48')
                    A('s_mov_b64 exec, -1')
                    self.L('L_h_tnom')
                A(f's_cmp_ge_u32 s40, {NI}')
                A('s_cselect_b32 s40, -2, s40')
                A('s_add_u32 s59, s40, 1')
                A('v_mov_b32 v44, s59')
                put_id(58, 44)
                A('s_add_u32 s58, s58, 1')
                A('s_cmp_lg_u32 s59, -1')
                A('s_cbranch_scc1 L_h_claim')
            else:
                A('s_mov_b32 s50, 0')
                A('s_mov_b32 s58, 0')
                wait_progress(50, 'L_h_cw0')
                claim(42)
                A('s_mov_b32 s50, 1')
                self.L('L_h_claim')
                for par in range(2):
                    cur, nxt = 42 + par, 43 - par
                    last = self.lab('L_h_clast')
                    res = self.lab('L_h_cres')
                    A(f's_cmp_ge_u32 s50, {CAP}')
                    A(f's_cbranch_scc1 {last}')
                    wait_progress(50, self.lab('L_h_cw'))
                    claim(nxt)
                    A('s_add_u32 s50, s50, 1')
                    A('s_waitcnt vmcnt(1)')
                    A(f's_branch {res}')
                    self.L(last)
                    A('s_waitcnt vmcnt(0)')
                    A(f'v_mov_b32 v{nxt}, {NI}')
                    self.L(res)
                    A(f'v_readfirstlane_b32 s40, v{cur}')
                    if self.endmargin:
                        nm = self.lab('L_h_nom')
                        A(f's_cmp_lt_u32 s40, {max(NI - self.endmargin, 0)}')
                        A(f's_cbranch_scc1 {nm}')
                        for q in range(4):
                            A(f'v_mov_b32 v{44 + q}, 1')
                        A('s_mov_b64 exec, 1')
                        A('ds_write_b128 v38, v[44:47] offset:48')
                        A('s_mov_b64 exec, -1')
                        self.L(nm)
                    A(f's_cmp_ge_u32 s40, {NI}')
                    A('s_cselect_b32 s40, -2, s40')
                    A('s_add_u32 s59, s40, 1')
                    A('v_mov_b32 v44, s59')
                    put_id(58, 44)
                    A('s_add_u32 s58, s58, 1')
                    A('s_cmp_eq_u32 s59, -1')
                    A('s_cbranch_scc1 L_h_cdone')
                A('s_branch L_h_claim')
            self.L('L_h_cdone')
            self.stamp(23)
            A('v_mov_b32 v44, 1')
            A('v_mov_b32 v45, 1')
            A('v_mov_b32 v46, 1')
            A('v_mov_b32 v47, 1')
            A('s_mov_b64 exec, 1')
            if self.tickets:
                A('ds_write_b32 v38, v44 offset:48')
            else:
                A('ds_write_b128 v38, v[44:47] offset:48')
            A('s_mov_b64 exec, -1')
            A('s_waitcnt vmcnt(0) lgkmcnt(0)')
        if self.warm_late:
            self.tail_warm()
        if 'notail' in self.exp:
            self.flush_stamps()
            A('s_endpgm')
        A('s_barrier')
        if self.pm_b:
            self.pollm('L_h_b', lambda bs: [f'global_load_dwordx4 v[{b}:{b+3}], v{34 + i}, s[48:49] sc1' for i, b in enumerate(bs)],
                       [[40, 44, 48, 52], [68, 72, 76, 80], [96, 100, 104, 108], [128, 132, 136, 140]][:self.nset_b], 56,
                       stag=self.stag_b, invs=[30, 32, 34, 36])
        elif self.dpoll:
            self.poll2('L_h_b', lambda bs: [f'global_load_dwordx4 v[{b}:{b+3}], v{34 + i}, s[48:49] sc1' for i, b in enumerate(bs)],
                       [40, 44, 48, 52], [68, 72, 76, 80], 56, 57, sleep=self.tsleep or 2, stag=self.stag_b, thresh=self.thresh_b,
                       more=([96, 100, 104, 108], [128, 132, 136, 140])[:self.nset_b - 2])
        else:
            self.poll('L_h_b', [f'global_load_dwordx4 v[{40 + 4*i}:{43 + 4*i}], v{34 + i}, s[48:49] sc1' for i in range(4)],
                      lambda: self.chk3([40, 44, 48, 52], 56, 57), sleep=2)
        self.stamp(15)
        A('v_max_f32 v56, v49, v53')
        self.rowred('v_max_f32', 56, rors=(8,))
        self.xrow('v_max_f32', 56, 57)
        A('v_sub_f32 v58, v49, v56')
        A('v_sub_f32 v59, v53, v56')
        A('v_exp_f32 v58, v58')
        A('v_exp_f32 v59, v59')
        A('s_nop 0')
        A('v_mul_f32 v60, v50, v58')
        for i in range(3):
            A(f'v_mul_f32 v{61 + i}, v{40 + i}, v58')
        A('v_fmac_f32 v60, v54, v59')
        for i in range(3):
            A(f'v_fmac_f32 v{61 + i}, v{44 + i}, v59')
        self.mrowred('v_add_f32', [60, 61, 62, 63], (8,))
        self.mxrow('v_add_f32', [60, 61, 62, 63], [84, 85, 86, 87])
        A('v_rcp_f32 v64, v60')
        A('s_nop 0')
        for r in (61, 62, 63):
            A(f'v_mul_f32 v65, v{r}, v64')
            A(f'v_fma_f32 v66, -v65, v60, v{r}')
            A(f'v_fma_f32 v{r}, v66, v64, v65')
        A('v_cvt_pk_bf16_f32 v61, v61, v62')
        A('v_cvt_pk_bf16_f32 v63, v63, v63')
        A('v_mul_u32_u24 v62, 6, v31')
        A(f'v_add_u32 v62, {OB}, v62')
        A('s_mov_b64 exec, 0x3f')
        A('ds_write_b16 v62, v61')
        A('s_mov_b64 exec, 0x1f')
        A('ds_write_b16_d16_hi v62, v61 offset:2')
        A('ds_write_b16 v62, v63 offset:4')
        A('s_mov_b64 exec, -1')
        A('s_waitcnt lgkmcnt(0)')
        A('s_barrier')
        self.flush_stamps(extra=[(30, 64)])
        A('s_endpgm')

    def build(self):
        head = HEADER + f'; @launch grid=(256,1,1) block=(576,1,1) lds={LDS_BYTES}\n'
        head += '.amdgcn_target "amdgcn-amd-amdhsa--gfx950"\n.text\n'
        head += f'.globl {KNAME}\n.p2align 8\n.type {KNAME},@function\n{KNAME}:\n'
        if self.layout3:
            self.entry3()
            self.loader3()
            if self.halign:
                self.o.append('  .balignl 256, 0xbf810000')
                self.o.append('  .fill 48, 4, 0xbf810000')
            self.helper()
            self.cons0()
            self.consumer()
        else:
            self.entry()
            self.consumer()
            if self.tickets:
                self.loader_tk()
            else:
                self.loader()
            self.helper()
        self.L('L_end')
        self.A('s_endpgm')
        if 'coldprobe' in self.exp:
            for k in range(6):
                self.o.append('  .fill 512, 4, 0xbf800000')
                self.L(f'L_cp{k}')
                self.A(f's_branch L_cp{k+1}' if k < 5 else 's_branch L_cpback')
        tail = f'''.section .rodata,"a"
.p2align 6
.amdhsa_kernel {KNAME}
  .amdhsa_next_free_vgpr 160
  .amdhsa_next_free_sgpr 100
  .amdhsa_accum_offset 160
  .amdhsa_group_segment_fixed_size 0
  .amdhsa_kernarg_size 88
  .amdhsa_user_sgpr_count 2
  .amdhsa_user_sgpr_kernarg_segment_ptr 1
  .amdhsa_system_sgpr_workgroup_id_x 1
  .amdhsa_float_denorm_mode_32 3
  .amdhsa_float_denorm_mode_16_64 3
.end_amdhsa_kernel
'''
        if self.layout3 and self.pads:
            self.place_pads(head, tail)
        return head + '\n'.join(self.o) + '\n' + tail

    def addresses(self, head, tail):
        import subprocess, tempfile, os, re
        lines = []
        idx = []
        for i, l in enumerate(self.o):
            if l.startswith('  ') and not l.strip().startswith('.'):
                lines.append(f'Lx_{i}:')
                idx.append(i)
            lines.append('' if l.startswith('@') else l)
        with tempfile.TemporaryDirectory() as d:
            src = os.path.join(d, 'a.s'); obj = os.path.join(d, 'a.o')
            open(src, 'w').write(head + '\n'.join(lines) + '\n' + tail)
            r = subprocess.run(['clang', '-x', 'assembler', '-target', 'amdgcn-amd-amdhsa', '-mcpu=gfx950', '-c', src, '-o', obj], capture_output=True, text=True)
            assert r.returncode == 0, r.stderr[:2000]
            out = subprocess.run(['llvm-objdump', '-t', obj], capture_output=True, text=True).stdout
        adr = {}
        for m in re.finditer(r'^([0-9a-f]{16}) .* Lx_(\d+)$', out, re.M):
            adr[int(m.group(2))] = int(m.group(1), 16)
        return adr

    def place_pads(self, head, tail):
        o = self.o
        names = []

        def lab_index(name):
            return o.index(name + ':')

        def insert(first_block, limit_addr, name, after_idx=0):
            adr = self.addresses(head, tail)
            order = sorted(adr)
            blk = first_block
            while True:
                best = None
                for i in order:
                    if i < after_idx:
                        continue
                    a = adr[i]
                    if a >> 8 > blk:
                        break
                    prev = o[i - 1].strip() if i else ''
                    j = i
                    while j > 0 and not o[j - 1].startswith('  '):
                        j -= 1
                    prev = o[j - 1].strip() if j else ''
                    dead = prev.startswith('s_branch') or prev == 's_endpgm'
                    pa = a if dead else a + 4
                    if pa >> 8 == blk and 192 <= (pa & 255) <= 252 and a >> 8 == blk:
                        if best is None or dead and not best[1]:
                            best = (j, dead)
                if best:
                    j, dead = best
                    ins = [f'{name}:', f'  s_branch {name}_next']
                    if not dead:
                        ins = [f'  s_branch {name}_skip'] + ins + [f'{name}_skip:']
                    o[j:j] = ins
                    return blk
                blk += 1
                if blk * 256 + 192 > limit_addr:
                    return None

        c = o.index('@CHAIN')
        code = []
        for w in range(3):
            code += [f'  s_cmp_eq_u32 s26, {w}', f'  s_cbranch_scc1 L_end ; CH{w}']
        code += ['  s_branch L_end ; CH3', 'L_chain_done:']
        o[c:c + 1] = code
        if '@CHAIN2' in o:
            c = o.index('@CHAIN2')
            o[c:c + 1] = ['  s_branch L_end ; CH4', 'L_chain2_done:']
        k = max(i for i, l in enumerate(o[:80]) if 'global_load_lds_dwordx4' in l)
        o.append('L_pad_e:'); o.append('  s_branch L_e1')
        adr = self.addresses(head, tail)
        del o[-2:]
        cand = [i for i in sorted(adr) if i <= k + 1 and 192 <= ((adr[i] + 4) & 255) <= 248 and adr[i] < 256]
        j = cand[-1]
        o[j:j] = ['  s_branch L_pad_e_skip', 'L_pad_e:', '  s_branch L_e1', 'L_pad_e_skip:']
        def addr_of(adr, name):
            i = lab_index(name)
            while i not in adr:
                i += 1
            return adr[i]
        placed = []
        adr = self.addresses(head, tail)
        blk = addr_of(adr, 'L_ld_sp0') >> 8
        while True:
            adr = self.addresses(head, tail)
            end = addr_of(adr, 'L_end')
            hb = addr_of(adr, 'L_helper') >> 8
            if hb <= blk < hb + 5:
                blk = hb + 5
            if self.skipffn:
                f1, ft = addr_of(adr, 'L_h_f1') >> 8, addr_of(adr, 'L_h_tail') >> 8
                if f1 < blk < ft:
                    blk = ft
            if blk * 256 >= end:
                break
            name = f'L_pad_{len(placed)}'
            o.append(f'{name}_next:'); o.append('  s_branch L_end')
            lim = hb * 256 - 1 if blk < hb else end
            b = insert(blk, lim, name)
            if b is None:
                del o[-2:]
                blk = hb + 5 if blk < hb else 1 << 20
                continue
            placed.append((name, b))
            blk = b + 5
        adr = self.addresses(head, tail)
        regions = [('L_helper', 'L_h_f1'), ('L_cons1', 'L_c_done'), ('L_c_done', 'L_end'), ('L_ld_sp0', 'L_helper'), ('L_h_f1', 'L_cons1')]
        pads = []
        for ra, rb in regions:
            lo, hi = addr_of(adr, ra) >> 8, addr_of(adr, rb) >> 8
            for name, b in placed:
                if name not in pads and b <= hi and b + 4 >= lo:
                    pads.append(name)
        pads = pads[:self.npads or None]
        late = []
        if self.hchain:
            for ra, rb in [('L_ld_sp0', 'L_helper'), ('L_h_tail', 'L_cons1')] + ([('L_c_done', 'L_end')] if self.latetail else []):
                lo, hi = addr_of(adr, ra) >> 8, addr_of(adr, rb) >> 8
                for name, b in placed:
                    if name not in pads and name not in late and b <= hi and b + 4 >= lo:
                        late.append(name)
        dropped = [n for n, _ in placed if n not in pads and n not in late]
        o[:] = [l for n, l in enumerate(o) if not (l.endswith('_next:') or (n and o[n - 1].endswith('_next:')))]
        chains = [pads[w::4] for w in range(4)]
        nxt = {n: 'L_chain_done' for n in dropped}
        for ch in chains:
            for a, b in zip(ch, ch[1:] + ['L_chain_done']):
                nxt[a] = b
        for a, b in zip(late, late[1:] + ['L_chain2_done']):
            nxt[a] = b
        chains.append(late or ['L_chain2_done'])
        for n, l in enumerate(o):
            s_ = l.strip()
            if s_.startswith('s_branch L_pad_') and s_.endswith('_next'):
                o[n] = f'  s_branch {nxt[s_.split()[1][:-5]]}'
        for n, l in enumerate(o):
            if '; CH' in l:
                o[n] = l.split('L_end')[0] + chains[int(l[-1])][0]
        self.padinfo = (pads, chains)


if __name__ == '__main__':
    import argparse
    ap = argparse.ArgumentParser()
    ap.add_argument('-o', default='parallel_sum__gqa_block_cached__dense_activation_silu__decode.s')
    ap.add_argument('--W', type=int, default=5)
    ap.add_argument('--rot', type=int, default=7)
    ap.add_argument('--headmap', default='lin')
    ap.add_argument('--stamps', action='store_true')
    ap.add_argument('--exp', default='')
    a = ap.parse_args()
    open(a.o, 'w').write(Gen(W=a.W, rot=a.rot, headmap=a.headmap, stamps=a.stamps, exp=[e for e in a.exp.split(',') if e]).build())
    print('wrote', a.o)
```

```python
import sys

KNAME = 'parallel_sum__gqa_block_cached__dense_activation_silu__decode_kernel'

HEADER = '''; Kernarg layout for this problem (88 bytes, ptrs only, base s[0:1]):
'''

RING = 32768
STG = 0x20000
XN = 0x24800
QL = 0x24D00
FL = 0x25000
OC = 0x25100
OCML = 0x26100
OB = 0x26180
RED = 0x26200
FFNR = 0x26480
AB = 0x26400
W2S = 0
TBL = 0x26500
FB = 0x26500
LDS_BYTES = 0x28000

WS_EPOCH = 0x0
WS_Q = 0x10000
WS_P = 0x80000
WS_Y2 = 0x200000
WS_Y = 0x100000
WS_A = 0x30000
WS_F = 0x38000
NRED = 48
NFFN = 72
WS_DBG = 0x800000

SCALE = 0x3DB504F3
LOG2E = 0x3FB8AA3B
SPIN = 0x40000
IDS = FL + 64
CAP = 40
WS_T = 0x4000
WS_T2 = 0x6000
WS_CNT = 0x1C0000


class Gen:
    def __init__(self, W=5, rot=8, headmap='lin', stamps=False, nunits=64, exp=(), ffn_win=6, warm_before=4, US=56, LA=2, preread=True, wotail=True, Wend=12, endmargin=32, cstride=12544, earlyflags=True, fastpoll=True, dpoll=True, stag=8, tickets=True, LAt=6, tk_pos=4, prog_pts=(4, 8, 16, 32, 48), nstart=0, share=True, C=50, Gd=3, xfast=8, taufac=0.95, warm_tiles=10, tsleep=0, thresh=64, a_at=36, warm_late=False, w2late=False, wo_by='w23', pertau=False, C0=34, lam=0.7, hfirst=False, ffnboost=False, xrot=448, share2=True, UB=62, K2=12, Gd2=5, taufac2=1.0, cap2=2.5, fastpro=True, nset_b=2, nset_d=2, stag_b=None, stag_d=None, thresh_b=None, thresh_d=None, pm_b=False, pm_d=False, redmap='spread', ffnmap='spread', warmP='selfld', warmY='selfld', flate=False, fwave=0, fsleep=2, wo_delay=False, wo_win=0, stage_end=True, tau2=False, lam2=0.7, layout3=True, pads=True, halign=True, npads=5, hchain=True, skipffn=True, latetail=True, out_pol='', trim=True, calign=True, tmap='jw', lblk=1, irot=0, S=4096, table=True):
        self.o = []
        self.W = W
        self.rot = rot
        self.headmap = headmap
        self.stamps = stamps
        self.nunits = nunits
        self.uid = 0
        self.pending = []
        self.exp = set(exp)
        self.ffn_win = ffn_win
        self.warm_before = warm_before
        self.US = US
        self.LA = LA
        self.NI = (64 - US) * 16
        self.preread = preread
        self.wotail = wotail
        self.Wend = Wend
        self.ffnboost = ffnboost
        self.xrot = xrot
        self.share2 = share2
        self.fastpro = fastpro
        self.nset_b = nset_b
        self.pm_b = pm_b
        self.redmap = redmap
        self.warmP = warmP
        self.flate = flate
        self.fwave = fwave
        self.wo_delay = wo_delay
        self.stage_end = stage_end
        self.tau2 = tau2
        self.layout3 = layout3
        self.pads = pads
        self.halign = halign
        self.npads = npads
        self.hchain = hchain
        self.skipffn = skipffn
        self.trim = trim
        self.tmap = tmap
        self.lblk = lblk
        self.irot = irot
        self.table = table
        if table:
            assert US % (1 << lblk) == 0 and UB % (1 << lblk) == 0 and not flate
        self.S = S
        assert US % (1 << lblk) == 0
        self.calign = calign
        self.out_pol = out_pol
        self.latetail = latetail
        self.lam2 = lam2
        self.wo_win = wo_win
        self.fsleep = fsleep
        self.warmY = warmY
        self.ffnmap = ffnmap
        self.pm_d = pm_d
        self.nset_d = nset_d
        self.stag_b = stag if stag_b is None else stag_b
        self.stag_d = stag if stag_d is None else stag_d
        self.thresh_b = thresh if thresh_b is None else thresh_b
        self.thresh_d = thresh if thresh_d is None else thresh_d
        self.UB = UB
        self.K2 = K2
        self.Gd2 = Gd2
        self.taufac2 = taufac2
        self.cap2 = cap2
        self.hfirst = hfirst
        self.pertau = pertau
        self.C0 = C0
        self.lam = lam
        self.wo_by = wo_by
        self.w2late = w2late
        self.warm_late = warm_late
        self.a_at = a_at
        self.tsleep = tsleep
        self.thresh = thresh
        self.share = share
        self.C = C
        self.Gd = Gd
        self.xfast = xfast
        self.taufac = taufac
        self.warm_tiles = warm_tiles
        self.nstart = nstart
        self.prog_pts = prog_pts
        self.dpoll = dpoll
        self.stag = stag
        self.tickets = tickets
        self.LAt = LAt
        self.tk_pos = tk_pos
        self.fastpoll = fastpoll
        self.earlyflags = earlyflags
        self.cstride = cstride
        self.endmargin = endmargin
        self.sleepmul = 8 if 'slowpoll' in self.exp else 1

    def A(self, s):
        self.o.append('  ' + s)

    def L(self, s):
        self.o.append(s + ':')

    def lab(self, base):
        self.uid += 1
        return f'{base}_{self.uid}'

    def stamp(self, idx, vtmp=126):
        if not self.stamps:
            return
        k = len(self.pending)
        assert k < 12
        self.pending.append(idx)
        self.A(f's_memrealtime s[{66 + 2*k}:{67 + 2*k}]')

    def stamp_at(self, idx, k):
        while len(self.pending) <= k:
            self.pending.append(None)
        self.pending[k] = idx
        self.A(f's_memrealtime s[{66 + 2*k}:{67 + 2*k}]')

    def flush_stamps(self, vtmp=126, extra=()):
        if not self.stamps:
            return
        A = self.A
        A('s_lshl_b32 s92, s2, 7')
        A(f's_add_u32 s92, s92, {WS_DBG}')
        A('s_add_u32 s94, s24, s92')
        A('s_addc_u32 s95, s25, 0')
        A('s_waitcnt lgkmcnt(0)')
        A(f'v_mov_b32 v{vtmp+1}, 0')
        A('s_mov_b64 exec, 1')
        for k, idx in enumerate(self.pending):
            if idx is None:
                continue
            A(f'v_mov_b32 v{vtmp}, s{66 + 2*k}')
            A(f'global_store_dword v{vtmp+1}, v{vtmp}, s[94:95] offset:{idx * 4}')
        for idx, sreg in extra:
            A(f'v_mov_b32 v{vtmp}, s{sreg}')
            A(f'global_store_dword v{vtmp+1}, v{vtmp}, s[94:95] offset:{idx * 4}')
        A('s_mov_b64 exec, -1')

    def xrow(self, op, v, t):
        A = self.A
        A(f'v_mov_b32 v{t}, v{v}')
        A('s_nop 1')
        A(f'v_permlane16_swap_b32 v{v}, v{t}')
        A('s_nop 1')
        A(f'{op} v{v}, v{v}, v{t}')
        A(f'v_mov_b32 v{t}, v{v}')
        A('s_nop 1')
        A(f'v_permlane32_swap_b32 v{v}, v{t}')
        A('s_nop 1')
        A(f'{op} v{v}, v{v}, v{t}')

    def rowred(self, op, v, rors=(8, 4, 2, 1)):
        A = self.A
        for r in rors:
            A('s_nop 1')
            A(f'{op}_dpp v{v}, v{v}, v{v} row_ror:{r} row_mask:0xf bank_mask:0xf')

    def mrowred(self, op, regs, rors):
        A = self.A
        pad = max(0, 3 - len(regs))
        for r in rors:
            for _ in range(pad):
                A('s_nop 0')
            for v in regs:
                A(f'{op}_dpp v{v}, v{v}, v{v} row_ror:{r} row_mask:0xf bank_mask:0xf')
        return

    def mxrow(self, op, regs, tmps):
        A = self.A
        pad = max(0, 3 - len(regs))
        for swap in ('v_permlane16_swap_b32', 'v_permlane32_swap_b32'):
            for v, t in zip(regs, tmps):
                A(f'v_mov_b32 v{t}, v{v}')
            for _ in range(pad + 1):
                A('s_nop 0')
            for v, t in zip(regs, tmps):
                A(f'{swap} v{v}, v{t}')
            for _ in range(pad):
                A('s_nop 0')
            for v, t in zip(regs, tmps):
                A(f'{op} v{v}, v{v}, v{t}')

    def wavesum(self, v, t):
        self.rowred('v_add_f32', v)
        self.xrow('v_add_f32', v, t)

    def bf16r(self, dst, src, t):
        self.A(f'v_cvt_pk_bf16_f32 v{t}, v{src}, v{src}')
        self.A(f'v_lshlrev_b32 v{dst}, 16, v{t}')

    def spin_begin(self, sreg):
        self.A(f's_mov_b32 s{sreg}, {SPIN}')

    def spin_retry(self, sreg, loop, sleep=2):
        A = self.A
        A(f's_sleep {min(127, sleep * self.sleepmul)}')
        A(f's_sub_u32 s{sreg}, s{sreg}, 1')
        A(f's_cmp_lg_u32 s{sreg}, 0')
        A(f's_cbranch_scc1 {loop}')

    def wg_of(self, dst, s_h, s_or_imm_j):
        pass

    def entry(self):
        A = self.A
        if self.stamps:
            A('s_memrealtime s[90:91]')
        A('s_cmp_ge_u32 s2, 256')
        A('s_cbranch_scc1 L_end')
        A('s_load_dwordx16 s[4:19], s[0:1], 0')
        A('s_load_dwordx4 s[20:23], s[0:1], 64')
        A('s_load_dwordx2 s[24:25], s[0:1], 80')
        A('v_lshrrev_b32 v1, 6, v0')
        if self.headmap == 'lin':
            A('s_lshr_b32 s27, s2, 4')
            A('s_and_b32 s28, s2, 15')
        elif self.headmap == 'X4':
            A('s_and_b32 s40, s2, 7')
            A('s_lshr_b32 s41, s2, 3')
            A('s_lshl_b32 s41, s41, 1')
            A('s_and_b32 s28, s2, 1')
            A('s_add_u32 s41, s41, s28')
            A('s_lshr_b32 s40, s40, 1')
            A('s_lshl_b32 s27, s40, 2')
            A('s_lshr_b32 s28, s41, 4')
            A('s_add_u32 s27, s27, s28')
            A('s_and_b32 s28, s41, 15')
        elif self.headmap.startswith('G'):
            G = int(self.headmap[1:]); per = 16 // G
            A('s_and_b32 s40, s2, 7')
            A('s_lshr_b32 s41, s2, 3')
            A(f's_lshr_b32 s27, s41, {per.bit_length() - 1}')
            A(f's_and_b32 s28, s41, {per - 1}')
            A(f's_mul_i32 s28, s28, {G}')
            A(f's_and_b32 s41, s40, {G - 1}')
            A('s_add_u32 s28, s28, s41')
            A(f's_lshr_b32 s40, s40, {G.bit_length() - 1}')
            A(f's_mul_i32 s40, s40, {2 * G}')
            A('s_add_u32 s27, s27, s40')
        else:
            A('s_and_b32 s27, s2, 7')
            A('s_lshl_b32 s27, s27, 1')
            A('s_lshr_b32 s28, s2, 3')
            A('s_and_b32 s28, s28, 1')
            A('s_add_u32 s27, s27, s28')
            A('s_lshr_b32 s28, s2, 4')
        if self.ffnmap == 'spread':
            A('s_and_b32 s40, s27, 1')
            A('s_lshl_b32 s96, s27, 2')
            A('s_and_b32 s41, s28, 3')
            A('s_add_u32 s96, s96, s41')
            A('s_xor_b32 s41, s40, 1')
            A('s_lshl_b32 s41, s41, 2')
            A('s_bfe_u32 s42, s27, 0x20001')
            A('s_add_u32 s41, s41, s42')
            A('s_add_u32 s97, s27, 64')
            A('s_cmp_lt_u32 s27, 8')
            A('s_cselect_b32 s97, s97, 255')
            A('s_cmp_eq_u32 s28, s41')
            A('s_cselect_b32 s97, s97, 255')
            A('s_lshr_b32 s41, s28, 2')
            A('s_cmp_eq_u32 s41, s40')
            A('s_cselect_b32 s96, s96, s97')
        else:
            A('s_lshl_b32 s96, s27, 2')
            A('s_add_u32 s96, s96, s28')
            A('s_add_u32 s97, s27, 64')
            A('s_cmp_lt_u32 s27, 8')
            A('s_cselect_b32 s97, s97, 255')
            A('s_cmp_eq_u32 s28, 4')
            A('s_cselect_b32 s97, s97, 255')
            A('s_cmp_lt_u32 s28, 4')
            A('s_cselect_b32 s96, s96, s97')
        if self.redmap == 'spread':
            A('s_mul_i32 s97, s27, 3')
            A('s_sub_u32 s40, s28, s97')
            A('s_and_b32 s40, s40, 7')
            A('s_add_u32 s97, s97, s40')
            A('s_cmp_lt_u32 s40, 3')
            A('s_cselect_b32 s97, s97, 255')
            A('s_cmp_ge_u32 s28, 8')
            A('s_cselect_b32 s97, s97, 255')
        else:
            A('s_mul_i32 s97, s27, 3')
            A('s_add_u32 s97, s97, s28')
            A('s_sub_u32 s97, s97, 13')
            A('s_cmp_ge_u32 s28, 13')
            A('s_cselect_b32 s97, s97, 255')
        A('v_readfirstlane_b32 s26, v1')
        A('v_and_b32 v1, 63, v0')
        if self.fastpro:
            A('s_cmp_ge_u32 s26, 8')
            A('s_cbranch_scc1 L_helper')
            A('s_cmp_ge_u32 s26, 4')
            A('s_cbranch_scc1 L_loader')
        A('s_cmp_lg_u32 s26, 0')
        A('s_cbranch_scc1 L_noinit')
        A(f'v_lshlrev_b32 v2, 2, v1')
        A(f'v_add_u32 v2, {FL}, v2')
        A('v_mov_b32 v3, 0')
        A('ds_write_b32 v2, v3')
        self.L('L_noinit')
        A('s_waitcnt lgkmcnt(0)')
        if self.fastpro:
            A('s_barrier')
            return
        if self.hfirst:
            A('s_cmp_ge_u32 s26, 8')
            A('s_cbranch_scc1 L_helper')
        A('s_barrier')
        if not self.hfirst:
            A('s_cmp_ge_u32 s26, 8')
            A('s_cbranch_scc1 L_helper')
        A('s_cmp_ge_u32 s26, 4')
        A('s_cbranch_scc1 L_loader')

    def loader(self):
        A, W = self.A, self.W
        self.L('L_loader')
        self.pending = []
        if 'noload' in self.exp:
            A('s_endpgm')
        A('s_sub_u32 s29, s26, 4')
        A('s_lshl_b32 s40, s27, 24')
        A('s_add_u32 s30, s6, s40')
        A('s_addc_u32 s31, s7, 0')
        A('s_add_u32 s32, s8, s40')
        A('s_addc_u32 s33, s9, 0')
        A('s_lshl_b32 s41, s28, 2')
        A('s_add_u32 s41, s41, s29')
        A(f's_mul_i32 s40, s27, {self.rot * 64}')
        A('s_add_u32 s41, s41, s40')
        A('s_and_b32 s41, s41, 4095')
        A(f's_mul_i32 s38, s29, {RING}')
        A('v_lshrrev_b32 v2, 4, v1')
        A('v_and_b32 v3, 15, v1')
        A('v_lshlrev_b32 v4, 1, v2')
        A('v_xor_b32 v3, v3, v4')
        A('v_lshlrev_b32 v3, 4, v3')
        A('v_lshl_add_u32 v6, v2, 8, v3')
        A('v_xor_b32 v7, 128, v6')
        A('s_lshl_b32 s40, s29, 2')
        A(f's_add_u32 s40, s40, {FL}')
        A('v_mov_b32 v8, s40')
        A('s_mov_b32 s35, 0')
        A('s_mov_b32 s39, 0')
        A('v_mov_b32 v10, 0')
        A('s_mov_b32 s60, 0')
        A('s_mov_b32 s61, 0')
        if 'noprio' not in self.exp:
            A('s_setprio 2')
        pub_pos = (W - 1) % 8
        pub_off = (pub_pos - W + 1) // 8

        def publish(val_sreg_or_expr):
            A(f'v_mov_b32 v9, {val_sreg_or_expr}')
            A('s_mov_b64 exec, 1')
            A('ds_write_b32 v8, v9')
            A('s_mov_b64 exec, -1')

        US = self.US
        A(f's_mul_i32 s44, s27, {self.rot * 64}')
        A('s_add_u32 s44, s44, s29')
        A(f's_add_u32 s44, s44, {US * 64}')
        A('v_mov_b32 v11, 0')
        A('v_mov_b32 v13, 0')
        self.L('L_ld_loop')
        for u in range(4):
            ok = self.lab('L_ld_ok')
            sp = self.lab('L_ld_spin')
            st = self.lab('L_ld_static')
            idok = self.lab('L_ld_idok')
            idsp = self.lab('L_ld_idspin')
            if self.stamps and u == 0:
                for q, nn in enumerate((4, 8, 16, 32, 48)):
                    l = self.lab('L_ld_st')
                    A(f's_cmp_lg_u32 s35, {nn}')
                    A(f's_cbranch_scc1 {l}')
                    self.stamp(16 + q)
                    self.L(l)
            A('s_waitcnt lgkmcnt(0)')
            A('v_readfirstlane_b32 s39, v10')
            A('v_readfirstlane_b32 s45, v11')
            if self.Wend:
                A('v_readfirstlane_b32 s47, v13')
            A(f's_cmp_lt_u32 s35, {US}')
            A(f's_cbranch_scc1 {st}')
            A('s_cmp_lg_u32 s45, 0')
            A(f's_cbranch_scc1 {idok}')
            if self.stamps:
                A('s_add_u32 s61, s61, 1')
            A('s_waitcnt vmcnt(0)')
            publish('s35')
            self.spin_begin(42)
            self.L(idsp)
            A('ds_read_b32 v11, v12')
            A('s_waitcnt lgkmcnt(0)')
            A('v_readfirstlane_b32 s45, v11')
            A('s_cmp_lg_u32 s45, 0')
            A(f's_cbranch_scc1 {idok}')
            self.spin_retry(42, idsp, sleep=1)
            A('s_branch L_ld_end')
            self.L(idok)
            A('s_cmp_eq_u32 s45, -1')
            A('s_cbranch_scc1 L_ld_end')
            A('s_sub_u32 s45, s45, 1')
            A('s_lshl_b32 s45, s45, 2')
            A('s_add_u32 s41, s45, s44')
            A('s_and_b32 s41, s41, 4095')
            self.L(st)
            A('s_add_u32 s40, s39, 3')
            A('s_cmp_ge_u32 s40, s35')
            A(f's_cbranch_scc1 {ok}')
            A('s_waitcnt vmcnt(0)')
            publish('s35')
            if self.stamps:
                A('s_add_u32 s60, s60, 1')
            self.spin_begin(42)
            self.L(sp)
            A('ds_read_b32 v10, v8 offset:16')
            A('s_waitcnt lgkmcnt(0)')
            A('v_readfirstlane_b32 s39, v10')
            A('s_add_u32 s40, s39, 3')
            A('s_cmp_ge_u32 s40, s35')
            A(f's_cbranch_scc1 {ok}')
            self.spin_retry(42, sp, sleep=1)
            self.L(ok)
            A('s_lshl_b32 s40, s41, 12')
            A('s_add_u32 s46, s35, 1')
            A(f's_sub_i32 s46, s46, {US}')
            A('s_max_i32 s46, s46, 0')
            A('s_lshl_b32 s46, s46, 2')
            A(f's_add_u32 s46, s46, {IDS}')
            A('v_mov_b32 v12, s46')
            def issue(Wx):
                pp = (Wx - 1) % 8
                po = (pp - Wx + 1) // 8
                for kv in range(2):
                    A(f's_add_u32 s36, s{30 + 2 * kv}, s40')
                    A(f's_addc_u32 s37, s{31 + 2 * kv}, 0')
                    A(f's_add_u32 m0, s38, {(2 * u + kv) * 4096}')
                    for jj in range(4):
                        A(f's_waitcnt vmcnt({Wx - 1})')
                        if kv * 4 + jj == pp:
                            skip = self.lab('L_ld_np')
                            if po < 0:
                                A(f's_cmp_lt_u32 s35, {-po}')
                                A(f's_cbranch_scc1 {skip}')
                                A(f's_sub_u32 s43, s35, {-po}')
                                publish('s43')
                                self.L(skip)
                            else:
                                publish('s35')
                        pol = ' nt'
                        if (kv == 1 and 'vplain' in self.exp) or (kv == 0 and 'kplain' in self.exp):
                            pol = ''
                        A(f'global_load_lds_dwordx4 v{6 + (jj & 1)}, s[36:37] offset:{jj * 1024}{pol}')
                        if self.earlyflags and kv == 1 and jj == 1:
                            A('ds_read_b32 v10, v8 offset:16')
                            A('ds_read_b32 v11, v12')
                            if self.Wend:
                                A('ds_read_b32 v13, v8 offset:48')
            if self.Wend:
                fast = self.lab('L_ld_fast')
                join = self.lab('L_ld_join')
                A('s_cmp_lg_u32 s47, 0')
                A(f's_cbranch_scc1 {fast}')
                issue(W)
                A(f's_branch {join}')
                self.L(fast)
                issue(self.Wend)
                self.L(join)
                if not self.earlyflags:
                    A('ds_read_b32 v13, v8 offset:48')
            else:
                issue(W)
            if not self.earlyflags:
                A('ds_read_b32 v10, v8 offset:16')
                A('ds_read_b32 v11, v12')
            A('s_add_u32 s41, s41, 64')
            A('s_and_b32 s41, s41, 4095')
            A('s_add_u32 s35, s35, 1')
        A('s_branch L_ld_loop')
        self.L('L_ld_end')
        A('s_waitcnt vmcnt(0)')
        A('s_or_b32 s43, s35, 0x80000000')
        publish('s43')
        A('s_waitcnt lgkmcnt(0)')
        if self.stamps:
            A('s_cmp_lg_u32 s26, 4')
            A('s_cbranch_scc1 L_ld_ns')
            self.stamp(8)
            self.flush_stamps(extra=[(9, 60), (21, 35), (22, 61)])
            self.L('L_ld_ns')
        A('s_endpgm')


    def loader_tk(self):
        A, W, US = self.A, self.W, self.US
        self.L('L_loader')
        self.pending = []
        if 'noload' in self.exp:
            A('s_endpgm')
        if 'coldprobe' in self.exp:
            A('s_branch L_cp0')
            self.L('L_cpback')
        A('s_sub_u32 s29, s26, 4')
        xt = 'xt4' in self.exp
        if xt:
            A('s_mov_b32 s30, s6')
            A('s_mov_b32 s31, s7')
            A('s_mov_b32 s32, s8')
            A('s_mov_b32 s33, s9')
            A('s_lshr_b32 s54, s27, 2')
            A(f's_mul_i32 s44, s54, {self.xrot}')
            A('s_and_b32 s40, s27, 3')
            A('s_lshl_b32 s41, s40, 4')
            A('s_add_u32 s41, s41, s28')
            A('s_lshl_b32 s41, s41, 2')
            A('s_add_u32 s49, s41, s44')
            A(f's_mul_i32 s40, s40, {(64 - US) * 64}')
            A('s_add_u32 s44, s44, s40')
            A(f's_add_u32 s44, s44, {(US - 48) * 256}')
            A('s_lshl_b32 s54, s54, 2')
            A('s_add_u32 s55, s54, 3')
            A('s_lshl_b32 s55, s55, 12')
        else:
            if not self.fastpro:
                A('s_lshl_b32 s40, s27, 24')
                A('s_add_u32 s30, s6, s40')
                A('s_addc_u32 s31, s7, 0')
                A('s_add_u32 s32, s8, s40')
                A('s_addc_u32 s33, s9, 0')
            A(f's_mul_i32 s44, s27, {self.rot * 64}')
            A('s_lshl_b32 s41, s28, 2')
            A('s_add_u32 s49, s41, s44')
            A(f's_add_u32 s44, s44, {US * 64}')
        A(f's_mul_i32 s38, s29, {RING}')
        A('v_lshrrev_b32 v2, 4, v1')
        A('v_and_b32 v3, 15, v1')
        A('v_lshlrev_b32 v4, 1, v2')
        A('v_xor_b32 v3, v3, v4')
        A('v_lshlrev_b32 v3, 4, v3')
        A('v_lshl_add_u32 v6, v2, 8, v3')
        A('v_xor_b32 v7, 128, v6')
        A('s_lshl_b32 s40, s29, 2')
        A(f's_add_u32 s40, s40, {FL}')
        A('v_mov_b32 v8, s40')
        A(f'v_mov_b32 v14, {FL}')
        A('v_mov_b32 v16, 1')
        if self.fastpro:
            A('s_add_u32 s41, s49, s29')
            A('s_and_b32 s41, s41, 4095')
            A('s_lshl_b32 s41, s41, 12')
            A('s_lshl_b32 s40, s27, 24')
            A('s_add_u32 s41, s41, s40')
            A('s_mov_b32 m0, s38')
            A('s_waitcnt lgkmcnt(0)')
        A('s_mov_b32 s35, 0')
        A('s_mov_b32 s46, s29')
        A('v_mov_b32 v10, 0')
        A('v_mov_b32 v11, 0')
        A('v_mov_b32 v13, 0')
        A(f'v_mov_b32 v12, {IDS}')
        A('v_mov_b32 v18, 0')
        A('v_mov_b32 v19, 0')
        if self.share2:
            for r in range(20, 24):
                A(f'v_mov_b32 v{r}, 0')
        A('s_mov_b32 s60, 0')
        A('s_mov_b32 s61, 0')
        A('s_setprio 2')

        def publish(val):
            A(f'v_mov_b32 v9, {val}')
            A('s_mov_b64 exec, 1')
            A('ds_write_b32 v8, v9')
            A('s_mov_b64 exec, -1')

        if self.fastpro:
            assert not xt and self.tk_pos >= 4 and (W - 1) % 8 >= 4
            A('s_add_u32 s36, s6, s41')
            A('s_addc_u32 s37, s7, 0')
            for jj in range(4):
                A(f'global_load_lds_dwordx4 v{6 + (jj & 1)}, s[36:37] offset:{jj * 1024} nt')
            A('s_add_u32 s30, s6, s40')
            A('s_addc_u32 s31, s7, 0')
            A('s_add_u32 s32, s8, s40')
            A('s_addc_u32 s33, s9, 0')
            A('s_sub_u32 s40, s41, s40')
            A('s_barrier')
            if self.stamps:
                self.stamp_at(28, 6)
            A('s_branch L_ld_first_v')
        elif self.stamps:
            self.stamp_at(28, 6)
        self.L('L_ld_loop')
        for u in range(4):
            ok = self.lab('L_ld_ok')
            sp = self.lab('L_ld_spin')
            st = self.lab('L_ld_static')
            adr = self.lab('L_ld_adr')
            idok = self.lab('L_ld_idok')
            idsp = self.lab('L_ld_idspin')
            if self.stamps:
                for q, nn in enumerate(self.prog_pts):
                    if nn % 4 != u:
                        continue
                    l = self.lab('L_ld_st')
                    A(f's_cmp_lg_u32 s35, {nn}')
                    A(f's_cbranch_scc1 {l}')
                    self.stamp_at(16 + q, q)
                    self.L(l)
            A('s_waitcnt lgkmcnt(0)')
            A('v_readfirstlane_b32 s39, v10')
            A('v_readfirstlane_b32 s45, v11')
            A('v_readfirstlane_b32 s47, v13')
            A('s_lshr_b32 s41, s46, 2')
            A('s_and_b32 s43, s46, 3')
            A(f's_cmp_lt_u32 s41, {US}')
            A(f's_cbranch_scc1 {st}')
            if self.share and self.share2:
                rdy = self.lab('L_ld_rdy')
                shsp = self.lab('L_ld_shspin')
                zb = self.lab('L_ld_zb')
                zrdy = self.lab('L_ld_zrdy')
                zsp = self.lab('L_ld_zspin')
                zf = self.lab('L_ld_zf')
                A('v_readfirstlane_b32 s45, v20')
                A('s_cmp_lg_u32 s45, 0')
                A(f's_cbranch_scc1 {rdy}')
                if self.stamps:
                    A('s_add_u32 s61, s61, 1')
                A('s_waitcnt vmcnt(0)')
                publish('s35')
                self.spin_begin(42)
                self.L(shsp)
                A(f'ds_read_b128 v[20:23], v12')
                A('s_waitcnt lgkmcnt(0)')
                A('v_readfirstlane_b32 s45, v20')
                A('s_cmp_lg_u32 s45, 0')
                A(f's_cbranch_scc1 {rdy}')
                self.spin_retry(42, shsp, sleep=1)
                A('s_branch L_ld_end')
                self.L(rdy)
                A('v_readfirstlane_b32 s52, v22')
                A(f's_sub_u32 s51, s46, {4 * US - 1}')
                A('s_cmp_ge_u32 s51, s45')
                A(f's_cbranch_scc1 {zb}')
                A('v_readfirstlane_b32 s50, v21')
                A('s_add_u32 s41, s50, s51')
                A('s_add_u32 s41, s41, s44')
                A(f's_branch {zf}')
                self.L(zb)
                A('s_cmp_lg_u32 s52, 0')
                A(f's_cbranch_scc1 {zrdy}')
                A(f'ds_read_b128 v[20:23], v12')
                A('s_waitcnt lgkmcnt(0)')
                A('v_readfirstlane_b32 s52, v22')
                A('s_cmp_lg_u32 s52, 0')
                A(f's_cbranch_scc1 {zrdy}')
                if self.stamps:
                    A('s_add_u32 s61, s61, 0x100')
                A('s_waitcnt vmcnt(0)')
                publish('s35')
                self.spin_begin(42)
                self.L(zsp)
                A(f'ds_read_b128 v[20:23], v12')
                A('s_waitcnt lgkmcnt(0)')
                A('v_readfirstlane_b32 s52, v22')
                A('s_cmp_lg_u32 s52, 0')
                A(f's_cbranch_scc1 {zrdy}')
                self.spin_retry(42, zsp, sleep=1)
                A('s_branch L_ld_end')
                self.L(zrdy)
                A('v_readfirstlane_b32 s50, v23')
                A('s_sub_u32 s41, s51, s45')
                A('s_add_u32 s41, s41, 1')
                A('s_cmp_ge_u32 s41, s52')
                A('s_cbranch_scc1 L_ld_end')
                A('s_add_u32 s41, s41, s50')
                A('s_add_u32 s41, s41, s44')
                A(f's_add_u32 s41, s41, {(self.UB - US) * 64}')
                self.L(zf)
                A('s_add_u32 s47, s45, s52')
                A(f's_add_u32 s51, s51, {self.xfast + 1}')
                A('s_cmp_ge_u32 s51, s47')
                A('s_cselect_b32 s47, 1, 0')
                A('s_cmp_eq_u32 s52, 0')
                A('s_cselect_b32 s47, 0, s47')
                A('s_sub_u32 s41, s41, 1')
                A('s_and_b32 s41, s41, 4095')
                if xt:
                    A('s_or_b32 s41, s41, s55')
                A(f's_branch {adr}_b')
            elif self.share:
                rdy = self.lab('L_ld_rdy')
                shsp = self.lab('L_ld_shspin')
                A('v_readfirstlane_b32 s45, v18')
                A('s_cmp_lg_u32 s45, 0')
                A(f's_cbranch_scc1 {rdy}')
                if self.stamps:
                    A('s_add_u32 s61, s61, 1')
                A('s_waitcnt vmcnt(0)')
                publish('s35')
                self.spin_begin(42)
                self.L(shsp)
                A(f'ds_read_b64 v[18:19], v12')
                A('s_waitcnt lgkmcnt(0)')
                A('v_readfirstlane_b32 s45, v18')
                A('s_cmp_lg_u32 s45, 0')
                A(f's_cbranch_scc1 {rdy}')
                self.spin_retry(42, shsp, sleep=1)
                A('s_branch L_ld_end')
                self.L(rdy)
                A('v_readfirstlane_b32 s50, v19')
                A(f's_sub_u32 s51, s46, {4 * US - 1}')
                A('s_cmp_ge_u32 s51, s45')
                A('s_cbranch_scc1 L_ld_end')
                A(f's_add_u32 s47, s51, {self.xfast}')
                A('s_cmp_ge_u32 s47, s45')
                A('s_cselect_b32 s47, 1, 0')
                A('s_add_u32 s41, s50, s51')
                A('s_add_u32 s41, s41, s44')
                A('s_sub_u32 s41, s41, 1')
                A('s_and_b32 s41, s41, 4095')
                if xt:
                    A('s_or_b32 s41, s41, s55')
                A(f's_branch {adr}_b')
            A('s_cmp_lg_u32 s45, 0')
            A(f's_cbranch_scc1 {idok}')
            if self.stamps:
                A('s_add_u32 s61, s61, 1')
            A('s_waitcnt vmcnt(0)')
            publish('s35')
            self.spin_begin(42)
            self.L(idsp)
            A('ds_read_b32 v11, v12')
            A('s_waitcnt lgkmcnt(0)')
            A('v_readfirstlane_b32 s45, v11')
            A('s_cmp_lg_u32 s45, 0')
            A(f's_cbranch_scc1 {idok}')
            self.spin_retry(42, idsp, sleep=1)
            A('s_branch L_ld_end')
            self.L(idok)
            A('s_cmp_eq_u32 s45, -1')
            A('s_cbranch_scc1 L_ld_end')
            A('s_sub_u32 s45, s45, 1')
            A('s_lshl_b32 s41, s45, 2')
            A('s_add_u32 s41, s41, s44')
            A(f's_branch {adr}')
            self.L(st)
            if xt:
                A('s_lshr_b32 s48, s41, 4')
                A('s_add_u32 s48, s48, s54')
                A('s_lshl_b32 s48, s48, 12')
                A('s_and_b32 s41, s41, 15')
                A('s_lshl_b32 s41, s41, 8')
            else:
                A('s_lshl_b32 s41, s41, 6')
            A('s_add_u32 s41, s41, s49')
            self.L(adr)
            A('s_add_u32 s41, s41, s43')
            A('s_and_b32 s41, s41, 4095')
            if xt:
                A('s_or_b32 s41, s41, s48')
            self.L(f'{adr}_b')
            A('s_add_u32 s40, s39, 3')
            A('s_cmp_ge_u32 s40, s35')
            A(f's_cbranch_scc1 {ok}')
            A('s_waitcnt vmcnt(0)')
            publish('s35')
            if self.stamps:
                A('s_add_u32 s60, s60, 1')
            self.spin_begin(42)
            self.L(sp)
            A('ds_read_b32 v10, v8 offset:16')
            A('s_waitcnt lgkmcnt(0)')
            A('v_readfirstlane_b32 s39, v10')
            A('s_add_u32 s40, s39, 3')
            A('s_cmp_ge_u32 s40, s35')
            A(f's_cbranch_scc1 {ok}')
            self.spin_retry(42, sp, sleep=1)
            self.L(ok)
            A('s_lshl_b32 s40, s41, 12')

            def issue(Wx):
                pp = (Wx - 1) % 8
                po = (pp - Wx + 1) // 8
                for kv in range(2):
                    if self.fastpro and u == 0 and kv == 1 and Wx == W:
                        self.L('L_ld_first_v')
                    A(f's_add_u32 s36, s{30 + 2 * kv}, s40')
                    A(f's_addc_u32 s37, s{31 + 2 * kv}, 0')
                    A(f's_add_u32 m0, s38, {(2 * u + kv) * 4096}')
                    for jj in range(4):
                        A(f's_waitcnt vmcnt({Wx - 1})')
                        if kv * 4 + jj == pp:
                            skip = self.lab('L_ld_np')
                            if po < 0:
                                A(f's_cmp_lt_u32 s35, {-po}')
                                A(f's_cbranch_scc1 {skip}')
                                A(f's_sub_u32 s43, s35, {-po}')
                                publish('s43')
                                self.L(skip)
                            else:
                                publish('s35')
                        A(f'global_load_lds_dwordx4 v{6 + (jj & 1)}, s[36:37] offset:{jj * 1024} nt')
                        if kv * 4 + jj == self.tk_pos:
                            A('s_mov_b64 exec, 1')
                            A('ds_add_rtn_u32 v15, v14, v16 offset:52')
                            A('s_mov_b64 exec, -1')
                        if kv * 4 + jj == self.tk_pos + 2:
                            A('s_waitcnt lgkmcnt(0)')
                            A('v_readfirstlane_b32 s46, v15')
                            A('s_add_u32 s46, s46, 4')
                            if self.share and self.pertau:
                                for q, row in enumerate((self.C0, self.C)):
                                    l = self.lab('L_ld_ts')
                                    A(f's_cmp_lg_u32 s46, {4 * row}')
                                    A(f's_cbranch_scc1 {l}')
                                    A('s_memrealtime s[52:53]')
                                    A('s_waitcnt lgkmcnt(0)')
                                    A('v_mov_b32 v20, s52')
                                    A('s_mov_b64 exec, 1')
                                    A(f'ds_write_b32 v14, v20 offset:{232 + 4 * q}')
                                    A('s_mov_b64 exec, -1')
                                    self.L(l)
                            A('s_lshr_b32 s48, s46, 2')
                            A(f's_sub_i32 s48, s48, {US}')
                            A('s_max_i32 s48, s48, 0')
                            A(f's_min_i32 s48, s48, {CAP + 1}')
                            A('s_lshl_b32 s48, s48, 2')
                            A(f's_add_u32 s48, s48, {IDS}')
                            A('ds_read_b32 v10, v8 offset:16')
                            if self.share and self.share2:
                                A('ds_read_b128 v[20:23], v12')
                            elif self.share:
                                A('ds_read_b64 v[18:19], v12')
                                if self.ffnboost:
                                    A('ds_read_b32 v13, v14 offset:48')
                            else:
                                A('v_mov_b32 v12, s48')
                                A('ds_read_b32 v11, v12')
                                A('ds_read_b32 v13, v14 offset:48')
            fast = self.lab('L_ld_fast')
            join = self.lab('L_ld_join')
            A('s_cmp_lg_u32 s47, 0')
            A(f's_cbranch_scc1 {fast}')
            if self.nstart > u:
                A(f's_cmp_lt_u32 s35, {self.nstart}')
                A(f's_cbranch_scc1 {fast}')
            issue(W)
            A(f's_branch {join}')
            self.L(fast)
            issue(self.Wend)
            self.L(join)
            A('s_add_u32 s35, s35, 1')
        A('s_branch L_ld_loop')
        self.L('L_ld_end')
        if not self.w2late and self.wo_by == 'loader' and 'nowo' not in self.exp:
            A('s_lshl_b32 s40, s27, 4')
            A('s_add_u32 s40, s40, s28')
            A('s_mul_i32 s40, s40, 18432')
            A('s_mul_i32 s41, s29, 5120')
            A('s_add_u32 s40, s40, s41')
            A('s_add_u32 s36, s12, s40')
            A('s_addc_u32 s37, s13, 0')
            A(f's_add_u32 s41, s41, {STG}')
            A('s_mov_b32 m0, s41')
            A('v_lshlrev_b32 v17, 4, v1')
            for i in range(3):
                A(f'global_load_lds_dwordx4 v17, s[36:37] offset:{1024 * i} nt')
            A('s_cmp_eq_u32 s29, 3')
            A('s_cbranch_scc1 L_ld_wo3')
            A('global_load_lds_dwordx4 v17, s[36:37] offset:3072 nt')
            A('s_add_u32 s36, s36, 4096')
            A('s_addc_u32 s37, s37, 0')
            A('s_add_u32 m0, s41, 4096')
            A('s_nop 0')
            A('global_load_lds_dwordx4 v17, s[36:37] nt')
            A('s_waitcnt vmcnt(5)')
            A('s_branch L_ld_wodn')
            self.L('L_ld_wo3')
            A('s_waitcnt vmcnt(3)')
            self.L('L_ld_wodn')
        else:
            if self.stage_end:
                A('s_waitcnt vmcnt(8)')
                A('s_sub_i32 s43, s35, 1')
                A('s_max_i32 s43, s43, 0')
                publish('s43')
            A('s_waitcnt vmcnt(0)')
        A('s_or_b32 s43, s35, 0x80000000')
        publish('s43')
        if not self.w2late and self.wo_by == 'loader':
            A('s_waitcnt lgkmcnt(0)')
            A('s_barrier')
            A('s_waitcnt vmcnt(0)')
            A('v_mov_b32 v9, 1')
            A('s_mov_b64 exec, 1')
            A('ds_write_b32 v8, v9 offset:240')
            A('s_mov_b64 exec, -1')
        A('s_waitcnt lgkmcnt(0)')
        if self.stamps:
            A('s_cmp_lg_u32 s26, 4')
            A('s_cbranch_scc1 L_ld_ns')
            while len(self.pending) < 5:
                self.pending.append(None)
            self.stamp(8)
            self.flush_stamps(extra=[(9, 60), (21, 35), (22, 61), (27, 90)])
            self.L('L_ld_ns')
        A('s_endpgm')

    def ids(self):
        A = self.A
        assert self.ffnmap == 'spread' and self.redmap == 'spread' and self.headmap == 'lin'
        A('s_and_b32 s40, s27, 1')
        A('s_lshl_b32 s96, s27, 2')
        A('s_and_b32 s41, s28, 3')
        A('s_add_u32 s96, s96, s41')
        A('s_xor_b32 s41, s40, 1')
        A('s_lshl_b32 s41, s41, 2')
        A('s_bfe_u32 s42, s27, 0x20001')
        A('s_add_u32 s41, s41, s42')
        A('s_add_u32 s97, s27, 64')
        A('s_cmp_lt_u32 s27, 8')
        A('s_cselect_b32 s97, s97, 255')
        A('s_cmp_eq_u32 s28, s41')
        A('s_cselect_b32 s97, s97, 255')
        A('s_lshr_b32 s41, s28, 2')
        A('s_cmp_eq_u32 s41, s40')
        A('s_cselect_b32 s96, s96, s97')
        A('s_mul_i32 s97, s27, 3')
        A('s_sub_u32 s40, s28, s97')
        A('s_and_b32 s40, s40, 7')
        A('s_add_u32 s97, s97, s40')
        A('s_cmp_lt_u32 s40, 3')
        A('s_cselect_b32 s97, s97, 255')
        A('s_cmp_ge_u32 s28, 8')
        A('s_cselect_b32 s97, s97, 255')

    def entry3(self):
        A = self.A
        if self.pads:
            A('s_branch L_pad_e')
            self.L('L_e1')
        if self.stamps:
            A('s_memrealtime s[90:91]')
        A('s_cmp_ge_u32 s2, 256')
        A('s_cbranch_scc1 L_end')
        A('s_load_dwordx16 s[4:19], s[0:1], 0')
        A('s_load_dwordx4 s[20:23], s[0:1], 64')
        A('s_load_dwordx2 s[24:25], s[0:1], 80')
        A('v_lshrrev_b32 v1, 6, v0')
        A('s_lshr_b32 s27, s2, 4')
        A('s_and_b32 s28, s2, 15')
        A('v_readfirstlane_b32 s26, v1')
        A('v_and_b32 v1, 63, v0')
        A('s_cmp_ge_u32 s26, 8')
        A('s_cbranch_scc1 L_helper')
        if self.S != 256:
            A('s_cmp_lt_u32 s26, 4')
            A('s_cbranch_scc1 L_cons0')
            return
        A('s_cmp_ge_u32 s26, 4')
        A('s_cbranch_scc1 L_ld0')
        self.cons_pre()
        self.L('L_ld0')

    def cons_pre(self):
        A = self.A
        A(f'v_lshlrev_b32 v2, 2, v1')
        A(f'v_add_u32 v2, {FL}, v2')
        A('v_mov_b32 v3, 0')
        A('ds_write_b32 v2, v3')
        if self.table:
            A('s_lshl_b32 s40, s26, 10')
            A(f's_add_u32 s40, s40, {TBL}')
            A('v_lshlrev_b32 v2, 4, v1')
            A('v_add_u32 v2, s40, v2')
            for r in range(4, 8):
                A(f'v_mov_b32 v{r}, 0')
            A('ds_write_b128 v2, v[4:7]')
        A('s_waitcnt lgkmcnt(0)')
        A('s_barrier')
        A('s_branch L_cons1')

    def loader3(self):
        A, W, US = self.A, self.W, self.US
        assert self.share and self.share2 and self.stage_end and self.wo_by == 'w23' and not self.w2late
        assert self.tk_pos >= 4 and (W - 1) % 8 >= 4
        self.pending = []
        A('s_sub_u32 s29, s26, 4')
        A(f's_mul_i32 s44, s27, {self.rot * 64}')
        if self.tmap == 'jw':
            A(f's_lshl_b32 s41, s28, {2 + self.lblk}')
            A('s_add_u32 s49, s41, s44')
            if self.irot:
                A(f's_mul_i32 s53, s28, {self.irot}')
                A('s_add_u32 s41, s53, s29')
                A(f's_and_b32 s41, s41, {(4 << self.lblk) - 1}')
                A('s_add_u32 s41, s49, s41')
            else:
                A('s_add_u32 s41, s49, s29')
        elif self.tmap == 'wj':
            A('s_add_u32 s49, s28, s44')
            A('s_lshl_b32 s41, s29, 4')
            A('s_add_u32 s41, s49, s41')
        elif self.tmap == 'x2':
            A('s_and_b32 s41, s28, 7')
            A('s_lshl_b32 s41, s41, 3')
            A('s_lshr_b32 s49, s28, 3')
            A('s_lshl_b32 s49, s49, 2')
            A('s_add_u32 s41, s41, s49')
            A('s_add_u32 s49, s41, s44')
            A('s_add_u32 s41, s49, s29')
        S = self.S
        ls = S.bit_length() - 1
        cpb = S // 256

        def tile_bytes(dst, tile, tmp):
            if S == 256:
                A(f's_lshl_b32 s{dst}, s{tile}, 12')
            else:
                A(f's_and_b32 s{tmp}, s{tile}, {cpb - 1}')
                A(f's_mul_i32 s{tmp}, s{tmp}, 3840')
                A(f's_lshl_b32 s{dst}, s{tile}, 12')
                A(f's_sub_u32 s{dst}, s{dst}, s{tmp}')
        voff = (lambda jj: 6 + (jj & 1)) if S == 256 else (lambda jj: 24 + jj)
        A('s_and_b32 s41, s41, 4095')
        tile_bytes(41, 41, 50)
        A('s_lshl_b32 s40, s27, 24')
        A('s_add_u32 s41, s41, s40')
        A('s_lshl_b32 s38, s29, 15')
        A('s_mov_b32 m0, s38')
        A('v_lshrrev_b32 v2, 4, v1')
        A('v_and_b32 v3, 15, v1')
        A('v_lshlrev_b32 v4, 1, v2')
        A('v_xor_b32 v3, v3, v4')
        A('v_lshlrev_b32 v3, 4, v3')
        if S == 256:
            A('v_lshl_add_u32 v6, v2, 8, v3')
            A('v_xor_b32 v7, 128, v6')
        else:
            A(f'v_lshl_add_u32 v24, v2, {ls}, v3')
            A('v_xor_b32 v25, 128, v24')
            A(f'v_add_u32 v26, {8 * S - 2048}, v24')
            A(f'v_add_u32 v25, {4 * S - 1024}, v25')
        A('s_waitcnt lgkmcnt(0)')
        A('s_add_u32 s36, s6, s41')
        A('s_addc_u32 s37, s7, 0')
        for jj in range(4):
            if S != 256 and jj == 3:
                A(f'v_add_u32 v27, {8 * S - 2048}, v25')
            A(f'global_load_lds_dwordx4 v{voff(jj)}, s[36:37] offset:{jj * 1024} nt')
        A('s_add_u32 s30, s6, s40')
        A('s_addc_u32 s31, s7, 0')
        A('s_add_u32 s32, s8, s40')
        A('s_addc_u32 s33, s9, 0')
        A('s_sub_u32 s40, s41, s40')
        A(f's_add_u32 s44, s44, {US * 64}')
        A('s_lshl_b32 s41, s29, 2')
        A(f's_add_u32 s41, s41, {FL}')
        A('v_mov_b32 v8, s41')
        A(f'v_mov_b32 v14, {FL}')
        A('v_mov_b32 v16, 1')
        A('s_mov_b32 s35, 0')
        A('s_mov_b32 s47, 0')
        A('v_mov_b32 v10, 0')
        A(f'v_mov_b32 v12, {IDS}')
        for r in range(20, 24):
            A(f'v_mov_b32 v{r}, 0')
        if self.stamps:
            A('s_mov_b32 s60, 0')
            A('s_mov_b32 s61, 0')
        A('s_setprio 2')
        if self.stamps:
            self.stamp_at(28, 6)
        A('s_barrier')
        A('s_branch L_ld_first_v')
        if S != 256:
            self.L('L_cons0')
            self.cons_pre()

        def publish(val):
            A(f'v_mov_b32 v9, {val}')
            A('s_mov_b64 exec, 1')
            A('ds_write_b32 v8, v9')
            A('s_mov_b64 exec, -1')

        def issue(u, Wx):
            pp = (Wx - 1) % 8
            po = (pp - Wx + 1) // 8
            for kv in range(2):
                if u == 0 and kv == 1 and Wx == W:
                    self.L('L_ld_first_v')
                A(f's_add_u32 s36, s{30 + 2 * kv}, s40')
                A(f's_addc_u32 s37, s{31 + 2 * kv}, 0')
                A(f's_add_u32 m0, s38, {(2 * u + kv) * 4096}')
                for jj in range(4):
                    A(f's_waitcnt vmcnt({Wx - 1})')
                    if kv * 4 + jj == pp:
                        skip = self.lab('L_ld_np')
                        if po < 0:
                            A(f's_cmp_lt_u32 s35, {-po}')
                            A(f's_cbranch_scc1 {skip}')
                            A(f's_sub_u32 s43, s35, {-po}')
                            publish('s43')
                            self.L(skip)
                        else:
                            publish('s35')
                    A(f'global_load_lds_dwordx4 v{voff(jj)}, s[36:37] offset:{jj * 1024} nt')
                    if kv * 4 + jj == self.tk_pos:
                        A('s_mov_b64 exec, 1')
                        A('ds_add_rtn_u32 v15, v14, v16 offset:52')
                        A('s_mov_b64 exec, -1')
                    if kv * 4 + jj == self.tk_pos + 2:
                        A('s_waitcnt lgkmcnt(0)')
                        A('v_readfirstlane_b32 s46, v15')
                        A('ds_read_b32 v10, v8 offset:16')
                        if self.table:
                            A('s_lshl_b32 s48, s46, 2')
                            A(f's_add_u32 s48, s48, {TBL + 16 - 16 * US}')
                            A('v_mov_b32 v12, s48')
                            A('ds_read_b32 v11, v12')
                        else:
                            A('ds_read_b128 v[20:23], v12')
                        A('s_add_u32 s46, s46, 4')

        self.L('L_ld_loop')
        for u in range(4):
            if self.stamps:
                for q, nn in enumerate(self.prog_pts):
                    if nn % 4 != u:
                        continue
                    l = self.lab('L_ld_st')
                    A(f's_cmp_lg_u32 s35, {nn}')
                    A(f's_cbranch_scc1 {l}')
                    self.stamp_at(16 + q, q)
                    self.L(l)
            A('s_waitcnt lgkmcnt(0)')
            A('v_readfirstlane_b32 s39, v10')
            A(f's_lshr_b32 s41, s46, {2 + self.lblk}')
            if self.irot:
                A('s_add_u32 s43, s46, s53')
                A(f's_and_b32 s43, s43, {(4 << self.lblk) - 1}')
            else:
                A(f's_and_b32 s43, s46, {(4 << self.lblk) - 1}')
            A(f's_cmp_ge_u32 s41, {US >> self.lblk}')
            A(f's_cbranch_scc1 L_ld_sh{u}')
            A(f's_lshl_b32 s41, s41, {6 + self.lblk}')
            A('s_add_u32 s41, s41, s49')
            if self.tmap == 'wj':
                A('s_lshl_b32 s43, s43, 4')
            A('s_add_u32 s41, s41, s43')
            A('s_and_b32 s41, s41, 4095')
            self.L(f'L_ld_adr{u}')
            A('s_add_u32 s40, s39, 3')
            A('s_cmp_lt_u32 s40, s35')
            A(f's_cbranch_scc1 L_ld_sp{u}')
            self.L(f'L_ld_ok{u}')
            tile_bytes(40, 41, 50)
            A('s_cmp_lg_u32 s47, 0')
            A(f's_cbranch_scc1 L_ld_fast{u}')
            issue(u, W)
            self.L(f'L_ld_join{u}')
            A('s_add_u32 s35, s35, 1')
        A('s_branch L_ld_loop')
        for u in range(4):
            self.L(f'L_ld_sp{u}')
            A('s_waitcnt vmcnt(0)')
            publish('s35')
            if self.stamps:
                A('s_add_u32 s60, s60, 1')
            self.spin_begin(42)
            self.L(f'L_ld_spl{u}')
            A('ds_read_b32 v10, v8 offset:16')
            A('s_waitcnt lgkmcnt(0)')
            A('v_readfirstlane_b32 s39, v10')
            A('s_add_u32 s40, s39, 3')
            A('s_cmp_ge_u32 s40, s35')
            A(f's_cbranch_scc1 L_ld_ok{u}')
            self.spin_retry(42, f'L_ld_spl{u}', sleep=1)
            A(f's_branch L_ld_ok{u}')
        for u in range(4 if self.table else 0):
            rdy, shsp = f'L_ld_rdy{u}', f'L_ld_shspin{u}'
            self.L(f'L_ld_sh{u}')
            A('v_readfirstlane_b32 s45, v11')
            A('s_cmp_lg_u32 s45, 0')
            A(f's_cbranch_scc1 {rdy}')
            A('ds_read_b32 v11, v12')
            A('s_waitcnt lgkmcnt(0)')
            A('v_readfirstlane_b32 s45, v11')
            A('s_cmp_lg_u32 s45, 0')
            A(f's_cbranch_scc1 {rdy}')
            if self.stamps:
                A('s_add_u32 s61, s61, 1')
            A('s_waitcnt vmcnt(0)')
            publish('s35')
            self.spin_begin(42)
            self.L(shsp)
            A('ds_read_b32 v11, v12')
            A('s_waitcnt lgkmcnt(0)')
            A('v_readfirstlane_b32 s45, v11')
            A('s_cmp_lg_u32 s45, 0')
            A(f's_cbranch_scc1 {rdy}')
            self.spin_retry(42, shsp, sleep=1)
            A('s_branch L_ld_end')
            self.L(rdy)
            A('s_cmp_lt_i32 s45, 0')
            A('s_cbranch_scc1 L_ld_end')
            A('s_bfe_u32 s47, s45, 0x1001e')
            A('s_and_b32 s41, s45, 0x1fff')
            A('s_sub_u32 s41, s41, 1')
            A(f's_branch L_ld_adr{u}')
        for u in range(0 if self.table else 4):
            rdy, shsp, zb, zrdy, zsp, zf = (f'L_ld_{x}{u}' for x in ('rdy', 'shspin', 'zb', 'zrdy', 'zspin', 'zf'))
            self.L(f'L_ld_sh{u}')
            A('v_readfirstlane_b32 s45, v20')
            A('s_cmp_lg_u32 s45, 0')
            A(f's_cbranch_scc1 {rdy}')
            if self.stamps:
                A('s_add_u32 s61, s61, 1')
            A('s_waitcnt vmcnt(0)')
            publish('s35')
            self.spin_begin(42)
            self.L(shsp)
            A(f'ds_read_b128 v[20:23], v12')
            A('s_waitcnt lgkmcnt(0)')
            A('v_readfirstlane_b32 s45, v20')
            A('s_cmp_lg_u32 s45, 0')
            A(f's_cbranch_scc1 {rdy}')
            self.spin_retry(42, shsp, sleep=1)
            A('s_branch L_ld_end')
            self.L(rdy)
            A('v_readfirstlane_b32 s52, v22')
            A(f's_sub_u32 s51, s46, {4 * US - 1}')
            A('s_cmp_ge_u32 s51, s45')
            A(f's_cbranch_scc1 {zb}')
            A('v_readfirstlane_b32 s50, v21')
            A('s_add_u32 s41, s50, s51')
            A('s_add_u32 s41, s41, s44')
            A(f's_branch {zf}')
            self.L(zb)
            A('s_cmp_lg_u32 s52, 0')
            A(f's_cbranch_scc1 {zrdy}')
            A(f'ds_read_b128 v[20:23], v12')
            A('s_waitcnt lgkmcnt(0)')
            A('v_readfirstlane_b32 s52, v22')
            A('s_cmp_lg_u32 s52, 0')
            A(f's_cbranch_scc1 {zrdy}')
            if self.stamps:
                A('s_add_u32 s61, s61, 0x100')
            A('s_waitcnt vmcnt(0)')
            publish('s35')
            self.spin_begin(42)
            self.L(zsp)
            A(f'ds_read_b128 v[20:23], v12')
            A('s_waitcnt lgkmcnt(0)')
            A('v_readfirstlane_b32 s52, v22')
            A('s_cmp_lg_u32 s52, 0')
            A(f's_cbranch_scc1 {zrdy}')
            self.spin_retry(42, zsp, sleep=1)
            A('s_branch L_ld_end')
            self.L(zrdy)
            A('v_readfirstlane_b32 s50, v23')
            A('s_sub_u32 s41, s51, s45')
            A('s_add_u32 s41, s41, 1')
            A('s_cmp_ge_u32 s41, s52')
            A('s_cbranch_scc1 L_ld_end')
            A('s_add_u32 s41, s41, s50')
            A('s_add_u32 s41, s41, s44')
            A(f's_add_u32 s41, s41, {(self.UB - US) * 64}')
            self.L(zf)
            A('s_add_u32 s47, s45, s52')
            A(f's_add_u32 s51, s51, {self.xfast + 1}')
            A('s_cmp_ge_u32 s51, s47')
            A('s_cselect_b32 s47, 1, 0')
            A('s_cmp_eq_u32 s52, 0')
            A('s_cselect_b32 s47, 0, s47')
            A('s_sub_u32 s41, s41, 1')
            A('s_and_b32 s41, s41, 4095')
            A(f's_branch L_ld_adr{u}')
        for u in range(4):
            self.L(f'L_ld_fast{u}')
            issue(u, self.Wend)
            A(f's_branch L_ld_join{u}')
        self.L('L_ld_end')
        A('s_waitcnt vmcnt(8)')
        A('s_sub_i32 s43, s35, 1')
        A('s_max_i32 s43, s43, 0')
        publish('s43')
        A('s_waitcnt vmcnt(0)')
        A('s_or_b32 s43, s35, 0x80000000')
        publish('s43')
        A('s_waitcnt lgkmcnt(0)')
        if self.stamps:
            A('s_cmp_lg_u32 s26, 4')
            A('s_cbranch_scc1 L_ld_ns')
            while len(self.pending) < 5:
                self.pending.append(None)
            self.stamp(8)
            self.flush_stamps(extra=[(9, 60), (21, 35), (22, 61), (27, 90)])
            self.L('L_ld_ns')
        A('s_endpgm')

    def cons0(self):
        A = self.A
        self.L('L_cons1')
        if self.pads:
            self.o.append('@CHAIN')
        self.ids()


    def poll(self, name, loads, checks, sleep, allmask='-1', sr=60, probe=True):
        A = self.A
        inv, n, sw, cnt = sr, sr + 2, sr + 3, sr + 4
        if allmask == '-1':
            A(f's_mov_b64 s[{inv}:{inv+1}], -1')
        else:
            A(f's_mov_b64 s[{inv}:{inv+1}], {allmask}')
        A(f's_mov_b32 s{sw}, 1')
        A(f's_mov_b32 s{cnt}, {SPIN}')
        self.L(f'{name}_loop')
        A(f's_bcnt1_i32_b64 s{n}, s[{inv}:{inv+1}]')
        A(f's_cmp_le_u32 s{n}, {8 if probe else 64}')
        A(f's_cselect_b32 s{sw}, 1, s{sw}')
        A(f's_mov_b64 exec, s[{inv}:{inv+1}]')
        A(f's_cmp_lg_u32 s{sw}, 0')
        A(f's_cbranch_scc1 {name}_go')
        A(f's_ff1_i32_b64 s{n}, s[{inv}:{inv+1}]')
        A(f's_lshl_b64 exec, 1, s{n}')
        self.L(f'{name}_go')
        for l in loads:
            A(l)
        A('s_waitcnt vmcnt(0)')
        acc = checks()
        A(f'v_cmp_eq_u32 vcc, 0, v{acc}')
        A(f's_andn2_b64 s[{inv}:{inv+1}], s[{inv}:{inv+1}], vcc')
        A(f's_cmp_lg_u64 vcc, 0')
        A(f's_cselect_b32 s{n}, 1, 0')
        A(f's_xor_b32 s{sw}, s{sw}, 1')
        A(f's_and_b32 s{sw}, s{sw}, s{n}')
        A('s_mov_b64 exec, -1')
        A(f's_cmp_eq_u64 s[{inv}:{inv+1}], 0')
        A(f's_cbranch_scc1 {name}_done')
        if self.fastpoll:
            A(f's_bcnt1_i32_b64 s{n}, s[{inv}:{inv+1}]')
            A(f's_cmp_le_u32 s{n}, 8')
            A(f's_cbranch_scc1 {name}_ns')
        A(f's_sleep {sleep}')
        if self.fastpoll:
            self.L(f'{name}_ns')
        A(f's_sub_u32 s{cnt}, s{cnt}, 1')
        A(f's_cmp_lg_u32 s{cnt}, 0')
        A(f's_cbranch_scc1 {name}_loop')
        self.L(f'{name}_done')


    def poll2(self, name, mk_loads, basesA, basesB, acc, tmp, sleep, sr=60, stag=4, thresh=16, more=()):
        A = self.A
        inv, n, sw, cnt = sr, sr + 2, sr + 3, sr + 4
        nl = len(basesA)
        sets = [basesA, basesB] + list(more)
        A(f's_mov_b64 s[{inv}:{inv+1}], -1')
        A(f's_mov_b32 s{sw}, 1')
        A(f's_mov_b32 s{cnt}, {SPIN}')
        self.L(f'{name}_loop')
        A(f's_mov_b64 exec, s[{inv}:{inv+1}]')
        A(f's_cmp_lg_u32 s{sw}, 0')
        A(f's_cbranch_scc1 {name}_go')
        A(f's_ff1_i32_b64 s{n}, s[{inv}:{inv+1}]')
        A(f's_lshl_b64 exec, 1, s{n}')
        self.L(f'{name}_go')
        for l in mk_loads(basesA):
            A(l)
        A('s_waitcnt vmcnt(0)')
        self.chk3(basesA, acc, tmp)
        A(f'v_cmp_eq_u32 vcc, 0, v{acc}')
        A(f's_andn2_b64 s[{inv}:{inv+1}], s[{inv}:{inv+1}], vcc')
        A(f's_cmp_lg_u64 vcc, 0')
        A(f's_cselect_b32 s{n}, 1, 0')
        A(f's_xor_b32 s{sw}, s{sw}, 1')
        A(f's_and_b32 s{sw}, s{sw}, s{n}')
        A('s_mov_b64 exec, -1')
        A(f's_cmp_eq_u64 s[{inv}:{inv+1}], 0')
        A(f's_cbranch_scc1 {name}_done')
        A(f's_bcnt1_i32_b64 s{n}, s[{inv}:{inv+1}]')
        A(f's_cmp_le_u32 s{n}, {thresh}')
        A(f's_cbranch_scc1 {name}_p2')
        A(f's_sleep {sleep}')
        A(f's_sub_u32 s{cnt}, s{cnt}, 1')
        A(f's_cmp_lg_u32 s{cnt}, 0')
        A(f's_cbranch_scc1 {name}_loop')
        A(f's_branch {name}_done')
        self.L(f'{name}_p2')
        A(f's_mov_b64 exec, s[{inv}:{inv+1}]')
        for k, X in enumerate(sets):
            if k:
                A(f's_sleep {stag}')
            for l in mk_loads(X):
                A(l)
        self.L(f'{name}_p2l')
        for X in sets:
            A(f's_waitcnt vmcnt({nl * (len(sets) - 1)})')
            self.chk3(X, acc, tmp)
            A(f'v_cmp_eq_u32 vcc, 0, v{acc}')
            A(f's_and_b64 vcc, vcc, s[{inv}:{inv+1}]')
            if X is not basesA:
                A('s_mov_b64 exec, vcc')
                for bA, bB in zip(basesA, X):
                    for r in range(3):
                        A(f'v_mov_b32 v{bA + r}, v{bB + r}')
            A(f's_andn2_b64 s[{inv}:{inv+1}], s[{inv}:{inv+1}], vcc')
            A(f's_cmp_eq_u64 s[{inv}:{inv+1}], 0')
            A(f's_cbranch_scc1 {name}_done')
            A(f's_mov_b64 exec, s[{inv}:{inv+1}]')
            for l in mk_loads(X):
                A(l)
        A(f's_sub_u32 s{cnt}, s{cnt}, 1')
        A(f's_cmp_lg_u32 s{cnt}, 0')
        A(f's_cbranch_scc1 {name}_p2l')
        self.L(f'{name}_done')
        A('s_mov_b64 exec, -1')

    def pollm(self, name, mk_loads, sets, acc, stag, invs, anyr=60, first=True):
        A = self.A
        nl = len(sets[0])
        cnt = anyr + 4
        for iv in invs:
            A(f's_mov_b64 s[{iv}:{iv+1}], -1')
        A(f's_mov_b32 s{cnt}, {SPIN}')

        def check(X):
            for i, (b, iv) in enumerate(zip(X, invs)):
                A(f's_mov_b64 exec, s[{iv}:{iv+1}]')
                A(f'v_bitop3_b32 v{acc}, v{b}, v{b+1}, v{b+2} bitop3:0x96')
                A(f'v_bitop3_b32 v{acc}, v{acc}, v{b+3}, s29 bitop3:0x96')
                A(f'v_cmp_eq_u32 vcc, 0, v{acc}')
                A(f's_andn2_b64 s[{iv}:{iv+1}], s[{iv}:{iv+1}], vcc')
                if X is not sets[0]:
                    A('s_mov_b64 exec, vcc')
                    for r in range(3):
                        A(f'v_mov_b32 v{sets[0][i] + r}, v{b + r}')
            A(f's_or_b64 s[{anyr}:{anyr+1}], s[{invs[0]}:{invs[0]+1}], s[{invs[1]}:{invs[1]+1}]')
            for iv in invs[2:]:
                A(f's_or_b64 s[{anyr}:{anyr+1}], s[{anyr}:{anyr+1}], s[{iv}:{iv+1}]')
            A(f's_cbranch_scc0 {name}_done')

        def issue(X):
            for l, iv in zip(mk_loads(X), invs):
                A(f's_cmp_eq_u64 s[{iv}:{iv+1}], 0')
                A(f's_cselect_b64 exec, 1, s[{iv}:{iv+1}]')
                A(l)

        if first and len(sets) > 1:
            for l in mk_loads(sets[0]):
                A(l)
            A('s_waitcnt vmcnt(0)')
            check(sets[0])
            for k, X in enumerate(sets):
                if k:
                    A(f's_sleep {stag}')
                issue(X)
        else:
            for k, X in enumerate(sets):
                if k:
                    A(f's_sleep {stag}')
                for l in mk_loads(X):
                    A(l)
        self.L(f'{name}_loop')
        for X in sets:
            A(f's_waitcnt vmcnt({nl * (len(sets) - 1)})')
            check(X)
            issue(X)
        A(f's_sub_u32 s{cnt}, s{cnt}, 1')
        A(f's_cmp_lg_u32 s{cnt}, 0')
        A(f's_cbranch_scc1 {name}_loop')
        self.L(f'{name}_done')
        A('s_mov_b64 exec, -1')

    def chk3(self, groups, acc, tmp, tag=29):
        A = self.A
        for n, b in enumerate(groups):
            d = acc if n == 0 else tmp
            A(f'v_bitop3_b32 v{d}, v{b}, v{b+1}, v{b+2} bitop3:0x96')
            A(f'v_bitop3_b32 v{d}, v{d}, v{b+3}, s{tag} bitop3:0x96')
            if n:
                A(f'v_or_b32 v{acc}, v{acc}, v{tmp}')
        return acc

    def mkchk(self, b, tag=29):
        self.A(f'v_bitop3_b32 v{b+3}, v{b}, v{b+1}, v{b+2} bitop3:0x96')
        self.A(f'v_xor_b32 v{b+3}, s{tag}, v{b+3}')

    def cstamp(self, idx):
        self.stamp(idx)

    def cflush(self):
        if self.stamps:
            l = self.lab('L_nf')
            self.A('s_cmp_lg_u32 s26, 0')
            self.A(f's_cbranch_scc1 {l}')
            self.flush_stamps()
            self.L(l)

    def consumer(self):
        A = self.A
        self.pending = []
        KA, VA, FA = 2, 6, 14
        Q, O, KF, VF, S = 16, 32, 64, 80, 96
        MC, LS = 100, 101
        T = 102
        P = 118
        A(f's_mul_i32 s38, s26, {RING}')
        A('v_and_b32 v20, 15, v1')
        A('v_lshrrev_b32 v21, 4, v1')
        A('v_and_b32 v22, 7, v20')
        A('v_lshlrev_b32 v22, 1, v22')
        A('v_lshlrev_b32 v23, 8, v20')
        A('v_add_u32 v23, s38, v23')
        for i in range(4):
            A(f'v_add_u32 v24, {4 * i}, v21')
            A('v_xor_b32 v24, v24, v22')
            A(f'v_lshl_add_u32 v{KA + i}, v24, 4, v23')
        A('v_lshrrev_b32 v22, 2, v20')
        A('v_lshl_add_u32 v22, v21, 2, v22')
        A('v_and_b32 v24, 7, v22')
        A('v_lshlrev_b32 v23, 8, v22')
        A('v_add_u32 v23, s38, v23')
        A('v_and_b32 v25, 3, v20')
        A('v_lshl_add_u32 v23, v25, 3, v23')
        for m in range(8):
            A(f'v_xor_b32 v25, {m}, v24')
            A(f'v_lshl_add_u32 v{VA + m}, v25, 5, v23')
        A('s_lshl_b32 s40, s26, 2')
        A(f's_add_u32 s40, s40, {FL}')
        A(f'v_mov_b32 v{FA}, s40')
        for r in range(32):
            A(f'v_mov_b32 v{O + r}, 0')
        A(f'v_mov_b32 v{MC}, 0xff800000')
        A(f'v_mov_b32 v{LS}, 0')
        A(f's_mov_b32 s44, {LOG2E}')
        KB, VB = 128, 144
        def wait_full(done_label):
            go = self.lab('L_c_go')
            pl = self.lab('L_c_poll')
            A('s_and_b32 s40, s39, 0x7fffffff')
            A('s_cmp_gt_u32 s40, s35')
            A(f's_cbranch_scc1 {go}')
            if self.trim:
                A('s_cmp_lt_i32 s39, 0')
                A(f's_cbranch_scc1 {done_label}')
            self.spin_begin(42)
            self.L(pl)
            A(f'ds_read_b32 v{T}, v{FA}')
            A('s_waitcnt lgkmcnt(0)')
            A(f'v_readfirstlane_b32 s39, v{T}')
            A('s_and_b32 s40, s39, 0x7fffffff')
            A('s_cmp_gt_u32 s40, s35')
            A(f's_cbranch_scc1 {go}')
            A('s_cmp_lt_i32 s39, 0')
            A(f's_cbranch_scc1 {done_label}')
            self.spin_retry(42, pl, sleep=1)
            A(f's_branch {done_label}')
            self.L(go)
        def reads(u, kf, vf):
            for i in range(4):
                A(f'ds_read_b128 v[{kf + 4*i}:{kf + 4*i + 3}], v{KA + i} offset:{(2*u) * 4096}')
            for m in range(8):
                A(f'ds_read_b64_tr_b16 v[{vf + 2*m}:{vf + 2*m + 1}], v{VA + m} offset:{(2*u + 1) * 4096}')
            A('s_add_u32 s35, s35, 1')
        def qk(kf):
            for i in range(4):
                c = '0' if i == 0 else f'v[{S}:{S+3}]'
                A(f'v_mfma_f32_16x16x32_bf16 v[{S}:{S+3}], v[{kf + 4*i}:{kf + 4*i + 3}], v[{Q + 4*i}:{Q + 4*i + 3}], {c}')
        def free():
            A(f'v_mov_b32 v{T}, s35')
            A('s_waitcnt lgkmcnt(0)')
            A('s_mov_b64 exec, 1')
            A(f'ds_write_b32 v{FA}, v{T} offset:16')
            A('s_mov_b64 exec, -1')
        def softmax_pv(vf):
            nr = self.lab('L_c_nr')
            A(f'v_cvt_pk_bf16_f32 v{T}, v{S}, v{S+1}')
            A(f'v_cvt_pk_bf16_f32 v{T+1}, v{S+2}, v{S+3}')
            A(f'v_lshlrev_b32 v{T+2}, 16, v{T}')
            A(f'v_and_b32 v{T+3}, 0xffff0000, v{T}')
            A(f'v_lshlrev_b32 v{T+4}, 16, v{T+1}')
            A(f'v_and_b32 v{T+5}, 0xffff0000, v{T+1}')
            for r in range(4):
                A(f'v_mul_f32 v{T+2+r}, {SCALE:#x}, v{T+2+r}')
            A(f'v_cvt_pk_bf16_f32 v{T}, v{T+2}, v{T+3}')
            A(f'v_cvt_pk_bf16_f32 v{T+1}, v{T+4}, v{T+5}')
            A(f'v_lshlrev_b32 v{T+2}, 16, v{T}')
            A(f'v_and_b32 v{T+3}, 0xffff0000, v{T}')
            A(f'v_lshlrev_b32 v{T+4}, 16, v{T+1}')
            A(f'v_and_b32 v{T+5}, 0xffff0000, v{T+1}')
            A(f'v_max3_f32 v{T+6}, v{T+2}, v{T+3}, v{T+4}')
            A(f'v_max_f32 v{T+6}, v{T+6}, v{T+5}')
            A(f'v_mul_f32 v{T+6}, s44, v{T+6}')
            A(f'v_cmp_gt_f32 vcc, v{T+6}, v{MC}')
            A(f's_cbranch_vccz {nr}')
            self.xrow('v_max_f32', T + 6, T + 7)
            A(f'v_max_f32 v{T+6}, v{T+6}, v{MC}')
            A(f'v_sub_f32 v{T+7}, v{MC}, v{T+6}')
            A(f'v_exp_f32 v{T+7}, v{T+7}')
            A(f'v_mov_b32 v{MC}, v{T+6}')
            A(f'v_mul_f32 v{LS}, v{LS}, v{T+7}')
            for r in range(32):
                A(f'v_mul_f32 v{O + r}, v{O + r}, v{T+7}')
            self.L(nr)
            for r in range(4):
                A(f'v_fma_f32 v{T+2+r}, v{T+2+r}, s44, -v{MC}')
            for r in range(4):
                A(f'v_exp_f32 v{T+2+r}, v{T+2+r}')
            A('s_nop 0')
            A(f'v_cvt_pk_bf16_f32 v{P}, v{T+2}, v{T+3}')
            A(f'v_cvt_pk_bf16_f32 v{P+1}, v{T+4}, v{T+5}')
            A(f'v_add_f32 v{T+2}, v{T+2}, v{T+3}')
            A(f'v_add_f32 v{T+4}, v{T+4}, v{T+5}')
            A(f'v_add_f32 v{LS}, v{LS}, v{T+2}')
            A(f'v_add_f32 v{LS}, v{LS}, v{T+4}')
            for m in range(8):
                A(f'v_mfma_f32_16x16x16_bf16 v[{O + 4*m}:{O + 4*m + 3}], v[{vf + 2*m}:{vf + 2*m + 1}], v[{P}:{P+1}], v[{O + 4*m}:{O + 4*m + 3}]')

        A('v_lshlrev_b32 v123, 9, v20')
        A('v_lshl_add_u32 v123, v21, 4, v123')
        A('s_lshl_b32 s40, s26, 10')
        A(f's_add_u32 s40, s40, {OC}')
        A('v_add_u32 v123, s40, v123')
        A('s_lshl_b32 s40, s26, 4')
        A(f's_add_u32 s40, s40, {OCML}')
        A('v_lshlrev_b32 v124, 3, v20')
        A('v_add_u32 v124, s40, v124')
        A('s_lshl_b32 s40, s26, 6')
        A('v_add_u32 v122, s40, v1')
        A('v_lshrrev_b32 v125, 3, v122')
        A('v_lshlrev_b32 v125, 6, v125')
        A('v_and_b32 v122, 7, v122')
        A('v_mul_u32_u24 v122, 12, v122')
        A('v_add_u32 v125, v125, v122')
        A(f'v_add_u32 v125, {OC}, v125')
        A('s_mov_b32 s35, 0')
        A('s_mov_b32 s39, 0')
        A(f'v_and_b32 v15, 1, v20')
        A(f'v_lshlrev_b32 v15, 8, v15')
        A(f'v_lshl_add_u32 v15, v21, 4, v15')
        A(f'v_add_u32 v15, {QL}, v15')
        if self.preread and 'noload' not in self.exp:
            wait_full('L_c_done')
            reads(0, KF, VF)
            free()
            wait_full('L_c_done')
            reads(1, KB, VB)
            free()
        A(f'v_mov_b32 v{T}, {FL}')
        self.spin_begin(42)
        self.L('L_c_qwait')
        A(f'ds_read_b32 v{T+2}, v{T} offset:32')
        A('s_waitcnt lgkmcnt(0)')
        A(f'v_readfirstlane_b32 s40, v{T+2}')
        A('s_cmp_lg_u32 s40, 0')
        A('s_cbranch_scc1 L_c_qok')
        if 'noq' in self.exp:
            A('s_branch L_c_qok')
        self.spin_retry(42, 'L_c_qwait', sleep=2)
        self.L('L_c_qok')
        for i in range(4):
            A(f'ds_read_b128 v[{Q + 4*i}:{Q + 4*i + 3}], v15 offset:{64 * i}')
        A('s_waitcnt lgkmcnt(0)')
        self.cstamp(1)
        if 'noload' in self.exp:
            self.cflush()
            A('s_endpgm')
        if self.preread:
            qk(KF)
            A('s_nop 7')
            softmax_pv(VF)
            qk(KB)
            A('s_nop 7')
            softmax_pv(VB)
            A('s_branch L_c_u2')
        self.L('L_c_loop')
        for u in range(4):
            if u == 2:
                self.L('L_c_u2')
            wait_full('L_c_done')
            reads(u, KF, VF)
            A('s_waitcnt lgkmcnt(8)')
            qk(KF)
            free()
            A('s_nop 3')
            softmax_pv(VF)
        A('s_branch L_c_loop')
        self.L('L_c_done')

        self.cstamp(2)
        if 'notail' in self.exp:
            self.cflush()
            A('s_endpgm')
        A('s_mov_b32 s46, 0x00030003')
        A('s_mov_b32 s47, 0x00030003')
        A('s_mov_b64 exec, s[46:47]')
        for m in range(8):
            A(f'ds_write_b128 v123, v[{O + 4*m}:{O + 4*m + 3}] offset:{64 * m}')
        A('s_mov_b64 exec, -1')
        self.xrow('v_add_f32', LS, T)
        A('s_mov_b64 exec, 3')
        A(f'ds_write_b64 v124, v[{MC}:{LS}]')
        A('s_mov_b64 exec, -1')
        A(f'v_mov_b32 v{T+3}, {FL}')
        A(f'ds_read_b32 v68, v{T+3} offset:36')
        A('s_lshl_b32 s51, s27, 4')
        A('s_add_u32 s51, s51, s28')
        A('s_waitcnt lgkmcnt(0)')
        A('s_barrier')
        A('v_readfirstlane_b32 s29, v68')
        A('s_cmp_ge_u32 s26, 2')
        A('s_cbranch_scc1 L_c_nopub')
        A('s_lshl_b32 s45, s26, 3')
        A(f's_add_u32 s45, s45, {OCML}')
        A(f'v_mov_b32 v{T+2}, s45')
        for k in range(4):
            A(f'ds_read_b64 v[{70 + 2*k}:{71 + 2*k}], v{T+2} offset:{16 * k}')
        for k in range(4):
            for i in range(3):
                A(f'ds_read_b32 v{32 + 4*i + k}, v125 offset:{1024 * k + 4 * i}')
        A('s_lshl_b32 s45, s51, 11')
        A(f's_add_u32 s45, s45, {WS_P}')
        A('s_add_u32 s48, s24, s45')
        A('s_addc_u32 s49, s25, 0')
        A('s_lshl_b32 s40, s26, 10')
        A(f'v_lshlrev_b32 v{T+3}, 4, v1')
        A(f'v_add_u32 v{T+3}, s40, v{T+3}')
        A('s_mov_b32 s46, 0x20202020')
        A('s_mov_b32 s47, 0x20202020')
        A('s_waitcnt lgkmcnt(12)')
        A('v_max3_f32 v80, v70, v72, v74')
        A('v_max_f32 v80, v80, v76')
        for k in range(4):
            A(f'v_sub_f32 v{82 + k}, v{70 + 2*k}, v80')
        for k in range(4):
            A(f'v_exp_f32 v{82 + k}, v{82 + k}')
        A('s_nop 0')
        A('v_mul_f32 v81, v71, v82')
        for k in range(1, 4):
            A(f'v_fmac_f32 v81, v{71 + 2*k}, v{82 + k}')
        A('s_waitcnt lgkmcnt(0)')
        for i in range(3):
            A(f'v_mul_f32 v{88 + i}, v{32 + 4*i}, v82')
        for k in range(1, 4):
            for i in range(3):
                A(f'v_fmac_f32 v{88 + i}, v{32 + 4*i + k}, v{82 + k}')
        A('v_cndmask_b32 v89, v89, v80, s[46:47]')
        A('v_cndmask_b32 v90, v90, v81, s[46:47]')
        self.mkchk(88)
        A(f'global_store_dwordx4 v{T+3}, v[88:91], s[48:49] sc1')
        if self.wo_delay:
            A('s_lshl_b32 s45, s26, 2')
            A(f's_add_u32 s45, s45, {FL + 56}')
            A(f'v_mov_b32 v{T+1}, s45')
            A(f'v_mov_b32 v{T}, 1')
            A('s_mov_b64 exec, 1')
            A(f'ds_write_b32 v{T+1}, v{T}')
            A('s_mov_b64 exec, -1')
        self.cstamp(3)
        if self.flate is True:
            A(f's_cmp_ge_u32 s96, {NFFN}')
            A('s_cbranch_scc1 L_c_nofp')
            A('s_mul_i32 s45, s26, 1536')
            A('v_lshlrev_b32 v30, 4, v1')
            A('v_add_u32 v30, s45, v30')
            A(f'v_add_u32 v31, {FB}, v30')
            A('ds_read_b128 v[32:35], v31')
            A('ds_read_b128 v[36:39], v31 offset:1024')
            A('s_mul_i32 s45, s96, 3072')
            A(f's_add_u32 s45, s45, {WS_F}')
            A('s_add_u32 s56, s24, s45')
            A('s_addc_u32 s57, s25, 0')
            A('s_waitcnt lgkmcnt(0)')
            A('global_store_dwordx4 v30, v[32:35], s[56:57] sc1')
            A('s_mov_b32 s46, -1')
            A('s_mov_b32 s47, 0')
            A('s_mov_b64 exec, s[46:47]')
            A('global_store_dwordx4 v30, v[36:39], s[56:57] offset:1024 sc1')
            A('s_mov_b64 exec, -1')
            A('s_branch L_c_pubdone')
            self.L('L_c_nofp')
            A(f's_cmp_ge_u32 s97, {NRED}')
            A('s_cbranch_scc1 L_c_pubdone')
            A(f's_cmp_lg_u32 s26, {self.fwave}')
            A('s_cbranch_scc1 L_c_pubdone')
            self.f_gather('L_c_f', sleep=self.fsleep, probe=False)
        A('s_branch L_c_pubdone')
        self.L('L_c_nopub')
        if self.w2late == 'after':
            A(f'v_lshlrev_b32 v{T}, 4, v1')
            A('s_sub_u32 s45, s26, 2')
            A('s_mul_i32 s40, s51, 18432')
            A('s_mul_i32 s58, s45, 9216')
            A('s_add_u32 s40, s40, s58')
            A('s_add_u32 s48, s12, s40')
            A('s_addc_u32 s49, s13, 0')
            A(f's_add_u32 s58, s58, {STG}')
            for i in range(9):
                if i % 4 == 0:
                    A(f's_add_u32 m0, s58, {1024 * i}')
                    A('s_nop 0')
                A(f'global_load_lds_dwordx4 v{T}, s[48:49] offset:{1024 * (i % 4)} nt')
                if i % 4 == 3:
                    A('s_add_u32 s48, s48, 4096')
                    A('s_addc_u32 s49, s49, 0')
            A('s_mul_i32 s40, s51, 20736')
            A('s_mul_i32 s58, s45, 11264')
            A('s_add_u32 s40, s40, s58')
            A('s_add_u32 s48, s18, s40')
            A('s_addc_u32 s49, s19, 0')
            A(f's_add_u32 s58, s58, {W2S}')
            for i in range(11):
                if i % 4 == 0:
                    A(f's_add_u32 m0, s58, {1024 * i}')
                    A('s_nop 0')
                if i == 9:
                    A('s_cmp_eq_u32 s45, 0')
                    A('s_cselect_b64 s[46:47], -1, 0xffff')
                    A('s_mov_b64 exec, s[46:47]')
                if i == 10:
                    A('s_mov_b64 exec, -1')
                    A('s_cmp_lg_u32 s45, 0')
                    A('s_cbranch_scc1 L_c_w2x')
                A(f'global_load_lds_dwordx4 v{T}, s[48:49] offset:{1024 * (i % 4)} nt')
                if i % 4 == 3:
                    A('s_add_u32 s48, s48, 4096')
                    A('s_addc_u32 s49, s49, 0')
            self.L('L_c_w2x')
            A('s_lshl_b32 s45, s26, 2')
            A(f's_add_u32 s45, s45, {FL + 32}')
            A(f'v_mov_b32 v{T+1}, s45')
            A(f'v_mov_b32 v{T+2}, 1')
            A('s_waitcnt vmcnt(10)')
            A('s_mov_b64 exec, 1')
            A(f'ds_write_b32 v{T+1}, v{T+2}')
            A('s_mov_b64 exec, -1')
        elif self.w2late:
            A(f'v_lshlrev_b32 v{T}, 4, v1')
            A('s_sub_u32 s45, s26, 2')
            A('s_mul_i32 s40, s51, 20736')
            A('s_mul_i32 s58, s45, 11264')
            A('s_add_u32 s40, s40, s58')
            A('s_add_u32 s48, s18, s40')
            A('s_addc_u32 s49, s19, 0')
            A(f's_add_u32 s58, s58, {W2S}')
            for i in range(11):
                if i % 4 == 0:
                    A(f's_add_u32 m0, s58, {1024 * i}')
                    A('s_nop 0')
                if i == 9:
                    A('s_cmp_eq_u32 s45, 0')
                    A('s_cselect_b64 s[46:47], -1, 0xffff')
                    A('s_mov_b64 exec, s[46:47]')
                if i == 10:
                    A('s_mov_b64 exec, -1')
                    A('s_cmp_lg_u32 s45, 0')
                    A('s_cbranch_scc1 L_c_w2x')
                A(f'global_load_lds_dwordx4 v{T}, s[48:49] offset:{1024 * (i % 4)} nt')
                if i % 4 == 3:
                    A('s_add_u32 s48, s48, 4096')
                    A('s_addc_u32 s49, s49, 0')
            self.L('L_c_w2x')
            A('s_mul_i32 s40, s51, 18432')
            A('s_mul_i32 s58, s45, 9216')
            A('s_add_u32 s40, s40, s58')
            A('s_add_u32 s48, s12, s40')
            A('s_addc_u32 s49, s13, 0')
            A(f's_add_u32 s58, s58, {STG}')
            for i in range(9):
                if i % 4 == 0:
                    A(f's_add_u32 m0, s58, {1024 * i}')
                    A('s_nop 0')
                A(f'global_load_lds_dwordx4 v{T}, s[48:49] offset:{1024 * (i % 4)} nt')
                if i % 4 == 3:
                    A('s_add_u32 s48, s48, 4096')
                    A('s_addc_u32 s49, s49, 0')
            A('s_lshl_b32 s45, s26, 2')
            A(f's_add_u32 s45, s45, {FL + 32}')
            A(f'v_mov_b32 v{T+1}, s45')
            A(f'v_mov_b32 v{T+2}, 1')
            A('s_waitcnt vmcnt(9)')
            A('s_mov_b64 exec, 1')
            A(f'ds_write_b32 v{T+1}, v{T+2} offset:16')
            A('s_mov_b64 exec, -1')
        if not self.w2late and self.wo_by == 'w23':
            A(f'v_lshlrev_b32 v{T}, 4, v1')
            A('s_sub_u32 s45, s26, 2')
            A('s_mul_i32 s40, s51, 18432')
            A('s_mul_i32 s58, s45, 9216')
            A('s_add_u32 s40, s40, s58')
            A('s_add_u32 s48, s12, s40')
            A('s_addc_u32 s49, s13, 0')
            A(f's_add_u32 s58, s58, {STG}')
            if self.wo_delay:
                A(f'v_mov_b32 v{T+1}, {FL}')
                self.spin_begin(42)
                self.L('L_c_wod')
                A(f'ds_read_b64 v[{T+8}:{T+9}], v{T+1} offset:56')
                A('s_waitcnt lgkmcnt(0)')
                A(f'v_and_b32 v{T+8}, v{T+8}, v{T+9}')
                A('s_nop 0')
                A(f'v_readfirstlane_b32 s40, v{T+8}')
                A('s_cmp_lg_u32 s40, 0')
                A('s_cbranch_scc1 L_c_wod_ok')
                self.spin_retry(42, 'L_c_wod', sleep=0)
                self.L('L_c_wod_ok')
            for i in range(9):
                if i % 4 == 0:
                    A(f's_add_u32 m0, s58, {1024 * i}')
                    A('s_nop 0')
                if self.wo_win and i >= self.wo_win:
                    A(f's_waitcnt vmcnt({self.wo_win - 1})')
                if 'nowo' not in self.exp:
                    A(f'global_load_lds_dwordx4 v{T}, s[48:49] offset:{1024 * (i % 4)} nt')
                if i % 4 == 3:
                    A('s_add_u32 s48, s48, 4096')
                    A('s_addc_u32 s49, s49, 0')
            A('s_lshl_b32 s45, s26, 2')
            A(f's_add_u32 s45, s45, {FL + 32}')
            A(f'v_mov_b32 v{T+1}, s45')
            A(f'v_mov_b32 v{T+2}, 1')
            A('s_waitcnt vmcnt(0)')
            A('s_mov_b64 exec, 1')
            A(f'ds_write_b32 v{T+1}, v{T+2}')
            A('s_mov_b64 exec, -1')
        self.L('L_c_pubdone')
        A(f'v_and_b32 v{T}, 15, v1')
        A(f'v_lshrrev_b32 v{T+1}, 4, v1')
        A(f'v_lshrrev_b32 v{T+3}, 2, v{T}')
        A(f'v_and_b32 v{T+4}, 3, v{T}')
        A(f'v_lshl_add_u32 v{T+5}, v{T+1}, 3, v{T+3}')
        A(f'v_mul_u32_u24 v{T+5}, 1152, v{T+5}')
        A(f'v_lshl_add_u32 v{T+5}, v{T+4}, 3, v{T+5}')
        A('s_mul_i32 s45, s26, 288')
        A(f'v_add_u32 v{T+5}, s45, v{T+5}')
        A(f'v_lshl_add_u32 v{T+3}, v{T+1}, 2, v{T+3}')
        A(f'v_mul_u32_u24 v{T+3}, 1152, v{T+3}')
        A(f'v_lshl_add_u32 v{T+3}, v{T+4}, 3, v{T+3}')
        A(f's_add_u32 s45, s45, {STG}')
        A(f'v_add_u32 v{T+3}, s45, v{T+3}')
        A(f'v_lshlrev_b32 v{T+6}, 4, v{T+1}')
        A(f'v_add_u32 v{T+6}, {AB}, v{T+6}')
        if self.w2late is True:
            A(f'ds_read_b128 v[68:71], v{T+6}')
        A(f'v_lshlrev_b32 v{T+2}, 3, v{T+1}')
        A(f'v_add_u32 v{T+2}, {OB}, v{T+2}')
        A('s_mul_i32 s50, s97, 0x5556')
        A('s_lshr_b32 s50, s50, 18')
        A('s_mul_i32 s58, s50, 12')
        A('s_sub_u32 s58, s97, s58')
        A('s_lshr_b32 s59, s58, 2')
        A('s_and_b32 s58, s58, 3')
        A('s_mul_i32 s50, s50, 9')
        A('s_mul_i32 s59, s59, 3')
        A('s_add_u32 s50, s50, s59')
        A('s_lshl_b32 s50, s50, 4')
        A('s_lshl_b32 s58, s58, 2')
        A('s_add_u32 s50, s50, s58')
        A('v_lshrrev_b32 v121, 2, v1')
        A('v_and_b32 v122, 3, v1')
        A('v_lshl_add_u32 v121, v121, 4, v122')
        A('v_add_u32 v121, s50, v121')
        A('v_lshlrev_b32 v121, 1, v121')
        A('s_mov_b32 s52, s4')
        A('s_mov_b32 s53, s5')
        A('s_mov_b32 s54, 1152')
        A('s_mov_b32 s55, 0x00020000')
        A('buffer_load_ushort v120, v121, s[52:55], 0 offen')
        def wait_flags(off, lab):
            A(f'v_mov_b32 v{T}, {FL}')
            self.spin_begin(42)
            self.L(lab)
            A(f'ds_read_b64 v[{T+8}:{T+9}], v{T} offset:{off}')
            A('s_waitcnt lgkmcnt(0)')
            A(f'v_and_b32 v{T+8}, v{T+8}, v{T+9}')
            A('s_nop 0')
            A(f'v_readfirstlane_b32 s40, v{T+8}')
            A('s_cmp_lg_u32 s40, 0')
            A(f's_cbranch_scc1 {lab}_ok')
            self.spin_retry(42, lab, sleep=1)
            self.L(f'{lab}_ok')
        def y_ffn():
            wait_flags(56, 'L_c_w2wait')
            for t in range(9):
                A(f'ds_read_b64_tr_b16 v[{32 + 4*t}:{33 + 4*t}], v{T+5} offset:{32 * t}')
                A(f'ds_read_b64_tr_b16 v[{34 + 4*t}:{35 + 4*t}], v{T+5} offset:{32 * t + 4608}')
                if t == 6:
                    A('s_waitcnt lgkmcnt(8)')
            for r in range(4):
                A(f'v_mov_b32 v{80 + r}, 0')
            A('s_waitcnt lgkmcnt(0)')
            for t in range(9):
                row = 4 * (t // 3) + t % 3
                A(f's_mov_b32 s46, {0x00010001 << row:#x}')
                A(f's_mov_b32 s47, {0x00010001 << row:#x}')
                m = 72 + 4 * (t & 1)
                for r in range(4):
                    A(f'v_cndmask_b32 v{m + r}, 0, v{68 + r}, s[46:47]')
                A('s_nop 1')
                A(f'v_mfma_f32_16x16x32_bf16 v[80:83], v[{m}:{m+3}], v[{32 + 4*t}:{35 + 4*t}], v[80:83]')
            A('s_mul_i32 s45, s51, 3072')
            A(f's_add_u32 s45, s45, {WS_Y2}')
            A('s_add_u32 s48, s24, s45')
            A('s_addc_u32 s49, s25, 0')
            A('s_mul_i32 s45, s26, 768')
            A(f'v_lshlrev_b32 v{T+7}, 4, v1')
            A(f'v_add_u32 v{T+7}, s45, v{T+7}')
            A('s_nop 3')
            self.mkchk(80)
            A('s_mov_b32 s46, -1')
            A('s_mov_b32 s47, 0xffff')
            A('s_mov_b64 exec, s[46:47]')
            A(f'global_store_dwordx4 v{T+7}, v[80:83], s[48:49] sc1')
            A('s_mov_b64 exec, -1')
        if self.w2late is True:
            y_ffn()
            A('s_cmp_lt_u32 s26, 2')
            A('s_cbranch_scc1 L_c_nowo')
            A('s_lshl_b32 s45, s26, 2')
            A(f's_add_u32 s45, s45, {FL + 32}')
            A(f'v_mov_b32 v{T+8}, s45')
            A(f'v_mov_b32 v{T+9}, 1')
            A('s_waitcnt vmcnt(2)')
            A('s_mov_b64 exec, 1')
            A(f'ds_write_b32 v{T+8}, v{T+9}')
            A('s_mov_b64 exec, -1')
            self.L('L_c_nowo')
        if self.w2late is not True:
            A('s_mul_i32 s45, s26, 768')
            A(f'v_lshlrev_b32 v{T+7}, 4, v1')
            A(f'v_add_u32 v{T+7}, s45, v{T+7}')
        if self.w2late or self.wo_by == 'w23':
            wait_flags(40, 'L_c_wowait')
        else:
            A(f'v_mov_b32 v{T}, {FL}')
            self.spin_begin(42)
            self.L('L_c_wowait')
            A(f'ds_read_b128 v[{T+8}:{T+11}], v{T} offset:240')
            A('s_waitcnt lgkmcnt(0)')
            A(f'v_and_b32 v{T+8}, v{T+8}, v{T+9}')
            A(f'v_and_b32 v{T+10}, v{T+10}, v{T+11}')
            A(f'v_and_b32 v{T+8}, v{T+8}, v{T+10}')
            A('s_nop 0')
            A(f'v_readfirstlane_b32 s40, v{T+8}')
            A('s_cmp_lg_u32 s40, 0')
            A('s_cbranch_scc1 L_c_wowait_ok')
            self.spin_retry(42, 'L_c_wowait', sleep=1)
            self.L('L_c_wowait_ok')
        for t in range(9):
            A(f'ds_read_b64_tr_b16 v[{68 + 2*t}:{69 + 2*t}], v{T+3} offset:{32 * t}')
        if self.flate == 'h':
            A(f'v_add_u32 v20, {FB}, v{T+7}')
            A('ds_read_b128 v[16:19], v20')
            A('s_mul_i32 s45, s96, 3072')
            A(f's_add_u32 s45, s45, {WS_F}')
            A('s_add_u32 s56, s24, s45')
            A('s_addc_u32 s57, s25, 0')
        if self.flate == 'd':
            A(f'v_add_u32 v36, {FB}, v{T+7}')
            A('ds_read_b128 v[32:35], v36')
            A('s_mul_i32 s45, s96, 3072')
            A(f's_add_u32 s45, s45, {WS_F}')
            A('s_add_u32 s56, s24, s45')
            A('s_addc_u32 s57, s25, 0')
        for r in range(4):
            A(f'v_mov_b32 v{96 + r}, 0')
        A('s_mul_i32 s45, s51, 3072')
        A(f's_add_u32 s45, s45, {WS_Y}')
        A('s_add_u32 s48, s24, s45')
        A('s_addc_u32 s49, s25, 0')
        hoist = self.trim and not self.w2late and self.flate in (False, 'h')
        if hoist:
            A('s_lshl_b32 s45, s26, 6')
            A('v_lshrrev_b32 v10, 2, v1')
            A('v_add_u32 v10, s45, v10')
            A('v_mul_u32_u24 v10, 3072, v10')
            A('v_and_b32 v11, 3, v1')
            A('v_lshl_add_u32 v10, v11, 4, v10')
            for i in range(1, 4):
                A(f'v_add_u32 v{10 + i}, {3072 * 16 * i}, v10')
            A('s_lshl_b32 s58, s97, 6')
            A(f's_add_u32 s58, s58, {WS_Y}')
            A('s_add_u32 s30, s24, s58')
            A('s_addc_u32 s31, s25, 0')
            A(f's_add_u32 s45, s45, {RED}')
            A('v_lshlrev_b32 v118, 4, v1')
            A('v_add_u32 v118, s45, v118')
            A('v_lshrrev_b32 v116, 2, v1')
            A('v_and_b32 v117, 3, v1')
            A('v_lshlrev_b32 v116, 2, v116')
            A('v_lshl_add_u32 v116, v117, 4, v116')
            A(f'v_add_u32 v117, {FFNR}, v116')
            A(f'v_add_u32 v116, {RED}, v116')
        A('s_waitcnt lgkmcnt(0)')
        A('s_barrier')
        self.cstamp(4)
        A(f'ds_read_b64 v[64:65], v{T+2}')
        if self.trim and self.flate in (False, 'h'):
            A('s_mov_b32 s46, 0xffff0000')
            A('s_mov_b32 s47, 0')
            A('s_mov_b32 s58, 0')
            A('s_mov_b32 s59, 0xffff')
            A('s_waitcnt lgkmcnt(0)')
            for t in range(9):
                A(f'v_mfma_f32_16x16x16_bf16 v[{32 + 4*t}:{35 + 4*t}], v[64:65], v[{68 + 2*t}:{69 + 2*t}], 0')
            A('s_nop 2')
            for r in range(3):
                A(f'v_cndmask_b32 v{96 + r}, v{32 + 4*r}, v{44 + 4*r}, s[46:47]')
            A('s_mov_b32 s46, -1')
            A('s_mov_b32 s47, 0xffff')
            for r in range(3):
                A(f'v_cndmask_b32 v{96 + r}, v{96 + r}, v{56 + 4*r}, s[58:59]')
            self.mkchk(96)
        else:
            A('s_mov_b32 s46, 0x00010001')
            A('s_mov_b32 s47, 0x00010001')
            A('s_waitcnt lgkmcnt(0)')
            for t in range(9):
                row = 4 * (t // 3) + t % 3
                A(f'v_cndmask_b32 v{88 + 2*(t&1)}, 0, v64, s[46:47]')
                A(f'v_cndmask_b32 v{89 + 2*(t&1)}, 0, v65, s[46:47]')
                if t < 8:
                    nrow = 4 * ((t + 1) // 3) + (t + 1) % 3
                    A(f's_lshl_b64 s[46:47], s[46:47], {nrow - row}')
                else:
                    A('s_nop 0')
                A('s_nop 0')
                A(f'v_mfma_f32_16x16x16_bf16 v[96:99], v[{88 + 2*(t&1)}:{89 + 2*(t&1)}], v[{68 + 2*t}:{69 + 2*t}], v[96:99]')
            A('s_mov_b32 s46, -1')
            A('s_mov_b32 s47, 0xffff')
            A('s_nop 5')
            self.mkchk(96)
        A('s_mov_b64 exec, s[46:47]')
        A(f'global_store_dwordx4 v{T+7}, v[96:99], s[48:49] sc1')
        if self.flate in ('d', 'h'):
            A(f's_cmp_ge_u32 s96, {NFFN}')
            A('s_cbranch_scc1 L_c_nofd')
            fr = 32 if self.flate == 'd' else 16
            A(f'global_store_dwordx4 v{T+7}, v[{fr}:{fr+3}], s[56:57] sc1')
            self.L('L_c_nofd')
        A('s_mov_b64 exec, -1')
        self.cstamp(5)
        if self.w2late == 'after':
            A('s_cmp_lt_u32 s26, 2')
            A('s_cbranch_scc1 L_c_now2')
            A('s_lshl_b32 s45, s26, 2')
            A(f's_add_u32 s45, s45, {FL + 48}')
            A(f'v_mov_b32 v{T+8}, s45')
            A(f'v_mov_b32 v{T+9}, 1')
            A('s_waitcnt vmcnt(2)')
            A('s_mov_b64 exec, 1')
            A(f'ds_write_b32 v{T+8}, v{T+9}')
            A('s_mov_b64 exec, -1')
            self.L('L_c_now2')
            A(f'ds_read_b128 v[68:71], v{T+6}')
            y_ffn()
        A(f's_cmp_lt_u32 s97, {NRED}')
        A('s_cbranch_scc1 L_c_red')
        self.cflush()
        A('s_endpgm')
        self.L('L_c_red')
        if not hoist:
            A('s_lshl_b32 s45, s26, 6')
            A(f'v_lshrrev_b32 v{T}, 2, v1')
            A(f'v_add_u32 v{T}, s45, v{T}')
            A(f'v_mul_u32_u24 v{T}, 3072, v{T}')
            A(f'v_and_b32 v{T+1}, 3, v1')
            A(f'v_lshl_add_u32 v{T}, v{T+1}, 4, v{T}')
            for i in range(1, 4):
                A(f'v_add_u32 v{T+i}, {3072 * 16 * i}, v{T}')
            A('s_lshl_b32 s45, s97, 6')
            A(f's_add_u32 s58, s45, {WS_Y}')
            A('s_add_u32 s48, s24, s58')
            A('s_addc_u32 s49, s25, 0')
            A(f's_add_u32 s58, s45, {WS_Y2}')
            A('s_add_u32 s56, s24, s58')
            A('s_addc_u32 s57, s25, 0')
        if self.w2late or self.flate == 'd':
            S1, S2 = [106, 107, 108], [109, 110, 111]
            if self.w2late:
                def dl(bs):
                    return [f'global_load_dwordx4 v[{b}:{b+3}], v{T + (i % 4)}, s[{48 if i < 4 else 56}:{49 if i < 4 else 57}] sc1' for i, b in enumerate(bs)]
                self.poll2('L_c_d', dl, [64, 68, 72, 76, 32, 36, 40, 44], [80, 84, 88, 92, 48, 52, 56, 60], 96, 97,
                           sleep=self.tsleep or 3, stag=self.stag, thresh=self.thresh)
                self.cstamp(24)
                for r in range(3):
                    A(f'v_add_f32 v{S1[r]}, v{64 + r}, v{68 + r}')
                    A(f'v_add_f32 v{S2[r]}, v{32 + r}, v{36 + r}')
                    A(f'v_add_f32 v{112 + r}, v{72 + r}, v{76 + r}')
                    A(f'v_add_f32 v{115 + r}, v{40 + r}, v{44 + r}')
                for r in range(3):
                    A(f'v_add_f32 v{S1[r]}, v{S1[r]}, v{112 + r}')
                    A(f'v_add_f32 v{S2[r]}, v{S2[r]}, v{115 + r}')
            else:
                A('s_lshl_b32 s45, s97, 6')
                A(f's_add_u32 s58, s45, {WS_F}')
                A('s_add_u32 s56, s24, s58')
                A('s_addc_u32 s57, s25, 0')
                A('s_lshl_b32 s45, s26, 4')
                A(f'v_lshrrev_b32 v{T+4}, 2, v1')
                A(f'v_add_u32 v{T+4}, s45, v{T+4}')
                A(f'v_mul_u32_u24 v{T+4}, 3072, v{T+4}')
                A(f'v_and_b32 v{T+6}, 3, v1')
                A(f'v_lshl_add_u32 v{T+4}, v{T+6}, 4, v{T+4}')
                A('s_lshl_b32 s45, s26, 1')
                A('s_add_u32 s45, s45, 64')
                A(f'v_bfe_u32 v{T+5}, v1, 2, 1')
                A(f'v_add_u32 v{T+5}, s45, v{T+5}')
                A(f'v_mul_u32_u24 v{T+5}, 3072, v{T+5}')
                A(f'v_lshl_add_u32 v{T+5}, v{T+6}, 4, v{T+5}')
                def dl(bs):
                    return [f'global_load_dwordx4 v[{b}:{b+3}], v{T + i}, s[{48 if i < 4 else 56}:{49 if i < 4 else 57}] sc1' for i, b in enumerate(bs)]
                self.poll2('L_c_d', dl, [64, 68, 72, 76, 32, 36], [80, 84, 88, 92, 48, 52], 96, 97,
                           sleep=self.tsleep or 3, stag=self.stag_d, thresh=self.thresh_d)
                self.cstamp(24)
                A('s_mov_b64 s[46:47], 0xff')
                for r in range(3):
                    A(f'v_cndmask_b32 v{115 + r}, 0, v{36 + r}, s[46:47]')
                    A(f'v_add_f32 v{S1[r]}, v{64 + r}, v{68 + r}')
                    A(f'v_add_f32 v{112 + r}, v{72 + r}, v{76 + r}')
                for r in range(3):
                    A(f'v_add_f32 v{S2[r]}, v{32 + r}, v{115 + r}')
                    A(f'v_add_f32 v{S1[r]}, v{S1[r]}, v{112 + r}')
            self.mrowred('v_add_f32', S1 + S2, (4, 8))
            self.mxrow('v_add_f32', S1 + S2, [112, 113, 114, 115, 116, 117])
            A('v_mov_b32 v112, v109')
            A('v_mov_b32 v113, v110')
            A('v_mov_b32 v114, v111')
            A('v_mov_b32 v104, v106')
            A('v_mov_b32 v105, v107')
            A('v_mov_b32 v106, v108')
            A('s_lshl_b32 s45, s26, 7')
            A(f's_add_u32 s45, s45, {RED}')
            A('v_lshlrev_b32 v118, 5, v1')
            A('v_add_u32 v118, s45, v118')
            A('s_mov_b64 exec, 15')
            A('ds_write_b128 v118, v[104:107]')
            A('ds_write_b128 v118, v[112:115] offset:16')
            A('s_mov_b64 exec, -1')
            A('v_lshrrev_b32 v116, 2, v1')
            A('v_and_b32 v117, 3, v1')
            A('v_lshlrev_b32 v116, 2, v116')
            A('v_lshl_add_u32 v116, v117, 5, v116')
            A(f'v_add_u32 v116, {RED}, v116')
            A('s_mov_b32 s52, s20')
            A('s_mov_b32 s53, s21')
            A('s_waitcnt lgkmcnt(0)')
            self.cstamp(25)
            A('s_barrier')
            self.cstamp(26)
            A('s_cmp_lg_u32 s26, 0')
            A('s_cbranch_scc1 L_end')
            for k in range(4):
                A(f'ds_read_b32 v{100 + k}, v116 offset:{128 * k}')
            for k in range(4):
                A(f'ds_read_b32 v{104 + k}, v116 offset:{128 * k + 16}')
            A('v_lshlrev_b32 v111, 16, v120')
            A('s_waitcnt lgkmcnt(0)')
            A('v_add_f32 v100, v100, v101')
            A('v_add_f32 v104, v104, v105')
            A('v_add_f32 v102, v102, v103')
            A('v_add_f32 v106, v106, v107')
            A('v_add_f32 v100, v100, v102')
            A('v_add_f32 v104, v104, v106')
            A('v_cvt_pk_bf16_f32 v100, v100, v104')
            A('v_lshlrev_b32 v101, 16, v100')
            A('v_and_b32 v104, 0xffff0000, v100')
            A('v_add_f32 v101, v111, v101')
            self.bf16r(101, 101, 102)
            A('v_add_f32 v101, v101, v104')
            A('v_cvt_pk_bf16_f32 v101, v101, v101')
            A('s_mov_b64 exec, 0xfff')
            A('buffer_store_short v101, v121, s[52:55], 0 offen' + self.out_pol)
            A('s_mov_b64 exec, -1')
        else:
            if hoist:
                dl = lambda bs: [f'global_load_dwordx4 v[{b}:{b+3}], v{10+i}, s[30:31] sc1' for i, b in enumerate(bs)]
                assert not self.pm_d
            else:
                dl = lambda bs: [f'global_load_dwordx4 v[{b}:{b+3}], v{T+i}, s[48:49] sc1' for i, b in enumerate(bs)]
            if self.pm_d:
                self.pollm('L_c_d', dl, [[64, 68, 72, 76], [80, 84, 88, 92], [32, 36, 40, 44], [48, 52, 56, 60]][:self.nset_d], 96,
                           stag=self.stag_d, invs=[30, 32, 34, 36])
            else:
                self.poll2('L_c_d', dl,
                           [64, 68, 72, 76], [80, 84, 88, 92], 96, 97, sleep=self.tsleep or 3, stag=self.stag_d, thresh=self.thresh_d,
                           more=([32, 36, 40, 44], [48, 52, 56, 60])[:self.nset_d - 2])
            self.cstamp(24)
            S1 = [106, 107, 108]
            for r in range(3):
                A(f'v_add_f32 v{S1[r]}, v{64 + r}, v{68 + r}')
                A(f'v_add_f32 v{112 + r}, v{72 + r}, v{76 + r}')
            for r in range(3):
                A(f'v_add_f32 v{S1[r]}, v{S1[r]}, v{112 + r}')
            self.mrowred('v_add_f32', S1, (4, 8))
            self.mxrow('v_add_f32', S1, [112, 113, 114])
            if hoist:
                A('s_mov_b64 exec, 15')
                A('ds_write_b96 v118, v[106:108]')
                A('s_mov_b64 exec, -1')
            else:
                A('s_lshl_b32 s45, s26, 6')
                A(f's_add_u32 s45, s45, {RED}')
                A('v_lshlrev_b32 v118, 4, v1')
                A('v_add_u32 v118, s45, v118')
                A('v_mov_b32 v104, v106')
                A('v_mov_b32 v105, v107')
                A('v_mov_b32 v106, v108')
                A('s_mov_b64 exec, 15')
                A('ds_write_b128 v118, v[104:107]')
                A('s_mov_b64 exec, -1')
                A('v_lshrrev_b32 v116, 2, v1')
                A('v_and_b32 v117, 3, v1')
                A('v_lshlrev_b32 v116, 2, v116')
                A('v_lshl_add_u32 v116, v117, 4, v116')
                A(f'v_add_u32 v117, {FFNR}, v116')
                A(f'v_add_u32 v116, {RED}, v116')
            if self.flate != 'h':
                A('ds_read_b32 v119, v117')
            A('s_mov_b32 s52, s20')
            A('s_mov_b32 s53, s21')
            A('s_waitcnt lgkmcnt(0)')
            self.cstamp(25)
            A('s_barrier')
            self.cstamp(26)
            A('s_cmp_lg_u32 s26, 0')
            A('s_cbranch_scc1 L_end')
            if self.flate == 'h':
                A('ds_read_b32 v119, v117')
            for k in range(4):
                A(f'ds_read_b32 v{100 + k}, v116 offset:{64 * k}')
            A('v_lshlrev_b32 v111, 16, v120')
            A('s_waitcnt lgkmcnt(0)')
            A('v_add_f32 v100, v100, v101')
            A('v_add_f32 v102, v102, v103')
            A('v_add_f32 v100, v100, v102')
            A('v_cvt_pk_bf16_f32 v100, v100, v119')
            A('v_lshlrev_b32 v101, 16, v100')
            A('v_and_b32 v104, 0xffff0000, v100')
            A('v_add_f32 v101, v111, v101')
            self.bf16r(101, 101, 102)
            A('v_add_f32 v101, v101, v104')
            A('v_cvt_pk_bf16_f32 v101, v101, v101')
            A('s_mov_b64 exec, 0xfff')
            A('buffer_store_short v101, v121, s[52:55], 0 offen' + self.out_pol)
            A('s_mov_b64 exec, -1')
        self.stamp(6)
        self.flush_stamps(extra=[(29, 64)])
        A('s_cmp_lg_u32 s97, 0')
        A('s_cbranch_scc1 L_end')
        A('v_mov_b32 v106, s29')
        A('v_mov_b32 v107, 0')
        A('s_mov_b64 exec, 1')
        A('global_store_dword v107, v106, s[24:25] sc1')
        A('s_branch L_end')

    def gemv64(self, acc, first, xoff_sreg):
        A = self.A
        NB = 5
        A(f'v_add_u32 v21, s{xoff_sreg}, v20')
        def rd(s):
            b = 40 + 10 * (s % NB)
            A(f'ds_read_b64 v[{b}:{b+1}], v21 offset:{32 * s}')
            for t in range(4):
                A(f'ds_read_b64_tr_b16 v[{b+2+2*t}:{b+3+2*t}], v{16 + t} offset:{2048 * s}')
        NP = 3
        for s in range(NP):
            rd(s)
        for s in range(9):
            left = min(9, s + NP) - s - 1
            A(f's_waitcnt lgkmcnt({5 * left})')
            b = 40 + 10 * (s % NB)
            for t in range(4):
                c = '0' if (first and s == 0) else f'v[{acc + 4*t}:{acc + 4*t + 3}]'
                A(f'v_mfma_f32_16x16x16_bf16 v[{acc + 4*t}:{acc + 4*t + 3}], v[{b}:{b+1}], v[{b+2+2*t}:{b+3+2*t}], {c}')
            if s + NP < 9:
                rd(s + NP)

    def dma_cols(self, sbase, pitch, voff, win=None):
        A = self.A
        A(f's_mov_b32 s36, s{sbase}')
        A(f's_mov_b32 s37, s{sbase+1}')
        for s in range(18):
            A(f's_mov_b32 m0, {STG + 1024 * s}')
            if win:
                A(f's_waitcnt vmcnt({win - 1})')
            else:
                A('s_nop 0')
            A(f'global_load_lds_dwordx4 v{voff}, s[36:37]' + ('' if 'colplain' in self.exp else ' nt'))
            if s < 17:
                A(f's_add_u32 s36, s36, {8 * pitch}')
                A('s_addc_u32 s37, s37, 0')

    def dma_rows(self, sbase, win=None):
        A = self.A
        A(f's_mov_b32 s36, s{sbase}')
        A(f's_mov_b32 s37, s{sbase+1}')
        for s in range(18):
            if s % 4 == 0:
                A(f's_mov_b32 m0, {STG + 1024 * s}')
                A('s_nop 0')
            if win:
                A(f's_waitcnt vmcnt({win - 1})')
            A(f'global_load_lds_dwordx4 v23, s[36:37] offset:{1024 * (s % 4)}' + ('' if 'rowplain' in self.exp else ' nt'))
            if s % 4 == 3:
                A('s_add_u32 s36, s36, 4096')
                A('s_addc_u32 s37, s37, 0')

    def f_gather(self, name, sleep, probe, warm=False):
        A = self.A
        A('s_lshl_b32 s40, s97, 6')
        A(f's_add_u32 s40, s40, {WS_F}')
        A('s_add_u32 s56, s24, s40')
        A('s_addc_u32 s57, s25, 0')
        A('v_lshrrev_b32 v30, 2, v1')
        A('v_mul_u32_u24 v30, 3072, v30')
        A('v_and_b32 v31, 3, v1')
        A('v_lshl_add_u32 v30, v31, 4, v30')
        for i in range(1, 5):
            A(f'v_add_u32 v{30 + i}, {3072 * 16 * i}, v30')
        A('s_mov_b32 s46, 0')
        A('s_mov_b32 s47, -1')
        A(f'v_add_u32 v35, {-3072 * 8 & 0xffffffff:#x}, v34')
        A('v_cndmask_b32 v34, v34, v35, s[46:47]')
        loads = [f'global_load_dwordx4 v[{40 + 4*i}:{43 + 4*i}], v{30 + i}, s[56:57] sc1' for i in range(5)]
        if warm:
            for l in loads:
                A(l)
            return
        self.poll(name, loads, lambda: self.chk3([40, 44, 48, 52, 56], 60, 61), sleep=sleep, probe=probe)
        A('s_mov_b32 s46, 0')
        A('s_mov_b32 s47, -1')
        for r in range(3):
            A(f'v_cndmask_b32 v{56 + r}, v{56 + r}, 0, s[46:47]')
        for r in range(3):
            A(f'v_add_f32 v{40 + r}, v{40 + r}, v{44 + r}')
            A(f'v_add_f32 v{48 + r}, v{48 + r}, v{52 + r}')
            A(f'v_add_f32 v{40 + r}, v{40 + r}, v{56 + r}')
        for r in range(3):
            A(f'v_add_f32 v{40 + r}, v{40 + r}, v{48 + r}')
        self.mrowred('v_add_f32', [40, 41, 42], (4, 8))
        self.mxrow('v_add_f32', [40, 41, 42], [44, 45, 46])
        A('v_lshlrev_b32 v34, 4, v1')
        A(f'v_add_u32 v34, {FFNR}, v34')
        A('s_mov_b64 exec, 15')
        A('ds_write_b128 v34, v[40:43]')
        A('s_mov_b64 exec, -1')

    def build_table(self, first):
        A = self.A
        US, UB, lb = self.US, self.UB, self.lblk
        c = 4 * ((UB - US) if first else (64 - UB))
        zk = 4 * (US if first else UB)
        tag = 'a' if first else 'b'
        if first:
            A('s_mov_b32 s55, 0')
        A(f'v_sub_u32 v49, {c}, v46')
        A(f'v_subrev_u32 v50, {c}, v46')
        A('v_max_i32 v49, 0, v49')
        A('v_max_i32 v50, 0, v50')
        A('v_mov_b32 v51, v49')
        A('v_mov_b32 v52, v50')
        for sh in (1, 2, 4, 8):
            A('s_nop 0')
            A(f'v_add_u32_dpp v51, v51, v51 row_shr:{sh} row_mask:0xf bank_mask:0xf bound_ctrl:0')
            A(f'v_add_u32_dpp v52, v52, v52 row_shr:{sh} row_mask:0xf bank_mask:0xf bound_ctrl:0')
        A('v_sub_u32 v53, v51, v49')
        A('v_sub_u32 v52, v52, v50')
        A('s_nop 0')
        A('v_readlane_b32 s50, v46, s28')
        A('v_readlane_b32 s51, v52, s28')
        G = [30, 31, 32, 33, 34, 35, 36, 37, 40, 41, 43, 44, 45, 46, 47, 53]
        for i in range(16):
            A(f'v_readlane_b32 s{G[i]}, v51, {i}')
        A(f's_mul_i32 s54, s27, {self.rot * 64}')
        A(f's_sub_u32 s51, s51, {c}')
        A('s_mov_b32 s52, 0')
        self.L(f'L_h_tb{tag}')
        A('v_add_u32 v54, s52, v1')
        A('v_add_u32 v55, s51, v54')
        A('v_mov_b32 v56, 0')
        prs = ['vcc', 's[58:59]', 's[60:61]', 's[62:63]']
        for i0 in range(0, 16, 4):
            for q in range(4):
                A(f'v_cmp_le_u32 {prs[q]}, s{G[i0 + q]}, v55')
            for q in range(4):
                A(f'v_addc_co_u32 v56, {prs[q]}, 0, v56, {prs[q]}')
        A('v_min_u32 v56, 15, v56')
        A('v_lshlrev_b32 v57, 2, v56')
        A('ds_bpermute_b32 v58, v57, v53')
        A('ds_bpermute_b32 v59, v57, v46')
        A(f'v_cmp_gt_u32 vcc, {c}, v54')
        A('v_mov_b32 v57, s28')
        A('s_waitcnt lgkmcnt(0)')
        A('v_add_u32 v59, v59, v55')
        A('v_sub_u32 v59, v59, v58')
        A('v_cndmask_b32 v56, v56, v57, vcc')
        A('v_cndmask_b32 v59, v59, v54, vcc')
        A(f'v_add_u32 v59, {zk}, v59')
        A(f'v_lshrrev_b32 v57, {2 + lb}, v59')
        A(f'v_lshlrev_b32 v57, {6 + lb}, v57')
        A(f'v_lshl_add_u32 v57, v56, {2 + lb}, v57')
        A(f'v_and_b32 v59, {(4 << lb) - 1}, v59')
        A('v_add_u32 v57, v57, v59')
        A('v_add_u32 v57, s54, v57')
        A('v_and_b32 v57, 4095, v57')
        A('v_add_u32 v57, 1, v57')
        if not first:
            A(f'v_add_u32 v58, {self.xfast}, v54')
            A('v_cmp_le_u32 vcc, s50, v58')
            A('v_cmp_le_u32 s[60:61], s50, v54')
            A('v_or_b32 v58, 0x40000000, v57')
            A('v_bfrev_b32 v59, 1')
            A('v_cndmask_b32 v57, v57, v58, vcc')
            A('v_cndmask_b32 v57, v57, v59, s[60:61]')
            A('s_add_u32 s56, s50, 4')
        else:
            A('s_mov_b32 s56, s50')
        A(f's_min_u32 s56, s56, {c * 16 + 4}')
        A('v_add_u32 v58, s55, v54')
        A('v_lshlrev_b32 v58, 2, v58')
        A(f'v_add_u32 v58, {TBL}, v58')
        A('v_cmp_gt_u32 vcc, s56, v54')
        A('s_and_saveexec_b64 s[58:59], vcc')
        A('ds_write_b32 v58, v57')
        A('s_mov_b64 exec, -1')
        A('s_add_u32 s52, s52, 64')
        A('s_cmp_lt_u32 s52, s56')
        A(f's_cbranch_scc1 L_h_tb{tag}')
        if first:
            A('s_mov_b32 s55, s50')
        A('s_add_u32 s50, s50, 1')

    def tail_warm(self):
        A = self.A
        if 'nowarm' in self.exp:
            return
        if True:
            def own(base, stride, n, mode):
                A('s_lshl_b32 s40, s27, 4')
                A('s_add_u32 s40, s40, s28')
                A(f's_mul_i32 s40, s40, {stride}')
                A(f's_add_u32 s40, s40, {base}')
                A('s_add_u32 s56, s24, s40')
                A('s_addc_u32 s57, s25, 0')
                for i in range(n):
                    if mode == 'selfld':
                        A(f'global_load_dwordx4 v[{48 + 4*i}:{51 + 4*i}], v23, s[56:57] offset:{1024 * i} sc1')
                    else:
                        A(f'global_store_dwordx4 v23, v[60:63], s[56:57] offset:{1024 * i} sc1')
            if 'selfst' in (self.warmP, self.warmY):
                for r in range(60, 64):
                    A(f'v_mov_b32 v{r}, 0')
            if self.warmP == 'poll' and 'nowarmp' not in self.exp:
                for i in range(2):
                    A(f'global_load_dwordx4 v[{40 + 4*i}:{43 + 4*i}], v{34 + i}, s[48:49] sc1')
            elif self.warmP in ('selfld', 'selfst'):
                own(WS_P, 2048, 2, self.warmP)
            if self.warmY in ('selfld', 'selfst'):
                own(WS_Y, 3072, 3, self.warmY)
            if self.flate == 'h':
                A(f's_cmp_ge_u32 s96, {NFFN}')
                A('s_cbranch_scc1 L_h_wf')
                A('s_mul_i32 s40, s96, 3072')
                A(f's_add_u32 s40, s40, {WS_F}')
                A('s_add_u32 s56, s24, s40')
                A('s_addc_u32 s57, s25, 0')
                for i in range(3):
                    A(f'global_load_dwordx4 v[{48 + 4*i}:{51 + 4*i}], v23, s[56:57] offset:{1024 * i} sc1')
                self.L('L_h_wf')
            if self.warmY != 'poll' and self.flate in (False, 'h'):
                A('s_waitcnt vmcnt(0)')
                return
            if 'nowarmy' in self.exp or self.warmY != 'poll':
                A('s_branch L_h_wdone')
            A(f's_cmp_ge_u32 s97, {NRED}')
            A('s_cbranch_scc1 L_h_wdone')
            if self.flate and 'nowarmf' not in self.exp:
                for r in range(6):
                    A(f'v_mov_b32 v{64 + r}, v{30 + r}')
                A('v_mov_b32 v70, v36')
                A('v_mov_b32 v71, v37')
                self.f_gather(None, 0, False, warm=True)
                A('s_waitcnt vmcnt(0)')
                for r in range(6):
                    A(f'v_mov_b32 v{30 + r}, v{64 + r}')
            A('s_lshl_b32 s40, s97, 6')
            A(f's_add_u32 s40, s40, {WS_Y}')
            A('s_add_u32 s56, s24, s40')
            A('s_addc_u32 s57, s25, 0')
            A('v_lshrrev_b32 v38, 2, v1')
            A('v_mul_u32_u24 v38, 3072, v38')
            A('v_and_b32 v39, 3, v1')
            A('v_lshl_add_u32 v38, v39, 4, v38')
            A(f's_add_u32 s40, s40, {WS_Y2 - WS_Y}')
            A('s_add_u32 s50, s24, s40')
            A('s_addc_u32 s51, s25, 0')
            for i in range(16):
                A(f'global_load_dwordx4 v[{48 + 4*(i%4)}:{51 + 4*(i%4)}], v38, s[56:57] sc1')
                if self.w2late:
                    A(f'global_load_dwordx4 v[{64 + 4*(i%4)}:{67 + 4*(i%4)}], v38, s[50:51] sc1')
                A(f'v_add_u32 v38, {3072 * 16}, v38')
            self.L('L_h_wdone')
            A('s_waitcnt vmcnt(0)')

    def helper(self):
        A = self.A
        FW = self.ffn_win
        self.L('L_helper')
        self.pending = []
        A('s_memrealtime s[98:99]')
        A('s_setprio 3')
        if self.fastpro:
            A('v_mov_b32 v2, 0')
            A('s_mov_b32 s54, 1152')
            A('s_mov_b32 s55, 0x00020000')
            A('v_lshlrev_b32 v4, 1, v1')
            A('s_lshr_b32 s50, s2, 2')
            A('s_and_b32 s51, s2, 3')
            A('s_lshl_b32 s40, s50, 7')
            A(f's_mul_i32 s58, s51, {144 * 8192}')
            A('s_add_u32 s40, s40, s58')
            A('v_lshrrev_b32 v5, 3, v1')
            A('v_and_b32 v6, 7, v1')
            A('v_lshrrev_b32 v7, 4, v1')
            A('v_lshlrev_b32 v7, 1, v7')
            A('v_xor_b32 v6, v6, v7')
            A('v_lshlrev_b32 v6, 4, v6')
            A('v_lshl_add_u32 v22, v5, 13, v6')
            A('v_mul_u32_u24 v25, 9216, v5')
            A('v_add_u32 v25, v25, v6')
            A('v_lshlrev_b32 v23, 4, v1')
            A('s_waitcnt lgkmcnt(0)')
            A('s_mov_b32 s52, s4')
            A('s_mov_b32 s53, s5')
            for k in range(9):
                A(f'buffer_load_ushort v{30 + k}, v4, s[52:55], 0 offen offset:{128 * k}')
            A('global_load_dword v3, v2, s[24:25] sc1')
            A('s_add_u32 s56, s10, s40')
            A('s_addc_u32 s57, s11, 0')
            self.stamp(0)
            if self.layout3:
                A('s_barrier')
            assert self.share
        else:
            self.stamp(0)
            if 'nohelper' in self.exp:
                self.flush_stamps()
                A('s_endpgm')
            A('v_mov_b32 v2, 0')
            A('global_load_dword v3, v2, s[24:25] sc1')
            A('s_and_b32 s40, s2, 15')
            A('s_cmp_lg_u32 s40, 0')
            A('s_cbranch_scc1 L_h_nozero')
            A('s_lshr_b32 s40, s2, 4')
            A(f's_mul_i32 s40, s40, {self.cstride}')
            A(f's_add_u32 s40, s40, {WS_CNT}')
            A('v_mov_b32 v5, s40')
            A('s_mov_b64 exec, 1')
            A('global_store_dword v5, v2, s[24:25] sc1')
            A('s_mov_b64 exec, -1')
            self.L('L_h_nozero')
            A('s_mov_b32 s52, s4')
            A('s_mov_b32 s53, s5')
            A('s_mov_b32 s54, 1152')
            A('s_mov_b32 s55, 0x00020000')
            A('v_lshlrev_b32 v4, 1, v1')
            for k in range(9):
                A(f'buffer_load_ushort v{30 + k}, v4, s[52:55], 0 offen offset:{128 * k}')
            A('s_lshr_b32 s50, s2, 2')
            A('s_and_b32 s51, s2, 3')
            A('s_lshl_b32 s40, s50, 7')
            A(f's_mul_i32 s58, s51, {144 * 8192}')
            A('s_add_u32 s40, s40, s58')
            A('s_add_u32 s56, s10, s40')
            A('s_addc_u32 s57, s11, 0')
            A('v_lshrrev_b32 v5, 3, v1')
            A('v_and_b32 v6, 7, v1')
            A('v_lshrrev_b32 v7, 4, v1')
            A('v_lshlrev_b32 v7, 1, v7')
            A('v_xor_b32 v6, v6, v7')
            A('v_lshlrev_b32 v6, 4, v6')
            A('v_lshl_add_u32 v22, v5, 13, v6')
            A('v_mul_u32_u24 v25, 9216, v5')
            A('v_add_u32 v25, v25, v6')
            A('v_lshlrev_b32 v23, 4, v1')
        if 'wqlin' in self.exp:
            A('s_mul_i32 s40, s2, 18432')
            A('s_add_u32 s56, s10, s40')
            A('s_addc_u32 s57, s11, 0')
            self.dma_rows(56)
        elif 'nowq' not in self.exp:
            self.dma_cols(56, 8192, 22)
        if self.hfirst or (self.fastpro and not self.layout3):
            A('s_barrier')
        if self.layout3:
            self.ids()
        A('s_lshl_b32 s40, s27, 13')
        A(f's_add_u32 s40, s40, {WS_Q}')
        A('s_add_u32 s62, s24, s40')
        A('s_addc_u32 s63, s25, 0')
        A('v_lshrrev_b32 v14, 5, v1')
        A('v_lshlrev_b32 v14, 11, v14')
        A('v_and_b32 v15, 31, v1')
        A('v_lshl_add_u32 v14, v15, 4, v14')
        A('v_add_u32 v15, 4096, v14')
        nwarm = 0
        if 'qwarm' in self.exp:
            for H in range(2):
                for kp in range(4):
                    A(f'global_load_dwordx4 v[{96 + 4*kp}:{99 + 4*kp}], v{14 + H}, s[62:63] offset:{512 * kp} sc1')
                    nwarm += 1
        A('v_lshrrev_b32 v26, 4, v1')
        A('v_and_b32 v27, 15, v1')
        A('v_lshlrev_b32 v20, 3, v26')
        A(f'v_add_u32 v20, {XN}, v20')
        A('v_lshrrev_b32 v28, 2, v27')
        A('v_lshl_add_u32 v28, v26, 2, v28')
        A('v_and_b32 v29, 3, v27')
        A('v_lshlrev_b32 v8, 7, v28')
        A('v_lshl_add_u32 v8, v29, 3, v8')
        A(f'v_add_u32 v8, {STG}, v8')
        A('v_lshrrev_b32 v9, 1, v28')
        A('v_and_b32 v9, 3, v9')
        for t in range(4):
            A(f'v_xor_b32 v10, {t}, v9')
            A(f'v_lshl_add_u32 v{16 + t}, v10, 5, v8')
        A('v_mul_u32_u24 v24, 1152, v28')
        A('v_lshl_add_u32 v24, v29, 3, v24')
        A(f'v_add_u32 v24, {STG}, v24')
        nq = 0 if 'nowq' in self.exp else 18
        A(f's_waitcnt vmcnt({nq + nwarm})')
        self.stamp(11)
        A('v_readfirstlane_b32 s29, v3')
        X = 30
        for k in range(9):
            A(f'v_lshlrev_b32 v{X + k}, 16, v{X + k}')
        A('s_add_u32 s29, s29, 1')
        A('s_bitset1_b32 s29, 31')
        A(f'v_add_f32 v10, v{X}, v{X+1}')
        for k in range(2, 9):
            A(f'v_add_f32 v10, v10, v{X + k}')
        self.wavesum(10, 11)
        A(f'v_mul_f32 v10, {0x3AE38E39:#x}, v10')
        for k in range(9):
            A(f'v_sub_f32 v{40 + k}, v{X + k}, v10')
        A('v_mul_f32 v12, v40, v40')
        for k in range(1, 9):
            A(f'v_fmac_f32 v12, v{40 + k}, v{40 + k}')
        self.wavesum(12, 11)
        A(f'v_mul_f32 v12, {0x3AE38E39:#x}, v12')
        self.bf16r(10, 10, 11)
        self.bf16r(12, 12, 11)
        A(f'v_add_f32 v12, {0x3727C5AC:#x}, v12')
        self.bf16r(12, 12, 11)
        A('v_sqrt_f32 v12, v12')
        A('s_nop 0')
        self.bf16r(12, 12, 11)
        A('v_rcp_f32 v13, v12')
        for k in range(9):
            A(f'v_sub_f32 v{40 + k}, v{X + k}, v10')
        for k in range(0, 9, 2):
            k2 = min(k + 1, 8)
            A(f'v_cvt_pk_bf16_f32 v{50 + k // 2}, v{40 + k}, v{40 + k2}')
        for k in range(9):
            if k % 2 == 0:
                A(f'v_lshlrev_b32 v{40 + k}, 16, v{50 + k // 2}')
            else:
                A(f'v_and_b32 v{40 + k}, 0xffff0000, v{50 + k // 2}')
        for k in range(9):
            A(f'v_mul_f32 v{60 + k}, v{40 + k}, v13')
            A(f'v_fma_f32 v{70 + k}, -v{60 + k}, v12, v{40 + k}')
            A(f'v_fma_f32 v{60 + k}, v{70 + k}, v13, v{60 + k}')
        for k in range(0, 9, 2):
            k2 = min(k + 1, 8)
            A(f'v_cvt_pk_bf16_f32 v{50 + k // 2}, v{60 + k}, v{60 + k2}')
        A(f'v_add_u32 v11, {XN}, v4')
        for k in range(9):
            op = 'ds_write_b16' if k % 2 == 0 else 'ds_write_b16_d16_hi'
            A(f'{op} v11, v{50 + k // 2} offset:{128 * k}')
        A('s_mul_i32 s58, s51, 288')
        self.stamp(12)
        A('s_waitcnt vmcnt(0) lgkmcnt(0)')
        self.stamp(13)
        self.gemv64(96, True, 58)
        A('s_nop 7')
        self.stamp(10)
        A('s_mov_b32 s46, 0xffff0000')
        A('s_mov_b32 s47, 0')
        A('v_cndmask_b32 v32, v96, v104, s[46:47]')
        A('v_cndmask_b32 v34, v100, v108, s[46:47]')
        A('v_mov_b32 v33, s29')
        A('v_mov_b32 v35, s29')
        A('s_lshl_b32 s40, s2, 9')
        A(f's_add_u32 s40, s40, {WS_Q}')
        A('s_add_u32 s48, s24, s40')
        A('s_addc_u32 s49, s25, 0')
        A('s_mov_b32 s46, -1')
        A('s_mov_b64 exec, s[46:47]')
        A('global_store_dwordx4 v23, v[32:35], s[48:49] sc1')
        A('s_mov_b64 exec, -1')
        A('s_mov_b32 s48, s62')
        A('s_mov_b32 s49, s63')
        A('v_mov_b32 v30, v14')
        A('v_mov_b32 v31, v15')
        loads = []
        for H in range(2):
            for kp in range(4):
                b = 40 + 16 * H + 4 * kp
                loads.append(f'global_load_dwordx4 v[{b}:{b+3}], v{30 + H}, s[48:49] offset:{512 * kp} sc1')
        def qchk():
            A('v_xor_b32 v72, s29, v41')
            for q in range(43, 72, 2):
                A(f'v_xor_b32 v73, s29, v{q}')
                A('v_or_b32 v72, v72, v73')
            return 72
        self.poll('L_h_q', loads, qchk, sleep=1, probe=('qsweep' not in self.exp))
        self.stamp(14)
        for H in range(2):
            b = 40 + 16 * H
            for e in (0, 2):
                A(f'v_add_f32 v{b+e}, v{b+e}, v{b+4+e}')
                A(f'v_add_f32 v{b+8+e}, v{b+8+e}, v{b+12+e}')
                A(f'v_add_f32 v{b+e}, v{b+e}, v{b+8+e}')
            A(f'v_cvt_pk_bf16_f32 v{74 + H}, v{b}, v{b+2}')
        A('v_lshrrev_b32 v32, 4, v1')
        A('v_lshlrev_b32 v32, 6, v32')
        A('v_lshl_add_u32 v32, v27, 1, v32')
        A(f'v_add_u32 v32, {QL}, v32')
        for H in range(2):
            A(f'ds_write_b16 v32, v{74 + H} offset:{256 * H}')
            A(f'ds_write_b16_d16_hi v32, v{74 + H} offset:{256 * H + 32}')
        A('v_mov_b32 v42, 1')
        A('v_mov_b32 v43, s29')
        A(f'v_mov_b32 v41, {FL}')
        A('s_waitcnt lgkmcnt(0)')
        A('s_mov_b64 exec, 1')
        A('ds_write_b64 v41, v[42:43] offset:32')
        A('s_mov_b64 exec, -1')
        A('s_setprio 0')
        A(f's_cmp_ge_u32 s96, {NFFN}')
        A('s_cbranch_scc1 L_h_ffn_done')
        if 'noffn' in self.exp:
            A('s_branch L_h_ffn_done')
        if self.ffnboost:
            A(f'v_mov_b32 v30, {FL}')
            A('v_mov_b32 v31, 1')
            A('s_mov_b64 exec, 1')
            A('ds_write_b32 v30, v31 offset:48')
            A('s_mov_b64 exec, -1')
        A('s_mov_b32 s59, 0')
        self.L('L_h_f1')
        A('s_lshl_b32 s40, s96, 7')
        A(f's_mul_i32 s58, s59, {144 * 9216}')
        A('s_add_u32 s40, s40, s58')
        A('s_add_u32 s56, s16, s40')
        A('s_addc_u32 s57, s17, 0')
        if 'w1lin' in self.exp:
            A('s_lshl_b32 s40, s96, 2')
            A('s_add_u32 s40, s40, s59')
            A('s_mul_i32 s40, s40, 18432')
            A('s_add_u32 s56, s16, s40')
            A('s_addc_u32 s57, s17, 0')
            self.dma_rows(56, win=FW)
        elif 'now1' not in self.exp:
            self.dma_cols(56, 9216, 25, win=FW)
        A('s_mul_i32 s58, s59, 288')
        A('s_waitcnt vmcnt(0)')
        A('s_cmp_lg_u32 s59, 0')
        A('s_cbranch_scc1 L_h_f1b')
        for r in range(16):
            A(f'v_mov_b32 v{96 + r}, 0')
        self.L('L_h_f1b')
        A('s_nop 1')
        self.gemv64(96, False, 58)
        A('s_add_u32 s59, s59, 1')
        A('s_cmp_lt_u32 s59, 4')
        A('s_cbranch_scc1 L_h_f1')
        A('s_nop 7')
        A('v_lshlrev_b32 v34, 1, v27')
        A(f'v_add_u32 v34, {OB}, v34')
        for t in range(4):
            self.bf16r(30, 96 + 4 * t, 31)
            A(f'v_mul_f32 v31, {0xBFB8AA3B:#x}, v30')
            A('v_exp_f32 v31, v31')
            A('s_nop 0')
            A('v_add_f32 v31, 1.0, v31')
            A('v_rcp_f32 v32, v31')
            A('s_nop 0')
            A('v_mul_f32 v33, v30, v32')
            A('v_cvt_pk_bf16_f32 v33, v33, v33')
            A('s_mov_b64 exec, 0xffff')
            A(f'ds_write_b16 v34, v33 offset:{32 * t}')
            A('s_mov_b64 exec, -1')
        if self.w2late:
            A('v_lshlrev_b32 v35, 2, v1')
            A(f'v_add_u32 v36, {OB}, v35')
            A('s_waitcnt lgkmcnt(0)')
            A('ds_read_b32 v32, v36')
            A('v_mov_b32 v33, s29')
            A('s_lshl_b32 s40, s96, 8')
            A(f's_add_u32 s40, s40, {WS_A}')
            A('s_add_u32 s48, s24, s40')
            A('s_addc_u32 s49, s25, 0')
            A('v_lshlrev_b32 v35, 3, v1')
            A('s_mov_b32 s46, -1')
            A('s_mov_b32 s47, 0')
            A('s_waitcnt lgkmcnt(0)')
            A('s_mov_b64 exec, s[46:47]')
            A('global_store_dwordx2 v35, v[32:33], s[48:49] sc1')
            A('s_mov_b64 exec, -1')
            if self.ffnboost:
                A(f'v_mov_b32 v30, {FL}')
                A('v_mov_b32 v31, 0')
                A('s_mov_b64 exec, 1')
                A('ds_write_b32 v30, v31 offset:48')
                A('s_mov_b64 exec, -1')
            self.L('L_h_ffn_done')
            A(f'v_mov_b32 v34, {FL}')
            self.spin_begin(42)
            self.L('L_h_fwait')
            A('ds_read_b32 v35, v34 offset:16')
            A('s_waitcnt lgkmcnt(0)')
            A('v_readfirstlane_b32 s40, v35')
            A(f's_cmp_ge_u32 s40, {self.a_at}')
            A('s_cbranch_scc1 L_h_fgo')
            self.spin_retry(42, 'L_h_fwait', sleep=64)
            self.L('L_h_fgo')
            A('s_lshl_b32 s40, s27, 4')
            A('s_add_u32 s40, s40, s28')
            A('s_mul_i32 s40, s40, 72')
            A(f's_add_u32 s40, s40, {WS_A}')
            A('s_add_u32 s48, s24, s40')
            A('s_addc_u32 s49, s25, 0')
            A('v_min_u32 v30, 8, v1')
            A('v_lshlrev_b32 v30, 3, v30')
            if 'noffn' not in self.exp:
                def achk():
                    A('v_xor_b32 v34, s29, v33')
                    return 34
                self.poll('L_h_a', ['global_load_dwordx2 v[32:33], v30, s[48:49] sc1'], achk, sleep=32, probe=False)
            A('v_cmp_gt_u32 vcc, 9, v1')
            A('s_nop 1')
            A('v_cndmask_b32 v32, 0, v32, vcc')
            A('v_lshlrev_b32 v35, 2, v1')
            A(f'v_add_u32 v35, {AB}, v35')
            A('s_mov_b64 exec, 0xffff')
            A('ds_write_b32 v35, v32')
            A('s_mov_b64 exec, -1')
        else:
            for r in range(12):
                A(f'v_mov_b32 v{112 + r}, 0')
            A('v_lshlrev_b32 v35, 3, v26')
            A(f'v_add_u32 v35, {OB}, v35')
            A('s_mov_b32 s59, 0')
            self.L('L_h_f2')
            A('s_lshl_b32 s40, s96, 2')
            A('s_add_u32 s40, s40, s59')
            A('s_mul_i32 s40, s40, 18432')
            A('s_add_u32 s56, s18, s40')
            A('s_addc_u32 s57, s19, 0')
            if 'now2' not in self.exp:
                self.dma_rows(56, win=FW)
            A('s_lshl_b32 s40, s59, 5')
            A('v_add_u32 v38, s40, v35')
            A('s_waitcnt lgkmcnt(0)')
            A('ds_read_b64 v[36:37], v38')
            A('s_waitcnt vmcnt(0) lgkmcnt(0)')
            for t0 in range(0, 36, 12):
                for t in range(t0, t0 + 12):
                    A(f'ds_read_b64_tr_b16 v[{40 + 2*(t - t0)}:{41 + 2*(t - t0)}], v24 offset:{32 * t}')
                A('s_waitcnt lgkmcnt(0)')
                for t in range(t0, t0 + 12):
                    grp, r = t // 3, t % 3
                    a = 112 + 4 * (grp // 4)
                    row = 4 * (grp % 4) + r
                    A(f's_mov_b32 s46, {0x00010001 << row:#x}')
                    A(f's_mov_b32 s47, {0x00010001 << row:#x}')
                    A(f'v_cndmask_b32 v{88 + 2*(t&1)}, 0, v36, s[46:47]')
                    A(f'v_cndmask_b32 v{89 + 2*(t&1)}, 0, v37, s[46:47]')
                    A('s_nop 1')
                    A(f'v_mfma_f32_16x16x16_bf16 v[{a}:{a+3}], v[{88 + 2*(t&1)}:{89 + 2*(t&1)}], v[{40 + 2*(t - t0)}:{41 + 2*(t - t0)}], v[{a}:{a+3}]')
            A('s_add_u32 s59, s59, 1')
            A('s_cmp_lt_u32 s59, 4')
            A('s_cbranch_scc1 L_h_f2')
            A('s_nop 7')
            if self.flate:
                A(f'v_add_u32 v30, {FB}, v23')
                for a in range(3):
                    self.mkchk(112 + 4 * a)
                    A(f'ds_write_b128 v30, v[{112 + 4*a}:{115 + 4*a}] offset:{1024 * a}')
            else:
                A('s_mul_i32 s40, s96, 3072')
                A(f's_add_u32 s40, s40, {WS_F}')
                A('s_add_u32 s48, s24, s40')
                A('s_addc_u32 s49, s25, 0')
                for a in range(3):
                    self.mkchk(112 + 4 * a)
                    if 'nofpub' not in self.exp:
                        A(f'global_store_dwordx4 v23, v[{112 + 4*a}:{115 + 4*a}], s[48:49] offset:{1024 * a} sc1')
            if self.ffnboost:
                A(f'v_mov_b32 v30, {FL}')
                A('v_mov_b32 v31, 0')
                A('s_mov_b64 exec, 1')
                A('ds_write_b32 v30, v31 offset:48')
                A('s_mov_b64 exec, -1')
            self.L('L_h_ffn_done')
            if not self.flate:
                A(f's_cmp_ge_u32 s97, {NRED}')
                A('s_cbranch_scc1 L_h_tail')
                if 'nofgather' in self.exp or 'noffn' in self.exp:
                    A('s_branch L_h_tail')
                A(f'v_mov_b32 v34, {FL}')
                self.spin_begin(42)
                self.L('L_h_fwait')
                A('ds_read_b32 v35, v34 offset:16')
                A('s_waitcnt lgkmcnt(0)')
                A('v_readfirstlane_b32 s40, v35')
                A(f's_cmp_ge_u32 s40, {self.nunits // 2}')
                A('s_cbranch_scc1 L_h_fgo')
                self.spin_retry(42, 'L_h_fwait', sleep=64)
                self.L('L_h_fgo')
                self.f_gather('L_h_f', sleep=32, probe=True)
        self.L('L_h_tail')
        A('s_waitcnt vmcnt(0) lgkmcnt(0)')
        self.stamp(7)
        A('v_lshrrev_b32 v30, 3, v1')
        A('v_and_b32 v31, 7, v1')
        A('v_min_u32 v32, 5, v31')
        A('s_lshl_b32 s58, s27, 15')
        A('v_lshlrev_b32 v33, 11, v30')
        step8 = 8 * 2048
        A('s_lshl_b32 s40, s28, 7')
        A('s_add_u32 s58, s58, s40')
        A(f's_add_u32 s58, s58, {WS_P}')
        A('s_add_u32 s48, s24, s58')
        A('s_addc_u32 s49, s25, 0')
        A('v_lshl_add_u32 v34, v32, 4, v33')
        A(f'v_add_u32 v35, {step8}, v34')
        A('v_add_u32 v36, 80, v33')
        A(f'v_add_u32 v37, {step8}, v36')
        if not self.warm_late:
            self.tail_warm()
        if self.layout3 and self.pads and self.hchain:
            self.o.append('@CHAIN2')
        US, LA, NI = self.US, self.LA, self.NI
        A(f'v_mov_b32 v38, {FL}')
        def put_id(kreg, valreg_v):
            A(f's_lshl_b32 s40, s{kreg}, 2')
            A(f's_add_u32 s40, s40, {IDS}')
            A('v_mov_b32 v39, s40')
            A('s_mov_b64 exec, 1')
            A(f'ds_write_b32 v39, v{valreg_v}')
            A('s_mov_b64 exec, -1')
        def wait_tk(val, lab, sleep=1):
            self.spin_begin(42)
            self.L(lab)
            A('ds_read_b32 v44, v38 offset:52')
            A('s_waitcnt lgkmcnt(0)')
            A('v_readfirstlane_b32 s40, v44')
            A(f's_cmp_ge_u32 s40, {val}')
            A(f's_cbranch_scc1 {lab}_ok')
            self.spin_retry(42, lab, sleep=sleep)
            self.L(f'{lab}_ok')
        if self.share:
            C, pool = self.C, ((self.UB if self.share2 else 64) - US) * 64
            navg = pool / 16
            import struct as _st
            f2h = lambda x: '%#x' % _st.unpack('<I', _st.pack('<f', x))[0]
            if self.pertau:
                self.spin_begin(42)
                self.L('L_h_sw1')
                A('ds_read_b64 v[40:41], v38 offset:232')
                A('s_waitcnt lgkmcnt(0)')
                A('v_readfirstlane_b32 s40, v41')
                A('s_cmp_lg_u32 s40, 0')
                A('s_cbranch_scc1 L_h_sw1_ok')
                self.spin_retry(42, 'L_h_sw1', sleep=8)
                self.L('L_h_sw1_ok')
                A('v_mov_b32 v42, v40')
                A('v_mov_b32 v40, v41')
                A('v_mov_b32 v41, v42')
                A('v_mov_b32 v42, 0')
                A('s_lshl_b32 s40, s27, 8')
                A(f's_add_u32 s40, s40, {WS_T}')
                A('s_add_u32 s56, s24, s40')
                A('s_addc_u32 s57, s25, 0')
                A('s_lshl_b32 s58, s28, 4')
                A('v_mov_b32 v39, s58')
                self.mkchk(40)
                A('s_mov_b64 exec, 1')
                A('global_store_dwordx4 v39, v[40:43], s[56:57] sc1')
                A('s_mov_b64 exec, -1')
                wait_tk(4 * (C + self.Gd) - 4, 'L_h_sw2', sleep=4)
                A('v_and_b32 v39, 15, v1')
                A('v_lshlrev_b32 v39, 4, v39')
                self.poll('L_h_t', ['global_load_dwordx4 v[40:43], v39, s[56:57] sc1'], lambda: self.chk3([40], 44, 45), sleep=4, probe=False)
                A('v_readfirstlane_b32 s40, v40')
                A('v_sub_u32 v45, v40, v41')
                A('s_nop 0')
                A('v_subrev_u32 v44, s40, v40')
                A('v_cvt_f32_i32 v44, v44')
                A('v_cvt_f32_u32 v45, v45')
                A(f'v_mul_f32 v45, {f2h(1 / (4 * (C - self.C0)))}, v45')
                A('v_mov_b32 v46, v45')
                self.rowred('v_add_f32', 46)
                A(f'v_mul_f32 v46, {f2h(1 / 16)}, v46')
                A('v_sub_f32 v45, v45, v46')
                A(f'v_mul_f32 v45, {f2h(self.lam)}, v45')
                A('v_add_f32 v45, v45, v46')
                A('v_rcp_f32 v45, v45')
                A('s_nop 0')
                A('v_mul_f32 v46, v44, v45')
                A('v_mov_b32 v47, v45')
                self.mrowred('v_add_f32', [46, 47], (8, 4, 2, 1))
                A(f'v_add_f32 v46, {f2h(float(pool + 64 * (US - C)))}, v46')
                A('v_rcp_f32 v47, v47')
                A('s_nop 0')
                A('v_mul_f32 v46, v46, v47')
                A('v_sub_f32 v46, v46, v44')
                A('v_mul_f32 v46, v46, v45')
                A(f'v_subrev_f32 v46, {f2h(float(4 * (US - C)))}, v46')
            else:
                wait_tk(4 * C - 4, 'L_h_sw1')
                A('s_memrealtime s[50:51]')
                if self.tau2:
                    A(f's_sub_u32 s31, s40, {4 * C - 4}')
                A('s_lshl_b32 s40, s27, 8')
                A(f's_add_u32 s40, s40, {WS_T}')
                A('s_add_u32 s56, s24, s40')
                A('s_addc_u32 s57, s25, 0')
                A('s_lshl_b32 s58, s28, 4')
                A('v_mov_b32 v39, s58')
                A('s_waitcnt lgkmcnt(0)')
                A('v_mov_b32 v40, s50')
                A('v_mov_b32 v41, s98')
                A('v_mov_b32 v42, 0')
                if self.tau2:
                    A('s_mov_b32 s30, s50')
                self.mkchk(40)
                A('s_mov_b64 exec, 1')
                A('global_store_dwordx4 v39, v[40:43], s[56:57] sc1')
                A('s_mov_b64 exec, -1')
                wait_tk(4 * (C + self.Gd) - 4, 'L_h_sw2', sleep=4)
                A('v_and_b32 v39, 15, v1')
                A('v_lshlrev_b32 v39, 4, v39')
                self.poll('L_h_t', ['global_load_dwordx4 v[40:43], v39, s[56:57] sc1'], lambda: self.chk3([40], 44, 45), sleep=4, probe=False)
                A('v_readfirstlane_b32 s40, v40')
                A('v_sub_u32 v45, v40, v41')
                A('s_nop 0')
                A('v_subrev_u32 v44, s40, v40')
                A('v_cvt_f32_i32 v44, v44')
                A('v_cvt_f32_u32 v45, v45')
                A('v_mov_b32 v46, v44')
                self.rowred('v_add_f32', 46)
                self.rowred('v_add_f32', 45)
                import struct as _st
                f2h = lambda x: '%#x' % _st.unpack('<I', _st.pack('<f', x))[0]
                A(f'v_mul_f32 v46, {f2h(1 / 16)}, v46')
                A(f'v_mul_f32 v45, {f2h(self.taufac / (16 * 4 * C))}, v45')
                A('v_rcp_f32 v45, v45')
                A('v_sub_f32 v46, v46, v44')
                A('s_nop 0')
                A('v_mul_f32 v46, v46, v45')
                A(f'v_add_f32 v46, {f2h(navg)}, v46')
            def shares(pool_, cap_, off):
                A('v_max_f32 v46, 0, v46')
                A(f'v_min_f32 v46, {f2h(cap_)}, v46')
                A('v_mov_b32 v47, v46')
                self.rowred('v_add_f32', 47)
                A('v_rcp_f32 v47, v47')
                A('s_nop 0')
                A(f'v_mul_f32 v47, {f2h(float(pool_))}, v47')
                A('v_mul_f32 v46, v46, v47')
                for sh in (1, 2, 4, 8):
                    A('s_nop 1')
                    A(f'v_add_f32_dpp v46, v46, v46 row_shr:{sh} row_mask:0xf bank_mask:0xf bound_ctrl:0')
                A('v_add_f32 v46, 0.5, v46')
                A('v_cvt_i32_f32 v46, v46')
                A(f'v_min_i32 v46, {pool_}, v46')
                A('v_max_i32 v46, 0, v46')
                for sh in (1, 2, 4, 8):
                    A('s_nop 1')
                    A(f'v_max_i32_dpp v46, v46, v46 row_shr:{sh} row_mask:0xf bank_mask:0xf bound_ctrl:0')
                A('s_mov_b32 s50, 0x80008000')
                A('s_mov_b32 s51, 0x80008000')
                A(f'v_mov_b32 v47, {pool_}')
                A('v_cndmask_b32 v46, v46, v47, s[50:51]')
                A('v_mov_b32 v47, 0')
                A('s_nop 1')
                A('v_mov_b32_dpp v47, v46 row_shr:1 row_mask:0xf bank_mask:0xf bound_ctrl:0')
                A('v_sub_u32 v46, v46, v47')
                if self.table:
                    self.build_table(first=(off == 0))
                    return
                A('v_add_u32 v46, 1, v46')
                A('s_nop 0')
                A('v_readlane_b32 s50, v46, s28')
                A('v_readlane_b32 s51, v47, s28')
                A('s_nop 1')
                A('v_mov_b32 v46, s50')
                A('v_mov_b32 v47, s51')
                A(f'v_mov_b32 v39, {IDS + off}')
                A('s_mov_b64 exec, 1')
                A('ds_write_b64 v39, v[46:47]')
                A('s_mov_b64 exec, -1')
            if self.share2:
                A('v_mov_b32 v48, v45')
            shares(pool, 2.5 * navg, 0)
            if self.share2:
                pool2 = (64 - self.UB) * 64
                navg2 = pool2 / 16
                A(f's_add_u32 s58, s50, {4 * US - 1 - 4 - self.K2}')
                def wait_tks(sreg, lab, sleep):
                    self.spin_begin(42)
                    self.L(lab)
                    A('ds_read_b32 v44, v38 offset:52')
                    A('s_waitcnt lgkmcnt(0)')
                    A('v_readfirstlane_b32 s40, v44')
                    A(f's_cmp_ge_u32 s40, s{sreg}')
                    A(f's_cbranch_scc1 {lab}_ok')
                    self.spin_retry(42, lab, sleep=sleep)
                    self.L(f'{lab}_ok')
                wait_tks(58, 'L_h_s2a', 2)
                A('s_memrealtime s[56:57]')
                A(f's_add_u32 s59, s50, {4 * US - 1 - 4}')
                A('s_sub_i32 s59, s59, s40')
                A('s_max_i32 s59, s59, 0')
                A('s_waitcnt lgkmcnt(0)')
                A('v_mov_b32 v40, s56')
                A('v_mov_b32 v41, s59')
                if self.tau2:
                    A(f's_sub_u32 s40, s40, {4 * C - 4}')
                    A('s_sub_u32 s40, s40, s31')
                    A('s_sub_u32 s59, s56, s30')
                    A('v_cvt_f32_u32 v42, s40')
                    A('v_cvt_f32_u32 v43, s59')
                    A('v_rcp_f32 v42, v42')
                    A('s_nop 0')
                    A('v_mul_f32 v42, v42, v43')
                else:
                    A('v_mov_b32 v42, 0')
                A('s_lshl_b32 s40, s27, 8')
                A(f's_add_u32 s40, s40, {WS_T2}')
                A('s_add_u32 s56, s24, s40')
                A('s_addc_u32 s57, s25, 0')
                A('s_lshl_b32 s59, s28, 4')
                A('v_mov_b32 v39, s59')
                self.mkchk(40)
                A('s_mov_b64 exec, 1')
                A('global_store_dwordx4 v39, v[40:43], s[56:57] sc1')
                A('s_mov_b64 exec, -1')
                A(f's_add_u32 s58, s58, {self.Gd2}')
                wait_tks(58, 'L_h_s2b', 2)
                A('v_and_b32 v39, 15, v1')
                A('v_lshlrev_b32 v39, 4, v39')
                self.poll('L_h_t2', ['global_load_dwordx4 v[40:43], v39, s[56:57] sc1'], lambda: self.chk3([40], 44, 45), sleep=2, probe=False)
                A('v_readfirstlane_b32 s40, v40')
                A('v_cvt_f32_u32 v45, v41')
                A('s_nop 0')
                A('v_subrev_u32 v44, s40, v40')
                A('v_cvt_f32_i32 v44, v44')
                if self.tau2:
                    A('v_mov_b32 v46, v42')
                    self.rowred('v_add_f32', 46)
                    A(f'v_mul_f32 v46, {f2h(1 / 16)}, v46')
                    A('v_sub_f32 v42, v42, v46')
                    A(f'v_mul_f32 v42, {f2h(self.lam2)}, v42')
                    A('v_add_f32 v42, v42, v46')
                    A('v_rcp_f32 v42, v42')
                    A('s_nop 0')
                    A('v_mul_f32 v46, v44, v42')
                    A('v_add_f32 v46, v46, v45')
                    A('v_mov_b32 v47, v42')
                    self.mrowred('v_add_f32', [46, 47], (8, 4, 2, 1))
                    A(f'v_add_f32 v46, {f2h(float(pool2))}, v46')
                    A('v_rcp_f32 v47, v47')
                    A('s_nop 0')
                    A('v_mul_f32 v46, v46, v47')
                    A('v_sub_f32 v46, v46, v44')
                    A('v_mul_f32 v46, v46, v42')
                    A('v_sub_f32 v46, v46, v45')
                else:
                    A(f'v_mul_f32 v44, v44, v48')
                    A(f'v_mul_f32 v44, {f2h(1 / self.taufac2)}, v44')
                    A('v_add_f32 v44, v44, v45')
                    A('v_mov_b32 v46, v44')
                    self.rowred('v_add_f32', 46)
                    A(f'v_mul_f32 v46, {f2h(1 / 16)}, v46')
                    A('v_sub_f32 v46, v46, v44')
                    A(f'v_add_f32 v46, {f2h(navg2)}, v46')
                shares(pool2, self.cap2 * navg2, 8)
                A('s_mov_b32 s50, 1')
            A(f's_add_u32 s50, s50, {4 * US - 4 - self.warm_tiles}')
            self.spin_begin(42)
            self.L('L_h_sw3')
            A('ds_read_b32 v44, v38 offset:52')
            A('s_waitcnt lgkmcnt(0)')
            A('v_readfirstlane_b32 s40, v44')
            A('s_cmp_ge_u32 s40, s50')
            A('s_cbranch_scc1 L_h_sw3_ok')
            self.spin_retry(42, 'L_h_sw3', sleep=4)
            self.L('L_h_sw3_ok')
            self.stamp(23)
        elif NI == 0:
            A('s_mov_b32 s50, 0')
            A('v_mov_b32 v44, -1')
            put_id(50, 44)
            if 'dumat' in self.exp:
                A(f's_mul_i32 s40, s27, {self.cstride}')
                A(f's_add_u32 s40, s40, {WS_CNT}')
                A('s_add_u32 s56, s24, s40')
                A('s_addc_u32 s57, s25, 0')
                A('v_mov_b32 v40, 0')
                A('v_mov_b32 v41, 1')
                A('s_mov_b32 s58, 48')
                self.L('L_h_da')
                A('s_lshl_b32 s51, s58, 2')
                self.spin_begin(42)
                self.L('L_h_daw')
                A('ds_read_b32 v44, v38 offset:52')
                A('s_waitcnt lgkmcnt(0)')
                A('v_readfirstlane_b32 s40, v44')
                A('s_cmp_ge_u32 s40, s51')
                A('s_cbranch_scc1 L_h_daok')
                self.spin_retry(42, 'L_h_daw', sleep=2)
                self.L('L_h_daok')
                A('s_mov_b64 exec, 1')
                A('global_atomic_add v42, v40, v41, s[56:57] sc0')
                A('s_mov_b64 exec, -1')
                A('s_waitcnt vmcnt(0)')
                A('s_add_u32 s58, s58, 1')
                A('s_cmp_lt_u32 s58, 63')
                A('s_cbranch_scc1 L_h_da')
        else:
            A(f's_mul_i32 s40, s27, {self.cstride}')
            A(f's_add_u32 s40, s40, {WS_CNT}')
            A('s_add_u32 s56, s24, s40')
            A('s_addc_u32 s57, s25, 0')
            A('v_mov_b32 v40, 0')
            A('v_mov_b32 v41, 1')
            def wait_progress(kreg, lab):
                A(f's_add_u32 s51, s{kreg}, {US - LA}')
                self.spin_begin(42)
                self.L(lab)
                A('ds_read_b128 v[44:47], v38')
                A('s_waitcnt lgkmcnt(0)')
                A('v_max_u32 v44, v44, v45')
                A('v_max3_u32 v44, v44, v46, v47')
                A('s_nop 0')
                A('v_readfirstlane_b32 s40, v44')
                A('s_cmp_ge_u32 s40, s51')
                A(f's_cbranch_scc1 {lab}_ok')
                self.spin_retry(42, lab, sleep=4)
                self.L(f'{lab}_ok')
            def claim(dst):
                A('s_mov_b64 exec, 1')
                A(f'global_atomic_add v{dst}, v40, v41, s[56:57] sc0')
                A('s_mov_b64 exec, -1')
            if self.tickets:
                A('s_mov_b32 s58, 0')
                self.L('L_h_claim')
                A('s_lshl_b32 s51, s58, 2')
                A(f's_add_u32 s51, s51, {4 * US - 4 - self.LAt}')
                self.spin_begin(42)
                self.L('L_h_tw')
                A('ds_read_b32 v44, v38 offset:52')
                A('s_waitcnt lgkmcnt(0)')
                A('v_readfirstlane_b32 s40, v44')
                A('s_cmp_ge_u32 s40, s51')
                A('s_cbranch_scc1 L_h_tw_ok')
                self.spin_retry(42, 'L_h_tw', sleep=2)
                self.L('L_h_tw_ok')
                A(f's_mov_b32 s40, {NI}')
                A(f's_cmp_ge_u32 s58, {CAP}')
                A('s_cbranch_scc1 L_h_tres')
                claim(42)
                A('s_waitcnt vmcnt(0)')
                A('v_readfirstlane_b32 s40, v42')
                self.L('L_h_tres')
                if self.endmargin:
                    A(f's_cmp_lt_u32 s40, {max(NI - self.endmargin, 0)}')
                    A('s_cbranch_scc1 L_h_tnom')
                    A('v_mov_b32 v44, 1')
                    A('s_mov_b64 exec, 1')
                    A('ds_write_b32 v38, v44 offset:48')
                    A('s_mov_b64 exec, -1')
                    self.L('L_h_tnom')
                A(f's_cmp_ge_u32 s40, {NI}')
                A('s_cselect_b32 s40, -2, s40')
                A('s_add_u32 s59, s40, 1')
                A('v_mov_b32 v44, s59')
                put_id(58, 44)
                A('s_add_u32 s58, s58, 1')
                A('s_cmp_lg_u32 s59, -1')
                A('s_cbranch_scc1 L_h_claim')
            else:
                A('s_mov_b32 s50, 0')
                A('s_mov_b32 s58, 0')
                wait_progress(50, 'L_h_cw0')
                claim(42)
                A('s_mov_b32 s50, 1')
                self.L('L_h_claim')
                for par in range(2):
                    cur, nxt = 42 + par, 43 - par
                    last = self.lab('L_h_clast')
                    res = self.lab('L_h_cres')
                    A(f's_cmp_ge_u32 s50, {CAP}')
                    A(f's_cbranch_scc1 {last}')
                    wait_progress(50, self.lab('L_h_cw'))
                    claim(nxt)
                    A('s_add_u32 s50, s50, 1')
                    A('s_waitcnt vmcnt(1)')
                    A(f's_branch {res}')
                    self.L(last)
                    A('s_waitcnt vmcnt(0)')
                    A(f'v_mov_b32 v{nxt}, {NI}')
                    self.L(res)
                    A(f'v_readfirstlane_b32 s40, v{cur}')
                    if self.endmargin:
                        nm = self.lab('L_h_nom')
                        A(f's_cmp_lt_u32 s40, {max(NI - self.endmargin, 0)}')
                        A(f's_cbranch_scc1 {nm}')
                        for q in range(4):
                            A(f'v_mov_b32 v{44 + q}, 1')
                        A('s_mov_b64 exec, 1')
                        A('ds_write_b128 v38, v[44:47] offset:48')
                        A('s_mov_b64 exec, -1')
                        self.L(nm)
                    A(f's_cmp_ge_u32 s40, {NI}')
                    A('s_cselect_b32 s40, -2, s40')
                    A('s_add_u32 s59, s40, 1')
                    A('v_mov_b32 v44, s59')
                    put_id(58, 44)
                    A('s_add_u32 s58, s58, 1')
                    A('s_cmp_eq_u32 s59, -1')
                    A('s_cbranch_scc1 L_h_cdone')
                A('s_branch L_h_claim')
            self.L('L_h_cdone')
            self.stamp(23)
            A('v_mov_b32 v44, 1')
            A('v_mov_b32 v45, 1')
            A('v_mov_b32 v46, 1')
            A('v_mov_b32 v47, 1')
            A('s_mov_b64 exec, 1')
            if self.tickets:
                A('ds_write_b32 v38, v44 offset:48')
            else:
                A('ds_write_b128 v38, v[44:47] offset:48')
            A('s_mov_b64 exec, -1')
            A('s_waitcnt vmcnt(0) lgkmcnt(0)')
        if self.warm_late:
            self.tail_warm()
        if 'notail' in self.exp:
            self.flush_stamps()
            A('s_endpgm')
        if self.trim:
            A('v_mul_u32_u24 v39, 6, v31')
            A(f'v_add_u32 v39, {OB}, v39')
        A('s_barrier')
        if self.pm_b:
            self.pollm('L_h_b', lambda bs: [f'global_load_dwordx4 v[{b}:{b+3}], v{34 + i}, s[48:49] sc1' for i, b in enumerate(bs)],
                       [[40, 44, 48, 52], [68, 72, 76, 80], [96, 100, 104, 108], [128, 132, 136, 140]][:self.nset_b], 56,
                       stag=self.stag_b, invs=[30, 32, 34, 36])
        elif self.dpoll:
            self.poll2('L_h_b', lambda bs: [f'global_load_dwordx4 v[{b}:{b+3}], v{34 + i}, s[48:49] sc1' for i, b in enumerate(bs)],
                       [40, 44, 48, 52], [68, 72, 76, 80], 56, 57, sleep=self.tsleep or 2, stag=self.stag_b, thresh=self.thresh_b,
                       more=([96, 100, 104, 108], [128, 132, 136, 140])[:self.nset_b - 2])
        else:
            self.poll('L_h_b', [f'global_load_dwordx4 v[{40 + 4*i}:{43 + 4*i}], v{34 + i}, s[48:49] sc1' for i in range(4)],
                      lambda: self.chk3([40, 44, 48, 52], 56, 57), sleep=2)
        self.stamp(15)
        A('v_max_f32 v56, v49, v53')
        self.rowred('v_max_f32', 56, rors=(8,))
        self.xrow('v_max_f32', 56, 57)
        A('v_sub_f32 v58, v49, v56')
        A('v_sub_f32 v59, v53, v56')
        A('v_exp_f32 v58, v58')
        A('v_exp_f32 v59, v59')
        A('s_nop 0')
        A('v_mul_f32 v60, v50, v58')
        for i in range(3):
            A(f'v_mul_f32 v{61 + i}, v{40 + i}, v58')
        A('v_fmac_f32 v60, v54, v59')
        for i in range(3):
            A(f'v_fmac_f32 v{61 + i}, v{44 + i}, v59')
        self.mrowred('v_add_f32', [60, 61, 62, 63], (8,))
        self.mxrow('v_add_f32', [60, 61, 62, 63], [84, 85, 86, 87])
        A('v_rcp_f32 v64, v60')
        A('s_nop 0')
        if self.trim:
            for q, r in enumerate((61, 62, 63)):
                A(f'v_mul_f32 v{56 + q}, v{r}, v64')
            for q, r in enumerate((61, 62, 63)):
                A(f'v_fma_f32 v{r}, -v{56 + q}, v60, v{r}')
            for q, r in enumerate((61, 62, 63)):
                A(f'v_fma_f32 v{r}, v{r}, v64, v{56 + q}')
            A('v_cvt_pk_bf16_f32 v61, v61, v62')
            A('v_cvt_pk_bf16_f32 v63, v63, v63')
            A('v_mov_b32 v62, v39')
        else:
            for r in (61, 62, 63):
                A(f'v_mul_f32 v65, v{r}, v64')
                A(f'v_fma_f32 v66, -v65, v60, v{r}')
                A(f'v_fma_f32 v{r}, v66, v64, v65')
            A('v_cvt_pk_bf16_f32 v61, v61, v62')
            A('v_cvt_pk_bf16_f32 v63, v63, v63')
            A('v_mul_u32_u24 v62, 6, v31')
            A(f'v_add_u32 v62, {OB}, v62')
        A('s_mov_b64 exec, 0x3f')
        A('ds_write_b16 v62, v61')
        A('s_mov_b64 exec, 0x1f')
        A('ds_write_b16_d16_hi v62, v61 offset:2')
        A('ds_write_b16 v62, v63 offset:4')
        A('s_mov_b64 exec, -1')
        A('s_waitcnt lgkmcnt(0)')
        A('s_barrier')
        if self.flate == 'h':
            A(f's_cmp_ge_u32 s97, {NRED}')
            A('s_cbranch_scc1 L_h_exit')
            if self.stamps:
                A('s_mov_b32 s65, s64')
            self.f_gather('L_h_f', sleep=self.fsleep, probe=False)
            if self.stamps:
                A('s_mov_b32 s64, s65')
            A('s_waitcnt lgkmcnt(0)')
            A('s_barrier')
            self.L('L_h_exit')
        self.flush_stamps(extra=[(30, 64)])
        A('s_endpgm')

    def build(self):
        head = HEADER + f'; @launch grid=(256,1,1) block=(576,1,1) lds={LDS_BYTES}\n'
        head += '.amdgcn_target "amdgcn-amd-amdhsa--gfx950"\n.text\n'
        head += f'.globl {KNAME}\n.p2align 8\n.type {KNAME},@function\n{KNAME}:\n'
        if self.layout3:
            self.entry3()
            self.loader3()
            if self.halign:
                self.o.append('  .balignl 256, 0xbf810000')
                self.o.append('  .fill 48, 4, 0xbf810000')
            self.helper()
            if self.calign:
                self.o.append('  .balignl 256, 0xbf810000')
                self.o.append('  .fill 48, 4, 0xbf810000')
            self.cons0()
            self.consumer()
        else:
            self.entry()
            self.consumer()
            if self.tickets:
                self.loader_tk()
            else:
                self.loader()
            self.helper()
        self.L('L_end')
        self.A('s_endpgm')
        if 'coldprobe' in self.exp:
            for k in range(6):
                self.o.append('  .fill 512, 4, 0xbf800000')
                self.L(f'L_cp{k}')
                self.A(f's_branch L_cp{k+1}' if k < 5 else 's_branch L_cpback')
        tail = f'''.section .rodata,"a"
.p2align 6
.amdhsa_kernel {KNAME}
  .amdhsa_next_free_vgpr 160
  .amdhsa_next_free_sgpr 100
  .amdhsa_accum_offset 160
  .amdhsa_group_segment_fixed_size 0
  .amdhsa_kernarg_size 88
  .amdhsa_user_sgpr_count 2
  .amdhsa_user_sgpr_kernarg_segment_ptr 1
  .amdhsa_system_sgpr_workgroup_id_x 1
  .amdhsa_float_denorm_mode_32 3
  .amdhsa_float_denorm_mode_16_64 3
.end_amdhsa_kernel
'''
        if self.layout3 and self.pads:
            self.place_pads(head, tail)
        return head + '\n'.join(self.o) + '\n' + tail

    def addresses(self, head, tail):
        import subprocess, tempfile, os, re
        lines = []
        idx = []
        for i, l in enumerate(self.o):
            if l.startswith('  ') and not l.strip().startswith('.'):
                lines.append(f'Lx_{i}:')
                idx.append(i)
            lines.append('' if l.startswith('@') else l)
        with tempfile.TemporaryDirectory() as d:
            src = os.path.join(d, 'a.s'); obj = os.path.join(d, 'a.o')
            open(src, 'w').write(head + '\n'.join(lines) + '\n' + tail)
            r = subprocess.run(['clang', '-x', 'assembler', '-target', 'amdgcn-amd-amdhsa', '-mcpu=gfx950', '-c', src, '-o', obj], capture_output=True, text=True)
            assert r.returncode == 0, r.stderr[:2000]
            out = subprocess.run(['llvm-objdump', '-t', obj], capture_output=True, text=True).stdout
        adr = {}
        for m in re.finditer(r'^([0-9a-f]{16}) .* Lx_(\d+)$', out, re.M):
            adr[int(m.group(2))] = int(m.group(1), 16)
        return adr

    def place_pads(self, head, tail):
        o = self.o
        names = []

        def lab_index(name):
            return o.index(name + ':')

        def insert(first_block, limit_addr, name, after_idx=0):
            adr = self.addresses(head, tail)
            order = sorted(adr)
            last = lab_index('L_end') + 1
            blk = first_block
            while True:
                best = None
                for i in order:
                    if i < after_idx:
                        continue
                    a = adr[i]
                    if a >> 8 > blk or a > adr[last]:
                        break
                    prev = o[i - 1].strip() if i else ''
                    j = i
                    while j > 0 and not o[j - 1].startswith('  '):
                        j -= 1
                    prev = o[j - 1].strip() if j else ''
                    dead = prev.startswith('s_branch') or prev == 's_endpgm'
                    pa = a if dead else a + 4
                    if pa >> 8 == blk and 192 <= (pa & 255) <= 252 and a >> 8 == blk:
                        if best is None or dead and not best[1]:
                            best = (j, dead)
                if best:
                    j, dead = best
                    ins = [f'{name}:', f'  s_branch {name}_next']
                    if not dead:
                        ins = [f'  s_branch {name}_skip'] + ins + [f'{name}_skip:']
                    o[j:j] = ins
                    return blk
                blk += 1
                if blk * 256 + 192 > limit_addr:
                    return None

        c = o.index('@CHAIN')
        code = []
        for w in range(3):
            code += [f'  s_cmp_eq_u32 s26, {w}', f'  s_cbranch_scc1 L_end ; CH{w}']
        code += ['  s_branch L_end ; CH3', 'L_chain_done:']
        o[c:c + 1] = code
        if '@CHAIN2' in o:
            c = o.index('@CHAIN2')
            o[c:c + 1] = ['  s_branch L_end ; CH4', 'L_chain2_done:']
        k = max(i for i, l in enumerate(o[:80]) if 'global_load_lds_dwordx4' in l)
        o.append('L_pad_e:'); o.append('  s_branch L_e1')
        adr = self.addresses(head, tail)
        del o[-2:]
        cand = [i for i in sorted(adr) if i <= k + 1 and 192 <= ((adr[i] + 4) & 255) <= 248 and adr[i] < 256]
        j = cand[-1]
        o[j:j] = ['  s_branch L_pad_e_skip', 'L_pad_e:', '  s_branch L_e1', 'L_pad_e_skip:']
        def addr_of(adr, name):
            i = lab_index(name)
            while i not in adr:
                i += 1
            return adr[i]
        placed = []
        adr = self.addresses(head, tail)
        blk = addr_of(adr, 'L_ld_sp0') >> 8
        while True:
            adr = self.addresses(head, tail)
            end = addr_of(adr, 'L_end')
            hb = addr_of(adr, 'L_helper') >> 8
            if hb <= blk < hb + 5:
                blk = hb + 5
            if self.skipffn:
                f1, ft = addr_of(adr, 'L_h_f1') >> 8, addr_of(adr, 'L_h_tail') >> 8
                if f1 < blk < ft:
                    blk = ft
            if self.calign:
                hbb, cb = addr_of(adr, 'L_h_b_loop') >> 8, addr_of(adr, 'L_cons1') >> 8
                if hbb <= blk < cb + 5:
                    blk = cb + 5
            if not self.latetail and blk >= addr_of(adr, 'L_c_done') >> 8:
                break
            if blk * 256 >= end:
                break
            name = f'L_pad_{len(placed)}'
            o.append(f'{name}_next:'); o.append('  s_branch L_end')
            lim = hb * 256 - 1 if blk < hb else end
            b = insert(blk, lim, name)
            if b is None:
                del o[-2:]
                blk = hb + 5 if blk < hb else 1 << 20
                continue
            placed.append((name, b))
            blk = b + 5
        adr = self.addresses(head, tail)
        regions = [('L_helper', 'L_h_f1'), ('L_cons1', 'L_c_done'), ('L_c_done', 'L_end'), ('L_ld_sp0', 'L_helper'), ('L_h_f1', 'L_cons1')]
        pads = []
        for ra, rb in regions:
            lo, hi = addr_of(adr, ra) >> 8, addr_of(adr, rb) >> 8
            for name, b in placed:
                if name not in pads and lo <= b <= hi:
                    pads.append(name)
        pads = pads[:self.npads or None]
        late = []
        if self.hchain:
            for ra, rb in [('L_ld_sp0', 'L_helper'), ('L_h_tail', 'L_cons1')] + ([('L_c_done', 'L_end')] if self.latetail else []):
                lo, hi = addr_of(adr, ra) >> 8, addr_of(adr, rb) >> 8
                for name, b in placed:
                    if name not in pads and name not in late and b <= hi and b + 4 >= lo:
                        late.append(name)
        dropped = [n for n, _ in placed if n not in pads and n not in late]
        o[:] = [l for n, l in enumerate(o) if not (l.endswith('_next:') or (n and o[n - 1].endswith('_next:')))]
        chains = [pads[w::4] for w in range(4)]
        nxt = {n: 'L_chain_done' for n in dropped}
        for ch in chains:
            for a, b in zip(ch, ch[1:] + ['L_chain_done']):
                nxt[a] = b
        for a, b in zip(late, late[1:] + ['L_chain2_done']):
            nxt[a] = b
        chains.append(late or ['L_chain2_done'])
        for n, l in enumerate(o):
            s_ = l.strip()
            if s_.startswith('s_branch L_pad_') and s_.endswith('_next'):
                o[n] = f'  s_branch {nxt[s_.split()[1][:-5]]}'
        for n, l in enumerate(o):
            if '; CH' in l:
                o[n] = l.split('L_end')[0] + chains[int(l[-1])][0]
        self.padinfo = (pads, chains)


if __name__ == '__main__':
    import argparse
    ap = argparse.ArgumentParser()
    ap.add_argument('-o', default='parallel_sum__gqa_block_cached__dense_activation_silu__decode.s')
    ap.add_argument('--W', type=int, default=5)
    ap.add_argument("--rot", type=int, default=8)
    ap.add_argument('--headmap', default='lin')
    ap.add_argument('--stamps', action='store_true')
    ap.add_argument('--exp', default='')
    a = ap.parse_args()
    open(a.o, 'w').write(Gen(W=a.W, rot=a.rot, headmap=a.headmap, stamps=a.stamps, exp=[e for e in a.exp.split(',') if e]).build())
    print('wrote', a.o)
```

```python
import sys

KNAME = 'parallel_sum__gqa_block_cached__dense_activation_silu__decode_kernel'

HEADER = '''; Kernarg layout for this problem (88 bytes, ptrs only, base s[0:1]):
;   offset  24: d_in[3] A_wq  shape=(576, 4096) dtype=bfloat16
'''

RING = 32768
STG = 0x20000
XN = 0x24800
QL = 0x24D00
FL = 0x25000
OC = 0x25100
OCML = 0x26100
OB = 0x26180
RED = 0x26200
FFNR = 0x26480
AB = 0x26400
W2S = 0
TBL = 0x26500
FB = 0x26500
LDS_BYTES = 0x28000

WS_EPOCH = 0x0
WS_Q = 0x10000
WS_P = 0x80000
WS_Y2 = 0x200000
WS_Y = 0x100000
WS_A = 0x30000
WS_F = 0x38000
NRED = 48
NFFN = 72
WS_DBG = 0x800000

SCALE = 0x3DB504F3
LOG2E = 0x3FB8AA3B
SPIN = 0x40000
IDS = FL + 64
CAP = 40
WS_T = 0x4000
WS_T2 = 0x6000
WS_CNT = 0x1C0000


class Gen:
    def __init__(self, W=5, rot=8, headmap='lin', stamps=False, nunits=64, exp=(), ffn_win=6, warm_before=4, US=56, LA=2, preread=True, wotail=True, Wend=12, endmargin=32, cstride=12544, earlyflags=True, fastpoll=True, dpoll=True, stag=8, tickets=True, LAt=6, tk_pos=4, prog_pts=(4, 8, 16, 32, 48), nstart=0, share=True, C=50, Gd=3, xfast=8, taufac=0.95, warm_tiles=10, tsleep=0, thresh=64, a_at=36, warm_late=False, w2late=False, wo_by='w23', pertau=False, C0=34, lam=0.7, hfirst=False, ffnboost=False, xrot=448, share2=True, UB=62, K2=12, Gd2=5, taufac2=1.0, cap2=2.5, fastpro=True, nset_b=2, nset_d=2, stag_b=None, stag_d=None, thresh_b=None, thresh_d=None, pm_b=False, pm_d=False, redmap='spread', ffnmap='spread', warmP='selfld', warmY='selfld', flate=False, fwave=0, fsleep=2, wo_delay=False, wo_win=0, stage_end=True, tau2=False, lam2=0.7, layout3=True, pads=True, halign=True, npads=5, hchain=True, skipffn=True, latetail=True, out_pol='', trim=True, calign=True, tmap='x2', lblk=1, irot=0, S=4096, table=True, bfirst=False):
        self.o = []
        self.W = W
        self.rot = rot
        self.headmap = headmap
        self.stamps = stamps
        self.nunits = nunits
        self.uid = 0
        self.pending = []
        self.exp = set(exp)
        self.ffn_win = ffn_win
        self.warm_before = warm_before
        self.US = US
        self.LA = LA
        self.NI = (64 - US) * 16
        self.preread = preread
        self.wotail = wotail
        self.Wend = Wend
        self.ffnboost = ffnboost
        self.xrot = xrot
        self.share2 = share2
        self.fastpro = fastpro
        self.nset_b = nset_b
        self.pm_b = pm_b
        self.redmap = redmap
        self.warmP = warmP
        self.flate = flate
        self.fwave = fwave
        self.wo_delay = wo_delay
        self.stage_end = stage_end
        self.tau2 = tau2
        self.layout3 = layout3
        self.pads = pads
        self.halign = halign
        self.npads = npads
        self.hchain = hchain
        self.skipffn = skipffn
        self.trim = trim
        self.tmap = tmap
        self.lblk = lblk
        self.irot = irot
        self.bfirst = bfirst
        self.table = table
        if table:
            assert US % (1 << lblk) == 0 and UB % (1 << lblk) == 0 and not flate
        self.S = S
        assert US % (1 << lblk) == 0
        self.calign = calign
        self.out_pol = out_pol
        self.latetail = latetail
        self.lam2 = lam2
        self.wo_win = wo_win
        self.fsleep = fsleep
        self.warmY = warmY
        self.ffnmap = ffnmap
        self.pm_d = pm_d
        self.nset_d = nset_d
        self.stag_b = stag if stag_b is None else stag_b
        self.stag_d = stag if stag_d is None else stag_d
        self.thresh_b = thresh if thresh_b is None else thresh_b
        self.thresh_d = thresh if thresh_d is None else thresh_d
        self.UB = UB
        self.K2 = K2
        self.Gd2 = Gd2
        self.taufac2 = taufac2
        self.cap2 = cap2
        self.hfirst = hfirst
        self.pertau = pertau
        self.C0 = C0
        self.lam = lam
        self.wo_by = wo_by
        self.w2late = w2late
        self.warm_late = warm_late
        self.a_at = a_at
        self.tsleep = tsleep
        self.thresh = thresh
        self.share = share
        self.C = C
        self.Gd = Gd
        self.xfast = xfast
        self.taufac = taufac
        self.warm_tiles = warm_tiles
        self.nstart = nstart
        self.prog_pts = prog_pts
        self.dpoll = dpoll
        self.stag = stag
        self.tickets = tickets
        self.LAt = LAt
        self.tk_pos = tk_pos
        self.fastpoll = fastpoll
        self.earlyflags = earlyflags
        self.cstride = cstride
        self.endmargin = endmargin
        self.sleepmul = 8 if 'slowpoll' in self.exp else 1

    def A(self, s):
        self.o.append('  ' + s)

    def L(self, s):
        self.o.append(s + ':')

    def lab(self, base):
        self.uid += 1
        return f'{base}_{self.uid}'

    def stamp(self, idx, vtmp=126):
        if not self.stamps:
            return
        k = len(self.pending)
        assert k < 12
        self.pending.append(idx)
        self.A(f's_memrealtime s[{66 + 2*k}:{67 + 2*k}]')

    def stamp_at(self, idx, k):
        while len(self.pending) <= k:
            self.pending.append(None)
        self.pending[k] = idx
        self.A(f's_memrealtime s[{66 + 2*k}:{67 + 2*k}]')

    def flush_stamps(self, vtmp=126, extra=()):
        if not self.stamps:
            return
        A = self.A
        A('s_lshl_b32 s92, s2, 7')
        A(f's_add_u32 s92, s92, {WS_DBG}')
        A('s_add_u32 s94, s24, s92')
        A('s_addc_u32 s95, s25, 0')
        A('s_waitcnt lgkmcnt(0)')
        A(f'v_mov_b32 v{vtmp+1}, 0')
        A('s_mov_b64 exec, 1')
        for k, idx in enumerate(self.pending):
            if idx is None:
                continue
            A(f'v_mov_b32 v{vtmp}, s{66 + 2*k}')
            A(f'global_store_dword v{vtmp+1}, v{vtmp}, s[94:95] offset:{idx * 4}')
        for idx, sreg in extra:
            A(f'v_mov_b32 v{vtmp}, s{sreg}')
            A(f'global_store_dword v{vtmp+1}, v{vtmp}, s[94:95] offset:{idx * 4}')
        A('s_mov_b64 exec, -1')

    def xrow(self, op, v, t):
        A = self.A
        A(f'v_mov_b32 v{t}, v{v}')
        A('s_nop 1')
        A(f'v_permlane16_swap_b32 v{v}, v{t}')
        A('s_nop 1')
        A(f'{op} v{v}, v{v}, v{t}')
        A(f'v_mov_b32 v{t}, v{v}')
        A('s_nop 1')
        A(f'v_permlane32_swap_b32 v{v}, v{t}')
        A('s_nop 1')
        A(f'{op} v{v}, v{v}, v{t}')

    def rowred(self, op, v, rors=(8, 4, 2, 1)):
        A = self.A
        for r in rors:
            A('s_nop 1')
            A(f'{op}_dpp v{v}, v{v}, v{v} row_ror:{r} row_mask:0xf bank_mask:0xf')

    def mrowred(self, op, regs, rors):
        A = self.A
        pad = max(0, 3 - len(regs))
        for r in rors:
            for _ in range(pad):
                A('s_nop 0')
            for v in regs:
                A(f'{op}_dpp v{v}, v{v}, v{v} row_ror:{r} row_mask:0xf bank_mask:0xf')
        return

    def mxrow(self, op, regs, tmps):
        A = self.A
        pad = max(0, 3 - len(regs))
        for swap in ('v_permlane16_swap_b32', 'v_permlane32_swap_b32'):
            for v, t in zip(regs, tmps):
                A(f'v_mov_b32 v{t}, v{v}')
            for _ in range(pad + 1):
                A('s_nop 0')
            for v, t in zip(regs, tmps):
                A(f'{swap} v{v}, v{t}')
            for _ in range(pad):
                A('s_nop 0')
            for v, t in zip(regs, tmps):
                A(f'{op} v{v}, v{v}, v{t}')

    def wavesum(self, v, t):
        self.rowred('v_add_f32', v)
        self.xrow('v_add_f32', v, t)

    def bf16r(self, dst, src, t):
        self.A(f'v_cvt_pk_bf16_f32 v{t}, v{src}, v{src}')
        self.A(f'v_lshlrev_b32 v{dst}, 16, v{t}')

    def spin_begin(self, sreg):
        self.A(f's_mov_b32 s{sreg}, {SPIN}')

    def spin_retry(self, sreg, loop, sleep=2):
        A = self.A
        A(f's_sleep {min(127, sleep * self.sleepmul)}')
        A(f's_sub_u32 s{sreg}, s{sreg}, 1')
        A(f's_cmp_lg_u32 s{sreg}, 0')
        A(f's_cbranch_scc1 {loop}')

    def wg_of(self, dst, s_h, s_or_imm_j):
        pass

    def entry(self):
        A = self.A
        if self.stamps:
            A('s_memrealtime s[90:91]')
        A('s_cmp_ge_u32 s2, 256')
        A('s_cbranch_scc1 L_end')
        A('s_load_dwordx16 s[4:19], s[0:1], 0')
        A('s_load_dwordx4 s[20:23], s[0:1], 64')
        A('s_load_dwordx2 s[24:25], s[0:1], 80')
        A('v_lshrrev_b32 v1, 6, v0')
        if self.headmap == 'lin':
            A('s_lshr_b32 s27, s2, 4')
            A('s_and_b32 s28, s2, 15')
        elif self.headmap == 'X4':
            A('s_and_b32 s40, s2, 7')
            A('s_lshr_b32 s41, s2, 3')
            A('s_lshl_b32 s41, s41, 1')
            A('s_and_b32 s28, s2, 1')
            A('s_add_u32 s41, s41, s28')
            A('s_lshr_b32 s40, s40, 1')
            A('s_lshl_b32 s27, s40, 2')
            A('s_lshr_b32 s28, s41, 4')
            A('s_add_u32 s27, s27, s28')
            A('s_and_b32 s28, s41, 15')
        elif self.headmap.startswith('G'):
            G = int(self.headmap[1:]); per = 16 // G
            A('s_and_b32 s40, s2, 7')
            A('s_lshr_b32 s41, s2, 3')
            A(f's_lshr_b32 s27, s41, {per.bit_length() - 1}')
            A(f's_and_b32 s28, s41, {per - 1}')
            A(f's_mul_i32 s28, s28, {G}')
            A(f's_and_b32 s41, s40, {G - 1}')
            A('s_add_u32 s28, s28, s41')
            A(f's_lshr_b32 s40, s40, {G.bit_length() - 1}')
            A(f's_mul_i32 s40, s40, {2 * G}')
            A('s_add_u32 s27, s27, s40')
        else:
            A('s_and_b32 s27, s2, 7')
            A('s_lshl_b32 s27, s27, 1')
            A('s_lshr_b32 s28, s2, 3')
            A('s_and_b32 s28, s28, 1')
            A('s_add_u32 s27, s27, s28')
            A('s_lshr_b32 s28, s2, 4')
        if self.ffnmap == 'spread':
            A('s_and_b32 s40, s27, 1')
            A('s_lshl_b32 s96, s27, 2')
            A('s_and_b32 s41, s28, 3')
            A('s_add_u32 s96, s96, s41')
            A('s_xor_b32 s41, s40, 1')
            A('s_lshl_b32 s41, s41, 2')
            A('s_bfe_u32 s42, s27, 0x20001')
            A('s_add_u32 s41, s41, s42')
            A('s_add_u32 s97, s27, 64')
            A('s_cmp_lt_u32 s27, 8')
            A('s_cselect_b32 s97, s97, 255')
            A('s_cmp_eq_u32 s28, s41')
            A('s_cselect_b32 s97, s97, 255')
            A('s_lshr_b32 s41, s28, 2')
            A('s_cmp_eq_u32 s41, s40')
            A('s_cselect_b32 s96, s96, s97')
        else:
            A('s_lshl_b32 s96, s27, 2')
            A('s_add_u32 s96, s96, s28')
            A('s_add_u32 s97, s27, 64')
            A('s_cmp_lt_u32 s27, 8')
            A('s_cselect_b32 s97, s97, 255')
            A('s_cmp_eq_u32 s28, 4')
            A('s_cselect_b32 s97, s97, 255')
            A('s_cmp_lt_u32 s28, 4')
            A('s_cselect_b32 s96, s96, s97')
        if self.redmap == 'spread':
            A('s_mul_i32 s97, s27, 3')
            A('s_sub_u32 s40, s28, s97')
            A('s_and_b32 s40, s40, 7')
            A('s_add_u32 s97, s97, s40')
            A('s_cmp_lt_u32 s40, 3')
            A('s_cselect_b32 s97, s97, 255')
            A('s_cmp_ge_u32 s28, 8')
            A('s_cselect_b32 s97, s97, 255')
        else:
            A('s_mul_i32 s97, s27, 3')
            A('s_add_u32 s97, s97, s28')
            A('s_sub_u32 s97, s97, 13')
            A('s_cmp_ge_u32 s28, 13')
            A('s_cselect_b32 s97, s97, 255')
        A('v_readfirstlane_b32 s26, v1')
        A('v_and_b32 v1, 63, v0')
        if self.fastpro:
            A('s_cmp_ge_u32 s26, 8')
            A('s_cbranch_scc1 L_helper')
            A('s_cmp_ge_u32 s26, 4')
            A('s_cbranch_scc1 L_loader')
        A('s_cmp_lg_u32 s26, 0')
        A('s_cbranch_scc1 L_noinit')
        A(f'v_lshlrev_b32 v2, 2, v1')
        A(f'v_add_u32 v2, {FL}, v2')
        A('v_mov_b32 v3, 0')
        A('ds_write_b32 v2, v3')
        self.L('L_noinit')
        A('s_waitcnt lgkmcnt(0)')
        if self.fastpro:
            A('s_barrier')
            return
        if self.hfirst:
            A('s_cmp_ge_u32 s26, 8')
            A('s_cbranch_scc1 L_helper')
        A('s_barrier')
        if not self.hfirst:
            A('s_cmp_ge_u32 s26, 8')
            A('s_cbranch_scc1 L_helper')
        A('s_cmp_ge_u32 s26, 4')
        A('s_cbranch_scc1 L_loader')

    def loader(self):
        A, W = self.A, self.W
        self.L('L_loader')
        self.pending = []
        if 'noload' in self.exp:
            A('s_endpgm')
        A('s_sub_u32 s29, s26, 4')
        A('s_lshl_b32 s40, s27, 24')
        A('s_add_u32 s30, s6, s40')
        A('s_addc_u32 s31, s7, 0')
        A('s_add_u32 s32, s8, s40')
        A('s_addc_u32 s33, s9, 0')
        A('s_lshl_b32 s41, s28, 2')
        A('s_add_u32 s41, s41, s29')
        A(f's_mul_i32 s40, s27, {self.rot * 64}')
        A('s_add_u32 s41, s41, s40')
        A('s_and_b32 s41, s41, 4095')
        A(f's_mul_i32 s38, s29, {RING}')
        A('v_lshrrev_b32 v2, 4, v1')
        A('v_and_b32 v3, 15, v1')
        A('v_lshlrev_b32 v4, 1, v2')
        A('v_xor_b32 v3, v3, v4')
        A('v_lshlrev_b32 v3, 4, v3')
        A('v_lshl_add_u32 v6, v2, 8, v3')
        A('v_xor_b32 v7, 128, v6')
        A('s_lshl_b32 s40, s29, 2')
        A(f's_add_u32 s40, s40, {FL}')
        A('v_mov_b32 v8, s40')
        A('s_mov_b32 s35, 0')
        A('s_mov_b32 s39, 0')
        A('v_mov_b32 v10, 0')
        A('s_mov_b32 s60, 0')
        A('s_mov_b32 s61, 0')
        if 'noprio' not in self.exp:
            A('s_setprio 2')
        pub_pos = (W - 1) % 8
        pub_off = (pub_pos - W + 1) // 8

        def publish(val_sreg_or_expr):
            A(f'v_mov_b32 v9, {val_sreg_or_expr}')
            A('s_mov_b64 exec, 1')
            A('ds_write_b32 v8, v9')
            A('s_mov_b64 exec, -1')

        US = self.US
        A(f's_mul_i32 s44, s27, {self.rot * 64}')
        A('s_add_u32 s44, s44, s29')
        A(f's_add_u32 s44, s44, {US * 64}')
        A('v_mov_b32 v11, 0')
        A('v_mov_b32 v13, 0')
        self.L('L_ld_loop')
        for u in range(4):
            ok = self.lab('L_ld_ok')
            sp = self.lab('L_ld_spin')
            st = self.lab('L_ld_static')
            idok = self.lab('L_ld_idok')
            idsp = self.lab('L_ld_idspin')
            if self.stamps and u == 0:
                for q, nn in enumerate((4, 8, 16, 32, 48)):
                    l = self.lab('L_ld_st')
                    A(f's_cmp_lg_u32 s35, {nn}')
                    A(f's_cbranch_scc1 {l}')
                    self.stamp(16 + q)
                    self.L(l)
            A('s_waitcnt lgkmcnt(0)')
            A('v_readfirstlane_b32 s39, v10')
            A('v_readfirstlane_b32 s45, v11')
            if self.Wend:
                A('v_readfirstlane_b32 s47, v13')
            A(f's_cmp_lt_u32 s35, {US}')
            A(f's_cbranch_scc1 {st}')
            A('s_cmp_lg_u32 s45, 0')
            A(f's_cbranch_scc1 {idok}')
            if self.stamps:
                A('s_add_u32 s61, s61, 1')
            A('s_waitcnt vmcnt(0)')
            publish('s35')
            self.spin_begin(42)
            self.L(idsp)
            A('ds_read_b32 v11, v12')
            A('s_waitcnt lgkmcnt(0)')
            A('v_readfirstlane_b32 s45, v11')
            A('s_cmp_lg_u32 s45, 0')
            A(f's_cbranch_scc1 {idok}')
            self.spin_retry(42, idsp, sleep=1)
            A('s_branch L_ld_end')
            self.L(idok)
            A('s_cmp_eq_u32 s45, -1')
            A('s_cbranch_scc1 L_ld_end')
            A('s_sub_u32 s45, s45, 1')
            A('s_lshl_b32 s45, s45, 2')
            A('s_add_u32 s41, s45, s44')
            A('s_and_b32 s41, s41, 4095')
            self.L(st)
            A('s_add_u32 s40, s39, 3')
            A('s_cmp_ge_u32 s40, s35')
            A(f's_cbranch_scc1 {ok}')
            A('s_waitcnt vmcnt(0)')
            publish('s35')
            if self.stamps:
                A('s_add_u32 s60, s60, 1')
            self.spin_begin(42)
            self.L(sp)
            A('ds_read_b32 v10, v8 offset:16')
            A('s_waitcnt lgkmcnt(0)')
            A('v_readfirstlane_b32 s39, v10')
            A('s_add_u32 s40, s39, 3')
            A('s_cmp_ge_u32 s40, s35')
            A(f's_cbranch_scc1 {ok}')
            self.spin_retry(42, sp, sleep=1)
            self.L(ok)
            A('s_lshl_b32 s40, s41, 12')
            A('s_add_u32 s46, s35, 1')
            A(f's_sub_i32 s46, s46, {US}')
            A('s_max_i32 s46, s46, 0')
            A('s_lshl_b32 s46, s46, 2')
            A(f's_add_u32 s46, s46, {IDS}')
            A('v_mov_b32 v12, s46')
            def issue(Wx):
                pp = (Wx - 1) % 8
                po = (pp - Wx + 1) // 8
                for kv in range(2):
                    A(f's_add_u32 s36, s{30 + 2 * kv}, s40')
                    A(f's_addc_u32 s37, s{31 + 2 * kv}, 0')
                    A(f's_add_u32 m0, s38, {(2 * u + kv) * 4096}')
                    for jj in range(4):
                        A(f's_waitcnt vmcnt({Wx - 1})')
                        if kv * 4 + jj == pp:
                            skip = self.lab('L_ld_np')
                            if po < 0:
                                A(f's_cmp_lt_u32 s35, {-po}')
                                A(f's_cbranch_scc1 {skip}')
                                A(f's_sub_u32 s43, s35, {-po}')
                                publish('s43')
                                self.L(skip)
                            else:
                                publish('s35')
                        pol = ' nt'
                        if (kv == 1 and 'vplain' in self.exp) or (kv == 0 and 'kplain' in self.exp):
                            pol = ''
                        A(f'global_load_lds_dwordx4 v{6 + (jj & 1)}, s[36:37] offset:{jj * 1024}{pol}')
                        if self.earlyflags and kv == 1 and jj == 1:
                            A('ds_read_b32 v10, v8 offset:16')
                            A('ds_read_b32 v11, v12')
                            if self.Wend:
                                A('ds_read_b32 v13, v8 offset:48')
            if self.Wend:
                fast = self.lab('L_ld_fast')
                join = self.lab('L_ld_join')
                A('s_cmp_lg_u32 s47, 0')
                A(f's_cbranch_scc1 {fast}')
                issue(W)
                A(f's_branch {join}')
                self.L(fast)
                issue(self.Wend)
                self.L(join)
                if not self.earlyflags:
                    A('ds_read_b32 v13, v8 offset:48')
            else:
                issue(W)
            if not self.earlyflags:
                A('ds_read_b32 v10, v8 offset:16')
                A('ds_read_b32 v11, v12')
            A('s_add_u32 s41, s41, 64')
            A('s_and_b32 s41, s41, 4095')
            A('s_add_u32 s35, s35, 1')
        A('s_branch L_ld_loop')
        self.L('L_ld_end')
        A('s_waitcnt vmcnt(0)')
        A('s_or_b32 s43, s35, 0x80000000')
        publish('s43')
        A('s_waitcnt lgkmcnt(0)')
        if self.stamps:
            A('s_cmp_lg_u32 s26, 4')
            A('s_cbranch_scc1 L_ld_ns')
            self.stamp(8)
            self.flush_stamps(extra=[(9, 60), (21, 35), (22, 61)])
            self.L('L_ld_ns')
        A('s_endpgm')


    def loader_tk(self):
        A, W, US = self.A, self.W, self.US
        self.L('L_loader')
        self.pending = []
        if 'noload' in self.exp:
            A('s_endpgm')
        if 'coldprobe' in self.exp:
            A('s_branch L_cp0')
            self.L('L_cpback')
        A('s_sub_u32 s29, s26, 4')
        xt = 'xt4' in self.exp
        if xt:
            A('s_mov_b32 s30, s6')
            A('s_mov_b32 s31, s7')
            A('s_mov_b32 s32, s8')
            A('s_mov_b32 s33, s9')
            A('s_lshr_b32 s54, s27, 2')
            A(f's_mul_i32 s44, s54, {self.xrot}')
            A('s_and_b32 s40, s27, 3')
            A('s_lshl_b32 s41, s40, 4')
            A('s_add_u32 s41, s41, s28')
            A('s_lshl_b32 s41, s41, 2')
            A('s_add_u32 s49, s41, s44')
            A(f's_mul_i32 s40, s40, {(64 - US) * 64}')
            A('s_add_u32 s44, s44, s40')
            A(f's_add_u32 s44, s44, {(US - 48) * 256}')
            A('s_lshl_b32 s54, s54, 2')
            A('s_add_u32 s55, s54, 3')
            A('s_lshl_b32 s55, s55, 12')
        else:
            if not self.fastpro:
                A('s_lshl_b32 s40, s27, 24')
                A('s_add_u32 s30, s6, s40')
                A('s_addc_u32 s31, s7, 0')
                A('s_add_u32 s32, s8, s40')
                A('s_addc_u32 s33, s9, 0')
            A(f's_mul_i32 s44, s27, {self.rot * 64}')
            A('s_lshl_b32 s41, s28, 2')
            A('s_add_u32 s49, s41, s44')
            A(f's_add_u32 s44, s44, {US * 64}')
        A(f's_mul_i32 s38, s29, {RING}')
        A('v_lshrrev_b32 v2, 4, v1')
        A('v_and_b32 v3, 15, v1')
        A('v_lshlrev_b32 v4, 1, v2')
        A('v_xor_b32 v3, v3, v4')
        A('v_lshlrev_b32 v3, 4, v3')
        A('v_lshl_add_u32 v6, v2, 8, v3')
        A('v_xor_b32 v7, 128, v6')
        A('s_lshl_b32 s40, s29, 2')
        A(f's_add_u32 s40, s40, {FL}')
        A('v_mov_b32 v8, s40')
        A(f'v_mov_b32 v14, {FL}')
        A('v_mov_b32 v16, 1')
        if self.fastpro:
            A('s_add_u32 s41, s49, s29')
            A('s_and_b32 s41, s41, 4095')
            A('s_lshl_b32 s41, s41, 12')
            A('s_lshl_b32 s40, s27, 24')
            A('s_add_u32 s41, s41, s40')
            A('s_mov_b32 m0, s38')
            A('s_waitcnt lgkmcnt(0)')
        A('s_mov_b32 s35, 0')
        A('s_mov_b32 s46, s29')
        A('v_mov_b32 v10, 0')
        A('v_mov_b32 v11, 0')
        A('v_mov_b32 v13, 0')
        A(f'v_mov_b32 v12, {IDS}')
        A('v_mov_b32 v18, 0')
        A('v_mov_b32 v19, 0')
        if self.share2:
            for r in range(20, 24):
                A(f'v_mov_b32 v{r}, 0')
        A('s_mov_b32 s60, 0')
        A('s_mov_b32 s61, 0')
        A('s_setprio 2')

        def publish(val):
            A(f'v_mov_b32 v9, {val}')
            A('s_mov_b64 exec, 1')
            A('ds_write_b32 v8, v9')
            A('s_mov_b64 exec, -1')

        if self.fastpro:
            assert not xt and self.tk_pos >= 4 and (W - 1) % 8 >= 4
            A('s_add_u32 s36, s6, s41')
            A('s_addc_u32 s37, s7, 0')
            for jj in range(4):
                A(f'global_load_lds_dwordx4 v{6 + (jj & 1)}, s[36:37] offset:{jj * 1024} nt')
            A('s_add_u32 s30, s6, s40')
            A('s_addc_u32 s31, s7, 0')
            A('s_add_u32 s32, s8, s40')
            A('s_addc_u32 s33, s9, 0')
            A('s_sub_u32 s40, s41, s40')
            A('s_barrier')
            if self.stamps:
                self.stamp_at(28, 6)
            A('s_branch L_ld_first_v')
        elif self.stamps:
            self.stamp_at(28, 6)
        self.L('L_ld_loop')
        for u in range(4):
            ok = self.lab('L_ld_ok')
            sp = self.lab('L_ld_spin')
            st = self.lab('L_ld_static')
            adr = self.lab('L_ld_adr')
            idok = self.lab('L_ld_idok')
            idsp = self.lab('L_ld_idspin')
            if self.stamps:
                for q, nn in enumerate(self.prog_pts):
                    if nn % 4 != u:
                        continue
                    l = self.lab('L_ld_st')
                    A(f's_cmp_lg_u32 s35, {nn}')
                    A(f's_cbranch_scc1 {l}')
                    self.stamp_at(16 + q, q)
                    self.L(l)
            A('s_waitcnt lgkmcnt(0)')
            A('v_readfirstlane_b32 s39, v10')
            A('v_readfirstlane_b32 s45, v11')
            A('v_readfirstlane_b32 s47, v13')
            A('s_lshr_b32 s41, s46, 2')
            A('s_and_b32 s43, s46, 3')
            A(f's_cmp_lt_u32 s41, {US}')
            A(f's_cbranch_scc1 {st}')
            if self.share and self.share2:
                rdy = self.lab('L_ld_rdy')
                shsp = self.lab('L_ld_shspin')
                zb = self.lab('L_ld_zb')
                zrdy = self.lab('L_ld_zrdy')
                zsp = self.lab('L_ld_zspin')
                zf = self.lab('L_ld_zf')
                A('v_readfirstlane_b32 s45, v20')
                A('s_cmp_lg_u32 s45, 0')
                A(f's_cbranch_scc1 {rdy}')
                if self.stamps:
                    A('s_add_u32 s61, s61, 1')
                A('s_waitcnt vmcnt(0)')
                publish('s35')
                self.spin_begin(42)
                self.L(shsp)
                A(f'ds_read_b128 v[20:23], v12')
                A('s_waitcnt lgkmcnt(0)')
                A('v_readfirstlane_b32 s45, v20')
                A('s_cmp_lg_u32 s45, 0')
                A(f's_cbranch_scc1 {rdy}')
                self.spin_retry(42, shsp, sleep=1)
                A('s_branch L_ld_end')
                self.L(rdy)
                A('v_readfirstlane_b32 s52, v22')
                A(f's_sub_u32 s51, s46, {4 * US - 1}')
                A('s_cmp_ge_u32 s51, s45')
                A(f's_cbranch_scc1 {zb}')
                A('v_readfirstlane_b32 s50, v21')
                A('s_add_u32 s41, s50, s51')
                A('s_add_u32 s41, s41, s44')
                A(f's_branch {zf}')
                self.L(zb)
                A('s_cmp_lg_u32 s52, 0')
                A(f's_cbranch_scc1 {zrdy}')
                A(f'ds_read_b128 v[20:23], v12')
                A('s_waitcnt lgkmcnt(0)')
                A('v_readfirstlane_b32 s52, v22')
                A('s_cmp_lg_u32 s52, 0')
                A(f's_cbranch_scc1 {zrdy}')
                if self.stamps:
                    A('s_add_u32 s61, s61, 0x100')
                A('s_waitcnt vmcnt(0)')
                publish('s35')
                self.spin_begin(42)
                self.L(zsp)
                A(f'ds_read_b128 v[20:23], v12')
                A('s_waitcnt lgkmcnt(0)')
                A('v_readfirstlane_b32 s52, v22')
                A('s_cmp_lg_u32 s52, 0')
                A(f's_cbranch_scc1 {zrdy}')
                self.spin_retry(42, zsp, sleep=1)
                A('s_branch L_ld_end')
                self.L(zrdy)
                A('v_readfirstlane_b32 s50, v23')
                A('s_sub_u32 s41, s51, s45')
                A('s_add_u32 s41, s41, 1')
                A('s_cmp_ge_u32 s41, s52')
                A('s_cbranch_scc1 L_ld_end')
                A('s_add_u32 s41, s41, s50')
                A('s_add_u32 s41, s41, s44')
                A(f's_add_u32 s41, s41, {(self.UB - US) * 64}')
                self.L(zf)
                A('s_add_u32 s47, s45, s52')
                A(f's_add_u32 s51, s51, {self.xfast + 1}')
                A('s_cmp_ge_u32 s51, s47')
                A('s_cselect_b32 s47, 1, 0')
                A('s_cmp_eq_u32 s52, 0')
                A('s_cselect_b32 s47, 0, s47')
                A('s_sub_u32 s41, s41, 1')
                A('s_and_b32 s41, s41, 4095')
                if xt:
                    A('s_or_b32 s41, s41, s55')
                A(f's_branch {adr}_b')
            elif self.share:
                rdy = self.lab('L_ld_rdy')
                shsp = self.lab('L_ld_shspin')
                A('v_readfirstlane_b32 s45, v18')
                A('s_cmp_lg_u32 s45, 0')
                A(f's_cbranch_scc1 {rdy}')
                if self.stamps:
                    A('s_add_u32 s61, s61, 1')
                A('s_waitcnt vmcnt(0)')
                publish('s35')
                self.spin_begin(42)
                self.L(shsp)
                A(f'ds_read_b64 v[18:19], v12')
                A('s_waitcnt lgkmcnt(0)')
                A('v_readfirstlane_b32 s45, v18')
                A('s_cmp_lg_u32 s45, 0')
                A(f's_cbranch_scc1 {rdy}')
                self.spin_retry(42, shsp, sleep=1)
                A('s_branch L_ld_end')
                self.L(rdy)
                A('v_readfirstlane_b32 s50, v19')
                A(f's_sub_u32 s51, s46, {4 * US - 1}')
                A('s_cmp_ge_u32 s51, s45')
                A('s_cbranch_scc1 L_ld_end')
                A(f's_add_u32 s47, s51, {self.xfast}')
                A('s_cmp_ge_u32 s47, s45')
                A('s_cselect_b32 s47, 1, 0')
                A('s_add_u32 s41, s50, s51')
                A('s_add_u32 s41, s41, s44')
                A('s_sub_u32 s41, s41, 1')
                A('s_and_b32 s41, s41, 4095')
                if xt:
                    A('s_or_b32 s41, s41, s55')
                A(f's_branch {adr}_b')
            A('s_cmp_lg_u32 s45, 0')
            A(f's_cbranch_scc1 {idok}')
            if self.stamps:
                A('s_add_u32 s61, s61, 1')
            A('s_waitcnt vmcnt(0)')
            publish('s35')
            self.spin_begin(42)
            self.L(idsp)
            A('ds_read_b32 v11, v12')
            A('s_waitcnt lgkmcnt(0)')
            A('v_readfirstlane_b32 s45, v11')
            A('s_cmp_lg_u32 s45, 0')
            A(f's_cbranch_scc1 {idok}')
            self.spin_retry(42, idsp, sleep=1)
            A('s_branch L_ld_end')
            self.L(idok)
            A('s_cmp_eq_u32 s45, -1')
            A('s_cbranch_scc1 L_ld_end')
            A('s_sub_u32 s45, s45, 1')
            A('s_lshl_b32 s41, s45, 2')
            A('s_add_u32 s41, s41, s44')
            A(f's_branch {adr}')
            self.L(st)
            if xt:
                A('s_lshr_b32 s48, s41, 4')
                A('s_add_u32 s48, s48, s54')
                A('s_lshl_b32 s48, s48, 12')
                A('s_and_b32 s41, s41, 15')
                A('s_lshl_b32 s41, s41, 8')
            else:
                A('s_lshl_b32 s41, s41, 6')
            A('s_add_u32 s41, s41, s49')
            self.L(adr)
            A('s_add_u32 s41, s41, s43')
            A('s_and_b32 s41, s41, 4095')
            if xt:
                A('s_or_b32 s41, s41, s48')
            self.L(f'{adr}_b')
            A('s_add_u32 s40, s39, 3')
            A('s_cmp_ge_u32 s40, s35')
            A(f's_cbranch_scc1 {ok}')
            A('s_waitcnt vmcnt(0)')
            publish('s35')
            if self.stamps:
                A('s_add_u32 s60, s60, 1')
            self.spin_begin(42)
            self.L(sp)
            A('ds_read_b32 v10, v8 offset:16')
            A('s_waitcnt lgkmcnt(0)')
            A('v_readfirstlane_b32 s39, v10')
            A('s_add_u32 s40, s39, 3')
            A('s_cmp_ge_u32 s40, s35')
            A(f's_cbranch_scc1 {ok}')
            self.spin_retry(42, sp, sleep=1)
            self.L(ok)
            A('s_lshl_b32 s40, s41, 12')

            def issue(Wx):
                pp = (Wx - 1) % 8
                po = (pp - Wx + 1) // 8
                for kv in range(2):
                    if self.fastpro and u == 0 and kv == 1 and Wx == W:
                        self.L('L_ld_first_v')
                    A(f's_add_u32 s36, s{30 + 2 * kv}, s40')
                    A(f's_addc_u32 s37, s{31 + 2 * kv}, 0')
                    A(f's_add_u32 m0, s38, {(2 * u + kv) * 4096}')
                    for jj in range(4):
                        A(f's_waitcnt vmcnt({Wx - 1})')
                        if kv * 4 + jj == pp:
                            skip = self.lab('L_ld_np')
                            if po < 0:
                                A(f's_cmp_lt_u32 s35, {-po}')
                                A(f's_cbranch_scc1 {skip}')
                                A(f's_sub_u32 s43, s35, {-po}')
                                publish('s43')
                                self.L(skip)
                            else:
                                publish('s35')
                        A(f'global_load_lds_dwordx4 v{6 + (jj & 1)}, s[36:37] offset:{jj * 1024} nt')
                        if kv * 4 + jj == self.tk_pos:
                            A('s_mov_b64 exec, 1')
                            A('ds_add_rtn_u32 v15, v14, v16 offset:52')
                            A('s_mov_b64 exec, -1')
                        if kv * 4 + jj == self.tk_pos + 2:
                            A('s_waitcnt lgkmcnt(0)')
                            A('v_readfirstlane_b32 s46, v15')
                            A('s_add_u32 s46, s46, 4')
                            if self.share and self.pertau:
                                for q, row in enumerate((self.C0, self.C)):
                                    l = self.lab('L_ld_ts')
                                    A(f's_cmp_lg_u32 s46, {4 * row}')
                                    A(f's_cbranch_scc1 {l}')
                                    A('s_memrealtime s[52:53]')
                                    A('s_waitcnt lgkmcnt(0)')
                                    A('v_mov_b32 v20, s52')
                                    A('s_mov_b64 exec, 1')
                                    A(f'ds_write_b32 v14, v20 offset:{232 + 4 * q}')
                                    A('s_mov_b64 exec, -1')
                                    self.L(l)
                            A('s_lshr_b32 s48, s46, 2')
                            A(f's_sub_i32 s48, s48, {US}')
                            A('s_max_i32 s48, s48, 0')
                            A(f's_min_i32 s48, s48, {CAP + 1}')
                            A('s_lshl_b32 s48, s48, 2')
                            A(f's_add_u32 s48, s48, {IDS}')
                            A('ds_read_b32 v10, v8 offset:16')
                            if self.share and self.share2:
                                A('ds_read_b128 v[20:23], v12')
                            elif self.share:
                                A('ds_read_b64 v[18:19], v12')
                                if self.ffnboost:
                                    A('ds_read_b32 v13, v14 offset:48')
                            else:
                                A('v_mov_b32 v12, s48')
                                A('ds_read_b32 v11, v12')
                                A('ds_read_b32 v13, v14 offset:48')
            fast = self.lab('L_ld_fast')
            join = self.lab('L_ld_join')
            A('s_cmp_lg_u32 s47, 0')
            A(f's_cbranch_scc1 {fast}')
            if self.nstart > u:
                A(f's_cmp_lt_u32 s35, {self.nstart}')
                A(f's_cbranch_scc1 {fast}')
            issue(W)
            A(f's_branch {join}')
            self.L(fast)
            issue(self.Wend)
            self.L(join)
            A('s_add_u32 s35, s35, 1')
        A('s_branch L_ld_loop')
        self.L('L_ld_end')
        if not self.w2late and self.wo_by == 'loader' and 'nowo' not in self.exp:
            A('s_lshl_b32 s40, s27, 4')
            A('s_add_u32 s40, s40, s28')
            A('s_mul_i32 s40, s40, 18432')
            A('s_mul_i32 s41, s29, 5120')
            A('s_add_u32 s40, s40, s41')
            A('s_add_u32 s36, s12, s40')
            A('s_addc_u32 s37, s13, 0')
            A(f's_add_u32 s41, s41, {STG}')
            A('s_mov_b32 m0, s41')
            A('v_lshlrev_b32 v17, 4, v1')
            for i in range(3):
                A(f'global_load_lds_dwordx4 v17, s[36:37] offset:{1024 * i} nt')
            A('s_cmp_eq_u32 s29, 3')
            A('s_cbranch_scc1 L_ld_wo3')
            A('global_load_lds_dwordx4 v17, s[36:37] offset:3072 nt')
            A('s_add_u32 s36, s36, 4096')
            A('s_addc_u32 s37, s37, 0')
            A('s_add_u32 m0, s41, 4096')
            A('s_nop 0')
            A('global_load_lds_dwordx4 v17, s[36:37] nt')
            A('s_waitcnt vmcnt(5)')
            A('s_branch L_ld_wodn')
            self.L('L_ld_wo3')
            A('s_waitcnt vmcnt(3)')
            self.L('L_ld_wodn')
        else:
            if self.stage_end:
                A('s_waitcnt vmcnt(8)')
                A('s_sub_i32 s43, s35, 1')
                A('s_max_i32 s43, s43, 0')
                publish('s43')
            A('s_waitcnt vmcnt(0)')
        A('s_or_b32 s43, s35, 0x80000000')
        publish('s43')
        if not self.w2late and self.wo_by == 'loader':
            A('s_waitcnt lgkmcnt(0)')
            A('s_barrier')
            A('s_waitcnt vmcnt(0)')
            A('v_mov_b32 v9, 1')
            A('s_mov_b64 exec, 1')
            A('ds_write_b32 v8, v9 offset:240')
            A('s_mov_b64 exec, -1')
        A('s_waitcnt lgkmcnt(0)')
        if self.stamps:
            A('s_cmp_lg_u32 s26, 4')
            A('s_cbranch_scc1 L_ld_ns')
            while len(self.pending) < 5:
                self.pending.append(None)
            self.stamp(8)
            self.flush_stamps(extra=[(9, 60), (21, 35), (22, 61), (27, 90)])
            self.L('L_ld_ns')
        A('s_endpgm')

    def ids(self):
        A = self.A
        assert self.ffnmap == 'spread' and self.redmap == 'spread' and self.headmap == 'lin'
        A('s_and_b32 s40, s27, 1')
        A('s_lshl_b32 s96, s27, 2')
        A('s_and_b32 s41, s28, 3')
        A('s_add_u32 s96, s96, s41')
        A('s_xor_b32 s41, s40, 1')
        A('s_lshl_b32 s41, s41, 2')
        A('s_bfe_u32 s42, s27, 0x20001')
        A('s_add_u32 s41, s41, s42')
        A('s_add_u32 s97, s27, 64')
        A('s_cmp_lt_u32 s27, 8')
        A('s_cselect_b32 s97, s97, 255')
        A('s_cmp_eq_u32 s28, s41')
        A('s_cselect_b32 s97, s97, 255')
        A('s_lshr_b32 s41, s28, 2')
        A('s_cmp_eq_u32 s41, s40')
        A('s_cselect_b32 s96, s96, s97')
        A('s_mul_i32 s97, s27, 3')
        A('s_sub_u32 s40, s28, s97')
        A('s_and_b32 s40, s40, 7')
        A('s_add_u32 s97, s97, s40')
        A('s_cmp_lt_u32 s40, 3')
        A('s_cselect_b32 s97, s97, 255')
        A('s_cmp_ge_u32 s28, 8')
        A('s_cselect_b32 s97, s97, 255')

    def entry3(self):
        A = self.A
        if self.pads:
            A('s_branch L_pad_e')
            self.L('L_e1')
        if self.stamps:
            A('s_memrealtime s[90:91]')
        A('s_cmp_ge_u32 s2, 256')
        A('s_cbranch_scc1 L_end')
        A('s_load_dwordx16 s[4:19], s[0:1], 0')
        A('s_load_dwordx4 s[20:23], s[0:1], 64')
        A('s_load_dwordx2 s[24:25], s[0:1], 80')
        A('v_lshrrev_b32 v1, 6, v0')
        A('s_lshr_b32 s27, s2, 4')
        A('s_and_b32 s28, s2, 15')
        A('v_readfirstlane_b32 s26, v1')
        A('v_and_b32 v1, 63, v0')
        A('s_cmp_ge_u32 s26, 8')
        A('s_cbranch_scc1 L_helper')
        if self.S != 256:
            A('s_cmp_lt_u32 s26, 4')
            A('s_cbranch_scc1 L_cons0')
            return
        A('s_cmp_ge_u32 s26, 4')
        A('s_cbranch_scc1 L_ld0')
        self.cons_pre()
        self.L('L_ld0')

    def cons_pre(self):
        A = self.A
        A(f'v_lshlrev_b32 v2, 2, v1')
        A(f'v_add_u32 v2, {FL}, v2')
        A('v_mov_b32 v3, 0')
        A('ds_write_b32 v2, v3')
        if self.table:
            A('s_lshl_b32 s40, s26, 10')
            A(f's_add_u32 s40, s40, {TBL}')
            A('v_lshlrev_b32 v2, 4, v1')
            A('v_add_u32 v2, s40, v2')
            for r in range(4, 8):
                A(f'v_mov_b32 v{r}, 0')
            A('ds_write_b128 v2, v[4:7]')
        A('s_waitcnt lgkmcnt(0)')
        A('s_barrier')
        A('s_branch L_cons1')

    def loader3(self):
        A, W, US = self.A, self.W, self.US
        assert self.share and self.share2 and self.stage_end and self.wo_by == 'w23' and not self.w2late
        assert self.tk_pos >= 4 and (W - 1) % 8 >= 4
        self.pending = []
        A('s_sub_u32 s29, s26, 4')
        A(f's_mul_i32 s44, s27, {self.rot * 64}')
        if self.tmap == 'jw':
            A(f's_lshl_b32 s41, s28, {2 + self.lblk}')
            A('s_add_u32 s49, s41, s44')
            if self.irot:
                A(f's_mul_i32 s53, s28, {self.irot}')
                A('s_add_u32 s41, s53, s29')
                A(f's_and_b32 s41, s41, {(4 << self.lblk) - 1}')
                A('s_add_u32 s41, s49, s41')
            else:
                A('s_add_u32 s41, s49, s29')
        elif self.tmap == 'wj':
            A('s_add_u32 s49, s28, s44')
            A('s_lshl_b32 s41, s29, 4')
            A('s_add_u32 s41, s49, s41')
        elif self.tmap == 'x2':
            A('s_and_b32 s41, s28, 7')
            A(f's_lshl_b32 s41, s41, {3 + self.lblk}')
            A('s_lshr_b32 s49, s28, 3')
            A(f's_lshl_b32 s49, s49, {2 + self.lblk}')
            A('s_add_u32 s41, s41, s49')
            A('s_add_u32 s49, s41, s44')
            A('s_add_u32 s41, s49, s29')
        S = self.S
        ls = S.bit_length() - 1
        cpb = S // 256

        def tile_bytes(dst, tile, tmp):
            if S == 256:
                A(f's_lshl_b32 s{dst}, s{tile}, 12')
            else:
                A(f's_and_b32 s{tmp}, s{tile}, {cpb - 1}')
                A(f's_mul_i32 s{tmp}, s{tmp}, 3840')
                A(f's_lshl_b32 s{dst}, s{tile}, 12')
                A(f's_sub_u32 s{dst}, s{dst}, s{tmp}')
        voff = (lambda jj: 6 + (jj & 1)) if S == 256 else (lambda jj: 24 + jj)
        A('s_and_b32 s41, s41, 4095')
        tile_bytes(41, 41, 50)
        A('s_lshl_b32 s40, s27, 24')
        A('s_add_u32 s41, s41, s40')
        A('s_lshl_b32 s38, s29, 15')
        A('s_mov_b32 m0, s38')
        A('v_lshrrev_b32 v2, 4, v1')
        A('v_and_b32 v3, 15, v1')
        A('v_lshlrev_b32 v4, 1, v2')
        A('v_xor_b32 v3, v3, v4')
        A('v_lshlrev_b32 v3, 4, v3')
        if S == 256:
            A('v_lshl_add_u32 v6, v2, 8, v3')
            A('v_xor_b32 v7, 128, v6')
        else:
            A(f'v_lshl_add_u32 v24, v2, {ls}, v3')
            A('v_xor_b32 v25, 128, v24')
            A(f'v_add_u32 v26, {8 * S - 2048}, v24')
            A(f'v_add_u32 v25, {4 * S - 1024}, v25')
        A('s_waitcnt lgkmcnt(0)')
        if self.bfirst:
            A('s_barrier')
        A('s_add_u32 s36, s6, s41')
        A('s_addc_u32 s37, s7, 0')
        for jj in range(4):
            if S != 256 and jj == 3:
                A(f'v_add_u32 v27, {8 * S - 2048}, v25')
            A(f'global_load_lds_dwordx4 v{voff(jj)}, s[36:37] offset:{jj * 1024} nt')
        A('s_add_u32 s30, s6, s40')
        A('s_addc_u32 s31, s7, 0')
        A('s_add_u32 s32, s8, s40')
        A('s_addc_u32 s33, s9, 0')
        A('s_sub_u32 s40, s41, s40')
        A(f's_add_u32 s44, s44, {US * 64}')
        A('s_lshl_b32 s41, s29, 2')
        A(f's_add_u32 s41, s41, {FL}')
        A('v_mov_b32 v8, s41')
        A(f'v_mov_b32 v14, {FL}')
        A('v_mov_b32 v16, 1')
        A('s_mov_b32 s35, 0')
        A('s_mov_b32 s47, 0')
        A('v_mov_b32 v10, 0')
        A(f'v_mov_b32 v12, {IDS}')
        for r in range(20, 24):
            A(f'v_mov_b32 v{r}, 0')
        if self.stamps:
            A('s_mov_b32 s60, 0')
            A('s_mov_b32 s61, 0')
        A('s_setprio 2')
        if self.stamps:
            self.stamp_at(28, 6)
        if not self.bfirst:
            A('s_barrier')
        A('s_branch L_ld_first_v')
        if S != 256:
            self.L('L_cons0')
            self.cons_pre()

        def publish(val):
            A(f'v_mov_b32 v9, {val}')
            A('s_mov_b64 exec, 1')
            A('ds_write_b32 v8, v9')
            A('s_mov_b64 exec, -1')

        def issue(u, Wx):
            pp = (Wx - 1) % 8
            po = (pp - Wx + 1) // 8
            for kv in range(2):
                if u == 0 and kv == 1 and Wx == W:
                    self.L('L_ld_first_v')
                A(f's_add_u32 s36, s{30 + 2 * kv}, s40')
                A(f's_addc_u32 s37, s{31 + 2 * kv}, 0')
                A(f's_add_u32 m0, s38, {(2 * u + kv) * 4096}')
                for jj in range(4):
                    A(f's_waitcnt vmcnt({Wx - 1})')
                    if kv * 4 + jj == pp:
                        skip = self.lab('L_ld_np')
                        if po < 0:
                            A(f's_cmp_lt_u32 s35, {-po}')
                            A(f's_cbranch_scc1 {skip}')
                            A(f's_sub_u32 s43, s35, {-po}')
                            publish('s43')
                            self.L(skip)
                        else:
                            publish('s35')
                    A(f'global_load_lds_dwordx4 v{voff(jj)}, s[36:37] offset:{jj * 1024} nt')
                    if kv * 4 + jj == self.tk_pos:
                        A('s_mov_b64 exec, 1')
                        A('ds_add_rtn_u32 v15, v14, v16 offset:52')
                        A('s_mov_b64 exec, -1')
                    if kv * 4 + jj == self.tk_pos + 2:
                        A('s_waitcnt lgkmcnt(0)')
                        A('v_readfirstlane_b32 s46, v15')
                        A('ds_read_b32 v10, v8 offset:16')
                        if self.table:
                            A('s_lshl_b32 s48, s46, 2')
                            A(f's_add_u32 s48, s48, {TBL + 16 - 16 * US}')
                            A('v_mov_b32 v12, s48')
                            A('ds_read_b32 v11, v12')
                        else:
                            A('ds_read_b128 v[20:23], v12')
                        A('s_add_u32 s46, s46, 4')

        self.L('L_ld_loop')
        for u in range(4):
            if self.stamps:
                for q, nn in enumerate(self.prog_pts):
                    if nn % 4 != u:
                        continue
                    l = self.lab('L_ld_st')
                    A(f's_cmp_lg_u32 s35, {nn}')
                    A(f's_cbranch_scc1 {l}')
                    self.stamp_at(16 + q, q)
                    self.L(l)
            A('s_waitcnt lgkmcnt(0)')
            A('v_readfirstlane_b32 s39, v10')
            A(f's_lshr_b32 s41, s46, {2 + self.lblk}')
            if self.irot:
                A('s_add_u32 s43, s46, s53')
                A(f's_and_b32 s43, s43, {(4 << self.lblk) - 1}')
            else:
                A(f's_and_b32 s43, s46, {(4 << self.lblk) - 1}')
            A(f's_cmp_ge_u32 s41, {US >> self.lblk}')
            A(f's_cbranch_scc1 L_ld_sh{u}')
            A(f's_lshl_b32 s41, s41, {6 + self.lblk}')
            A('s_add_u32 s41, s41, s49')
            if self.tmap == 'wj':
                A('s_lshl_b32 s43, s43, 4')
            A('s_add_u32 s41, s41, s43')
            A('s_and_b32 s41, s41, 4095')
            self.L(f'L_ld_adr{u}')
            A('s_add_u32 s40, s39, 3')
            A('s_cmp_lt_u32 s40, s35')
            A(f's_cbranch_scc1 L_ld_sp{u}')
            self.L(f'L_ld_ok{u}')
            tile_bytes(40, 41, 50)
            A('s_cmp_lg_u32 s47, 0')
            A(f's_cbranch_scc1 L_ld_fast{u}')
            issue(u, W)
            self.L(f'L_ld_join{u}')
            A('s_add_u32 s35, s35, 1')
        A('s_branch L_ld_loop')
        for u in range(4):
            self.L(f'L_ld_sp{u}')
            A('s_waitcnt vmcnt(0)')
            publish('s35')
            if self.stamps:
                A('s_add_u32 s60, s60, 1')
            self.spin_begin(42)
            self.L(f'L_ld_spl{u}')
            A('ds_read_b32 v10, v8 offset:16')
            A('s_waitcnt lgkmcnt(0)')
            A('v_readfirstlane_b32 s39, v10')
            A('s_add_u32 s40, s39, 3')
            A('s_cmp_ge_u32 s40, s35')
            A(f's_cbranch_scc1 L_ld_ok{u}')
            self.spin_retry(42, f'L_ld_spl{u}', sleep=1)
            A(f's_branch L_ld_ok{u}')
        for u in range(4 if self.table else 0):
            rdy, shsp = f'L_ld_rdy{u}', f'L_ld_shspin{u}'
            self.L(f'L_ld_sh{u}')
            A('v_readfirstlane_b32 s45, v11')
            A('s_cmp_lg_u32 s45, 0')
            A(f's_cbranch_scc1 {rdy}')
            A('ds_read_b32 v11, v12')
            A('s_waitcnt lgkmcnt(0)')
            A('v_readfirstlane_b32 s45, v11')
            A('s_cmp_lg_u32 s45, 0')
            A(f's_cbranch_scc1 {rdy}')
            if self.stamps:
                A('s_add_u32 s61, s61, 1')
            A('s_waitcnt vmcnt(0)')
            publish('s35')
            self.spin_begin(42)
            self.L(shsp)
            A('ds_read_b32 v11, v12')
            A('s_waitcnt lgkmcnt(0)')
            A('v_readfirstlane_b32 s45, v11')
            A('s_cmp_lg_u32 s45, 0')
            A(f's_cbranch_scc1 {rdy}')
            self.spin_retry(42, shsp, sleep=1)
            A('s_branch L_ld_end')
            self.L(rdy)
            A('s_cmp_lt_i32 s45, 0')
            A('s_cbranch_scc1 L_ld_end')
            A('s_bfe_u32 s47, s45, 0x1001e')
            A('s_sub_u32 s41, s45, 1')
            A('s_and_b32 s41, s41, 4095')
            A(f's_branch L_ld_adr{u}')
        for u in range(0 if self.table else 4):
            rdy, shsp, zb, zrdy, zsp, zf = (f'L_ld_{x}{u}' for x in ('rdy', 'shspin', 'zb', 'zrdy', 'zspin', 'zf'))
            self.L(f'L_ld_sh{u}')
            A('v_readfirstlane_b32 s45, v20')
            A('s_cmp_lg_u32 s45, 0')
            A(f's_cbranch_scc1 {rdy}')
            if self.stamps:
                A('s_add_u32 s61, s61, 1')
            A('s_waitcnt vmcnt(0)')
            publish('s35')
            self.spin_begin(42)
            self.L(shsp)
            A(f'ds_read_b128 v[20:23], v12')
            A('s_waitcnt lgkmcnt(0)')
            A('v_readfirstlane_b32 s45, v20')
            A('s_cmp_lg_u32 s45, 0')
            A(f's_cbranch_scc1 {rdy}')
            self.spin_retry(42, shsp, sleep=1)
            A('s_branch L_ld_end')
            self.L(rdy)
            A('v_readfirstlane_b32 s52, v22')
            A(f's_sub_u32 s51, s46, {4 * US - 1}')
            A('s_cmp_ge_u32 s51, s45')
            A(f's_cbranch_scc1 {zb}')
            A('v_readfirstlane_b32 s50, v21')
            A('s_add_u32 s41, s50, s51')
            A('s_add_u32 s41, s41, s44')
            A(f's_branch {zf}')
            self.L(zb)
            A('s_cmp_lg_u32 s52, 0')
            A(f's_cbranch_scc1 {zrdy}')
            A(f'ds_read_b128 v[20:23], v12')
            A('s_waitcnt lgkmcnt(0)')
            A('v_readfirstlane_b32 s52, v22')
            A('s_cmp_lg_u32 s52, 0')
            A(f's_cbranch_scc1 {zrdy}')
            if self.stamps:
                A('s_add_u32 s61, s61, 0x100')
            A('s_waitcnt vmcnt(0)')
            publish('s35')
            self.spin_begin(42)
            self.L(zsp)
            A(f'ds_read_b128 v[20:23], v12')
            A('s_waitcnt lgkmcnt(0)')
            A('v_readfirstlane_b32 s52, v22')
            A('s_cmp_lg_u32 s52, 0')
            A(f's_cbranch_scc1 {zrdy}')
            self.spin_retry(42, zsp, sleep=1)
            A('s_branch L_ld_end')
            self.L(zrdy)
            A('v_readfirstlane_b32 s50, v23')
            A('s_sub_u32 s41, s51, s45')
            A('s_add_u32 s41, s41, 1')
            A('s_cmp_ge_u32 s41, s52')
            A('s_cbranch_scc1 L_ld_end')
            A('s_add_u32 s41, s41, s50')
            A('s_add_u32 s41, s41, s44')
            A(f's_add_u32 s41, s41, {(self.UB - US) * 64}')
            self.L(zf)
            A('s_add_u32 s47, s45, s52')
            A(f's_add_u32 s51, s51, {self.xfast + 1}')
            A('s_cmp_ge_u32 s51, s47')
            A('s_cselect_b32 s47, 1, 0')
            A('s_cmp_eq_u32 s52, 0')
            A('s_cselect_b32 s47, 0, s47')
            A('s_sub_u32 s41, s41, 1')
            A('s_and_b32 s41, s41, 4095')
            A(f's_branch L_ld_adr{u}')
        for u in range(4):
            self.L(f'L_ld_fast{u}')
            issue(u, self.Wend)
            A(f's_branch L_ld_join{u}')
        self.L('L_ld_end')
        A('s_waitcnt vmcnt(8)')
        A('s_sub_i32 s43, s35, 1')
        A('s_max_i32 s43, s43, 0')
        publish('s43')
        A('s_waitcnt vmcnt(0)')
        A('s_or_b32 s43, s35, 0x80000000')
        publish('s43')
        A('s_waitcnt lgkmcnt(0)')
        if self.stamps:
            A('s_cmp_lg_u32 s26, 4')
            A('s_cbranch_scc1 L_ld_ns')
            while len(self.pending) < 5:
                self.pending.append(None)
            self.stamp(8)
            self.flush_stamps(extra=[(9, 60), (21, 35), (22, 61), (27, 90)])
            self.L('L_ld_ns')
        A('s_endpgm')

    def cons0(self):
        A = self.A
        self.L('L_cons1')
        if self.pads:
            self.o.append('@CHAIN')
        self.ids()


    def poll(self, name, loads, checks, sleep, allmask='-1', sr=60, probe=True):
        A = self.A
        inv, n, sw, cnt = sr, sr + 2, sr + 3, sr + 4
        if allmask == '-1':
            A(f's_mov_b64 s[{inv}:{inv+1}], -1')
        else:
            A(f's_mov_b64 s[{inv}:{inv+1}], {allmask}')
        A(f's_mov_b32 s{sw}, 1')
        A(f's_mov_b32 s{cnt}, {SPIN}')
        self.L(f'{name}_loop')
        A(f's_bcnt1_i32_b64 s{n}, s[{inv}:{inv+1}]')
        A(f's_cmp_le_u32 s{n}, {8 if probe else 64}')
        A(f's_cselect_b32 s{sw}, 1, s{sw}')
        A(f's_mov_b64 exec, s[{inv}:{inv+1}]')
        A(f's_cmp_lg_u32 s{sw}, 0')
        A(f's_cbranch_scc1 {name}_go')
        A(f's_ff1_i32_b64 s{n}, s[{inv}:{inv+1}]')
        A(f's_lshl_b64 exec, 1, s{n}')
        self.L(f'{name}_go')
        for l in loads:
            A(l)
        A('s_waitcnt vmcnt(0)')
        acc = checks()
        A(f'v_cmp_eq_u32 vcc, 0, v{acc}')
        A(f's_andn2_b64 s[{inv}:{inv+1}], s[{inv}:{inv+1}], vcc')
        A(f's_cmp_lg_u64 vcc, 0')
        A(f's_cselect_b32 s{n}, 1, 0')
        A(f's_xor_b32 s{sw}, s{sw}, 1')
        A(f's_and_b32 s{sw}, s{sw}, s{n}')
        A('s_mov_b64 exec, -1')
        A(f's_cmp_eq_u64 s[{inv}:{inv+1}], 0')
        A(f's_cbranch_scc1 {name}_done')
        if self.fastpoll:
            A(f's_bcnt1_i32_b64 s{n}, s[{inv}:{inv+1}]')
            A(f's_cmp_le_u32 s{n}, 8')
            A(f's_cbranch_scc1 {name}_ns')
        A(f's_sleep {sleep}')
        if self.fastpoll:
            self.L(f'{name}_ns')
        A(f's_sub_u32 s{cnt}, s{cnt}, 1')
        A(f's_cmp_lg_u32 s{cnt}, 0')
        A(f's_cbranch_scc1 {name}_loop')
        self.L(f'{name}_done')


    def poll2(self, name, mk_loads, basesA, basesB, acc, tmp, sleep, sr=60, stag=4, thresh=16, more=()):
        A = self.A
        inv, n, sw, cnt = sr, sr + 2, sr + 3, sr + 4
        nl = len(basesA)
        sets = [basesA, basesB] + list(more)
        A(f's_mov_b64 s[{inv}:{inv+1}], -1')
        A(f's_mov_b32 s{sw}, 1')
        A(f's_mov_b32 s{cnt}, {SPIN}')
        self.L(f'{name}_loop')
        A(f's_mov_b64 exec, s[{inv}:{inv+1}]')
        A(f's_cmp_lg_u32 s{sw}, 0')
        A(f's_cbranch_scc1 {name}_go')
        A(f's_ff1_i32_b64 s{n}, s[{inv}:{inv+1}]')
        A(f's_lshl_b64 exec, 1, s{n}')
        self.L(f'{name}_go')
        for l in mk_loads(basesA):
            A(l)
        A('s_waitcnt vmcnt(0)')
        self.chk3(basesA, acc, tmp)
        A(f'v_cmp_eq_u32 vcc, 0, v{acc}')
        A(f's_andn2_b64 s[{inv}:{inv+1}], s[{inv}:{inv+1}], vcc')
        A(f's_cmp_lg_u64 vcc, 0')
        A(f's_cselect_b32 s{n}, 1, 0')
        A(f's_xor_b32 s{sw}, s{sw}, 1')
        A(f's_and_b32 s{sw}, s{sw}, s{n}')
        A('s_mov_b64 exec, -1')
        A(f's_cmp_eq_u64 s[{inv}:{inv+1}], 0')
        A(f's_cbranch_scc1 {name}_done')
        A(f's_bcnt1_i32_b64 s{n}, s[{inv}:{inv+1}]')
        A(f's_cmp_le_u32 s{n}, {thresh}')
        A(f's_cbranch_scc1 {name}_p2')
        A(f's_sleep {sleep}')
        A(f's_sub_u32 s{cnt}, s{cnt}, 1')
        A(f's_cmp_lg_u32 s{cnt}, 0')
        A(f's_cbranch_scc1 {name}_loop')
        A(f's_branch {name}_done')
        self.L(f'{name}_p2')
        A(f's_mov_b64 exec, s[{inv}:{inv+1}]')
        for k, X in enumerate(sets):
            if k:
                A(f's_sleep {stag}')
            for l in mk_loads(X):
                A(l)
        self.L(f'{name}_p2l')
        for X in sets:
            A(f's_waitcnt vmcnt({nl * (len(sets) - 1)})')
            self.chk3(X, acc, tmp)
            A(f'v_cmp_eq_u32 vcc, 0, v{acc}')
            A(f's_and_b64 vcc, vcc, s[{inv}:{inv+1}]')
            if X is not basesA:
                A('s_mov_b64 exec, vcc')
                for bA, bB in zip(basesA, X):
                    for r in range(3):
                        A(f'v_mov_b32 v{bA + r}, v{bB + r}')
            A(f's_andn2_b64 s[{inv}:{inv+1}], s[{inv}:{inv+1}], vcc')
            A(f's_cmp_eq_u64 s[{inv}:{inv+1}], 0')
            A(f's_cbranch_scc1 {name}_done')
            A(f's_mov_b64 exec, s[{inv}:{inv+1}]')
            for l in mk_loads(X):
                A(l)
        A(f's_sub_u32 s{cnt}, s{cnt}, 1')
        A(f's_cmp_lg_u32 s{cnt}, 0')
        A(f's_cbranch_scc1 {name}_p2l')
        self.L(f'{name}_done')
        A('s_mov_b64 exec, -1')

    def pollm(self, name, mk_loads, sets, acc, stag, invs, anyr=60, first=True):
        A = self.A
        nl = len(sets[0])
        cnt = anyr + 4
        for iv in invs:
            A(f's_mov_b64 s[{iv}:{iv+1}], -1')
        A(f's_mov_b32 s{cnt}, {SPIN}')

        def check(X):
            for i, (b, iv) in enumerate(zip(X, invs)):
                A(f's_mov_b64 exec, s[{iv}:{iv+1}]')
                A(f'v_bitop3_b32 v{acc}, v{b}, v{b+1}, v{b+2} bitop3:0x96')
                A(f'v_bitop3_b32 v{acc}, v{acc}, v{b+3}, s29 bitop3:0x96')
                A(f'v_cmp_eq_u32 vcc, 0, v{acc}')
                A(f's_andn2_b64 s[{iv}:{iv+1}], s[{iv}:{iv+1}], vcc')
                if X is not sets[0]:
                    A('s_mov_b64 exec, vcc')
                    for r in range(3):
                        A(f'v_mov_b32 v{sets[0][i] + r}, v{b + r}')
            A(f's_or_b64 s[{anyr}:{anyr+1}], s[{invs[0]}:{invs[0]+1}], s[{invs[1]}:{invs[1]+1}]')
            for iv in invs[2:]:
                A(f's_or_b64 s[{anyr}:{anyr+1}], s[{anyr}:{anyr+1}], s[{iv}:{iv+1}]')
            A(f's_cbranch_scc0 {name}_done')

        def issue(X):
            for l, iv in zip(mk_loads(X), invs):
                A(f's_cmp_eq_u64 s[{iv}:{iv+1}], 0')
                A(f's_cselect_b64 exec, 1, s[{iv}:{iv+1}]')
                A(l)

        if first and len(sets) > 1:
            for l in mk_loads(sets[0]):
                A(l)
            A('s_waitcnt vmcnt(0)')
            check(sets[0])
            for k, X in enumerate(sets):
                if k:
                    A(f's_sleep {stag}')
                issue(X)
        else:
            for k, X in enumerate(sets):
                if k:
                    A(f's_sleep {stag}')
                for l in mk_loads(X):
                    A(l)
        self.L(f'{name}_loop')
        for X in sets:
            A(f's_waitcnt vmcnt({nl * (len(sets) - 1)})')
            check(X)
            issue(X)
        A(f's_sub_u32 s{cnt}, s{cnt}, 1')
        A(f's_cmp_lg_u32 s{cnt}, 0')
        A(f's_cbranch_scc1 {name}_loop')
        self.L(f'{name}_done')
        A('s_mov_b64 exec, -1')

    def chk3(self, groups, acc, tmp, tag=29):
        A = self.A
        for n, b in enumerate(groups):
            d = acc if n == 0 else tmp
            A(f'v_bitop3_b32 v{d}, v{b}, v{b+1}, v{b+2} bitop3:0x96')
            A(f'v_bitop3_b32 v{d}, v{d}, v{b+3}, s{tag} bitop3:0x96')
            if n:
                A(f'v_or_b32 v{acc}, v{acc}, v{tmp}')
        return acc

    def mkchk(self, b, tag=29):
        self.A(f'v_bitop3_b32 v{b+3}, v{b}, v{b+1}, v{b+2} bitop3:0x96')
        self.A(f'v_xor_b32 v{b+3}, s{tag}, v{b+3}')

    def cstamp(self, idx):
        self.stamp(idx)

    def cflush(self):
        if self.stamps:
            l = self.lab('L_nf')
            self.A('s_cmp_lg_u32 s26, 0')
            self.A(f's_cbranch_scc1 {l}')
            self.flush_stamps()
            self.L(l)

    def consumer(self):
        A = self.A
        self.pending = []
        KA, VA, FA = 2, 6, 14
        Q, O, KF, VF, S = 16, 32, 64, 80, 96
        MC, LS = 100, 101
        T = 102
        P = 118
        A(f's_mul_i32 s38, s26, {RING}')
        A('v_and_b32 v20, 15, v1')
        A('v_lshrrev_b32 v21, 4, v1')
        A('v_and_b32 v22, 7, v20')
        A('v_lshlrev_b32 v22, 1, v22')
        A('v_lshlrev_b32 v23, 8, v20')
        A('v_add_u32 v23, s38, v23')
        for i in range(4):
            A(f'v_add_u32 v24, {4 * i}, v21')
            A('v_xor_b32 v24, v24, v22')
            A(f'v_lshl_add_u32 v{KA + i}, v24, 4, v23')
        A('v_lshrrev_b32 v22, 2, v20')
        A('v_lshl_add_u32 v22, v21, 2, v22')
        A('v_and_b32 v24, 7, v22')
        A('v_lshlrev_b32 v23, 8, v22')
        A('v_add_u32 v23, s38, v23')
        A('v_and_b32 v25, 3, v20')
        A('v_lshl_add_u32 v23, v25, 3, v23')
        for m in range(8):
            A(f'v_xor_b32 v25, {m}, v24')
            A(f'v_lshl_add_u32 v{VA + m}, v25, 5, v23')
        A('s_lshl_b32 s40, s26, 2')
        A(f's_add_u32 s40, s40, {FL}')
        A(f'v_mov_b32 v{FA}, s40')
        for r in range(32):
            A(f'v_mov_b32 v{O + r}, 0')
        A(f'v_mov_b32 v{MC}, 0xff800000')
        A(f'v_mov_b32 v{LS}, 0')
        A(f's_mov_b32 s44, {LOG2E}')
        KB, VB = 128, 144
        def wait_full(done_label):
            go = self.lab('L_c_go')
            pl = self.lab('L_c_poll')
            A('s_and_b32 s40, s39, 0x7fffffff')
            A('s_cmp_gt_u32 s40, s35')
            A(f's_cbranch_scc1 {go}')
            if self.trim:
                A('s_cmp_lt_i32 s39, 0')
                A(f's_cbranch_scc1 {done_label}')
            self.spin_begin(42)
            self.L(pl)
            A(f'ds_read_b32 v{T}, v{FA}')
            A('s_waitcnt lgkmcnt(0)')
            A(f'v_readfirstlane_b32 s39, v{T}')
            A('s_and_b32 s40, s39, 0x7fffffff')
            A('s_cmp_gt_u32 s40, s35')
            A(f's_cbranch_scc1 {go}')
            A('s_cmp_lt_i32 s39, 0')
            A(f's_cbranch_scc1 {done_label}')
            self.spin_retry(42, pl, sleep=1)
            A(f's_branch {done_label}')
            self.L(go)
        def reads(u, kf, vf):
            for i in range(4):
                A(f'ds_read_b128 v[{kf + 4*i}:{kf + 4*i + 3}], v{KA + i} offset:{(2*u) * 4096}')
            for m in range(8):
                A(f'ds_read_b64_tr_b16 v[{vf + 2*m}:{vf + 2*m + 1}], v{VA + m} offset:{(2*u + 1) * 4096}')
            A('s_add_u32 s35, s35, 1')
        def qk(kf):
            for i in range(4):
                c = '0' if i == 0 else f'v[{S}:{S+3}]'
                A(f'v_mfma_f32_16x16x32_bf16 v[{S}:{S+3}], v[{kf + 4*i}:{kf + 4*i + 3}], v[{Q + 4*i}:{Q + 4*i + 3}], {c}')
        def free():
            A(f'v_mov_b32 v{T}, s35')
            A('s_waitcnt lgkmcnt(0)')
            A('s_mov_b64 exec, 1')
            A(f'ds_write_b32 v{FA}, v{T} offset:16')
            A('s_mov_b64 exec, -1')
        def softmax_pv(vf):
            nr = self.lab('L_c_nr')
            A(f'v_cvt_pk_bf16_f32 v{T}, v{S}, v{S+1}')
            A(f'v_cvt_pk_bf16_f32 v{T+1}, v{S+2}, v{S+3}')
            A(f'v_lshlrev_b32 v{T+2}, 16, v{T}')
            A(f'v_and_b32 v{T+3}, 0xffff0000, v{T}')
            A(f'v_lshlrev_b32 v{T+4}, 16, v{T+1}')
            A(f'v_and_b32 v{T+5}, 0xffff0000, v{T+1}')
            for r in range(4):
                A(f'v_mul_f32 v{T+2+r}, {SCALE:#x}, v{T+2+r}')
            A(f'v_cvt_pk_bf16_f32 v{T}, v{T+2}, v{T+3}')
            A(f'v_cvt_pk_bf16_f32 v{T+1}, v{T+4}, v{T+5}')
            A(f'v_lshlrev_b32 v{T+2}, 16, v{T}')
            A(f'v_and_b32 v{T+3}, 0xffff0000, v{T}')
            A(f'v_lshlrev_b32 v{T+4}, 16, v{T+1}')
            A(f'v_and_b32 v{T+5}, 0xffff0000, v{T+1}')
            A(f'v_max3_f32 v{T+6}, v{T+2}, v{T+3}, v{T+4}')
            A(f'v_max_f32 v{T+6}, v{T+6}, v{T+5}')
            A(f'v_mul_f32 v{T+6}, s44, v{T+6}')
            A(f'v_cmp_gt_f32 vcc, v{T+6}, v{MC}')
            A(f's_cbranch_vccz {nr}')
            self.xrow('v_max_f32', T + 6, T + 7)
            A(f'v_max_f32 v{T+6}, v{T+6}, v{MC}')
            A(f'v_sub_f32 v{T+7}, v{MC}, v{T+6}')
            A(f'v_exp_f32 v{T+7}, v{T+7}')
            A(f'v_mov_b32 v{MC}, v{T+6}')
            A(f'v_mul_f32 v{LS}, v{LS}, v{T+7}')
            for r in range(32):
                A(f'v_mul_f32 v{O + r}, v{O + r}, v{T+7}')
            self.L(nr)
            for r in range(4):
                A(f'v_fma_f32 v{T+2+r}, v{T+2+r}, s44, -v{MC}')
            for r in range(4):
                A(f'v_exp_f32 v{T+2+r}, v{T+2+r}')
            A('s_nop 0')
            A(f'v_cvt_pk_bf16_f32 v{P}, v{T+2}, v{T+3}')
            A(f'v_cvt_pk_bf16_f32 v{P+1}, v{T+4}, v{T+5}')
            A(f'v_add_f32 v{T+2}, v{T+2}, v{T+3}')
            A(f'v_add_f32 v{T+4}, v{T+4}, v{T+5}')
            A(f'v_add_f32 v{LS}, v{LS}, v{T+2}')
            A(f'v_add_f32 v{LS}, v{LS}, v{T+4}')
            for m in range(8):
                A(f'v_mfma_f32_16x16x16_bf16 v[{O + 4*m}:{O + 4*m + 3}], v[{vf + 2*m}:{vf + 2*m + 1}], v[{P}:{P+1}], v[{O + 4*m}:{O + 4*m + 3}]')

        A('v_lshlrev_b32 v123, 9, v20')
        A('v_lshl_add_u32 v123, v21, 4, v123')
        A('s_lshl_b32 s40, s26, 10')
        A(f's_add_u32 s40, s40, {OC}')
        A('v_add_u32 v123, s40, v123')
        A('s_lshl_b32 s40, s26, 4')
        A(f's_add_u32 s40, s40, {OCML}')
        A('v_lshlrev_b32 v124, 3, v20')
        A('v_add_u32 v124, s40, v124')
        A('s_lshl_b32 s40, s26, 6')
        A('v_add_u32 v122, s40, v1')
        A('v_lshrrev_b32 v125, 3, v122')
        A('v_lshlrev_b32 v125, 6, v125')
        A('v_and_b32 v122, 7, v122')
        A('v_mul_u32_u24 v122, 12, v122')
        A('v_add_u32 v125, v125, v122')
        A(f'v_add_u32 v125, {OC}, v125')
        A('s_mov_b32 s35, 0')
        A('s_mov_b32 s39, 0')
        A(f'v_and_b32 v15, 1, v20')
        A(f'v_lshlrev_b32 v15, 8, v15')
        A(f'v_lshl_add_u32 v15, v21, 4, v15')
        A(f'v_add_u32 v15, {QL}, v15')
        if self.preread and 'noload' not in self.exp:
            wait_full('L_c_done')
            reads(0, KF, VF)
            free()
            wait_full('L_c_done')
            reads(1, KB, VB)
            free()
        A(f'v_mov_b32 v{T}, {FL}')
        self.spin_begin(42)
        self.L('L_c_qwait')
        A(f'ds_read_b32 v{T+2}, v{T} offset:32')
        A('s_waitcnt lgkmcnt(0)')
        A(f'v_readfirstlane_b32 s40, v{T+2}')
        A('s_cmp_lg_u32 s40, 0')
        A('s_cbranch_scc1 L_c_qok')
        if 'noq' in self.exp:
            A('s_branch L_c_qok')
        self.spin_retry(42, 'L_c_qwait', sleep=2)
        self.L('L_c_qok')
        for i in range(4):
            A(f'ds_read_b128 v[{Q + 4*i}:{Q + 4*i + 3}], v15 offset:{64 * i}')
        A('s_waitcnt lgkmcnt(0)')
        self.cstamp(1)
        if 'noload' in self.exp:
            self.cflush()
            A('s_endpgm')
        if self.preread:
            qk(KF)
            A('s_nop 7')
            softmax_pv(VF)
            qk(KB)
            A('s_nop 7')
            softmax_pv(VB)
            A('s_branch L_c_u2')
        self.L('L_c_loop')
        for u in range(4):
            if u == 2:
                self.L('L_c_u2')
            wait_full('L_c_done')
            reads(u, KF, VF)
            A('s_waitcnt lgkmcnt(8)')
            qk(KF)
            free()
            A('s_nop 3')
            softmax_pv(VF)
        A('s_branch L_c_loop')
        self.L('L_c_done')

        self.cstamp(2)
        if 'notail' in self.exp:
            self.cflush()
            A('s_endpgm')
        A('s_mov_b32 s46, 0x00030003')
        A('s_mov_b32 s47, 0x00030003')
        A('s_mov_b64 exec, s[46:47]')
        for m in range(8):
            A(f'ds_write_b128 v123, v[{O + 4*m}:{O + 4*m + 3}] offset:{64 * m}')
        A('s_mov_b64 exec, -1')
        self.xrow('v_add_f32', LS, T)
        A('s_mov_b64 exec, 3')
        A(f'ds_write_b64 v124, v[{MC}:{LS}]')
        A('s_mov_b64 exec, -1')
        A(f'v_mov_b32 v{T+3}, {FL}')
        A(f'ds_read_b32 v68, v{T+3} offset:36')
        A('s_lshl_b32 s51, s27, 4')
        A('s_add_u32 s51, s51, s28')
        A('s_waitcnt lgkmcnt(0)')
        A('s_barrier')
        A('v_readfirstlane_b32 s29, v68')
        A('s_cmp_ge_u32 s26, 2')
        A('s_cbranch_scc1 L_c_nopub')
        A('s_lshl_b32 s45, s26, 3')
        A(f's_add_u32 s45, s45, {OCML}')
        A(f'v_mov_b32 v{T+2}, s45')
        for k in range(4):
            A(f'ds_read_b64 v[{70 + 2*k}:{71 + 2*k}], v{T+2} offset:{16 * k}')
        for k in range(4):
            for i in range(3):
                A(f'ds_read_b32 v{32 + 4*i + k}, v125 offset:{1024 * k + 4 * i}')
        A('s_lshl_b32 s45, s51, 11')
        A(f's_add_u32 s45, s45, {WS_P}')
        A('s_add_u32 s48, s24, s45')
        A('s_addc_u32 s49, s25, 0')
        A('s_lshl_b32 s40, s26, 10')
        A(f'v_lshlrev_b32 v{T+3}, 4, v1')
        A(f'v_add_u32 v{T+3}, s40, v{T+3}')
        A('s_mov_b32 s46, 0x20202020')
        A('s_mov_b32 s47, 0x20202020')
        A('s_waitcnt lgkmcnt(12)')
        A('v_max3_f32 v80, v70, v72, v74')
        A('v_max_f32 v80, v80, v76')
        for k in range(4):
            A(f'v_sub_f32 v{82 + k}, v{70 + 2*k}, v80')
        for k in range(4):
            A(f'v_exp_f32 v{82 + k}, v{82 + k}')
        A('s_nop 0')
        A('v_mul_f32 v81, v71, v82')
        for k in range(1, 4):
            A(f'v_fmac_f32 v81, v{71 + 2*k}, v{82 + k}')
        A('s_waitcnt lgkmcnt(0)')
        for i in range(3):
            A(f'v_mul_f32 v{88 + i}, v{32 + 4*i}, v82')
        for k in range(1, 4):
            for i in range(3):
                A(f'v_fmac_f32 v{88 + i}, v{32 + 4*i + k}, v{82 + k}')
        A('v_cndmask_b32 v89, v89, v80, s[46:47]')
        A('v_cndmask_b32 v90, v90, v81, s[46:47]')
        self.mkchk(88)
        A(f'global_store_dwordx4 v{T+3}, v[88:91], s[48:49] sc1')
        if self.wo_delay:
            A('s_lshl_b32 s45, s26, 2')
            A(f's_add_u32 s45, s45, {FL + 56}')
            A(f'v_mov_b32 v{T+1}, s45')
            A(f'v_mov_b32 v{T}, 1')
            A('s_mov_b64 exec, 1')
            A(f'ds_write_b32 v{T+1}, v{T}')
            A('s_mov_b64 exec, -1')
        self.cstamp(3)
        if self.flate is True:
            A(f's_cmp_ge_u32 s96, {NFFN}')
            A('s_cbranch_scc1 L_c_nofp')
            A('s_mul_i32 s45, s26, 1536')
            A('v_lshlrev_b32 v30, 4, v1')
            A('v_add_u32 v30, s45, v30')
            A(f'v_add_u32 v31, {FB}, v30')
            A('ds_read_b128 v[32:35], v31')
            A('ds_read_b128 v[36:39], v31 offset:1024')
            A('s_mul_i32 s45, s96, 3072')
            A(f's_add_u32 s45, s45, {WS_F}')
            A('s_add_u32 s56, s24, s45')
            A('s_addc_u32 s57, s25, 0')
            A('s_waitcnt lgkmcnt(0)')
            A('global_store_dwordx4 v30, v[32:35], s[56:57] sc1')
            A('s_mov_b32 s46, -1')
            A('s_mov_b32 s47, 0')
            A('s_mov_b64 exec, s[46:47]')
            A('global_store_dwordx4 v30, v[36:39], s[56:57] offset:1024 sc1')
            A('s_mov_b64 exec, -1')
            A('s_branch L_c_pubdone')
            self.L('L_c_nofp')
            A(f's_cmp_ge_u32 s97, {NRED}')
            A('s_cbranch_scc1 L_c_pubdone')
            A(f's_cmp_lg_u32 s26, {self.fwave}')
            A('s_cbranch_scc1 L_c_pubdone')
            self.f_gather('L_c_f', sleep=self.fsleep, probe=False)
        A('s_branch L_c_pubdone')
        self.L('L_c_nopub')
        if self.w2late == 'after':
            A(f'v_lshlrev_b32 v{T}, 4, v1')
            A('s_sub_u32 s45, s26, 2')
            A('s_mul_i32 s40, s51, 18432')
            A('s_mul_i32 s58, s45, 9216')
            A('s_add_u32 s40, s40, s58')
            A('s_add_u32 s48, s12, s40')
            A('s_addc_u32 s49, s13, 0')
            A(f's_add_u32 s58, s58, {STG}')
            for i in range(9):
                if i % 4 == 0:
                    A(f's_add_u32 m0, s58, {1024 * i}')
                    A('s_nop 0')
                A(f'global_load_lds_dwordx4 v{T}, s[48:49] offset:{1024 * (i % 4)} nt')
                if i % 4 == 3:
                    A('s_add_u32 s48, s48, 4096')
                    A('s_addc_u32 s49, s49, 0')
            A('s_mul_i32 s40, s51, 20736')
            A('s_mul_i32 s58, s45, 11264')
            A('s_add_u32 s40, s40, s58')
            A('s_add_u32 s48, s18, s40')
            A('s_addc_u32 s49, s19, 0')
            A(f's_add_u32 s58, s58, {W2S}')
            for i in range(11):
                if i % 4 == 0:
                    A(f's_add_u32 m0, s58, {1024 * i}')
                    A('s_nop 0')
                if i == 9:
                    A('s_cmp_eq_u32 s45, 0')
                    A('s_cselect_b64 s[46:47], -1, 0xffff')
                    A('s_mov_b64 exec, s[46:47]')
                if i == 10:
                    A('s_mov_b64 exec, -1')
                    A('s_cmp_lg_u32 s45, 0')
                    A('s_cbranch_scc1 L_c_w2x')
                A(f'global_load_lds_dwordx4 v{T}, s[48:49] offset:{1024 * (i % 4)} nt')
                if i % 4 == 3:
                    A('s_add_u32 s48, s48, 4096')
                    A('s_addc_u32 s49, s49, 0')
            self.L('L_c_w2x')
            A('s_lshl_b32 s45, s26, 2')
            A(f's_add_u32 s45, s45, {FL + 32}')
            A(f'v_mov_b32 v{T+1}, s45')
            A(f'v_mov_b32 v{T+2}, 1')
            A('s_waitcnt vmcnt(10)')
            A('s_mov_b64 exec, 1')
            A(f'ds_write_b32 v{T+1}, v{T+2}')
            A('s_mov_b64 exec, -1')
        elif self.w2late:
            A(f'v_lshlrev_b32 v{T}, 4, v1')
            A('s_sub_u32 s45, s26, 2')
            A('s_mul_i32 s40, s51, 20736')
            A('s_mul_i32 s58, s45, 11264')
            A('s_add_u32 s40, s40, s58')
            A('s_add_u32 s48, s18, s40')
            A('s_addc_u32 s49, s19, 0')
            A(f's_add_u32 s58, s58, {W2S}')
            for i in range(11):
                if i % 4 == 0:
                    A(f's_add_u32 m0, s58, {1024 * i}')
                    A('s_nop 0')
                if i == 9:
                    A('s_cmp_eq_u32 s45, 0')
                    A('s_cselect_b64 s[46:47], -1, 0xffff')
                    A('s_mov_b64 exec, s[46:47]')
                if i == 10:
                    A('s_mov_b64 exec, -1')
                    A('s_cmp_lg_u32 s45, 0')
                    A('s_cbranch_scc1 L_c_w2x')
                A(f'global_load_lds_dwordx4 v{T}, s[48:49] offset:{1024 * (i % 4)} nt')
                if i % 4 == 3:
                    A('s_add_u32 s48, s48, 4096')
                    A('s_addc_u32 s49, s49, 0')
            self.L('L_c_w2x')
            A('s_mul_i32 s40, s51, 18432')
            A('s_mul_i32 s58, s45, 9216')
            A('s_add_u32 s40, s40, s58')
            A('s_add_u32 s48, s12, s40')
            A('s_addc_u32 s49, s13, 0')
            A(f's_add_u32 s58, s58, {STG}')
            for i in range(9):
                if i % 4 == 0:
                    A(f's_add_u32 m0, s58, {1024 * i}')
                    A('s_nop 0')
                A(f'global_load_lds_dwordx4 v{T}, s[48:49] offset:{1024 * (i % 4)} nt')
                if i % 4 == 3:
                    A('s_add_u32 s48, s48, 4096')
                    A('s_addc_u32 s49, s49, 0')
            A('s_lshl_b32 s45, s26, 2')
            A(f's_add_u32 s45, s45, {FL + 32}')
            A(f'v_mov_b32 v{T+1}, s45')
            A(f'v_mov_b32 v{T+2}, 1')
            A('s_waitcnt vmcnt(9)')
            A('s_mov_b64 exec, 1')
            A(f'ds_write_b32 v{T+1}, v{T+2} offset:16')
            A('s_mov_b64 exec, -1')
        if not self.w2late and self.wo_by == 'w23':
            A(f'v_lshlrev_b32 v{T}, 4, v1')
            A('s_sub_u32 s45, s26, 2')
            A('s_mul_i32 s40, s51, 18432')
            A('s_mul_i32 s58, s45, 9216')
            A('s_add_u32 s40, s40, s58')
            A('s_add_u32 s48, s12, s40')
            A('s_addc_u32 s49, s13, 0')
            A(f's_add_u32 s58, s58, {STG}')
            if self.wo_delay:
                A(f'v_mov_b32 v{T+1}, {FL}')
                self.spin_begin(42)
                self.L('L_c_wod')
                A(f'ds_read_b64 v[{T+8}:{T+9}], v{T+1} offset:56')
                A('s_waitcnt lgkmcnt(0)')
                A(f'v_and_b32 v{T+8}, v{T+8}, v{T+9}')
                A('s_nop 0')
                A(f'v_readfirstlane_b32 s40, v{T+8}')
                A('s_cmp_lg_u32 s40, 0')
                A('s_cbranch_scc1 L_c_wod_ok')
                self.spin_retry(42, 'L_c_wod', sleep=0)
                self.L('L_c_wod_ok')
            for i in range(9):
                if i % 4 == 0:
                    A(f's_add_u32 m0, s58, {1024 * i}')
                    A('s_nop 0')
                if self.wo_win and i >= self.wo_win:
                    A(f's_waitcnt vmcnt({self.wo_win - 1})')
                if 'nowo' not in self.exp:
                    A(f'global_load_lds_dwordx4 v{T}, s[48:49] offset:{1024 * (i % 4)} nt')
                if i % 4 == 3:
                    A('s_add_u32 s48, s48, 4096')
                    A('s_addc_u32 s49, s49, 0')
            A('s_lshl_b32 s45, s26, 2')
            A(f's_add_u32 s45, s45, {FL + 32}')
            A(f'v_mov_b32 v{T+1}, s45')
            A(f'v_mov_b32 v{T+2}, 1')
            A('s_waitcnt vmcnt(0)')
            A('s_mov_b64 exec, 1')
            A(f'ds_write_b32 v{T+1}, v{T+2}')
            A('s_mov_b64 exec, -1')
        self.L('L_c_pubdone')
        A(f'v_and_b32 v{T}, 15, v1')
        A(f'v_lshrrev_b32 v{T+1}, 4, v1')
        A(f'v_lshrrev_b32 v{T+3}, 2, v{T}')
        A(f'v_and_b32 v{T+4}, 3, v{T}')
        A(f'v_lshl_add_u32 v{T+5}, v{T+1}, 3, v{T+3}')
        A(f'v_mul_u32_u24 v{T+5}, 1152, v{T+5}')
        A(f'v_lshl_add_u32 v{T+5}, v{T+4}, 3, v{T+5}')
        A('s_mul_i32 s45, s26, 288')
        A(f'v_add_u32 v{T+5}, s45, v{T+5}')
        A(f'v_lshl_add_u32 v{T+3}, v{T+1}, 2, v{T+3}')
        A(f'v_mul_u32_u24 v{T+3}, 1152, v{T+3}')
        A(f'v_lshl_add_u32 v{T+3}, v{T+4}, 3, v{T+3}')
        A(f's_add_u32 s45, s45, {STG}')
        A(f'v_add_u32 v{T+3}, s45, v{T+3}')
        A(f'v_lshlrev_b32 v{T+6}, 4, v{T+1}')
        A(f'v_add_u32 v{T+6}, {AB}, v{T+6}')
        if self.w2late is True:
            A(f'ds_read_b128 v[68:71], v{T+6}')
        A(f'v_lshlrev_b32 v{T+2}, 3, v{T+1}')
        A(f'v_add_u32 v{T+2}, {OB}, v{T+2}')
        A('s_mul_i32 s50, s97, 0x5556')
        A('s_lshr_b32 s50, s50, 18')
        A('s_mul_i32 s58, s50, 12')
        A('s_sub_u32 s58, s97, s58')
        A('s_lshr_b32 s59, s58, 2')
        A('s_and_b32 s58, s58, 3')
        A('s_mul_i32 s50, s50, 9')
        A('s_mul_i32 s59, s59, 3')
        A('s_add_u32 s50, s50, s59')
        A('s_lshl_b32 s50, s50, 4')
        A('s_lshl_b32 s58, s58, 2')
        A('s_add_u32 s50, s50, s58')
        A('v_lshrrev_b32 v121, 2, v1')
        A('v_and_b32 v122, 3, v1')
        A('v_lshl_add_u32 v121, v121, 4, v122')
        A('v_add_u32 v121, s50, v121')
        A('v_lshlrev_b32 v121, 1, v121')
        A('s_mov_b32 s52, s4')
        A('s_mov_b32 s53, s5')
        A('s_mov_b32 s54, 1152')
        A('s_mov_b32 s55, 0x00020000')
        A('buffer_load_ushort v120, v121, s[52:55], 0 offen')
        def wait_flags(off, lab):
            A(f'v_mov_b32 v{T}, {FL}')
            self.spin_begin(42)
            self.L(lab)
            A(f'ds_read_b64 v[{T+8}:{T+9}], v{T} offset:{off}')
            A('s_waitcnt lgkmcnt(0)')
            A(f'v_and_b32 v{T+8}, v{T+8}, v{T+9}')
            A('s_nop 0')
            A(f'v_readfirstlane_b32 s40, v{T+8}')
            A('s_cmp_lg_u32 s40, 0')
            A(f's_cbranch_scc1 {lab}_ok')
            self.spin_retry(42, lab, sleep=1)
            self.L(f'{lab}_ok')
        def y_ffn():
            wait_flags(56, 'L_c_w2wait')
            for t in range(9):
                A(f'ds_read_b64_tr_b16 v[{32 + 4*t}:{33 + 4*t}], v{T+5} offset:{32 * t}')
                A(f'ds_read_b64_tr_b16 v[{34 + 4*t}:{35 + 4*t}], v{T+5} offset:{32 * t + 4608}')
                if t == 6:
                    A('s_waitcnt lgkmcnt(8)')
            for r in range(4):
                A(f'v_mov_b32 v{80 + r}, 0')
            A('s_waitcnt lgkmcnt(0)')
            for t in range(9):
                row = 4 * (t // 3) + t % 3
                A(f's_mov_b32 s46, {0x00010001 << row:#x}')
                A(f's_mov_b32 s47, {0x00010001 << row:#x}')
                m = 72 + 4 * (t & 1)
                for r in range(4):
                    A(f'v_cndmask_b32 v{m + r}, 0, v{68 + r}, s[46:47]')
                A('s_nop 1')
                A(f'v_mfma_f32_16x16x32_bf16 v[80:83], v[{m}:{m+3}], v[{32 + 4*t}:{35 + 4*t}], v[80:83]')
            A('s_mul_i32 s45, s51, 3072')
            A(f's_add_u32 s45, s45, {WS_Y2}')
            A('s_add_u32 s48, s24, s45')
            A('s_addc_u32 s49, s25, 0')
            A('s_mul_i32 s45, s26, 768')
            A(f'v_lshlrev_b32 v{T+7}, 4, v1')
            A(f'v_add_u32 v{T+7}, s45, v{T+7}')
            A('s_nop 3')
            self.mkchk(80)
            A('s_mov_b32 s46, -1')
            A('s_mov_b32 s47, 0xffff')
            A('s_mov_b64 exec, s[46:47]')
            A(f'global_store_dwordx4 v{T+7}, v[80:83], s[48:49] sc1')
            A('s_mov_b64 exec, -1')
        if self.w2late is True:
            y_ffn()
            A('s_cmp_lt_u32 s26, 2')
            A('s_cbranch_scc1 L_c_nowo')
            A('s_lshl_b32 s45, s26, 2')
            A(f's_add_u32 s45, s45, {FL + 32}')
            A(f'v_mov_b32 v{T+8}, s45')
            A(f'v_mov_b32 v{T+9}, 1')
            A('s_waitcnt vmcnt(2)')
            A('s_mov_b64 exec, 1')
            A(f'ds_write_b32 v{T+8}, v{T+9}')
            A('s_mov_b64 exec, -1')
            self.L('L_c_nowo')
        if self.w2late is not True:
            A('s_mul_i32 s45, s26, 768')
            A(f'v_lshlrev_b32 v{T+7}, 4, v1')
            A(f'v_add_u32 v{T+7}, s45, v{T+7}')
        if self.w2late or self.wo_by == 'w23':
            wait_flags(40, 'L_c_wowait')
        else:
            A(f'v_mov_b32 v{T}, {FL}')
            self.spin_begin(42)
            self.L('L_c_wowait')
            A(f'ds_read_b128 v[{T+8}:{T+11}], v{T} offset:240')
            A('s_waitcnt lgkmcnt(0)')
            A(f'v_and_b32 v{T+8}, v{T+8}, v{T+9}')
            A(f'v_and_b32 v{T+10}, v{T+10}, v{T+11}')
            A(f'v_and_b32 v{T+8}, v{T+8}, v{T+10}')
            A('s_nop 0')
            A(f'v_readfirstlane_b32 s40, v{T+8}')
            A('s_cmp_lg_u32 s40, 0')
            A('s_cbranch_scc1 L_c_wowait_ok')
            self.spin_retry(42, 'L_c_wowait', sleep=1)
            self.L('L_c_wowait_ok')
        for t in range(9):
            A(f'ds_read_b64_tr_b16 v[{68 + 2*t}:{69 + 2*t}], v{T+3} offset:{32 * t}')
        if self.flate == 'h':
            A(f'v_add_u32 v20, {FB}, v{T+7}')
            A('ds_read_b128 v[16:19], v20')
            A('s_mul_i32 s45, s96, 3072')
            A(f's_add_u32 s45, s45, {WS_F}')
            A('s_add_u32 s56, s24, s45')
            A('s_addc_u32 s57, s25, 0')
        if self.flate == 'd':
            A(f'v_add_u32 v36, {FB}, v{T+7}')
            A('ds_read_b128 v[32:35], v36')
            A('s_mul_i32 s45, s96, 3072')
            A(f's_add_u32 s45, s45, {WS_F}')
            A('s_add_u32 s56, s24, s45')
            A('s_addc_u32 s57, s25, 0')
        for r in range(4):
            A(f'v_mov_b32 v{96 + r}, 0')
        A('s_mul_i32 s45, s51, 3072')
        A(f's_add_u32 s45, s45, {WS_Y}')
        A('s_add_u32 s48, s24, s45')
        A('s_addc_u32 s49, s25, 0')
        hoist = self.trim and not self.w2late and self.flate in (False, 'h')
        if hoist:
            A('s_lshl_b32 s45, s26, 6')
            A('v_lshrrev_b32 v10, 2, v1')
            A('v_add_u32 v10, s45, v10')
            A('v_mul_u32_u24 v10, 3072, v10')
            A('v_and_b32 v11, 3, v1')
            A('v_lshl_add_u32 v10, v11, 4, v10')
            for i in range(1, 4):
                A(f'v_add_u32 v{10 + i}, {3072 * 16 * i}, v10')
            A('s_lshl_b32 s58, s97, 6')
            A(f's_add_u32 s58, s58, {WS_Y}')
            A('s_add_u32 s30, s24, s58')
            A('s_addc_u32 s31, s25, 0')
            A(f's_add_u32 s45, s45, {RED}')
            A('v_lshlrev_b32 v118, 4, v1')
            A('v_add_u32 v118, s45, v118')
            A('v_lshrrev_b32 v116, 2, v1')
            A('v_and_b32 v117, 3, v1')
            A('v_lshlrev_b32 v116, 2, v116')
            A('v_lshl_add_u32 v116, v117, 4, v116')
            A(f'v_add_u32 v117, {FFNR}, v116')
            A(f'v_add_u32 v116, {RED}, v116')
        A('s_waitcnt lgkmcnt(0)')
        A('s_barrier')
        self.cstamp(4)
        A(f'ds_read_b64 v[64:65], v{T+2}')
        if self.trim and self.flate in (False, 'h'):
            A('s_mov_b32 s46, 0xffff0000')
            A('s_mov_b32 s47, 0')
            A('s_mov_b32 s58, 0')
            A('s_mov_b32 s59, 0xffff')
            A('s_waitcnt lgkmcnt(0)')
            for t in range(9):
                A(f'v_mfma_f32_16x16x16_bf16 v[{32 + 4*t}:{35 + 4*t}], v[64:65], v[{68 + 2*t}:{69 + 2*t}], 0')
            A('s_nop 2')
            for r in range(3):
                A(f'v_cndmask_b32 v{96 + r}, v{32 + 4*r}, v{44 + 4*r}, s[46:47]')
            A('s_mov_b32 s46, -1')
            A('s_mov_b32 s47, 0xffff')
            for r in range(3):
                A(f'v_cndmask_b32 v{96 + r}, v{96 + r}, v{56 + 4*r}, s[58:59]')
            self.mkchk(96)
        else:
            A('s_mov_b32 s46, 0x00010001')
            A('s_mov_b32 s47, 0x00010001')
            A('s_waitcnt lgkmcnt(0)')
            for t in range(9):
                row = 4 * (t // 3) + t % 3
                A(f'v_cndmask_b32 v{88 + 2*(t&1)}, 0, v64, s[46:47]')
                A(f'v_cndmask_b32 v{89 + 2*(t&1)}, 0, v65, s[46:47]')
                if t < 8:
                    nrow = 4 * ((t + 1) // 3) + (t + 1) % 3
                    A(f's_lshl_b64 s[46:47], s[46:47], {nrow - row}')
                else:
                    A('s_nop 0')
                A('s_nop 0')
                A(f'v_mfma_f32_16x16x16_bf16 v[96:99], v[{88 + 2*(t&1)}:{89 + 2*(t&1)}], v[{68 + 2*t}:{69 + 2*t}], v[96:99]')
            A('s_mov_b32 s46, -1')
            A('s_mov_b32 s47, 0xffff')
            A('s_nop 5')
            self.mkchk(96)
        A('s_mov_b64 exec, s[46:47]')
        A(f'global_store_dwordx4 v{T+7}, v[96:99], s[48:49] sc1')
        if self.flate in ('d', 'h'):
            A(f's_cmp_ge_u32 s96, {NFFN}')
            A('s_cbranch_scc1 L_c_nofd')
            fr = 32 if self.flate == 'd' else 16
            A(f'global_store_dwordx4 v{T+7}, v[{fr}:{fr+3}], s[56:57] sc1')
            self.L('L_c_nofd')
        A('s_mov_b64 exec, -1')
        self.cstamp(5)
        if self.w2late == 'after':
            A('s_cmp_lt_u32 s26, 2')
            A('s_cbranch_scc1 L_c_now2')
            A('s_lshl_b32 s45, s26, 2')
            A(f's_add_u32 s45, s45, {FL + 48}')
            A(f'v_mov_b32 v{T+8}, s45')
            A(f'v_mov_b32 v{T+9}, 1')
            A('s_waitcnt vmcnt(2)')
            A('s_mov_b64 exec, 1')
            A(f'ds_write_b32 v{T+8}, v{T+9}')
            A('s_mov_b64 exec, -1')
            self.L('L_c_now2')
            A(f'ds_read_b128 v[68:71], v{T+6}')
            y_ffn()
        A(f's_cmp_lt_u32 s97, {NRED}')
        A('s_cbranch_scc1 L_c_red')
        self.cflush()
        A('s_endpgm')
        self.L('L_c_red')
        if not hoist:
            A('s_lshl_b32 s45, s26, 6')
            A(f'v_lshrrev_b32 v{T}, 2, v1')
            A(f'v_add_u32 v{T}, s45, v{T}')
            A(f'v_mul_u32_u24 v{T}, 3072, v{T}')
            A(f'v_and_b32 v{T+1}, 3, v1')
            A(f'v_lshl_add_u32 v{T}, v{T+1}, 4, v{T}')
            for i in range(1, 4):
                A(f'v_add_u32 v{T+i}, {3072 * 16 * i}, v{T}')
            A('s_lshl_b32 s45, s97, 6')
            A(f's_add_u32 s58, s45, {WS_Y}')
            A('s_add_u32 s48, s24, s58')
            A('s_addc_u32 s49, s25, 0')
            A(f's_add_u32 s58, s45, {WS_Y2}')
            A('s_add_u32 s56, s24, s58')
            A('s_addc_u32 s57, s25, 0')
        if self.w2late or self.flate == 'd':
            S1, S2 = [106, 107, 108], [109, 110, 111]
            if self.w2late:
                def dl(bs):
                    return [f'global_load_dwordx4 v[{b}:{b+3}], v{T + (i % 4)}, s[{48 if i < 4 else 56}:{49 if i < 4 else 57}] sc1' for i, b in enumerate(bs)]
                self.poll2('L_c_d', dl, [64, 68, 72, 76, 32, 36, 40, 44], [80, 84, 88, 92, 48, 52, 56, 60], 96, 97,
                           sleep=self.tsleep or 3, stag=self.stag, thresh=self.thresh)
                self.cstamp(24)
                for r in range(3):
                    A(f'v_add_f32 v{S1[r]}, v{64 + r}, v{68 + r}')
                    A(f'v_add_f32 v{S2[r]}, v{32 + r}, v{36 + r}')
                    A(f'v_add_f32 v{112 + r}, v{72 + r}, v{76 + r}')
                    A(f'v_add_f32 v{115 + r}, v{40 + r}, v{44 + r}')
                for r in range(3):
                    A(f'v_add_f32 v{S1[r]}, v{S1[r]}, v{112 + r}')
                    A(f'v_add_f32 v{S2[r]}, v{S2[r]}, v{115 + r}')
            else:
                A('s_lshl_b32 s45, s97, 6')
                A(f's_add_u32 s58, s45, {WS_F}')
                A('s_add_u32 s56, s24, s58')
                A('s_addc_u32 s57, s25, 0')
                A('s_lshl_b32 s45, s26, 4')
                A(f'v_lshrrev_b32 v{T+4}, 2, v1')
                A(f'v_add_u32 v{T+4}, s45, v{T+4}')
                A(f'v_mul_u32_u24 v{T+4}, 3072, v{T+4}')
                A(f'v_and_b32 v{T+6}, 3, v1')
                A(f'v_lshl_add_u32 v{T+4}, v{T+6}, 4, v{T+4}')
                A('s_lshl_b32 s45, s26, 1')
                A('s_add_u32 s45, s45, 64')
                A(f'v_bfe_u32 v{T+5}, v1, 2, 1')
                A(f'v_add_u32 v{T+5}, s45, v{T+5}')
                A(f'v_mul_u32_u24 v{T+5}, 3072, v{T+5}')
                A(f'v_lshl_add_u32 v{T+5}, v{T+6}, 4, v{T+5}')
                def dl(bs):
                    return [f'global_load_dwordx4 v[{b}:{b+3}], v{T + i}, s[{48 if i < 4 else 56}:{49 if i < 4 else 57}] sc1' for i, b in enumerate(bs)]
                self.poll2('L_c_d', dl, [64, 68, 72, 76, 32, 36], [80, 84, 88, 92, 48, 52], 96, 97,
                           sleep=self.tsleep or 3, stag=self.stag_d, thresh=self.thresh_d)
                self.cstamp(24)
                A('s_mov_b64 s[46:47], 0xff')
                for r in range(3):
                    A(f'v_cndmask_b32 v{115 + r}, 0, v{36 + r}, s[46:47]')
                    A(f'v_add_f32 v{S1[r]}, v{64 + r}, v{68 + r}')
                    A(f'v_add_f32 v{112 + r}, v{72 + r}, v{76 + r}')
                for r in range(3):
                    A(f'v_add_f32 v{S2[r]}, v{32 + r}, v{115 + r}')
                    A(f'v_add_f32 v{S1[r]}, v{S1[r]}, v{112 + r}')
            self.mrowred('v_add_f32', S1 + S2, (4, 8))
            self.mxrow('v_add_f32', S1 + S2, [112, 113, 114, 115, 116, 117])
            A('v_mov_b32 v112, v109')
            A('v_mov_b32 v113, v110')
            A('v_mov_b32 v114, v111')
            A('v_mov_b32 v104, v106')
            A('v_mov_b32 v105, v107')
            A('v_mov_b32 v106, v108')
            A('s_lshl_b32 s45, s26, 7')
            A(f's_add_u32 s45, s45, {RED}')
            A('v_lshlrev_b32 v118, 5, v1')
            A('v_add_u32 v118, s45, v118')
            A('s_mov_b64 exec, 15')
            A('ds_write_b128 v118, v[104:107]')
            A('ds_write_b128 v118, v[112:115] offset:16')
            A('s_mov_b64 exec, -1')
            A('v_lshrrev_b32 v116, 2, v1')
            A('v_and_b32 v117, 3, v1')
            A('v_lshlrev_b32 v116, 2, v116')
            A('v_lshl_add_u32 v116, v117, 5, v116')
            A(f'v_add_u32 v116, {RED}, v116')
            A('s_mov_b32 s52, s20')
            A('s_mov_b32 s53, s21')
            A('s_waitcnt lgkmcnt(0)')
            self.cstamp(25)
            A('s_barrier')
            self.cstamp(26)
            A('s_cmp_lg_u32 s26, 0')
            A('s_cbranch_scc1 L_end')
            for k in range(4):
                A(f'ds_read_b32 v{100 + k}, v116 offset:{128 * k}')
            for k in range(4):
                A(f'ds_read_b32 v{104 + k}, v116 offset:{128 * k + 16}')
            A('v_lshlrev_b32 v111, 16, v120')
            A('s_waitcnt lgkmcnt(0)')
            A('v_add_f32 v100, v100, v101')
            A('v_add_f32 v104, v104, v105')
            A('v_add_f32 v102, v102, v103')
            A('v_add_f32 v106, v106, v107')
            A('v_add_f32 v100, v100, v102')
            A('v_add_f32 v104, v104, v106')
            A('v_cvt_pk_bf16_f32 v100, v100, v104')
            A('v_lshlrev_b32 v101, 16, v100')
            A('v_and_b32 v104, 0xffff0000, v100')
            A('v_add_f32 v101, v111, v101')
            self.bf16r(101, 101, 102)
            A('v_add_f32 v101, v101, v104')
            A('v_cvt_pk_bf16_f32 v101, v101, v101')
            A('s_mov_b64 exec, 0xfff')
            A('buffer_store_short v101, v121, s[52:55], 0 offen' + self.out_pol)
            A('s_mov_b64 exec, -1')
        else:
            if hoist:
                dl = lambda bs: [f'global_load_dwordx4 v[{b}:{b+3}], v{10+i}, s[30:31] sc1' for i, b in enumerate(bs)]
                assert not self.pm_d
            else:
                dl = lambda bs: [f'global_load_dwordx4 v[{b}:{b+3}], v{T+i}, s[48:49] sc1' for i, b in enumerate(bs)]
            if self.pm_d:
                self.pollm('L_c_d', dl, [[64, 68, 72, 76], [80, 84, 88, 92], [32, 36, 40, 44], [48, 52, 56, 60]][:self.nset_d], 96,
                           stag=self.stag_d, invs=[30, 32, 34, 36])
            else:
                self.poll2('L_c_d', dl,
                           [64, 68, 72, 76], [80, 84, 88, 92], 96, 97, sleep=self.tsleep or 3, stag=self.stag_d, thresh=self.thresh_d,
                           more=([32, 36, 40, 44], [48, 52, 56, 60])[:self.nset_d - 2])
            self.cstamp(24)
            S1 = [106, 107, 108]
            for r in range(3):
                A(f'v_add_f32 v{S1[r]}, v{64 + r}, v{68 + r}')
                A(f'v_add_f32 v{112 + r}, v{72 + r}, v{76 + r}')
            for r in range(3):
                A(f'v_add_f32 v{S1[r]}, v{S1[r]}, v{112 + r}')
            self.mrowred('v_add_f32', S1, (4, 8))
            self.mxrow('v_add_f32', S1, [112, 113, 114])
            if hoist:
                A('s_mov_b64 exec, 15')
                A('ds_write_b96 v118, v[106:108]')
                A('s_mov_b64 exec, -1')
            else:
                A('s_lshl_b32 s45, s26, 6')
                A(f's_add_u32 s45, s45, {RED}')
                A('v_lshlrev_b32 v118, 4, v1')
                A('v_add_u32 v118, s45, v118')
                A('v_mov_b32 v104, v106')
                A('v_mov_b32 v105, v107')
                A('v_mov_b32 v106, v108')
                A('s_mov_b64 exec, 15')
                A('ds_write_b128 v118, v[104:107]')
                A('s_mov_b64 exec, -1')
                A('v_lshrrev_b32 v116, 2, v1')
                A('v_and_b32 v117, 3, v1')
                A('v_lshlrev_b32 v116, 2, v116')
                A('v_lshl_add_u32 v116, v117, 4, v116')
                A(f'v_add_u32 v117, {FFNR}, v116')
                A(f'v_add_u32 v116, {RED}, v116')
            if self.flate != 'h':
                A('ds_read_b32 v119, v117')
            A('s_mov_b32 s52, s20')
            A('s_mov_b32 s53, s21')
            A('s_waitcnt lgkmcnt(0)')
            self.cstamp(25)
            A('s_barrier')
            self.cstamp(26)
            A('s_cmp_lg_u32 s26, 0')
            A('s_cbranch_scc1 L_end')
            if self.flate == 'h':
                A('ds_read_b32 v119, v117')
            for k in range(4):
                A(f'ds_read_b32 v{100 + k}, v116 offset:{64 * k}')
            A('v_lshlrev_b32 v111, 16, v120')
            A('s_waitcnt lgkmcnt(0)')
            A('v_add_f32 v100, v100, v101')
            A('v_add_f32 v102, v102, v103')
            A('v_add_f32 v100, v100, v102')
            A('v_cvt_pk_bf16_f32 v100, v100, v119')
            A('v_lshlrev_b32 v101, 16, v100')
            A('v_and_b32 v104, 0xffff0000, v100')
            A('v_add_f32 v101, v111, v101')
            self.bf16r(101, 101, 102)
            A('v_add_f32 v101, v101, v104')
            A('v_cvt_pk_bf16_f32 v101, v101, v101')
            A('s_mov_b64 exec, 0xfff')
            A('buffer_store_short v101, v121, s[52:55], 0 offen' + self.out_pol)
            A('s_mov_b64 exec, -1')
        self.stamp(6)
        self.flush_stamps(extra=[(29, 64)])
        A('s_cmp_lg_u32 s97, 0')
        A('s_cbranch_scc1 L_end')
        A('v_mov_b32 v106, s29')
        A('v_mov_b32 v107, 0')
        A('s_mov_b64 exec, 1')
        A('global_store_dword v107, v106, s[24:25] sc1')
        A('s_branch L_end')

    def gemv64(self, acc, first, xoff_sreg):
        A = self.A
        NB = 5
        A(f'v_add_u32 v21, s{xoff_sreg}, v20')
        def rd(s):
            b = 40 + 10 * (s % NB)
            A(f'ds_read_b64 v[{b}:{b+1}], v21 offset:{32 * s}')
            for t in range(4):
                A(f'ds_read_b64_tr_b16 v[{b+2+2*t}:{b+3+2*t}], v{16 + t} offset:{2048 * s}')
        NP = 3
        for s in range(NP):
            rd(s)
        for s in range(9):
            left = min(9, s + NP) - s - 1
            A(f's_waitcnt lgkmcnt({5 * left})')
            b = 40 + 10 * (s % NB)
            for t in range(4):
                c = '0' if (first and s == 0) else f'v[{acc + 4*t}:{acc + 4*t + 3}]'
                A(f'v_mfma_f32_16x16x16_bf16 v[{acc + 4*t}:{acc + 4*t + 3}], v[{b}:{b+1}], v[{b+2+2*t}:{b+3+2*t}], {c}')
            if s + NP < 9:
                rd(s + NP)

    def dma_cols(self, sbase, pitch, voff, win=None):
        A = self.A
        A(f's_mov_b32 s36, s{sbase}')
        A(f's_mov_b32 s37, s{sbase+1}')
        for s in range(18):
            A(f's_mov_b32 m0, {STG + 1024 * s}')
            if win:
                A(f's_waitcnt vmcnt({win - 1})')
            else:
                A('s_nop 0')
            A(f'global_load_lds_dwordx4 v{voff}, s[36:37]' + ('' if 'colplain' in self.exp else ' nt'))
            if s < 17:
                A(f's_add_u32 s36, s36, {8 * pitch}')
                A('s_addc_u32 s37, s37, 0')

    def dma_rows(self, sbase, win=None):
        A = self.A
        A(f's_mov_b32 s36, s{sbase}')
        A(f's_mov_b32 s37, s{sbase+1}')
        for s in range(18):
            if s % 4 == 0:
                A(f's_mov_b32 m0, {STG + 1024 * s}')
                A('s_nop 0')
            if win:
                A(f's_waitcnt vmcnt({win - 1})')
            A(f'global_load_lds_dwordx4 v23, s[36:37] offset:{1024 * (s % 4)}' + ('' if 'rowplain' in self.exp else ' nt'))
            if s % 4 == 3:
                A('s_add_u32 s36, s36, 4096')
                A('s_addc_u32 s37, s37, 0')

    def f_gather(self, name, sleep, probe, warm=False):
        A = self.A
        A('s_lshl_b32 s40, s97, 6')
        A(f's_add_u32 s40, s40, {WS_F}')
        A('s_add_u32 s56, s24, s40')
        A('s_addc_u32 s57, s25, 0')
        A('v_lshrrev_b32 v30, 2, v1')
        A('v_mul_u32_u24 v30, 3072, v30')
        A('v_and_b32 v31, 3, v1')
        A('v_lshl_add_u32 v30, v31, 4, v30')
        for i in range(1, 5):
            A(f'v_add_u32 v{30 + i}, {3072 * 16 * i}, v30')
        A('s_mov_b32 s46, 0')
        A('s_mov_b32 s47, -1')
        A(f'v_add_u32 v35, {-3072 * 8 & 0xffffffff:#x}, v34')
        A('v_cndmask_b32 v34, v34, v35, s[46:47]')
        loads = [f'global_load_dwordx4 v[{40 + 4*i}:{43 + 4*i}], v{30 + i}, s[56:57] sc1' for i in range(5)]
        if warm:
            for l in loads:
                A(l)
            return
        self.poll(name, loads, lambda: self.chk3([40, 44, 48, 52, 56], 60, 61), sleep=sleep, probe=probe)
        A('s_mov_b32 s46, 0')
        A('s_mov_b32 s47, -1')
        for r in range(3):
            A(f'v_cndmask_b32 v{56 + r}, v{56 + r}, 0, s[46:47]')
        for r in range(3):
            A(f'v_add_f32 v{40 + r}, v{40 + r}, v{44 + r}')
            A(f'v_add_f32 v{48 + r}, v{48 + r}, v{52 + r}')
            A(f'v_add_f32 v{40 + r}, v{40 + r}, v{56 + r}')
        for r in range(3):
            A(f'v_add_f32 v{40 + r}, v{40 + r}, v{48 + r}')
        self.mrowred('v_add_f32', [40, 41, 42], (4, 8))
        self.mxrow('v_add_f32', [40, 41, 42], [44, 45, 46])
        A('v_lshlrev_b32 v34, 4, v1')
        A(f'v_add_u32 v34, {FFNR}, v34')
        A('s_mov_b64 exec, 15')
        A('ds_write_b128 v34, v[40:43]')
        A('s_mov_b64 exec, -1')

    def build_table(self, first):
        A = self.A
        US, UB, lb = self.US, self.UB, self.lblk
        c = 4 * ((UB - US) if first else (64 - UB))
        zk = 4 * (US if first else UB)
        tag = 'a' if first else 'b'
        if first:
            A('s_mov_b32 s55, 0')
        A(f'v_sub_u32 v49, {c}, v46')
        A(f'v_subrev_u32 v50, {c}, v46')
        A('v_max_i32 v49, 0, v49')
        A('v_max_i32 v50, 0, v50')
        A('v_mov_b32 v51, v49')
        A('v_mov_b32 v52, v50')
        for sh in (1, 2, 4, 8):
            A('s_nop 0')
            A(f'v_add_u32_dpp v51, v51, v51 row_shr:{sh} row_mask:0xf bank_mask:0xf bound_ctrl:0')
            A(f'v_add_u32_dpp v52, v52, v52 row_shr:{sh} row_mask:0xf bank_mask:0xf bound_ctrl:0')
        A('v_sub_u32 v53, v51, v49')
        A('v_sub_u32 v52, v52, v50')
        A('s_nop 0')
        A('v_readlane_b32 s50, v46, s28')
        A('v_readlane_b32 s51, v52, s28')
        G = [30, 31, 32, 33, 34, 35, 36, 37, 40, 41, 43, 44, 45, 46, 47, 53]
        for i in range(16):
            A(f'v_readlane_b32 s{G[i]}, v51, {i}')
        A(f's_mul_i32 s54, s27, {self.rot * 64}')
        A(f's_sub_u32 s51, s51, {c}')
        A('s_mov_b32 s52, 0')
        self.L(f'L_h_tb{tag}')
        A('v_add_u32 v54, s52, v1')
        A('v_add_u32 v55, s51, v54')
        A('v_mov_b32 v56, 0')
        prs = ['vcc', 's[58:59]', 's[60:61]', 's[62:63]']
        for i0 in range(0, 16, 4):
            for q in range(4):
                A(f'v_cmp_le_u32 {prs[q]}, s{G[i0 + q]}, v55')
            for q in range(4):
                A(f'v_addc_co_u32 v56, {prs[q]}, 0, v56, {prs[q]}')
        A('v_min_u32 v56, 15, v56')
        A('v_lshlrev_b32 v57, 2, v56')
        A('ds_bpermute_b32 v58, v57, v53')
        A('ds_bpermute_b32 v59, v57, v46')
        A(f'v_cmp_gt_u32 vcc, {c}, v54')
        A('v_mov_b32 v57, s28')
        A('s_waitcnt lgkmcnt(0)')
        A('v_add_u32 v59, v59, v55')
        A('v_sub_u32 v59, v59, v58')
        A('v_cndmask_b32 v56, v56, v57, vcc')
        A('v_cndmask_b32 v59, v59, v54, vcc')
        A(f'v_add_u32 v59, {zk}, v59')
        A(f'v_lshrrev_b32 v57, {2 + lb}, v59')
        A(f'v_lshlrev_b32 v57, {6 + lb}, v57')
        if self.tmap == 'x2':
            A('v_and_b32 v58, 7, v56')
            A('v_lshrrev_b32 v56, 3, v56')
            A('v_lshl_add_u32 v56, v58, 1, v56')
        A(f'v_lshl_add_u32 v57, v56, {2 + lb}, v57')
        A(f'v_and_b32 v59, {(4 << lb) - 1}, v59')
        A('v_add_u32 v57, v57, v59')
        A('v_add_u32 v57, s54, v57')
        A('v_and_b32 v57, 4095, v57')
        A('v_add_u32 v57, 1, v57')
        if not first:
            A(f'v_add_u32 v58, {self.xfast}, v54')
            A('v_cmp_le_u32 vcc, s50, v58')
            A('v_cmp_le_u32 s[60:61], s50, v54')
            A('v_or_b32 v58, 0x40000000, v57')
            A('v_bfrev_b32 v59, 1')
            A('v_cndmask_b32 v57, v57, v58, vcc')
            A('v_cndmask_b32 v57, v57, v59, s[60:61]')
            A('s_add_u32 s56, s50, 4')
        else:
            A('s_mov_b32 s56, s50')
        A(f's_min_u32 s56, s56, {c * 16 + 4}')
        A('v_add_u32 v58, s55, v54')
        A('v_lshlrev_b32 v58, 2, v58')
        A(f'v_add_u32 v58, {TBL}, v58')
        A('v_cmp_gt_u32 vcc, s56, v54')
        A('s_and_saveexec_b64 s[58:59], vcc')
        A('ds_write_b32 v58, v57')
        A('s_mov_b64 exec, -1')
        A('s_add_u32 s52, s52, 64')
        A('s_cmp_lt_u32 s52, s56')
        A(f's_cbranch_scc1 L_h_tb{tag}')
        if first:
            A('s_mov_b32 s55, s50')
        A('s_add_u32 s50, s50, 1')

    def tail_warm(self):
        A = self.A
        if 'nowarm' in self.exp:
            return
        if True:
            def own(base, stride, n, mode):
                A('s_lshl_b32 s40, s27, 4')
                A('s_add_u32 s40, s40, s28')
                A(f's_mul_i32 s40, s40, {stride}')
                A(f's_add_u32 s40, s40, {base}')
                A('s_add_u32 s56, s24, s40')
                A('s_addc_u32 s57, s25, 0')
                for i in range(n):
                    if mode == 'selfld':
                        A(f'global_load_dwordx4 v[{48 + 4*i}:{51 + 4*i}], v23, s[56:57] offset:{1024 * i} sc1')
                    else:
                        A(f'global_store_dwordx4 v23, v[60:63], s[56:57] offset:{1024 * i} sc1')
            if 'selfst' in (self.warmP, self.warmY):
                for r in range(60, 64):
                    A(f'v_mov_b32 v{r}, 0')
            if self.warmP == 'poll' and 'nowarmp' not in self.exp:
                for i in range(2):
                    A(f'global_load_dwordx4 v[{40 + 4*i}:{43 + 4*i}], v{34 + i}, s[48:49] sc1')
            elif self.warmP in ('selfld', 'selfst'):
                own(WS_P, 2048, 2, self.warmP)
            if self.warmY in ('selfld', 'selfst'):
                own(WS_Y, 3072, 3, self.warmY)
            if self.flate == 'h':
                A(f's_cmp_ge_u32 s96, {NFFN}')
                A('s_cbranch_scc1 L_h_wf')
                A('s_mul_i32 s40, s96, 3072')
                A(f's_add_u32 s40, s40, {WS_F}')
                A('s_add_u32 s56, s24, s40')
                A('s_addc_u32 s57, s25, 0')
                for i in range(3):
                    A(f'global_load_dwordx4 v[{48 + 4*i}:{51 + 4*i}], v23, s[56:57] offset:{1024 * i} sc1')
                self.L('L_h_wf')
            if self.warmY != 'poll' and self.flate in (False, 'h'):
                A('s_waitcnt vmcnt(0)')
                return
            if 'nowarmy' in self.exp or self.warmY != 'poll':
                A('s_branch L_h_wdone')
            A(f's_cmp_ge_u32 s97, {NRED}')
            A('s_cbranch_scc1 L_h_wdone')
            if self.flate and 'nowarmf' not in self.exp:
                for r in range(6):
                    A(f'v_mov_b32 v{64 + r}, v{30 + r}')
                A('v_mov_b32 v70, v36')
                A('v_mov_b32 v71, v37')
                self.f_gather(None, 0, False, warm=True)
                A('s_waitcnt vmcnt(0)')
                for r in range(6):
                    A(f'v_mov_b32 v{30 + r}, v{64 + r}')
            A('s_lshl_b32 s40, s97, 6')
            A(f's_add_u32 s40, s40, {WS_Y}')
            A('s_add_u32 s56, s24, s40')
            A('s_addc_u32 s57, s25, 0')
            A('v_lshrrev_b32 v38, 2, v1')
            A('v_mul_u32_u24 v38, 3072, v38')
            A('v_and_b32 v39, 3, v1')
            A('v_lshl_add_u32 v38, v39, 4, v38')
            A(f's_add_u32 s40, s40, {WS_Y2 - WS_Y}')
            A('s_add_u32 s50, s24, s40')
            A('s_addc_u32 s51, s25, 0')
            for i in range(16):
                A(f'global_load_dwordx4 v[{48 + 4*(i%4)}:{51 + 4*(i%4)}], v38, s[56:57] sc1')
                if self.w2late:
                    A(f'global_load_dwordx4 v[{64 + 4*(i%4)}:{67 + 4*(i%4)}], v38, s[50:51] sc1')
                A(f'v_add_u32 v38, {3072 * 16}, v38')
            self.L('L_h_wdone')
            A('s_waitcnt vmcnt(0)')

    def helper(self):
        A = self.A
        FW = self.ffn_win
        self.L('L_helper')
        self.pending = []
        A('s_memrealtime s[98:99]')
        A('s_setprio 3')
        if self.fastpro:
            A('v_mov_b32 v2, 0')
            A('s_mov_b32 s54, 1152')
            A('s_mov_b32 s55, 0x00020000')
            A('v_lshlrev_b32 v4, 1, v1')
            A('s_lshr_b32 s50, s2, 2')
            A('s_and_b32 s51, s2, 3')
            A('s_lshl_b32 s40, s50, 7')
            A(f's_mul_i32 s58, s51, {144 * 8192}')
            A('s_add_u32 s40, s40, s58')
            A('v_lshrrev_b32 v5, 3, v1')
            A('v_and_b32 v6, 7, v1')
            A('v_lshrrev_b32 v7, 4, v1')
            A('v_lshlrev_b32 v7, 1, v7')
            A('v_xor_b32 v6, v6, v7')
            A('v_lshlrev_b32 v6, 4, v6')
            A('v_lshl_add_u32 v22, v5, 13, v6')
            A('v_mul_u32_u24 v25, 9216, v5')
            A('v_add_u32 v25, v25, v6')
            A('v_lshlrev_b32 v23, 4, v1')
            A('s_waitcnt lgkmcnt(0)')
            A('s_mov_b32 s52, s4')
            A('s_mov_b32 s53, s5')
            for k in range(9):
                A(f'buffer_load_ushort v{30 + k}, v4, s[52:55], 0 offen offset:{128 * k}')
            A('global_load_dword v3, v2, s[24:25] sc1')
            A('s_add_u32 s56, s10, s40')
            A('s_addc_u32 s57, s11, 0')
            self.stamp(0)
            if self.layout3 and self.bfirst != 'wq':
                A('s_barrier')
            assert self.share
        else:
            self.stamp(0)
            if 'nohelper' in self.exp:
                self.flush_stamps()
                A('s_endpgm')
            A('v_mov_b32 v2, 0')
            A('global_load_dword v3, v2, s[24:25] sc1')
            A('s_and_b32 s40, s2, 15')
            A('s_cmp_lg_u32 s40, 0')
            A('s_cbranch_scc1 L_h_nozero')
            A('s_lshr_b32 s40, s2, 4')
            A(f's_mul_i32 s40, s40, {self.cstride}')
            A(f's_add_u32 s40, s40, {WS_CNT}')
            A('v_mov_b32 v5, s40')
            A('s_mov_b64 exec, 1')
            A('global_store_dword v5, v2, s[24:25] sc1')
            A('s_mov_b64 exec, -1')
            self.L('L_h_nozero')
            A('s_mov_b32 s52, s4')
            A('s_mov_b32 s53, s5')
            A('s_mov_b32 s54, 1152')
            A('s_mov_b32 s55, 0x00020000')
            A('v_lshlrev_b32 v4, 1, v1')
            for k in range(9):
                A(f'buffer_load_ushort v{30 + k}, v4, s[52:55], 0 offen offset:{128 * k}')
            A('s_lshr_b32 s50, s2, 2')
            A('s_and_b32 s51, s2, 3')
            A('s_lshl_b32 s40, s50, 7')
            A(f's_mul_i32 s58, s51, {144 * 8192}')
            A('s_add_u32 s40, s40, s58')
            A('s_add_u32 s56, s10, s40')
            A('s_addc_u32 s57, s11, 0')
            A('v_lshrrev_b32 v5, 3, v1')
            A('v_and_b32 v6, 7, v1')
            A('v_lshrrev_b32 v7, 4, v1')
            A('v_lshlrev_b32 v7, 1, v7')
            A('v_xor_b32 v6, v6, v7')
            A('v_lshlrev_b32 v6, 4, v6')
            A('v_lshl_add_u32 v22, v5, 13, v6')
            A('v_mul_u32_u24 v25, 9216, v5')
            A('v_add_u32 v25, v25, v6')
            A('v_lshlrev_b32 v23, 4, v1')
        if 'wqlin' in self.exp:
            A('s_mul_i32 s40, s2, 18432')
            A('s_add_u32 s56, s10, s40')
            A('s_addc_u32 s57, s11, 0')
            self.dma_rows(56)
        elif 'nowq' not in self.exp:
            self.dma_cols(56, 8192, 22)
        if self.hfirst or (self.fastpro and not self.layout3) or (self.layout3 and self.bfirst == 'wq'):
            A('s_barrier')
        if self.layout3:
            self.ids()
        A('s_lshl_b32 s40, s27, 13')
        A(f's_add_u32 s40, s40, {WS_Q}')
        A('s_add_u32 s62, s24, s40')
        A('s_addc_u32 s63, s25, 0')
        A('v_lshrrev_b32 v14, 5, v1')
        A('v_lshlrev_b32 v14, 11, v14')
        A('v_and_b32 v15, 31, v1')
        A('v_lshl_add_u32 v14, v15, 4, v14')
        A('v_add_u32 v15, 4096, v14')
        nwarm = 0
        if 'qwarm' in self.exp:
            for H in range(2):
                for kp in range(4):
                    A(f'global_load_dwordx4 v[{96 + 4*kp}:{99 + 4*kp}], v{14 + H}, s[62:63] offset:{512 * kp} sc1')
                    nwarm += 1
        A('v_lshrrev_b32 v26, 4, v1')
        A('v_and_b32 v27, 15, v1')
        A('v_lshlrev_b32 v20, 3, v26')
        A(f'v_add_u32 v20, {XN}, v20')
        A('v_lshrrev_b32 v28, 2, v27')
        A('v_lshl_add_u32 v28, v26, 2, v28')
        A('v_and_b32 v29, 3, v27')
        A('v_lshlrev_b32 v8, 7, v28')
        A('v_lshl_add_u32 v8, v29, 3, v8')
        A(f'v_add_u32 v8, {STG}, v8')
        A('v_lshrrev_b32 v9, 1, v28')
        A('v_and_b32 v9, 3, v9')
        for t in range(4):
            A(f'v_xor_b32 v10, {t}, v9')
            A(f'v_lshl_add_u32 v{16 + t}, v10, 5, v8')
        A('v_mul_u32_u24 v24, 1152, v28')
        A('v_lshl_add_u32 v24, v29, 3, v24')
        A(f'v_add_u32 v24, {STG}, v24')
        nq = 0 if 'nowq' in self.exp else 18
        A(f's_waitcnt vmcnt({nq + nwarm})')
        self.stamp(11)
        A('v_readfirstlane_b32 s29, v3')
        X = 30
        for k in range(9):
            A(f'v_lshlrev_b32 v{X + k}, 16, v{X + k}')
        A('s_add_u32 s29, s29, 1')
        A('s_bitset1_b32 s29, 31')
        A(f'v_add_f32 v10, v{X}, v{X+1}')
        for k in range(2, 9):
            A(f'v_add_f32 v10, v10, v{X + k}')
        self.wavesum(10, 11)
        A(f'v_mul_f32 v10, {0x3AE38E39:#x}, v10')
        for k in range(9):
            A(f'v_sub_f32 v{40 + k}, v{X + k}, v10')
        A('v_mul_f32 v12, v40, v40')
        for k in range(1, 9):
            A(f'v_fmac_f32 v12, v{40 + k}, v{40 + k}')
        self.wavesum(12, 11)
        A(f'v_mul_f32 v12, {0x3AE38E39:#x}, v12')
        self.bf16r(10, 10, 11)
        self.bf16r(12, 12, 11)
        A(f'v_add_f32 v12, {0x3727C5AC:#x}, v12')
        self.bf16r(12, 12, 11)
        A('v_sqrt_f32 v12, v12')
        A('s_nop 0')
        self.bf16r(12, 12, 11)
        A('v_rcp_f32 v13, v12')
        for k in range(9):
            A(f'v_sub_f32 v{40 + k}, v{X + k}, v10')
        for k in range(0, 9, 2):
            k2 = min(k + 1, 8)
            A(f'v_cvt_pk_bf16_f32 v{50 + k // 2}, v{40 + k}, v{40 + k2}')
        for k in range(9):
            if k % 2 == 0:
                A(f'v_lshlrev_b32 v{40 + k}, 16, v{50 + k // 2}')
            else:
                A(f'v_and_b32 v{40 + k}, 0xffff0000, v{50 + k // 2}')
        for k in range(9):
            A(f'v_mul_f32 v{60 + k}, v{40 + k}, v13')
            A(f'v_fma_f32 v{70 + k}, -v{60 + k}, v12, v{40 + k}')
            A(f'v_fma_f32 v{60 + k}, v{70 + k}, v13, v{60 + k}')
        for k in range(0, 9, 2):
            k2 = min(k + 1, 8)
            A(f'v_cvt_pk_bf16_f32 v{50 + k // 2}, v{60 + k}, v{60 + k2}')
        A(f'v_add_u32 v11, {XN}, v4')
        for k in range(9):
            op = 'ds_write_b16' if k % 2 == 0 else 'ds_write_b16_d16_hi'
            A(f'{op} v11, v{50 + k // 2} offset:{128 * k}')
        A('s_mul_i32 s58, s51, 288')
        self.stamp(12)
        A('s_waitcnt vmcnt(0) lgkmcnt(0)')
        self.stamp(13)
        self.gemv64(96, True, 58)
        A('s_nop 7')
        self.stamp(10)
        A('s_mov_b32 s46, 0xffff0000')
        A('s_mov_b32 s47, 0')
        A('v_cndmask_b32 v32, v96, v104, s[46:47]')
        A('v_cndmask_b32 v34, v100, v108, s[46:47]')
        A('v_mov_b32 v33, s29')
        A('v_mov_b32 v35, s29')
        A('s_lshl_b32 s40, s2, 9')
        A(f's_add_u32 s40, s40, {WS_Q}')
        A('s_add_u32 s48, s24, s40')
        A('s_addc_u32 s49, s25, 0')
        A('s_mov_b32 s46, -1')
        A('s_mov_b64 exec, s[46:47]')
        A('global_store_dwordx4 v23, v[32:35], s[48:49] sc1')
        A('s_mov_b64 exec, -1')
        A('s_mov_b32 s48, s62')
        A('s_mov_b32 s49, s63')
        A('v_mov_b32 v30, v14')
        A('v_mov_b32 v31, v15')
        loads = []
        for H in range(2):
            for kp in range(4):
                b = 40 + 16 * H + 4 * kp
                loads.append(f'global_load_dwordx4 v[{b}:{b+3}], v{30 + H}, s[48:49] offset:{512 * kp} sc1')
        def qchk():
            A('v_xor_b32 v72, s29, v41')
            for q in range(43, 72, 2):
                A(f'v_xor_b32 v73, s29, v{q}')
                A('v_or_b32 v72, v72, v73')
            return 72
        self.poll('L_h_q', loads, qchk, sleep=1, probe=('qsweep' not in self.exp))
        self.stamp(14)
        for H in range(2):
            b = 40 + 16 * H
            for e in (0, 2):
                A(f'v_add_f32 v{b+e}, v{b+e}, v{b+4+e}')
                A(f'v_add_f32 v{b+8+e}, v{b+8+e}, v{b+12+e}')
                A(f'v_add_f32 v{b+e}, v{b+e}, v{b+8+e}')
            A(f'v_cvt_pk_bf16_f32 v{74 + H}, v{b}, v{b+2}')
        A('v_lshrrev_b32 v32, 4, v1')
        A('v_lshlrev_b32 v32, 6, v32')
        A('v_lshl_add_u32 v32, v27, 1, v32')
        A(f'v_add_u32 v32, {QL}, v32')
        for H in range(2):
            A(f'ds_write_b16 v32, v{74 + H} offset:{256 * H}')
            A(f'ds_write_b16_d16_hi v32, v{74 + H} offset:{256 * H + 32}')
        A('v_mov_b32 v42, 1')
        A('v_mov_b32 v43, s29')
        A(f'v_mov_b32 v41, {FL}')
        A('s_waitcnt lgkmcnt(0)')
        A('s_mov_b64 exec, 1')
        A('ds_write_b64 v41, v[42:43] offset:32')
        A('s_mov_b64 exec, -1')
        A('s_setprio 0')
        A(f's_cmp_ge_u32 s96, {NFFN}')
        A('s_cbranch_scc1 L_h_ffn_done')
        if 'noffn' in self.exp:
            A('s_branch L_h_ffn_done')
        if self.ffnboost:
            A(f'v_mov_b32 v30, {FL}')
            A('v_mov_b32 v31, 1')
            A('s_mov_b64 exec, 1')
            A('ds_write_b32 v30, v31 offset:48')
            A('s_mov_b64 exec, -1')
        A('s_mov_b32 s59, 0')
        self.L('L_h_f1')
        A('s_lshl_b32 s40, s96, 7')
        A(f's_mul_i32 s58, s59, {144 * 9216}')
        A('s_add_u32 s40, s40, s58')
        A('s_add_u32 s56, s16, s40')
        A('s_addc_u32 s57, s17, 0')
        if 'w1lin' in self.exp:
            A('s_lshl_b32 s40, s96, 2')
            A('s_add_u32 s40, s40, s59')
            A('s_mul_i32 s40, s40, 18432')
            A('s_add_u32 s56, s16, s40')
            A('s_addc_u32 s57, s17, 0')
            self.dma_rows(56, win=FW)
        elif 'now1' not in self.exp:
            self.dma_cols(56, 9216, 25, win=FW)
        A('s_mul_i32 s58, s59, 288')
        A('s_waitcnt vmcnt(0)')
        A('s_cmp_lg_u32 s59, 0')
        A('s_cbranch_scc1 L_h_f1b')
        for r in range(16):
            A(f'v_mov_b32 v{96 + r}, 0')
        self.L('L_h_f1b')
        A('s_nop 1')
        self.gemv64(96, False, 58)
        A('s_add_u32 s59, s59, 1')
        A('s_cmp_lt_u32 s59, 4')
        A('s_cbranch_scc1 L_h_f1')
        A('s_nop 7')
        A('v_lshlrev_b32 v34, 1, v27')
        A(f'v_add_u32 v34, {OB}, v34')
        for t in range(4):
            self.bf16r(30, 96 + 4 * t, 31)
            A(f'v_mul_f32 v31, {0xBFB8AA3B:#x}, v30')
            A('v_exp_f32 v31, v31')
            A('s_nop 0')
            A('v_add_f32 v31, 1.0, v31')
            A('v_rcp_f32 v32, v31')
            A('s_nop 0')
            A('v_mul_f32 v33, v30, v32')
            A('v_cvt_pk_bf16_f32 v33, v33, v33')
            A('s_mov_b64 exec, 0xffff')
            A(f'ds_write_b16 v34, v33 offset:{32 * t}')
            A('s_mov_b64 exec, -1')
        if self.w2late:
            A('v_lshlrev_b32 v35, 2, v1')
            A(f'v_add_u32 v36, {OB}, v35')
            A('s_waitcnt lgkmcnt(0)')
            A('ds_read_b32 v32, v36')
            A('v_mov_b32 v33, s29')
            A('s_lshl_b32 s40, s96, 8')
            A(f's_add_u32 s40, s40, {WS_A}')
            A('s_add_u32 s48, s24, s40')
            A('s_addc_u32 s49, s25, 0')
            A('v_lshlrev_b32 v35, 3, v1')
            A('s_mov_b32 s46, -1')
            A('s_mov_b32 s47, 0')
            A('s_waitcnt lgkmcnt(0)')
            A('s_mov_b64 exec, s[46:47]')
            A('global_store_dwordx2 v35, v[32:33], s[48:49] sc1')
            A('s_mov_b64 exec, -1')
            if self.ffnboost:
                A(f'v_mov_b32 v30, {FL}')
                A('v_mov_b32 v31, 0')
                A('s_mov_b64 exec, 1')
                A('ds_write_b32 v30, v31 offset:48')
                A('s_mov_b64 exec, -1')
            self.L('L_h_ffn_done')
            A(f'v_mov_b32 v34, {FL}')
            self.spin_begin(42)
            self.L('L_h_fwait')
            A('ds_read_b32 v35, v34 offset:16')
            A('s_waitcnt lgkmcnt(0)')
            A('v_readfirstlane_b32 s40, v35')
            A(f's_cmp_ge_u32 s40, {self.a_at}')
            A('s_cbranch_scc1 L_h_fgo')
            self.spin_retry(42, 'L_h_fwait', sleep=64)
            self.L('L_h_fgo')
            A('s_lshl_b32 s40, s27, 4')
            A('s_add_u32 s40, s40, s28')
            A('s_mul_i32 s40, s40, 72')
            A(f's_add_u32 s40, s40, {WS_A}')
            A('s_add_u32 s48, s24, s40')
            A('s_addc_u32 s49, s25, 0')
            A('v_min_u32 v30, 8, v1')
            A('v_lshlrev_b32 v30, 3, v30')
            if 'noffn' not in self.exp:
                def achk():
                    A('v_xor_b32 v34, s29, v33')
                    return 34
                self.poll('L_h_a', ['global_load_dwordx2 v[32:33], v30, s[48:49] sc1'], achk, sleep=32, probe=False)
            A('v_cmp_gt_u32 vcc, 9, v1')
            A('s_nop 1')
            A('v_cndmask_b32 v32, 0, v32, vcc')
            A('v_lshlrev_b32 v35, 2, v1')
            A(f'v_add_u32 v35, {AB}, v35')
            A('s_mov_b64 exec, 0xffff')
            A('ds_write_b32 v35, v32')
            A('s_mov_b64 exec, -1')
        else:
            for r in range(12):
                A(f'v_mov_b32 v{112 + r}, 0')
            A('v_lshlrev_b32 v35, 3, v26')
            A(f'v_add_u32 v35, {OB}, v35')
            A('s_mov_b32 s59, 0')
            self.L('L_h_f2')
            A('s_lshl_b32 s40, s96, 2')
            A('s_add_u32 s40, s40, s59')
            A('s_mul_i32 s40, s40, 18432')
            A('s_add_u32 s56, s18, s40')
            A('s_addc_u32 s57, s19, 0')
            if 'now2' not in self.exp:
                self.dma_rows(56, win=FW)
            A('s_lshl_b32 s40, s59, 5')
            A('v_add_u32 v38, s40, v35')
            A('s_waitcnt lgkmcnt(0)')
            A('ds_read_b64 v[36:37], v38')
            A('s_waitcnt vmcnt(0) lgkmcnt(0)')
            for t0 in range(0, 36, 12):
                for t in range(t0, t0 + 12):
                    A(f'ds_read_b64_tr_b16 v[{40 + 2*(t - t0)}:{41 + 2*(t - t0)}], v24 offset:{32 * t}')
                A('s_waitcnt lgkmcnt(0)')
                for t in range(t0, t0 + 12):
                    grp, r = t // 3, t % 3
                    a = 112 + 4 * (grp // 4)
                    row = 4 * (grp % 4) + r
                    A(f's_mov_b32 s46, {0x00010001 << row:#x}')
                    A(f's_mov_b32 s47, {0x00010001 << row:#x}')
                    A(f'v_cndmask_b32 v{88 + 2*(t&1)}, 0, v36, s[46:47]')
                    A(f'v_cndmask_b32 v{89 + 2*(t&1)}, 0, v37, s[46:47]')
                    A('s_nop 1')
                    A(f'v_mfma_f32_16x16x16_bf16 v[{a}:{a+3}], v[{88 + 2*(t&1)}:{89 + 2*(t&1)}], v[{40 + 2*(t - t0)}:{41 + 2*(t - t0)}], v[{a}:{a+3}]')
            A('s_add_u32 s59, s59, 1')
            A('s_cmp_lt_u32 s59, 4')
            A('s_cbranch_scc1 L_h_f2')
            A('s_nop 7')
            if self.flate:
                A(f'v_add_u32 v30, {FB}, v23')
                for a in range(3):
                    self.mkchk(112 + 4 * a)
                    A(f'ds_write_b128 v30, v[{112 + 4*a}:{115 + 4*a}] offset:{1024 * a}')
            else:
                A('s_mul_i32 s40, s96, 3072')
                A(f's_add_u32 s40, s40, {WS_F}')
                A('s_add_u32 s48, s24, s40')
                A('s_addc_u32 s49, s25, 0')
                for a in range(3):
                    self.mkchk(112 + 4 * a)
                    if 'nofpub' not in self.exp:
                        A(f'global_store_dwordx4 v23, v[{112 + 4*a}:{115 + 4*a}], s[48:49] offset:{1024 * a} sc1')
            if self.ffnboost:
                A(f'v_mov_b32 v30, {FL}')
                A('v_mov_b32 v31, 0')
                A('s_mov_b64 exec, 1')
                A('ds_write_b32 v30, v31 offset:48')
                A('s_mov_b64 exec, -1')
            self.L('L_h_ffn_done')
            if not self.flate:
                A(f's_cmp_ge_u32 s97, {NRED}')
                A('s_cbranch_scc1 L_h_tail')
                if 'nofgather' in self.exp or 'noffn' in self.exp:
                    A('s_branch L_h_tail')
                A(f'v_mov_b32 v34, {FL}')
                self.spin_begin(42)
                self.L('L_h_fwait')
                A('ds_read_b32 v35, v34 offset:16')
                A('s_waitcnt lgkmcnt(0)')
                A('v_readfirstlane_b32 s40, v35')
                A(f's_cmp_ge_u32 s40, {self.nunits // 2}')
                A('s_cbranch_scc1 L_h_fgo')
                self.spin_retry(42, 'L_h_fwait', sleep=64)
                self.L('L_h_fgo')
                self.f_gather('L_h_f', sleep=32, probe=True)
        self.L('L_h_tail')
        A('s_waitcnt vmcnt(0) lgkmcnt(0)')
        self.stamp(7)
        A('v_lshrrev_b32 v30, 3, v1')
        A('v_and_b32 v31, 7, v1')
        A('v_min_u32 v32, 5, v31')
        A('s_lshl_b32 s58, s27, 15')
        A('v_lshlrev_b32 v33, 11, v30')
        step8 = 8 * 2048
        A('s_lshl_b32 s40, s28, 7')
        A('s_add_u32 s58, s58, s40')
        A(f's_add_u32 s58, s58, {WS_P}')
        A('s_add_u32 s48, s24, s58')
        A('s_addc_u32 s49, s25, 0')
        A('v_lshl_add_u32 v34, v32, 4, v33')
        A(f'v_add_u32 v35, {step8}, v34')
        A('v_add_u32 v36, 80, v33')
        A(f'v_add_u32 v37, {step8}, v36')
        if not self.warm_late:
            self.tail_warm()
        if self.layout3 and self.pads and self.hchain:
            self.o.append('@CHAIN2')
        US, LA, NI = self.US, self.LA, self.NI
        A(f'v_mov_b32 v38, {FL}')
        def put_id(kreg, valreg_v):
            A(f's_lshl_b32 s40, s{kreg}, 2')
            A(f's_add_u32 s40, s40, {IDS}')
            A('v_mov_b32 v39, s40')
            A('s_mov_b64 exec, 1')
            A(f'ds_write_b32 v39, v{valreg_v}')
            A('s_mov_b64 exec, -1')
        def wait_tk(val, lab, sleep=1):
            self.spin_begin(42)
            self.L(lab)
            A('ds_read_b32 v44, v38 offset:52')
            A('s_waitcnt lgkmcnt(0)')
            A('v_readfirstlane_b32 s40, v44')
            A(f's_cmp_ge_u32 s40, {val}')
            A(f's_cbranch_scc1 {lab}_ok')
            self.spin_retry(42, lab, sleep=sleep)
            self.L(f'{lab}_ok')
        if self.share:
            C, pool = self.C, ((self.UB if self.share2 else 64) - US) * 64
            navg = pool / 16
            import struct as _st
            f2h = lambda x: '%#x' % _st.unpack('<I', _st.pack('<f', x))[0]
            if self.pertau:
                self.spin_begin(42)
                self.L('L_h_sw1')
                A('ds_read_b64 v[40:41], v38 offset:232')
                A('s_waitcnt lgkmcnt(0)')
                A('v_readfirstlane_b32 s40, v41')
                A('s_cmp_lg_u32 s40, 0')
                A('s_cbranch_scc1 L_h_sw1_ok')
                self.spin_retry(42, 'L_h_sw1', sleep=8)
                self.L('L_h_sw1_ok')
                A('v_mov_b32 v42, v40')
                A('v_mov_b32 v40, v41')
                A('v_mov_b32 v41, v42')
                A('v_mov_b32 v42, 0')
                A('s_lshl_b32 s40, s27, 8')
                A(f's_add_u32 s40, s40, {WS_T}')
                A('s_add_u32 s56, s24, s40')
                A('s_addc_u32 s57, s25, 0')
                A('s_lshl_b32 s58, s28, 4')
                A('v_mov_b32 v39, s58')
                self.mkchk(40)
                A('s_mov_b64 exec, 1')
                A('global_store_dwordx4 v39, v[40:43], s[56:57] sc1')
                A('s_mov_b64 exec, -1')
                wait_tk(4 * (C + self.Gd) - 4, 'L_h_sw2', sleep=4)
                A('v_and_b32 v39, 15, v1')
                A('v_lshlrev_b32 v39, 4, v39')
                self.poll('L_h_t', ['global_load_dwordx4 v[40:43], v39, s[56:57] sc1'], lambda: self.chk3([40], 44, 45), sleep=4, probe=False)
                A('v_readfirstlane_b32 s40, v40')
                A('v_sub_u32 v45, v40, v41')
                A('s_nop 0')
                A('v_subrev_u32 v44, s40, v40')
                A('v_cvt_f32_i32 v44, v44')
                A('v_cvt_f32_u32 v45, v45')
                A(f'v_mul_f32 v45, {f2h(1 / (4 * (C - self.C0)))}, v45')
                A('v_mov_b32 v46, v45')
                self.rowred('v_add_f32', 46)
                A(f'v_mul_f32 v46, {f2h(1 / 16)}, v46')
                A('v_sub_f32 v45, v45, v46')
                A(f'v_mul_f32 v45, {f2h(self.lam)}, v45')
                A('v_add_f32 v45, v45, v46')
                A('v_rcp_f32 v45, v45')
                A('s_nop 0')
                A('v_mul_f32 v46, v44, v45')
                A('v_mov_b32 v47, v45')
                self.mrowred('v_add_f32', [46, 47], (8, 4, 2, 1))
                A(f'v_add_f32 v46, {f2h(float(pool + 64 * (US - C)))}, v46')
                A('v_rcp_f32 v47, v47')
                A('s_nop 0')
                A('v_mul_f32 v46, v46, v47')
                A('v_sub_f32 v46, v46, v44')
                A('v_mul_f32 v46, v46, v45')
                A(f'v_subrev_f32 v46, {f2h(float(4 * (US - C)))}, v46')
            else:
                wait_tk(4 * C - 4, 'L_h_sw1')
                A('s_memrealtime s[50:51]')
                if self.tau2:
                    A(f's_sub_u32 s31, s40, {4 * C - 4}')
                A('s_lshl_b32 s40, s27, 8')
                A(f's_add_u32 s40, s40, {WS_T}')
                A('s_add_u32 s56, s24, s40')
                A('s_addc_u32 s57, s25, 0')
                A('s_lshl_b32 s58, s28, 4')
                A('v_mov_b32 v39, s58')
                A('s_waitcnt lgkmcnt(0)')
                A('v_mov_b32 v40, s50')
                A('v_mov_b32 v41, s98')
                A('v_mov_b32 v42, 0')
                if self.tau2:
                    A('s_mov_b32 s30, s50')
                self.mkchk(40)
                A('s_mov_b64 exec, 1')
                A('global_store_dwordx4 v39, v[40:43], s[56:57] sc1')
                A('s_mov_b64 exec, -1')
                wait_tk(4 * (C + self.Gd) - 4, 'L_h_sw2', sleep=4)
                A('v_and_b32 v39, 15, v1')
                A('v_lshlrev_b32 v39, 4, v39')
                self.poll('L_h_t', ['global_load_dwordx4 v[40:43], v39, s[56:57] sc1'], lambda: self.chk3([40], 44, 45), sleep=4, probe=False)
                A('v_readfirstlane_b32 s40, v40')
                A('v_sub_u32 v45, v40, v41')
                A('s_nop 0')
                A('v_subrev_u32 v44, s40, v40')
                A('v_cvt_f32_i32 v44, v44')
                A('v_cvt_f32_u32 v45, v45')
                A('v_mov_b32 v46, v44')
                self.rowred('v_add_f32', 46)
                self.rowred('v_add_f32', 45)
                import struct as _st
                f2h = lambda x: '%#x' % _st.unpack('<I', _st.pack('<f', x))[0]
                A(f'v_mul_f32 v46, {f2h(1 / 16)}, v46')
                A(f'v_mul_f32 v45, {f2h(self.taufac / (16 * 4 * C))}, v45')
                A('v_rcp_f32 v45, v45')
                A('v_sub_f32 v46, v46, v44')
                A('s_nop 0')
                A('v_mul_f32 v46, v46, v45')
                A(f'v_add_f32 v46, {f2h(navg)}, v46')
            def shares(pool_, cap_, off):
                A('v_max_f32 v46, 0, v46')
                A(f'v_min_f32 v46, {f2h(cap_)}, v46')
                A('v_mov_b32 v47, v46')
                self.rowred('v_add_f32', 47)
                A('v_rcp_f32 v47, v47')
                A('s_nop 0')
                A(f'v_mul_f32 v47, {f2h(float(pool_))}, v47')
                A('v_mul_f32 v46, v46, v47')
                for sh in (1, 2, 4, 8):
                    A('s_nop 1')
                    A(f'v_add_f32_dpp v46, v46, v46 row_shr:{sh} row_mask:0xf bank_mask:0xf bound_ctrl:0')
                A('v_add_f32 v46, 0.5, v46')
                A('v_cvt_i32_f32 v46, v46')
                A(f'v_min_i32 v46, {pool_}, v46')
                A('v_max_i32 v46, 0, v46')
                for sh in (1, 2, 4, 8):
                    A('s_nop 1')
                    A(f'v_max_i32_dpp v46, v46, v46 row_shr:{sh} row_mask:0xf bank_mask:0xf bound_ctrl:0')
                A('s_mov_b32 s50, 0x80008000')
                A('s_mov_b32 s51, 0x80008000')
                A(f'v_mov_b32 v47, {pool_}')
                A('v_cndmask_b32 v46, v46, v47, s[50:51]')
                A('v_mov_b32 v47, 0')
                A('s_nop 1')
                A('v_mov_b32_dpp v47, v46 row_shr:1 row_mask:0xf bank_mask:0xf bound_ctrl:0')
                A('v_sub_u32 v46, v46, v47')
                if self.table:
                    self.build_table(first=(off == 0))
                    return
                A('v_add_u32 v46, 1, v46')
                A('s_nop 0')
                A('v_readlane_b32 s50, v46, s28')
                A('v_readlane_b32 s51, v47, s28')
                A('s_nop 1')
                A('v_mov_b32 v46, s50')
                A('v_mov_b32 v47, s51')
                A(f'v_mov_b32 v39, {IDS + off}')
                A('s_mov_b64 exec, 1')
                A('ds_write_b64 v39, v[46:47]')
                A('s_mov_b64 exec, -1')
            if self.share2:
                A('v_mov_b32 v48, v45')
            shares(pool, 2.5 * navg, 0)
            if self.share2:
                pool2 = (64 - self.UB) * 64
                navg2 = pool2 / 16
                A(f's_add_u32 s58, s50, {4 * US - 1 - 4 - self.K2}')
                def wait_tks(sreg, lab, sleep):
                    self.spin_begin(42)
                    self.L(lab)
                    A('ds_read_b32 v44, v38 offset:52')
                    A('s_waitcnt lgkmcnt(0)')
                    A('v_readfirstlane_b32 s40, v44')
                    A(f's_cmp_ge_u32 s40, s{sreg}')
                    A(f's_cbranch_scc1 {lab}_ok')
                    self.spin_retry(42, lab, sleep=sleep)
                    self.L(f'{lab}_ok')
                wait_tks(58, 'L_h_s2a', 2)
                A('s_memrealtime s[56:57]')
                A(f's_add_u32 s59, s50, {4 * US - 1 - 4}')
                A('s_sub_i32 s59, s59, s40')
                A('s_max_i32 s59, s59, 0')
                A('s_waitcnt lgkmcnt(0)')
                A('v_mov_b32 v40, s56')
                A('v_mov_b32 v41, s59')
                if self.tau2:
                    A(f's_sub_u32 s40, s40, {4 * C - 4}')
                    A('s_sub_u32 s40, s40, s31')
                    A('s_sub_u32 s59, s56, s30')
                    A('v_cvt_f32_u32 v42, s40')
                    A('v_cvt_f32_u32 v43, s59')
                    A('v_rcp_f32 v42, v42')
                    A('s_nop 0')
                    A('v_mul_f32 v42, v42, v43')
                else:
                    A('v_mov_b32 v42, 0')
                A('s_lshl_b32 s40, s27, 8')
                A(f's_add_u32 s40, s40, {WS_T2}')
                A('s_add_u32 s56, s24, s40')
                A('s_addc_u32 s57, s25, 0')
                A('s_lshl_b32 s59, s28, 4')
                A('v_mov_b32 v39, s59')
                self.mkchk(40)
                A('s_mov_b64 exec, 1')
                A('global_store_dwordx4 v39, v[40:43], s[56:57] sc1')
                A('s_mov_b64 exec, -1')
                A(f's_add_u32 s58, s58, {self.Gd2}')
                wait_tks(58, 'L_h_s2b', 2)
                A('v_and_b32 v39, 15, v1')
                A('v_lshlrev_b32 v39, 4, v39')
                self.poll('L_h_t2', ['global_load_dwordx4 v[40:43], v39, s[56:57] sc1'], lambda: self.chk3([40], 44, 45), sleep=2, probe=False)
                A('v_readfirstlane_b32 s40, v40')
                A('v_cvt_f32_u32 v45, v41')
                A('s_nop 0')
                A('v_subrev_u32 v44, s40, v40')
                A('v_cvt_f32_i32 v44, v44')
                if self.tau2:
                    A('v_mov_b32 v46, v42')
                    self.rowred('v_add_f32', 46)
                    A(f'v_mul_f32 v46, {f2h(1 / 16)}, v46')
                    A('v_sub_f32 v42, v42, v46')
                    A(f'v_mul_f32 v42, {f2h(self.lam2)}, v42')
                    A('v_add_f32 v42, v42, v46')
                    A('v_rcp_f32 v42, v42')
                    A('s_nop 0')
                    A('v_mul_f32 v46, v44, v42')
                    A('v_add_f32 v46, v46, v45')
                    A('v_mov_b32 v47, v42')
                    self.mrowred('v_add_f32', [46, 47], (8, 4, 2, 1))
                    A(f'v_add_f32 v46, {f2h(float(pool2))}, v46')
                    A('v_rcp_f32 v47, v47')
                    A('s_nop 0')
                    A('v_mul_f32 v46, v46, v47')
                    A('v_sub_f32 v46, v46, v44')
                    A('v_mul_f32 v46, v46, v42')
                    A('v_sub_f32 v46, v46, v45')
                else:
                    A(f'v_mul_f32 v44, v44, v48')
                    A(f'v_mul_f32 v44, {f2h(1 / self.taufac2)}, v44')
                    A('v_add_f32 v44, v44, v45')
                    A('v_mov_b32 v46, v44')
                    self.rowred('v_add_f32', 46)
                    A(f'v_mul_f32 v46, {f2h(1 / 16)}, v46')
                    A('v_sub_f32 v46, v46, v44')
                    A(f'v_add_f32 v46, {f2h(navg2)}, v46')
                shares(pool2, self.cap2 * navg2, 8)
                A('s_mov_b32 s50, 1')
            A(f's_add_u32 s50, s50, {4 * US - 4 - self.warm_tiles}')
            self.spin_begin(42)
            self.L('L_h_sw3')
            A('ds_read_b32 v44, v38 offset:52')
            A('s_waitcnt lgkmcnt(0)')
            A('v_readfirstlane_b32 s40, v44')
            A('s_cmp_ge_u32 s40, s50')
            A('s_cbranch_scc1 L_h_sw3_ok')
            self.spin_retry(42, 'L_h_sw3', sleep=4)
            self.L('L_h_sw3_ok')
            self.stamp(23)
        elif NI == 0:
            A('s_mov_b32 s50, 0')
            A('v_mov_b32 v44, -1')
            put_id(50, 44)
            if 'dumat' in self.exp:
                A(f's_mul_i32 s40, s27, {self.cstride}')
                A(f's_add_u32 s40, s40, {WS_CNT}')
                A('s_add_u32 s56, s24, s40')
                A('s_addc_u32 s57, s25, 0')
                A('v_mov_b32 v40, 0')
                A('v_mov_b32 v41, 1')
                A('s_mov_b32 s58, 48')
                self.L('L_h_da')
                A('s_lshl_b32 s51, s58, 2')
                self.spin_begin(42)
                self.L('L_h_daw')
                A('ds_read_b32 v44, v38 offset:52')
                A('s_waitcnt lgkmcnt(0)')
                A('v_readfirstlane_b32 s40, v44')
                A('s_cmp_ge_u32 s40, s51')
                A('s_cbranch_scc1 L_h_daok')
                self.spin_retry(42, 'L_h_daw', sleep=2)
                self.L('L_h_daok')
                A('s_mov_b64 exec, 1')
                A('global_atomic_add v42, v40, v41, s[56:57] sc0')
                A('s_mov_b64 exec, -1')
                A('s_waitcnt vmcnt(0)')
                A('s_add_u32 s58, s58, 1')
                A('s_cmp_lt_u32 s58, 63')
                A('s_cbranch_scc1 L_h_da')
        else:
            A(f's_mul_i32 s40, s27, {self.cstride}')
            A(f's_add_u32 s40, s40, {WS_CNT}')
            A('s_add_u32 s56, s24, s40')
            A('s_addc_u32 s57, s25, 0')
            A('v_mov_b32 v40, 0')
            A('v_mov_b32 v41, 1')
            def wait_progress(kreg, lab):
                A(f's_add_u32 s51, s{kreg}, {US - LA}')
                self.spin_begin(42)
                self.L(lab)
                A('ds_read_b128 v[44:47], v38')
                A('s_waitcnt lgkmcnt(0)')
                A('v_max_u32 v44, v44, v45')
                A('v_max3_u32 v44, v44, v46, v47')
                A('s_nop 0')
                A('v_readfirstlane_b32 s40, v44')
                A('s_cmp_ge_u32 s40, s51')
                A(f's_cbranch_scc1 {lab}_ok')
                self.spin_retry(42, lab, sleep=4)
                self.L(f'{lab}_ok')
            def claim(dst):
                A('s_mov_b64 exec, 1')
                A(f'global_atomic_add v{dst}, v40, v41, s[56:57] sc0')
                A('s_mov_b64 exec, -1')
            if self.tickets:
                A('s_mov_b32 s58, 0')
                self.L('L_h_claim')
                A('s_lshl_b32 s51, s58, 2')
                A(f's_add_u32 s51, s51, {4 * US - 4 - self.LAt}')
                self.spin_begin(42)
                self.L('L_h_tw')
                A('ds_read_b32 v44, v38 offset:52')
                A('s_waitcnt lgkmcnt(0)')
                A('v_readfirstlane_b32 s40, v44')
                A('s_cmp_ge_u32 s40, s51')
                A('s_cbranch_scc1 L_h_tw_ok')
                self.spin_retry(42, 'L_h_tw', sleep=2)
                self.L('L_h_tw_ok')
                A(f's_mov_b32 s40, {NI}')
                A(f's_cmp_ge_u32 s58, {CAP}')
                A('s_cbranch_scc1 L_h_tres')
                claim(42)
                A('s_waitcnt vmcnt(0)')
                A('v_readfirstlane_b32 s40, v42')
                self.L('L_h_tres')
                if self.endmargin:
                    A(f's_cmp_lt_u32 s40, {max(NI - self.endmargin, 0)}')
                    A('s_cbranch_scc1 L_h_tnom')
                    A('v_mov_b32 v44, 1')
                    A('s_mov_b64 exec, 1')
                    A('ds_write_b32 v38, v44 offset:48')
                    A('s_mov_b64 exec, -1')
                    self.L('L_h_tnom')
                A(f's_cmp_ge_u32 s40, {NI}')
                A('s_cselect_b32 s40, -2, s40')
                A('s_add_u32 s59, s40, 1')
                A('v_mov_b32 v44, s59')
                put_id(58, 44)
                A('s_add_u32 s58, s58, 1')
                A('s_cmp_lg_u32 s59, -1')
                A('s_cbranch_scc1 L_h_claim')
            else:
                A('s_mov_b32 s50, 0')
                A('s_mov_b32 s58, 0')
                wait_progress(50, 'L_h_cw0')
                claim(42)
                A('s_mov_b32 s50, 1')
                self.L('L_h_claim')
                for par in range(2):
                    cur, nxt = 42 + par, 43 - par
                    last = self.lab('L_h_clast')
                    res = self.lab('L_h_cres')
                    A(f's_cmp_ge_u32 s50, {CAP}')
                    A(f's_cbranch_scc1 {last}')
                    wait_progress(50, self.lab('L_h_cw'))
                    claim(nxt)
                    A('s_add_u32 s50, s50, 1')
                    A('s_waitcnt vmcnt(1)')
                    A(f's_branch {res}')
                    self.L(last)
                    A('s_waitcnt vmcnt(0)')
                    A(f'v_mov_b32 v{nxt}, {NI}')
                    self.L(res)
                    A(f'v_readfirstlane_b32 s40, v{cur}')
                    if self.endmargin:
                        nm = self.lab('L_h_nom')
                        A(f's_cmp_lt_u32 s40, {max(NI - self.endmargin, 0)}')
                        A(f's_cbranch_scc1 {nm}')
                        for q in range(4):
                            A(f'v_mov_b32 v{44 + q}, 1')
                        A('s_mov_b64 exec, 1')
                        A('ds_write_b128 v38, v[44:47] offset:48')
                        A('s_mov_b64 exec, -1')
                        self.L(nm)
                    A(f's_cmp_ge_u32 s40, {NI}')
                    A('s_cselect_b32 s40, -2, s40')
                    A('s_add_u32 s59, s40, 1')
                    A('v_mov_b32 v44, s59')
                    put_id(58, 44)
                    A('s_add_u32 s58, s58, 1')
                    A('s_cmp_eq_u32 s59, -1')
                    A('s_cbranch_scc1 L_h_cdone')
                A('s_branch L_h_claim')
            self.L('L_h_cdone')
            self.stamp(23)
            A('v_mov_b32 v44, 1')
            A('v_mov_b32 v45, 1')
            A('v_mov_b32 v46, 1')
            A('v_mov_b32 v47, 1')
            A('s_mov_b64 exec, 1')
            if self.tickets:
                A('ds_write_b32 v38, v44 offset:48')
            else:
                A('ds_write_b128 v38, v[44:47] offset:48')
            A('s_mov_b64 exec, -1')
            A('s_waitcnt vmcnt(0) lgkmcnt(0)')
        if self.warm_late:
            self.tail_warm()
        if 'notail' in self.exp:
            self.flush_stamps()
            A('s_endpgm')
        if self.trim:
            A('v_mul_u32_u24 v39, 6, v31')
            A(f'v_add_u32 v39, {OB}, v39')
        A('s_barrier')
        if self.pm_b:
            self.pollm('L_h_b', lambda bs: [f'global_load_dwordx4 v[{b}:{b+3}], v{34 + i}, s[48:49] sc1' for i, b in enumerate(bs)],
                       [[40, 44, 48, 52], [68, 72, 76, 80], [96, 100, 104, 108], [128, 132, 136, 140]][:self.nset_b], 56,
                       stag=self.stag_b, invs=[30, 32, 34, 36])
        elif self.dpoll:
            self.poll2('L_h_b', lambda bs: [f'global_load_dwordx4 v[{b}:{b+3}], v{34 + i}, s[48:49] sc1' for i, b in enumerate(bs)],
                       [40, 44, 48, 52], [68, 72, 76, 80], 56, 57, sleep=self.tsleep or 2, stag=self.stag_b, thresh=self.thresh_b,
                       more=([96, 100, 104, 108], [128, 132, 136, 140])[:self.nset_b - 2])
        else:
            self.poll('L_h_b', [f'global_load_dwordx4 v[{40 + 4*i}:{43 + 4*i}], v{34 + i}, s[48:49] sc1' for i in range(4)],
                      lambda: self.chk3([40, 44, 48, 52], 56, 57), sleep=2)
        self.stamp(15)
        A('v_max_f32 v56, v49, v53')
        self.rowred('v_max_f32', 56, rors=(8,))
        self.xrow('v_max_f32', 56, 57)
        A('v_sub_f32 v58, v49, v56')
        A('v_sub_f32 v59, v53, v56')
        A('v_exp_f32 v58, v58')
        A('v_exp_f32 v59, v59')
        A('s_nop 0')
        A('v_mul_f32 v60, v50, v58')
        for i in range(3):
            A(f'v_mul_f32 v{61 + i}, v{40 + i}, v58')
        A('v_fmac_f32 v60, v54, v59')
        for i in range(3):
            A(f'v_fmac_f32 v{61 + i}, v{44 + i}, v59')
        self.mrowred('v_add_f32', [60, 61, 62, 63], (8,))
        self.mxrow('v_add_f32', [60, 61, 62, 63], [84, 85, 86, 87])
        A('v_rcp_f32 v64, v60')
        A('s_nop 0')
        if self.trim:
            for q, r in enumerate((61, 62, 63)):
                A(f'v_mul_f32 v{56 + q}, v{r}, v64')
            for q, r in enumerate((61, 62, 63)):
                A(f'v_fma_f32 v{r}, -v{56 + q}, v60, v{r}')
            for q, r in enumerate((61, 62, 63)):
                A(f'v_fma_f32 v{r}, v{r}, v64, v{56 + q}')
            A('v_cvt_pk_bf16_f32 v61, v61, v62')
            A('v_cvt_pk_bf16_f32 v63, v63, v63')
            A('v_mov_b32 v62, v39')
        else:
            for r in (61, 62, 63):
                A(f'v_mul_f32 v65, v{r}, v64')
                A(f'v_fma_f32 v66, -v65, v60, v{r}')
                A(f'v_fma_f32 v{r}, v66, v64, v65')
            A('v_cvt_pk_bf16_f32 v61, v61, v62')
            A('v_cvt_pk_bf16_f32 v63, v63, v63')
            A('v_mul_u32_u24 v62, 6, v31')
            A(f'v_add_u32 v62, {OB}, v62')
        A('s_mov_b64 exec, 0x3f')
        A('ds_write_b16 v62, v61')
        A('s_mov_b64 exec, 0x1f')
        A('ds_write_b16_d16_hi v62, v61 offset:2')
        A('ds_write_b16 v62, v63 offset:4')
        A('s_mov_b64 exec, -1')
        A('s_waitcnt lgkmcnt(0)')
        A('s_barrier')
        if self.flate == 'h':
            A(f's_cmp_ge_u32 s97, {NRED}')
            A('s_cbranch_scc1 L_h_exit')
            if self.stamps:
                A('s_mov_b32 s65, s64')
            self.f_gather('L_h_f', sleep=self.fsleep, probe=False)
            if self.stamps:
                A('s_mov_b32 s64, s65')
            A('s_waitcnt lgkmcnt(0)')
            A('s_barrier')
            self.L('L_h_exit')
        self.flush_stamps(extra=[(30, 64)])
        A('s_endpgm')

    def build(self):
        head = HEADER + f'; @launch grid=(256,1,1) block=(576,1,1) lds={LDS_BYTES}\n'
        head += '.amdgcn_target "amdgcn-amd-amdhsa--gfx950"\n.text\n'
        head += f'.globl {KNAME}\n.p2align 8\n.type {KNAME},@function\n{KNAME}:\n'
        if self.layout3:
            self.entry3()
            self.loader3()
            if self.halign:
                self.o.append('  .balignl 256, 0xbf810000')
                self.o.append('  .fill 48, 4, 0xbf810000')
            self.helper()
            if self.calign:
                self.o.append('  .balignl 256, 0xbf810000')
                self.o.append('  .fill 48, 4, 0xbf810000')
            self.cons0()
            self.consumer()
        else:
            self.entry()
            self.consumer()
            if self.tickets:
                self.loader_tk()
            else:
                self.loader()
            self.helper()
        self.L('L_end')
        self.A('s_endpgm')
        if 'coldprobe' in self.exp:
            for k in range(6):
                self.o.append('  .fill 512, 4, 0xbf800000')
                self.L(f'L_cp{k}')
                self.A(f's_branch L_cp{k+1}' if k < 5 else 's_branch L_cpback')
        tail = f'''.section .rodata,"a"
.p2align 6
.amdhsa_kernel {KNAME}
  .amdhsa_next_free_vgpr 160
  .amdhsa_next_free_sgpr 100
  .amdhsa_accum_offset 160
  .amdhsa_group_segment_fixed_size 0
  .amdhsa_kernarg_size 88
  .amdhsa_user_sgpr_count 2
  .amdhsa_user_sgpr_kernarg_segment_ptr 1
  .amdhsa_system_sgpr_workgroup_id_x 1
  .amdhsa_float_denorm_mode_32 3
  .amdhsa_float_denorm_mode_16_64 3
.end_amdhsa_kernel
'''
        if self.layout3 and self.pads:
            self.place_pads(head, tail)
        return head + '\n'.join(self.o) + '\n' + tail

    def addresses(self, head, tail):
        import subprocess, tempfile, os, re
        lines = []
        idx = []
        for i, l in enumerate(self.o):
            if l.startswith('  ') and not l.strip().startswith('.'):
                lines.append(f'Lx_{i}:')
                idx.append(i)
            lines.append('' if l.startswith('@') else l)
        with tempfile.TemporaryDirectory() as d:
            src = os.path.join(d, 'a.s'); obj = os.path.join(d, 'a.o')
            open(src, 'w').write(head + '\n'.join(lines) + '\n' + tail)
            r = subprocess.run(['clang', '-x', 'assembler', '-target', 'amdgcn-amd-amdhsa', '-mcpu=gfx950', '-c', src, '-o', obj], capture_output=True, text=True)
            assert r.returncode == 0, r.stderr[:2000]
            out = subprocess.run(['llvm-objdump', '-t', obj], capture_output=True, text=True).stdout
        adr = {}
        for m in re.finditer(r'^([0-9a-f]{16}) .* Lx_(\d+)$', out, re.M):
            adr[int(m.group(2))] = int(m.group(1), 16)
        return adr

    def place_pads(self, head, tail):
        o = self.o
        names = []

        def lab_index(name):
            return o.index(name + ':')

        def insert(first_block, limit_addr, name, after_idx=0):
            adr = self.addresses(head, tail)
            order = sorted(adr)
            last = lab_index('L_end') + 1
            blk = first_block
            while True:
                best = None
                for i in order:
                    if i < after_idx:
                        continue
                    a = adr[i]
                    if a >> 8 > blk or a > adr[last]:
                        break
                    prev = o[i - 1].strip() if i else ''
                    j = i
                    while j > 0 and not o[j - 1].startswith('  '):
                        j -= 1
                    prev = o[j - 1].strip() if j else ''
                    dead = prev.startswith('s_branch') or prev == 's_endpgm'
                    pa = a if dead else a + 4
                    if pa >> 8 == blk and 192 <= (pa & 255) <= 252 and a >> 8 == blk:
                        if best is None or dead and not best[1]:
                            best = (j, dead)
                if best:
                    j, dead = best
                    ins = [f'{name}:', f'  s_branch {name}_next']
                    if not dead:
                        ins = [f'  s_branch {name}_skip'] + ins + [f'{name}_skip:']
                    o[j:j] = ins
                    return blk
                blk += 1
                if blk * 256 + 192 > limit_addr:
                    return None

        c = o.index('@CHAIN')
        code = []
        for w in range(3):
            code += [f'  s_cmp_eq_u32 s26, {w}', f'  s_cbranch_scc1 L_end ; CH{w}']
        code += ['  s_branch L_end ; CH3', 'L_chain_done:']
        o[c:c + 1] = code
        if '@CHAIN2' in o:
            c = o.index('@CHAIN2')
            o[c:c + 1] = ['  s_branch L_end ; CH4', 'L_chain2_done:']
        k = max(i for i, l in enumerate(o[:80]) if 'global_load_lds_dwordx4' in l)
        o.append('L_pad_e:'); o.append('  s_branch L_e1')
        adr = self.addresses(head, tail)
        del o[-2:]
        cand = [i for i in sorted(adr) if i <= k + 1 and 192 <= ((adr[i] + 4) & 255) <= 248 and adr[i] < 256]
        j = cand[-1]
        o[j:j] = ['  s_branch L_pad_e_skip', 'L_pad_e:', '  s_branch L_e1', 'L_pad_e_skip:']
        def addr_of(adr, name):
            i = lab_index(name)
            while i not in adr:
                i += 1
            return adr[i]
        placed = []
        adr = self.addresses(head, tail)
        blk = addr_of(adr, 'L_ld_sp0') >> 8
        while True:
            adr = self.addresses(head, tail)
            end = addr_of(adr, 'L_end')
            hb = addr_of(adr, 'L_helper') >> 8
            if hb <= blk < hb + 5:
                blk = hb + 5
            if self.skipffn:
                f1, ft = addr_of(adr, 'L_h_f1') >> 8, addr_of(adr, 'L_h_tail') >> 8
                if f1 < blk < ft:
                    blk = ft
            if self.calign:
                hbb, cb = addr_of(adr, 'L_h_b_loop') >> 8, addr_of(adr, 'L_cons1') >> 8
                if hbb <= blk < cb + 5:
                    blk = cb + 5
            if not self.latetail and blk >= addr_of(adr, 'L_c_done') >> 8:
                break
            if blk * 256 >= end:
                break
            name = f'L_pad_{len(placed)}'
            o.append(f'{name}_next:'); o.append('  s_branch L_end')
            lim = hb * 256 - 1 if blk < hb else end
            b = insert(blk, lim, name)
            if b is None:
                del o[-2:]
                blk = hb + 5 if blk < hb else 1 << 20
                continue
            placed.append((name, b))
            blk = b + 5
        adr = self.addresses(head, tail)
        regions = [('L_helper', 'L_h_f1'), ('L_cons1', 'L_c_done'), ('L_c_done', 'L_end'), ('L_ld_sp0', 'L_helper'), ('L_h_f1', 'L_cons1')]
        pads = []
        for ra, rb in regions:
            lo, hi = addr_of(adr, ra) >> 8, addr_of(adr, rb) >> 8
            for name, b in placed:
                if name not in pads and lo <= b <= hi:
                    pads.append(name)
        pads = pads[:self.npads or None]
        late = []
        if self.hchain:
            for ra, rb in [('L_ld_sp0', 'L_helper'), ('L_h_tail', 'L_cons1')] + ([('L_c_done', 'L_end')] if self.latetail else []):
                lo, hi = addr_of(adr, ra) >> 8, addr_of(adr, rb) >> 8
                for name, b in placed:
                    if name not in pads and name not in late and b <= hi and b + 4 >= lo:
                        late.append(name)
        dropped = [n for n, _ in placed if n not in pads and n not in late]
        o[:] = [l for n, l in enumerate(o) if not (l.endswith('_next:') or (n and o[n - 1].endswith('_next:')))]
        chains = [pads[w::4] for w in range(4)]
        nxt = {n: 'L_chain_done' for n in dropped}
        for ch in chains:
            for a, b in zip(ch, ch[1:] + ['L_chain_done']):
                nxt[a] = b
        for a, b in zip(late, late[1:] + ['L_chain2_done']):
            nxt[a] = b
        chains.append(late or ['L_chain2_done'])
        for n, l in enumerate(o):
            s_ = l.strip()
            if s_.startswith('s_branch L_pad_') and s_.endswith('_next'):
                o[n] = f'  s_branch {nxt[s_.split()[1][:-5]]}'
        for n, l in enumerate(o):
            if '; CH' in l:
                o[n] = l.split('L_end')[0] + chains[int(l[-1])][0]
        self.padinfo = (pads, chains)


if __name__ == '__main__':
    import argparse
    ap = argparse.ArgumentParser()
    ap.add_argument('-o', default='parallel_sum__gqa_block_cached__dense_activation_silu__decode.s')
    ap.add_argument('--W', type=int, default=5)
    ap.add_argument("--rot", type=int, default=8)
    ap.add_argument('--headmap', default='lin')
    ap.add_argument('--stamps', action='store_true')
    ap.add_argument('--exp', default='')
    a = ap.parse_args()
    open(a.o, 'w').write(Gen(W=a.W, rot=a.rot, headmap=a.headmap, stamps=a.stamps, exp=[e for e in a.exp.split(',') if e]).build())
    print('wrote', a.o)
```

```python
import sys

KNAME = 'parallel_sum__gqa_block_cached__dense_activation_silu__decode_kernel'

HEADER = '''; Kernarg layout for this problem (88 bytes, ptrs only, base s[0:1]):
'''

RING = 32768
STG = 0x20000
XN = 0x24800
QL = 0x24D00
FL = 0x25000
OC = 0x25100
OCML = 0x26100
OB = 0x26180
RED = 0x26200
FFNR = 0x26480
AB = 0x26400
W2S = 0
TBL = 0x26500
FB = 0x26500
LDS_BYTES = 0x28000

WS_EPOCH = 0x0
WS_Q = 0x10000
WS_P = 0x80000
WS_Y2 = 0x200000
WS_Y = 0x100000
WS_A = 0x30000
WS_F = 0x38000
NRED = 48
NFFN = 72
WS_DBG = 0x800000

SCALE = 0x3DB504F3
LOG2E = 0x3FB8AA3B
SPIN = 0x40000
IDS = FL + 64
CAP = 40
WS_T = 0x4000
WS_T2 = 0x6000
WS_CNT = 0x1C0000


class Gen:
    def __init__(self, W=5, rot=8, headmap='lin', stamps=False, nunits=64, exp=(), ffn_win=6, warm_before=4, US=56, LA=2, preread=True, wotail=True, Wend=12, endmargin=32, cstride=12544, earlyflags=True, fastpoll=True, dpoll=True, stag=8, tickets=True, LAt=6, tk_pos=4, prog_pts=(4, 8, 16, 32, 48), nstart=0, share=True, C=50, Gd=3, xfast=8, taufac=0.95, warm_tiles=10, tsleep=0, thresh=64, a_at=36, warm_late=False, w2late=False, wo_by='w23', pertau=False, C0=34, lam=0.7, hfirst=False, ffnboost=False, xrot=448, share2=True, UB=62, K2=12, Gd2=5, taufac2=1.0, cap2=2.5, fastpro=True, nset_b=2, nset_d=2, stag_b=None, stag_d=None, thresh_b=None, thresh_d=None, pm_b=False, pm_d=False, redmap='spread', ffnmap='spread', warmP='selfld', warmY='selfld', flate=False, fwave=0, fsleep=2, wo_delay=False, wo_win=0, stage_end=True, tau2=False, lam2=0.7, layout3=True, pads=True, halign=True, npads=5, hchain=True, skipffn=True, latetail=True, out_pol='', trim=True, calign=True, tmap='jw', lblk=1, irot=0, S=4096, table=True):
        self.o = []
        self.W = W
        self.rot = rot
        self.headmap = headmap
        self.stamps = stamps
        self.nunits = nunits
        self.uid = 0
        self.pending = []
        self.exp = set(exp)
        self.ffn_win = ffn_win
        self.warm_before = warm_before
        self.US = US
        self.LA = LA
        self.NI = (64 - US) * 16
        self.preread = preread
        self.wotail = wotail
        self.Wend = Wend
        self.ffnboost = ffnboost
        self.xrot = xrot
        self.share2 = share2
        self.fastpro = fastpro
        self.nset_b = nset_b
        self.pm_b = pm_b
        self.redmap = redmap
        self.warmP = warmP
        self.flate = flate
        self.fwave = fwave
        self.wo_delay = wo_delay
        self.stage_end = stage_end
        self.tau2 = tau2
        self.layout3 = layout3
        self.pads = pads
        self.halign = halign
        self.npads = npads
        self.hchain = hchain
        self.skipffn = skipffn
        self.trim = trim
        self.tmap = tmap
        self.lblk = lblk
        self.irot = irot
        self.table = table
        if table:
            assert US % (1 << lblk) == 0 and UB % (1 << lblk) == 0 and not flate
        self.S = S
        assert US % (1 << lblk) == 0
        self.calign = calign
        self.out_pol = out_pol
        self.latetail = latetail
        self.lam2 = lam2
        self.wo_win = wo_win
        self.fsleep = fsleep
        self.warmY = warmY
        self.ffnmap = ffnmap
        self.pm_d = pm_d
        self.nset_d = nset_d
        self.stag_b = stag if stag_b is None else stag_b
        self.stag_d = stag if stag_d is None else stag_d
        self.thresh_b = thresh if thresh_b is None else thresh_b
        self.thresh_d = thresh if thresh_d is None else thresh_d
        self.UB = UB
        self.K2 = K2
        self.Gd2 = Gd2
        self.taufac2 = taufac2
        self.cap2 = cap2
        self.hfirst = hfirst
        self.pertau = pertau
        self.C0 = C0
        self.lam = lam
        self.wo_by = wo_by
        self.w2late = w2late
        self.warm_late = warm_late
        self.a_at = a_at
        self.tsleep = tsleep
        self.thresh = thresh
        self.share = share
        self.C = C
        self.Gd = Gd
        self.xfast = xfast
        self.taufac = taufac
        self.warm_tiles = warm_tiles
        self.nstart = nstart
        self.prog_pts = prog_pts
        self.dpoll = dpoll
        self.stag = stag
        self.tickets = tickets
        self.LAt = LAt
        self.tk_pos = tk_pos
        self.fastpoll = fastpoll
        self.earlyflags = earlyflags
        self.cstride = cstride
        self.endmargin = endmargin
        self.sleepmul = 8 if 'slowpoll' in self.exp else 1

    def A(self, s):
        self.o.append('  ' + s)

    def L(self, s):
        self.o.append(s + ':')

    def lab(self, base):
        self.uid += 1
        return f'{base}_{self.uid}'

    def stamp(self, idx, vtmp=126):
        if not self.stamps:
            return
        k = len(self.pending)
        assert k < 12
        self.pending.append(idx)
        self.A(f's_memrealtime s[{66 + 2*k}:{67 + 2*k}]')

    def stamp_at(self, idx, k):
        while len(self.pending) <= k:
            self.pending.append(None)
        self.pending[k] = idx
        self.A(f's_memrealtime s[{66 + 2*k}:{67 + 2*k}]')

    def flush_stamps(self, vtmp=126, extra=()):
        if not self.stamps:
            return
        A = self.A
        A('s_lshl_b32 s92, s2, 7')
        A(f's_add_u32 s92, s92, {WS_DBG}')
        A('s_add_u32 s94, s24, s92')
        A('s_addc_u32 s95, s25, 0')
        A('s_waitcnt lgkmcnt(0)')
        A(f'v_mov_b32 v{vtmp+1}, 0')
        A('s_mov_b64 exec, 1')
        for k, idx in enumerate(self.pending):
            if idx is None:
                continue
            A(f'v_mov_b32 v{vtmp}, s{66 + 2*k}')
            A(f'global_store_dword v{vtmp+1}, v{vtmp}, s[94:95] offset:{idx * 4}')
        for idx, sreg in extra:
            A(f'v_mov_b32 v{vtmp}, s{sreg}')
            A(f'global_store_dword v{vtmp+1}, v{vtmp}, s[94:95] offset:{idx * 4}')
        A('s_mov_b64 exec, -1')

    def xrow(self, op, v, t):
        A = self.A
        A(f'v_mov_b32 v{t}, v{v}')
        A('s_nop 1')
        A(f'v_permlane16_swap_b32 v{v}, v{t}')
        A('s_nop 1')
        A(f'{op} v{v}, v{v}, v{t}')
        A(f'v_mov_b32 v{t}, v{v}')
        A('s_nop 1')
        A(f'v_permlane32_swap_b32 v{v}, v{t}')
        A('s_nop 1')
        A(f'{op} v{v}, v{v}, v{t}')

    def rowred(self, op, v, rors=(8, 4, 2, 1)):
        A = self.A
        for r in rors:
            A('s_nop 1')
            A(f'{op}_dpp v{v}, v{v}, v{v} row_ror:{r} row_mask:0xf bank_mask:0xf')

    def mrowred(self, op, regs, rors):
        A = self.A
        pad = max(0, 3 - len(regs))
        for r in rors:
            for _ in range(pad):
                A('s_nop 0')
            for v in regs:
                A(f'{op}_dpp v{v}, v{v}, v{v} row_ror:{r} row_mask:0xf bank_mask:0xf')
        return

    def mxrow(self, op, regs, tmps):
        A = self.A
        pad = max(0, 3 - len(regs))
        for swap in ('v_permlane16_swap_b32', 'v_permlane32_swap_b32'):
            for v, t in zip(regs, tmps):
                A(f'v_mov_b32 v{t}, v{v}')
            for _ in range(pad + 1):
                A('s_nop 0')
            for v, t in zip(regs, tmps):
                A(f'{swap} v{v}, v{t}')
            for _ in range(pad):
                A('s_nop 0')
            for v, t in zip(regs, tmps):
                A(f'{op} v{v}, v{v}, v{t}')

    def wavesum(self, v, t):
        self.rowred('v_add_f32', v)
        self.xrow('v_add_f32', v, t)

    def bf16r(self, dst, src, t):
        self.A(f'v_cvt_pk_bf16_f32 v{t}, v{src}, v{src}')
        self.A(f'v_lshlrev_b32 v{dst}, 16, v{t}')

    def spin_begin(self, sreg):
        self.A(f's_mov_b32 s{sreg}, {SPIN}')

    def spin_retry(self, sreg, loop, sleep=2):
        A = self.A
        A(f's_sleep {min(127, sleep * self.sleepmul)}')
        A(f's_sub_u32 s{sreg}, s{sreg}, 1')
        A(f's_cmp_lg_u32 s{sreg}, 0')
        A(f's_cbranch_scc1 {loop}')

    def wg_of(self, dst, s_h, s_or_imm_j):
        pass

    def entry(self):
        A = self.A
        if self.stamps:
            A('s_memrealtime s[90:91]')
        A('s_cmp_ge_u32 s2, 256')
        A('s_cbranch_scc1 L_end')
        A('s_load_dwordx16 s[4:19], s[0:1], 0')
        A('s_load_dwordx4 s[20:23], s[0:1], 64')
        A('s_load_dwordx2 s[24:25], s[0:1], 80')
        A('v_lshrrev_b32 v1, 6, v0')
        if self.headmap == 'lin':
            A('s_lshr_b32 s27, s2, 4')
            A('s_and_b32 s28, s2, 15')
        elif self.headmap == 'X4':
            A('s_and_b32 s40, s2, 7')
            A('s_lshr_b32 s41, s2, 3')
            A('s_lshl_b32 s41, s41, 1')
            A('s_and_b32 s28, s2, 1')
            A('s_add_u32 s41, s41, s28')
            A('s_lshr_b32 s40, s40, 1')
            A('s_lshl_b32 s27, s40, 2')
            A('s_lshr_b32 s28, s41, 4')
            A('s_add_u32 s27, s27, s28')
            A('s_and_b32 s28, s41, 15')
        elif self.headmap.startswith('G'):
            G = int(self.headmap[1:]); per = 16 // G
            A('s_and_b32 s40, s2, 7')
            A('s_lshr_b32 s41, s2, 3')
            A(f's_lshr_b32 s27, s41, {per.bit_length() - 1}')
            A(f's_and_b32 s28, s41, {per - 1}')
            A(f's_mul_i32 s28, s28, {G}')
            A(f's_and_b32 s41, s40, {G - 1}')
            A('s_add_u32 s28, s28, s41')
            A(f's_lshr_b32 s40, s40, {G.bit_length() - 1}')
            A(f's_mul_i32 s40, s40, {2 * G}')
            A('s_add_u32 s27, s27, s40')
        else:
            A('s_and_b32 s27, s2, 7')
            A('s_lshl_b32 s27, s27, 1')
            A('s_lshr_b32 s28, s2, 3')
            A('s_and_b32 s28, s28, 1')
            A('s_add_u32 s27, s27, s28')
            A('s_lshr_b32 s28, s2, 4')
        if self.ffnmap == 'spread':
            A('s_and_b32 s40, s27, 1')
            A('s_lshl_b32 s96, s27, 2')
            A('s_and_b32 s41, s28, 3')
            A('s_add_u32 s96, s96, s41')
            A('s_xor_b32 s41, s40, 1')
            A('s_lshl_b32 s41, s41, 2')
            A('s_bfe_u32 s42, s27, 0x20001')
            A('s_add_u32 s41, s41, s42')
            A('s_add_u32 s97, s27, 64')
            A('s_cmp_lt_u32 s27, 8')
            A('s_cselect_b32 s97, s97, 255')
            A('s_cmp_eq_u32 s28, s41')
            A('s_cselect_b32 s97, s97, 255')
            A('s_lshr_b32 s41, s28, 2')
            A('s_cmp_eq_u32 s41, s40')
            A('s_cselect_b32 s96, s96, s97')
        else:
            A('s_lshl_b32 s96, s27, 2')
            A('s_add_u32 s96, s96, s28')
            A('s_add_u32 s97, s27, 64')
            A('s_cmp_lt_u32 s27, 8')
            A('s_cselect_b32 s97, s97, 255')
            A('s_cmp_eq_u32 s28, 4')
            A('s_cselect_b32 s97, s97, 255')
            A('s_cmp_lt_u32 s28, 4')
            A('s_cselect_b32 s96, s96, s97')
        if self.redmap == 'spread':
            A('s_mul_i32 s97, s27, 3')
            A('s_sub_u32 s40, s28, s97')
            A('s_and_b32 s40, s40, 7')
            A('s_add_u32 s97, s97, s40')
            A('s_cmp_lt_u32 s40, 3')
            A('s_cselect_b32 s97, s97, 255')
            A('s_cmp_ge_u32 s28, 8')
            A('s_cselect_b32 s97, s97, 255')
        else:
            A('s_mul_i32 s97, s27, 3')
            A('s_add_u32 s97, s97, s28')
            A('s_sub_u32 s97, s97, 13')
            A('s_cmp_ge_u32 s28, 13')
            A('s_cselect_b32 s97, s97, 255')
        A('v_readfirstlane_b32 s26, v1')
        A('v_and_b32 v1, 63, v0')
        if self.fastpro:
            A('s_cmp_ge_u32 s26, 8')
            A('s_cbranch_scc1 L_helper')
            A('s_cmp_ge_u32 s26, 4')
            A('s_cbranch_scc1 L_loader')
        A('s_cmp_lg_u32 s26, 0')
        A('s_cbranch_scc1 L_noinit')
        A(f'v_lshlrev_b32 v2, 2, v1')
        A(f'v_add_u32 v2, {FL}, v2')
        A('v_mov_b32 v3, 0')
        A('ds_write_b32 v2, v3')
        self.L('L_noinit')
        A('s_waitcnt lgkmcnt(0)')
        if self.fastpro:
            A('s_barrier')
            return
        if self.hfirst:
            A('s_cmp_ge_u32 s26, 8')
            A('s_cbranch_scc1 L_helper')
        A('s_barrier')
        if not self.hfirst:
            A('s_cmp_ge_u32 s26, 8')
            A('s_cbranch_scc1 L_helper')
        A('s_cmp_ge_u32 s26, 4')
        A('s_cbranch_scc1 L_loader')

    def loader(self):
        A, W = self.A, self.W
        self.L('L_loader')
        self.pending = []
        if 'noload' in self.exp:
            A('s_endpgm')
        A('s_sub_u32 s29, s26, 4')
        A('s_lshl_b32 s40, s27, 24')
        A('s_add_u32 s30, s6, s40')
        A('s_addc_u32 s31, s7, 0')
        A('s_add_u32 s32, s8, s40')
        A('s_addc_u32 s33, s9, 0')
        A('s_lshl_b32 s41, s28, 2')
        A('s_add_u32 s41, s41, s29')
        A(f's_mul_i32 s40, s27, {self.rot * 64}')
        A('s_add_u32 s41, s41, s40')
        A('s_and_b32 s41, s41, 4095')
        A(f's_mul_i32 s38, s29, {RING}')
        A('v_lshrrev_b32 v2, 4, v1')
        A('v_and_b32 v3, 15, v1')
        A('v_lshlrev_b32 v4, 1, v2')
        A('v_xor_b32 v3, v3, v4')
        A('v_lshlrev_b32 v3, 4, v3')
        A('v_lshl_add_u32 v6, v2, 8, v3')
        A('v_xor_b32 v7, 128, v6')
        A('s_lshl_b32 s40, s29, 2')
        A(f's_add_u32 s40, s40, {FL}')
        A('v_mov_b32 v8, s40')
        A('s_mov_b32 s35, 0')
        A('s_mov_b32 s39, 0')
        A('v_mov_b32 v10, 0')
        A('s_mov_b32 s60, 0')
        A('s_mov_b32 s61, 0')
        if 'noprio' not in self.exp:
            A('s_setprio 2')
        pub_pos = (W - 1) % 8
        pub_off = (pub_pos - W + 1) // 8

        def publish(val_sreg_or_expr):
            A(f'v_mov_b32 v9, {val_sreg_or_expr}')
            A('s_mov_b64 exec, 1')
            A('ds_write_b32 v8, v9')
            A('s_mov_b64 exec, -1')

        US = self.US
        A(f's_mul_i32 s44, s27, {self.rot * 64}')
        A('s_add_u32 s44, s44, s29')
        A(f's_add_u32 s44, s44, {US * 64}')
        A('v_mov_b32 v11, 0')
        A('v_mov_b32 v13, 0')
        self.L('L_ld_loop')
        for u in range(4):
            ok = self.lab('L_ld_ok')
            sp = self.lab('L_ld_spin')
            st = self.lab('L_ld_static')
            idok = self.lab('L_ld_idok')
            idsp = self.lab('L_ld_idspin')
            if self.stamps and u == 0:
                for q, nn in enumerate((4, 8, 16, 32, 48)):
                    l = self.lab('L_ld_st')
                    A(f's_cmp_lg_u32 s35, {nn}')
                    A(f's_cbranch_scc1 {l}')
                    self.stamp(16 + q)
                    self.L(l)
            A('s_waitcnt lgkmcnt(0)')
            A('v_readfirstlane_b32 s39, v10')
            A('v_readfirstlane_b32 s45, v11')
            if self.Wend:
                A('v_readfirstlane_b32 s47, v13')
            A(f's_cmp_lt_u32 s35, {US}')
            A(f's_cbranch_scc1 {st}')
            A('s_cmp_lg_u32 s45, 0')
            A(f's_cbranch_scc1 {idok}')
            if self.stamps:
                A('s_add_u32 s61, s61, 1')
            A('s_waitcnt vmcnt(0)')
            publish('s35')
            self.spin_begin(42)
            self.L(idsp)
            A('ds_read_b32 v11, v12')
            A('s_waitcnt lgkmcnt(0)')
            A('v_readfirstlane_b32 s45, v11')
            A('s_cmp_lg_u32 s45, 0')
            A(f's_cbranch_scc1 {idok}')
            self.spin_retry(42, idsp, sleep=1)
            A('s_branch L_ld_end')
            self.L(idok)
            A('s_cmp_eq_u32 s45, -1')
            A('s_cbranch_scc1 L_ld_end')
            A('s_sub_u32 s45, s45, 1')
            A('s_lshl_b32 s45, s45, 2')
            A('s_add_u32 s41, s45, s44')
            A('s_and_b32 s41, s41, 4095')
            self.L(st)
            A('s_add_u32 s40, s39, 3')
            A('s_cmp_ge_u32 s40, s35')
            A(f's_cbranch_scc1 {ok}')
            A('s_waitcnt vmcnt(0)')
            publish('s35')
            if self.stamps:
                A('s_add_u32 s60, s60, 1')
            self.spin_begin(42)
            self.L(sp)
            A('ds_read_b32 v10, v8 offset:16')
            A('s_waitcnt lgkmcnt(0)')
            A('v_readfirstlane_b32 s39, v10')
            A('s_add_u32 s40, s39, 3')
            A('s_cmp_ge_u32 s40, s35')
            A(f's_cbranch_scc1 {ok}')
            self.spin_retry(42, sp, sleep=1)
            self.L(ok)
            A('s_lshl_b32 s40, s41, 12')
            A('s_add_u32 s46, s35, 1')
            A(f's_sub_i32 s46, s46, {US}')
            A('s_max_i32 s46, s46, 0')
            A('s_lshl_b32 s46, s46, 2')
            A(f's_add_u32 s46, s46, {IDS}')
            A('v_mov_b32 v12, s46')
            def issue(Wx):
                pp = (Wx - 1) % 8
                po = (pp - Wx + 1) // 8
                for kv in range(2):
                    A(f's_add_u32 s36, s{30 + 2 * kv}, s40')
                    A(f's_addc_u32 s37, s{31 + 2 * kv}, 0')
                    A(f's_add_u32 m0, s38, {(2 * u + kv) * 4096}')
                    for jj in range(4):
                        A(f's_waitcnt vmcnt({Wx - 1})')
                        if kv * 4 + jj == pp:
                            skip = self.lab('L_ld_np')
                            if po < 0:
                                A(f's_cmp_lt_u32 s35, {-po}')
                                A(f's_cbranch_scc1 {skip}')
                                A(f's_sub_u32 s43, s35, {-po}')
                                publish('s43')
                                self.L(skip)
                            else:
                                publish('s35')
                        pol = ' nt'
                        if (kv == 1 and 'vplain' in self.exp) or (kv == 0 and 'kplain' in self.exp):
                            pol = ''
                        A(f'global_load_lds_dwordx4 v{6 + (jj & 1)}, s[36:37] offset:{jj * 1024}{pol}')
                        if self.earlyflags and kv == 1 and jj == 1:
                            A('ds_read_b32 v10, v8 offset:16')
                            A('ds_read_b32 v11, v12')
                            if self.Wend:
                                A('ds_read_b32 v13, v8 offset:48')
            if self.Wend:
                fast = self.lab('L_ld_fast')
                join = self.lab('L_ld_join')
                A('s_cmp_lg_u32 s47, 0')
                A(f's_cbranch_scc1 {fast}')
                issue(W)
                A(f's_branch {join}')
                self.L(fast)
                issue(self.Wend)
                self.L(join)
                if not self.earlyflags:
                    A('ds_read_b32 v13, v8 offset:48')
            else:
                issue(W)
            if not self.earlyflags:
                A('ds_read_b32 v10, v8 offset:16')
                A('ds_read_b32 v11, v12')
            A('s_add_u32 s41, s41, 64')
            A('s_and_b32 s41, s41, 4095')
            A('s_add_u32 s35, s35, 1')
        A('s_branch L_ld_loop')
        self.L('L_ld_end')
        A('s_waitcnt vmcnt(0)')
        A('s_or_b32 s43, s35, 0x80000000')
        publish('s43')
        A('s_waitcnt lgkmcnt(0)')
        if self.stamps:
            A('s_cmp_lg_u32 s26, 4')
            A('s_cbranch_scc1 L_ld_ns')
            self.stamp(8)
            self.flush_stamps(extra=[(9, 60), (21, 35), (22, 61)])
            self.L('L_ld_ns')
        A('s_endpgm')


    def loader_tk(self):
        A, W, US = self.A, self.W, self.US
        self.L('L_loader')
        self.pending = []
        if 'noload' in self.exp:
            A('s_endpgm')
        if 'coldprobe' in self.exp:
            A('s_branch L_cp0')
            self.L('L_cpback')
        A('s_sub_u32 s29, s26, 4')
        xt = 'xt4' in self.exp
        if xt:
            A('s_mov_b32 s30, s6')
            A('s_mov_b32 s31, s7')
            A('s_mov_b32 s32, s8')
            A('s_mov_b32 s33, s9')
            A('s_lshr_b32 s54, s27, 2')
            A(f's_mul_i32 s44, s54, {self.xrot}')
            A('s_and_b32 s40, s27, 3')
            A('s_lshl_b32 s41, s40, 4')
            A('s_add_u32 s41, s41, s28')
            A('s_lshl_b32 s41, s41, 2')
            A('s_add_u32 s49, s41, s44')
            A(f's_mul_i32 s40, s40, {(64 - US) * 64}')
            A('s_add_u32 s44, s44, s40')
            A(f's_add_u32 s44, s44, {(US - 48) * 256}')
            A('s_lshl_b32 s54, s54, 2')
            A('s_add_u32 s55, s54, 3')
            A('s_lshl_b32 s55, s55, 12')
        else:
            if not self.fastpro:
                A('s_lshl_b32 s40, s27, 24')
                A('s_add_u32 s30, s6, s40')
                A('s_addc_u32 s31, s7, 0')
                A('s_add_u32 s32, s8, s40')
                A('s_addc_u32 s33, s9, 0')
            A(f's_mul_i32 s44, s27, {self.rot * 64}')
            A('s_lshl_b32 s41, s28, 2')
            A('s_add_u32 s49, s41, s44')
            A(f's_add_u32 s44, s44, {US * 64}')
        A(f's_mul_i32 s38, s29, {RING}')
        A('v_lshrrev_b32 v2, 4, v1')
        A('v_and_b32 v3, 15, v1')
        A('v_lshlrev_b32 v4, 1, v2')
        A('v_xor_b32 v3, v3, v4')
        A('v_lshlrev_b32 v3, 4, v3')
        A('v_lshl_add_u32 v6, v2, 8, v3')
        A('v_xor_b32 v7, 128, v6')
        A('s_lshl_b32 s40, s29, 2')
        A(f's_add_u32 s40, s40, {FL}')
        A('v_mov_b32 v8, s40')
        A(f'v_mov_b32 v14, {FL}')
        A('v_mov_b32 v16, 1')
        if self.fastpro:
            A('s_add_u32 s41, s49, s29')
            A('s_and_b32 s41, s41, 4095')
            A('s_lshl_b32 s41, s41, 12')
            A('s_lshl_b32 s40, s27, 24')
            A('s_add_u32 s41, s41, s40')
            A('s_mov_b32 m0, s38')
            A('s_waitcnt lgkmcnt(0)')
        A('s_mov_b32 s35, 0')
        A('s_mov_b32 s46, s29')
        A('v_mov_b32 v10, 0')
        A('v_mov_b32 v11, 0')
        A('v_mov_b32 v13, 0')
        A(f'v_mov_b32 v12, {IDS}')
        A('v_mov_b32 v18, 0')
        A('v_mov_b32 v19, 0')
        if self.share2:
            for r in range(20, 24):
                A(f'v_mov_b32 v{r}, 0')
        A('s_mov_b32 s60, 0')
        A('s_mov_b32 s61, 0')
        A('s_setprio 2')

        def publish(val):
            A(f'v_mov_b32 v9, {val}')
            A('s_mov_b64 exec, 1')
            A('ds_write_b32 v8, v9')
            A('s_mov_b64 exec, -1')

        if self.fastpro:
            assert not xt and self.tk_pos >= 4 and (W - 1) % 8 >= 4
            A('s_add_u32 s36, s6, s41')
            A('s_addc_u32 s37, s7, 0')
            for jj in range(4):
                A(f'global_load_lds_dwordx4 v{6 + (jj & 1)}, s[36:37] offset:{jj * 1024} nt')
            A('s_add_u32 s30, s6, s40')
            A('s_addc_u32 s31, s7, 0')
            A('s_add_u32 s32, s8, s40')
            A('s_addc_u32 s33, s9, 0')
            A('s_sub_u32 s40, s41, s40')
            A('s_barrier')
            if self.stamps:
                self.stamp_at(28, 6)
            A('s_branch L_ld_first_v')
        elif self.stamps:
            self.stamp_at(28, 6)
        self.L('L_ld_loop')
        for u in range(4):
            ok = self.lab('L_ld_ok')
            sp = self.lab('L_ld_spin')
            st = self.lab('L_ld_static')
            adr = self.lab('L_ld_adr')
            idok = self.lab('L_ld_idok')
            idsp = self.lab('L_ld_idspin')
            if self.stamps:
                for q, nn in enumerate(self.prog_pts):
                    if nn % 4 != u:
                        continue
                    l = self.lab('L_ld_st')
                    A(f's_cmp_lg_u32 s35, {nn}')
                    A(f's_cbranch_scc1 {l}')
                    self.stamp_at(16 + q, q)
                    self.L(l)
            A('s_waitcnt lgkmcnt(0)')
            A('v_readfirstlane_b32 s39, v10')
            A('v_readfirstlane_b32 s45, v11')
            A('v_readfirstlane_b32 s47, v13')
            A('s_lshr_b32 s41, s46, 2')
            A('s_and_b32 s43, s46, 3')
            A(f's_cmp_lt_u32 s41, {US}')
            A(f's_cbranch_scc1 {st}')
            if self.share and self.share2:
                rdy = self.lab('L_ld_rdy')
                shsp = self.lab('L_ld_shspin')
                zb = self.lab('L_ld_zb')
                zrdy = self.lab('L_ld_zrdy')
                zsp = self.lab('L_ld_zspin')
                zf = self.lab('L_ld_zf')
                A('v_readfirstlane_b32 s45, v20')
                A('s_cmp_lg_u32 s45, 0')
                A(f's_cbranch_scc1 {rdy}')
                if self.stamps:
                    A('s_add_u32 s61, s61, 1')
                A('s_waitcnt vmcnt(0)')
                publish('s35')
                self.spin_begin(42)
                self.L(shsp)
                A(f'ds_read_b128 v[20:23], v12')
                A('s_waitcnt lgkmcnt(0)')
                A('v_readfirstlane_b32 s45, v20')
                A('s_cmp_lg_u32 s45, 0')
                A(f's_cbranch_scc1 {rdy}')
                self.spin_retry(42, shsp, sleep=1)
                A('s_branch L_ld_end')
                self.L(rdy)
                A('v_readfirstlane_b32 s52, v22')
                A(f's_sub_u32 s51, s46, {4 * US - 1}')
                A('s_cmp_ge_u32 s51, s45')
                A(f's_cbranch_scc1 {zb}')
                A('v_readfirstlane_b32 s50, v21')
                A('s_add_u32 s41, s50, s51')
                A('s_add_u32 s41, s41, s44')
                A(f's_branch {zf}')
                self.L(zb)
                A('s_cmp_lg_u32 s52, 0')
                A(f's_cbranch_scc1 {zrdy}')
                A(f'ds_read_b128 v[20:23], v12')
                A('s_waitcnt lgkmcnt(0)')
                A('v_readfirstlane_b32 s52, v22')
                A('s_cmp_lg_u32 s52, 0')
                A(f's_cbranch_scc1 {zrdy}')
                if self.stamps:
                    A('s_add_u32 s61, s61, 0x100')
                A('s_waitcnt vmcnt(0)')
                publish('s35')
                self.spin_begin(42)
                self.L(zsp)
                A(f'ds_read_b128 v[20:23], v12')
                A('s_waitcnt lgkmcnt(0)')
                A('v_readfirstlane_b32 s52, v22')
                A('s_cmp_lg_u32 s52, 0')
                A(f's_cbranch_scc1 {zrdy}')
                self.spin_retry(42, zsp, sleep=1)
                A('s_branch L_ld_end')
                self.L(zrdy)
                A('v_readfirstlane_b32 s50, v23')
                A('s_sub_u32 s41, s51, s45')
                A('s_add_u32 s41, s41, 1')
                A('s_cmp_ge_u32 s41, s52')
                A('s_cbranch_scc1 L_ld_end')
                A('s_add_u32 s41, s41, s50')
                A('s_add_u32 s41, s41, s44')
                A(f's_add_u32 s41, s41, {(self.UB - US) * 64}')
                self.L(zf)
                A('s_add_u32 s47, s45, s52')
                A(f's_add_u32 s51, s51, {self.xfast + 1}')
                A('s_cmp_ge_u32 s51, s47')
                A('s_cselect_b32 s47, 1, 0')
                A('s_cmp_eq_u32 s52, 0')
                A('s_cselect_b32 s47, 0, s47')
                A('s_sub_u32 s41, s41, 1')
                A('s_and_b32 s41, s41, 4095')
                if xt:
                    A('s_or_b32 s41, s41, s55')
                A(f's_branch {adr}_b')
            elif self.share:
                rdy = self.lab('L_ld_rdy')
                shsp = self.lab('L_ld_shspin')
                A('v_readfirstlane_b32 s45, v18')
                A('s_cmp_lg_u32 s45, 0')
                A(f's_cbranch_scc1 {rdy}')
                if self.stamps:
                    A('s_add_u32 s61, s61, 1')
                A('s_waitcnt vmcnt(0)')
                publish('s35')
                self.spin_begin(42)
                self.L(shsp)
                A(f'ds_read_b64 v[18:19], v12')
                A('s_waitcnt lgkmcnt(0)')
                A('v_readfirstlane_b32 s45, v18')
                A('s_cmp_lg_u32 s45, 0')
                A(f's_cbranch_scc1 {rdy}')
                self.spin_retry(42, shsp, sleep=1)
                A('s_branch L_ld_end')
                self.L(rdy)
                A('v_readfirstlane_b32 s50, v19')
                A(f's_sub_u32 s51, s46, {4 * US - 1}')
                A('s_cmp_ge_u32 s51, s45')
                A('s_cbranch_scc1 L_ld_end')
                A(f's_add_u32 s47, s51, {self.xfast}')
                A('s_cmp_ge_u32 s47, s45')
                A('s_cselect_b32 s47, 1, 0')
                A('s_add_u32 s41, s50, s51')
                A('s_add_u32 s41, s41, s44')
                A('s_sub_u32 s41, s41, 1')
                A('s_and_b32 s41, s41, 4095')
                if xt:
                    A('s_or_b32 s41, s41, s55')
                A(f's_branch {adr}_b')
            A('s_cmp_lg_u32 s45, 0')
            A(f's_cbranch_scc1 {idok}')
            if self.stamps:
                A('s_add_u32 s61, s61, 1')
            A('s_waitcnt vmcnt(0)')
            publish('s35')
            self.spin_begin(42)
            self.L(idsp)
            A('ds_read_b32 v11, v12')
            A('s_waitcnt lgkmcnt(0)')
            A('v_readfirstlane_b32 s45, v11')
            A('s_cmp_lg_u32 s45, 0')
            A(f's_cbranch_scc1 {idok}')
            self.spin_retry(42, idsp, sleep=1)
            A('s_branch L_ld_end')
            self.L(idok)
            A('s_cmp_eq_u32 s45, -1')
            A('s_cbranch_scc1 L_ld_end')
            A('s_sub_u32 s45, s45, 1')
            A('s_lshl_b32 s41, s45, 2')
            A('s_add_u32 s41, s41, s44')
            A(f's_branch {adr}')
            self.L(st)
            if xt:
                A('s_lshr_b32 s48, s41, 4')
                A('s_add_u32 s48, s48, s54')
                A('s_lshl_b32 s48, s48, 12')
                A('s_and_b32 s41, s41, 15')
                A('s_lshl_b32 s41, s41, 8')
            else:
                A('s_lshl_b32 s41, s41, 6')
            A('s_add_u32 s41, s41, s49')
            self.L(adr)
            A('s_add_u32 s41, s41, s43')
            A('s_and_b32 s41, s41, 4095')
            if xt:
                A('s_or_b32 s41, s41, s48')
            self.L(f'{adr}_b')
            A('s_add_u32 s40, s39, 3')
            A('s_cmp_ge_u32 s40, s35')
            A(f's_cbranch_scc1 {ok}')
            A('s_waitcnt vmcnt(0)')
            publish('s35')
            if self.stamps:
                A('s_add_u32 s60, s60, 1')
            self.spin_begin(42)
            self.L(sp)
            A('ds_read_b32 v10, v8 offset:16')
            A('s_waitcnt lgkmcnt(0)')
            A('v_readfirstlane_b32 s39, v10')
            A('s_add_u32 s40, s39, 3')
            A('s_cmp_ge_u32 s40, s35')
            A(f's_cbranch_scc1 {ok}')
            self.spin_retry(42, sp, sleep=1)
            self.L(ok)
            A('s_lshl_b32 s40, s41, 12')

            def issue(Wx):
                pp = (Wx - 1) % 8
                po = (pp - Wx + 1) // 8
                for kv in range(2):
                    if self.fastpro and u == 0 and kv == 1 and Wx == W:
                        self.L('L_ld_first_v')
                    A(f's_add_u32 s36, s{30 + 2 * kv}, s40')
                    A(f's_addc_u32 s37, s{31 + 2 * kv}, 0')
                    A(f's_add_u32 m0, s38, {(2 * u + kv) * 4096}')
                    for jj in range(4):
                        A(f's_waitcnt vmcnt({Wx - 1})')
                        if kv * 4 + jj == pp:
                            skip = self.lab('L_ld_np')
                            if po < 0:
                                A(f's_cmp_lt_u32 s35, {-po}')
                                A(f's_cbranch_scc1 {skip}')
                                A(f's_sub_u32 s43, s35, {-po}')
                                publish('s43')
                                self.L(skip)
                            else:
                                publish('s35')
                        A(f'global_load_lds_dwordx4 v{6 + (jj & 1)}, s[36:37] offset:{jj * 1024} nt')
                        if kv * 4 + jj == self.tk_pos:
                            A('s_mov_b64 exec, 1')
                            A('ds_add_rtn_u32 v15, v14, v16 offset:52')
                            A('s_mov_b64 exec, -1')
                        if kv * 4 + jj == self.tk_pos + 2:
                            A('s_waitcnt lgkmcnt(0)')
                            A('v_readfirstlane_b32 s46, v15')
                            A('s_add_u32 s46, s46, 4')
                            if self.share and self.pertau:
                                for q, row in enumerate((self.C0, self.C)):
                                    l = self.lab('L_ld_ts')
                                    A(f's_cmp_lg_u32 s46, {4 * row}')
                                    A(f's_cbranch_scc1 {l}')
                                    A('s_memrealtime s[52:53]')
                                    A('s_waitcnt lgkmcnt(0)')
                                    A('v_mov_b32 v20, s52')
                                    A('s_mov_b64 exec, 1')
                                    A(f'ds_write_b32 v14, v20 offset:{232 + 4 * q}')
                                    A('s_mov_b64 exec, -1')
                                    self.L(l)
                            A('s_lshr_b32 s48, s46, 2')
                            A(f's_sub_i32 s48, s48, {US}')
                            A('s_max_i32 s48, s48, 0')
                            A(f's_min_i32 s48, s48, {CAP + 1}')
                            A('s_lshl_b32 s48, s48, 2')
                            A(f's_add_u32 s48, s48, {IDS}')
                            A('ds_read_b32 v10, v8 offset:16')
                            if self.share and self.share2:
                                A('ds_read_b128 v[20:23], v12')
                            elif self.share:
                                A('ds_read_b64 v[18:19], v12')
                                if self.ffnboost:
                                    A('ds_read_b32 v13, v14 offset:48')
                            else:
                                A('v_mov_b32 v12, s48')
                                A('ds_read_b32 v11, v12')
                                A('ds_read_b32 v13, v14 offset:48')
            fast = self.lab('L_ld_fast')
            join = self.lab('L_ld_join')
            A('s_cmp_lg_u32 s47, 0')
            A(f's_cbranch_scc1 {fast}')
            if self.nstart > u:
                A(f's_cmp_lt_u32 s35, {self.nstart}')
                A(f's_cbranch_scc1 {fast}')
            issue(W)
            A(f's_branch {join}')
            self.L(fast)
            issue(self.Wend)
            self.L(join)
            A('s_add_u32 s35, s35, 1')
        A('s_branch L_ld_loop')
        self.L('L_ld_end')
        if not self.w2late and self.wo_by == 'loader' and 'nowo' not in self.exp:
            A('s_lshl_b32 s40, s27, 4')
            A('s_add_u32 s40, s40, s28')
            A('s_mul_i32 s40, s40, 18432')
            A('s_mul_i32 s41, s29, 5120')
            A('s_add_u32 s40, s40, s41')
            A('s_add_u32 s36, s12, s40')
            A('s_addc_u32 s37, s13, 0')
            A(f's_add_u32 s41, s41, {STG}')
            A('s_mov_b32 m0, s41')
            A('v_lshlrev_b32 v17, 4, v1')
            for i in range(3):
                A(f'global_load_lds_dwordx4 v17, s[36:37] offset:{1024 * i} nt')
            A('s_cmp_eq_u32 s29, 3')
            A('s_cbranch_scc1 L_ld_wo3')
            A('global_load_lds_dwordx4 v17, s[36:37] offset:3072 nt')
            A('s_add_u32 s36, s36, 4096')
            A('s_addc_u32 s37, s37, 0')
            A('s_add_u32 m0, s41, 4096')
            A('s_nop 0')
            A('global_load_lds_dwordx4 v17, s[36:37] nt')
            A('s_waitcnt vmcnt(5)')
            A('s_branch L_ld_wodn')
            self.L('L_ld_wo3')
            A('s_waitcnt vmcnt(3)')
            self.L('L_ld_wodn')
        else:
            if self.stage_end:
                A('s_waitcnt vmcnt(8)')
                A('s_sub_i32 s43, s35, 1')
                A('s_max_i32 s43, s43, 0')
                publish('s43')
            A('s_waitcnt vmcnt(0)')
        A('s_or_b32 s43, s35, 0x80000000')
        publish('s43')
        if not self.w2late and self.wo_by == 'loader':
            A('s_waitcnt lgkmcnt(0)')
            A('s_barrier')
            A('s_waitcnt vmcnt(0)')
            A('v_mov_b32 v9, 1')
            A('s_mov_b64 exec, 1')
            A('ds_write_b32 v8, v9 offset:240')
            A('s_mov_b64 exec, -1')
        A('s_waitcnt lgkmcnt(0)')
        if self.stamps:
            A('s_cmp_lg_u32 s26, 4')
            A('s_cbranch_scc1 L_ld_ns')
            while len(self.pending) < 5:
                self.pending.append(None)
            self.stamp(8)
            self.flush_stamps(extra=[(9, 60), (21, 35), (22, 61), (27, 90)])
            self.L('L_ld_ns')
        A('s_endpgm')

    def ids(self):
        A = self.A
        assert self.ffnmap == 'spread' and self.redmap == 'spread' and self.headmap == 'lin'
        A('s_and_b32 s40, s27, 1')
        A('s_lshl_b32 s96, s27, 2')
        A('s_and_b32 s41, s28, 3')
        A('s_add_u32 s96, s96, s41')
        A('s_xor_b32 s41, s40, 1')
        A('s_lshl_b32 s41, s41, 2')
        A('s_bfe_u32 s42, s27, 0x20001')
        A('s_add_u32 s41, s41, s42')
        A('s_add_u32 s97, s27, 64')
        A('s_cmp_lt_u32 s27, 8')
        A('s_cselect_b32 s97, s97, 255')
        A('s_cmp_eq_u32 s28, s41')
        A('s_cselect_b32 s97, s97, 255')
        A('s_lshr_b32 s41, s28, 2')
        A('s_cmp_eq_u32 s41, s40')
        A('s_cselect_b32 s96, s96, s97')
        A('s_mul_i32 s97, s27, 3')
        A('s_sub_u32 s40, s28, s97')
        A('s_and_b32 s40, s40, 7')
        A('s_add_u32 s97, s97, s40')
        A('s_cmp_lt_u32 s40, 3')
        A('s_cselect_b32 s97, s97, 255')
        A('s_cmp_ge_u32 s28, 8')
        A('s_cselect_b32 s97, s97, 255')

    def entry3(self):
        A = self.A
        if self.pads:
            A('s_branch L_pad_e')
            self.L('L_e1')
        if self.stamps:
            A('s_memrealtime s[90:91]')
        A('s_cmp_ge_u32 s2, 256')
        A('s_cbranch_scc1 L_end')
        A('s_load_dwordx16 s[4:19], s[0:1], 0')
        A('s_load_dwordx4 s[20:23], s[0:1], 64')
        A('s_load_dwordx2 s[24:25], s[0:1], 80')
        A('v_lshrrev_b32 v1, 6, v0')
        A('s_lshr_b32 s27, s2, 4')
        A('s_and_b32 s28, s2, 15')
        A('v_readfirstlane_b32 s26, v1')
        A('v_and_b32 v1, 63, v0')
        A('s_cmp_ge_u32 s26, 8')
        A('s_cbranch_scc1 L_helper')
        if self.S != 256:
            A('s_cmp_lt_u32 s26, 4')
            A('s_cbranch_scc1 L_cons0')
            return
        A('s_cmp_ge_u32 s26, 4')
        A('s_cbranch_scc1 L_ld0')
        self.cons_pre()
        self.L('L_ld0')

    def cons_pre(self):
        A = self.A
        A(f'v_lshlrev_b32 v2, 2, v1')
        A(f'v_add_u32 v2, {FL}, v2')
        A('v_mov_b32 v3, 0')
        A('ds_write_b32 v2, v3')
        if self.table:
            A('s_lshl_b32 s40, s26, 10')
            A(f's_add_u32 s40, s40, {TBL}')
            A('v_lshlrev_b32 v2, 4, v1')
            A('v_add_u32 v2, s40, v2')
            for r in range(4, 8):
                A(f'v_mov_b32 v{r}, 0')
            A('ds_write_b128 v2, v[4:7]')
        A('s_waitcnt lgkmcnt(0)')
        A('s_barrier')
        A('s_branch L_cons1')

    def loader3(self):
        A, W, US = self.A, self.W, self.US
        assert self.share and self.share2 and self.stage_end and self.wo_by == 'w23' and not self.w2late
        assert self.tk_pos >= 4 and (W - 1) % 8 >= 4
        self.pending = []
        A('s_sub_u32 s29, s26, 4')
        A(f's_mul_i32 s44, s27, {self.rot * 64}')
        if self.tmap == 'jw':
            A(f's_lshl_b32 s41, s28, {2 + self.lblk}')
            A('s_add_u32 s49, s41, s44')
            if self.irot:
                A(f's_mul_i32 s53, s28, {self.irot}')
                A('s_add_u32 s41, s53, s29')
                A(f's_and_b32 s41, s41, {(4 << self.lblk) - 1}')
                A('s_add_u32 s41, s49, s41')
            else:
                A('s_add_u32 s41, s49, s29')
        elif self.tmap == 'wj':
            A('s_add_u32 s49, s28, s44')
            A('s_lshl_b32 s41, s29, 4')
            A('s_add_u32 s41, s49, s41')
        elif self.tmap == 'x2':
            A('s_and_b32 s41, s28, 7')
            A('s_lshl_b32 s41, s41, 3')
            A('s_lshr_b32 s49, s28, 3')
            A('s_lshl_b32 s49, s49, 2')
            A('s_add_u32 s41, s41, s49')
            A('s_add_u32 s49, s41, s44')
            A('s_add_u32 s41, s49, s29')
        S = self.S
        ls = S.bit_length() - 1
        cpb = S // 256

        def tile_bytes(dst, tile, tmp):
            if S == 256:
                A(f's_lshl_b32 s{dst}, s{tile}, 12')
            else:
                A(f's_and_b32 s{tmp}, s{tile}, {cpb - 1}')
                A(f's_mul_i32 s{tmp}, s{tmp}, 3840')
                A(f's_lshl_b32 s{dst}, s{tile}, 12')
                A(f's_sub_u32 s{dst}, s{dst}, s{tmp}')
        voff = (lambda jj: 6 + (jj & 1)) if S == 256 else (lambda jj: 24 + jj)
        A('s_and_b32 s41, s41, 4095')
        tile_bytes(41, 41, 50)
        A('s_lshl_b32 s40, s27, 24')
        A('s_add_u32 s41, s41, s40')
        A('s_lshl_b32 s38, s29, 15')
        A('s_mov_b32 m0, s38')
        A('v_lshrrev_b32 v2, 4, v1')
        A('v_and_b32 v3, 15, v1')
        A('v_lshlrev_b32 v4, 1, v2')
        A('v_xor_b32 v3, v3, v4')
        A('v_lshlrev_b32 v3, 4, v3')
        if S == 256:
            A('v_lshl_add_u32 v6, v2, 8, v3')
            A('v_xor_b32 v7, 128, v6')
        else:
            A(f'v_lshl_add_u32 v24, v2, {ls}, v3')
            A('v_xor_b32 v25, 128, v24')
            A(f'v_add_u32 v26, {8 * S - 2048}, v24')
            A(f'v_add_u32 v25, {4 * S - 1024}, v25')
        A('s_waitcnt lgkmcnt(0)')
        A('s_add_u32 s36, s6, s41')
        A('s_addc_u32 s37, s7, 0')
        for jj in range(4):
            if S != 256 and jj == 3:
                A(f'v_add_u32 v27, {8 * S - 2048}, v25')
            A(f'global_load_lds_dwordx4 v{voff(jj)}, s[36:37] offset:{jj * 1024} nt')
        A('s_add_u32 s30, s6, s40')
        A('s_addc_u32 s31, s7, 0')
        A('s_add_u32 s32, s8, s40')
        A('s_addc_u32 s33, s9, 0')
        A('s_sub_u32 s40, s41, s40')
        A(f's_add_u32 s44, s44, {US * 64}')
        A('s_lshl_b32 s41, s29, 2')
        A(f's_add_u32 s41, s41, {FL}')
        A('v_mov_b32 v8, s41')
        A(f'v_mov_b32 v14, {FL}')
        A('v_mov_b32 v16, 1')
        A('s_mov_b32 s35, 0')
        A('s_mov_b32 s47, 0')
        A('v_mov_b32 v10, 0')
        A(f'v_mov_b32 v12, {IDS}')
        for r in range(20, 24):
            A(f'v_mov_b32 v{r}, 0')
        if self.stamps:
            A('s_mov_b32 s60, 0')
            A('s_mov_b32 s61, 0')
        A('s_setprio 2')
        if self.stamps:
            self.stamp_at(28, 6)
        A('s_barrier')
        A('s_branch L_ld_first_v')
        if S != 256:
            self.L('L_cons0')
            self.cons_pre()

        def publish(val):
            A(f'v_mov_b32 v9, {val}')
            A('s_mov_b64 exec, 1')
            A('ds_write_b32 v8, v9')
            A('s_mov_b64 exec, -1')

        def issue(u, Wx):
            pp = (Wx - 1) % 8
            po = (pp - Wx + 1) // 8
            for kv in range(2):
                if u == 0 and kv == 1 and Wx == W:
                    self.L('L_ld_first_v')
                A(f's_add_u32 s36, s{30 + 2 * kv}, s40')
                A(f's_addc_u32 s37, s{31 + 2 * kv}, 0')
                A(f's_add_u32 m0, s38, {(2 * u + kv) * 4096}')
                for jj in range(4):
                    A(f's_waitcnt vmcnt({Wx - 1})')
                    if kv * 4 + jj == pp:
                        skip = self.lab('L_ld_np')
                        if po < 0:
                            A(f's_cmp_lt_u32 s35, {-po}')
                            A(f's_cbranch_scc1 {skip}')
                            A(f's_sub_u32 s43, s35, {-po}')
                            publish('s43')
                            self.L(skip)
                        else:
                            publish('s35')
                    A(f'global_load_lds_dwordx4 v{voff(jj)}, s[36:37] offset:{jj * 1024} nt')
                    if kv * 4 + jj == self.tk_pos:
                        A('s_mov_b64 exec, 1')
                        A('ds_add_rtn_u32 v15, v14, v16 offset:52')
                        A('s_mov_b64 exec, -1')
                    if kv * 4 + jj == self.tk_pos + 2:
                        A('s_waitcnt lgkmcnt(0)')
                        A('v_readfirstlane_b32 s46, v15')
                        A('ds_read_b32 v10, v8 offset:16')
                        if self.table:
                            A('s_lshl_b32 s48, s46, 2')
                            A(f's_add_u32 s48, s48, {TBL + 16 - 16 * US}')
                            A('v_mov_b32 v12, s48')
                            A('ds_read_b32 v11, v12')
                        else:
                            A('ds_read_b128 v[20:23], v12')
                        A('s_add_u32 s46, s46, 4')

        self.L('L_ld_loop')
        for u in range(4):
            if self.stamps:
                for q, nn in enumerate(self.prog_pts):
                    if nn % 4 != u:
                        continue
                    l = self.lab('L_ld_st')
                    A(f's_cmp_lg_u32 s35, {nn}')
                    A(f's_cbranch_scc1 {l}')
                    self.stamp_at(16 + q, q)
                    self.L(l)
            A('s_waitcnt lgkmcnt(0)')
            A('v_readfirstlane_b32 s39, v10')
            A(f's_lshr_b32 s41, s46, {2 + self.lblk}')
            if self.irot:
                A('s_add_u32 s43, s46, s53')
                A(f's_and_b32 s43, s43, {(4 << self.lblk) - 1}')
            else:
                A(f's_and_b32 s43, s46, {(4 << self.lblk) - 1}')
            A(f's_cmp_ge_u32 s41, {US >> self.lblk}')
            A(f's_cbranch_scc1 L_ld_sh{u}')
            A(f's_lshl_b32 s41, s41, {6 + self.lblk}')
            A('s_add_u32 s41, s41, s49')
            if self.tmap == 'wj':
                A('s_lshl_b32 s43, s43, 4')
            A('s_add_u32 s41, s41, s43')
            A('s_and_b32 s41, s41, 4095')
            self.L(f'L_ld_adr{u}')
            A('s_add_u32 s40, s39, 3')
            A('s_cmp_lt_u32 s40, s35')
            A(f's_cbranch_scc1 L_ld_sp{u}')
            self.L(f'L_ld_ok{u}')
            tile_bytes(40, 41, 50)
            A('s_cmp_lg_u32 s47, 0')
            A(f's_cbranch_scc1 L_ld_fast{u}')
            issue(u, W)
            self.L(f'L_ld_join{u}')
            A('s_add_u32 s35, s35, 1')
        A('s_branch L_ld_loop')
        for u in range(4):
            self.L(f'L_ld_sp{u}')
            A('s_waitcnt vmcnt(0)')
            publish('s35')
            if self.stamps:
                A('s_add_u32 s60, s60, 1')
            self.spin_begin(42)
            self.L(f'L_ld_spl{u}')
            A('ds_read_b32 v10, v8 offset:16')
            A('s_waitcnt lgkmcnt(0)')
            A('v_readfirstlane_b32 s39, v10')
            A('s_add_u32 s40, s39, 3')
            A('s_cmp_ge_u32 s40, s35')
            A(f's_cbranch_scc1 L_ld_ok{u}')
            self.spin_retry(42, f'L_ld_spl{u}', sleep=1)
            A(f's_branch L_ld_ok{u}')
        for u in range(4 if self.table else 0):
            rdy, shsp = f'L_ld_rdy{u}', f'L_ld_shspin{u}'
            self.L(f'L_ld_sh{u}')
            A('v_readfirstlane_b32 s45, v11')
            A('s_cmp_lg_u32 s45, 0')
            A(f's_cbranch_scc1 {rdy}')
            A('ds_read_b32 v11, v12')
            A('s_waitcnt lgkmcnt(0)')
            A('v_readfirstlane_b32 s45, v11')
            A('s_cmp_lg_u32 s45, 0')
            A(f's_cbranch_scc1 {rdy}')
            if self.stamps:
                A('s_add_u32 s61, s61, 1')
            A('s_waitcnt vmcnt(0)')
            publish('s35')
            self.spin_begin(42)
            self.L(shsp)
            A('ds_read_b32 v11, v12')
            A('s_waitcnt lgkmcnt(0)')
            A('v_readfirstlane_b32 s45, v11')
            A('s_cmp_lg_u32 s45, 0')
            A(f's_cbranch_scc1 {rdy}')
            self.spin_retry(42, shsp, sleep=1)
            A('s_branch L_ld_end')
            self.L(rdy)
            A('s_cmp_lt_i32 s45, 0')
            A('s_cbranch_scc1 L_ld_end')
            A('s_bfe_u32 s47, s45, 0x1001e')
            A('s_sub_u32 s41, s45, 1')
            A('s_and_b32 s41, s41, 4095')
            A(f's_branch L_ld_adr{u}')
        for u in range(0 if self.table else 4):
            rdy, shsp, zb, zrdy, zsp, zf = (f'L_ld_{x}{u}' for x in ('rdy', 'shspin', 'zb', 'zrdy', 'zspin', 'zf'))
            self.L(f'L_ld_sh{u}')
            A('v_readfirstlane_b32 s45, v20')
            A('s_cmp_lg_u32 s45, 0')
            A(f's_cbranch_scc1 {rdy}')
            if self.stamps:
                A('s_add_u32 s61, s61, 1')
            A('s_waitcnt vmcnt(0)')
            publish('s35')
            self.spin_begin(42)
            self.L(shsp)
            A(f'ds_read_b128 v[20:23], v12')
            A('s_waitcnt lgkmcnt(0)')
            A('v_readfirstlane_b32 s45, v20')
            A('s_cmp_lg_u32 s45, 0')
            A(f's_cbranch_scc1 {rdy}')
            self.spin_retry(42, shsp, sleep=1)
            A('s_branch L_ld_end')
            self.L(rdy)
            A('v_readfirstlane_b32 s52, v22')
            A(f's_sub_u32 s51, s46, {4 * US - 1}')
            A('s_cmp_ge_u32 s51, s45')
            A(f's_cbranch_scc1 {zb}')
            A('v_readfirstlane_b32 s50, v21')
            A('s_add_u32 s41, s50, s51')
            A('s_add_u32 s41, s41, s44')
            A(f's_branch {zf}')
            self.L(zb)
            A('s_cmp_lg_u32 s52, 0')
            A(f's_cbranch_scc1 {zrdy}')
            A(f'ds_read_b128 v[20:23], v12')
            A('s_waitcnt lgkmcnt(0)')
            A('v_readfirstlane_b32 s52, v22')
            A('s_cmp_lg_u32 s52, 0')
            A(f's_cbranch_scc1 {zrdy}')
            if self.stamps:
                A('s_add_u32 s61, s61, 0x100')
            A('s_waitcnt vmcnt(0)')
            publish('s35')
            self.spin_begin(42)
            self.L(zsp)
            A(f'ds_read_b128 v[20:23], v12')
            A('s_waitcnt lgkmcnt(0)')
            A('v_readfirstlane_b32 s52, v22')
            A('s_cmp_lg_u32 s52, 0')
            A(f's_cbranch_scc1 {zrdy}')
            self.spin_retry(42, zsp, sleep=1)
            A('s_branch L_ld_end')
            self.L(zrdy)
            A('v_readfirstlane_b32 s50, v23')
            A('s_sub_u32 s41, s51, s45')
            A('s_add_u32 s41, s41, 1')
            A('s_cmp_ge_u32 s41, s52')
            A('s_cbranch_scc1 L_ld_end')
            A('s_add_u32 s41, s41, s50')
            A('s_add_u32 s41, s41, s44')
            A(f's_add_u32 s41, s41, {(self.UB - US) * 64}')
            self.L(zf)
            A('s_add_u32 s47, s45, s52')
            A(f's_add_u32 s51, s51, {self.xfast + 1}')
            A('s_cmp_ge_u32 s51, s47')
            A('s_cselect_b32 s47, 1, 0')
            A('s_cmp_eq_u32 s52, 0')
            A('s_cselect_b32 s47, 0, s47')
            A('s_sub_u32 s41, s41, 1')
            A('s_and_b32 s41, s41, 4095')
            A(f's_branch L_ld_adr{u}')
        for u in range(4):
            self.L(f'L_ld_fast{u}')
            issue(u, self.Wend)
            A(f's_branch L_ld_join{u}')
        self.L('L_ld_end')
        A('s_waitcnt vmcnt(8)')
        A('s_sub_i32 s43, s35, 1')
        A('s_max_i32 s43, s43, 0')
        publish('s43')
        A('s_waitcnt vmcnt(0)')
        A('s_or_b32 s43, s35, 0x80000000')
        publish('s43')
        A('s_waitcnt lgkmcnt(0)')
        if self.stamps:
            A('s_cmp_lg_u32 s26, 4')
            A('s_cbranch_scc1 L_ld_ns')
            while len(self.pending) < 5:
                self.pending.append(None)
            self.stamp(8)
            self.flush_stamps(extra=[(9, 60), (21, 35), (22, 61), (27, 90)])
            self.L('L_ld_ns')
        A('s_endpgm')

    def cons0(self):
        A = self.A
        self.L('L_cons1')
        if self.pads:
            self.o.append('@CHAIN')
        self.ids()


    def poll(self, name, loads, checks, sleep, allmask='-1', sr=60, probe=True):
        A = self.A
        inv, n, sw, cnt = sr, sr + 2, sr + 3, sr + 4
        if allmask == '-1':
            A(f's_mov_b64 s[{inv}:{inv+1}], -1')
        else:
            A(f's_mov_b64 s[{inv}:{inv+1}], {allmask}')
        A(f's_mov_b32 s{sw}, 1')
        A(f's_mov_b32 s{cnt}, {SPIN}')
        self.L(f'{name}_loop')
        A(f's_bcnt1_i32_b64 s{n}, s[{inv}:{inv+1}]')
        A(f's_cmp_le_u32 s{n}, {8 if probe else 64}')
        A(f's_cselect_b32 s{sw}, 1, s{sw}')
        A(f's_mov_b64 exec, s[{inv}:{inv+1}]')
        A(f's_cmp_lg_u32 s{sw}, 0')
        A(f's_cbranch_scc1 {name}_go')
        A(f's_ff1_i32_b64 s{n}, s[{inv}:{inv+1}]')
        A(f's_lshl_b64 exec, 1, s{n}')
        self.L(f'{name}_go')
        for l in loads:
            A(l)
        A('s_waitcnt vmcnt(0)')
        acc = checks()
        A(f'v_cmp_eq_u32 vcc, 0, v{acc}')
        A(f's_andn2_b64 s[{inv}:{inv+1}], s[{inv}:{inv+1}], vcc')
        A(f's_cmp_lg_u64 vcc, 0')
        A(f's_cselect_b32 s{n}, 1, 0')
        A(f's_xor_b32 s{sw}, s{sw}, 1')
        A(f's_and_b32 s{sw}, s{sw}, s{n}')
        A('s_mov_b64 exec, -1')
        A(f's_cmp_eq_u64 s[{inv}:{inv+1}], 0')
        A(f's_cbranch_scc1 {name}_done')
        if self.fastpoll:
            A(f's_bcnt1_i32_b64 s{n}, s[{inv}:{inv+1}]')
            A(f's_cmp_le_u32 s{n}, 8')
            A(f's_cbranch_scc1 {name}_ns')
        A(f's_sleep {sleep}')
        if self.fastpoll:
            self.L(f'{name}_ns')
        A(f's_sub_u32 s{cnt}, s{cnt}, 1')
        A(f's_cmp_lg_u32 s{cnt}, 0')
        A(f's_cbranch_scc1 {name}_loop')
        self.L(f'{name}_done')


    def poll2(self, name, mk_loads, basesA, basesB, acc, tmp, sleep, sr=60, stag=4, thresh=16, more=()):
        A = self.A
        inv, n, sw, cnt = sr, sr + 2, sr + 3, sr + 4
        nl = len(basesA)
        sets = [basesA, basesB] + list(more)
        A(f's_mov_b64 s[{inv}:{inv+1}], -1')
        A(f's_mov_b32 s{sw}, 1')
        A(f's_mov_b32 s{cnt}, {SPIN}')
        self.L(f'{name}_loop')
        A(f's_mov_b64 exec, s[{inv}:{inv+1}]')
        A(f's_cmp_lg_u32 s{sw}, 0')
        A(f's_cbranch_scc1 {name}_go')
        A(f's_ff1_i32_b64 s{n}, s[{inv}:{inv+1}]')
        A(f's_lshl_b64 exec, 1, s{n}')
        self.L(f'{name}_go')
        for l in mk_loads(basesA):
            A(l)
        A('s_waitcnt vmcnt(0)')
        self.chk3(basesA, acc, tmp)
        A(f'v_cmp_eq_u32 vcc, 0, v{acc}')
        A(f's_andn2_b64 s[{inv}:{inv+1}], s[{inv}:{inv+1}], vcc')
        A(f's_cmp_lg_u64 vcc, 0')
        A(f's_cselect_b32 s{n}, 1, 0')
        A(f's_xor_b32 s{sw}, s{sw}, 1')
        A(f's_and_b32 s{sw}, s{sw}, s{n}')
        A('s_mov_b64 exec, -1')
        A(f's_cmp_eq_u64 s[{inv}:{inv+1}], 0')
        A(f's_cbranch_scc1 {name}_done')
        A(f's_bcnt1_i32_b64 s{n}, s[{inv}:{inv+1}]')
        A(f's_cmp_le_u32 s{n}, {thresh}')
        A(f's_cbranch_scc1 {name}_p2')
        A(f's_sleep {sleep}')
        A(f's_sub_u32 s{cnt}, s{cnt}, 1')
        A(f's_cmp_lg_u32 s{cnt}, 0')
        A(f's_cbranch_scc1 {name}_loop')
        A(f's_branch {name}_done')
        self.L(f'{name}_p2')
        A(f's_mov_b64 exec, s[{inv}:{inv+1}]')
        for k, X in enumerate(sets):
            if k:
                A(f's_sleep {stag}')
            for l in mk_loads(X):
                A(l)
        self.L(f'{name}_p2l')
        for X in sets:
            A(f's_waitcnt vmcnt({nl * (len(sets) - 1)})')
            self.chk3(X, acc, tmp)
            A(f'v_cmp_eq_u32 vcc, 0, v{acc}')
            A(f's_and_b64 vcc, vcc, s[{inv}:{inv+1}]')
            if X is not basesA:
                A('s_mov_b64 exec, vcc')
                for bA, bB in zip(basesA, X):
                    for r in range(3):
                        A(f'v_mov_b32 v{bA + r}, v{bB + r}')
            A(f's_andn2_b64 s[{inv}:{inv+1}], s[{inv}:{inv+1}], vcc')
            A(f's_cmp_eq_u64 s[{inv}:{inv+1}], 0')
            A(f's_cbranch_scc1 {name}_done')
            A(f's_mov_b64 exec, s[{inv}:{inv+1}]')
            for l in mk_loads(X):
                A(l)
        A(f's_sub_u32 s{cnt}, s{cnt}, 1')
        A(f's_cmp_lg_u32 s{cnt}, 0')
        A(f's_cbranch_scc1 {name}_p2l')
        self.L(f'{name}_done')
        A('s_mov_b64 exec, -1')

    def pollm(self, name, mk_loads, sets, acc, stag, invs, anyr=60, first=True):
        A = self.A
        nl = len(sets[0])
        cnt = anyr + 4
        for iv in invs:
            A(f's_mov_b64 s[{iv}:{iv+1}], -1')
        A(f's_mov_b32 s{cnt}, {SPIN}')

        def check(X):
            for i, (b, iv) in enumerate(zip(X, invs)):
                A(f's_mov_b64 exec, s[{iv}:{iv+1}]')
                A(f'v_bitop3_b32 v{acc}, v{b}, v{b+1}, v{b+2} bitop3:0x96')
                A(f'v_bitop3_b32 v{acc}, v{acc}, v{b+3}, s29 bitop3:0x96')
                A(f'v_cmp_eq_u32 vcc, 0, v{acc}')
                A(f's_andn2_b64 s[{iv}:{iv+1}], s[{iv}:{iv+1}], vcc')
                if X is not sets[0]:
                    A('s_mov_b64 exec, vcc')
                    for r in range(3):
                        A(f'v_mov_b32 v{sets[0][i] + r}, v{b + r}')
            A(f's_or_b64 s[{anyr}:{anyr+1}], s[{invs[0]}:{invs[0]+1}], s[{invs[1]}:{invs[1]+1}]')
            for iv in invs[2:]:
                A(f's_or_b64 s[{anyr}:{anyr+1}], s[{anyr}:{anyr+1}], s[{iv}:{iv+1}]')
            A(f's_cbranch_scc0 {name}_done')

        def issue(X):
            for l, iv in zip(mk_loads(X), invs):
                A(f's_cmp_eq_u64 s[{iv}:{iv+1}], 0')
                A(f's_cselect_b64 exec, 1, s[{iv}:{iv+1}]')
                A(l)

        if first and len(sets) > 1:
            for l in mk_loads(sets[0]):
                A(l)
            A('s_waitcnt vmcnt(0)')
            check(sets[0])
            for k, X in enumerate(sets):
                if k:
                    A(f's_sleep {stag}')
                issue(X)
        else:
            for k, X in enumerate(sets):
                if k:
                    A(f's_sleep {stag}')
                for l in mk_loads(X):
                    A(l)
        self.L(f'{name}_loop')
        for X in sets:
            A(f's_waitcnt vmcnt({nl * (len(sets) - 1)})')
            check(X)
            issue(X)
        A(f's_sub_u32 s{cnt}, s{cnt}, 1')
        A(f's_cmp_lg_u32 s{cnt}, 0')
        A(f's_cbranch_scc1 {name}_loop')
        self.L(f'{name}_done')
        A('s_mov_b64 exec, -1')

    def chk3(self, groups, acc, tmp, tag=29):
        A = self.A
        for n, b in enumerate(groups):
            d = acc if n == 0 else tmp
            A(f'v_bitop3_b32 v{d}, v{b}, v{b+1}, v{b+2} bitop3:0x96')
            A(f'v_bitop3_b32 v{d}, v{d}, v{b+3}, s{tag} bitop3:0x96')
            if n:
                A(f'v_or_b32 v{acc}, v{acc}, v{tmp}')
        return acc

    def mkchk(self, b, tag=29):
        self.A(f'v_bitop3_b32 v{b+3}, v{b}, v{b+1}, v{b+2} bitop3:0x96')
        self.A(f'v_xor_b32 v{b+3}, s{tag}, v{b+3}')

    def cstamp(self, idx):
        self.stamp(idx)

    def cflush(self):
        if self.stamps:
            l = self.lab('L_nf')
            self.A('s_cmp_lg_u32 s26, 0')
            self.A(f's_cbranch_scc1 {l}')
            self.flush_stamps()
            self.L(l)

    def consumer(self):
        A = self.A
        self.pending = []
        KA, VA, FA = 2, 6, 14
        Q, O, KF, VF, S = 16, 32, 64, 80, 96
        MC, LS = 100, 101
        T = 102
        P = 118
        A(f's_mul_i32 s38, s26, {RING}')
        A('v_and_b32 v20, 15, v1')
        A('v_lshrrev_b32 v21, 4, v1')
        A('v_and_b32 v22, 7, v20')
        A('v_lshlrev_b32 v22, 1, v22')
        A('v_lshlrev_b32 v23, 8, v20')
        A('v_add_u32 v23, s38, v23')
        for i in range(4):
            A(f'v_add_u32 v24, {4 * i}, v21')
            A('v_xor_b32 v24, v24, v22')
            A(f'v_lshl_add_u32 v{KA + i}, v24, 4, v23')
        A('v_lshrrev_b32 v22, 2, v20')
        A('v_lshl_add_u32 v22, v21, 2, v22')
        A('v_and_b32 v24, 7, v22')
        A('v_lshlrev_b32 v23, 8, v22')
        A('v_add_u32 v23, s38, v23')
        A('v_and_b32 v25, 3, v20')
        A('v_lshl_add_u32 v23, v25, 3, v23')
        for m in range(8):
            A(f'v_xor_b32 v25, {m}, v24')
            A(f'v_lshl_add_u32 v{VA + m}, v25, 5, v23')
        A('s_lshl_b32 s40, s26, 2')
        A(f's_add_u32 s40, s40, {FL}')
        A(f'v_mov_b32 v{FA}, s40')
        for r in range(32):
            A(f'v_mov_b32 v{O + r}, 0')
        A(f'v_mov_b32 v{MC}, 0xff800000')
        A(f'v_mov_b32 v{LS}, 0')
        A(f's_mov_b32 s44, {LOG2E}')
        KB, VB = 128, 144
        def wait_full(done_label):
            go = self.lab('L_c_go')
            pl = self.lab('L_c_poll')
            A('s_and_b32 s40, s39, 0x7fffffff')
            A('s_cmp_gt_u32 s40, s35')
            A(f's_cbranch_scc1 {go}')
            if self.trim:
                A('s_cmp_lt_i32 s39, 0')
                A(f's_cbranch_scc1 {done_label}')
            self.spin_begin(42)
            self.L(pl)
            A(f'ds_read_b32 v{T}, v{FA}')
            A('s_waitcnt lgkmcnt(0)')
            A(f'v_readfirstlane_b32 s39, v{T}')
            A('s_and_b32 s40, s39, 0x7fffffff')
            A('s_cmp_gt_u32 s40, s35')
            A(f's_cbranch_scc1 {go}')
            A('s_cmp_lt_i32 s39, 0')
            A(f's_cbranch_scc1 {done_label}')
            self.spin_retry(42, pl, sleep=1)
            A(f's_branch {done_label}')
            self.L(go)
        def reads(u, kf, vf):
            for i in range(4):
                A(f'ds_read_b128 v[{kf + 4*i}:{kf + 4*i + 3}], v{KA + i} offset:{(2*u) * 4096}')
            for m in range(8):
                A(f'ds_read_b64_tr_b16 v[{vf + 2*m}:{vf + 2*m + 1}], v{VA + m} offset:{(2*u + 1) * 4096}')
            A('s_add_u32 s35, s35, 1')
        def qk(kf):
            for i in range(4):
                c = '0' if i == 0 else f'v[{S}:{S+3}]'
                A(f'v_mfma_f32_16x16x32_bf16 v[{S}:{S+3}], v[{kf + 4*i}:{kf + 4*i + 3}], v[{Q + 4*i}:{Q + 4*i + 3}], {c}')
        def free():
            A(f'v_mov_b32 v{T}, s35')
            A('s_waitcnt lgkmcnt(0)')
            A('s_mov_b64 exec, 1')
            A(f'ds_write_b32 v{FA}, v{T} offset:16')
            A('s_mov_b64 exec, -1')
        def softmax_pv(vf):
            nr = self.lab('L_c_nr')
            A(f'v_cvt_pk_bf16_f32 v{T}, v{S}, v{S+1}')
            A(f'v_cvt_pk_bf16_f32 v{T+1}, v{S+2}, v{S+3}')
            A(f'v_lshlrev_b32 v{T+2}, 16, v{T}')
            A(f'v_and_b32 v{T+3}, 0xffff0000, v{T}')
            A(f'v_lshlrev_b32 v{T+4}, 16, v{T+1}')
            A(f'v_and_b32 v{T+5}, 0xffff0000, v{T+1}')
            for r in range(4):
                A(f'v_mul_f32 v{T+2+r}, {SCALE:#x}, v{T+2+r}')
            A(f'v_cvt_pk_bf16_f32 v{T}, v{T+2}, v{T+3}')
            A(f'v_cvt_pk_bf16_f32 v{T+1}, v{T+4}, v{T+5}')
            A(f'v_lshlrev_b32 v{T+2}, 16, v{T}')
            A(f'v_and_b32 v{T+3}, 0xffff0000, v{T}')
            A(f'v_lshlrev_b32 v{T+4}, 16, v{T+1}')
            A(f'v_and_b32 v{T+5}, 0xffff0000, v{T+1}')
            A(f'v_max3_f32 v{T+6}, v{T+2}, v{T+3}, v{T+4}')
            A(f'v_max_f32 v{T+6}, v{T+6}, v{T+5}')
            A(f'v_mul_f32 v{T+6}, s44, v{T+6}')
            A(f'v_cmp_gt_f32 vcc, v{T+6}, v{MC}')
            A(f's_cbranch_vccz {nr}')
            self.xrow('v_max_f32', T + 6, T + 7)
            A(f'v_max_f32 v{T+6}, v{T+6}, v{MC}')
            A(f'v_sub_f32 v{T+7}, v{MC}, v{T+6}')
            A(f'v_exp_f32 v{T+7}, v{T+7}')
            A(f'v_mov_b32 v{MC}, v{T+6}')
            A(f'v_mul_f32 v{LS}, v{LS}, v{T+7}')
            for r in range(32):
                A(f'v_mul_f32 v{O + r}, v{O + r}, v{T+7}')
            self.L(nr)
            for r in range(4):
                A(f'v_fma_f32 v{T+2+r}, v{T+2+r}, s44, -v{MC}')
            for r in range(4):
                A(f'v_exp_f32 v{T+2+r}, v{T+2+r}')
            A('s_nop 0')
            A(f'v_cvt_pk_bf16_f32 v{P}, v{T+2}, v{T+3}')
            A(f'v_cvt_pk_bf16_f32 v{P+1}, v{T+4}, v{T+5}')
            A(f'v_add_f32 v{T+2}, v{T+2}, v{T+3}')
            A(f'v_add_f32 v{T+4}, v{T+4}, v{T+5}')
            A(f'v_add_f32 v{LS}, v{LS}, v{T+2}')
            A(f'v_add_f32 v{LS}, v{LS}, v{T+4}')
            for m in range(8):
                A(f'v_mfma_f32_16x16x16_bf16 v[{O + 4*m}:{O + 4*m + 3}], v[{vf + 2*m}:{vf + 2*m + 1}], v[{P}:{P+1}], v[{O + 4*m}:{O + 4*m + 3}]')

        A('v_lshlrev_b32 v123, 9, v20')
        A('v_lshl_add_u32 v123, v21, 4, v123')
        A('s_lshl_b32 s40, s26, 10')
        A(f's_add_u32 s40, s40, {OC}')
        A('v_add_u32 v123, s40, v123')
        A('s_lshl_b32 s40, s26, 4')
        A(f's_add_u32 s40, s40, {OCML}')
        A('v_lshlrev_b32 v124, 3, v20')
        A('v_add_u32 v124, s40, v124')
        A('s_lshl_b32 s40, s26, 6')
        A('v_add_u32 v122, s40, v1')
        A('v_lshrrev_b32 v125, 3, v122')
        A('v_lshlrev_b32 v125, 6, v125')
        A('v_and_b32 v122, 7, v122')
        A('v_mul_u32_u24 v122, 12, v122')
        A('v_add_u32 v125, v125, v122')
        A(f'v_add_u32 v125, {OC}, v125')
        A('s_mov_b32 s35, 0')
        A('s_mov_b32 s39, 0')
        A(f'v_and_b32 v15, 1, v20')
        A(f'v_lshlrev_b32 v15, 8, v15')
        A(f'v_lshl_add_u32 v15, v21, 4, v15')
        A(f'v_add_u32 v15, {QL}, v15')
        if self.preread and 'noload' not in self.exp:
            wait_full('L_c_done')
            reads(0, KF, VF)
            free()
            wait_full('L_c_done')
            reads(1, KB, VB)
            free()
        A(f'v_mov_b32 v{T}, {FL}')
        self.spin_begin(42)
        self.L('L_c_qwait')
        A(f'ds_read_b32 v{T+2}, v{T} offset:32')
        A('s_waitcnt lgkmcnt(0)')
        A(f'v_readfirstlane_b32 s40, v{T+2}')
        A('s_cmp_lg_u32 s40, 0')
        A('s_cbranch_scc1 L_c_qok')
        if 'noq' in self.exp:
            A('s_branch L_c_qok')
        self.spin_retry(42, 'L_c_qwait', sleep=2)
        self.L('L_c_qok')
        for i in range(4):
            A(f'ds_read_b128 v[{Q + 4*i}:{Q + 4*i + 3}], v15 offset:{64 * i}')
        A('s_waitcnt lgkmcnt(0)')
        self.cstamp(1)
        if 'noload' in self.exp:
            self.cflush()
            A('s_endpgm')
        if self.preread:
            qk(KF)
            A('s_nop 7')
            softmax_pv(VF)
            qk(KB)
            A('s_nop 7')
            softmax_pv(VB)
            A('s_branch L_c_u2')
        self.L('L_c_loop')
        for u in range(4):
            if u == 2:
                self.L('L_c_u2')
            wait_full('L_c_done')
            reads(u, KF, VF)
            A('s_waitcnt lgkmcnt(8)')
            qk(KF)
            free()
            A('s_nop 3')
            softmax_pv(VF)
        A('s_branch L_c_loop')
        self.L('L_c_done')

        self.cstamp(2)
        if 'notail' in self.exp:
            self.cflush()
            A('s_endpgm')
        A('s_mov_b32 s46, 0x00030003')
        A('s_mov_b32 s47, 0x00030003')
        A('s_mov_b64 exec, s[46:47]')
        for m in range(8):
            A(f'ds_write_b128 v123, v[{O + 4*m}:{O + 4*m + 3}] offset:{64 * m}')
        A('s_mov_b64 exec, -1')
        self.xrow('v_add_f32', LS, T)
        A('s_mov_b64 exec, 3')
        A(f'ds_write_b64 v124, v[{MC}:{LS}]')
        A('s_mov_b64 exec, -1')
        A(f'v_mov_b32 v{T+3}, {FL}')
        A(f'ds_read_b32 v68, v{T+3} offset:36')
        A('s_lshl_b32 s51, s27, 4')
        A('s_add_u32 s51, s51, s28')
        A('s_waitcnt lgkmcnt(0)')
        A('s_barrier')
        A('v_readfirstlane_b32 s29, v68')
        A('s_cmp_ge_u32 s26, 2')
        A('s_cbranch_scc1 L_c_nopub')
        A('s_lshl_b32 s45, s26, 3')
        A(f's_add_u32 s45, s45, {OCML}')
        A(f'v_mov_b32 v{T+2}, s45')
        for k in range(4):
            A(f'ds_read_b64 v[{70 + 2*k}:{71 + 2*k}], v{T+2} offset:{16 * k}')
        for k in range(4):
            for i in range(3):
                A(f'ds_read_b32 v{32 + 4*i + k}, v125 offset:{1024 * k + 4 * i}')
        A('s_lshl_b32 s45, s51, 11')
        A(f's_add_u32 s45, s45, {WS_P}')
        A('s_add_u32 s48, s24, s45')
        A('s_addc_u32 s49, s25, 0')
        A('s_lshl_b32 s40, s26, 10')
        A(f'v_lshlrev_b32 v{T+3}, 4, v1')
        A(f'v_add_u32 v{T+3}, s40, v{T+3}')
        A('s_mov_b32 s46, 0x20202020')
        A('s_mov_b32 s47, 0x20202020')
        A('s_waitcnt lgkmcnt(12)')
        A('v_max3_f32 v80, v70, v72, v74')
        A('v_max_f32 v80, v80, v76')
        for k in range(4):
            A(f'v_sub_f32 v{82 + k}, v{70 + 2*k}, v80')
        for k in range(4):
            A(f'v_exp_f32 v{82 + k}, v{82 + k}')
        A('s_nop 0')
        A('v_mul_f32 v81, v71, v82')
        for k in range(1, 4):
            A(f'v_fmac_f32 v81, v{71 + 2*k}, v{82 + k}')
        A('s_waitcnt lgkmcnt(0)')
        for i in range(3):
            A(f'v_mul_f32 v{88 + i}, v{32 + 4*i}, v82')
        for k in range(1, 4):
            for i in range(3):
                A(f'v_fmac_f32 v{88 + i}, v{32 + 4*i + k}, v{82 + k}')
        A('v_cndmask_b32 v89, v89, v80, s[46:47]')
        A('v_cndmask_b32 v90, v90, v81, s[46:47]')
        self.mkchk(88)
        A(f'global_store_dwordx4 v{T+3}, v[88:91], s[48:49] sc1')
        if self.wo_delay:
            A('s_lshl_b32 s45, s26, 2')
            A(f's_add_u32 s45, s45, {FL + 56}')
            A(f'v_mov_b32 v{T+1}, s45')
            A(f'v_mov_b32 v{T}, 1')
            A('s_mov_b64 exec, 1')
            A(f'ds_write_b32 v{T+1}, v{T}')
            A('s_mov_b64 exec, -1')
        self.cstamp(3)
        if self.flate is True:
            A(f's_cmp_ge_u32 s96, {NFFN}')
            A('s_cbranch_scc1 L_c_nofp')
            A('s_mul_i32 s45, s26, 1536')
            A('v_lshlrev_b32 v30, 4, v1')
            A('v_add_u32 v30, s45, v30')
            A(f'v_add_u32 v31, {FB}, v30')
            A('ds_read_b128 v[32:35], v31')
            A('ds_read_b128 v[36:39], v31 offset:1024')
            A('s_mul_i32 s45, s96, 3072')
            A(f's_add_u32 s45, s45, {WS_F}')
            A('s_add_u32 s56, s24, s45')
            A('s_addc_u32 s57, s25, 0')
            A('s_waitcnt lgkmcnt(0)')
            A('global_store_dwordx4 v30, v[32:35], s[56:57] sc1')
            A('s_mov_b32 s46, -1')
            A('s_mov_b32 s47, 0')
            A('s_mov_b64 exec, s[46:47]')
            A('global_store_dwordx4 v30, v[36:39], s[56:57] offset:1024 sc1')
            A('s_mov_b64 exec, -1')
            A('s_branch L_c_pubdone')
            self.L('L_c_nofp')
            A(f's_cmp_ge_u32 s97, {NRED}')
            A('s_cbranch_scc1 L_c_pubdone')
            A(f's_cmp_lg_u32 s26, {self.fwave}')
            A('s_cbranch_scc1 L_c_pubdone')
            self.f_gather('L_c_f', sleep=self.fsleep, probe=False)
        A('s_branch L_c_pubdone')
        self.L('L_c_nopub')
        if self.w2late == 'after':
            A(f'v_lshlrev_b32 v{T}, 4, v1')
            A('s_sub_u32 s45, s26, 2')
            A('s_mul_i32 s40, s51, 18432')
            A('s_mul_i32 s58, s45, 9216')
            A('s_add_u32 s40, s40, s58')
            A('s_add_u32 s48, s12, s40')
            A('s_addc_u32 s49, s13, 0')
            A(f's_add_u32 s58, s58, {STG}')
            for i in range(9):
                if i % 4 == 0:
                    A(f's_add_u32 m0, s58, {1024 * i}')
                    A('s_nop 0')
                A(f'global_load_lds_dwordx4 v{T}, s[48:49] offset:{1024 * (i % 4)} nt')
                if i % 4 == 3:
                    A('s_add_u32 s48, s48, 4096')
                    A('s_addc_u32 s49, s49, 0')
            A('s_mul_i32 s40, s51, 20736')
            A('s_mul_i32 s58, s45, 11264')
            A('s_add_u32 s40, s40, s58')
            A('s_add_u32 s48, s18, s40')
            A('s_addc_u32 s49, s19, 0')
            A(f's_add_u32 s58, s58, {W2S}')
            for i in range(11):
                if i % 4 == 0:
                    A(f's_add_u32 m0, s58, {1024 * i}')
                    A('s_nop 0')
                if i == 9:
                    A('s_cmp_eq_u32 s45, 0')
                    A('s_cselect_b64 s[46:47], -1, 0xffff')
                    A('s_mov_b64 exec, s[46:47]')
                if i == 10:
                    A('s_mov_b64 exec, -1')
                    A('s_cmp_lg_u32 s45, 0')
                    A('s_cbranch_scc1 L_c_w2x')
                A(f'global_load_lds_dwordx4 v{T}, s[48:49] offset:{1024 * (i % 4)} nt')
                if i % 4 == 3:
                    A('s_add_u32 s48, s48, 4096')
                    A('s_addc_u32 s49, s49, 0')
            self.L('L_c_w2x')
            A('s_lshl_b32 s45, s26, 2')
            A(f's_add_u32 s45, s45, {FL + 32}')
            A(f'v_mov_b32 v{T+1}, s45')
            A(f'v_mov_b32 v{T+2}, 1')
            A('s_waitcnt vmcnt(10)')
            A('s_mov_b64 exec, 1')
            A(f'ds_write_b32 v{T+1}, v{T+2}')
            A('s_mov_b64 exec, -1')
        elif self.w2late:
            A(f'v_lshlrev_b32 v{T}, 4, v1')
            A('s_sub_u32 s45, s26, 2')
            A('s_mul_i32 s40, s51, 20736')
            A('s_mul_i32 s58, s45, 11264')
            A('s_add_u32 s40, s40, s58')
            A('s_add_u32 s48, s18, s40')
            A('s_addc_u32 s49, s19, 0')
            A(f's_add_u32 s58, s58, {W2S}')
            for i in range(11):
                if i % 4 == 0:
                    A(f's_add_u32 m0, s58, {1024 * i}')
                    A('s_nop 0')
                if i == 9:
                    A('s_cmp_eq_u32 s45, 0')
                    A('s_cselect_b64 s[46:47], -1, 0xffff')
                    A('s_mov_b64 exec, s[46:47]')
                if i == 10:
                    A('s_mov_b64 exec, -1')
                    A('s_cmp_lg_u32 s45, 0')
                    A('s_cbranch_scc1 L_c_w2x')
                A(f'global_load_lds_dwordx4 v{T}, s[48:49] offset:{1024 * (i % 4)} nt')
                if i % 4 == 3:
                    A('s_add_u32 s48, s48, 4096')
                    A('s_addc_u32 s49, s49, 0')
            self.L('L_c_w2x')
            A('s_mul_i32 s40, s51, 18432')
            A('s_mul_i32 s58, s45, 9216')
            A('s_add_u32 s40, s40, s58')
            A('s_add_u32 s48, s12, s40')
            A('s_addc_u32 s49, s13, 0')
            A(f's_add_u32 s58, s58, {STG}')
            for i in range(9):
                if i % 4 == 0:
                    A(f's_add_u32 m0, s58, {1024 * i}')
                    A('s_nop 0')
                A(f'global_load_lds_dwordx4 v{T}, s[48:49] offset:{1024 * (i % 4)} nt')
                if i % 4 == 3:
                    A('s_add_u32 s48, s48, 4096')
                    A('s_addc_u32 s49, s49, 0')
            A('s_lshl_b32 s45, s26, 2')
            A(f's_add_u32 s45, s45, {FL + 32}')
            A(f'v_mov_b32 v{T+1}, s45')
            A(f'v_mov_b32 v{T+2}, 1')
            A('s_waitcnt vmcnt(9)')
            A('s_mov_b64 exec, 1')
            A(f'ds_write_b32 v{T+1}, v{T+2} offset:16')
            A('s_mov_b64 exec, -1')
        if not self.w2late and self.wo_by == 'w23':
            A(f'v_lshlrev_b32 v{T}, 4, v1')
            A('s_sub_u32 s45, s26, 2')
            A('s_mul_i32 s40, s51, 18432')
            A('s_mul_i32 s58, s45, 9216')
            A('s_add_u32 s40, s40, s58')
            A('s_add_u32 s48, s12, s40')
            A('s_addc_u32 s49, s13, 0')
            A(f's_add_u32 s58, s58, {STG}')
            if self.wo_delay:
                A(f'v_mov_b32 v{T+1}, {FL}')
                self.spin_begin(42)
                self.L('L_c_wod')
                A(f'ds_read_b64 v[{T+8}:{T+9}], v{T+1} offset:56')
                A('s_waitcnt lgkmcnt(0)')
                A(f'v_and_b32 v{T+8}, v{T+8}, v{T+9}')
                A('s_nop 0')
                A(f'v_readfirstlane_b32 s40, v{T+8}')
                A('s_cmp_lg_u32 s40, 0')
                A('s_cbranch_scc1 L_c_wod_ok')
                self.spin_retry(42, 'L_c_wod', sleep=0)
                self.L('L_c_wod_ok')
            for i in range(9):
                if i % 4 == 0:
                    A(f's_add_u32 m0, s58, {1024 * i}')
                    A('s_nop 0')
                if self.wo_win and i >= self.wo_win:
                    A(f's_waitcnt vmcnt({self.wo_win - 1})')
                if 'nowo' not in self.exp:
                    A(f'global_load_lds_dwordx4 v{T}, s[48:49] offset:{1024 * (i % 4)} nt')
                if i % 4 == 3:
                    A('s_add_u32 s48, s48, 4096')
                    A('s_addc_u32 s49, s49, 0')
            A('s_lshl_b32 s45, s26, 2')
            A(f's_add_u32 s45, s45, {FL + 32}')
            A(f'v_mov_b32 v{T+1}, s45')
            A(f'v_mov_b32 v{T+2}, 1')
            A('s_waitcnt vmcnt(0)')
            A('s_mov_b64 exec, 1')
            A(f'ds_write_b32 v{T+1}, v{T+2}')
            A('s_mov_b64 exec, -1')
        self.L('L_c_pubdone')
        A(f'v_and_b32 v{T}, 15, v1')
        A(f'v_lshrrev_b32 v{T+1}, 4, v1')
        A(f'v_lshrrev_b32 v{T+3}, 2, v{T}')
        A(f'v_and_b32 v{T+4}, 3, v{T}')
        A(f'v_lshl_add_u32 v{T+5}, v{T+1}, 3, v{T+3}')
        A(f'v_mul_u32_u24 v{T+5}, 1152, v{T+5}')
        A(f'v_lshl_add_u32 v{T+5}, v{T+4}, 3, v{T+5}')
        A('s_mul_i32 s45, s26, 288')
        A(f'v_add_u32 v{T+5}, s45, v{T+5}')
        A(f'v_lshl_add_u32 v{T+3}, v{T+1}, 2, v{T+3}')
        A(f'v_mul_u32_u24 v{T+3}, 1152, v{T+3}')
        A(f'v_lshl_add_u32 v{T+3}, v{T+4}, 3, v{T+3}')
        A(f's_add_u32 s45, s45, {STG}')
        A(f'v_add_u32 v{T+3}, s45, v{T+3}')
        A(f'v_lshlrev_b32 v{T+6}, 4, v{T+1}')
        A(f'v_add_u32 v{T+6}, {AB}, v{T+6}')
        if self.w2late is True:
            A(f'ds_read_b128 v[68:71], v{T+6}')
        A(f'v_lshlrev_b32 v{T+2}, 3, v{T+1}')
        A(f'v_add_u32 v{T+2}, {OB}, v{T+2}')
        A('s_mul_i32 s50, s97, 0x5556')
        A('s_lshr_b32 s50, s50, 18')
        A('s_mul_i32 s58, s50, 12')
        A('s_sub_u32 s58, s97, s58')
        A('s_lshr_b32 s59, s58, 2')
        A('s_and_b32 s58, s58, 3')
        A('s_mul_i32 s50, s50, 9')
        A('s_mul_i32 s59, s59, 3')
        A('s_add_u32 s50, s50, s59')
        A('s_lshl_b32 s50, s50, 4')
        A('s_lshl_b32 s58, s58, 2')
        A('s_add_u32 s50, s50, s58')
        A('v_lshrrev_b32 v121, 2, v1')
        A('v_and_b32 v122, 3, v1')
        A('v_lshl_add_u32 v121, v121, 4, v122')
        A('v_add_u32 v121, s50, v121')
        A('v_lshlrev_b32 v121, 1, v121')
        A('s_mov_b32 s52, s4')
        A('s_mov_b32 s53, s5')
        A('s_mov_b32 s54, 1152')
        A('s_mov_b32 s55, 0x00020000')
        A('buffer_load_ushort v120, v121, s[52:55], 0 offen')
        def wait_flags(off, lab):
            A(f'v_mov_b32 v{T}, {FL}')
            self.spin_begin(42)
            self.L(lab)
            A(f'ds_read_b64 v[{T+8}:{T+9}], v{T} offset:{off}')
            A('s_waitcnt lgkmcnt(0)')
            A(f'v_and_b32 v{T+8}, v{T+8}, v{T+9}')
            A('s_nop 0')
            A(f'v_readfirstlane_b32 s40, v{T+8}')
            A('s_cmp_lg_u32 s40, 0')
            A(f's_cbranch_scc1 {lab}_ok')
            self.spin_retry(42, lab, sleep=1)
            self.L(f'{lab}_ok')
        def y_ffn():
            wait_flags(56, 'L_c_w2wait')
            for t in range(9):
                A(f'ds_read_b64_tr_b16 v[{32 + 4*t}:{33 + 4*t}], v{T+5} offset:{32 * t}')
                A(f'ds_read_b64_tr_b16 v[{34 + 4*t}:{35 + 4*t}], v{T+5} offset:{32 * t + 4608}')
                if t == 6:
                    A('s_waitcnt lgkmcnt(8)')
            for r in range(4):
                A(f'v_mov_b32 v{80 + r}, 0')
            A('s_waitcnt lgkmcnt(0)')
            for t in range(9):
                row = 4 * (t // 3) + t % 3
                A(f's_mov_b32 s46, {0x00010001 << row:#x}')
                A(f's_mov_b32 s47, {0x00010001 << row:#x}')
                m = 72 + 4 * (t & 1)
                for r in range(4):
                    A(f'v_cndmask_b32 v{m + r}, 0, v{68 + r}, s[46:47]')
                A('s_nop 1')
                A(f'v_mfma_f32_16x16x32_bf16 v[80:83], v[{m}:{m+3}], v[{32 + 4*t}:{35 + 4*t}], v[80:83]')
            A('s_mul_i32 s45, s51, 3072')
            A(f's_add_u32 s45, s45, {WS_Y2}')
            A('s_add_u32 s48, s24, s45')
            A('s_addc_u32 s49, s25, 0')
            A('s_mul_i32 s45, s26, 768')
            A(f'v_lshlrev_b32 v{T+7}, 4, v1')
            A(f'v_add_u32 v{T+7}, s45, v{T+7}')
            A('s_nop 3')
            self.mkchk(80)
            A('s_mov_b32 s46, -1')
            A('s_mov_b32 s47, 0xffff')
            A('s_mov_b64 exec, s[46:47]')
            A(f'global_store_dwordx4 v{T+7}, v[80:83], s[48:49] sc1')
            A('s_mov_b64 exec, -1')
        if self.w2late is True:
            y_ffn()
            A('s_cmp_lt_u32 s26, 2')
            A('s_cbranch_scc1 L_c_nowo')
            A('s_lshl_b32 s45, s26, 2')
            A(f's_add_u32 s45, s45, {FL + 32}')
            A(f'v_mov_b32 v{T+8}, s45')
            A(f'v_mov_b32 v{T+9}, 1')
            A('s_waitcnt vmcnt(2)')
            A('s_mov_b64 exec, 1')
            A(f'ds_write_b32 v{T+8}, v{T+9}')
            A('s_mov_b64 exec, -1')
            self.L('L_c_nowo')
        if self.w2late is not True:
            A('s_mul_i32 s45, s26, 768')
            A(f'v_lshlrev_b32 v{T+7}, 4, v1')
            A(f'v_add_u32 v{T+7}, s45, v{T+7}')
        if self.w2late or self.wo_by == 'w23':
            wait_flags(40, 'L_c_wowait')
        else:
            A(f'v_mov_b32 v{T}, {FL}')
            self.spin_begin(42)
            self.L('L_c_wowait')
            A(f'ds_read_b128 v[{T+8}:{T+11}], v{T} offset:240')
            A('s_waitcnt lgkmcnt(0)')
            A(f'v_and_b32 v{T+8}, v{T+8}, v{T+9}')
            A(f'v_and_b32 v{T+10}, v{T+10}, v{T+11}')
            A(f'v_and_b32 v{T+8}, v{T+8}, v{T+10}')
            A('s_nop 0')
            A(f'v_readfirstlane_b32 s40, v{T+8}')
            A('s_cmp_lg_u32 s40, 0')
            A('s_cbranch_scc1 L_c_wowait_ok')
            self.spin_retry(42, 'L_c_wowait', sleep=1)
            self.L('L_c_wowait_ok')
        for t in range(9):
            A(f'ds_read_b64_tr_b16 v[{68 + 2*t}:{69 + 2*t}], v{T+3} offset:{32 * t}')
        if self.flate == 'h':
            A(f'v_add_u32 v20, {FB}, v{T+7}')
            A('ds_read_b128 v[16:19], v20')
            A('s_mul_i32 s45, s96, 3072')
            A(f's_add_u32 s45, s45, {WS_F}')
            A('s_add_u32 s56, s24, s45')
            A('s_addc_u32 s57, s25, 0')
        if self.flate == 'd':
            A(f'v_add_u32 v36, {FB}, v{T+7}')
            A('ds_read_b128 v[32:35], v36')
            A('s_mul_i32 s45, s96, 3072')
            A(f's_add_u32 s45, s45, {WS_F}')
            A('s_add_u32 s56, s24, s45')
            A('s_addc_u32 s57, s25, 0')
        for r in range(4):
            A(f'v_mov_b32 v{96 + r}, 0')
        A('s_mul_i32 s45, s51, 3072')
        A(f's_add_u32 s45, s45, {WS_Y}')
        A('s_add_u32 s48, s24, s45')
        A('s_addc_u32 s49, s25, 0')
        hoist = self.trim and not self.w2late and self.flate in (False, 'h')
        if hoist:
            A('s_lshl_b32 s45, s26, 6')
            A('v_lshrrev_b32 v10, 2, v1')
            A('v_add_u32 v10, s45, v10')
            A('v_mul_u32_u24 v10, 3072, v10')
            A('v_and_b32 v11, 3, v1')
            A('v_lshl_add_u32 v10, v11, 4, v10')
            for i in range(1, 4):
                A(f'v_add_u32 v{10 + i}, {3072 * 16 * i}, v10')
            A('s_lshl_b32 s58, s97, 6')
            A(f's_add_u32 s58, s58, {WS_Y}')
            A('s_add_u32 s30, s24, s58')
            A('s_addc_u32 s31, s25, 0')
            A(f's_add_u32 s45, s45, {RED}')
            A('v_lshlrev_b32 v118, 4, v1')
            A('v_add_u32 v118, s45, v118')
            A('v_lshrrev_b32 v116, 2, v1')
            A('v_and_b32 v117, 3, v1')
            A('v_lshlrev_b32 v116, 2, v116')
            A('v_lshl_add_u32 v116, v117, 4, v116')
            A(f'v_add_u32 v117, {FFNR}, v116')
            A(f'v_add_u32 v116, {RED}, v116')
        A('s_waitcnt lgkmcnt(0)')
        A('s_barrier')
        self.cstamp(4)
        A(f'ds_read_b64 v[64:65], v{T+2}')
        if self.trim and self.flate in (False, 'h'):
            A('s_mov_b32 s46, 0xffff0000')
            A('s_mov_b32 s47, 0')
            A('s_mov_b32 s58, 0')
            A('s_mov_b32 s59, 0xffff')
            A('s_waitcnt lgkmcnt(0)')
            for t in range(9):
                A(f'v_mfma_f32_16x16x16_bf16 v[{32 + 4*t}:{35 + 4*t}], v[64:65], v[{68 + 2*t}:{69 + 2*t}], 0')
            A('s_nop 2')
            for r in range(3):
                A(f'v_cndmask_b32 v{96 + r}, v{32 + 4*r}, v{44 + 4*r}, s[46:47]')
            A('s_mov_b32 s46, -1')
            A('s_mov_b32 s47, 0xffff')
            for r in range(3):
                A(f'v_cndmask_b32 v{96 + r}, v{96 + r}, v{56 + 4*r}, s[58:59]')
            self.mkchk(96)
        else:
            A('s_mov_b32 s46, 0x00010001')
            A('s_mov_b32 s47, 0x00010001')
            A('s_waitcnt lgkmcnt(0)')
            for t in range(9):
                row = 4 * (t // 3) + t % 3
                A(f'v_cndmask_b32 v{88 + 2*(t&1)}, 0, v64, s[46:47]')
                A(f'v_cndmask_b32 v{89 + 2*(t&1)}, 0, v65, s[46:47]')
                if t < 8:
                    nrow = 4 * ((t + 1) // 3) + (t + 1) % 3
                    A(f's_lshl_b64 s[46:47], s[46:47], {nrow - row}')
                else:
                    A('s_nop 0')
                A('s_nop 0')
                A(f'v_mfma_f32_16x16x16_bf16 v[96:99], v[{88 + 2*(t&1)}:{89 + 2*(t&1)}], v[{68 + 2*t}:{69 + 2*t}], v[96:99]')
            A('s_mov_b32 s46, -1')
            A('s_mov_b32 s47, 0xffff')
            A('s_nop 5')
            self.mkchk(96)
        A('s_mov_b64 exec, s[46:47]')
        A(f'global_store_dwordx4 v{T+7}, v[96:99], s[48:49] sc1')
        if self.flate in ('d', 'h'):
            A(f's_cmp_ge_u32 s96, {NFFN}')
            A('s_cbranch_scc1 L_c_nofd')
            fr = 32 if self.flate == 'd' else 16
            A(f'global_store_dwordx4 v{T+7}, v[{fr}:{fr+3}], s[56:57] sc1')
            self.L('L_c_nofd')
        A('s_mov_b64 exec, -1')
        self.cstamp(5)
        if self.w2late == 'after':
            A('s_cmp_lt_u32 s26, 2')
            A('s_cbranch_scc1 L_c_now2')
            A('s_lshl_b32 s45, s26, 2')
            A(f's_add_u32 s45, s45, {FL + 48}')
            A(f'v_mov_b32 v{T+8}, s45')
            A(f'v_mov_b32 v{T+9}, 1')
            A('s_waitcnt vmcnt(2)')
            A('s_mov_b64 exec, 1')
            A(f'ds_write_b32 v{T+8}, v{T+9}')
            A('s_mov_b64 exec, -1')
            self.L('L_c_now2')
            A(f'ds_read_b128 v[68:71], v{T+6}')
            y_ffn()
        A(f's_cmp_lt_u32 s97, {NRED}')
        A('s_cbranch_scc1 L_c_red')
        self.cflush()
        A('s_endpgm')
        self.L('L_c_red')
        if not hoist:
            A('s_lshl_b32 s45, s26, 6')
            A(f'v_lshrrev_b32 v{T}, 2, v1')
            A(f'v_add_u32 v{T}, s45, v{T}')
            A(f'v_mul_u32_u24 v{T}, 3072, v{T}')
            A(f'v_and_b32 v{T+1}, 3, v1')
            A(f'v_lshl_add_u32 v{T}, v{T+1}, 4, v{T}')
            for i in range(1, 4):
                A(f'v_add_u32 v{T+i}, {3072 * 16 * i}, v{T}')
            A('s_lshl_b32 s45, s97, 6')
            A(f's_add_u32 s58, s45, {WS_Y}')
            A('s_add_u32 s48, s24, s58')
            A('s_addc_u32 s49, s25, 0')
            A(f's_add_u32 s58, s45, {WS_Y2}')
            A('s_add_u32 s56, s24, s58')
            A('s_addc_u32 s57, s25, 0')
        if self.w2late or self.flate == 'd':
            S1, S2 = [106, 107, 108], [109, 110, 111]
            if self.w2late:
                def dl(bs):
                    return [f'global_load_dwordx4 v[{b}:{b+3}], v{T + (i % 4)}, s[{48 if i < 4 else 56}:{49 if i < 4 else 57}] sc1' for i, b in enumerate(bs)]
                self.poll2('L_c_d', dl, [64, 68, 72, 76, 32, 36, 40, 44], [80, 84, 88, 92, 48, 52, 56, 60], 96, 97,
                           sleep=self.tsleep or 3, stag=self.stag, thresh=self.thresh)
                self.cstamp(24)
                for r in range(3):
                    A(f'v_add_f32 v{S1[r]}, v{64 + r}, v{68 + r}')
                    A(f'v_add_f32 v{S2[r]}, v{32 + r}, v{36 + r}')
                    A(f'v_add_f32 v{112 + r}, v{72 + r}, v{76 + r}')
                    A(f'v_add_f32 v{115 + r}, v{40 + r}, v{44 + r}')
                for r in range(3):
                    A(f'v_add_f32 v{S1[r]}, v{S1[r]}, v{112 + r}')
                    A(f'v_add_f32 v{S2[r]}, v{S2[r]}, v{115 + r}')
            else:
                A('s_lshl_b32 s45, s97, 6')
                A(f's_add_u32 s58, s45, {WS_F}')
                A('s_add_u32 s56, s24, s58')
                A('s_addc_u32 s57, s25, 0')
                A('s_lshl_b32 s45, s26, 4')
                A(f'v_lshrrev_b32 v{T+4}, 2, v1')
                A(f'v_add_u32 v{T+4}, s45, v{T+4}')
                A(f'v_mul_u32_u24 v{T+4}, 3072, v{T+4}')
                A(f'v_and_b32 v{T+6}, 3, v1')
                A(f'v_lshl_add_u32 v{T+4}, v{T+6}, 4, v{T+4}')
                A('s_lshl_b32 s45, s26, 1')
                A('s_add_u32 s45, s45, 64')
                A(f'v_bfe_u32 v{T+5}, v1, 2, 1')
                A(f'v_add_u32 v{T+5}, s45, v{T+5}')
                A(f'v_mul_u32_u24 v{T+5}, 3072, v{T+5}')
                A(f'v_lshl_add_u32 v{T+5}, v{T+6}, 4, v{T+5}')
                def dl(bs):
                    return [f'global_load_dwordx4 v[{b}:{b+3}], v{T + i}, s[{48 if i < 4 else 56}:{49 if i < 4 else 57}] sc1' for i, b in enumerate(bs)]
                self.poll2('L_c_d', dl, [64, 68, 72, 76, 32, 36], [80, 84, 88, 92, 48, 52], 96, 97,
                           sleep=self.tsleep or 3, stag=self.stag_d, thresh=self.thresh_d)
                self.cstamp(24)
                A('s_mov_b64 s[46:47], 0xff')
                for r in range(3):
                    A(f'v_cndmask_b32 v{115 + r}, 0, v{36 + r}, s[46:47]')
                    A(f'v_add_f32 v{S1[r]}, v{64 + r}, v{68 + r}')
                    A(f'v_add_f32 v{112 + r}, v{72 + r}, v{76 + r}')
                for r in range(3):
                    A(f'v_add_f32 v{S2[r]}, v{32 + r}, v{115 + r}')
                    A(f'v_add_f32 v{S1[r]}, v{S1[r]}, v{112 + r}')
            self.mrowred('v_add_f32', S1 + S2, (4, 8))
            self.mxrow('v_add_f32', S1 + S2, [112, 113, 114, 115, 116, 117])
            A('v_mov_b32 v112, v109')
            A('v_mov_b32 v113, v110')
            A('v_mov_b32 v114, v111')
            A('v_mov_b32 v104, v106')
            A('v_mov_b32 v105, v107')
            A('v_mov_b32 v106, v108')
            A('s_lshl_b32 s45, s26, 7')
            A(f's_add_u32 s45, s45, {RED}')
            A('v_lshlrev_b32 v118, 5, v1')
            A('v_add_u32 v118, s45, v118')
            A('s_mov_b64 exec, 15')
            A('ds_write_b128 v118, v[104:107]')
            A('ds_write_b128 v118, v[112:115] offset:16')
            A('s_mov_b64 exec, -1')
            A('v_lshrrev_b32 v116, 2, v1')
            A('v_and_b32 v117, 3, v1')
            A('v_lshlrev_b32 v116, 2, v116')
            A('v_lshl_add_u32 v116, v117, 5, v116')
            A(f'v_add_u32 v116, {RED}, v116')
            A('s_mov_b32 s52, s20')
            A('s_mov_b32 s53, s21')
            A('s_waitcnt lgkmcnt(0)')
            self.cstamp(25)
            A('s_barrier')
            self.cstamp(26)
            A('s_cmp_lg_u32 s26, 0')
            A('s_cbranch_scc1 L_end')
            for k in range(4):
                A(f'ds_read_b32 v{100 + k}, v116 offset:{128 * k}')
            for k in range(4):
                A(f'ds_read_b32 v{104 + k}, v116 offset:{128 * k + 16}')
            A('v_lshlrev_b32 v111, 16, v120')
            A('s_waitcnt lgkmcnt(0)')
            A('v_add_f32 v100, v100, v101')
            A('v_add_f32 v104, v104, v105')
            A('v_add_f32 v102, v102, v103')
            A('v_add_f32 v106, v106, v107')
            A('v_add_f32 v100, v100, v102')
            A('v_add_f32 v104, v104, v106')
            A('v_cvt_pk_bf16_f32 v100, v100, v104')
            A('v_lshlrev_b32 v101, 16, v100')
            A('v_and_b32 v104, 0xffff0000, v100')
            A('v_add_f32 v101, v111, v101')
            self.bf16r(101, 101, 102)
            A('v_add_f32 v101, v101, v104')
            A('v_cvt_pk_bf16_f32 v101, v101, v101')
            A('s_mov_b64 exec, 0xfff')
            A('buffer_store_short v101, v121, s[52:55], 0 offen' + self.out_pol)
            A('s_mov_b64 exec, -1')
        else:
            if hoist:
                dl = lambda bs: [f'global_load_dwordx4 v[{b}:{b+3}], v{10+i}, s[30:31] sc1' for i, b in enumerate(bs)]
                assert not self.pm_d
            else:
                dl = lambda bs: [f'global_load_dwordx4 v[{b}:{b+3}], v{T+i}, s[48:49] sc1' for i, b in enumerate(bs)]
            if self.pm_d:
                self.pollm('L_c_d', dl, [[64, 68, 72, 76], [80, 84, 88, 92], [32, 36, 40, 44], [48, 52, 56, 60]][:self.nset_d], 96,
                           stag=self.stag_d, invs=[30, 32, 34, 36])
            else:
                self.poll2('L_c_d', dl,
                           [64, 68, 72, 76], [80, 84, 88, 92], 96, 97, sleep=self.tsleep or 3, stag=self.stag_d, thresh=self.thresh_d,
                           more=([32, 36, 40, 44], [48, 52, 56, 60])[:self.nset_d - 2])
            self.cstamp(24)
            S1 = [106, 107, 108]
            for r in range(3):
                A(f'v_add_f32 v{S1[r]}, v{64 + r}, v{68 + r}')
                A(f'v_add_f32 v{112 + r}, v{72 + r}, v{76 + r}')
            for r in range(3):
                A(f'v_add_f32 v{S1[r]}, v{S1[r]}, v{112 + r}')
            self.mrowred('v_add_f32', S1, (4, 8))
            self.mxrow('v_add_f32', S1, [112, 113, 114])
            if hoist:
                A('s_mov_b64 exec, 15')
                A('ds_write_b96 v118, v[106:108]')
                A('s_mov_b64 exec, -1')
            else:
                A('s_lshl_b32 s45, s26, 6')
                A(f's_add_u32 s45, s45, {RED}')
                A('v_lshlrev_b32 v118, 4, v1')
                A('v_add_u32 v118, s45, v118')
                A('v_mov_b32 v104, v106')
                A('v_mov_b32 v105, v107')
                A('v_mov_b32 v106, v108')
                A('s_mov_b64 exec, 15')
                A('ds_write_b128 v118, v[104:107]')
                A('s_mov_b64 exec, -1')
                A('v_lshrrev_b32 v116, 2, v1')
                A('v_and_b32 v117, 3, v1')
                A('v_lshlrev_b32 v116, 2, v116')
                A('v_lshl_add_u32 v116, v117, 4, v116')
                A(f'v_add_u32 v117, {FFNR}, v116')
                A(f'v_add_u32 v116, {RED}, v116')
            if self.flate != 'h':
                A('ds_read_b32 v119, v117')
            A('s_mov_b32 s52, s20')
            A('s_mov_b32 s53, s21')
            A('s_waitcnt lgkmcnt(0)')
            self.cstamp(25)
            A('s_barrier')
            self.cstamp(26)
            A('s_cmp_lg_u32 s26, 0')
            A('s_cbranch_scc1 L_end')
            if self.flate == 'h':
                A('ds_read_b32 v119, v117')
            for k in range(4):
                A(f'ds_read_b32 v{100 + k}, v116 offset:{64 * k}')
            A('v_lshlrev_b32 v111, 16, v120')
            A('s_waitcnt lgkmcnt(0)')
            A('v_add_f32 v100, v100, v101')
            A('v_add_f32 v102, v102, v103')
            A('v_add_f32 v100, v100, v102')
            A('v_cvt_pk_bf16_f32 v100, v100, v119')
            A('v_lshlrev_b32 v101, 16, v100')
            A('v_and_b32 v104, 0xffff0000, v100')
            A('v_add_f32 v101, v111, v101')
            self.bf16r(101, 101, 102)
            A('v_add_f32 v101, v101, v104')
            A('v_cvt_pk_bf16_f32 v101, v101, v101')
            A('s_mov_b64 exec, 0xfff')
            A('buffer_store_short v101, v121, s[52:55], 0 offen' + self.out_pol)
            A('s_mov_b64 exec, -1')
        self.stamp(6)
        self.flush_stamps(extra=[(29, 64)])
        A('s_cmp_lg_u32 s97, 0')
        A('s_cbranch_scc1 L_end')
        A('v_mov_b32 v106, s29')
        A('v_mov_b32 v107, 0')
        A('s_mov_b64 exec, 1')
        A('global_store_dword v107, v106, s[24:25] sc1')
        A('s_branch L_end')

    def gemv64(self, acc, first, xoff_sreg):
        A = self.A
        NB = 5
        A(f'v_add_u32 v21, s{xoff_sreg}, v20')
        def rd(s):
            b = 40 + 10 * (s % NB)
            A(f'ds_read_b64 v[{b}:{b+1}], v21 offset:{32 * s}')
            for t in range(4):
                A(f'ds_read_b64_tr_b16 v[{b+2+2*t}:{b+3+2*t}], v{16 + t} offset:{2048 * s}')
        NP = 3
        for s in range(NP):
            rd(s)
        for s in range(9):
            left = min(9, s + NP) - s - 1
            A(f's_waitcnt lgkmcnt({5 * left})')
            b = 40 + 10 * (s % NB)
            for t in range(4):
                c = '0' if (first and s == 0) else f'v[{acc + 4*t}:{acc + 4*t + 3}]'
                A(f'v_mfma_f32_16x16x16_bf16 v[{acc + 4*t}:{acc + 4*t + 3}], v[{b}:{b+1}], v[{b+2+2*t}:{b+3+2*t}], {c}')
            if s + NP < 9:
                rd(s + NP)

    def dma_cols(self, sbase, pitch, voff, win=None):
        A = self.A
        A(f's_mov_b32 s36, s{sbase}')
        A(f's_mov_b32 s37, s{sbase+1}')
        for s in range(18):
            A(f's_mov_b32 m0, {STG + 1024 * s}')
            if win:
                A(f's_waitcnt vmcnt({win - 1})')
            else:
                A('s_nop 0')
            A(f'global_load_lds_dwordx4 v{voff}, s[36:37]' + ('' if 'colplain' in self.exp else ' nt'))
            if s < 17:
                A(f's_add_u32 s36, s36, {8 * pitch}')
                A('s_addc_u32 s37, s37, 0')

    def dma_rows(self, sbase, win=None):
        A = self.A
        A(f's_mov_b32 s36, s{sbase}')
        A(f's_mov_b32 s37, s{sbase+1}')
        for s in range(18):
            if s % 4 == 0:
                A(f's_mov_b32 m0, {STG + 1024 * s}')
                A('s_nop 0')
            if win:
                A(f's_waitcnt vmcnt({win - 1})')
            A(f'global_load_lds_dwordx4 v23, s[36:37] offset:{1024 * (s % 4)}' + ('' if 'rowplain' in self.exp else ' nt'))
            if s % 4 == 3:
                A('s_add_u32 s36, s36, 4096')
                A('s_addc_u32 s37, s37, 0')

    def f_gather(self, name, sleep, probe, warm=False):
        A = self.A
        A('s_lshl_b32 s40, s97, 6')
        A(f's_add_u32 s40, s40, {WS_F}')
        A('s_add_u32 s56, s24, s40')
        A('s_addc_u32 s57, s25, 0')
        A('v_lshrrev_b32 v30, 2, v1')
        A('v_mul_u32_u24 v30, 3072, v30')
        A('v_and_b32 v31, 3, v1')
        A('v_lshl_add_u32 v30, v31, 4, v30')
        for i in range(1, 5):
            A(f'v_add_u32 v{30 + i}, {3072 * 16 * i}, v30')
        A('s_mov_b32 s46, 0')
        A('s_mov_b32 s47, -1')
        A(f'v_add_u32 v35, {-3072 * 8 & 0xffffffff:#x}, v34')
        A('v_cndmask_b32 v34, v34, v35, s[46:47]')
        loads = [f'global_load_dwordx4 v[{40 + 4*i}:{43 + 4*i}], v{30 + i}, s[56:57] sc1' for i in range(5)]
        if warm:
            for l in loads:
                A(l)
            return
        self.poll(name, loads, lambda: self.chk3([40, 44, 48, 52, 56], 60, 61), sleep=sleep, probe=probe)
        A('s_mov_b32 s46, 0')
        A('s_mov_b32 s47, -1')
        for r in range(3):
            A(f'v_cndmask_b32 v{56 + r}, v{56 + r}, 0, s[46:47]')
        for r in range(3):
            A(f'v_add_f32 v{40 + r}, v{40 + r}, v{44 + r}')
            A(f'v_add_f32 v{48 + r}, v{48 + r}, v{52 + r}')
            A(f'v_add_f32 v{40 + r}, v{40 + r}, v{56 + r}')
        for r in range(3):
            A(f'v_add_f32 v{40 + r}, v{40 + r}, v{48 + r}')
        self.mrowred('v_add_f32', [40, 41, 42], (4, 8))
        self.mxrow('v_add_f32', [40, 41, 42], [44, 45, 46])
        A('v_lshlrev_b32 v34, 4, v1')
        A(f'v_add_u32 v34, {FFNR}, v34')
        A('s_mov_b64 exec, 15')
        A('ds_write_b128 v34, v[40:43]')
        A('s_mov_b64 exec, -1')

    def build_table(self, first):
        A = self.A
        US, UB, lb = self.US, self.UB, self.lblk
        c = 4 * ((UB - US) if first else (64 - UB))
        zk = 4 * (US if first else UB)
        tag = 'a' if first else 'b'
        if first:
            A('s_mov_b32 s55, 0')
        A(f'v_sub_u32 v49, {c}, v46')
        A(f'v_subrev_u32 v50, {c}, v46')
        A('v_max_i32 v49, 0, v49')
        A('v_max_i32 v50, 0, v50')
        A('v_mov_b32 v51, v49')
        A('v_mov_b32 v52, v50')
        for sh in (1, 2, 4, 8):
            A('s_nop 0')
            A(f'v_add_u32_dpp v51, v51, v51 row_shr:{sh} row_mask:0xf bank_mask:0xf bound_ctrl:0')
            A(f'v_add_u32_dpp v52, v52, v52 row_shr:{sh} row_mask:0xf bank_mask:0xf bound_ctrl:0')
        A('v_sub_u32 v53, v51, v49')
        A('v_sub_u32 v52, v52, v50')
        A('s_nop 0')
        A('v_readlane_b32 s50, v46, s28')
        A('v_readlane_b32 s51, v52, s28')
        G = [30, 31, 32, 33, 34, 35, 36, 37, 40, 41, 43, 44, 45, 46, 47, 53]
        for i in range(16):
            A(f'v_readlane_b32 s{G[i]}, v51, {i}')
        A(f's_mul_i32 s54, s27, {self.rot * 64}')
        A(f's_sub_u32 s51, s51, {c}')
        A('s_mov_b32 s52, 0')
        self.L(f'L_h_tb{tag}')
        A('v_add_u32 v54, s52, v1')
        A('v_add_u32 v55, s51, v54')
        A('v_mov_b32 v56, 0')
        prs = ['vcc', 's[58:59]', 's[60:61]', 's[62:63]']
        for i0 in range(0, 16, 4):
            for q in range(4):
                A(f'v_cmp_le_u32 {prs[q]}, s{G[i0 + q]}, v55')
            for q in range(4):
                A(f'v_addc_co_u32 v56, {prs[q]}, 0, v56, {prs[q]}')
        A('v_min_u32 v56, 15, v56')
        A('v_lshlrev_b32 v57, 2, v56')
        A('ds_bpermute_b32 v58, v57, v53')
        A('ds_bpermute_b32 v59, v57, v46')
        A(f'v_cmp_gt_u32 vcc, {c}, v54')
        A('v_mov_b32 v57, s28')
        A('s_waitcnt lgkmcnt(0)')
        A('v_add_u32 v59, v59, v55')
        A('v_sub_u32 v59, v59, v58')
        A('v_cndmask_b32 v56, v56, v57, vcc')
        A('v_cndmask_b32 v59, v59, v54, vcc')
        A(f'v_add_u32 v59, {zk}, v59')
        A(f'v_lshrrev_b32 v57, {2 + lb}, v59')
        A(f'v_lshlrev_b32 v57, {6 + lb}, v57')
        A(f'v_lshl_add_u32 v57, v56, {2 + lb}, v57')
        A(f'v_and_b32 v59, {(4 << lb) - 1}, v59')
        A('v_add_u32 v57, v57, v59')
        A('v_add_u32 v57, s54, v57')
        A('v_and_b32 v57, 4095, v57')
        A('v_add_u32 v57, 1, v57')
        if not first:
            A(f'v_add_u32 v58, {self.xfast}, v54')
            A('v_cmp_le_u32 vcc, s50, v58')
            A('v_cmp_le_u32 s[60:61], s50, v54')
            A('v_or_b32 v58, 0x40000000, v57')
            A('v_bfrev_b32 v59, 1')
            A('v_cndmask_b32 v57, v57, v58, vcc')
            A('v_cndmask_b32 v57, v57, v59, s[60:61]')
            A('s_add_u32 s56, s50, 4')
        else:
            A('s_mov_b32 s56, s50')
        A(f's_min_u32 s56, s56, {c * 16 + 4}')
        A('v_add_u32 v58, s55, v54')
        A('v_lshlrev_b32 v58, 2, v58')
        A(f'v_add_u32 v58, {TBL}, v58')
        A('v_cmp_gt_u32 vcc, s56, v54')
        A('s_and_saveexec_b64 s[58:59], vcc')
        A('ds_write_b32 v58, v57')
        A('s_mov_b64 exec, -1')
        A('s_add_u32 s52, s52, 64')
        A('s_cmp_lt_u32 s52, s56')
        A(f's_cbranch_scc1 L_h_tb{tag}')
        if first:
            A('s_mov_b32 s55, s50')
        A('s_add_u32 s50, s50, 1')

    def tail_warm(self):
        A = self.A
        if 'nowarm' in self.exp:
            return
        if True:
            def own(base, stride, n, mode):
                A('s_lshl_b32 s40, s27, 4')
                A('s_add_u32 s40, s40, s28')
                A(f's_mul_i32 s40, s40, {stride}')
                A(f's_add_u32 s40, s40, {base}')
                A('s_add_u32 s56, s24, s40')
                A('s_addc_u32 s57, s25, 0')
                for i in range(n):
                    if mode == 'selfld':
                        A(f'global_load_dwordx4 v[{48 + 4*i}:{51 + 4*i}], v23, s[56:57] offset:{1024 * i} sc1')
                    else:
                        A(f'global_store_dwordx4 v23, v[60:63], s[56:57] offset:{1024 * i} sc1')
            if 'selfst' in (self.warmP, self.warmY):
                for r in range(60, 64):
                    A(f'v_mov_b32 v{r}, 0')
            if self.warmP == 'poll' and 'nowarmp' not in self.exp:
                for i in range(2):
                    A(f'global_load_dwordx4 v[{40 + 4*i}:{43 + 4*i}], v{34 + i}, s[48:49] sc1')
            elif self.warmP in ('selfld', 'selfst'):
                own(WS_P, 2048, 2, self.warmP)
            if self.warmY in ('selfld', 'selfst'):
                own(WS_Y, 3072, 3, self.warmY)
            if self.flate == 'h':
                A(f's_cmp_ge_u32 s96, {NFFN}')
                A('s_cbranch_scc1 L_h_wf')
                A('s_mul_i32 s40, s96, 3072')
                A(f's_add_u32 s40, s40, {WS_F}')
                A('s_add_u32 s56, s24, s40')
                A('s_addc_u32 s57, s25, 0')
                for i in range(3):
                    A(f'global_load_dwordx4 v[{48 + 4*i}:{51 + 4*i}], v23, s[56:57] offset:{1024 * i} sc1')
                self.L('L_h_wf')
            if self.warmY != 'poll' and self.flate in (False, 'h'):
                A('s_waitcnt vmcnt(0)')
                return
            if 'nowarmy' in self.exp or self.warmY != 'poll':
                A('s_branch L_h_wdone')
            A(f's_cmp_ge_u32 s97, {NRED}')
            A('s_cbranch_scc1 L_h_wdone')
            if self.flate and 'nowarmf' not in self.exp:
                for r in range(6):
                    A(f'v_mov_b32 v{64 + r}, v{30 + r}')
                A('v_mov_b32 v70, v36')
                A('v_mov_b32 v71, v37')
                self.f_gather(None, 0, False, warm=True)
                A('s_waitcnt vmcnt(0)')
                for r in range(6):
                    A(f'v_mov_b32 v{30 + r}, v{64 + r}')
            A('s_lshl_b32 s40, s97, 6')
            A(f's_add_u32 s40, s40, {WS_Y}')
            A('s_add_u32 s56, s24, s40')
            A('s_addc_u32 s57, s25, 0')
            A('v_lshrrev_b32 v38, 2, v1')
            A('v_mul_u32_u24 v38, 3072, v38')
            A('v_and_b32 v39, 3, v1')
            A('v_lshl_add_u32 v38, v39, 4, v38')
            A(f's_add_u32 s40, s40, {WS_Y2 - WS_Y}')
            A('s_add_u32 s50, s24, s40')
            A('s_addc_u32 s51, s25, 0')
            for i in range(16):
                A(f'global_load_dwordx4 v[{48 + 4*(i%4)}:{51 + 4*(i%4)}], v38, s[56:57] sc1')
                if self.w2late:
                    A(f'global_load_dwordx4 v[{64 + 4*(i%4)}:{67 + 4*(i%4)}], v38, s[50:51] sc1')
                A(f'v_add_u32 v38, {3072 * 16}, v38')
            self.L('L_h_wdone')
            A('s_waitcnt vmcnt(0)')

    def helper(self):
        A = self.A
        FW = self.ffn_win
        self.L('L_helper')
        self.pending = []
        A('s_memrealtime s[98:99]')
        A('s_setprio 3')
        if self.fastpro:
            A('v_mov_b32 v2, 0')
            A('s_mov_b32 s54, 1152')
            A('s_mov_b32 s55, 0x00020000')
            A('v_lshlrev_b32 v4, 1, v1')
            A('s_lshr_b32 s50, s2, 2')
            A('s_and_b32 s51, s2, 3')
            A('s_lshl_b32 s40, s50, 7')
            A(f's_mul_i32 s58, s51, {144 * 8192}')
            A('s_add_u32 s40, s40, s58')
            A('v_lshrrev_b32 v5, 3, v1')
            A('v_and_b32 v6, 7, v1')
            A('v_lshrrev_b32 v7, 4, v1')
            A('v_lshlrev_b32 v7, 1, v7')
            A('v_xor_b32 v6, v6, v7')
            A('v_lshlrev_b32 v6, 4, v6')
            A('v_lshl_add_u32 v22, v5, 13, v6')
            A('v_mul_u32_u24 v25, 9216, v5')
            A('v_add_u32 v25, v25, v6')
            A('v_lshlrev_b32 v23, 4, v1')
            A('s_waitcnt lgkmcnt(0)')
            A('s_mov_b32 s52, s4')
            A('s_mov_b32 s53, s5')
            for k in range(9):
                A(f'buffer_load_ushort v{30 + k}, v4, s[52:55], 0 offen offset:{128 * k}')
            A('global_load_dword v3, v2, s[24:25] sc1')
            A('s_add_u32 s56, s10, s40')
            A('s_addc_u32 s57, s11, 0')
            self.stamp(0)
            if self.layout3:
                A('s_barrier')
            assert self.share
        else:
            self.stamp(0)
            if 'nohelper' in self.exp:
                self.flush_stamps()
                A('s_endpgm')
            A('v_mov_b32 v2, 0')
            A('global_load_dword v3, v2, s[24:25] sc1')
            A('s_and_b32 s40, s2, 15')
            A('s_cmp_lg_u32 s40, 0')
            A('s_cbranch_scc1 L_h_nozero')
            A('s_lshr_b32 s40, s2, 4')
            A(f's_mul_i32 s40, s40, {self.cstride}')
            A(f's_add_u32 s40, s40, {WS_CNT}')
            A('v_mov_b32 v5, s40')
            A('s_mov_b64 exec, 1')
            A('global_store_dword v5, v2, s[24:25] sc1')
            A('s_mov_b64 exec, -1')
            self.L('L_h_nozero')
            A('s_mov_b32 s52, s4')
            A('s_mov_b32 s53, s5')
            A('s_mov_b32 s54, 1152')
            A('s_mov_b32 s55, 0x00020000')
            A('v_lshlrev_b32 v4, 1, v1')
            for k in range(9):
                A(f'buffer_load_ushort v{30 + k}, v4, s[52:55], 0 offen offset:{128 * k}')
            A('s_lshr_b32 s50, s2, 2')
            A('s_and_b32 s51, s2, 3')
            A('s_lshl_b32 s40, s50, 7')
            A(f's_mul_i32 s58, s51, {144 * 8192}')
            A('s_add_u32 s40, s40, s58')
            A('s_add_u32 s56, s10, s40')
            A('s_addc_u32 s57, s11, 0')
            A('v_lshrrev_b32 v5, 3, v1')
            A('v_and_b32 v6, 7, v1')
            A('v_lshrrev_b32 v7, 4, v1')
            A('v_lshlrev_b32 v7, 1, v7')
            A('v_xor_b32 v6, v6, v7')
            A('v_lshlrev_b32 v6, 4, v6')
            A('v_lshl_add_u32 v22, v5, 13, v6')
            A('v_mul_u32_u24 v25, 9216, v5')
            A('v_add_u32 v25, v25, v6')
            A('v_lshlrev_b32 v23, 4, v1')
        if 'wqlin' in self.exp:
            A('s_mul_i32 s40, s2, 18432')
            A('s_add_u32 s56, s10, s40')
            A('s_addc_u32 s57, s11, 0')
            self.dma_rows(56)
        elif 'nowq' not in self.exp:
            self.dma_cols(56, 8192, 22)
        if self.hfirst or (self.fastpro and not self.layout3):
            A('s_barrier')
        if self.layout3:
            self.ids()
        A('s_lshl_b32 s40, s27, 13')
        A(f's_add_u32 s40, s40, {WS_Q}')
        A('s_add_u32 s62, s24, s40')
        A('s_addc_u32 s63, s25, 0')
        A('v_lshrrev_b32 v14, 5, v1')
        A('v_lshlrev_b32 v14, 11, v14')
        A('v_and_b32 v15, 31, v1')
        A('v_lshl_add_u32 v14, v15, 4, v14')
        A('v_add_u32 v15, 4096, v14')
        nwarm = 0
        if 'qwarm' in self.exp:
            for H in range(2):
                for kp in range(4):
                    A(f'global_load_dwordx4 v[{96 + 4*kp}:{99 + 4*kp}], v{14 + H}, s[62:63] offset:{512 * kp} sc1')
                    nwarm += 1
        A('v_lshrrev_b32 v26, 4, v1')
        A('v_and_b32 v27, 15, v1')
        A('v_lshlrev_b32 v20, 3, v26')
        A(f'v_add_u32 v20, {XN}, v20')
        A('v_lshrrev_b32 v28, 2, v27')
        A('v_lshl_add_u32 v28, v26, 2, v28')
        A('v_and_b32 v29, 3, v27')
        A('v_lshlrev_b32 v8, 7, v28')
        A('v_lshl_add_u32 v8, v29, 3, v8')
        A(f'v_add_u32 v8, {STG}, v8')
        A('v_lshrrev_b32 v9, 1, v28')
        A('v_and_b32 v9, 3, v9')
        for t in range(4):
            A(f'v_xor_b32 v10, {t}, v9')
            A(f'v_lshl_add_u32 v{16 + t}, v10, 5, v8')
        A('v_mul_u32_u24 v24, 1152, v28')
        A('v_lshl_add_u32 v24, v29, 3, v24')
        A(f'v_add_u32 v24, {STG}, v24')
        nq = 0 if 'nowq' in self.exp else 18
        A(f's_waitcnt vmcnt({nq + nwarm})')
        self.stamp(11)
        A('v_readfirstlane_b32 s29, v3')
        X = 30
        for k in range(9):
            A(f'v_lshlrev_b32 v{X + k}, 16, v{X + k}')
        A('s_add_u32 s29, s29, 1')
        A('s_bitset1_b32 s29, 31')
        A(f'v_add_f32 v10, v{X}, v{X+1}')
        for k in range(2, 9):
            A(f'v_add_f32 v10, v10, v{X + k}')
        self.wavesum(10, 11)
        A(f'v_mul_f32 v10, {0x3AE38E39:#x}, v10')
        for k in range(9):
            A(f'v_sub_f32 v{40 + k}, v{X + k}, v10')
        A('v_mul_f32 v12, v40, v40')
        for k in range(1, 9):
            A(f'v_fmac_f32 v12, v{40 + k}, v{40 + k}')
        self.wavesum(12, 11)
        A(f'v_mul_f32 v12, {0x3AE38E39:#x}, v12')
        self.bf16r(10, 10, 11)
        self.bf16r(12, 12, 11)
        A(f'v_add_f32 v12, {0x3727C5AC:#x}, v12')
        self.bf16r(12, 12, 11)
        A('v_sqrt_f32 v12, v12')
        A('s_nop 0')
        self.bf16r(12, 12, 11)
        A('v_rcp_f32 v13, v12')
        for k in range(9):
            A(f'v_sub_f32 v{40 + k}, v{X + k}, v10')
        for k in range(0, 9, 2):
            k2 = min(k + 1, 8)
            A(f'v_cvt_pk_bf16_f32 v{50 + k // 2}, v{40 + k}, v{40 + k2}')
        for k in range(9):
            if k % 2 == 0:
                A(f'v_lshlrev_b32 v{40 + k}, 16, v{50 + k // 2}')
            else:
                A(f'v_and_b32 v{40 + k}, 0xffff0000, v{50 + k // 2}')
        for k in range(9):
            A(f'v_mul_f32 v{60 + k}, v{40 + k}, v13')
            A(f'v_fma_f32 v{70 + k}, -v{60 + k}, v12, v{40 + k}')
            A(f'v_fma_f32 v{60 + k}, v{70 + k}, v13, v{60 + k}')
        for k in range(0, 9, 2):
            k2 = min(k + 1, 8)
            A(f'v_cvt_pk_bf16_f32 v{50 + k // 2}, v{60 + k}, v{60 + k2}')
        A(f'v_add_u32 v11, {XN}, v4')
        for k in range(9):
            op = 'ds_write_b16' if k % 2 == 0 else 'ds_write_b16_d16_hi'
            A(f'{op} v11, v{50 + k // 2} offset:{128 * k}')
        A('s_mul_i32 s58, s51, 288')
        self.stamp(12)
        A('s_waitcnt vmcnt(0) lgkmcnt(0)')
        self.stamp(13)
        self.gemv64(96, True, 58)
        A('s_nop 7')
        self.stamp(10)
        A('s_mov_b32 s46, 0xffff0000')
        A('s_mov_b32 s47, 0')
        A('v_cndmask_b32 v32, v96, v104, s[46:47]')
        A('v_cndmask_b32 v34, v100, v108, s[46:47]')
        A('v_mov_b32 v33, s29')
        A('v_mov_b32 v35, s29')
        A('s_lshl_b32 s40, s2, 9')
        A(f's_add_u32 s40, s40, {WS_Q}')
        A('s_add_u32 s48, s24, s40')
        A('s_addc_u32 s49, s25, 0')
        A('s_mov_b32 s46, -1')
        A('s_mov_b64 exec, s[46:47]')
        A('global_store_dwordx4 v23, v[32:35], s[48:49] sc1')
        A('s_mov_b64 exec, -1')
        A('s_mov_b32 s48, s62')
        A('s_mov_b32 s49, s63')
        A('v_mov_b32 v30, v14')
        A('v_mov_b32 v31, v15')
        loads = []
        for H in range(2):
            for kp in range(4):
                b = 40 + 16 * H + 4 * kp
                loads.append(f'global_load_dwordx4 v[{b}:{b+3}], v{30 + H}, s[48:49] offset:{512 * kp} sc1')
        def qchk():
            A('v_xor_b32 v72, s29, v41')
            for q in range(43, 72, 2):
                A(f'v_xor_b32 v73, s29, v{q}')
                A('v_or_b32 v72, v72, v73')
            return 72
        self.poll('L_h_q', loads, qchk, sleep=1, probe=('qsweep' not in self.exp))
        self.stamp(14)
        for H in range(2):
            b = 40 + 16 * H
            for e in (0, 2):
                A(f'v_add_f32 v{b+e}, v{b+e}, v{b+4+e}')
                A(f'v_add_f32 v{b+8+e}, v{b+8+e}, v{b+12+e}')
                A(f'v_add_f32 v{b+e}, v{b+e}, v{b+8+e}')
            A(f'v_cvt_pk_bf16_f32 v{74 + H}, v{b}, v{b+2}')
        A('v_lshrrev_b32 v32, 4, v1')
        A('v_lshlrev_b32 v32, 6, v32')
        A('v_lshl_add_u32 v32, v27, 1, v32')
        A(f'v_add_u32 v32, {QL}, v32')
        for H in range(2):
            A(f'ds_write_b16 v32, v{74 + H} offset:{256 * H}')
            A(f'ds_write_b16_d16_hi v32, v{74 + H} offset:{256 * H + 32}')
        A('v_mov_b32 v42, 1')
        A('v_mov_b32 v43, s29')
        A(f'v_mov_b32 v41, {FL}')
        A('s_waitcnt lgkmcnt(0)')
        A('s_mov_b64 exec, 1')
        A('ds_write_b64 v41, v[42:43] offset:32')
        A('s_mov_b64 exec, -1')
        A('s_setprio 0')
        A(f's_cmp_ge_u32 s96, {NFFN}')
        A('s_cbranch_scc1 L_h_ffn_done')
        if 'noffn' in self.exp:
            A('s_branch L_h_ffn_done')
        if self.ffnboost:
            A(f'v_mov_b32 v30, {FL}')
            A('v_mov_b32 v31, 1')
            A('s_mov_b64 exec, 1')
            A('ds_write_b32 v30, v31 offset:48')
            A('s_mov_b64 exec, -1')
        A('s_mov_b32 s59, 0')
        self.L('L_h_f1')
        A('s_lshl_b32 s40, s96, 7')
        A(f's_mul_i32 s58, s59, {144 * 9216}')
        A('s_add_u32 s40, s40, s58')
        A('s_add_u32 s56, s16, s40')
        A('s_addc_u32 s57, s17, 0')
        if 'w1lin' in self.exp:
            A('s_lshl_b32 s40, s96, 2')
            A('s_add_u32 s40, s40, s59')
            A('s_mul_i32 s40, s40, 18432')
            A('s_add_u32 s56, s16, s40')
            A('s_addc_u32 s57, s17, 0')
            self.dma_rows(56, win=FW)
        elif 'now1' not in self.exp:
            self.dma_cols(56, 9216, 25, win=FW)
        A('s_mul_i32 s58, s59, 288')
        A('s_waitcnt vmcnt(0)')
        A('s_cmp_lg_u32 s59, 0')
        A('s_cbranch_scc1 L_h_f1b')
        for r in range(16):
            A(f'v_mov_b32 v{96 + r}, 0')
        self.L('L_h_f1b')
        A('s_nop 1')
        self.gemv64(96, False, 58)
        A('s_add_u32 s59, s59, 1')
        A('s_cmp_lt_u32 s59, 4')
        A('s_cbranch_scc1 L_h_f1')
        A('s_nop 7')
        A('v_lshlrev_b32 v34, 1, v27')
        A(f'v_add_u32 v34, {OB}, v34')
        for t in range(4):
            self.bf16r(30, 96 + 4 * t, 31)
            A(f'v_mul_f32 v31, {0xBFB8AA3B:#x}, v30')
            A('v_exp_f32 v31, v31')
            A('s_nop 0')
            A('v_add_f32 v31, 1.0, v31')
            A('v_rcp_f32 v32, v31')
            A('s_nop 0')
            A('v_mul_f32 v33, v30, v32')
            A('v_cvt_pk_bf16_f32 v33, v33, v33')
            A('s_mov_b64 exec, 0xffff')
            A(f'ds_write_b16 v34, v33 offset:{32 * t}')
            A('s_mov_b64 exec, -1')
        if self.w2late:
            A('v_lshlrev_b32 v35, 2, v1')
            A(f'v_add_u32 v36, {OB}, v35')
            A('s_waitcnt lgkmcnt(0)')
            A('ds_read_b32 v32, v36')
            A('v_mov_b32 v33, s29')
            A('s_lshl_b32 s40, s96, 8')
            A(f's_add_u32 s40, s40, {WS_A}')
            A('s_add_u32 s48, s24, s40')
            A('s_addc_u32 s49, s25, 0')
            A('v_lshlrev_b32 v35, 3, v1')
            A('s_mov_b32 s46, -1')
            A('s_mov_b32 s47, 0')
            A('s_waitcnt lgkmcnt(0)')
            A('s_mov_b64 exec, s[46:47]')
            A('global_store_dwordx2 v35, v[32:33], s[48:49] sc1')
            A('s_mov_b64 exec, -1')
            if self.ffnboost:
                A(f'v_mov_b32 v30, {FL}')
                A('v_mov_b32 v31, 0')
                A('s_mov_b64 exec, 1')
                A('ds_write_b32 v30, v31 offset:48')
                A('s_mov_b64 exec, -1')
            self.L('L_h_ffn_done')
            A(f'v_mov_b32 v34, {FL}')
            self.spin_begin(42)
            self.L('L_h_fwait')
            A('ds_read_b32 v35, v34 offset:16')
            A('s_waitcnt lgkmcnt(0)')
            A('v_readfirstlane_b32 s40, v35')
            A(f's_cmp_ge_u32 s40, {self.a_at}')
            A('s_cbranch_scc1 L_h_fgo')
            self.spin_retry(42, 'L_h_fwait', sleep=64)
            self.L('L_h_fgo')
            A('s_lshl_b32 s40, s27, 4')
            A('s_add_u32 s40, s40, s28')
            A('s_mul_i32 s40, s40, 72')
            A(f's_add_u32 s40, s40, {WS_A}')
            A('s_add_u32 s48, s24, s40')
            A('s_addc_u32 s49, s25, 0')
            A('v_min_u32 v30, 8, v1')
            A('v_lshlrev_b32 v30, 3, v30')
            if 'noffn' not in self.exp:
                def achk():
                    A('v_xor_b32 v34, s29, v33')
                    return 34
                self.poll('L_h_a', ['global_load_dwordx2 v[32:33], v30, s[48:49] sc1'], achk, sleep=32, probe=False)
            A('v_cmp_gt_u32 vcc, 9, v1')
            A('s_nop 1')
            A('v_cndmask_b32 v32, 0, v32, vcc')
            A('v_lshlrev_b32 v35, 2, v1')
            A(f'v_add_u32 v35, {AB}, v35')
            A('s_mov_b64 exec, 0xffff')
            A('ds_write_b32 v35, v32')
            A('s_mov_b64 exec, -1')
        else:
            for r in range(12):
                A(f'v_mov_b32 v{112 + r}, 0')
            A('v_lshlrev_b32 v35, 3, v26')
            A(f'v_add_u32 v35, {OB}, v35')
            A('s_mov_b32 s59, 0')
            self.L('L_h_f2')
            A('s_lshl_b32 s40, s96, 2')
            A('s_add_u32 s40, s40, s59')
            A('s_mul_i32 s40, s40, 18432')
            A('s_add_u32 s56, s18, s40')
            A('s_addc_u32 s57, s19, 0')
            if 'now2' not in self.exp:
                self.dma_rows(56, win=FW)
            A('s_lshl_b32 s40, s59, 5')
            A('v_add_u32 v38, s40, v35')
            A('s_waitcnt lgkmcnt(0)')
            A('ds_read_b64 v[36:37], v38')
            A('s_waitcnt vmcnt(0) lgkmcnt(0)')
            for t0 in range(0, 36, 12):
                for t in range(t0, t0 + 12):
                    A(f'ds_read_b64_tr_b16 v[{40 + 2*(t - t0)}:{41 + 2*(t - t0)}], v24 offset:{32 * t}')
                A('s_waitcnt lgkmcnt(0)')
                for t in range(t0, t0 + 12):
                    grp, r = t // 3, t % 3
                    a = 112 + 4 * (grp // 4)
                    row = 4 * (grp % 4) + r
                    A(f's_mov_b32 s46, {0x00010001 << row:#x}')
                    A(f's_mov_b32 s47, {0x00010001 << row:#x}')
                    A(f'v_cndmask_b32 v{88 + 2*(t&1)}, 0, v36, s[46:47]')
                    A(f'v_cndmask_b32 v{89 + 2*(t&1)}, 0, v37, s[46:47]')
                    A('s_nop 1')
                    A(f'v_mfma_f32_16x16x16_bf16 v[{a}:{a+3}], v[{88 + 2*(t&1)}:{89 + 2*(t&1)}], v[{40 + 2*(t - t0)}:{41 + 2*(t - t0)}], v[{a}:{a+3}]')
            A('s_add_u32 s59, s59, 1')
            A('s_cmp_lt_u32 s59, 4')
            A('s_cbranch_scc1 L_h_f2')
            A('s_nop 7')
            if self.flate:
                A(f'v_add_u32 v30, {FB}, v23')
                for a in range(3):
                    self.mkchk(112 + 4 * a)
                    A(f'ds_write_b128 v30, v[{112 + 4*a}:{115 + 4*a}] offset:{1024 * a}')
            else:
                A('s_mul_i32 s40, s96, 3072')
                A(f's_add_u32 s40, s40, {WS_F}')
                A('s_add_u32 s48, s24, s40')
                A('s_addc_u32 s49, s25, 0')
                for a in range(3):
                    self.mkchk(112 + 4 * a)
                    if 'nofpub' not in self.exp:
                        A(f'global_store_dwordx4 v23, v[{112 + 4*a}:{115 + 4*a}], s[48:49] offset:{1024 * a} sc1')
            if self.ffnboost:
                A(f'v_mov_b32 v30, {FL}')
                A('v_mov_b32 v31, 0')
                A('s_mov_b64 exec, 1')
                A('ds_write_b32 v30, v31 offset:48')
                A('s_mov_b64 exec, -1')
            self.L('L_h_ffn_done')
            if not self.flate:
                A(f's_cmp_ge_u32 s97, {NRED}')
                A('s_cbranch_scc1 L_h_tail')
                if 'nofgather' in self.exp or 'noffn' in self.exp:
                    A('s_branch L_h_tail')
                A(f'v_mov_b32 v34, {FL}')
                self.spin_begin(42)
                self.L('L_h_fwait')
                A('ds_read_b32 v35, v34 offset:16')
                A('s_waitcnt lgkmcnt(0)')
                A('v_readfirstlane_b32 s40, v35')
                A(f's_cmp_ge_u32 s40, {self.nunits // 2}')
                A('s_cbranch_scc1 L_h_fgo')
                self.spin_retry(42, 'L_h_fwait', sleep=64)
                self.L('L_h_fgo')
                self.f_gather('L_h_f', sleep=32, probe=True)
        self.L('L_h_tail')
        A('s_waitcnt vmcnt(0) lgkmcnt(0)')
        self.stamp(7)
        A('v_lshrrev_b32 v30, 3, v1')
        A('v_and_b32 v31, 7, v1')
        A('v_min_u32 v32, 5, v31')
        A('s_lshl_b32 s58, s27, 15')
        A('v_lshlrev_b32 v33, 11, v30')
        step8 = 8 * 2048
        A('s_lshl_b32 s40, s28, 7')
        A('s_add_u32 s58, s58, s40')
        A(f's_add_u32 s58, s58, {WS_P}')
        A('s_add_u32 s48, s24, s58')
        A('s_addc_u32 s49, s25, 0')
        A('v_lshl_add_u32 v34, v32, 4, v33')
        A(f'v_add_u32 v35, {step8}, v34')
        A('v_add_u32 v36, 80, v33')
        A(f'v_add_u32 v37, {step8}, v36')
        if not self.warm_late:
            self.tail_warm()
        if self.layout3 and self.pads and self.hchain:
            self.o.append('@CHAIN2')
        US, LA, NI = self.US, self.LA, self.NI
        A(f'v_mov_b32 v38, {FL}')
        def put_id(kreg, valreg_v):
            A(f's_lshl_b32 s40, s{kreg}, 2')
            A(f's_add_u32 s40, s40, {IDS}')
            A('v_mov_b32 v39, s40')
            A('s_mov_b64 exec, 1')
            A(f'ds_write_b32 v39, v{valreg_v}')
            A('s_mov_b64 exec, -1')
        def wait_tk(val, lab, sleep=1):
            self.spin_begin(42)
            self.L(lab)
            A('ds_read_b32 v44, v38 offset:52')
            A('s_waitcnt lgkmcnt(0)')
            A('v_readfirstlane_b32 s40, v44')
            A(f's_cmp_ge_u32 s40, {val}')
            A(f's_cbranch_scc1 {lab}_ok')
            self.spin_retry(42, lab, sleep=sleep)
            self.L(f'{lab}_ok')
        if self.share:
            C, pool = self.C, ((self.UB if self.share2 else 64) - US) * 64
            navg = pool / 16
            import struct as _st
            f2h = lambda x: '%#x' % _st.unpack('<I', _st.pack('<f', x))[0]
            if self.pertau:
                self.spin_begin(42)
                self.L('L_h_sw1')
                A('ds_read_b64 v[40:41], v38 offset:232')
                A('s_waitcnt lgkmcnt(0)')
                A('v_readfirstlane_b32 s40, v41')
                A('s_cmp_lg_u32 s40, 0')
                A('s_cbranch_scc1 L_h_sw1_ok')
                self.spin_retry(42, 'L_h_sw1', sleep=8)
                self.L('L_h_sw1_ok')
                A('v_mov_b32 v42, v40')
                A('v_mov_b32 v40, v41')
                A('v_mov_b32 v41, v42')
                A('v_mov_b32 v42, 0')
                A('s_lshl_b32 s40, s27, 8')
                A(f's_add_u32 s40, s40, {WS_T}')
                A('s_add_u32 s56, s24, s40')
                A('s_addc_u32 s57, s25, 0')
                A('s_lshl_b32 s58, s28, 4')
                A('v_mov_b32 v39, s58')
                self.mkchk(40)
                A('s_mov_b64 exec, 1')
                A('global_store_dwordx4 v39, v[40:43], s[56:57] sc1')
                A('s_mov_b64 exec, -1')
                wait_tk(4 * (C + self.Gd) - 4, 'L_h_sw2', sleep=4)
                A('v_and_b32 v39, 15, v1')
                A('v_lshlrev_b32 v39, 4, v39')
                self.poll('L_h_t', ['global_load_dwordx4 v[40:43], v39, s[56:57] sc1'], lambda: self.chk3([40], 44, 45), sleep=4, probe=False)
                A('v_readfirstlane_b32 s40, v40')
                A('v_sub_u32 v45, v40, v41')
                A('s_nop 0')
                A('v_subrev_u32 v44, s40, v40')
                A('v_cvt_f32_i32 v44, v44')
                A('v_cvt_f32_u32 v45, v45')
                A(f'v_mul_f32 v45, {f2h(1 / (4 * (C - self.C0)))}, v45')
                A('v_mov_b32 v46, v45')
                self.rowred('v_add_f32', 46)
                A(f'v_mul_f32 v46, {f2h(1 / 16)}, v46')
                A('v_sub_f32 v45, v45, v46')
                A(f'v_mul_f32 v45, {f2h(self.lam)}, v45')
                A('v_add_f32 v45, v45, v46')
                A('v_rcp_f32 v45, v45')
                A('s_nop 0')
                A('v_mul_f32 v46, v44, v45')
                A('v_mov_b32 v47, v45')
                self.mrowred('v_add_f32', [46, 47], (8, 4, 2, 1))
                A(f'v_add_f32 v46, {f2h(float(pool + 64 * (US - C)))}, v46')
                A('v_rcp_f32 v47, v47')
                A('s_nop 0')
                A('v_mul_f32 v46, v46, v47')
                A('v_sub_f32 v46, v46, v44')
                A('v_mul_f32 v46, v46, v45')
                A(f'v_subrev_f32 v46, {f2h(float(4 * (US - C)))}, v46')
            else:
                wait_tk(4 * C - 4, 'L_h_sw1')
                A('s_memrealtime s[50:51]')
                if self.tau2:
                    A(f's_sub_u32 s31, s40, {4 * C - 4}')
                A('s_lshl_b32 s40, s27, 8')
                A(f's_add_u32 s40, s40, {WS_T}')
                A('s_add_u32 s56, s24, s40')
                A('s_addc_u32 s57, s25, 0')
                A('s_lshl_b32 s58, s28, 4')
                A('v_mov_b32 v39, s58')
                A('s_waitcnt lgkmcnt(0)')
                A('v_mov_b32 v40, s50')
                A('v_mov_b32 v41, s98')
                A('v_mov_b32 v42, 0')
                if self.tau2:
                    A('s_mov_b32 s30, s50')
                self.mkchk(40)
                A('s_mov_b64 exec, 1')
                A('global_store_dwordx4 v39, v[40:43], s[56:57] sc1')
                A('s_mov_b64 exec, -1')
                wait_tk(4 * (C + self.Gd) - 4, 'L_h_sw2', sleep=4)
                A('v_and_b32 v39, 15, v1')
                A('v_lshlrev_b32 v39, 4, v39')
                self.poll('L_h_t', ['global_load_dwordx4 v[40:43], v39, s[56:57] sc1'], lambda: self.chk3([40], 44, 45), sleep=4, probe=False)
                A('v_readfirstlane_b32 s40, v40')
                A('v_sub_u32 v45, v40, v41')
                A('s_nop 0')
                A('v_subrev_u32 v44, s40, v40')
                A('v_cvt_f32_i32 v44, v44')
                A('v_cvt_f32_u32 v45, v45')
                A('v_mov_b32 v46, v44')
                self.rowred('v_add_f32', 46)
                self.rowred('v_add_f32', 45)
                import struct as _st
                f2h = lambda x: '%#x' % _st.unpack('<I', _st.pack('<f', x))[0]
                A(f'v_mul_f32 v46, {f2h(1 / 16)}, v46')
                A(f'v_mul_f32 v45, {f2h(self.taufac / (16 * 4 * C))}, v45')
                A('v_rcp_f32 v45, v45')
                A('v_sub_f32 v46, v46, v44')
                A('s_nop 0')
                A('v_mul_f32 v46, v46, v45')
                A(f'v_add_f32 v46, {f2h(navg)}, v46')
            def shares(pool_, cap_, off):
                A('v_max_f32 v46, 0, v46')
                A(f'v_min_f32 v46, {f2h(cap_)}, v46')
                A('v_mov_b32 v47, v46')
                self.rowred('v_add_f32', 47)
                A('v_rcp_f32 v47, v47')
                A('s_nop 0')
                A(f'v_mul_f32 v47, {f2h(float(pool_))}, v47')
                A('v_mul_f32 v46, v46, v47')
                for sh in (1, 2, 4, 8):
                    A('s_nop 1')
                    A(f'v_add_f32_dpp v46, v46, v46 row_shr:{sh} row_mask:0xf bank_mask:0xf bound_ctrl:0')
                A('v_add_f32 v46, 0.5, v46')
                A('v_cvt_i32_f32 v46, v46')
                A(f'v_min_i32 v46, {pool_}, v46')
                A('v_max_i32 v46, 0, v46')
                for sh in (1, 2, 4, 8):
                    A('s_nop 1')
                    A(f'v_max_i32_dpp v46, v46, v46 row_shr:{sh} row_mask:0xf bank_mask:0xf bound_ctrl:0')
                A('s_mov_b32 s50, 0x80008000')
                A('s_mov_b32 s51, 0x80008000')
                A(f'v_mov_b32 v47, {pool_}')
                A('v_cndmask_b32 v46, v46, v47, s[50:51]')
                A('v_mov_b32 v47, 0')
                A('s_nop 1')
                A('v_mov_b32_dpp v47, v46 row_shr:1 row_mask:0xf bank_mask:0xf bound_ctrl:0')
                A('v_sub_u32 v46, v46, v47')
                if self.table:
                    self.build_table(first=(off == 0))
                    return
                A('v_add_u32 v46, 1, v46')
                A('s_nop 0')
                A('v_readlane_b32 s50, v46, s28')
                A('v_readlane_b32 s51, v47, s28')
                A('s_nop 1')
                A('v_mov_b32 v46, s50')
                A('v_mov_b32 v47, s51')
                A(f'v_mov_b32 v39, {IDS + off}')
                A('s_mov_b64 exec, 1')
                A('ds_write_b64 v39, v[46:47]')
                A('s_mov_b64 exec, -1')
            if self.share2:
                A('v_mov_b32 v48, v45')
            shares(pool, 2.5 * navg, 0)
            if self.share2:
                pool2 = (64 - self.UB) * 64
                navg2 = pool2 / 16
                A(f's_add_u32 s58, s50, {4 * US - 1 - 4 - self.K2}')
                def wait_tks(sreg, lab, sleep):
                    self.spin_begin(42)
                    self.L(lab)
                    A('ds_read_b32 v44, v38 offset:52')
                    A('s_waitcnt lgkmcnt(0)')
                    A('v_readfirstlane_b32 s40, v44')
                    A(f's_cmp_ge_u32 s40, s{sreg}')
                    A(f's_cbranch_scc1 {lab}_ok')
                    self.spin_retry(42, lab, sleep=sleep)
                    self.L(f'{lab}_ok')
                wait_tks(58, 'L_h_s2a', 2)
                A('s_memrealtime s[56:57]')
                A(f's_add_u32 s59, s50, {4 * US - 1 - 4}')
                A('s_sub_i32 s59, s59, s40')
                A('s_max_i32 s59, s59, 0')
                A('s_waitcnt lgkmcnt(0)')
                A('v_mov_b32 v40, s56')
                A('v_mov_b32 v41, s59')
                if self.tau2:
                    A(f's_sub_u32 s40, s40, {4 * C - 4}')
                    A('s_sub_u32 s40, s40, s31')
                    A('s_sub_u32 s59, s56, s30')
                    A('v_cvt_f32_u32 v42, s40')
                    A('v_cvt_f32_u32 v43, s59')
                    A('v_rcp_f32 v42, v42')
                    A('s_nop 0')
                    A('v_mul_f32 v42, v42, v43')
                else:
                    A('v_mov_b32 v42, 0')
                A('s_lshl_b32 s40, s27, 8')
                A(f's_add_u32 s40, s40, {WS_T2}')
                A('s_add_u32 s56, s24, s40')
                A('s_addc_u32 s57, s25, 0')
                A('s_lshl_b32 s59, s28, 4')
                A('v_mov_b32 v39, s59')
                self.mkchk(40)
                A('s_mov_b64 exec, 1')
                A('global_store_dwordx4 v39, v[40:43], s[56:57] sc1')
                A('s_mov_b64 exec, -1')
                A(f's_add_u32 s58, s58, {self.Gd2}')
                wait_tks(58, 'L_h_s2b', 2)
                A('v_and_b32 v39, 15, v1')
                A('v_lshlrev_b32 v39, 4, v39')
                self.poll('L_h_t2', ['global_load_dwordx4 v[40:43], v39, s[56:57] sc1'], lambda: self.chk3([40], 44, 45), sleep=2, probe=False)
                A('v_readfirstlane_b32 s40, v40')
                A('v_cvt_f32_u32 v45, v41')
                A('s_nop 0')
                A('v_subrev_u32 v44, s40, v40')
                A('v_cvt_f32_i32 v44, v44')
                if self.tau2:
                    A('v_mov_b32 v46, v42')
                    self.rowred('v_add_f32', 46)
                    A(f'v_mul_f32 v46, {f2h(1 / 16)}, v46')
                    A('v_sub_f32 v42, v42, v46')
                    A(f'v_mul_f32 v42, {f2h(self.lam2)}, v42')
                    A('v_add_f32 v42, v42, v46')
                    A('v_rcp_f32 v42, v42')
                    A('s_nop 0')
                    A('v_mul_f32 v46, v44, v42')
                    A('v_add_f32 v46, v46, v45')
                    A('v_mov_b32 v47, v42')
                    self.mrowred('v_add_f32', [46, 47], (8, 4, 2, 1))
                    A(f'v_add_f32 v46, {f2h(float(pool2))}, v46')
                    A('v_rcp_f32 v47, v47')
                    A('s_nop 0')
                    A('v_mul_f32 v46, v46, v47')
                    A('v_sub_f32 v46, v46, v44')
                    A('v_mul_f32 v46, v46, v42')
                    A('v_sub_f32 v46, v46, v45')
                else:
                    A(f'v_mul_f32 v44, v44, v48')
                    A(f'v_mul_f32 v44, {f2h(1 / self.taufac2)}, v44')
                    A('v_add_f32 v44, v44, v45')
                    A('v_mov_b32 v46, v44')
                    self.rowred('v_add_f32', 46)
                    A(f'v_mul_f32 v46, {f2h(1 / 16)}, v46')
                    A('v_sub_f32 v46, v46, v44')
                    A(f'v_add_f32 v46, {f2h(navg2)}, v46')
                shares(pool2, self.cap2 * navg2, 8)
                A('s_mov_b32 s50, 1')
            A(f's_add_u32 s50, s50, {4 * US - 4 - self.warm_tiles}')
            self.spin_begin(42)
            self.L('L_h_sw3')
            A('ds_read_b32 v44, v38 offset:52')
            A('s_waitcnt lgkmcnt(0)')
            A('v_readfirstlane_b32 s40, v44')
            A('s_cmp_ge_u32 s40, s50')
            A('s_cbranch_scc1 L_h_sw3_ok')
            self.spin_retry(42, 'L_h_sw3', sleep=4)
            self.L('L_h_sw3_ok')
            self.stamp(23)
        elif NI == 0:
            A('s_mov_b32 s50, 0')
            A('v_mov_b32 v44, -1')
            put_id(50, 44)
            if 'dumat' in self.exp:
                A(f's_mul_i32 s40, s27, {self.cstride}')
                A(f's_add_u32 s40, s40, {WS_CNT}')
                A('s_add_u32 s56, s24, s40')
                A('s_addc_u32 s57, s25, 0')
                A('v_mov_b32 v40, 0')
                A('v_mov_b32 v41, 1')
                A('s_mov_b32 s58, 48')
                self.L('L_h_da')
                A('s_lshl_b32 s51, s58, 2')
                self.spin_begin(42)
                self.L('L_h_daw')
                A('ds_read_b32 v44, v38 offset:52')
                A('s_waitcnt lgkmcnt(0)')
                A('v_readfirstlane_b32 s40, v44')
                A('s_cmp_ge_u32 s40, s51')
                A('s_cbranch_scc1 L_h_daok')
                self.spin_retry(42, 'L_h_daw', sleep=2)
                self.L('L_h_daok')
                A('s_mov_b64 exec, 1')
                A('global_atomic_add v42, v40, v41, s[56:57] sc0')
                A('s_mov_b64 exec, -1')
                A('s_waitcnt vmcnt(0)')
                A('s_add_u32 s58, s58, 1')
                A('s_cmp_lt_u32 s58, 63')
                A('s_cbranch_scc1 L_h_da')
        else:
            A(f's_mul_i32 s40, s27, {self.cstride}')
            A(f's_add_u32 s40, s40, {WS_CNT}')
            A('s_add_u32 s56, s24, s40')
            A('s_addc_u32 s57, s25, 0')
            A('v_mov_b32 v40, 0')
            A('v_mov_b32 v41, 1')
            def wait_progress(kreg, lab):
                A(f's_add_u32 s51, s{kreg}, {US - LA}')
                self.spin_begin(42)
                self.L(lab)
                A('ds_read_b128 v[44:47], v38')
                A('s_waitcnt lgkmcnt(0)')
                A('v_max_u32 v44, v44, v45')
                A('v_max3_u32 v44, v44, v46, v47')
                A('s_nop 0')
                A('v_readfirstlane_b32 s40, v44')
                A('s_cmp_ge_u32 s40, s51')
                A(f's_cbranch_scc1 {lab}_ok')
                self.spin_retry(42, lab, sleep=4)
                self.L(f'{lab}_ok')
            def claim(dst):
                A('s_mov_b64 exec, 1')
                A(f'global_atomic_add v{dst}, v40, v41, s[56:57] sc0')
                A('s_mov_b64 exec, -1')
            if self.tickets:
                A('s_mov_b32 s58, 0')
                self.L('L_h_claim')
                A('s_lshl_b32 s51, s58, 2')
                A(f's_add_u32 s51, s51, {4 * US - 4 - self.LAt}')
                self.spin_begin(42)
                self.L('L_h_tw')
                A('ds_read_b32 v44, v38 offset:52')
                A('s_waitcnt lgkmcnt(0)')
                A('v_readfirstlane_b32 s40, v44')
                A('s_cmp_ge_u32 s40, s51')
                A('s_cbranch_scc1 L_h_tw_ok')
                self.spin_retry(42, 'L_h_tw', sleep=2)
                self.L('L_h_tw_ok')
                A(f's_mov_b32 s40, {NI}')
                A(f's_cmp_ge_u32 s58, {CAP}')
                A('s_cbranch_scc1 L_h_tres')
                claim(42)
                A('s_waitcnt vmcnt(0)')
                A('v_readfirstlane_b32 s40, v42')
                self.L('L_h_tres')
                if self.endmargin:
                    A(f's_cmp_lt_u32 s40, {max(NI - self.endmargin, 0)}')
                    A('s_cbranch_scc1 L_h_tnom')
                    A('v_mov_b32 v44, 1')
                    A('s_mov_b64 exec, 1')
                    A('ds_write_b32 v38, v44 offset:48')
                    A('s_mov_b64 exec, -1')
                    self.L('L_h_tnom')
                A(f's_cmp_ge_u32 s40, {NI}')
                A('s_cselect_b32 s40, -2, s40')
                A('s_add_u32 s59, s40, 1')
                A('v_mov_b32 v44, s59')
                put_id(58, 44)
                A('s_add_u32 s58, s58, 1')
                A('s_cmp_lg_u32 s59, -1')
                A('s_cbranch_scc1 L_h_claim')
            else:
                A('s_mov_b32 s50, 0')
                A('s_mov_b32 s58, 0')
                wait_progress(50, 'L_h_cw0')
                claim(42)
                A('s_mov_b32 s50, 1')
                self.L('L_h_claim')
                for par in range(2):
                    cur, nxt = 42 + par, 43 - par
                    last = self.lab('L_h_clast')
                    res = self.lab('L_h_cres')
                    A(f's_cmp_ge_u32 s50, {CAP}')
                    A(f's_cbranch_scc1 {last}')
                    wait_progress(50, self.lab('L_h_cw'))
                    claim(nxt)
                    A('s_add_u32 s50, s50, 1')
                    A('s_waitcnt vmcnt(1)')
                    A(f's_branch {res}')
                    self.L(last)
                    A('s_waitcnt vmcnt(0)')
                    A(f'v_mov_b32 v{nxt}, {NI}')
                    self.L(res)
                    A(f'v_readfirstlane_b32 s40, v{cur}')
                    if self.endmargin:
                        nm = self.lab('L_h_nom')
                        A(f's_cmp_lt_u32 s40, {max(NI - self.endmargin, 0)}')
                        A(f's_cbranch_scc1 {nm}')
                        for q in range(4):
                            A(f'v_mov_b32 v{44 + q}, 1')
                        A('s_mov_b64 exec, 1')
                        A('ds_write_b128 v38, v[44:47] offset:48')
                        A('s_mov_b64 exec, -1')
                        self.L(nm)
                    A(f's_cmp_ge_u32 s40, {NI}')
                    A('s_cselect_b32 s40, -2, s40')
                    A('s_add_u32 s59, s40, 1')
                    A('v_mov_b32 v44, s59')
                    put_id(58, 44)
                    A('s_add_u32 s58, s58, 1')
                    A('s_cmp_eq_u32 s59, -1')
                    A('s_cbranch_scc1 L_h_cdone')
                A('s_branch L_h_claim')
            self.L('L_h_cdone')
            self.stamp(23)
            A('v_mov_b32 v44, 1')
            A('v_mov_b32 v45, 1')
            A('v_mov_b32 v46, 1')
            A('v_mov_b32 v47, 1')
            A('s_mov_b64 exec, 1')
            if self.tickets:
                A('ds_write_b32 v38, v44 offset:48')
            else:
                A('ds_write_b128 v38, v[44:47] offset:48')
            A('s_mov_b64 exec, -1')
            A('s_waitcnt vmcnt(0) lgkmcnt(0)')
        if self.warm_late:
            self.tail_warm()
        if 'notail' in self.exp:
            self.flush_stamps()
            A('s_endpgm')
        if self.trim:
            A('v_mul_u32_u24 v39, 6, v31')
            A(f'v_add_u32 v39, {OB}, v39')
        A('s_barrier')
        if self.pm_b:
            self.pollm('L_h_b', lambda bs: [f'global_load_dwordx4 v[{b}:{b+3}], v{34 + i}, s[48:49] sc1' for i, b in enumerate(bs)],
                       [[40, 44, 48, 52], [68, 72, 76, 80], [96, 100, 104, 108], [128, 132, 136, 140]][:self.nset_b], 56,
                       stag=self.stag_b, invs=[30, 32, 34, 36])
        elif self.dpoll:
            self.poll2('L_h_b', lambda bs: [f'global_load_dwordx4 v[{b}:{b+3}], v{34 + i}, s[48:49] sc1' for i, b in enumerate(bs)],
                       [40, 44, 48, 52], [68, 72, 76, 80], 56, 57, sleep=self.tsleep or 2, stag=self.stag_b, thresh=self.thresh_b,
                       more=([96, 100, 104, 108], [128, 132, 136, 140])[:self.nset_b - 2])
        else:
            self.poll('L_h_b', [f'global_load_dwordx4 v[{40 + 4*i}:{43 + 4*i}], v{34 + i}, s[48:49] sc1' for i in range(4)],
                      lambda: self.chk3([40, 44, 48, 52], 56, 57), sleep=2)
        self.stamp(15)
        A('v_max_f32 v56, v49, v53')
        self.rowred('v_max_f32', 56, rors=(8,))
        self.xrow('v_max_f32', 56, 57)
        A('v_sub_f32 v58, v49, v56')
        A('v_sub_f32 v59, v53, v56')
        A('v_exp_f32 v58, v58')
        A('v_exp_f32 v59, v59')
        A('s_nop 0')
        A('v_mul_f32 v60, v50, v58')
        for i in range(3):
            A(f'v_mul_f32 v{61 + i}, v{40 + i}, v58')
        A('v_fmac_f32 v60, v54, v59')
        for i in range(3):
            A(f'v_fmac_f32 v{61 + i}, v{44 + i}, v59')
        self.mrowred('v_add_f32', [60, 61, 62, 63], (8,))
        self.mxrow('v_add_f32', [60, 61, 62, 63], [84, 85, 86, 87])
        A('v_rcp_f32 v64, v60')
        A('s_nop 0')
        if self.trim:
            for q, r in enumerate((61, 62, 63)):
                A(f'v_mul_f32 v{56 + q}, v{r}, v64')
            for q, r in enumerate((61, 62, 63)):
                A(f'v_fma_f32 v{r}, -v{56 + q}, v60, v{r}')
            for q, r in enumerate((61, 62, 63)):
                A(f'v_fma_f32 v{r}, v{r}, v64, v{56 + q}')
            A('v_cvt_pk_bf16_f32 v61, v61, v62')
            A('v_cvt_pk_bf16_f32 v63, v63, v63')
            A('v_mov_b32 v62, v39')
        else:
            for r in (61, 62, 63):
                A(f'v_mul_f32 v65, v{r}, v64')
                A(f'v_fma_f32 v66, -v65, v60, v{r}')
                A(f'v_fma_f32 v{r}, v66, v64, v65')
            A('v_cvt_pk_bf16_f32 v61, v61, v62')
            A('v_cvt_pk_bf16_f32 v63, v63, v63')
            A('v_mul_u32_u24 v62, 6, v31')
            A(f'v_add_u32 v62, {OB}, v62')
        A('s_mov_b64 exec, 0x3f')
        A('ds_write_b16 v62, v61')
        A('s_mov_b64 exec, 0x1f')
        A('ds_write_b16_d16_hi v62, v61 offset:2')
        A('ds_write_b16 v62, v63 offset:4')
        A('s_mov_b64 exec, -1')
        A('s_waitcnt lgkmcnt(0)')
        A('s_barrier')
        if self.flate == 'h':
            A(f's_cmp_ge_u32 s97, {NRED}')
            A('s_cbranch_scc1 L_h_exit')
            if self.stamps:
                A('s_mov_b32 s65, s64')
            self.f_gather('L_h_f', sleep=self.fsleep, probe=False)
            if self.stamps:
                A('s_mov_b32 s64, s65')
            A('s_waitcnt lgkmcnt(0)')
            A('s_barrier')
            self.L('L_h_exit')
        self.flush_stamps(extra=[(30, 64)])
        A('s_endpgm')

    def build(self):
        head = HEADER + f'; @launch grid=(256,1,1) block=(576,1,1) lds={LDS_BYTES}\n'
        head += '.amdgcn_target "amdgcn-amd-amdhsa--gfx950"\n.text\n'
        head += f'.globl {KNAME}\n.p2align 8\n.type {KNAME},@function\n{KNAME}:\n'
        if self.layout3:
            self.entry3()
            self.loader3()
            if self.halign:
                self.o.append('  .balignl 256, 0xbf810000')
                self.o.append('  .fill 48, 4, 0xbf810000')
            self.helper()
            if self.calign:
                self.o.append('  .balignl 256, 0xbf810000')
                self.o.append('  .fill 48, 4, 0xbf810000')
            self.cons0()
            self.consumer()
        else:
            self.entry()
            self.consumer()
            if self.tickets:
                self.loader_tk()
            else:
                self.loader()
            self.helper()
        self.L('L_end')
        self.A('s_endpgm')
        if 'coldprobe' in self.exp:
            for k in range(6):
                self.o.append('  .fill 512, 4, 0xbf800000')
                self.L(f'L_cp{k}')
                self.A(f's_branch L_cp{k+1}' if k < 5 else 's_branch L_cpback')
        tail = f'''.section .rodata,"a"
.p2align 6
.amdhsa_kernel {KNAME}
  .amdhsa_next_free_vgpr 160
  .amdhsa_next_free_sgpr 100
  .amdhsa_accum_offset 160
  .amdhsa_group_segment_fixed_size 0
  .amdhsa_kernarg_size 88
  .amdhsa_user_sgpr_count 2
  .amdhsa_user_sgpr_kernarg_segment_ptr 1
  .amdhsa_system_sgpr_workgroup_id_x 1
  .amdhsa_float_denorm_mode_32 3
  .amdhsa_float_denorm_mode_16_64 3
.end_amdhsa_kernel
'''
        if self.layout3 and self.pads:
            self.place_pads(head, tail)
        return head + '\n'.join(self.o) + '\n' + tail

    def addresses(self, head, tail):
        import subprocess, tempfile, os, re
        lines = []
        idx = []
        for i, l in enumerate(self.o):
            if l.startswith('  ') and not l.strip().startswith('.'):
                lines.append(f'Lx_{i}:')
                idx.append(i)
            lines.append('' if l.startswith('@') else l)
        with tempfile.TemporaryDirectory() as d:
            src = os.path.join(d, 'a.s'); obj = os.path.join(d, 'a.o')
            open(src, 'w').write(head + '\n'.join(lines) + '\n' + tail)
            r = subprocess.run(['clang', '-x', 'assembler', '-target', 'amdgcn-amd-amdhsa', '-mcpu=gfx950', '-c', src, '-o', obj], capture_output=True, text=True)
            assert r.returncode == 0, r.stderr[:2000]
            out = subprocess.run(['llvm-objdump', '-t', obj], capture_output=True, text=True).stdout
        adr = {}
        for m in re.finditer(r'^([0-9a-f]{16}) .* Lx_(\d+)$', out, re.M):
            adr[int(m.group(2))] = int(m.group(1), 16)
        return adr

    def place_pads(self, head, tail):
        o = self.o
        names = []

        def lab_index(name):
            return o.index(name + ':')

        def insert(first_block, limit_addr, name, after_idx=0):
            adr = self.addresses(head, tail)
            order = sorted(adr)
            last = lab_index('L_end') + 1
            blk = first_block
            while True:
                best = None
                for i in order:
                    if i < after_idx:
                        continue
                    a = adr[i]
                    if a >> 8 > blk or a > adr[last]:
                        break
                    prev = o[i - 1].strip() if i else ''
                    j = i
                    while j > 0 and not o[j - 1].startswith('  '):
                        j -= 1
                    prev = o[j - 1].strip() if j else ''
                    dead = prev.startswith('s_branch') or prev == 's_endpgm'
                    pa = a if dead else a + 4
                    if pa >> 8 == blk and 192 <= (pa & 255) <= 252 and a >> 8 == blk:
                        if best is None or dead and not best[1]:
                            best = (j, dead)
                if best:
                    j, dead = best
                    ins = [f'{name}:', f'  s_branch {name}_next']
                    if not dead:
                        ins = [f'  s_branch {name}_skip'] + ins + [f'{name}_skip:']
                    o[j:j] = ins
                    return blk
                blk += 1
                if blk * 256 + 192 > limit_addr:
                    return None

        c = o.index('@CHAIN')
        code = []
        for w in range(3):
            code += [f'  s_cmp_eq_u32 s26, {w}', f'  s_cbranch_scc1 L_end ; CH{w}']
        code += ['  s_branch L_end ; CH3', 'L_chain_done:']
        o[c:c + 1] = code
        if '@CHAIN2' in o:
            c = o.index('@CHAIN2')
            o[c:c + 1] = ['  s_branch L_end ; CH4', 'L_chain2_done:']
        k = max(i for i, l in enumerate(o[:80]) if 'global_load_lds_dwordx4' in l)
        o.append('L_pad_e:'); o.append('  s_branch L_e1')
        adr = self.addresses(head, tail)
        del o[-2:]
        cand = [i for i in sorted(adr) if i <= k + 1 and 192 <= ((adr[i] + 4) & 255) <= 248 and adr[i] < 256]
        j = cand[-1]
        o[j:j] = ['  s_branch L_pad_e_skip', 'L_pad_e:', '  s_branch L_e1', 'L_pad_e_skip:']
        def addr_of(adr, name):
            i = lab_index(name)
            while i not in adr:
                i += 1
            return adr[i]
        placed = []
        adr = self.addresses(head, tail)
        blk = addr_of(adr, 'L_ld_sp0') >> 8
        while True:
            adr = self.addresses(head, tail)
            end = addr_of(adr, 'L_end')
            hb = addr_of(adr, 'L_helper') >> 8
            if hb <= blk < hb + 5:
                blk = hb + 5
            if self.skipffn:
                f1, ft = addr_of(adr, 'L_h_f1') >> 8, addr_of(adr, 'L_h_tail') >> 8
                if f1 < blk < ft:
                    blk = ft
            if self.calign:
                hbb, cb = addr_of(adr, 'L_h_b_loop') >> 8, addr_of(adr, 'L_cons1') >> 8
                if hbb <= blk < cb + 5:
                    blk = cb + 5
            if not self.latetail and blk >= addr_of(adr, 'L_c_done') >> 8:
                break
            if blk * 256 >= end:
                break
            name = f'L_pad_{len(placed)}'
            o.append(f'{name}_next:'); o.append('  s_branch L_end')
            lim = hb * 256 - 1 if blk < hb else end
            b = insert(blk, lim, name)
            if b is None:
                del o[-2:]
                blk = hb + 5 if blk < hb else 1 << 20
                continue
            placed.append((name, b))
            blk = b + 5
        adr = self.addresses(head, tail)
        regions = [('L_helper', 'L_h_f1'), ('L_cons1', 'L_c_done'), ('L_c_done', 'L_end'), ('L_ld_sp0', 'L_helper'), ('L_h_f1', 'L_cons1')]
        pads = []
        for ra, rb in regions:
            lo, hi = addr_of(adr, ra) >> 8, addr_of(adr, rb) >> 8
            for name, b in placed:
                if name not in pads and lo <= b <= hi:
                    pads.append(name)
        pads = pads[:self.npads or None]
        late = []
        if self.hchain:
            for ra, rb in [('L_ld_sp0', 'L_helper'), ('L_h_tail', 'L_cons1')] + ([('L_c_done', 'L_end')] if self.latetail else []):
                lo, hi = addr_of(adr, ra) >> 8, addr_of(adr, rb) >> 8
                for name, b in placed:
                    if name not in pads and name not in late and b <= hi and b + 4 >= lo:
                        late.append(name)
        dropped = [n for n, _ in placed if n not in pads and n not in late]
        o[:] = [l for n, l in enumerate(o) if not (l.endswith('_next:') or (n and o[n - 1].endswith('_next:')))]
        chains = [pads[w::4] for w in range(4)]
        nxt = {n: 'L_chain_done' for n in dropped}
        for ch in chains:
            for a, b in zip(ch, ch[1:] + ['L_chain_done']):
                nxt[a] = b
        for a, b in zip(late, late[1:] + ['L_chain2_done']):
            nxt[a] = b
        chains.append(late or ['L_chain2_done'])
        for n, l in enumerate(o):
            s_ = l.strip()
            if s_.startswith('s_branch L_pad_') and s_.endswith('_next'):
                o[n] = f'  s_branch {nxt[s_.split()[1][:-5]]}'
        for n, l in enumerate(o):
            if '; CH' in l:
                o[n] = l.split('L_end')[0] + chains[int(l[-1])][0]
        self.padinfo = (pads, chains)


if __name__ == '__main__':
    import argparse
    ap = argparse.ArgumentParser()
    ap.add_argument('-o', default='parallel_sum__gqa_block_cached__dense_activation_silu__decode.s')
    ap.add_argument('--W', type=int, default=5)
    ap.add_argument("--rot", type=int, default=8)
    ap.add_argument('--headmap', default='lin')
    ap.add_argument('--stamps', action='store_true')
    ap.add_argument('--exp', default='')
    a = ap.parse_args()
    open(a.o, 'w').write(Gen(W=a.W, rot=a.rot, headmap=a.headmap, stamps=a.stamps, exp=[e for e in a.exp.split(',') if e]).build())
    print('wrote', a.o)
```
